```python
import torch

def _softmax(x, axis=-1):
    return torch.softmax(x, dim=axis)
def _gelu(x):
    return torch.nn.functional.gelu(x, approximate="tanh")
def _silu(x):
    return torch.nn.functional.silu(x)
def _sigmoid(x):
    return torch.sigmoid(x)
def _layernorm(x, axis=-1, eps=1e-5):
    m = x.mean(dim=axis, keepdim=True)
    v = x.var(dim=axis, keepdim=True, unbiased=False)
    return (x - m) / torch.sqrt(v + eps)
def _scatter_add(tgt, idx, src, axis=0):
    return tgt.clone().index_add_(axis, idx, src)
def _segment_sum(src, seg, n):
    out = torch.zeros((n,) + src.shape[1:], dtype=src.dtype)
    return out.index_add_(0, seg, src)
def _pad(x, pw):
    flat = tuple(v for pair in reversed(pw) for v in pair)
    return torch.nn.functional.pad(x, flat)

kernel_name = 'concat_heads__linear_attn_block__linear_kernel_hedgehog__prompt'

def setup_inputs():

    _w = (lambda a: (lambda t: t.to(torch.bfloat16) if t.is_floating_point() else t)(torch.as_tensor(a)))
    def _A_setup():
        B, S, D = 1, 2048, 576
        return {
            "x": _w((lambda *s: torch.randn(*s, dtype=torch.bfloat16) * 0.05)(B, S, D)),
            "wqkv": _w((lambda *s: torch.randn(*s, dtype=torch.bfloat16) * 0.8)(D, 3 * D)),
            "wo": _w((lambda *s: torch.randn(*s, dtype=torch.bfloat16) * 0.2)(D, D)),
        }
    _A_in = _A_setup()

    def _B_setup():
        B, S, D, H = 1, 2048, 576, 32
        Dh = D // H
        return {
            "x": _w((lambda *s: torch.randn(*s, dtype=torch.bfloat16) * 0.4)(B, S, D)),
            "wqkv": _w((lambda *s: torch.randn(*s, dtype=torch.bfloat16) * 0.4)(D, 3 * D)),
            "w_phi": _w((lambda *s: torch.randn(*s, dtype=torch.bfloat16) * 0.4)(H, Dh, Dh) * (Dh ** -0.5)),
            "wo": _w((lambda *s: torch.randn(*s, dtype=torch.bfloat16) * 0.05)(D, D)),
        }
    _B_in = _B_setup()

    return {
        "A_x": _A_in["x"],
        "A_wqkv": _A_in["wqkv"],
        "A_wo": _A_in["wo"],
        "B_x": _B_in["x"],
        "B_wqkv": _B_in["wqkv"],
        "B_w_phi": _B_in["w_phi"],
        "B_wo": _B_in["wo"],
    }

def reference(A_x, A_wqkv, A_wo, B_x, B_wqkv, B_w_phi, B_wo):
    def _A_ref(x, wqkv, wo):
        B, S, D = x.shape
        H = 32; Dh = D // H
        qkv = (lambda x, *d: x.permute(*d))((x @ wqkv).reshape(B, S, 3, H, Dh), 2, 0, 3, 1, 4)
        q, k, v = qkv[0], qkv[1], qkv[2]
        phi = lambda t: torch.where(t > 0, t + 1, torch.exp(t)) + 1e-6
        pq, pk = phi(q), phi(k)
        kv = torch.einsum("bhsd,bhse->bhde", pk, v)
        z = torch.einsum("bhsd->bhd", pk)
        num = torch.einsum("bhqd,bhde->bhqe", pq, kv)
        den = torch.einsum("bhqd,bhd->bhq", pq, z)[..., None] + 1e-6
        o = num / den
        return (lambda x, *d: x.permute(*d))(o, 0, 2, 1, 3).reshape(B, S, D) @ wo

    def _B_ref(x, wqkv, w_phi, wo):
        B, S, D = x.shape
        H = 32; Dh = D // H
        qkv = (lambda x, *d: x.permute(*d))((x @ wqkv).reshape(B, S, 3, H, Dh), 2, 0, 3, 1, 4)
        q, k, v = qkv[0], qkv[1], qkv[2]
        pq = torch.einsum("bhsd,hdf->bhsf", q, w_phi)
        pk = torch.einsum("bhsd,hdf->bhsf", k, w_phi)
        phi_q = torch.concatenate([_softmax(pq, axis=-1), _softmax(-pq, axis=-1)], axis=-1)
        phi_k = torch.concatenate([_softmax(pk, axis=-1), _softmax(-pk, axis=-1)], axis=-1)
        kv = torch.einsum("bhsf,bhsd->bhfd", phi_k, v)
        z  = torch.einsum("bhsf->bhf", phi_k)
        num = torch.einsum("bhqf,bhfd->bhqd", phi_q, kv)
        den = torch.einsum("bhqf,bhf->bhq", phi_q, z)[..., None] + 1e-6
        o = num / den
        return (lambda x, *d: x.permute(*d))(o, 0, 2, 1, 3).reshape(B, S, D) @ wo

    a = _A_ref(A_x, A_wqkv, A_wo)
    b = _B_ref(B_x, B_wqkv, B_w_phi, B_wo)
    return torch.concatenate([a, b], axis=-1)
```

```python
import re

class R:
    def __init__(self, kind, idx, n=1):
        self.kind, self.idx, self.n = kind, idx, n
    def __str__(self):
        if self.n == 1: return "%s%d" % (self.kind, self.idx)
        return "%s[%d:%d]" % (self.kind, self.idx, self.idx + self.n - 1)
    def __getitem__(self, i):
        if isinstance(i, slice):
            st = i.start or 0
            en = i.stop if i.stop is not None else self.n
            assert 0 <= st < en <= self.n, (st, en, self.n)
            return R(self.kind, self.idx + st, en - st)
        assert 0 <= i < self.n, (i, self.n)
        return R(self.kind, self.idx + i, 1)
    def regs(self):
        return {(self.kind, self.idx + i) for i in range(self.n)}

def v(i, n=1): return R('v', i, n)
def a(i, n=1): return R('a', i, n)
def s(i, n=1): return R('s', i, n)

class Neg:
    def __init__(self, r): self.r = r
    def __str__(self): return "-" + str(self.r)

TRANS = ("v_exp_f32", "v_rcp_f32", "v_log_f32", "v_rsq_f32", "v_sqrt_f32")

def regs_of(op):
    if isinstance(op, R): return op.regs()
    if isinstance(op, Neg): return op.r.regs()
    if op == "vcc": return {('s', 'vcc')}
    if op == "exec": return {('s', 'exec')}
    if op == "m0": return {('s', 'm0')}
    return set()

class Ins:
    def __init__(self, op, args, mods="", comment=""):
        self.op, self.args, self.mods, self.comment = op, list(args), mods, comment
        self.classify()
    def text(self):
        t = self.op
        if self.args: t += " " + ", ".join(str(x) for x in self.args)
        if self.mods: t += " " + self.mods
        if self.comment: t += "   ; " + self.comment
        return "  " + t
    def classify(self):
        op, A = self.op, self.args
        self.kind = None
        self.defs, self.uses = set(), set()
        self.srcc = set(); self.ab = set(); self.stdata = set()
        if op.startswith("v_mfma"):
            self.kind = "mfma"
            self.defs = regs_of(A[0]); self.ab = regs_of(A[1]) | regs_of(A[2]); self.srcc = regs_of(A[3])
            self.uses = self.ab | self.srcc
            self.passes = 4 if "16x16x32" in op else 8
        elif op.startswith("v_"):
            self.kind = "valu"
            if op.startswith("v_cmp"):
                self.defs = regs_of(A[0]); srcs = A[1:]
            elif op.startswith("v_readfirstlane") or op.startswith("v_readlane"):
                self.defs = regs_of(A[0]); srcs = A[1:]
            elif op.startswith("v_permlane"):
                self.defs = regs_of(A[0]) | regs_of(A[1]); srcs = A
            else:
                self.defs = regs_of(A[0]); srcs = A[1:]
                if op.startswith("v_fmac") or op.startswith("v_dot2c"): srcs = A
            for x in srcs: self.uses |= regs_of(x)
        elif op.startswith("ds_"):
            self.kind = "ds"
            if op.startswith("ds_read"):
                self.defs = regs_of(A[0]); self.uses = regs_of(A[1])
            else:
                for x in A: self.uses |= regs_of(x)
        elif op.startswith("buffer_") or op.startswith("global_"):
            self.kind = "vmem"
            islds = " lds" in (" " + self.mods)
            self.islds = islds
            if "load" in op and not islds:
                self.defs = regs_of(A[0])
                for x in A[1:]: self.uses |= regs_of(x)
            else:
                for x in A: self.uses |= regs_of(x)
                if islds: self.uses |= {('s', 'm0')}
                if "store" in op and ("x4" in op or "x3" in op):
                    self.stdata = regs_of(A[0]) if op.startswith("buffer_") else regs_of(A[1])
        elif op.startswith("s_"):
            self.kind = "salu"
            if op in ("s_waitcnt", "s_barrier", "s_nop", "s_endpgm", "s_sleep", "s_setprio") or op.startswith("s_cbranch") or op == "s_branch":
                self.kind = "ctl"
            elif op.startswith("s_cmp"):
                for x in A: self.uses |= regs_of(x)
            else:
                self.defs = regs_of(A[0])
                for x in A[1:]: self.uses |= regs_of(x)
        else:
            raise ValueError(op)
    def states(self):
        if self.op == "s_nop": return int(self.args[0]) + 1
        return 1

class Label:
    def __init__(self, name): self.name = name
    def text(self): return self.name + ":"

class Raw:
    def __init__(self, t): self.t = t
    def text(self): return self.t

def need(p, c):
    n = 0
    vg = lambda S: {r for r in S if r[0] in 'va'}
    sg = lambda S: {r for r in S if r[0] == 's'}
    if p.kind == "valu":
        if c.kind == "mfma" and vg(p.defs) & c.uses: n = max(n, 2)
        if c.kind == "vmem" and sg(p.defs) & c.uses: n = max(n, 5)
        if c.kind == "valu":
            if sg(p.defs) & c.uses: n = max(n, 2)
            if c.op.startswith("v_readlane") and sg(p.defs) & c.uses: n = max(n, 4)
            if (c.op.startswith("v_readfirstlane") or c.op.startswith("v_readlane")) and vg(p.defs) & c.uses: n = max(n, 1)
            if p.op in TRANS and vg(p.defs) & c.uses: n = max(n, 1)
            if c.op.startswith("v_permlane") and vg(p.defs) & c.uses: n = max(n, 2)
            if "dpp" in c.mods or "quad_perm" in c.mods or "row_" in c.mods:
                if vg(p.defs) & c.uses: n = max(n, 2)
        if p.op in TRANS and c.kind in ("ds", "vmem") and vg(p.defs) & c.uses: n = max(n, 1)
        if c.kind == "salu" and sg(p.defs) & c.uses: n = max(n, 1)
    if p.kind == "mfma":
        big = {4: 8, 8: 12}[p.passes]
        if c.kind == "mfma":
            if p.defs & c.ab: n = max(n, big)
            if p.defs & c.srcc and not (p.defs == c.srcc and p.passes == c.passes): n = max(n, big - 2)
            if p.defs & c.defs and not (p.defs == c.srcc): n = max(n, big)
        elif c.kind in ("valu", "ds", "vmem"):
            if p.defs & (c.uses | c.defs): n = max(n, big)
            if c.kind == "valu" and p.srcc & c.defs: n = max(n, {4: 3, 8: 7}[p.passes])
    if p.kind == "salu":
        if ('s', 'm0') in p.defs and c.kind == "vmem" and getattr(c, "islds", False): n = max(n, 1)
    if p.kind == "vmem" and p.stdata:
        if p.stdata & c.defs: n = max(n, 2)
    return n

class Prog:
    def __init__(self):
        self.items = []
    def I(self, op, *args, mods="", c=""):
        ins = Ins(op, args, mods, c)
        self.items.append(ins)
        return ins
    def label(self, name): self.items.append(Label(name))
    def raw(self, t): self.items.append(Raw(t))
    def comment(self, t): self.items.append(Raw("  ; ---- " + t))
    def finalize(self):
        out = []
        hist = []
        nops = 0
        for it in self.items:
            if isinstance(it, Ins):
                req = 0
                dist = 0
                for p in reversed(hist):
                    nd = need(p, it)
                    if nd > dist: req = max(req, nd - dist)
                    dist += p.states()
                    if dist >= 14: break
                if req > 0:
                    nop = Ins("s_nop", [req - 1], "", "hazard")
                    out.append(nop); hist.append(nop); nops += 1
                out.append(it); hist.append(it)
                hist = hist[-20:]
            else:
                out.append(it)
        self.nops = nops
        return "\n".join(x.text() for x in out)
```

```python
import sys, struct
from asmdsl import *

NAME = "concat_heads__linear_attn_block__linear_kernel_hedgehog__prompt"
OPT = dict(stamps=False, nphase=3)

def f2u(x): return struct.unpack("<I", struct.pack("<f", x))[0]
LOG2E = 1.4426950408889634

XS = 0; XSLOT = 16384
WSL = 49152; WSLOT = 18432
WQ0 = 104448
WQ6 = 76800
PHI = 104448
ZERO = 159744
IMG = 0
VF = 36864
KVI = 57344
WO0 = 0
WO6 = 104448
LDS_BYTES = 163840
WS_P = 0; WS_F = 0x300000; WS_O = 0x400000; WS_ST = 0x900000; WS_BYTES = 0xA00000
OOB = 0x7ffffff0
SPIN = 30000

SX, SW, SWO, SWS, SOUT, SDBG, SPHI = s(24, 4), s(28, 4), s(32, 4), s(36, 4), s(40, 4), s(44, 4), s(48, 4)
sA, sRT, sG, sWV = s(52), s(53), s(54), s(55)
sST, sOX, sOW = s(56), s(57), s(58)
sMX, sMW = s(60), s(61)
sT0, sT1, sT2, sT3 = s(62), s(63), s(64), s(65)
sXB = s(66)
sROT = s(67)
sPME, sPGR, sFG, sOB = s(68), s(69), s(70), s(71)
sCNT = s(72)
sC = s(74, 2)
sEPS = s(76, 2)
sODD = s(78, 2)
sMQ = s(80)
sIDX = s(81)
sPC = s(82, 2)
sSTB = 84

vL = v(0)
T = [v(i) for i in range(1, 10)]
vOX = [v(10 + i) for i in range(4)]
vOW = [v(14 + i) for i in range(5)]
vXR = [v(19), v(20)]
vTR = [[v(21 + 2 * p + e) for e in range(2)] for p in range(5)]
vOQ = [v(31 + i) for i in range(5)]
vOO = [v(36 + i) for i in range(5)]
vO8 = [v(41 + i) for i in range(5)]
vL16 = v(46)
vGL, vN = v(47), v(48)
vA = [v(49 + i) for i in range(11)]
vM1 = v(60, 4)
ACK = [[v(64 + 20 * p + 4 * t, 4) for t in range(5)] for p in range(2)]
ACV = [[v(104 + 20 * p + 4 * t, 4) for t in range(5)] for p in range(2)]
RING = [v(144 + 4 * i, 4) for i in range(8)]
def XF(ks, p): return a(ks * 8 + p * 4, 4)
def PHIF(t, j): return a(144 + (t * 3 + j) * 4, 4)
def PSIF(t, j): return a(144 + (t * 5 + j) * 4, 4)

P = Prog()
I = P.I
stamp_n = [0]
def stamp(name):
    if not OPT["stamps"]: return
    k = stamp_n[0]; stamp_n[0] += 1
    assert k < 16
    I("s_memtime", s(100, 2), c="stamp " + name)
    I("s_waitcnt", "lgkmcnt(0)")
    I("s_mov_b32", s(sSTB + k), s(100))

def wait(vm=None, lgkm=None):
    t = []
    if vm is not None: t.append("vmcnt(%d)" % vm)
    if lgkm is not None: t.append("lgkmcnt(%d)" % lgkm)
    I("s_waitcnt", " ".join(t))

def srd(dst, lo, hi, size):
    I("s_mov_b32", dst[0], lo); I("s_mov_b32", dst[1], hi)
    I("s_mov_b32", dst[2], size); I("s_mov_b32", dst[3], 0x20000)

def piece_decode(i):
    I("v_add_u32", T[3], 64 * i, vL) if i else I("v_mov_b32", T[3], vL)
    I("v_mul_u32_u24", T[0], 3641, T[3])
    I("v_lshrrev_b32", T[0], 16, T[0])
    I("v_mul_u32_u24", T[1], 18, T[0])
    I("v_sub_u32", T[1], T[3], T[1])
    I("v_lshrrev_b32", T[3], 1, T[0])
    I("v_and_b32", T[3], 4, T[3])
    I("v_xor_b32", T[0], T[0], T[3])
    I("v_add_u32", T[2], 7, T[1])
    I("v_lshrrev_b32", T[2], 4, T[2])

def next_stage():
    I("s_lshl_b32", sOX, sST, 7)
    I("s_add_u32", sOX, sOX, sXB)
    I("s_mul_i32", sOW, sST, 64 * 3456)
    I("s_add_u32", sST, sST, 1)
    I("s_cmp_eq_u32", sST, 9)
    I("s_cselect_b32", sST, 0, sST)

def dma5(voffs, srdreg, soff, m0base, m0imm):
    ops = []
    def first():
        I("s_add_u32", "m0", m0base, m0imm)
        I("buffer_load_dwordx4", voffs[0], srdreg, soff, mods="offen lds")
    ops.append(first)
    for i in range(1, 4):
        ops.append(lambda i=i: I("buffer_load_dwordx4", voffs[i], srdreg, soff, mods="offen offset:%d lds" % (1024 * i)))
    def last():
        I("s_add_u32", "m0", m0base, m0imm + 4096)
        I("s_mov_b32", "exec_hi", 0)
        I("buffer_load_dwordx4", voffs[4], srdreg, soff, mods="offen lds")
        I("s_mov_b32", "exec_hi", -1)
    ops.append(last)
    return ops

def stage_dma(slot):
    ops = []
    def first():
        next_stage()
        I("s_add_u32", "m0", sMX, slot * XSLOT)
        I("buffer_load_dwordx4", vOX[0], SX, sOX, mods="offen lds")
    ops.append(first)
    for i in range(1, 4):
        ops.append(lambda i=i: I("buffer_load_dwordx4", vOX[i], SX, sOX, mods="offen offset:%d lds" % (1024 * i)))
    ops += dma5(vOW, SW, sOW, sMW, slot * WSLOT)
    return ops

def wq_pair_dma(j):
    ops = []
    pos = lambda st: (WQ0 + st * 9216) if st < 6 else (WQ6 + (st - 6) * 9216)
    def setup():
        I("s_lshr_b32", sT0, sWV, 1)
        I("s_add_u32", sT0, sT0, sROT)
        I("s_add_u32", sT0, sT0, j)
        I("s_cmp_ge_u32", sT0, 9)
        I("s_cselect_b32", sT1, 9, 0)
        I("s_sub_u32", sT0, sT0, sT1)
        I("s_mul_i32", sOW, sT0, 64 * 3456)
    d = dma5(vOQ, SW, sOW, sMQ, pos(j))
    ops.append(lambda: (setup(), d[0]()))
    ops += d[1:]
    return ops

def wo_pair_dma(u):
    pos = lambda st: (WO0 + st * 9216) if st < 6 else (WO6 + (st - 6) * 9216)
    def setup():
        I("s_lshr_b32", sT0, sWV, 1)
        I("s_add_u32", sT0, sT0, sG)
        I("s_add_u32", sT0, sT0, u)
        I("s_and_b32", sT0, sT0, 7)
        I("s_mul_i32", sOW, sT0, 72 * 1152)
    d = dma5(vOO, SWO, sOW, sMQ, pos(u))
    return [lambda: (setup(), d[0]())] + d[1:]

def tr(dst, addr, off):
    assert 0 <= off < 65536, off
    I("ds_read_b64_tr_b16", dst, addr, mods="offset:%d" % off)

def mfma(d, x, y, c):
    I("v_mfma_f32_16x16x32_bf16", d, x, y, c)

def tile_read(dstreg, T_, base_off):
    if T_ < 3: pat, o = 0, 8 * T_
    elif T_ == 3: pat, o = 1, 0
    elif T_ == 4: pat, o = 2, 0
    elif T_ < 9: pat, o = 3, 144 + 8 * [0, 5, 9, 14][T_ - 5]
    else: pat, o = 4, 144
    for e in range(2):
        tr(dstreg[2 * e:2 * e + 2], vTR[pat][e], base_off + o)

class Pipe:
    def __init__(self, dist=4, group=1):
        self.units = []; self.dist = dist
    def add(self, nreads, rd, work): self.units.append((nreads, rd, work))
    def emit(self, fillers=(), every=2, start=1):
        fillers = list(fillers)
        U = self.units; n = len(U); d = self.dist
        issued = 0
        for k in range(min(d, n)): U[k][1](); issued = k + 1
        for k in range(n):
            if issued < n: U[issued][1](); issued += 1
            later = sum(U[q][0] for q in range(k + 1, issued))
            assert later <= 15
            wait(lgkm=later)
            U[k][2]()
            if fillers and k >= start and (k - start) % every == 0: fillers.pop(0)()
        for f in fillers: f()

def softmax_block(src18, out18, tmp):
    mx, mn = tmp[18], tmp[19]
    I("v_max3_f32", mx, src18[0], src18[1], src18[2]); I("v_min3_f32", mn, src18[0], src18[1], src18[2])
    for i in range(3, 17, 2):
        I("v_max3_f32", mx, mx, src18[i], src18[i + 1]); I("v_min3_f32", mn, mn, src18[i], src18[i + 1])
    I("v_max_f32", mx, mx, src18[17]); I("v_min_f32", mn, mn, src18[17])
    ab = tmp[20:22]
    I("v_mul_f32", ab[0], sC[0], mx); I("v_mul_f32", ab[1], sC[0], mn)
    for i in range(0, 18, 2):
        I("v_pk_fma_f32", tmp[i:i + 2], src18[i:i + 2], sC, ab, mods="op_sel:[0,0,1] op_sel_hi:[1,1,1] neg_lo:[1,0,0] neg_hi:[1,0,0]")
        I("v_pk_fma_f32", src18[i:i + 2], src18[i:i + 2], sC, ab, mods="op_sel:[0,0,0] op_sel_hi:[1,1,0] neg_lo:[0,0,1] neg_hi:[0,0,1]")
    for i in range(18):
        I("v_exp_f32", src18[i], src18[i]); I("v_exp_f32", tmp[i], tmp[i])
    sp, sn = tmp[18:20], tmp[20:22]
    I("v_pk_add_f32", sp, src18[0:2], src18[2:4]); I("v_pk_add_f32", sn, tmp[0:2], tmp[2:4])
    for i in range(4, 18, 2):
        I("v_pk_add_f32", sp, sp, src18[i:i + 2]); I("v_pk_add_f32", sn, sn, tmp[i:i + 2])
    rr = tmp[22:24]
    I("v_add_f32", rr[0], sp[0], sp[1]); I("v_add_f32", rr[1], sn[0], sn[1])
    I("v_rcp_f32", rr[0], rr[0]); I("v_rcp_f32", rr[1], rr[1])
    for i in range(0, 18, 2):
        I("v_pk_mul_f32", src18[i:i + 2], src18[i:i + 2], rr, mods="op_sel:[0,0] op_sel_hi:[1,0]")
        I("v_pk_mul_f32", tmp[i:i + 2], tmp[i:i + 2], rr, mods="op_sel:[0,1] op_sel_hi:[1,1]")
    for i in range(9):
        I("v_cvt_pk_bf16_f32", out18[i], src18[2 * i], src18[2 * i + 1])
        I("v_cvt_pk_bf16_f32", out18[9 + i], tmp[2 * i], tmp[2 * i + 1])

KB = [v(176 + 12 * p, 12) for p in range(2)]
PH = [v(200 + 20 * p, 20) for p in range(2)]
TMP = v(144, 24)

def feature_map(tag):
    acc = [v(64 + 20 * p, 20) for p in range(2)]
    for p in range(2):
        I("v_cndmask_b32", acc[p][16], acc[p][16], acc[p][18], sODD)
        I("v_cndmask_b32", acc[p][17], acc[p][17], acc[p][19], sODD)
    I("s_cmp_lg_u32", sA, 0)
    I("s_cbranch_scc1", "L_phiA_" + tag)
    for p in range(2):
        for i in range(9):
            I("v_cvt_pk_bf16_f32", KB[p][i], acc[p][2 * i], acc[p][2 * i + 1])
    for p in range(2):
        for j in range(3):
            for t in range(5):
                mfma(ACK[p][t], PHIF(t, j), KB[p][4 * j:4 * j + 4], 0 if j == 0 else ACK[p][t])
    for p in range(2):
        softmax_block(acc[p][0:18], PH[p][0:18], TMP)
    I("s_branch", "L_phiE_" + tag)
    P.label("L_phiA_" + tag)
    for p in range(2):
        x = acc[p]
        for i in range(0, 18, 2):
            I("v_pk_mul_f32", TMP[i:i + 2], x[i:i + 2], sC)
        for i in range(18):
            I("v_exp_f32", TMP[i], TMP[i], mods="clamp")
            I("v_max_f32", x[i], 0, x[i])
        for i in range(0, 18, 2):
            I("v_pk_add_f32", x[i:i + 2], x[i:i + 2], TMP[i:i + 2])
        for i in range(0, 18, 2):
            I("v_pk_add_f32", x[i:i + 2], x[i:i + 2], sEPS)
        for i in range(9):
            I("v_cvt_pk_bf16_f32", PH[p][i], x[2 * i], x[2 * i + 1])
            I("v_mov_b32", PH[p][9 + i], 0)
    P.label("L_phiE_" + tag)
    I("s_nop", 1)

def spin_header(tag):
    I("s_mov_b32", sCNT, 0)
    P.label("L_sp_" + tag)
def spin_footer(tag, chk):
    I("v_cmp_eq_u32", "vcc", -1, chk)
    I("s_add_u32", sCNT, sCNT, 1)
    I("s_cmp_gt_u32", sCNT, SPIN)
    I("s_cbranch_scc1", "L_spd_" + tag)
    I("s_cbranch_vccnz", "L_sp_" + tag)
    P.label("L_spd_" + tag)

def umax(dst, regs):
    regs = list(regs)
    I("v_max3_u32", dst, regs[0], regs[1], regs[2]); regs = regs[3:]
    while len(regs) >= 2:
        I("v_max3_u32", dst, dst, regs[0], regs[1]); regs = regs[2:]
    if regs: I("v_max_u32", dst, dst, regs[0])

def build():
    I("s_cmp_ge_u32", s(2), 256)
    I("s_cbranch_scc1", "L_end")
    I("s_load_dwordx16", s(4, 16), s(0, 2), 0)
    I("s_load_dwordx4", s(20, 4), s(0, 2), 64)
    I("s_getpc_b64", sPC)
    I("v_lshrrev_b32", T[0], 6, v(0))
    I("v_and_b32", vL, 63, v(0))
    I("s_lshr_b32", sIDX, s(2), 3)
    I("v_readfirstlane_b32", sWV, T[0])
    I("s_lshl_b32", sT0, sIDX, 2)
    I("v_add_u32", T[0], sT0, T[0])
    I("v_lshlrev_b32", T[0], 1, T[0])
    I("v_and_b32", T[1], 1, vL)
    I("v_add_lshl_u32", T[0], T[0], T[1], 7)
    I("v_min_u32", T[0], "CODE_SPAN", T[0])
    I("global_load_dword", v(255), T[0], sPC)
    if OPT["stamps"]:
        I("s_memtime", s(98, 2)); I("s_memrealtime", s(96, 2))
    I("s_bfe_u32", sA, s(2), 0x10002)
    I("s_and_b32", sT0, s(2), 3)
    I("s_lshr_b32", sT1, sIDX, 3)
    I("s_lshl_b32", sRT, sT0, 2)
    I("s_add_u32", sRT, sRT, sT1)
    I("s_and_b32", sG, sIDX, 7)
    if OPT["nphase"] == 3:
        I("s_add_u32", sT0, sG, sT1)
        I("s_mul_i32", sT1, sT0, 86)
        I("s_lshr_b32", sT1, sT1, 8)
        I("s_mul_i32", sT1, sT1, 3)
        I("s_sub_u32", sT0, sT0, sT1)
        I("s_mul_i32", sROT, sT0, 3)
    elif OPT["nphase"] == 2:
        I("s_add_u32", sT0, sG, sT1)
        I("s_and_b32", sT0, sT0, 1)
        I("s_mul_i32", sROT, sT0, 4)
    else:
        I("s_mov_b32", sROT, 0)
    I("s_mov_b32", sST, sROT)
    I("s_lshl_b32", sT0, sRT, 2)
    I("s_add_u32", sT0, sT0, sWV)
    I("s_mul_i32", sXB, sT0, 32 * 1152)
    I("s_lshl_b32", sMX, sWV, 12)
    I("s_mul_i32", sMQ, sWV, 4608)
    I("s_add_u32", sMW, sMQ, WSL)
    I("v_lshrrev_b32", T[0], 3, vL)
    I("v_mul_u32_u24", T[0], 1152, T[0])
    I("v_lshrrev_b32", vGL, 4, vL)
    I("v_and_b32", T[1], 7, vL)
    I("v_xor_b32", T[1], T[1], vGL)
    I("v_lshl_add_u32", vOX[0], T[1], 4, T[0])
    I("v_xor_b32", T[1], 4, T[1])
    I("v_lshl_add_u32", vOX[1], T[1], 4, T[0])
    I("v_add_u32", vOX[2], 16 * 1152 - 2048, vOX[0])
    I("v_add_u32", vOX[3], 24 * 1152 - 3072, vOX[1])
    I("v_add_u32", vOX[1], 8 * 1152 - 1024, vOX[1])
    I("s_mul_i32", sT2, sG, 144)
    I("s_mul_i32", sT0, sWV, 16 * 3456)
    I("s_add_u32", sT0, sT0, sT2)
    I("s_movk_i32", sT3, 3456)
    for i in range(5):
        piece_decode(i)
        I("v_mul_u32_u24", T[2], 1008, T[2])
        I("v_lshl_add_u32", T[1], T[1], 4, T[2])
        I("v_mad_u32_u24", T[0], T[0], sT3, T[1])
        I("s_add_u32", sT1, sT0, 1152 - (1024 * i if i < 4 else 0) & 0xffffffff)
        I("v_add_u32", vOW[i], sT1, T[0])
    wait(lgkm=0)
    I("s_cmp_lg_u32", sA, 0)
    I("s_cselect_b32", SX[0], s(4), s(10)); I("s_cselect_b32", SX[1], s(5), s(11))
    I("s_cselect_b32", SW[0], s(6), s(12)); I("s_cselect_b32", SW[1], s(7), s(13))
    I("s_cselect_b32", SWO[0], s(8), s(16)); I("s_cselect_b32", SWO[1], s(9), s(17))
    I("s_mov_b32", SX[2], 2048 * 1152); I("s_mov_b32", SX[3], 0x20000)
    I("s_mov_b32", SW[2], 576 * 3456); I("s_mov_b32", SW[3], 0x20000)
    for f in stage_dma(0): f()
    for f in stage_dma(1): f()
    I("s_mov_b32", SWO[2], 576 * 1152); I("s_mov_b32", SWO[3], 0x20000)
    srd(SWS, s(22), s(23), WS_BYTES)
    srd(SOUT, s(18), s(19), 2048 * 2304)
    srd(SDBG, s(20), s(21), 256)
    srd(SPHI, s(14), s(15), 32 * 648)
    stamp("issued01")
    I("s_lshl_b32", sT0, sG, 2); I("s_add_u32", sT0, sT0, sWV); I("s_mul_i32", sT0, sT0, 648)
    I("v_lshlrev_b32", T[0], 2, vL)
    PW = v(240, 3)
    for i in range(3):
        I("buffer_load_dword", PW[i], T[0], SPHI, sT0, mods="offen offset:%d" % (256 * i))
    I("v_and_b32", vN, 15, vL)
    I("v_lshlrev_b32", vL16, 4, vL)
    I("s_mov_b32", sC[0], f2u(LOG2E)); I("s_mov_b32", sC[1], f2u(LOG2E))
    I("s_mov_b32", sEPS[0], f2u(1e-6)); I("s_mov_b32", sEPS[1], f2u(1e-6))
    I("s_mov_b32", sODD[0], 0xffff0000); I("s_mov_b32", sODD[1], 0xffff0000)
    for i in range(4): I("v_mov_b32", vM1[i], -1)
    I("v_lshrrev_b32", T[0], 1, vN)
    I("v_xor_b32", T[0], T[0], vGL)
    I("v_lshlrev_b32", T[1], 7, vN)
    I("v_add_u32", T[1], sMX, T[1])
    I("v_lshl_add_u32", vXR[0], T[0], 4, T[1])
    I("v_xor_b32", T[0], 4, T[0])
    I("v_lshl_add_u32", vXR[1], T[0], 4, T[1])
    vR, vC = T[4], T[5]
    I("v_bfe_u32", vR, vL, 2, 2)
    I("v_and_b32", vC, 3, vL)
    I("v_and_b32", T[0], 1, vGL)
    I("v_lshlrev_b32", T[0], 2, T[0])
    I("v_lshl_add_u32", T[1], vGL, 3, vR)
    I("v_add_u32", T[2], T[1], T[0])
    I("v_xor_b32", T[3], 4, T[2])
    I("v_mul_u32_u24", T[2], 288, T[2]); I("v_mul_u32_u24", T[3], 288, T[3])
    I("v_add_u32", T[2], WSL, T[2]); I("v_add_u32", T[3], WSL, T[3])
    I("v_mul_u32_u24", T[0], 40, vC)
    I("v_lshrrev_b32", T[1], 1, vC)
    I("v_add_u32", vTR[0][0], T[2], T[0]); I("v_add_u32", vTR[0][1], T[3], T[0])
    I("v_lshlrev_b32", T[6], 5, T[1]); I("v_sub_u32", T[6], T[0], T[6]); I("v_add_u32", T[6], 24, T[6])
    I("v_add_u32", vTR[1][0], T[2], T[6]); I("v_add_u32", vTR[1][1], T[3], T[6])
    I("v_mul_u32_u24", T[6], 72, T[1]); I("v_add_u32", T[6], 32, T[6])
    I("v_add_u32", vTR[2][0], T[2], T[6]); I("v_add_u32", vTR[2][1], T[3], T[6])
    I("v_lshl_add_u32", vTR[3][0], vC, 3, T[2]); I("v_lshl_add_u32", vTR[3][1], vC, 3, T[3])
    I("v_and_b32", T[6], 1, vC); I("v_mul_u32_u24", T[6], 72, T[6]); I("v_add_u32", T[6], 32, T[6])
    I("v_add_u32", vTR[4][0], T[2], T[6]); I("v_add_u32", vTR[4][1], T[3], T[6])
    vPHA, vPSA = vA[0], vA[1]
    I("v_mul_u32_u24", T[0], 40, vR)
    I("v_mul_u32_u24", T[1], 960, vGL); I("v_add3_u32", T[1], T[1], T[0], 0); I("v_add_u32", T[1], PHI, T[1])
    I("v_mul_u32_u24", T[2], 1920, vGL); I("v_add3_u32", T[2], T[2], T[0], 0); I("v_add_u32", T[2], KVI, T[2])
    I("v_mov_b32", T[3], ZERO)
    I("v_cmp_eq_u32", "vcc", vC, vGL)
    I("v_cndmask_b32", vPHA, T[3], T[1], "vcc"); I("v_cndmask_b32", vPSA, T[3], T[2], "vcc")
    vKB0, vKB2 = vA[2], vA[3]
    I("v_lshl_add_u32", T[0], vGL, 2, vR); I("v_mul_u32_u24", T[0], 72, T[0])
    I("s_mul_i32", sT0, sWV, 9216)
    I("v_add_u32", T[0], sT0, T[0])
    I("v_lshl_add_u32", vKB0, vC, 3, T[0]); I("v_add_u32", vKB2, 64, T[0])
    Z4 = v(244, 4)
    for i in range(4): I("v_mov_b32", Z4[i], 0)
    I("s_mul_i32", sT0, sWV, 960); I("s_add_u32", sT0, sT0, PHI)
    I("v_min_u32", T[0], 59 * 16, vL16); I("v_add_u32", T[0], sT0, T[0])
    I("ds_write_b128", T[0], Z4)
    I("s_mul_i32", sT1, sWV, 384); I("s_add_u32", sT1, sT1, ZERO)
    I("v_min_u32", T[0], 23 * 16, vL16); I("v_add_u32", T[0], sT1, T[0])
    I("ds_write_b128", T[0], Z4)
    PA = v(248, 3)
    I("s_and_b32", sT1, sWV, 1); I("s_lshl_b32", sT1, sT1, 4)
    I("s_lshr_b32", sT2, sWV, 1); I("s_mul_i32", sT2, sT2, 12)
    for i in range(3):
        I("v_add_u32", T[0], 64 * i, vL) if i else I("v_mov_b32", T[0], vL)
        I("v_mul_u32_u24", T[1], 7282, T[0]); I("v_lshrrev_b32", T[1], 16, T[1])
        I("v_mul_u32_u24", T[2], 9, T[1]); I("v_sub_u32", T[2], T[0], T[2])
        I("v_add_u32", T[3], sT1, T[1])
        I("v_subrev_u32", T[6], 18, T[3]); I("v_min_u32", T[3], T[3], T[6])
        I("v_add_u32", T[6], sT2, T[3]); I("v_and_b32", T[6], 15, T[6])
        I("v_cmp_gt_u32", "vcc", 16, T[3])
        I("v_cndmask_b32", T[3], T[3], T[6], "vcc")
        if i == 2:
            I("v_cmp_gt_u32", "vcc", 162, T[0])
            I("v_cndmask_b32", T[3], 22, T[3], "vcc")
        I("v_mul_u32_u24", T[3], 40, T[3])
        I("v_lshl_add_u32", T[3], T[2], 2, T[3])
        I("v_add_u32", PA[i], sT0, T[3])
    I("s_and_b32", sT0, sWV, 1); I("s_lshl_b32", sT0, sT0, 4)
    I("s_mul_i32", sT2, sG, 144)
    I("s_movk_i32", sT3, 3456)
    I("s_movk_i32", s(59), 1152)
    for i in range(5):
        piece_decode(i)
        I("v_add_u32", T[0], sT0, T[0])
        I("s_add_u32", sT1, sT2, (-(1024 * i if i < 4 else 0)) & 0xffffffff)
        I("v_mul_u32_u24", T[3], 9, T[2]); I("v_sub_u32", T[1], T[1], T[3])
        I("v_lshlrev_b32", T[1], 4, T[1]); I("v_add_u32", T[1], sT1, T[1])
        I("v_lshl_add_u32", T[3], T[2], 5, T[0])
        I("v_mad_u32_u24", vOQ[i], T[3], sT3, T[1])
        I("v_lshrrev_b32", T[3], 3, T[0])
        I("v_and_b32", T[6], 7, T[0])
        I("v_and_b32", T[7], 1, T[3])
        I("v_mul_u32_u24", T[8], 18, T[3]); I("v_lshl_add_u32", T[8], T[7], 1, T[8])
        I("v_lshl_add_u32", T[8], T[2], 3, T[8]); I("v_add_u32", T[8], T[8], T[6])
        I("v_mad_u32_u24", vOO[i], T[8], s(59), T[1])
        I("v_lshrrev_b32", T[8], 1, T[6]); I("v_lshl_add_u32", T[8], T[2], 2, T[8])
        I("v_add_u32", T[8], sG, T[8]); I("v_and_b32", T[8], 7, T[8])
        I("v_mul_u32_u24", T[8], 72, T[8])
        I("v_lshrrev_b32", T[3], 1, T[3]); I("v_mul_u32_u24", T[3], 36, T[3])
        I("v_lshl_add_u32", T[3], T[7], 1, T[3]); I("v_and_b32", T[6], 1, T[6])
        I("v_add3_u32", T[8], T[8], T[3], T[6]); I("v_add_u32", T[8], 16, T[8])
        I("v_mad_u32_u24", vO8[i], T[8], s(59), T[1])
    I("s_lshl_b32", sT0, sA, 3); I("s_add_u32", sT0, sT0, sG)
    I("s_mul_i32", sPGR, sT0, 16 * 12288)
    I("s_mul_i32", sT1, sRT, 12288); I("s_add_u32", sPME, sPGR, sT1)
    I("s_mul_i32", sT1, sWV, 3072); I("s_add_u32", sPME, sPME, sT1)
    I("s_lshl_b32", sFG, sT0, 13); I("s_add_u32", sFG, sFG, WS_F)
    I("s_lshl_b32", sT0, sA, 4); I("s_add_u32", sT0, sT0, sRT); I("s_lshl_b32", sT0, sT0, 2); I("s_add_u32", sT0, sT0, sWV)
    I("s_mul_i32", sOB, sT0, 8 * 4608); I("s_add_u32", sOB, sOB, WS_O)
    for p in range(2):
        for i in (9, 10, 11): I("v_mov_b32", KB[p][i], 0)
        for i in (18, 19): I("v_mov_b32", PH[p][i], 0)
    stamp("prolog")

    vFS = vA[4]
    def poison_ops():
        ops = []
        for i in range(3):
            ops.append(lambda i=i: I("buffer_store_dwordx4", vM1, vL16, SWS, sPME, mods="offen offset:%d sc1" % (1024 * i)))
        def o0():
            I("s_mul_i32", sT0, sG, 4608); I("s_add_u32", sT0, sT0, sOB)
            I("buffer_store_dwordx4", vM1, vL16, SWS, sT0, mods="offen sc1")
        ops.append(o0)
        for i in range(1, 4):
            ops.append(lambda i=i: I("buffer_store_dwordx4", vM1, vL16, SWS, sT0, mods="offen offset:%d sc1" % (1024 * i)))
        def o4():
            I("s_add_u32", sT0, sT0, 4096)
            I("v_lshlrev_b32", T[0], 3, vL)
            I("buffer_store_dwordx2", vM1[0:2], T[0], SWS, sT0, mods="offen sc1")
        ops.append(o4)
        def f0():
            I("v_lshlrev_b32", T[0], 2, vL)
            I("v_mov_b32", T[1], OOB)
            I("v_cmp_gt_u32", "vcc", 24, vL)
            I("s_lshl_b32", sT0, sRT, 2); I("s_add_u32", sT0, sT0, sWV); I("s_mul_i32", sT0, sT0, 96); I("s_add_u32", sT0, sT0, sFG)
            I("v_cndmask_b32", vFS, T[1], T[0], "vcc")
            I("buffer_store_dword", vM1[0], vFS, SWS, sT0, mods="offen sc1")
        ops.append(f0)
        return ops
    POIS = 3
    for j in range(9):
        slot = j % 3
        P.comment("pass1 stage %d" % j)
        if j == 0: younger = 9 + 3
        elif j == 1: younger = 3 + 9
        elif j == 8: younger = 10
        else: younger = 9
        if j == POIS + 1: younger = 9 + 9
        if j == POIS + 2: younger = 9 + 9
        wait(vm=younger)
        if j == 2:
            pass
        I("s_barrier")
        if j == 8:
            I("s_cmp_lg_u32", sWV, 0)
            I("s_cbranch_scc1", "L_noat")
            I("s_lshl_b32", sT0, sA, 7)
            I("v_mov_b32", T[0], 0); I("v_mov_b32", T[1], 1)
            I("s_mov_b64", "exec", 1)
            I("buffer_atomic_add", T[1], T[0], SDBG, sT0, mods="offen")
            I("s_mov_b64", "exec", -1)
            P.label("L_noat")
        fill = []
        if j + 2 < 9: fill = stage_dma((j + 2) % 3)
        elif j == 7: fill = wq_pair_dma(0) + wq_pair_dma(2)
        elif j == 8: fill = wq_pair_dma(4)
        if j == POIS: fill = fill + poison_ops()
        if j == 2:
            def wphi():
                for i in range(3): I("ds_write_b32", PA[i], PW[i])
            wphi()
        if j == 3:
            for t in range(5):
                for jj in range(3):
                    tr(PHIF(t, jj)[0:2], vPHA, 8 * t + 8 * jj * 40)
                    if jj < 2: tr(PHIF(t, jj)[2:4], vPHA, 8 * t + (8 * jj + 4) * 40)
                    else:
                        I("v_accvgpr_write_b32", PHIF(t, jj)[2], 0); I("v_accvgpr_write_b32", PHIF(t, jj)[3], 0)
                wait(lgkm=5)
            wait(lgkm=0)
        pipe = Pipe(dist=4)
        for kap in range(2):
            ks = 2 * j + kap
            for T_ in range(10):
                ring = RING[(kap * 10 + T_) % 8]
                def rd(kap=kap, ks=ks, T_=T_, ring=ring):
                    if T_ == 0:
                        for p in range(2):
                            I("ds_read_b128", XF(ks, p), vXR[kap], mods="offset:%d" % (slot * XSLOT + p * 2048))
                    tile_read(ring, T_, slot * WSLOT + kap * 9216)
                def work(ks=ks, T_=T_, ring=ring):
                    for p in range(2):
                        if T_ < 5: mfma(ACK[p][T_], ring, XF(ks, p), 0 if ks == 0 else ACK[p][T_])
                        else: mfma(ACV[p][T_ - 5], XF(ks, p), ring, 0 if ks == 0 else ACV[p][T_ - 5])
                pipe.add(4 if T_ == 0 else 2, rd, work)
        pipe.emit(fill, every=(1 if len(fill) > 10 else 2), start=1)
    I("s_barrier")
    stamp("pass1")
    for f in wq_pair_dma(6): f()
    I("s_cmp_ge_u32", sWV, 2)
    I("s_cbranch_scc1", "L_noq8")
    for f in wq_pair_dma(8): f()
    P.label("L_noq8")

    VFR = v(144, 20)
    for t in range(5):
        for p in range(2):
            for h in range(2):
                I("v_cvt_pk_bf16_f32", VFR[4 * t + 2 * p + h], ACV[p][t][2 * h], ACV[p][t][2 * h + 1])
    I("v_cmp_eq_u32", "vcc", 8, vN)
    I("v_mov_b32", T[0], 0x3f803f80)
    for i in range(4): I("v_cndmask_b32", VFR[16 + i], VFR[16 + i], T[0], "vcc")
    I("s_mul_i32", sT0, sWV, 5120); I("s_add_u32", sT0, sT0, VF)
    I("v_add_u32", T[1], sT0, vL16)
    for t in range(5): I("ds_write_b128", T[1], VFR[4 * t:4 * t + 4], mods="offset:%d" % (1024 * t))
    wait(lgkm=0)
    feature_map("k")
    I("v_mul_u32_u24", T[0], 9216, vGL)
    I("v_mul_u32_u24", T[1], 72, vN)
    I("s_mul_i32", sT0, sWV, 32 * 72)
    I("v_add3_u32", T[0], T[0], T[1], sT0)
    for p in range(2):
        for i in range(9):
            I("ds_write_b64", T[0], PH[p][2 * i:2 * i + 2], mods="offset:%d" % (IMG + p * 1152 + 8 * i))
    I("s_lshl_b32", sT0, sWV, 10); I("s_add_u32", sT0, sT0, VF)
    I("v_add_u32", T[2], sT0, vL16)
    I("s_lshl_b32", sT0, sWV, 1)
    I("v_add_u32", T[3], sT0, vN)
    I("v_cmp_gt_u32", "vcc", 2, vN)
    I("v_cndmask_b32", T[3], 8, T[3], "vcc")
    I("v_lshl_add_u32", T[3], vGL, 4, T[3])
    I("v_lshlrev_b32", T[3], 4, T[3]); I("v_add_u32", T[3], VF + 4096, T[3])
    wait(lgkm=0)
    I("s_barrier")
    stamp("kpost")
    DM = [v(104 + 4 * j, 4) for j in range(3)]; DL = [v(116 + 4 * j, 4) for j in range(3)]
    pipe = Pipe(dist=3)
    for src in range(4):
        base = 64 + 20 * (src % 2)
        AM, AL = v(base, 4), v(base + 4, 4)
        BF = [v(base + 8 + 4 * j, 4) for j in range(3)]
        for j in range(3):
            def rd(src=src, AM=AM, AL=AL, BF=BF, j=j):
                if j == 0:
                    I("ds_read_b128", AM, T[2], mods="offset:%d" % (src * 5120))
                    I("ds_read_b128", AL, T[3], mods="offset:%d" % (src * 5120))
                for e in range(2):
                    tr(BF[j][2 * e:2 * e + 2], vKB0 if j < 2 else vKB2, IMG + src * 2304 + e * 1152 + (32 * j if j < 2 else 0))
            def work(src=src, AM=AM, AL=AL, BF=BF, j=j):
                mfma(DM[j], AM, BF[j], 0 if src == 0 else DM[j])
                mfma(DL[j], AL, BF[j], 0 if src == 0 else DL[j])
            pipe.add(4 if j == 0 else 2, rd, work)
    pipe.emit()
    I("v_mov_b32", T[4], OOB)
    I("v_lshl_add_u32", T[0], vGL, 2, vN); I("v_lshlrev_b32", T[0], 4, T[0])
    I("v_cmp_gt_u32", "vcc", 4, vN)
    I("v_cndmask_b32", T[0], T[4], T[0], "vcc")
    I("v_cmp_gt_u32", "vcc", 16, vL)
    I("v_cndmask_b32", T[1], T[4], vL16, "vcc")
    I("buffer_store_dwordx4", DM[0], vL16, SWS, sPME, mods="offen sc1")
    I("buffer_store_dwordx4", DM[1], vL16, SWS, sPME, mods="offen offset:1024 sc1")
    I("buffer_store_dwordx4", DM[2], T[0], SWS, sPME, mods="offen offset:2048 sc1")
    for j in range(3):
        I("buffer_store_dwordx4", DL[j], T[1], SWS, sPME, mods="offen offset:%d sc1" % (2304 + 256 * j))
    stamp("pubP")
    wait(vm=6)
    I("s_barrier")

    def rebase(delta):
        for pat in range(3):
            for e in range(2):
                I("v_add_u32", vTR[pat][e], delta & 0xffffffff, vTR[pat][e])
    def gemm2(bfrag, offs, rebases, fillers, pre=None, every=3):
        pipe = Pipe(dist=4)
        n = 0
        for ks in range(18):
            for T_ in range(5):
                ring = RING[n % 8]; n += 1
                def rd(ks=ks, T_=T_, ring=ring):
                    if T_ == 0 and ks in rebases: rebase(rebases[ks])
                    tile_read(ring, T_, offs(ks))
                def work(ks=ks, T_=T_, ring=ring):
                    if T_ == 0 and pre: pre(ks)
                    for p in range(2):
                        mfma(ACK[p][T_], ring, bfrag(ks, p), 0 if ks == 0 else ACK[p][T_])
                pipe.add(2, rd, work)
        pipe.emit(fillers, every=every, start=1)
    gemm2(XF, lambda ks: ((ks // 2) % 6) * 9216 + (ks & 1) * 144, {0: WQ0 - WSL, 12: WQ6 - WQ0},
          wo_pair_dma(0) + wo_pair_dma(2) + wo_pair_dma(4))
    stamp("qgemm")

    I("s_lshl_b32", sT0, sA, 7)
    I("v_mov_b32", T[0], 0)
    I("s_mov_b32", sCNT, 0)
    P.label("L_hs")
    I("buffer_load_dword", T[1], T[0], SDBG, sT0, mods="offen sc1")
    wait(vm=0)
    I("v_readfirstlane_b32", sT1, T[1])
    I("s_add_u32", sCNT, sCNT, 1)
    I("s_cmp_gt_u32", sCNT, SPIN)
    I("s_cbranch_scc1", "L_hsd")
    I("s_cmp_lt_u32", sT1, 128)
    I("s_cbranch_scc1", "L_hs")
    P.label("L_hsd")
    RS = v(104, 16)
    I("v_and_b32", T[0], 31, vL); I("v_min_u32", T[0], 23, T[0]); I("v_lshlrev_b32", T[0], 3, T[0])
    I("v_lshrrev_b32", T[1], 5, vL); I("v_mul_u32_u24", T[1], 8 * 12288, T[1]); I("v_add_u32", T[0], T[0], T[1])
    I("s_lshl_b32", sT2, sRT, 2); I("s_add_u32", sT2, sT2, sWV)
    I("s_mul_i32", sT0, sT2, 192); I("s_add_u32", sT0, sT0, sPGR)
    spin_header("rs")
    I("s_mov_b32", sT1, sT0)
    for i in range(8):
        I("buffer_load_dwordx2", RS[2 * i:2 * i + 2], T[0], SWS, sT1, mods="offen sc1")
        if i < 7: I("s_add_u32", sT1, sT1, 12288)
    wait(vm=0)
    umax(T[2], [RS[i] for i in range(16)])
    spin_footer("rs", T[2])
    for st in (8, 4, 2):
        for i in range(0, st, 2):
            I("v_pk_add_f32", RS[i:i + 2], RS[i:i + 2], RS[i + st:i + st + 2])
    I("v_mov_b32", RS[2], RS[0]); I("v_mov_b32", RS[3], RS[1])
    I("v_permlane32_swap_b32", RS[0], RS[2]); I("v_permlane32_swap_b32", RS[1], RS[3])
    I("v_pk_add_f32", RS[0:2], RS[0:2], RS[2:4])
    I("v_cvt_pk_bf16_f32", RS[0], RS[0], RS[1])
    I("s_mul_i32", sT0, sT2, 96); I("s_add_u32", sT0, sT0, sFG)
    I("buffer_store_dword", RS[0], vFS, SWS, sT0, mods="offen sc1")
    stamp("pubF")

    feature_map("q")
    stamp("qpost")
    I("v_lshlrev_b32", T[0], 3, vL)
    I("s_mul_i32", sT0, sWV, 1536); I("s_add_u32", sT0, sT0, sFG)
    I("s_mul_i32", sT1, sWV, 1920); I("s_add_u32", sT1, sT1, KVI)
    I("v_mul_u32_u24", T[1], 40, vN); I("v_lshl_add_u32", T[1], vGL, 3, T[1]); I("v_add_u32", T[1], sT1, T[1])
    I("v_and_b32", T[2], 3, vL); I("v_mul_u32_u24", T[2], 40, T[2]); I("v_lshrrev_b32", T[3], 2, vL)
    I("v_lshl_add_u32", T[2], T[3], 3, T[2]); I("v_add_u32", T[2], 32 * 40, T[2])
    I("v_mul_u32_u24", T[3], 40, vL); I("v_add_u32", T[3], (32 - 16 * 40) & 0xffffffff, T[3])
    I("v_cmp_gt_u32", "vcc", 16, vL)
    I("v_cndmask_b32", T[2], T[3], T[2], "vcc"); I("v_add_u32", T[2], sT1, T[2])
    spin_header("ag")
    for i in range(3):
        I("buffer_load_dwordx2", RS[2 * i:2 * i + 2], T[0], SWS, sT0, mods="offen offset:%d sc1" % (512 * i))
    wait(vm=0)
    umax(T[4], [RS[i] for i in range(6)])
    spin_footer("ag", T[4])
    I("ds_write_b64", T[1], RS[0:2]); I("ds_write_b64", T[1], RS[2:4], mods="offset:640"); I("ds_write_b64", T[2], RS[4:6])
    for t in range(5):
        I("v_accvgpr_write_b32", PSIF(t, 4)[2], 0); I("v_accvgpr_write_b32", PSIF(t, 4)[3], 0)
    wait(lgkm=0)
    I("s_barrier")
    stamp("gotkv")
    for f in wo_pair_dma(6): f()
    I("s_cmp_ge_u32", sWV, 2)
    I("s_cbranch_scc1", "L_noo8")
    for f in dma5(vO8, SWO, 0, sMQ, WO6 + 2 * 9216): f()
    P.label("L_noo8")

    pipe = Pipe(dist=4)
    for j in range(5):
        for t in range(5):
            def rd(j=j, t=t):
                tr(PSIF(t, j)[0:2], vPSA, 8 * t + 8 * j * 40)
                if j < 4: tr(PSIF(t, j)[2:4], vPSA, 8 * t + (8 * j + 4) * 40)
            def work(j=j, t=t):
                for p in range(2):
                    mfma(ACK[p][t], PSIF(t, j), PH[p][4 * j:4 * j + 4], 0 if j == 0 else ACK[p][t])
            pipe.add(2 if j < 4 else 1, rd, work)
    pipe.emit()
    pool = list(range(104, 144, 4)) + list(range(176, 256, 4)) + list(range(12, 20, 4))
    pool = list(range(104, 144, 4)) + list(range(176, 256, 4)) + [12, 16, 28, 32, 36, 40]
    assert len(pool) == 36
    OF = {}
    order = [(0, 0, 0), (0, 0, 1), (0, 1, 0), (0, 1, 1)]
    keys = order + [("L", k, p) for k in range(2) for p in range(2)] + [(u, p, X) for u in range(1, 8) for p in range(2) for X in range(2)]
    for k_, r_ in zip(keys, pool): OF[k_] = v(r_, 4)
    for p in range(2):
        o = v(64 + 20 * p, 20)
        I("v_add_f32", o[18], sEPS[0], o[18])
        I("v_rcp_f32", o[18], o[18])
        for i in range(0, 18, 2):
            I("v_pk_mul_f32", o[i:i + 2], o[i:i + 2], o[18:20], mods="op_sel:[0,0] op_sel_hi:[1,0]")
        for i in range(8):
            I("v_cvt_pk_bf16_f32", OF[(0, p, i // 4)][i % 4], o[2 * i], o[2 * i + 1])
        I("v_cvt_pk_bf16_f32", OF[("L", 0, p)][0], o[16], o[17])
    vL4 = vA[5]
    I("v_lshlrev_b32", vL4, 2, vL)
    I("s_mul_i32", sT0, sG, 4608); I("s_add_u32", sT0, sT0, sOB)
    I("s_add_u32", sT1, sT0, 4096)
    for p in range(2):
        for X in range(2):
            I("buffer_store_dwordx4", OF[(0, p, X)], vL16, SWS, sT0, mods="offen offset:%d sc1" % (p * 2048 + X * 1024))
        I("buffer_store_dword", OF[("L", 0, p)][0], vL4, SWS, sT1, mods="offen offset:%d sc1" % (p * 256))
    stamp("pubO")
    wait(vm=6)
    I("s_barrier")

    def oload(u):
        I("s_add_u32", sT0, sG, u); I("s_and_b32", sT0, sT0, 7)
        I("s_mul_i32", sT0, sT0, 4608); I("s_add_u32", sT0, sT0, sOB)
        I("s_add_u32", sT1, sT0, 4096)
        for p in range(2):
            for X in range(2):
                I("buffer_load_dwordx4", OF[(u, p, X)], vL16, SWS, sT0, mods="offen offset:%d sc1" % (p * 2048 + X * 1024))
        for p in range(2):
            I("buffer_load_dword", OF[("L", u // 4, p)][u % 4], vL4, SWS, sT1, mods="offen offset:%d sc1" % (p * 256))
    for u in range(1, 8): oload(u)
    def oregs(u):
        r = []
        for p in range(2):
            for X in range(2): r += [OF[(u, p, X)][i] for i in range(4)]
            r.append(OF[("L", u // 4, p)][u % 4])
        return r
    def pre(ks):
        if ks >= 16 or ks & 1 or ks == 0: return
        u = ks // 2
        wait(vm=6 * (7 - u))
        I("s_mov_b32", sCNT, 0)
        umax(T[0], oregs(u))
        I("v_cmp_eq_u32", "vcc", -1, T[0])
        I("s_cbranch_vccz", "L_ok%d" % u)
        P.label("L_sp_o%d" % u)
        oload(u)
        wait(vm=0)
        umax(T[0], oregs(u))
        spin_footer("o%d" % u, T[0])
        P.label("L_ok%d" % u)
    def bf(ks, p):
        if ks < 16: return OF[(ks // 2, p, ks & 1)]
        return OF[("L", ks - 16, p)]
    gemm2(bf, lambda ks: ((ks // 2) % 6) * 9216 + (ks & 1) * 144, {0: WO0 - WQ6, 12: WO6 - WO0}, [], pre=pre)
    stamp("ogemm")
    I("s_lshl_b32", sT0, sRT, 2); I("s_add_u32", sT0, sT0, sWV); I("s_mul_i32", sT0, sT0, 32 * 2304)
    I("s_mul_i32", sT1, sG, 144); I("s_add_u32", sT0, sT0, sT1)
    I("s_cmp_lg_u32", sA, 0); I("s_cselect_b32", sT1, 0, 1152); I("s_add_u32", sT0, sT0, sT1)
    I("s_add_u32", sT1, sT0, 16 * 2304)
    I("v_mul_u32_u24", T[0], 2304, vN)
    I("v_mul_u32_u24", T[1], 40, vGL); I("v_add_u32", T[1], T[0], T[1])
    I("v_lshrrev_b32", T[4], 1, vGL)
    I("v_lshlrev_b32", T[2], 5, T[4]); I("v_sub_u32", T[2], T[1], T[2])
    I("v_mul_u32_u24", T[3], 72, T[4]); I("v_add_u32", T[3], T[0], T[3])
    I("v_mov_b32", T[5], OOB)
    I("v_cndmask_b32", T[3], T[3], T[5], sODD)
    OUTR = v(104, 20)
    for p in range(2):
        for t in range(5):
            for h in range(2):
                I("v_cvt_pk_bf16_f32", OUTR[10 * p + 2 * t + h], ACK[p][t][2 * h], ACK[p][t][2 * h + 1])
        so = sT0 if p == 0 else sT1
        for t in range(5):
            ad, off = (T[1], 8 * t) if t < 3 else ((T[2], 24) if t == 3 else (T[3], 32))
            I("buffer_store_dwordx2", OUTR[10 * p + 2 * t:10 * p + 2 * t + 2], ad, SOUT, so, mods="offen offset:%d" % off)
    if OPT["stamps"]:
        wait(vm=0)
        stamp("end")
        I("s_memrealtime", s(100, 2))
        wait(lgkm=0)
        n = stamp_n[0]
        for k in range(n):
            I("s_sub_u32", s(sSTB + k), s(sSTB + k), s(98))
            I("v_mov_b32", v(64 + k), s(sSTB + k))
        I("v_mov_b32", v(64 + 14), s(96)); I("v_mov_b32", v(64 + 15), s(100))
        I("s_lshl_b32", sT0, s(2), 2); I("s_add_u32", sT0, sT0, sWV); I("s_lshl_b32", sT0, sT0, 6); I("s_add_u32", sT0, sT0, WS_ST)
        I("v_mov_b32", T[0], 0)
        I("s_mov_b64", "exec", 1)
        for q in range(4):
            I("buffer_store_dwordx4", v(64 + 4 * q, 4), T[0], SWS, sT0, mods="offen offset:%d" % (16 * q))
    P.label("L_end")
    I("s_endpgm")

HEADER = open("cdna_kernels/%s.s.ref" % NAME).read().split("; Override launch")[0]

def main(out):
    build()
    body = P.finalize()
    txt = HEADER + "; @launch grid=(256,1,1) block=(256,1,1) lds=%d\n" % LDS_BYTES
    txt += '.amdgcn_target "amdgcn-amd-amdhsa--gfx950"\n.text\n.globl %s_kernel\n.p2align 8\n.type %s_kernel,@function\n' % (NAME, NAME)
    txt += ".set CODE_SPAN, (L_end - %s_kernel - 64) & 0xffffff80\n" % NAME
    txt += "%s_kernel:\n%s\n" % (NAME, body)
    txt += """.section .rodata,"a"
.p2align 6
.amdhsa_kernel %s_kernel
  .amdhsa_next_free_vgpr 512
  .amdhsa_next_free_sgpr 102
  .amdhsa_accum_offset 256
  .amdhsa_group_segment_fixed_size 0
  .amdhsa_kernarg_size 80
  .amdhsa_user_sgpr_count 2
  .amdhsa_user_sgpr_kernarg_segment_ptr 1
  .amdhsa_system_sgpr_workgroup_id_x 1
.end_amdhsa_kernel
""" % NAME
    open(out, "w").write(txt)
    print("wrote", out, "nops inserted:", P.nops, "instrs:", sum(isinstance(x, Ins) for x in P.items))

if __name__ == "__main__":
    out = sys.argv[1]
    for kv in sys.argv[2:]:
        k, val = kv.split("=")
        OPT[k] = int(val)
    main(out)
```

```python
import sys, struct
from asmdsl import *

NAME = "concat_heads__linear_attn_block__linear_kernel_hedgehog__prompt"
OPT = dict(stamps=False, nphase=3)

def f2u(x): return struct.unpack("<I", struct.pack("<f", x))[0]
LOG2E = 1.4426950408889634

XS = 0; XSLOT = 16384
WSL = 49152; WSLOT = 18432
WQ0 = 104448
WQ6 = 76800
PHI = 104448
ZERO = 159744
IMG = 0
VF = 36864
KVI = 57344
WO0 = 0
WO6 = 104448
LDS_BYTES = 163840
WS_P = 0; WS_F = 0x300000; WS_O = 0x400000; WS_ST = 0x900000; WS_BYTES = 0xA00000
OOB = 0x7ffffff0
SPIN = 30000

SX, SW, SWO, SWS, SOUT, SDBG, SPHI = s(24, 4), s(28, 4), s(32, 4), s(36, 4), s(40, 4), s(44, 4), s(48, 4)
sA, sRT, sG, sWV = s(52), s(53), s(54), s(55)
sST, sOX, sOW = s(56), s(57), s(58)
sMX, sMW = s(60), s(61)
sT0, sT1, sT2, sT3 = s(62), s(63), s(64), s(65)
sXB = s(66)
sROT = s(67)
sPME, sPGR, sFG, sOB = s(68), s(69), s(70), s(71)
sCNT = s(72)
sC = s(74, 2)
sEPS = s(76, 2)
sODD = s(78, 2)
sMQ = s(80)
sIDX = s(81)
sPC = s(82, 2)
sSTB = 84

vL = v(0)
T = [v(i) for i in range(1, 10)]
vOX = [v(10 + i) for i in range(4)]
vOW = [v(14 + i) for i in range(5)]
vXR = [v(19), v(20)]
vTR = [[v(21 + 2 * p + e) for e in range(2)] for p in range(5)]
vOQ = [v(31 + i) for i in range(5)]
vOO = [v(36 + i) for i in range(5)]
vO8 = [v(41 + i) for i in range(5)]
vL16 = v(46)
vGL, vN = v(47), v(48)
vA = [v(49 + i) for i in range(11)]
vM1 = v(60, 4)
ACK = [[v(64 + 20 * p + 4 * t, 4) for t in range(5)] for p in range(2)]
ACV = [[v(104 + 20 * p + 4 * t, 4) for t in range(5)] for p in range(2)]
RING = [v(144 + 4 * i, 4) for i in range(8)]
def XF(ks, p): return a(ks * 8 + p * 4, 4)
def PHIF(t, j): return a(144 + (t * 3 + j) * 4, 4)
def PSIF(t, j): return a(144 + (t * 5 + j) * 4, 4)

P = Prog()
I = P.I
stamp_n = [0]
def stamp(name):
    if not OPT["stamps"]: return
    k = stamp_n[0]; stamp_n[0] += 1
    assert k < 16
    I("s_memtime", s(100, 2), c="stamp " + name)
    I("s_waitcnt", "lgkmcnt(0)")
    I("s_mov_b32", s(sSTB + k), s(100))

def wait(vm=None, lgkm=None):
    t = []
    if vm is not None: t.append("vmcnt(%d)" % vm)
    if lgkm is not None: t.append("lgkmcnt(%d)" % lgkm)
    I("s_waitcnt", " ".join(t))

def srd(dst, lo, hi, size):
    I("s_mov_b32", dst[0], lo); I("s_mov_b32", dst[1], hi)
    I("s_mov_b32", dst[2], size); I("s_mov_b32", dst[3], 0x20000)

def piece_decode(i):
    I("v_add_u32", T[3], 64 * i, vL) if i else I("v_mov_b32", T[3], vL)
    I("v_mul_u32_u24", T[0], 3641, T[3])
    I("v_lshrrev_b32", T[0], 16, T[0])
    I("v_mul_u32_u24", T[1], 18, T[0])
    I("v_sub_u32", T[1], T[3], T[1])
    I("v_lshrrev_b32", T[3], 1, T[0])
    I("v_and_b32", T[3], 4, T[3])
    I("v_xor_b32", T[0], T[0], T[3])
    I("v_add_u32", T[2], 7, T[1])
    I("v_lshrrev_b32", T[2], 4, T[2])

def next_stage():
    I("s_lshl_b32", sOX, sST, 7)
    I("s_add_u32", sOX, sOX, sXB)
    I("s_mul_i32", sOW, sST, 64 * 3456)
    I("s_add_u32", sST, sST, 1)
    I("s_cmp_eq_u32", sST, 9)
    I("s_cselect_b32", sST, 0, sST)

def dma5(voffs, srdreg, soff, m0base, m0imm):
    ops = []
    def first():
        I("s_add_u32", "m0", m0base, m0imm)
        I("buffer_load_dwordx4", voffs[0], srdreg, soff, mods="offen lds")
    ops.append(first)
    for i in range(1, 4):
        ops.append(lambda i=i: I("buffer_load_dwordx4", voffs[i], srdreg, soff, mods="offen offset:%d lds" % (1024 * i)))
    def last():
        I("s_add_u32", "m0", m0base, m0imm + 4096)
        I("s_mov_b32", "exec_hi", 0)
        I("buffer_load_dwordx4", voffs[4], srdreg, soff, mods="offen lds")
        I("s_mov_b32", "exec_hi", -1)
    ops.append(last)
    return ops

def stage_dma(slot):
    ops = []
    def first():
        next_stage()
        I("s_add_u32", "m0", sMX, slot * XSLOT)
        I("buffer_load_dwordx4", vOX[0], SX, sOX, mods="offen lds")
    ops.append(first)
    for i in range(1, 4):
        ops.append(lambda i=i: I("buffer_load_dwordx4", vOX[i], SX, sOX, mods="offen offset:%d lds" % (1024 * i)))
    ops += dma5(vOW, SW, sOW, sMW, slot * WSLOT)
    return ops

def wq_pair_dma(j):
    ops = []
    pos = lambda st: (WQ0 + st * 9216) if st < 6 else (WQ6 + (st - 6) * 9216)
    def setup():
        I("s_lshr_b32", sT0, sWV, 1)
        I("s_add_u32", sT0, sT0, sROT)
        I("s_add_u32", sT0, sT0, j)
        I("s_cmp_ge_u32", sT0, 9)
        I("s_cselect_b32", sT1, 9, 0)
        I("s_sub_u32", sT0, sT0, sT1)
        I("s_mul_i32", sOW, sT0, 64 * 3456)
    d = dma5(vOQ, SW, sOW, sMQ, pos(j))
    ops.append(lambda: (setup(), d[0]()))
    ops += d[1:]
    return ops

def wo_pair_dma(u):
    pos = lambda st: (WO0 + st * 9216) if st < 6 else (WO6 + (st - 6) * 9216)
    def setup():
        I("s_lshr_b32", sT0, sWV, 1)
        I("s_add_u32", sT0, sT0, sG)
        I("s_add_u32", sT0, sT0, u)
        I("s_and_b32", sT0, sT0, 7)
        I("s_mul_i32", sOW, sT0, 72 * 1152)
    d = dma5(vOO, SWO, sOW, sMQ, pos(u))
    return [lambda: (setup(), d[0]())] + d[1:]

def tr(dst, addr, off):
    assert 0 <= off < 65536, off
    I("ds_read_b64_tr_b16", dst, addr, mods="offset:%d" % off)

def mfma(d, x, y, c):
    I("v_mfma_f32_16x16x32_bf16", d, x, y, c)

def tile_read(dstreg, T_, base_off):
    if T_ < 3: pat, o = 0, 8 * T_
    elif T_ == 3: pat, o = 1, 0
    elif T_ == 4: pat, o = 2, 0
    elif T_ < 9: pat, o = 3, 144 + 8 * [0, 5, 9, 14][T_ - 5]
    else: pat, o = 4, 144
    for e in range(2):
        tr(dstreg[2 * e:2 * e + 2], vTR[pat][e], base_off + o)

class Pipe:
    def __init__(self, dist=4, group=1):
        self.units = []; self.dist = dist
    def add(self, nreads, rd, work): self.units.append((nreads, rd, work))
    def emit(self, fillers=(), every=2, start=1):
        fillers = list(fillers)
        U = self.units; n = len(U); d = self.dist
        issued = 0
        for k in range(min(d, n)): U[k][1](); issued = k + 1
        for k in range(n):
            if issued < n: U[issued][1](); issued += 1
            later = sum(U[q][0] for q in range(k + 1, issued))
            assert later <= 15
            wait(lgkm=later)
            U[k][2]()
            if fillers and k >= start and (k - start) % every == 0: fillers.pop(0)()
        for f in fillers: f()

def softmax_block(src18, out18, tmp):
    mx, mn = tmp[18], tmp[19]
    I("v_max3_f32", mx, src18[0], src18[1], src18[2]); I("v_min3_f32", mn, src18[0], src18[1], src18[2])
    for i in range(3, 17, 2):
        I("v_max3_f32", mx, mx, src18[i], src18[i + 1]); I("v_min3_f32", mn, mn, src18[i], src18[i + 1])
    I("v_max_f32", mx, mx, src18[17]); I("v_min_f32", mn, mn, src18[17])
    ab = tmp[20:22]
    I("v_mul_f32", ab[0], sC[0], mx); I("v_mul_f32", ab[1], sC[0], mn)
    for i in range(0, 18, 2):
        I("v_pk_fma_f32", tmp[i:i + 2], src18[i:i + 2], sC, ab, mods="op_sel:[0,0,1] op_sel_hi:[1,1,1] neg_lo:[1,0,0] neg_hi:[1,0,0]")
        I("v_pk_fma_f32", src18[i:i + 2], src18[i:i + 2], sC, ab, mods="op_sel:[0,0,0] op_sel_hi:[1,1,0] neg_lo:[0,0,1] neg_hi:[0,0,1]")
    for i in range(18):
        I("v_exp_f32", src18[i], src18[i]); I("v_exp_f32", tmp[i], tmp[i])
    sp, sn = tmp[18:20], tmp[20:22]
    I("v_pk_add_f32", sp, src18[0:2], src18[2:4]); I("v_pk_add_f32", sn, tmp[0:2], tmp[2:4])
    for i in range(4, 18, 2):
        I("v_pk_add_f32", sp, sp, src18[i:i + 2]); I("v_pk_add_f32", sn, sn, tmp[i:i + 2])
    rr = tmp[22:24]
    I("v_add_f32", rr[0], sp[0], sp[1]); I("v_add_f32", rr[1], sn[0], sn[1])
    I("v_rcp_f32", rr[0], rr[0]); I("v_rcp_f32", rr[1], rr[1])
    for i in range(0, 18, 2):
        I("v_pk_mul_f32", src18[i:i + 2], src18[i:i + 2], rr, mods="op_sel:[0,0] op_sel_hi:[1,0]")
        I("v_pk_mul_f32", tmp[i:i + 2], tmp[i:i + 2], rr, mods="op_sel:[0,1] op_sel_hi:[1,1]")
    for i in range(9):
        I("v_cvt_pk_bf16_f32", out18[i], src18[2 * i], src18[2 * i + 1])
        I("v_cvt_pk_bf16_f32", out18[9 + i], tmp[2 * i], tmp[2 * i + 1])

KB = [v(176 + 12 * p, 12) for p in range(2)]
PH = [v(200 + 20 * p, 20) for p in range(2)]
TMP = v(144, 24)

def feature_map(tag):
    acc = [v(64 + 20 * p, 20) for p in range(2)]
    for p in range(2):
        I("v_cndmask_b32", acc[p][16], acc[p][16], acc[p][18], sODD)
        I("v_cndmask_b32", acc[p][17], acc[p][17], acc[p][19], sODD)
    I("s_cmp_lg_u32", sA, 0)
    I("s_cbranch_scc1", "L_phiA_" + tag)
    for p in range(2):
        for i in range(9):
            I("v_cvt_pk_bf16_f32", KB[p][i], acc[p][2 * i], acc[p][2 * i + 1])
    for p in range(2):
        for j in range(3):
            for t in range(5):
                mfma(ACK[p][t], PHIF(t, j), KB[p][4 * j:4 * j + 4], 0 if j == 0 else ACK[p][t])
    for p in range(2):
        softmax_block(acc[p][0:18], PH[p][0:18], TMP)
    I("s_branch", "L_phiE_" + tag)
    P.label("L_phiA_" + tag)
    for p in range(2):
        x = acc[p]
        for i in range(0, 18, 2):
            I("v_pk_mul_f32", TMP[i:i + 2], x[i:i + 2], sC)
        for i in range(18):
            I("v_exp_f32", TMP[i], TMP[i], mods="clamp")
            I("v_max_f32", x[i], 0, x[i])
        for i in range(0, 18, 2):
            I("v_pk_add_f32", x[i:i + 2], x[i:i + 2], TMP[i:i + 2])
        for i in range(0, 18, 2):
            I("v_pk_add_f32", x[i:i + 2], x[i:i + 2], sEPS)
        for i in range(9):
            I("v_cvt_pk_bf16_f32", PH[p][i], x[2 * i], x[2 * i + 1])
            I("v_mov_b32", PH[p][9 + i], 0)
    P.label("L_phiE_" + tag)
    I("s_nop", 1)

def spin_header(tag):
    I("s_mov_b32", sCNT, 0)
    P.label("L_sp_" + tag)
def spin_footer(tag, chk):
    I("v_cmp_eq_u32", "vcc", -1, chk)
    I("s_add_u32", sCNT, sCNT, 1)
    I("s_cmp_gt_u32", sCNT, SPIN)
    I("s_cbranch_scc1", "L_spd_" + tag)
    I("s_cbranch_vccnz", "L_sp_" + tag)
    P.label("L_spd_" + tag)

def umax(dst, regs):
    regs = list(regs)
    I("v_max3_u32", dst, regs[0], regs[1], regs[2]); regs = regs[3:]
    while len(regs) >= 2:
        I("v_max3_u32", dst, dst, regs[0], regs[1]); regs = regs[2:]
    if regs: I("v_max_u32", dst, dst, regs[0])

def build():
    I("s_cmp_ge_u32", s(2), 256)
    I("s_cbranch_scc1", "L_end")
    I("s_load_dwordx16", s(4, 16), s(0, 2), 0)
    I("s_load_dwordx4", s(20, 4), s(0, 2), 64)
    I("s_getpc_b64", sPC)
    I("v_lshrrev_b32", T[0], 6, v(0))
    I("v_and_b32", vL, 63, v(0))
    I("s_lshr_b32", sIDX, s(2), 3)
    I("v_readfirstlane_b32", sWV, T[0])
    I("s_lshl_b32", sT0, sIDX, 2)
    I("v_add_u32", T[0], sT0, T[0])
    I("v_lshlrev_b32", T[0], 1, T[0])
    I("v_and_b32", T[1], 1, vL)
    I("v_add_lshl_u32", T[0], T[0], T[1], 7)
    I("v_min_u32", T[0], "CODE_SPAN", T[0])
    I("global_load_dword", v(255), T[0], sPC)
    if OPT["stamps"]:
        I("s_memtime", s(98, 2)); I("s_memrealtime", s(96, 2))
    I("s_bfe_u32", sA, s(2), 0x10002)
    I("s_and_b32", sT0, s(2), 3)
    I("s_lshr_b32", sT1, sIDX, 3)
    I("s_lshl_b32", sRT, sT0, 2)
    I("s_add_u32", sRT, sRT, sT1)
    I("s_and_b32", sG, sIDX, 7)
    if OPT["nphase"] == 3:
        I("s_add_u32", sT0, sG, sT1)
        I("s_mul_i32", sT1, sT0, 86)
        I("s_lshr_b32", sT1, sT1, 8)
        I("s_mul_i32", sT1, sT1, 3)
        I("s_sub_u32", sT0, sT0, sT1)
        I("s_mul_i32", sROT, sT0, 3)
    elif OPT["nphase"] == 2:
        I("s_add_u32", sT0, sG, sT1)
        I("s_and_b32", sT0, sT0, 1)
        I("s_mul_i32", sROT, sT0, 4)
    else:
        I("s_mov_b32", sROT, 0)
    I("s_mov_b32", sST, sROT)
    I("s_lshl_b32", sT0, sRT, 2)
    I("s_add_u32", sT0, sT0, sWV)
    I("s_mul_i32", sXB, sT0, 32 * 1152)
    I("s_lshl_b32", sMX, sWV, 12)
    I("s_mul_i32", sMQ, sWV, 4608)
    I("s_add_u32", sMW, sMQ, WSL)
    I("v_lshrrev_b32", T[0], 3, vL)
    I("v_mul_u32_u24", T[0], 1152, T[0])
    I("v_lshrrev_b32", vGL, 4, vL)
    I("v_and_b32", T[1], 7, vL)
    I("v_xor_b32", T[1], T[1], vGL)
    I("v_lshl_add_u32", vOX[0], T[1], 4, T[0])
    I("v_xor_b32", T[1], 4, T[1])
    I("v_lshl_add_u32", vOX[1], T[1], 4, T[0])
    I("v_add_u32", vOX[2], 16 * 1152 - 2048, vOX[0])
    I("v_add_u32", vOX[3], 24 * 1152 - 3072, vOX[1])
    I("v_add_u32", vOX[1], 8 * 1152 - 1024, vOX[1])
    I("s_mul_i32", sT2, sG, 144)
    I("s_mul_i32", sT0, sWV, 16 * 3456)
    I("s_add_u32", sT0, sT0, sT2)
    I("s_movk_i32", sT3, 3456)
    for i in range(5):
        piece_decode(i)
        I("v_mul_u32_u24", T[2], 1008, T[2])
        I("v_lshl_add_u32", T[1], T[1], 4, T[2])
        I("v_mad_u32_u24", T[0], T[0], sT3, T[1])
        I("s_add_u32", sT1, sT0, 1152 - (1024 * i if i < 4 else 0) & 0xffffffff)
        I("v_add_u32", vOW[i], sT1, T[0])
    wait(lgkm=0)
    I("s_cmp_lg_u32", sA, 0)
    I("s_cselect_b32", SX[0], s(4), s(10)); I("s_cselect_b32", SX[1], s(5), s(11))
    I("s_cselect_b32", SW[0], s(6), s(12)); I("s_cselect_b32", SW[1], s(7), s(13))
    I("s_cselect_b32", SWO[0], s(8), s(16)); I("s_cselect_b32", SWO[1], s(9), s(17))
    I("s_mov_b32", SX[2], 2048 * 1152); I("s_mov_b32", SX[3], 0x20000)
    I("s_mov_b32", SW[2], 576 * 3456); I("s_mov_b32", SW[3], 0x20000)
    for f in stage_dma(0): f()
    for f in stage_dma(1): f()
    I("s_mov_b32", SWO[2], 576 * 1152); I("s_mov_b32", SWO[3], 0x20000)
    srd(SWS, s(22), s(23), WS_BYTES)
    srd(SOUT, s(18), s(19), 2048 * 2304)
    srd(SDBG, s(20), s(21), 256)
    srd(SPHI, s(14), s(15), 32 * 648)
    stamp("issued01")
    I("s_lshl_b32", sT0, sG, 2); I("s_add_u32", sT0, sT0, sWV); I("s_mul_i32", sT0, sT0, 648)
    I("v_lshlrev_b32", T[0], 2, vL)
    PW = v(240, 3)
    for i in range(3):
        I("buffer_load_dword", PW[i], T[0], SPHI, sT0, mods="offen offset:%d" % (256 * i))
    I("v_and_b32", vN, 15, vL)
    I("v_lshlrev_b32", vL16, 4, vL)
    I("s_mov_b32", sC[0], f2u(LOG2E)); I("s_mov_b32", sC[1], f2u(LOG2E))
    I("s_mov_b32", sEPS[0], f2u(1e-6)); I("s_mov_b32", sEPS[1], f2u(1e-6))
    I("s_mov_b32", sODD[0], 0xffff0000); I("s_mov_b32", sODD[1], 0xffff0000)
    for i in range(4): I("v_mov_b32", vM1[i], -1)
    I("v_lshrrev_b32", T[0], 1, vN)
    I("v_xor_b32", T[0], T[0], vGL)
    I("v_lshlrev_b32", T[1], 7, vN)
    I("v_add_u32", T[1], sMX, T[1])
    I("v_lshl_add_u32", vXR[0], T[0], 4, T[1])
    I("v_xor_b32", T[0], 4, T[0])
    I("v_lshl_add_u32", vXR[1], T[0], 4, T[1])
    vR, vC = T[4], T[5]
    I("v_bfe_u32", vR, vL, 2, 2)
    I("v_and_b32", vC, 3, vL)
    I("v_and_b32", T[0], 1, vGL)
    I("v_lshlrev_b32", T[0], 2, T[0])
    I("v_lshl_add_u32", T[1], vGL, 3, vR)
    I("v_add_u32", T[2], T[1], T[0])
    I("v_xor_b32", T[3], 4, T[2])
    I("v_mul_u32_u24", T[2], 288, T[2]); I("v_mul_u32_u24", T[3], 288, T[3])
    I("v_add_u32", T[2], WSL, T[2]); I("v_add_u32", T[3], WSL, T[3])
    I("v_mul_u32_u24", T[0], 40, vC)
    I("v_lshrrev_b32", T[1], 1, vC)
    I("v_add_u32", vTR[0][0], T[2], T[0]); I("v_add_u32", vTR[0][1], T[3], T[0])
    I("v_lshlrev_b32", T[6], 5, T[1]); I("v_sub_u32", T[6], T[0], T[6]); I("v_add_u32", T[6], 24, T[6])
    I("v_add_u32", vTR[1][0], T[2], T[6]); I("v_add_u32", vTR[1][1], T[3], T[6])
    I("v_mul_u32_u24", T[6], 72, T[1]); I("v_add_u32", T[6], 32, T[6])
    I("v_add_u32", vTR[2][0], T[2], T[6]); I("v_add_u32", vTR[2][1], T[3], T[6])
    I("v_lshl_add_u32", vTR[3][0], vC, 3, T[2]); I("v_lshl_add_u32", vTR[3][1], vC, 3, T[3])
    I("v_and_b32", T[6], 1, vC); I("v_mul_u32_u24", T[6], 72, T[6]); I("v_add_u32", T[6], 32, T[6])
    I("v_add_u32", vTR[4][0], T[2], T[6]); I("v_add_u32", vTR[4][1], T[3], T[6])
    vPHA, vPSA = vA[0], vA[1]
    I("v_mul_u32_u24", T[0], 40, vR)
    I("v_mul_u32_u24", T[1], 960, vGL); I("v_add3_u32", T[1], T[1], T[0], 0); I("v_add_u32", T[1], PHI, T[1])
    I("v_mul_u32_u24", T[2], 1920, vGL); I("v_add3_u32", T[2], T[2], T[0], 0); I("v_add_u32", T[2], KVI, T[2])
    I("v_mov_b32", T[3], ZERO)
    I("v_cmp_eq_u32", "vcc", vC, vGL)
    I("v_cndmask_b32", vPHA, T[3], T[1], "vcc"); I("v_cndmask_b32", vPSA, T[3], T[2], "vcc")
    vKB0, vKB2 = vA[2], vA[3]
    I("v_lshl_add_u32", T[0], vGL, 2, vR); I("v_mul_u32_u24", T[0], 72, T[0])
    I("s_mul_i32", sT0, sWV, 9216)
    I("v_add_u32", T[0], sT0, T[0])
    I("v_lshl_add_u32", vKB0, vC, 3, T[0]); I("v_add_u32", vKB2, 64, T[0])
    Z4 = v(244, 4)
    for i in range(4): I("v_mov_b32", Z4[i], 0)
    I("s_mul_i32", sT0, sWV, 960); I("s_add_u32", sT0, sT0, PHI)
    I("v_min_u32", T[0], 59 * 16, vL16); I("v_add_u32", T[0], sT0, T[0])
    I("ds_write_b128", T[0], Z4)
    I("s_mul_i32", sT1, sWV, 384); I("s_add_u32", sT1, sT1, ZERO)
    I("v_min_u32", T[0], 23 * 16, vL16); I("v_add_u32", T[0], sT1, T[0])
    I("ds_write_b128", T[0], Z4)
    PA = v(248, 3)
    I("s_and_b32", sT1, sWV, 1); I("s_lshl_b32", sT1, sT1, 4)
    I("s_lshr_b32", sT2, sWV, 1); I("s_mul_i32", sT2, sT2, 12)
    for i in range(3):
        I("v_add_u32", T[0], 64 * i, vL) if i else I("v_mov_b32", T[0], vL)
        I("v_mul_u32_u24", T[1], 7282, T[0]); I("v_lshrrev_b32", T[1], 16, T[1])
        I("v_mul_u32_u24", T[2], 9, T[1]); I("v_sub_u32", T[2], T[0], T[2])
        I("v_add_u32", T[3], sT1, T[1])
        I("v_subrev_u32", T[6], 18, T[3]); I("v_min_u32", T[3], T[3], T[6])
        I("v_add_u32", T[6], sT2, T[3]); I("v_and_b32", T[6], 15, T[6])
        I("v_cmp_gt_u32", "vcc", 16, T[3])
        I("v_cndmask_b32", T[3], T[3], T[6], "vcc")
        if i == 2:
            I("v_cmp_gt_u32", "vcc", 162, T[0])
            I("v_cndmask_b32", T[3], 22, T[3], "vcc")
        I("v_mul_u32_u24", T[3], 40, T[3])
        I("v_lshl_add_u32", T[3], T[2], 2, T[3])
        I("v_add_u32", PA[i], sT0, T[3])
    I("s_and_b32", sT0, sWV, 1); I("s_lshl_b32", sT0, sT0, 4)
    I("s_mul_i32", sT2, sG, 144)
    I("s_movk_i32", sT3, 3456)
    I("s_movk_i32", s(59), 1152)
    for i in range(5):
        piece_decode(i)
        I("v_add_u32", T[0], sT0, T[0])
        I("s_add_u32", sT1, sT2, (-(1024 * i if i < 4 else 0)) & 0xffffffff)
        I("v_mul_u32_u24", T[3], 9, T[2]); I("v_sub_u32", T[1], T[1], T[3])
        I("v_lshlrev_b32", T[1], 4, T[1]); I("v_add_u32", T[1], sT1, T[1])
        I("v_lshl_add_u32", T[3], T[2], 5, T[0])
        I("v_mad_u32_u24", vOQ[i], T[3], sT3, T[1])
        I("v_lshrrev_b32", T[3], 3, T[0])
        I("v_and_b32", T[6], 7, T[0])
        I("v_and_b32", T[7], 1, T[3])
        I("v_mul_u32_u24", T[8], 18, T[3]); I("v_lshl_add_u32", T[8], T[7], 1, T[8])
        I("v_lshl_add_u32", T[8], T[2], 3, T[8]); I("v_add_u32", T[8], T[8], T[6])
        I("v_mad_u32_u24", vOO[i], T[8], s(59), T[1])
        I("v_lshrrev_b32", T[8], 1, T[6]); I("v_lshl_add_u32", T[8], T[2], 2, T[8])
        I("v_add_u32", T[8], sG, T[8]); I("v_and_b32", T[8], 7, T[8])
        I("v_mul_u32_u24", T[8], 72, T[8])
        I("v_lshrrev_b32", T[3], 1, T[3]); I("v_mul_u32_u24", T[3], 36, T[3])
        I("v_lshl_add_u32", T[3], T[7], 1, T[3]); I("v_and_b32", T[6], 1, T[6])
        I("v_add3_u32", T[8], T[8], T[3], T[6]); I("v_add_u32", T[8], 16, T[8])
        I("v_mad_u32_u24", vO8[i], T[8], s(59), T[1])
    I("s_lshl_b32", sT0, sA, 3); I("s_add_u32", sT0, sT0, sG)
    I("s_mul_i32", sPGR, sT0, 16 * 12288)
    I("s_mul_i32", sT1, sRT, 12288); I("s_add_u32", sPME, sPGR, sT1)
    I("s_mul_i32", sT1, sWV, 3072); I("s_add_u32", sPME, sPME, sT1)
    I("s_lshl_b32", sFG, sT0, 13); I("s_add_u32", sFG, sFG, WS_F)
    I("s_lshl_b32", sT0, sA, 4); I("s_add_u32", sT0, sT0, sRT); I("s_lshl_b32", sT0, sT0, 2); I("s_add_u32", sT0, sT0, sWV)
    I("s_mul_i32", sOB, sT0, 8 * 4608); I("s_add_u32", sOB, sOB, WS_O)
    for p in range(2):
        for i in (9, 10, 11): I("v_mov_b32", KB[p][i], 0)
        for i in (18, 19): I("v_mov_b32", PH[p][i], 0)
    stamp("prolog")

    vFS = vA[4]
    def poison_ops():
        ops = []
        for i in range(3):
            ops.append(lambda i=i: I("buffer_store_dwordx4", vM1, vL16, SWS, sPME, mods="offen offset:%d sc1" % (1024 * i)))
        def o0():
            I("s_mul_i32", sT0, sG, 4608); I("s_add_u32", sT0, sT0, sOB)
            I("buffer_store_dwordx4", vM1, vL16, SWS, sT0, mods="offen sc1")
        ops.append(o0)
        for i in range(1, 4):
            ops.append(lambda i=i: I("buffer_store_dwordx4", vM1, vL16, SWS, sT0, mods="offen offset:%d sc1" % (1024 * i)))
        def o4():
            I("s_add_u32", sT0, sT0, 4096)
            I("v_lshlrev_b32", T[0], 3, vL)
            I("buffer_store_dwordx2", vM1[0:2], T[0], SWS, sT0, mods="offen sc1")
        ops.append(o4)
        def f0():
            I("v_lshlrev_b32", T[0], 2, vL)
            I("v_mov_b32", T[1], OOB)
            I("v_cmp_gt_u32", "vcc", 24, vL)
            I("s_lshl_b32", sT0, sRT, 2); I("s_add_u32", sT0, sT0, sWV); I("s_mul_i32", sT0, sT0, 96); I("s_add_u32", sT0, sT0, sFG)
            I("v_cndmask_b32", vFS, T[1], T[0], "vcc")
            I("buffer_store_dword", vM1[0], vFS, SWS, sT0, mods="offen sc1")
        ops.append(f0)
        return ops
    POIS = 3
    for j in range(9):
        slot = j % 3
        P.comment("pass1 stage %d" % j)
        if j == 0: younger = 9 + 3
        elif j == 1: younger = 3 + 9
        elif j == 8: younger = 10
        else: younger = 9
        if j == POIS + 1: younger = 9 + 9
        if j == POIS + 2: younger = 9 + 9
        wait(vm=younger)
        if j == 2:
            pass
        I("s_barrier")
        if j == 8:
            I("s_cmp_lg_u32", sWV, 0)
            I("s_cbranch_scc1", "L_noat")
            I("s_lshl_b32", sT0, sA, 7)
            I("v_mov_b32", T[0], 0); I("v_mov_b32", T[1], 1)
            I("s_mov_b64", "exec", 1)
            I("buffer_atomic_add", T[1], T[0], SDBG, sT0, mods="offen")
            I("s_mov_b64", "exec", -1)
            P.label("L_noat")
        fill = []
        if j + 2 < 9: fill = stage_dma((j + 2) % 3)
        elif j == 7: fill = wq_pair_dma(0) + wq_pair_dma(2)
        elif j == 8: fill = wq_pair_dma(4)
        if j == POIS: fill = fill + poison_ops()
        if j == 2:
            def wphi():
                for i in range(3): I("ds_write_b32", PA[i], PW[i])
            wphi()
        if j == 3:
            for t in range(5):
                for jj in range(3):
                    tr(PHIF(t, jj)[0:2], vPHA, 8 * t + 8 * jj * 40)
                    if jj < 2: tr(PHIF(t, jj)[2:4], vPHA, 8 * t + (8 * jj + 4) * 40)
                    else:
                        I("v_accvgpr_write_b32", PHIF(t, jj)[2], 0); I("v_accvgpr_write_b32", PHIF(t, jj)[3], 0)
                wait(lgkm=5)
            wait(lgkm=0)
        pipe = Pipe(dist=4)
        for kap in range(2):
            ks = 2 * j + kap
            for T_ in range(10):
                ring = RING[(kap * 10 + T_) % 8]
                def rd(kap=kap, ks=ks, T_=T_, ring=ring):
                    if T_ == 0:
                        for p in range(2):
                            I("ds_read_b128", XF(ks, p), vXR[kap], mods="offset:%d" % (slot * XSLOT + p * 2048))
                    tile_read(ring, T_, slot * WSLOT + kap * 9216)
                def work(ks=ks, T_=T_, ring=ring):
                    for p in range(2):
                        if T_ < 5: mfma(ACK[p][T_], ring, XF(ks, p), 0 if ks == 0 else ACK[p][T_])
                        else: mfma(ACV[p][T_ - 5], XF(ks, p), ring, 0 if ks == 0 else ACV[p][T_ - 5])
                pipe.add(4 if T_ == 0 else 2, rd, work)
        pipe.emit(fill, every=(1 if len(fill) > 10 else 2), start=1)
    I("s_barrier")
    stamp("pass1")
    for f in wq_pair_dma(6): f()
    I("s_cmp_ge_u32", sWV, 2)
    I("s_cbranch_scc1", "L_noq8")
    for f in wq_pair_dma(8): f()
    P.label("L_noq8")

    VFR = v(144, 20)
    for t in range(5):
        for p in range(2):
            for h in range(2):
                I("v_cvt_pk_bf16_f32", VFR[4 * t + 2 * p + h], ACV[p][t][2 * h], ACV[p][t][2 * h + 1])
    I("v_cmp_eq_u32", "vcc", 8, vN)
    I("v_mov_b32", T[0], 0x3f803f80)
    for i in range(4): I("v_cndmask_b32", VFR[16 + i], VFR[16 + i], T[0], "vcc")
    I("s_mul_i32", sT0, sWV, 5120); I("s_add_u32", sT0, sT0, VF)
    I("v_add_u32", T[1], sT0, vL16)
    for t in range(5): I("ds_write_b128", T[1], VFR[4 * t:4 * t + 4], mods="offset:%d" % (1024 * t))
    wait(lgkm=0)
    feature_map("k")
    I("v_mul_u32_u24", T[0], 9216, vGL)
    I("v_mul_u32_u24", T[1], 72, vN)
    I("s_mul_i32", sT0, sWV, 32 * 72)
    I("v_add3_u32", T[0], T[0], T[1], sT0)
    for p in range(2):
        for i in range(9):
            I("ds_write_b64", T[0], PH[p][2 * i:2 * i + 2], mods="offset:%d" % (IMG + p * 1152 + 8 * i))
    I("s_lshl_b32", sT0, sWV, 10); I("s_add_u32", sT0, sT0, VF)
    I("v_add_u32", T[2], sT0, vL16)
    I("s_lshl_b32", sT0, sWV, 1)
    I("v_add_u32", T[3], sT0, vN)
    I("v_cmp_gt_u32", "vcc", 2, vN)
    I("v_cndmask_b32", T[3], 8, T[3], "vcc")
    I("v_lshl_add_u32", T[3], vGL, 4, T[3])
    I("v_lshlrev_b32", T[3], 4, T[3]); I("v_add_u32", T[3], VF + 4096, T[3])
    wait(lgkm=0)
    I("s_barrier")
    stamp("kpost")
    DM = [v(104 + 4 * j, 4) for j in range(3)]; DL = [v(116 + 4 * j, 4) for j in range(3)]
    pipe = Pipe(dist=3)
    for src in range(4):
        base = 64 + 20 * (src % 2)
        AM, AL = v(base, 4), v(base + 4, 4)
        BF = [v(base + 8 + 4 * j, 4) for j in range(3)]
        for j in range(3):
            def rd(src=src, AM=AM, AL=AL, BF=BF, j=j):
                if j == 0:
                    I("ds_read_b128", AM, T[2], mods="offset:%d" % (src * 5120))
                    I("ds_read_b128", AL, T[3], mods="offset:%d" % (src * 5120))
                for e in range(2):
                    tr(BF[j][2 * e:2 * e + 2], vKB0 if j < 2 else vKB2, IMG + src * 2304 + e * 1152 + (32 * j if j < 2 else 0))
            def work(src=src, AM=AM, AL=AL, BF=BF, j=j):
                mfma(DM[j], AM, BF[j], 0 if src == 0 else DM[j])
                mfma(DL[j], AL, BF[j], 0 if src == 0 else DL[j])
            pipe.add(4 if j == 0 else 2, rd, work)
    pipe.emit()
    I("v_mov_b32", T[4], OOB)
    I("v_lshl_add_u32", T[0], vGL, 2, vN); I("v_lshlrev_b32", T[0], 4, T[0])
    I("v_cmp_gt_u32", "vcc", 4, vN)
    I("v_cndmask_b32", T[0], T[4], T[0], "vcc")
    I("v_cmp_gt_u32", "vcc", 16, vL)
    I("v_cndmask_b32", T[1], T[4], vL16, "vcc")
    I("buffer_store_dwordx4", DM[0], vL16, SWS, sPME, mods="offen sc1")
    I("buffer_store_dwordx4", DM[1], vL16, SWS, sPME, mods="offen offset:1024 sc1")
    I("buffer_store_dwordx4", DM[2], T[0], SWS, sPME, mods="offen offset:2048 sc1")
    for j in range(3):
        I("buffer_store_dwordx4", DL[j], T[1], SWS, sPME, mods="offen offset:%d sc1" % (2304 + 256 * j))
    stamp("pubP")
    wait(vm=6)
    I("s_barrier")

    def rebase(delta):
        for pat in range(3):
            for e in range(2):
                I("v_add_u32", vTR[pat][e], delta & 0xffffffff, vTR[pat][e])
    def gemm2(bfrag, offs, rebases, fillers, pre=None, every=3):
        pipe = Pipe(dist=4)
        n = 0
        for ks in range(18):
            for T_ in range(5):
                ring = RING[n % 8]; n += 1
                def rd(ks=ks, T_=T_, ring=ring):
                    if T_ == 0 and ks in rebases: rebase(rebases[ks])
                    tile_read(ring, T_, offs(ks))
                def work(ks=ks, T_=T_, ring=ring):
                    if T_ == 0 and pre: pre(ks)
                    for p in range(2):
                        mfma(ACK[p][T_], ring, bfrag(ks, p), 0 if ks == 0 else ACK[p][T_])
                pipe.add(2, rd, work)
        pipe.emit(fillers, every=every, start=1)
    gemm2(XF, lambda ks: ((ks // 2) % 6) * 9216 + (ks & 1) * 144, {0: WQ0 - WSL, 12: WQ6 - WQ0},
          wo_pair_dma(0) + wo_pair_dma(2) + wo_pair_dma(4))
    stamp("qgemm")

    I("s_lshl_b32", sT0, sA, 7)
    I("v_mov_b32", T[0], 0)
    I("s_mov_b32", sCNT, 0)
    P.label("L_hs")
    I("buffer_load_dword", T[1], T[0], SDBG, sT0, mods="offen sc1")
    wait(vm=0)
    I("v_readfirstlane_b32", sT1, T[1])
    I("s_add_u32", sCNT, sCNT, 1)
    I("s_cmp_gt_u32", sCNT, SPIN)
    I("s_cbranch_scc1", "L_hsd")
    I("s_cmp_lt_u32", sT1, 128)
    I("s_cbranch_scc1", "L_hs")
    P.label("L_hsd")
    RS = v(104, 16)
    I("v_and_b32", T[0], 31, vL); I("v_min_u32", T[0], 23, T[0]); I("v_lshlrev_b32", T[0], 3, T[0])
    I("v_lshrrev_b32", T[1], 5, vL); I("v_mul_u32_u24", T[1], 8 * 12288, T[1]); I("v_add_u32", T[0], T[0], T[1])
    I("s_lshl_b32", sT2, sRT, 2); I("s_add_u32", sT2, sT2, sWV)
    I("s_mul_i32", sT0, sT2, 192); I("s_add_u32", sT0, sT0, sPGR)
    spin_header("rs")
    I("s_mov_b32", sT1, sT0)
    for i in range(8):
        I("buffer_load_dwordx2", RS[2 * i:2 * i + 2], T[0], SWS, sT1, mods="offen sc1")
        if i < 7: I("s_add_u32", sT1, sT1, 12288)
    wait(vm=0)
    umax(T[2], [RS[i] for i in range(16)])
    spin_footer("rs", T[2])
    for st in (8, 4, 2):
        for i in range(0, st, 2):
            I("v_pk_add_f32", RS[i:i + 2], RS[i:i + 2], RS[i + st:i + st + 2])
    I("v_mov_b32", RS[2], RS[0]); I("v_mov_b32", RS[3], RS[1])
    I("v_permlane32_swap_b32", RS[0], RS[2]); I("v_permlane32_swap_b32", RS[1], RS[3])
    I("v_pk_add_f32", RS[0:2], RS[0:2], RS[2:4])
    I("v_cvt_pk_bf16_f32", RS[0], RS[0], RS[1])
    I("s_mul_i32", sT0, sT2, 96); I("s_add_u32", sT0, sT0, sFG)
    I("buffer_store_dword", RS[0], vFS, SWS, sT0, mods="offen sc1")
    stamp("pubF")

    feature_map("q")
    stamp("qpost")
    I("v_lshlrev_b32", T[0], 3, vL)
    I("s_mul_i32", sT0, sWV, 1536); I("s_add_u32", sT0, sT0, sFG)
    I("s_mul_i32", sT1, sWV, 1920); I("s_add_u32", sT1, sT1, KVI)
    I("v_mul_u32_u24", T[1], 40, vN); I("v_lshl_add_u32", T[1], vGL, 3, T[1]); I("v_add_u32", T[1], sT1, T[1])
    I("v_and_b32", T[2], 3, vL); I("v_mul_u32_u24", T[2], 40, T[2]); I("v_lshrrev_b32", T[3], 2, vL)
    I("v_lshl_add_u32", T[2], T[3], 3, T[2]); I("v_add_u32", T[2], 32 * 40, T[2])
    I("v_mul_u32_u24", T[3], 40, vL); I("v_add_u32", T[3], (32 - 16 * 40) & 0xffffffff, T[3])
    I("v_cmp_gt_u32", "vcc", 16, vL)
    I("v_cndmask_b32", T[2], T[3], T[2], "vcc"); I("v_add_u32", T[2], sT1, T[2])
    spin_header("ag")
    for i in range(3):
        I("buffer_load_dwordx2", RS[2 * i:2 * i + 2], T[0], SWS, sT0, mods="offen offset:%d sc1" % (512 * i))
    wait(vm=0)
    umax(T[4], [RS[i] for i in range(6)])
    spin_footer("ag", T[4])
    I("ds_write_b64", T[1], RS[0:2]); I("ds_write_b64", T[1], RS[2:4], mods="offset:640"); I("ds_write_b64", T[2], RS[4:6])
    for t in range(5):
        I("v_accvgpr_write_b32", PSIF(t, 4)[2], 0); I("v_accvgpr_write_b32", PSIF(t, 4)[3], 0)
    wait(lgkm=0)
    I("s_barrier")
    stamp("gotkv")
    for f in wo_pair_dma(6): f()
    I("s_cmp_ge_u32", sWV, 2)
    I("s_cbranch_scc1", "L_noo8")
    for f in dma5(vO8, SWO, 0, sMQ, WO6 + 2 * 9216): f()
    P.label("L_noo8")

    pipe = Pipe(dist=4)
    for j in range(5):
        for t in range(5):
            def rd(j=j, t=t):
                tr(PSIF(t, j)[0:2], vPSA, 8 * t + 8 * j * 40)
                if j < 4: tr(PSIF(t, j)[2:4], vPSA, 8 * t + (8 * j + 4) * 40)
            def work(j=j, t=t):
                for p in range(2):
                    mfma(ACK[p][t], PSIF(t, j), PH[p][4 * j:4 * j + 4], 0 if j == 0 else ACK[p][t])
            pipe.add(2 if j < 4 else 1, rd, work)
    pipe.emit()
    pool = list(range(104, 144, 4)) + list(range(176, 256, 4)) + list(range(12, 20, 4))
    pool = list(range(104, 144, 4)) + list(range(176, 256, 4)) + [12, 16, 28, 32, 36, 40]
    assert len(pool) == 36
    OF = {}
    order = [(0, 0, 0), (0, 0, 1), (0, 1, 0), (0, 1, 1)]
    keys = order + [("L", k, p) for k in range(2) for p in range(2)] + [(u, p, X) for u in range(1, 8) for p in range(2) for X in range(2)]
    for k_, r_ in zip(keys, pool): OF[k_] = v(r_, 4)
    for p in range(2):
        o = v(64 + 20 * p, 20)
        I("v_add_f32", o[18], sEPS[0], o[18])
        I("v_rcp_f32", o[18], o[18])
        for i in range(0, 18, 2):
            I("v_pk_mul_f32", o[i:i + 2], o[i:i + 2], o[18:20], mods="op_sel:[0,0] op_sel_hi:[1,0]")
        for i in range(8):
            I("v_cvt_pk_bf16_f32", OF[(0, p, i // 4)][i % 4], o[2 * i], o[2 * i + 1])
        I("v_cvt_pk_bf16_f32", OF[("L", 0, p)][0], o[16], o[17])
    vL4 = vA[5]
    I("v_lshlrev_b32", vL4, 2, vL)
    I("s_mul_i32", sT0, sG, 4608); I("s_add_u32", sT0, sT0, sOB)
    I("s_add_u32", sT1, sT0, 4096)
    for p in range(2):
        for X in range(2):
            I("buffer_store_dwordx4", OF[(0, p, X)], vL16, SWS, sT0, mods="offen offset:%d sc1" % (p * 2048 + X * 1024))
        I("buffer_store_dword", OF[("L", 0, p)][0], vL4, SWS, sT1, mods="offen offset:%d sc1" % (p * 256))
    stamp("pubO")
    wait(vm=6)
    I("s_barrier")

    def oload(u):
        I("s_add_u32", sT0, sG, u); I("s_and_b32", sT0, sT0, 7)
        I("s_mul_i32", sT0, sT0, 4608); I("s_add_u32", sT0, sT0, sOB)
        I("s_add_u32", sT1, sT0, 4096)
        for p in range(2):
            for X in range(2):
                I("buffer_load_dwordx4", OF[(u, p, X)], vL16, SWS, sT0, mods="offen offset:%d sc1" % (p * 2048 + X * 1024))
        for p in range(2):
            I("buffer_load_dword", OF[("L", u // 4, p)][u % 4], vL4, SWS, sT1, mods="offen offset:%d sc1" % (p * 256))
    for u in range(1, 8): oload(u)
    def oregs(u):
        r = []
        for p in range(2):
            for X in range(2): r += [OF[(u, p, X)][i] for i in range(4)]
            r.append(OF[("L", u // 4, p)][u % 4])
        return r
    def pre(ks):
        if ks >= 16 or ks & 1 or ks == 0: return
        u = ks // 2
        wait(vm=6 * (7 - u))
        I("s_mov_b32", sCNT, 0)
        umax(T[0], oregs(u))
        I("v_cmp_eq_u32", "vcc", -1, T[0])
        I("s_cbranch_vccz", "L_ok%d" % u)
        P.label("L_sp_o%d" % u)
        oload(u)
        wait(vm=0)
        umax(T[0], oregs(u))
        spin_footer("o%d" % u, T[0])
        P.label("L_ok%d" % u)
    def bf(ks, p):
        if ks < 16: return OF[(ks // 2, p, ks & 1)]
        return OF[("L", ks - 16, p)]
    gemm2(bf, lambda ks: ((ks // 2) % 6) * 9216 + (ks & 1) * 144, {0: WO0 - WQ6, 12: WO6 - WO0}, [], pre=pre)
    stamp("ogemm")
    I("s_lshl_b32", sT0, sRT, 2); I("s_add_u32", sT0, sT0, sWV); I("s_mul_i32", sT0, sT0, 32 * 2304)
    I("s_mul_i32", sT1, sG, 144); I("s_add_u32", sT0, sT0, sT1)
    I("s_cmp_lg_u32", sA, 0); I("s_cselect_b32", sT1, 0, 1152); I("s_add_u32", sT0, sT0, sT1)
    I("s_add_u32", sT1, sT0, 16 * 2304)
    I("v_mul_u32_u24", T[0], 2304, vN)
    I("v_mul_u32_u24", T[1], 40, vGL); I("v_add_u32", T[1], T[0], T[1])
    I("v_lshrrev_b32", T[4], 1, vGL)
    I("v_lshlrev_b32", T[2], 5, T[4]); I("v_sub_u32", T[2], T[1], T[2])
    I("v_mul_u32_u24", T[3], 72, T[4]); I("v_add_u32", T[3], T[0], T[3])
    I("v_mov_b32", T[5], OOB)
    I("v_cndmask_b32", T[3], T[3], T[5], sODD)
    OUTR = v(104, 20)
    for p in range(2):
        for t in range(5):
            for h in range(2):
                I("v_cvt_pk_bf16_f32", OUTR[10 * p + 2 * t + h], ACK[p][t][2 * h], ACK[p][t][2 * h + 1])
        so = sT0 if p == 0 else sT1
        for t in range(5):
            ad, off = (T[1], 8 * t) if t < 3 else ((T[2], 24) if t == 3 else (T[3], 32))
            I("buffer_store_dwordx2", OUTR[10 * p + 2 * t:10 * p + 2 * t + 2], ad, SOUT, so, mods="offen offset:%d" % off)
    if OPT["stamps"]:
        wait(vm=0)
        stamp("end")
        I("s_memrealtime", s(100, 2))
        wait(lgkm=0)
        n = stamp_n[0]
        for k in range(n):
            I("s_sub_u32", s(sSTB + k), s(sSTB + k), s(98))
            I("v_mov_b32", v(64 + k), s(sSTB + k))
        I("v_mov_b32", v(64 + 14), s(96)); I("v_mov_b32", v(64 + 15), s(100))
        I("s_lshl_b32", sT0, s(2), 2); I("s_add_u32", sT0, sT0, sWV); I("s_lshl_b32", sT0, sT0, 6); I("s_add_u32", sT0, sT0, WS_ST)
        I("v_mov_b32", T[0], 0)
        I("s_mov_b64", "exec", 1)
        for q in range(4):
            I("buffer_store_dwordx4", v(64 + 4 * q, 4), T[0], SWS, sT0, mods="offen offset:%d" % (16 * q))
        I("s_not_b32", sT1, s(96))
        I("v_mov_b32", T[1], sT1); I("v_mov_b32", T[2], s(100))
        I("buffer_atomic_umax", T[1], T[0], SDBG, 0, mods="offen offset:4")
        I("buffer_atomic_umax", T[2], T[0], SDBG, 0, mods="offen offset:8")
        I("s_lshl_b32", sT0, s(2), 2); I("s_add_u32", sT0, sT0, sWV)
        I("s_cmp_lg_u32", sT0, 36)
        I("s_cbranch_scc1", "L_end")
        for q in range(3):
            I("buffer_store_dwordx4", v(64 + 4 * q, 4), T[0], SDBG, 0, mods="offen offset:%d" % (16 + 16 * q))
    P.label("L_end")
    I("s_endpgm")

HEADER = open("cdna_kernels/%s.s.ref" % NAME).read().split("; Override launch")[0]

def main(out):
    build()
    body = P.finalize()
    txt = HEADER + "; @launch grid=(256,1,1) block=(256,1,1) lds=%d\n" % LDS_BYTES
    txt += '.amdgcn_target "amdgcn-amd-amdhsa--gfx950"\n.text\n.globl %s_kernel\n.p2align 8\n.type %s_kernel,@function\n' % (NAME, NAME)
    txt += ".set CODE_SPAN, (L_end - %s_kernel - 64) & 0xffffff80\n" % NAME
    txt += "%s_kernel:\n%s\n" % (NAME, body)
    txt += """.section .rodata,"a"
.p2align 6
.amdhsa_kernel %s_kernel
  .amdhsa_next_free_vgpr 512
  .amdhsa_next_free_sgpr 102
  .amdhsa_accum_offset 256
  .amdhsa_group_segment_fixed_size 0
  .amdhsa_kernarg_size 80
  .amdhsa_user_sgpr_count 2
  .amdhsa_user_sgpr_kernarg_segment_ptr 1
  .amdhsa_system_sgpr_workgroup_id_x 1
.end_amdhsa_kernel
""" % NAME
    open(out, "w").write(txt)
    print("wrote", out, "nops inserted:", P.nops, "instrs:", sum(isinstance(x, Ins) for x in P.items))

if __name__ == "__main__":
    out = sys.argv[1]
    for kv in sys.argv[2:]:
        k, val = kv.split("=")
        OPT[k] = int(val)
    main(out)
```

```python
import sys, struct
from asmdsl import *

NAME = "concat_heads__linear_attn_block__linear_kernel_hedgehog__prompt"
OPT = dict(stamps=False, nphase=3, amp=-1, dbgst=0)

def f2u(x): return struct.unpack("<I", struct.pack("<f", x))[0]
LOG2E = 1.4426950408889634

XS = 0; XSLOT = 16384
WSL = 49152; WSLOT = 18432
WQ0 = 104448
WQ6 = 76800
PHI = 104448
ZERO = 159744
IMG = 0
VF = 36864
KVI = 57344
WO0 = 0
WO6 = 104448
LDS_BYTES = 163840
WS_P = 0; WS_F = 0x300000; WS_O = 0x400000; WS_ST = 0x900000; WS_BYTES = 0xA00000
OOB = 0x7ffffff0
SPIN = 30000

SX, SW, SWO, SWS, SOUT, SDBG, SPHI = s(24, 4), s(28, 4), s(32, 4), s(36, 4), s(40, 4), s(44, 4), s(48, 4)
sA, sRT, sG, sWV = s(52), s(53), s(54), s(55)
sST, sOX, sOW = s(56), s(57), s(58)
sMX, sMW = s(60), s(61)
sT0, sT1, sT2, sT3 = s(62), s(63), s(64), s(65)
sXB = s(66)
sROT = s(67)
sPME, sPGR, sFG, sOB = s(68), s(69), s(70), s(71)
sCNT = s(72)
sC = s(74, 2)
sEPS = s(76, 2)
sODD = s(78, 2)
sMQ = s(80)
sIDX = s(81)
sPC = s(82, 2)
sSTB = 84

vL = v(0)
T = [v(i) for i in range(1, 10)]
vOX = [v(10 + i) for i in range(4)]
vOW = [v(14 + i) for i in range(5)]
vXR = [v(19), v(20)]
vTR = [[v(21 + 2 * p + e) for e in range(2)] for p in range(5)]
vOQ = [v(31 + i) for i in range(5)]
vOO = [v(36 + i) for i in range(5)]
vO8 = [v(41 + i) for i in range(5)]
vL16 = v(46)
vGL, vN = v(47), v(48)
vA = [v(49 + i) for i in range(11)]
vM1 = v(60, 4)
ACK = [[v(64 + 20 * p + 4 * t, 4) for t in range(5)] for p in range(2)]
ACV = [[v(104 + 20 * p + 4 * t, 4) for t in range(5)] for p in range(2)]
RING = [v(144 + 4 * i, 4) for i in range(8)]
def XF(ks, p): return a(ks * 8 + p * 4, 4)
def PHIF(t, j): return a(144 + (t * 3 + j) * 4, 4)
def PSIF(t, j): return a(144 + (t * 5 + j) * 4, 4)

P = Prog()
I = P.I
stamp_n = [0]
def stamp(name):
    if not OPT["stamps"]: return
    k = stamp_n[0]; stamp_n[0] += 1
    assert k < 16
    I("s_memtime", s(100, 2), c="stamp " + name)
    I("s_waitcnt", "lgkmcnt(0)")
    I("s_mov_b32", s(sSTB + k), s(100))

def wait(vm=None, lgkm=None):
    t = []
    if vm is not None: t.append("vmcnt(%d)" % vm)
    if lgkm is not None: t.append("lgkmcnt(%d)" % lgkm)
    I("s_waitcnt", " ".join(t))

def srd(dst, lo, hi, size):
    I("s_mov_b32", dst[0], lo); I("s_mov_b32", dst[1], hi)
    I("s_mov_b32", dst[2], size); I("s_mov_b32", dst[3], 0x20000)

def piece_decode(i):
    I("v_add_u32", T[3], 64 * i, vL) if i else I("v_mov_b32", T[3], vL)
    I("v_mul_u32_u24", T[0], 3641, T[3])
    I("v_lshrrev_b32", T[0], 16, T[0])
    I("v_mul_u32_u24", T[1], 18, T[0])
    I("v_sub_u32", T[1], T[3], T[1])
    I("v_lshrrev_b32", T[3], 1, T[0])
    I("v_and_b32", T[3], 4, T[3])
    I("v_xor_b32", T[0], T[0], T[3])
    I("v_add_u32", T[2], 7, T[1])
    I("v_lshrrev_b32", T[2], 4, T[2])

def next_stage():
    I("s_lshl_b32", sOX, sST, 7)
    I("s_add_u32", sOX, sOX, sXB)
    I("s_mul_i32", sOW, sST, 64 * 3456)
    I("s_add_u32", sST, sST, 1)
    I("s_cmp_eq_u32", sST, 9)
    I("s_cselect_b32", sST, 0, sST)

def dma5(voffs, srdreg, soff, m0base, m0imm):
    ops = []
    def first():
        I("s_add_u32", "m0", m0base, m0imm)
        I("buffer_load_dwordx4", voffs[0], srdreg, soff, mods="offen lds")
    ops.append(first)
    for i in range(1, 4):
        ops.append(lambda i=i: I("buffer_load_dwordx4", voffs[i], srdreg, soff, mods="offen offset:%d lds" % (1024 * i)))
    def last():
        I("s_add_u32", "m0", m0base, m0imm + 4096)
        I("s_mov_b32", "exec_hi", 0)
        I("buffer_load_dwordx4", voffs[4], srdreg, soff, mods="offen lds")
        I("s_mov_b32", "exec_hi", -1)
    ops.append(last)
    return ops

def stage_dma(slot):
    ops = []
    def first():
        next_stage()
        I("s_add_u32", "m0", sMX, slot * XSLOT)
        I("buffer_load_dwordx4", vOX[0], SX, sOX, mods="offen lds")
    ops.append(first)
    for i in range(1, 4):
        ops.append(lambda i=i: I("buffer_load_dwordx4", vOX[i], SX, sOX, mods="offen offset:%d lds" % (1024 * i)))
    ops += dma5(vOW, SW, sOW, sMW, slot * WSLOT)
    return ops

def wq_pair_dma(j):
    ops = []
    pos = lambda st: (WQ0 + st * 9216) if st < 6 else (WQ6 + (st - 6) * 9216)
    def setup():
        I("s_lshr_b32", sT0, sWV, 1)
        I("s_add_u32", sT0, sT0, sROT)
        I("s_add_u32", sT0, sT0, j)
        I("s_cmp_ge_u32", sT0, 9)
        I("s_cselect_b32", sT1, 9, 0)
        I("s_sub_u32", sT0, sT0, sT1)
        I("s_mul_i32", sOW, sT0, 64 * 3456)
    d = dma5(vOQ, SW, sOW, sMQ, pos(j))
    ops.append(lambda: (setup(), d[0]()))
    ops += d[1:]
    return ops

def wo_pair_dma(u):
    pos = lambda st: (WO0 + st * 9216) if st < 6 else (WO6 + (st - 6) * 9216)
    def setup():
        I("s_lshr_b32", sT0, sWV, 1)
        I("s_add_u32", sT0, sT0, sG)
        I("s_add_u32", sT0, sT0, u)
        I("s_and_b32", sT0, sT0, 7)
        I("s_mul_i32", sOW, sT0, 72 * 1152)
    d = dma5(vOO, SWO, sOW, sMQ, pos(u))
    return [lambda: (setup(), d[0]())] + d[1:]

def tr(dst, addr, off):
    assert 0 <= off < 65536, off
    I("ds_read_b64_tr_b16", dst, addr, mods="offset:%d" % off)

def mfma(d, x, y, c):
    I("v_mfma_f32_16x16x32_bf16", d, x, y, c)

def tile_read(dstreg, T_, base_off):
    if T_ < 3: pat, o = 0, 8 * T_
    elif T_ == 3: pat, o = 1, 0
    elif T_ == 4: pat, o = 2, 0
    elif T_ < 9: pat, o = 3, 144 + 8 * [0, 5, 9, 14][T_ - 5]
    else: pat, o = 4, 144
    for e in range(2):
        tr(dstreg[2 * e:2 * e + 2], vTR[pat][e], base_off + o)

class Pipe:
    def __init__(self, dist=4, group=1):
        self.units = []; self.dist = dist
    def add(self, nreads, rd, work): self.units.append((nreads, rd, work))
    def emit(self, fillers=(), every=2, start=1):
        fillers = list(fillers)
        U = self.units; n = len(U); d = self.dist
        issued = 0
        for k in range(min(d, n)): U[k][1](); issued = k + 1
        for k in range(n):
            if issued < n: U[issued][1](); issued += 1
            later = sum(U[q][0] for q in range(k + 1, issued))
            assert later <= 15
            wait(lgkm=later)
            U[k][2]()
            if fillers and k >= start and (k - start) % every == 0: fillers.pop(0)()
        for f in fillers: f()

def softmax_block(src18, out18, tmp):
    mx, mn = tmp[18], tmp[19]
    I("v_max3_f32", mx, src18[0], src18[1], src18[2]); I("v_min3_f32", mn, src18[0], src18[1], src18[2])
    for i in range(3, 17, 2):
        I("v_max3_f32", mx, mx, src18[i], src18[i + 1]); I("v_min3_f32", mn, mn, src18[i], src18[i + 1])
    I("v_max_f32", mx, mx, src18[17]); I("v_min_f32", mn, mn, src18[17])
    ab = tmp[20:22]
    I("v_mul_f32", ab[0], sC[0], mx); I("v_mul_f32", ab[1], sC[0], mn)
    for i in range(0, 18, 2):
        I("v_pk_fma_f32", tmp[i:i + 2], src18[i:i + 2], sC, ab, mods="op_sel:[0,0,1] op_sel_hi:[1,1,1] neg_lo:[1,0,0] neg_hi:[1,0,0]")
        I("v_pk_fma_f32", src18[i:i + 2], src18[i:i + 2], sC, ab, mods="op_sel:[0,0,0] op_sel_hi:[1,1,0] neg_lo:[0,0,1] neg_hi:[0,0,1]")
    for i in range(18):
        I("v_exp_f32", src18[i], src18[i]); I("v_exp_f32", tmp[i], tmp[i])
    sp, sn = tmp[18:20], tmp[20:22]
    I("v_pk_add_f32", sp, src18[0:2], src18[2:4]); I("v_pk_add_f32", sn, tmp[0:2], tmp[2:4])
    for i in range(4, 18, 2):
        I("v_pk_add_f32", sp, sp, src18[i:i + 2]); I("v_pk_add_f32", sn, sn, tmp[i:i + 2])
    rr = tmp[22:24]
    I("v_add_f32", rr[0], sp[0], sp[1]); I("v_add_f32", rr[1], sn[0], sn[1])
    I("v_rcp_f32", rr[0], rr[0]); I("v_rcp_f32", rr[1], rr[1])
    for i in range(0, 18, 2):
        I("v_pk_mul_f32", src18[i:i + 2], src18[i:i + 2], rr, mods="op_sel:[0,0] op_sel_hi:[1,0]")
        I("v_pk_mul_f32", tmp[i:i + 2], tmp[i:i + 2], rr, mods="op_sel:[0,1] op_sel_hi:[1,1]")
    for i in range(9):
        I("v_cvt_pk_bf16_f32", out18[i], src18[2 * i], src18[2 * i + 1])
        I("v_cvt_pk_bf16_f32", out18[9 + i], tmp[2 * i], tmp[2 * i + 1])

KB = [v(176 + 12 * p, 12) for p in range(2)]
PH = [v(200 + 20 * p, 20) for p in range(2)]
TMP = v(144, 24)

def feature_map(tag):
    acc = [v(64 + 20 * p, 20) for p in range(2)]
    for p in range(2):
        I("v_cndmask_b32", acc[p][16], acc[p][16], acc[p][18], sODD)
        I("v_cndmask_b32", acc[p][17], acc[p][17], acc[p][19], sODD)
    I("s_cmp_lg_u32", sA, 0)
    I("s_cbranch_scc1", "L_phiA_" + tag)
    for p in range(2):
        for i in range(9):
            I("v_cvt_pk_bf16_f32", KB[p][i], acc[p][2 * i], acc[p][2 * i + 1])
    for p in range(2):
        for j in range(3):
            for t in range(5):
                mfma(ACK[p][t], PHIF(t, j), KB[p][4 * j:4 * j + 4], 0 if j == 0 else ACK[p][t])
    for p in range(2):
        softmax_block(acc[p][0:18], PH[p][0:18], TMP)
    I("s_branch", "L_phiE_" + tag)
    P.label("L_phiA_" + tag)
    for p in range(2):
        x = acc[p]
        for i in range(0, 18, 2):
            I("v_pk_mul_f32", TMP[i:i + 2], x[i:i + 2], sC)
        for i in range(18):
            I("v_exp_f32", TMP[i], TMP[i], mods="clamp")
            I("v_max_f32", x[i], 0, x[i])
        for i in range(0, 18, 2):
            I("v_pk_add_f32", x[i:i + 2], x[i:i + 2], TMP[i:i + 2])
        for i in range(0, 18, 2):
            I("v_pk_add_f32", x[i:i + 2], x[i:i + 2], sEPS)
        for i in range(9):
            I("v_cvt_pk_bf16_f32", PH[p][i], x[2 * i], x[2 * i + 1])
            I("v_mov_b32", PH[p][9 + i], 0)
    P.label("L_phiE_" + tag)
    I("s_nop", 1)

def spin_header(tag):
    I("s_mov_b32", sCNT, 0)
    P.label("L_sp_" + tag)
def spin_footer(tag, chk):
    I("v_cmp_eq_u32", "vcc", -1, chk)
    I("s_add_u32", sCNT, sCNT, 1)
    I("s_cmp_gt_u32", sCNT, SPIN)
    I("s_cbranch_scc1", "L_spd_" + tag)
    I("s_cbranch_vccnz", "L_sp_" + tag)
    P.label("L_spd_" + tag)

def umax(dst, regs):
    regs = list(regs)
    I("v_max3_u32", dst, regs[0], regs[1], regs[2]); regs = regs[3:]
    while len(regs) >= 2:
        I("v_max3_u32", dst, dst, regs[0], regs[1]); regs = regs[2:]
    if regs: I("v_max_u32", dst, dst, regs[0])

def build():
    I("s_cmp_ge_u32", s(2), 256)
    I("s_cbranch_scc1", "L_end")
    I("s_load_dwordx16", s(4, 16), s(0, 2), 0)
    I("s_load_dwordx4", s(20, 4), s(0, 2), 64)
    I("s_getpc_b64", sPC)
    I("v_lshrrev_b32", T[0], 6, v(0))
    I("v_and_b32", vL, 63, v(0))
    I("s_lshr_b32", sIDX, s(2), 3)
    I("v_readfirstlane_b32", sWV, T[0])
    I("s_lshl_b32", sT0, sIDX, 2)
    I("v_add_u32", T[0], sT0, T[0])
    I("v_lshlrev_b32", T[0], 1, T[0])
    I("v_and_b32", T[1], 1, vL)
    I("v_add_lshl_u32", T[0], T[0], T[1], 7)
    I("v_min_u32", T[0], "CODE_SPAN", T[0])
    I("global_load_dword", v(255), T[0], sPC)
    if OPT["stamps"]:
        I("s_memtime", s(98, 2)); I("s_memrealtime", s(96, 2))
    I("s_bfe_u32", sA, s(2), 0x10002)
    I("s_and_b32", sT0, s(2), 3)
    I("s_lshr_b32", sT1, sIDX, 3)
    I("s_lshl_b32", sRT, sT0, 2)
    I("s_add_u32", sRT, sRT, sT1)
    I("s_and_b32", sG, sIDX, 7)
    if OPT["nphase"] == 3:
        I("s_add_u32", sT0, sG, sT1)
        I("s_mul_i32", sT1, sT0, 86)
        I("s_lshr_b32", sT1, sT1, 8)
        I("s_mul_i32", sT1, sT1, 3)
        I("s_sub_u32", sT0, sT0, sT1)
        I("s_mul_i32", sROT, sT0, 3)
    elif OPT["nphase"] == 2:
        I("s_add_u32", sT0, sG, sT1)
        I("s_and_b32", sT0, sT0, 1)
        I("s_mul_i32", sROT, sT0, 4)
    else:
        I("s_mov_b32", sROT, 0)
    I("s_mov_b32", sST, sROT)
    I("s_lshl_b32", sT0, sRT, 2)
    I("s_add_u32", sT0, sT0, sWV)
    I("s_mul_i32", sXB, sT0, 32 * 1152)
    I("s_lshl_b32", sMX, sWV, 12)
    I("s_mul_i32", sMQ, sWV, 4608)
    I("s_add_u32", sMW, sMQ, WSL)
    I("v_lshrrev_b32", T[0], 3, vL)
    I("v_mul_u32_u24", T[0], 1152, T[0])
    I("v_lshrrev_b32", vGL, 4, vL)
    I("v_and_b32", T[1], 7, vL)
    I("v_xor_b32", T[1], T[1], vGL)
    I("v_lshl_add_u32", vOX[0], T[1], 4, T[0])
    I("v_xor_b32", T[1], 4, T[1])
    I("v_lshl_add_u32", vOX[1], T[1], 4, T[0])
    I("v_add_u32", vOX[2], 16 * 1152 - 2048, vOX[0])
    I("v_add_u32", vOX[3], 24 * 1152 - 3072, vOX[1])
    I("v_add_u32", vOX[1], 8 * 1152 - 1024, vOX[1])
    I("s_mul_i32", sT2, sG, 144)
    I("s_mul_i32", sT0, sWV, 16 * 3456)
    I("s_add_u32", sT0, sT0, sT2)
    I("s_movk_i32", sT3, 3456)
    for i in range(5):
        piece_decode(i)
        I("v_mul_u32_u24", T[2], 1008, T[2])
        I("v_lshl_add_u32", T[1], T[1], 4, T[2])
        I("v_mad_u32_u24", T[0], T[0], sT3, T[1])
        I("s_add_u32", sT1, sT0, 1152 - (1024 * i if i < 4 else 0) & 0xffffffff)
        I("v_add_u32", vOW[i], sT1, T[0])
    wait(lgkm=0)
    I("s_cmp_lg_u32", sA, 0)
    I("s_cselect_b32", SX[0], s(4), s(10)); I("s_cselect_b32", SX[1], s(5), s(11))
    I("s_cselect_b32", SW[0], s(6), s(12)); I("s_cselect_b32", SW[1], s(7), s(13))
    I("s_cselect_b32", SWO[0], s(8), s(16)); I("s_cselect_b32", SWO[1], s(9), s(17))
    I("s_mov_b32", SX[2], 2048 * 1152); I("s_mov_b32", SX[3], 0x20000)
    I("s_mov_b32", SW[2], 576 * 3456); I("s_mov_b32", SW[3], 0x20000)
    for f in stage_dma(0): f()
    for f in stage_dma(1): f()
    I("s_mov_b32", SWO[2], 576 * 1152); I("s_mov_b32", SWO[3], 0x20000)
    srd(SWS, s(22), s(23), WS_BYTES)
    srd(SOUT, s(18), s(19), 2048 * 2304)
    srd(SDBG, s(20), s(21), 256)
    srd(SPHI, s(14), s(15), 32 * 648)
    stamp("issued01")
    I("s_lshl_b32", sT0, sG, 2); I("s_add_u32", sT0, sT0, sWV); I("s_mul_i32", sT0, sT0, 648)
    I("v_lshlrev_b32", T[0], 2, vL)
    PW = v(240, 3)
    for i in range(3):
        I("buffer_load_dword", PW[i], T[0], SPHI, sT0, mods="offen offset:%d" % (256 * i))
    I("v_and_b32", vN, 15, vL)
    I("v_lshlrev_b32", vL16, 4, vL)
    I("s_mov_b32", sC[0], f2u(LOG2E)); I("s_mov_b32", sC[1], f2u(LOG2E))
    I("s_mov_b32", sEPS[0], f2u(1e-6)); I("s_mov_b32", sEPS[1], f2u(1e-6))
    I("s_mov_b32", sODD[0], 0xffff0000); I("s_mov_b32", sODD[1], 0xffff0000)
    for i in range(4): I("v_mov_b32", vM1[i], -1)
    I("v_lshrrev_b32", T[0], 1, vN)
    I("v_xor_b32", T[0], T[0], vGL)
    I("v_lshlrev_b32", T[1], 7, vN)
    I("v_add_u32", T[1], sMX, T[1])
    I("v_lshl_add_u32", vXR[0], T[0], 4, T[1])
    I("v_xor_b32", T[0], 4, T[0])
    I("v_lshl_add_u32", vXR[1], T[0], 4, T[1])
    vR, vC = T[4], T[5]
    I("v_bfe_u32", vR, vL, 2, 2)
    I("v_and_b32", vC, 3, vL)
    I("v_and_b32", T[0], 1, vGL)
    I("v_lshlrev_b32", T[0], 2, T[0])
    I("v_lshl_add_u32", T[1], vGL, 3, vR)
    I("v_add_u32", T[2], T[1], T[0])
    I("v_xor_b32", T[3], 4, T[2])
    I("v_mul_u32_u24", T[2], 288, T[2]); I("v_mul_u32_u24", T[3], 288, T[3])
    I("v_add_u32", T[2], WSL, T[2]); I("v_add_u32", T[3], WSL, T[3])
    I("v_mul_u32_u24", T[0], 40, vC)
    I("v_lshrrev_b32", T[1], 1, vC)
    I("v_add_u32", vTR[0][0], T[2], T[0]); I("v_add_u32", vTR[0][1], T[3], T[0])
    I("v_lshlrev_b32", T[6], 5, T[1]); I("v_sub_u32", T[6], T[0], T[6]); I("v_add_u32", T[6], 24, T[6])
    I("v_add_u32", vTR[1][0], T[2], T[6]); I("v_add_u32", vTR[1][1], T[3], T[6])
    I("v_mul_u32_u24", T[6], 72, T[1]); I("v_add_u32", T[6], 32, T[6])
    I("v_add_u32", vTR[2][0], T[2], T[6]); I("v_add_u32", vTR[2][1], T[3], T[6])
    I("v_lshl_add_u32", vTR[3][0], vC, 3, T[2]); I("v_lshl_add_u32", vTR[3][1], vC, 3, T[3])
    I("v_and_b32", T[6], 1, vC); I("v_mul_u32_u24", T[6], 72, T[6]); I("v_add_u32", T[6], 32, T[6])
    I("v_add_u32", vTR[4][0], T[2], T[6]); I("v_add_u32", vTR[4][1], T[3], T[6])
    vPHA, vPSA = vA[0], vA[1]
    I("v_mul_u32_u24", T[0], 40, vR)
    I("v_mul_u32_u24", T[1], 960, vGL); I("v_add3_u32", T[1], T[1], T[0], 0); I("v_add_u32", T[1], PHI, T[1])
    I("v_mul_u32_u24", T[2], 1920, vGL); I("v_add3_u32", T[2], T[2], T[0], 0); I("v_add_u32", T[2], KVI, T[2])
    I("v_mov_b32", T[3], ZERO)
    I("v_cmp_eq_u32", "vcc", vC, vGL)
    I("v_cndmask_b32", vPHA, T[3], T[1], "vcc"); I("v_cndmask_b32", vPSA, T[3], T[2], "vcc")
    vKB0, vKB2 = vA[2], vA[3]
    I("v_lshl_add_u32", T[0], vGL, 2, vR); I("v_mul_u32_u24", T[0], 72, T[0])
    I("s_mul_i32", sT0, sWV, 9216)
    I("v_add_u32", T[0], sT0, T[0])
    I("v_lshl_add_u32", vKB0, vC, 3, T[0]); I("v_add_u32", vKB2, 64, T[0])
    Z4 = v(244, 4)
    for i in range(4): I("v_mov_b32", Z4[i], 0)
    I("s_mul_i32", sT0, sWV, 960); I("s_add_u32", sT0, sT0, PHI)
    I("v_min_u32", T[0], 59 * 16, vL16); I("v_add_u32", T[0], sT0, T[0])
    I("ds_write_b128", T[0], Z4)
    I("s_mul_i32", sT1, sWV, 384); I("s_add_u32", sT1, sT1, ZERO)
    I("v_min_u32", T[0], 23 * 16, vL16); I("v_add_u32", T[0], sT1, T[0])
    I("ds_write_b128", T[0], Z4)
    PA = v(248, 3)
    I("s_and_b32", sT1, sWV, 1); I("s_lshl_b32", sT1, sT1, 4)
    I("s_lshr_b32", sT2, sWV, 1); I("s_mul_i32", sT2, sT2, 12)
    for i in range(3):
        I("v_add_u32", T[0], 64 * i, vL) if i else I("v_mov_b32", T[0], vL)
        I("v_mul_u32_u24", T[1], 7282, T[0]); I("v_lshrrev_b32", T[1], 16, T[1])
        I("v_mul_u32_u24", T[2], 9, T[1]); I("v_sub_u32", T[2], T[0], T[2])
        I("v_add_u32", T[3], sT1, T[1])
        I("v_subrev_u32", T[6], 18, T[3]); I("v_min_u32", T[3], T[3], T[6])
        I("v_add_u32", T[6], sT2, T[3]); I("v_and_b32", T[6], 15, T[6])
        I("v_cmp_gt_u32", "vcc", 16, T[3])
        I("v_cndmask_b32", T[3], T[3], T[6], "vcc")
        if i == 2:
            I("v_cmp_gt_u32", "vcc", 162, T[0])
            I("v_cndmask_b32", T[3], 22, T[3], "vcc")
        I("v_mul_u32_u24", T[3], 40, T[3])
        I("v_lshl_add_u32", T[3], T[2], 2, T[3])
        I("v_add_u32", PA[i], sT0, T[3])
    I("s_and_b32", sT0, sWV, 1); I("s_lshl_b32", sT0, sT0, 4)
    I("s_mul_i32", sT2, sG, 144)
    I("s_movk_i32", sT3, 3456)
    I("s_movk_i32", s(59), 1152)
    for i in range(5):
        piece_decode(i)
        I("v_add_u32", T[0], sT0, T[0])
        I("s_add_u32", sT1, sT2, (-(1024 * i if i < 4 else 0)) & 0xffffffff)
        I("v_mul_u32_u24", T[3], 9, T[2]); I("v_sub_u32", T[1], T[1], T[3])
        I("v_lshlrev_b32", T[1], 4, T[1]); I("v_add_u32", T[1], sT1, T[1])
        I("v_lshl_add_u32", T[3], T[2], 5, T[0])
        I("v_mad_u32_u24", vOQ[i], T[3], sT3, T[1])
        I("v_lshrrev_b32", T[3], 3, T[0])
        I("v_and_b32", T[6], 7, T[0])
        I("v_and_b32", T[7], 1, T[3])
        I("v_mul_u32_u24", T[8], 18, T[3]); I("v_lshl_add_u32", T[8], T[7], 1, T[8])
        I("v_lshl_add_u32", T[8], T[2], 3, T[8]); I("v_add_u32", T[8], T[8], T[6])
        I("v_mad_u32_u24", vOO[i], T[8], s(59), T[1])
        I("v_lshrrev_b32", T[8], 1, T[6]); I("v_lshl_add_u32", T[8], T[2], 2, T[8])
        I("v_add_u32", T[8], sG, T[8]); I("v_and_b32", T[8], 7, T[8])
        I("v_mul_u32_u24", T[8], 72, T[8])
        I("v_lshrrev_b32", T[3], 1, T[3]); I("v_mul_u32_u24", T[3], 36, T[3])
        I("v_lshl_add_u32", T[3], T[7], 1, T[3]); I("v_and_b32", T[6], 1, T[6])
        I("v_add3_u32", T[8], T[8], T[3], T[6]); I("v_add_u32", T[8], 16, T[8])
        I("v_mad_u32_u24", vO8[i], T[8], s(59), T[1])
    I("s_lshl_b32", sT0, sA, 3); I("s_add_u32", sT0, sT0, sG)
    I("s_mul_i32", sPGR, sT0, 16 * 12288)
    I("s_mul_i32", sT1, sRT, 12288); I("s_add_u32", sPME, sPGR, sT1)
    I("s_mul_i32", sT1, sWV, 3072); I("s_add_u32", sPME, sPME, sT1)
    I("s_lshl_b32", sFG, sT0, 13); I("s_add_u32", sFG, sFG, WS_F)
    I("s_lshl_b32", sT0, sA, 4); I("s_add_u32", sT0, sT0, sRT); I("s_lshl_b32", sT0, sT0, 2); I("s_add_u32", sT0, sT0, sWV)
    I("s_mul_i32", sOB, sT0, 8 * 4608); I("s_add_u32", sOB, sOB, WS_O)
    for p in range(2):
        for i in (9, 10, 11): I("v_mov_b32", KB[p][i], 0)
        for i in (18, 19): I("v_mov_b32", PH[p][i], 0)
    stamp("prolog")

    vFS = vA[4]
    def poison_ops():
        ops = []
        for i in range(3):
            ops.append(lambda i=i: I("buffer_store_dwordx4", vM1, vL16, SWS, sPME, mods="offen offset:%d sc1" % (1024 * i)))
        def o0():
            I("s_mul_i32", sT0, sG, 4608); I("s_add_u32", sT0, sT0, sOB)
            I("buffer_store_dwordx4", vM1, vL16, SWS, sT0, mods="offen sc1")
        ops.append(o0)
        for i in range(1, 4):
            ops.append(lambda i=i: I("buffer_store_dwordx4", vM1, vL16, SWS, sT0, mods="offen offset:%d sc1" % (1024 * i)))
        def o4():
            I("s_add_u32", sT0, sT0, 4096)
            I("v_lshlrev_b32", T[0], 3, vL)
            I("buffer_store_dwordx2", vM1[0:2], T[0], SWS, sT0, mods="offen sc1")
        ops.append(o4)
        def f0():
            I("v_lshlrev_b32", T[0], 2, vL)
            I("v_mov_b32", T[1], OOB)
            I("v_cmp_gt_u32", "vcc", 24, vL)
            I("s_lshl_b32", sT0, sRT, 2); I("s_add_u32", sT0, sT0, sWV); I("s_mul_i32", sT0, sT0, 96); I("s_add_u32", sT0, sT0, sFG)
            I("v_cndmask_b32", vFS, T[1], T[0], "vcc")
            I("buffer_store_dword", vM1[0], vFS, SWS, sT0, mods="offen sc1")
        ops.append(f0)
        return ops
    POIS = 3
    for j in range(9):
        slot = j % 3
        P.comment("pass1 stage %d" % j)
        if j == 0: younger = 9 + 3
        elif j == 1: younger = 3 + 9
        elif j == 8: younger = 10
        else: younger = 9
        if j == POIS + 1: younger = 9 + 9
        if j == POIS + 2: younger = 9 + 9
        wait(vm=younger)
        if j == 2:
            pass
        I("s_barrier")
        if j == 8:
            I("s_cmp_lg_u32", sWV, 0)
            I("s_cbranch_scc1", "L_noat")
            I("s_lshl_b32", sT0, sA, 7)
            I("v_mov_b32", T[0], 0); I("v_mov_b32", T[1], 1)
            I("s_mov_b64", "exec", 1)
            I("buffer_atomic_add", T[1], T[0], SDBG, sT0, mods="offen")
            I("s_mov_b64", "exec", -1)
            P.label("L_noat")
        fill = []
        if j + 2 < 9: fill = stage_dma((j + 2) % 3)
        elif j == 7: fill = wq_pair_dma(0) + wq_pair_dma(2)
        elif j == 8: fill = wq_pair_dma(4)
        if j == POIS: fill = fill + poison_ops()
        if j == 2:
            def wphi():
                for i in range(3): I("ds_write_b32", PA[i], PW[i])
            wphi()
        if j == 3:
            for t in range(5):
                for jj in range(3):
                    tr(PHIF(t, jj)[0:2], vPHA, 8 * t + 8 * jj * 40)
                    if jj < 2: tr(PHIF(t, jj)[2:4], vPHA, 8 * t + (8 * jj + 4) * 40)
                    else:
                        I("v_accvgpr_write_b32", PHIF(t, jj)[2], 0); I("v_accvgpr_write_b32", PHIF(t, jj)[3], 0)
                wait(lgkm=5)
            wait(lgkm=0)
        pipe = Pipe(dist=4)
        for kap in range(2):
            ks = 2 * j + kap
            for T_ in range(10):
                ring = RING[(kap * 10 + T_) % 8]
                def rd(kap=kap, ks=ks, T_=T_, ring=ring):
                    if T_ == 0:
                        for p in range(2):
                            I("ds_read_b128", XF(ks, p), vXR[kap], mods="offset:%d" % (slot * XSLOT + p * 2048))
                    tile_read(ring, T_, slot * WSLOT + kap * 9216)
                def work(ks=ks, T_=T_, ring=ring):
                    for p in range(2):
                        if T_ < 5: mfma(ACK[p][T_], ring, XF(ks, p), 0 if ks == 0 else ACK[p][T_])
                        else: mfma(ACV[p][T_ - 5], XF(ks, p), ring, 0 if ks == 0 else ACV[p][T_ - 5])
                pipe.add(4 if T_ == 0 else 2, rd, work)
        pipe.emit(fill, every=(1 if len(fill) > 10 else 2), start=1)
    I("s_barrier")
    stamp("pass1")
    for f in wq_pair_dma(6): f()
    I("s_cmp_ge_u32", sWV, 2)
    I("s_cbranch_scc1", "L_noq8")
    for f in wq_pair_dma(8): f()
    P.label("L_noq8")

    VFR = v(144, 20)
    for t in range(5):
        for p in range(2):
            for h in range(2):
                I("v_cvt_pk_bf16_f32", VFR[4 * t + 2 * p + h], ACV[p][t][2 * h], ACV[p][t][2 * h + 1])
    I("v_cmp_eq_u32", "vcc", 8, vN)
    I("v_mov_b32", T[0], 0x3f803f80)
    for i in range(4): I("v_cndmask_b32", VFR[16 + i], VFR[16 + i], T[0], "vcc")
    I("s_mul_i32", sT0, sWV, 5120); I("s_add_u32", sT0, sT0, VF)
    I("v_add_u32", T[1], sT0, vL16)
    for t in range(5): I("ds_write_b128", T[1], VFR[4 * t:4 * t + 4], mods="offset:%d" % (1024 * t))
    wait(lgkm=0)
    feature_map("k")
    I("v_mul_u32_u24", T[0], 9216, vGL)
    I("v_mul_u32_u24", T[1], 72, vN)
    I("s_mul_i32", sT0, sWV, 32 * 72)
    I("v_add3_u32", T[0], T[0], T[1], sT0)
    for p in range(2):
        for i in range(9):
            I("ds_write_b64", T[0], PH[p][2 * i:2 * i + 2], mods="offset:%d" % (IMG + p * 1152 + 8 * i))
    I("s_lshl_b32", sT0, sWV, 10); I("s_add_u32", sT0, sT0, VF)
    I("v_add_u32", T[2], sT0, vL16)
    I("s_lshl_b32", sT0, sWV, 1)
    I("v_add_u32", T[3], sT0, vN)
    I("v_cmp_gt_u32", "vcc", 2, vN)
    I("v_cndmask_b32", T[3], 8, T[3], "vcc")
    I("v_lshl_add_u32", T[3], vGL, 4, T[3])
    I("v_lshlrev_b32", T[3], 4, T[3]); I("v_add_u32", T[3], VF + 4096, T[3])
    wait(lgkm=0)
    I("s_barrier")
    stamp("kpost")
    DM = [v(104 + 4 * j, 4) for j in range(3)]; DL = [v(116 + 4 * j, 4) for j in range(3)]
    pipe = Pipe(dist=3)
    for src in range(4):
        base = 64 + 20 * (src % 2)
        AM, AL = v(base, 4), v(base + 4, 4)
        BF = [v(base + 8 + 4 * j, 4) for j in range(3)]
        for j in range(3):
            def rd(src=src, AM=AM, AL=AL, BF=BF, j=j):
                if j == 0:
                    I("ds_read_b128", AM, T[2], mods="offset:%d" % (src * 5120))
                    I("ds_read_b128", AL, T[3], mods="offset:%d" % (src * 5120))
                for e in range(2):
                    tr(BF[j][2 * e:2 * e + 2], vKB0 if j < 2 else vKB2, IMG + src * 2304 + e * 1152 + (32 * j if j < 2 else 0))
            def work(src=src, AM=AM, AL=AL, BF=BF, j=j):
                mfma(DM[j], AM, BF[j], 0 if src == 0 else DM[j])
                mfma(DL[j], AL, BF[j], 0 if src == 0 else DL[j])
            pipe.add(4 if j == 0 else 2, rd, work)
    pipe.emit()
    I("v_mov_b32", T[4], OOB)
    I("v_lshl_add_u32", T[0], vGL, 2, vN); I("v_lshlrev_b32", T[0], 4, T[0])
    I("v_cmp_gt_u32", "vcc", 4, vN)
    I("v_cndmask_b32", T[0], T[4], T[0], "vcc")
    I("v_cmp_gt_u32", "vcc", 16, vL)
    I("v_cndmask_b32", T[1], T[4], vL16, "vcc")
    I("buffer_store_dwordx4", DM[0], vL16, SWS, sPME, mods="offen sc1")
    I("buffer_store_dwordx4", DM[1], vL16, SWS, sPME, mods="offen offset:1024 sc1")
    I("buffer_store_dwordx4", DM[2], T[0], SWS, sPME, mods="offen offset:2048 sc1")
    for j in range(3):
        I("buffer_store_dwordx4", DL[j], T[1], SWS, sPME, mods="offen offset:%d sc1" % (2304 + 256 * j))
    stamp("pubP")
    wait(vm=6)
    I("s_barrier")

    def rebase(delta):
        for pat in range(3):
            for e in range(2):
                I("v_add_u32", vTR[pat][e], delta & 0xffffffff, vTR[pat][e])
    def gemm2(bfrag, offs, rebases, fillers, pre=None, every=3):
        pipe = Pipe(dist=4)
        n = 0
        for ks in range(18):
            for T_ in range(5):
                ring = RING[n % 8]; n += 1
                def rd(ks=ks, T_=T_, ring=ring):
                    if T_ == 0 and ks in rebases: rebase(rebases[ks])
                    tile_read(ring, T_, offs(ks))
                def work(ks=ks, T_=T_, ring=ring):
                    if T_ == 0 and pre: pre(ks)
                    for p in range(2):
                        mfma(ACK[p][T_], ring, bfrag(ks, p), 0 if ks == 0 else ACK[p][T_])
                pipe.add(2, rd, work)
        pipe.emit(fillers, every=every, start=1)
    gemm2(XF, lambda ks: ((ks // 2) % 6) * 9216 + (ks & 1) * 144, {0: WQ0 - WSL, 12: WQ6 - WQ0},
          wo_pair_dma(0) + wo_pair_dma(2) + wo_pair_dma(4))
    stamp("qgemm")

    I("s_lshl_b32", sT0, sA, 7)
    I("v_mov_b32", T[0], 0)
    I("s_mov_b32", sCNT, 0)
    P.label("L_hs")
    I("buffer_load_dword", T[1], T[0], SDBG, sT0, mods="offen sc1")
    wait(vm=0)
    I("v_readfirstlane_b32", sT1, T[1])
    I("s_add_u32", sCNT, sCNT, 1)
    I("s_cmp_gt_u32", sCNT, SPIN)
    I("s_cbranch_scc1", "L_hsd")
    I("s_cmp_lt_u32", sT1, 128)
    I("s_cbranch_scc1", "L_hs")
    P.label("L_hsd")
    RS = v(104, 16)
    I("v_and_b32", T[0], 31, vL); I("v_min_u32", T[0], 23, T[0]); I("v_lshlrev_b32", T[0], 3, T[0])
    I("v_lshrrev_b32", T[1], 5, vL); I("v_mul_u32_u24", T[1], 8 * 12288, T[1]); I("v_add_u32", T[0], T[0], T[1])
    I("s_lshl_b32", sT2, sRT, 2); I("s_add_u32", sT2, sT2, sWV)
    I("s_mul_i32", sT0, sT2, 192); I("s_add_u32", sT0, sT0, sPGR)
    spin_header("rs")
    I("s_mov_b32", sT1, sT0)
    for i in range(8):
        I("buffer_load_dwordx2", RS[2 * i:2 * i + 2], T[0], SWS, sT1, mods="offen sc1")
        if i < 7: I("s_add_u32", sT1, sT1, 12288)
    wait(vm=0)
    umax(T[2], [RS[i] for i in range(16)])
    spin_footer("rs", T[2])
    for st in (8, 4, 2):
        for i in range(0, st, 2):
            I("v_pk_add_f32", RS[i:i + 2], RS[i:i + 2], RS[i + st:i + st + 2])
    I("v_mov_b32", RS[2], RS[0]); I("v_mov_b32", RS[3], RS[1])
    I("v_permlane32_swap_b32", RS[0], RS[2]); I("v_permlane32_swap_b32", RS[1], RS[3])
    I("v_pk_add_f32", RS[0:2], RS[0:2], RS[2:4])
    I("v_cvt_pk_bf16_f32", RS[0], RS[0], RS[1])
    I("s_mul_i32", sT0, sT2, 96); I("s_add_u32", sT0, sT0, sFG)
    I("buffer_store_dword", RS[0], vFS, SWS, sT0, mods="offen sc1")
    stamp("pubF")

    feature_map("q")
    stamp("qpost")
    I("v_lshlrev_b32", T[0], 3, vL)
    I("s_mul_i32", sT0, sWV, 1536); I("s_add_u32", sT0, sT0, sFG)
    I("s_mul_i32", sT1, sWV, 1920); I("s_add_u32", sT1, sT1, KVI)
    I("v_mul_u32_u24", T[1], 40, vN); I("v_lshl_add_u32", T[1], vGL, 3, T[1]); I("v_add_u32", T[1], sT1, T[1])
    I("v_and_b32", T[2], 3, vL); I("v_mul_u32_u24", T[2], 40, T[2]); I("v_lshrrev_b32", T[3], 2, vL)
    I("v_lshl_add_u32", T[2], T[3], 3, T[2]); I("v_add_u32", T[2], 32 * 40, T[2])
    I("v_mul_u32_u24", T[3], 40, vL); I("v_add_u32", T[3], (32 - 16 * 40) & 0xffffffff, T[3])
    I("v_cmp_gt_u32", "vcc", 16, vL)
    I("v_cndmask_b32", T[2], T[3], T[2], "vcc"); I("v_add_u32", T[2], sT1, T[2])
    spin_header("ag")
    for i in range(3):
        I("buffer_load_dwordx2", RS[2 * i:2 * i + 2], T[0], SWS, sT0, mods="offen offset:%d sc1" % (512 * i))
    wait(vm=0)
    umax(T[4], [RS[i] for i in range(6)])
    spin_footer("ag", T[4])
    I("ds_write_b64", T[1], RS[0:2]); I("ds_write_b64", T[1], RS[2:4], mods="offset:640"); I("ds_write_b64", T[2], RS[4:6])
    for t in range(5):
        I("v_accvgpr_write_b32", PSIF(t, 4)[2], 0); I("v_accvgpr_write_b32", PSIF(t, 4)[3], 0)
    wait(lgkm=0)
    I("s_barrier")
    stamp("gotkv")
    for f in wo_pair_dma(6): f()
    I("s_cmp_ge_u32", sWV, 2)
    I("s_cbranch_scc1", "L_noo8")
    for f in dma5(vO8, SWO, 0, sMQ, WO6 + 2 * 9216): f()
    P.label("L_noo8")

    pipe = Pipe(dist=4)
    for j in range(5):
        for t in range(5):
            def rd(j=j, t=t):
                tr(PSIF(t, j)[0:2], vPSA, 8 * t + 8 * j * 40)
                if j < 4: tr(PSIF(t, j)[2:4], vPSA, 8 * t + (8 * j + 4) * 40)
            def work(j=j, t=t):
                for p in range(2):
                    mfma(ACK[p][t], PSIF(t, j), PH[p][4 * j:4 * j + 4], 0 if j == 0 else ACK[p][t])
            pipe.add(2 if j < 4 else 1, rd, work)
    pipe.emit()
    pool = list(range(104, 144, 4)) + list(range(176, 256, 4)) + list(range(12, 20, 4))
    pool = list(range(104, 144, 4)) + list(range(176, 256, 4)) + [12, 16, 28, 32, 36, 40]
    assert len(pool) == 36
    OF = {}
    order = [(0, 0, 0), (0, 0, 1), (0, 1, 0), (0, 1, 1)]
    keys = order + [("L", k, p) for k in range(2) for p in range(2)] + [(u, p, X) for u in range(1, 8) for p in range(2) for X in range(2)]
    for k_, r_ in zip(keys, pool): OF[k_] = v(r_, 4)
    for p in range(2):
        o = v(64 + 20 * p, 20)
        I("v_add_f32", o[18], sEPS[0], o[18])
        I("v_rcp_f32", o[18], o[18])
        for i in range(0, 18, 2):
            I("v_pk_mul_f32", o[i:i + 2], o[i:i + 2], o[18:20], mods="op_sel:[0,0] op_sel_hi:[1,0]")
        for i in range(8):
            I("v_cvt_pk_bf16_f32", OF[(0, p, i // 4)][i % 4], o[2 * i], o[2 * i + 1])
        I("v_cvt_pk_bf16_f32", OF[("L", 0, p)][0], o[16], o[17])
    vL4 = vA[5]
    I("v_lshlrev_b32", vL4, 2, vL)
    I("s_mul_i32", sT0, sG, 4608); I("s_add_u32", sT0, sT0, sOB)
    I("s_add_u32", sT1, sT0, 4096)
    for p in range(2):
        for X in range(2):
            I("buffer_store_dwordx4", OF[(0, p, X)], vL16, SWS, sT0, mods="offen offset:%d sc1" % (p * 2048 + X * 1024))
        I("buffer_store_dword", OF[("L", 0, p)][0], vL4, SWS, sT1, mods="offen offset:%d sc1" % (p * 256))
    stamp("pubO")
    wait(vm=6)
    I("s_barrier")

    def oload(u):
        I("s_add_u32", sT0, sG, u); I("s_and_b32", sT0, sT0, 7)
        I("s_mul_i32", sT0, sT0, 4608); I("s_add_u32", sT0, sT0, sOB)
        I("s_add_u32", sT1, sT0, 4096)
        for p in range(2):
            for X in range(2):
                I("buffer_load_dwordx4", OF[(u, p, X)], vL16, SWS, sT0, mods="offen offset:%d sc1" % (p * 2048 + X * 1024))
        for p in range(2):
            I("buffer_load_dword", OF[("L", u // 4, p)][u % 4], vL4, SWS, sT1, mods="offen offset:%d sc1" % (p * 256))
    for u in range(1, 8): oload(u)
    def oregs(u):
        r = []
        for p in range(2):
            for X in range(2): r += [OF[(u, p, X)][i] for i in range(4)]
            r.append(OF[("L", u // 4, p)][u % 4])
        return r
    def pre(ks):
        if ks >= 16 or ks & 1 or ks == 0: return
        u = ks // 2
        wait(vm=6 * (7 - u))
        I("s_mov_b32", sCNT, 0)
        umax(T[0], oregs(u))
        I("v_cmp_eq_u32", "vcc", -1, T[0])
        I("s_cbranch_vccz", "L_ok%d" % u)
        P.label("L_sp_o%d" % u)
        oload(u)
        wait(vm=0)
        umax(T[0], oregs(u))
        spin_footer("o%d" % u, T[0])
        P.label("L_ok%d" % u)
    def bf(ks, p):
        if ks < 16: return OF[(ks // 2, p, ks & 1)]
        return OF[("L", ks - 16, p)]
    gemm2(bf, lambda ks: ((ks // 2) % 6) * 9216 + (ks & 1) * 144, {0: WO0 - WQ6, 12: WO6 - WO0}, [], pre=pre)
    stamp("ogemm")
    I("s_lshl_b32", sT0, sRT, 2); I("s_add_u32", sT0, sT0, sWV); I("s_mul_i32", sT0, sT0, 32 * 2304)
    I("s_mul_i32", sT1, sG, 144); I("s_add_u32", sT0, sT0, sT1)
    I("s_cmp_lg_u32", sA, 0); I("s_cselect_b32", sT1, 0, 1152); I("s_add_u32", sT0, sT0, sT1)
    I("s_add_u32", sT1, sT0, 16 * 2304)
    I("v_mul_u32_u24", T[0], 2304, vN)
    I("v_mul_u32_u24", T[1], 40, vGL); I("v_add_u32", T[1], T[0], T[1])
    I("v_lshrrev_b32", T[4], 1, vGL)
    I("v_lshlrev_b32", T[2], 5, T[4]); I("v_sub_u32", T[2], T[1], T[2])
    I("v_mul_u32_u24", T[3], 72, T[4]); I("v_add_u32", T[3], T[0], T[3])
    I("v_mov_b32", T[5], OOB)
    I("v_cndmask_b32", T[3], T[3], T[5], sODD)
    OUTR = v(104, 20)
    for p in range(2):
        for t in range(5):
            for h in range(2):
                I("v_cvt_pk_bf16_f32", OUTR[10 * p + 2 * t + h], ACK[p][t][2 * h], ACK[p][t][2 * h + 1])
        so = sT0 if p == 0 else sT1
        for t in range(5):
            ad, off = (T[1], 8 * t) if t < 3 else ((T[2], 24) if t == 3 else (T[3], 32))
            I("buffer_store_dwordx2", OUTR[10 * p + 2 * t:10 * p + 2 * t + 2], ad, SOUT, so, mods="offen offset:%d" % off)
    if OPT["stamps"]:
        wait(vm=0)
        stamp("end")
        I("s_memrealtime", s(100, 2))
        wait(lgkm=0)
        n = stamp_n[0]
        for k in range(n):
            I("s_sub_u32", s(sSTB + k), s(sSTB + k), s(98))
            I("v_mov_b32", v(64 + k), s(sSTB + k))
        I("v_mov_b32", v(64 + 14), s(96)); I("v_mov_b32", v(64 + 15), s(100))
        I("s_lshl_b32", sT0, s(2), 2); I("s_add_u32", sT0, sT0, sWV); I("s_lshl_b32", sT0, sT0, 6); I("s_add_u32", sT0, sT0, WS_ST)
        I("v_mov_b32", T[0], 0)
        I("s_mov_b64", "exec", 1)
        for q in range(4):
            I("buffer_store_dwordx4", v(64 + 4 * q, 4), T[0], SWS, sT0, mods="offen offset:%d" % (16 * q))
        if OPT["amp"] >= 0:
            I("s_lshl_b32", sT2, s(sSTB + OPT["amp"]), 2)
            I("s_add_u32", sT2, sT2, s(sSTB + n - 1))
            P.label("L_amp")
            I("s_memtime", s(100, 2)); wait(lgkm=0)
            I("s_sub_u32", sT1, s(100), s(98))
            I("s_cmp_lt_u32", sT1, sT2)
            I("s_cbranch_scc1", "L_amp")
    if OPT["stamps"] and OPT["dbgst"]:
        I("s_not_b32", sT1, s(96))
        I("v_mov_b32", T[1], sT1); I("v_mov_b32", T[2], s(100))
        I("buffer_atomic_umax", T[1], T[0], SDBG, 0, mods="offen offset:4")
        I("buffer_atomic_umax", T[2], T[0], SDBG, 0, mods="offen offset:8")
        I("s_lshl_b32", sT0, s(2), 2); I("s_add_u32", sT0, sT0, sWV)
        I("s_cmp_lg_u32", sT0, 36)
        I("s_cbranch_scc1", "L_end")
        for q in range(3):
            I("buffer_store_dwordx4", v(64 + 4 * q, 4), T[0], SDBG, 0, mods="offen offset:%d" % (16 + 16 * q))
    P.label("L_end")
    I("s_endpgm")

HEADER = open("cdna_kernels/%s.s.ref" % NAME).read().split("; Override launch")[0]

def main(out):
    build()
    body = P.finalize()
    txt = HEADER + "; @launch grid=(256,1,1) block=(256,1,1) lds=%d\n" % LDS_BYTES
    txt += '.amdgcn_target "amdgcn-amd-amdhsa--gfx950"\n.text\n.globl %s_kernel\n.p2align 8\n.type %s_kernel,@function\n' % (NAME, NAME)
    txt += ".set CODE_SPAN, (L_end - %s_kernel - 64) & 0xffffff80\n" % NAME
    txt += "%s_kernel:\n%s\n" % (NAME, body)
    txt += """.section .rodata,"a"
.p2align 6
.amdhsa_kernel %s_kernel
  .amdhsa_next_free_vgpr 512
  .amdhsa_next_free_sgpr 102
  .amdhsa_accum_offset 256
  .amdhsa_group_segment_fixed_size 0
  .amdhsa_kernarg_size 80
  .amdhsa_user_sgpr_count 2
  .amdhsa_user_sgpr_kernarg_segment_ptr 1
  .amdhsa_system_sgpr_workgroup_id_x 1
.end_amdhsa_kernel
""" % NAME
    open(out, "w").write(txt)
    print("wrote", out, "nops inserted:", P.nops, "instrs:", sum(isinstance(x, Ins) for x in P.items))

if __name__ == "__main__":
    out = sys.argv[1]
    for kv in sys.argv[2:]:
        k, val = kv.split("=")
        OPT[k] = int(val)
    main(out)
```

```python
import sys, struct
from asmdsl import *

NAME = "concat_heads__linear_attn_block__linear_kernel_hedgehog__prompt"
OPT = dict(stamps=False, nphase=3, amp=-1, dbgst=0, outflag=0)

def f2u(x): return struct.unpack("<I", struct.pack("<f", x))[0]
LOG2E = 1.4426950408889634

XS = 0; XSLOT = 16384
WSL = 49152; WSLOT = 18432
WQ0 = 104448
WQ6 = 76800
PHI = 104448
ZERO = 159744
IMG = 0
VF = 36864
KVI = 57344
WO0 = 0
WO6 = 104448
LDS_BYTES = 163840
WS_P = 0; WS_F = 0x300000; WS_O = 0x400000; WS_ST = 0x900000; WS_BYTES = 0xA00000
OOB = 0x7ffffff0
SPIN = 30000

SX, SW, SWO, SWS, SOUT, SDBG, SPHI = s(24, 4), s(28, 4), s(32, 4), s(36, 4), s(40, 4), s(44, 4), s(48, 4)
sA, sRT, sG, sWV = s(52), s(53), s(54), s(55)
sST, sOX, sOW = s(56), s(57), s(58)
sMX, sMW = s(60), s(61)
sT0, sT1, sT2, sT3 = s(62), s(63), s(64), s(65)
sXB = s(66)
sROT = s(67)
sPME, sPGR, sFG, sOB = s(68), s(69), s(70), s(71)
sCNT = s(72)
sC = s(74, 2)
sEPS = s(76, 2)
sODD = s(78, 2)
sMQ = s(80)
sIDX = s(81)
sPC = s(82, 2)
sSTB = 84

vL = v(0)
T = [v(i) for i in range(1, 10)]
vOX = [v(10 + i) for i in range(4)]
vOW = [v(14 + i) for i in range(5)]
vXR = [v(19), v(20)]
vTR = [[v(21 + 2 * p + e) for e in range(2)] for p in range(5)]
vOQ = [v(31 + i) for i in range(5)]
vOO = [v(36 + i) for i in range(5)]
vO8 = [v(41 + i) for i in range(5)]
vL16 = v(46)
vGL, vN = v(47), v(48)
vA = [v(49 + i) for i in range(11)]
vM1 = v(60, 4)
ACK = [[v(64 + 20 * p + 4 * t, 4) for t in range(5)] for p in range(2)]
ACV = [[v(104 + 20 * p + 4 * t, 4) for t in range(5)] for p in range(2)]
RING = [v(144 + 4 * i, 4) for i in range(8)]
def XF(ks, p): return a(ks * 8 + p * 4, 4)
def PHIF(t, j): return a(144 + (t * 3 + j) * 4, 4)
def PSIF(t, j): return a(144 + (t * 5 + j) * 4, 4)

P = Prog()
I = P.I
stamp_n = [0]
def stamp(name):
    if not OPT["stamps"]: return
    k = stamp_n[0]; stamp_n[0] += 1
    assert k < 16
    I("s_memtime", s(100, 2), c="stamp " + name)
    I("s_waitcnt", "lgkmcnt(0)")
    I("s_mov_b32", s(sSTB + k), s(100))

def wait(vm=None, lgkm=None):
    t = []
    if vm is not None: t.append("vmcnt(%d)" % vm)
    if lgkm is not None: t.append("lgkmcnt(%d)" % lgkm)
    I("s_waitcnt", " ".join(t))

def srd(dst, lo, hi, size):
    I("s_mov_b32", dst[0], lo); I("s_mov_b32", dst[1], hi)
    I("s_mov_b32", dst[2], size); I("s_mov_b32", dst[3], 0x20000)

def piece_decode(i):
    I("v_add_u32", T[3], 64 * i, vL) if i else I("v_mov_b32", T[3], vL)
    I("v_mul_u32_u24", T[0], 3641, T[3])
    I("v_lshrrev_b32", T[0], 16, T[0])
    I("v_mul_u32_u24", T[1], 18, T[0])
    I("v_sub_u32", T[1], T[3], T[1])
    I("v_lshrrev_b32", T[3], 1, T[0])
    I("v_and_b32", T[3], 4, T[3])
    I("v_xor_b32", T[0], T[0], T[3])
    I("v_add_u32", T[2], 7, T[1])
    I("v_lshrrev_b32", T[2], 4, T[2])

def next_stage():
    I("s_lshl_b32", sOX, sST, 7)
    I("s_add_u32", sOX, sOX, sXB)
    I("s_mul_i32", sOW, sST, 64 * 3456)
    I("s_add_u32", sST, sST, 1)
    I("s_cmp_eq_u32", sST, 9)
    I("s_cselect_b32", sST, 0, sST)

def dma5(voffs, srdreg, soff, m0base, m0imm):
    ops = []
    def first():
        I("s_add_u32", "m0", m0base, m0imm)
        I("buffer_load_dwordx4", voffs[0], srdreg, soff, mods="offen lds")
    ops.append(first)
    for i in range(1, 4):
        ops.append(lambda i=i: I("buffer_load_dwordx4", voffs[i], srdreg, soff, mods="offen offset:%d lds" % (1024 * i)))
    def last():
        I("s_add_u32", "m0", m0base, m0imm + 4096)
        I("s_mov_b32", "exec_hi", 0)
        I("buffer_load_dwordx4", voffs[4], srdreg, soff, mods="offen lds")
        I("s_mov_b32", "exec_hi", -1)
    ops.append(last)
    return ops

def stage_dma(slot):
    ops = []
    def first():
        next_stage()
        I("s_add_u32", "m0", sMX, slot * XSLOT)
        I("buffer_load_dwordx4", vOX[0], SX, sOX, mods="offen lds")
    ops.append(first)
    for i in range(1, 4):
        ops.append(lambda i=i: I("buffer_load_dwordx4", vOX[i], SX, sOX, mods="offen offset:%d lds" % (1024 * i)))
    ops += dma5(vOW, SW, sOW, sMW, slot * WSLOT)
    return ops

def wq_pair_dma(j):
    ops = []
    pos = lambda st: (WQ0 + st * 9216) if st < 6 else (WQ6 + (st - 6) * 9216)
    def setup():
        I("s_lshr_b32", sT0, sWV, 1)
        I("s_add_u32", sT0, sT0, sROT)
        I("s_add_u32", sT0, sT0, j)
        I("s_cmp_ge_u32", sT0, 9)
        I("s_cselect_b32", sT1, 9, 0)
        I("s_sub_u32", sT0, sT0, sT1)
        I("s_mul_i32", sOW, sT0, 64 * 3456)
    d = dma5(vOQ, SW, sOW, sMQ, pos(j))
    ops.append(lambda: (setup(), d[0]()))
    ops += d[1:]
    return ops

def wo_pair_dma(u):
    pos = lambda st: (WO0 + st * 9216) if st < 6 else (WO6 + (st - 6) * 9216)
    def setup():
        I("s_lshr_b32", sT0, sWV, 1)
        I("s_add_u32", sT0, sT0, sG)
        I("s_add_u32", sT0, sT0, u)
        I("s_and_b32", sT0, sT0, 7)
        I("s_mul_i32", sOW, sT0, 72 * 1152)
    d = dma5(vOO, SWO, sOW, sMQ, pos(u))
    return [lambda: (setup(), d[0]())] + d[1:]

def tr(dst, addr, off):
    assert 0 <= off < 65536, off
    I("ds_read_b64_tr_b16", dst, addr, mods="offset:%d" % off)

def mfma(d, x, y, c):
    I("v_mfma_f32_16x16x32_bf16", d, x, y, c)

def tile_read(dstreg, T_, base_off):
    if T_ < 3: pat, o = 0, 8 * T_
    elif T_ == 3: pat, o = 1, 0
    elif T_ == 4: pat, o = 2, 0
    elif T_ < 9: pat, o = 3, 144 + 8 * [0, 5, 9, 14][T_ - 5]
    else: pat, o = 4, 144
    for e in range(2):
        tr(dstreg[2 * e:2 * e + 2], vTR[pat][e], base_off + o)

class Pipe:
    def __init__(self, dist=4, group=1):
        self.units = []; self.dist = dist
    def add(self, nreads, rd, work): self.units.append((nreads, rd, work))
    def emit(self, fillers=(), every=2, start=1):
        fillers = list(fillers)
        U = self.units; n = len(U); d = self.dist
        issued = 0
        for k in range(min(d, n)): U[k][1](); issued = k + 1
        for k in range(n):
            if issued < n: U[issued][1](); issued += 1
            later = sum(U[q][0] for q in range(k + 1, issued))
            assert later <= 15
            wait(lgkm=later)
            U[k][2]()
            if fillers and k >= start and (k - start) % every == 0: fillers.pop(0)()
        for f in fillers: f()

def softmax_block(src18, out18, tmp):
    mx, mn = tmp[18], tmp[19]
    I("v_max3_f32", mx, src18[0], src18[1], src18[2]); I("v_min3_f32", mn, src18[0], src18[1], src18[2])
    for i in range(3, 17, 2):
        I("v_max3_f32", mx, mx, src18[i], src18[i + 1]); I("v_min3_f32", mn, mn, src18[i], src18[i + 1])
    I("v_max_f32", mx, mx, src18[17]); I("v_min_f32", mn, mn, src18[17])
    ab = tmp[20:22]
    I("v_mul_f32", ab[0], sC[0], mx); I("v_mul_f32", ab[1], sC[0], mn)
    for i in range(0, 18, 2):
        I("v_pk_fma_f32", tmp[i:i + 2], src18[i:i + 2], sC, ab, mods="op_sel:[0,0,1] op_sel_hi:[1,1,1] neg_lo:[1,0,0] neg_hi:[1,0,0]")
        I("v_pk_fma_f32", src18[i:i + 2], src18[i:i + 2], sC, ab, mods="op_sel:[0,0,0] op_sel_hi:[1,1,0] neg_lo:[0,0,1] neg_hi:[0,0,1]")
    for i in range(18):
        I("v_exp_f32", src18[i], src18[i]); I("v_exp_f32", tmp[i], tmp[i])
    sp, sn = tmp[18:20], tmp[20:22]
    I("v_pk_add_f32", sp, src18[0:2], src18[2:4]); I("v_pk_add_f32", sn, tmp[0:2], tmp[2:4])
    for i in range(4, 18, 2):
        I("v_pk_add_f32", sp, sp, src18[i:i + 2]); I("v_pk_add_f32", sn, sn, tmp[i:i + 2])
    rr = tmp[22:24]
    I("v_add_f32", rr[0], sp[0], sp[1]); I("v_add_f32", rr[1], sn[0], sn[1])
    I("v_rcp_f32", rr[0], rr[0]); I("v_rcp_f32", rr[1], rr[1])
    for i in range(0, 18, 2):
        I("v_pk_mul_f32", src18[i:i + 2], src18[i:i + 2], rr, mods="op_sel:[0,0] op_sel_hi:[1,0]")
        I("v_pk_mul_f32", tmp[i:i + 2], tmp[i:i + 2], rr, mods="op_sel:[0,1] op_sel_hi:[1,1]")
    for i in range(9):
        I("v_cvt_pk_bf16_f32", out18[i], src18[2 * i], src18[2 * i + 1])
        I("v_cvt_pk_bf16_f32", out18[9 + i], tmp[2 * i], tmp[2 * i + 1])

KB = [v(176 + 12 * p, 12) for p in range(2)]
PH = [v(200 + 20 * p, 20) for p in range(2)]
TMP = v(144, 24)

def feature_map(tag):
    acc = [v(64 + 20 * p, 20) for p in range(2)]
    for p in range(2):
        I("v_cndmask_b32", acc[p][16], acc[p][16], acc[p][18], sODD)
        I("v_cndmask_b32", acc[p][17], acc[p][17], acc[p][19], sODD)
    I("s_cmp_lg_u32", sA, 0)
    I("s_cbranch_scc1", "L_phiA_" + tag)
    for p in range(2):
        for i in range(9):
            I("v_cvt_pk_bf16_f32", KB[p][i], acc[p][2 * i], acc[p][2 * i + 1])
    for p in range(2):
        for j in range(3):
            for t in range(5):
                mfma(ACK[p][t], PHIF(t, j), KB[p][4 * j:4 * j + 4], 0 if j == 0 else ACK[p][t])
    for p in range(2):
        softmax_block(acc[p][0:18], PH[p][0:18], TMP)
    I("s_branch", "L_phiE_" + tag)
    P.label("L_phiA_" + tag)
    for p in range(2):
        x = acc[p]
        for i in range(0, 18, 2):
            I("v_pk_mul_f32", TMP[i:i + 2], x[i:i + 2], sC)
        for i in range(18):
            I("v_exp_f32", TMP[i], TMP[i], mods="clamp")
            I("v_max_f32", x[i], 0, x[i])
        for i in range(0, 18, 2):
            I("v_pk_add_f32", x[i:i + 2], x[i:i + 2], TMP[i:i + 2])
        for i in range(0, 18, 2):
            I("v_pk_add_f32", x[i:i + 2], x[i:i + 2], sEPS)
        for i in range(9):
            I("v_cvt_pk_bf16_f32", PH[p][i], x[2 * i], x[2 * i + 1])
            I("v_mov_b32", PH[p][9 + i], 0)
    P.label("L_phiE_" + tag)
    I("s_nop", 1)

def spin_header(tag):
    I("s_mov_b32", sCNT, 0)
    P.label("L_sp_" + tag)
def spin_footer(tag, chk):
    I("v_cmp_eq_u32", "vcc", -1, chk)
    I("s_add_u32", sCNT, sCNT, 1)
    I("s_cmp_gt_u32", sCNT, SPIN)
    I("s_cbranch_scc1", "L_spd_" + tag)
    I("s_cbranch_vccnz", "L_sp_" + tag)
    P.label("L_spd_" + tag)

def umax(dst, regs):
    regs = list(regs)
    I("v_max3_u32", dst, regs[0], regs[1], regs[2]); regs = regs[3:]
    while len(regs) >= 2:
        I("v_max3_u32", dst, dst, regs[0], regs[1]); regs = regs[2:]
    if regs: I("v_max_u32", dst, dst, regs[0])

def build():
    I("s_cmp_ge_u32", s(2), 256)
    I("s_cbranch_scc1", "L_end")
    I("s_load_dwordx16", s(4, 16), s(0, 2), 0)
    I("s_load_dwordx4", s(20, 4), s(0, 2), 64)
    I("s_getpc_b64", sPC)
    I("v_lshrrev_b32", T[0], 6, v(0))
    I("v_and_b32", vL, 63, v(0))
    I("s_lshr_b32", sIDX, s(2), 3)
    I("v_readfirstlane_b32", sWV, T[0])
    I("s_lshl_b32", sT0, sIDX, 2)
    I("v_add_u32", T[0], sT0, T[0])
    I("v_lshlrev_b32", T[0], 1, T[0])
    I("v_and_b32", T[1], 1, vL)
    I("v_add_lshl_u32", T[0], T[0], T[1], 7)
    I("v_min_u32", T[0], "CODE_SPAN", T[0])
    I("global_load_dword", v(255), T[0], sPC)
    if OPT["stamps"]:
        I("s_memtime", s(98, 2)); I("s_memrealtime", s(96, 2))
    I("s_bfe_u32", sA, s(2), 0x10002)
    I("s_and_b32", sT0, s(2), 3)
    I("s_lshr_b32", sT1, sIDX, 3)
    I("s_lshl_b32", sRT, sT0, 2)
    I("s_add_u32", sRT, sRT, sT1)
    I("s_and_b32", sG, sIDX, 7)
    if OPT["nphase"] == 3:
        I("s_add_u32", sT0, sG, sT1)
        I("s_mul_i32", sT1, sT0, 86)
        I("s_lshr_b32", sT1, sT1, 8)
        I("s_mul_i32", sT1, sT1, 3)
        I("s_sub_u32", sT0, sT0, sT1)
        I("s_mul_i32", sROT, sT0, 3)
    elif OPT["nphase"] == 2:
        I("s_add_u32", sT0, sG, sT1)
        I("s_and_b32", sT0, sT0, 1)
        I("s_mul_i32", sROT, sT0, 4)
    else:
        I("s_mov_b32", sROT, 0)
    I("s_mov_b32", sST, sROT)
    I("s_lshl_b32", sT0, sRT, 2)
    I("s_add_u32", sT0, sT0, sWV)
    I("s_mul_i32", sXB, sT0, 32 * 1152)
    I("s_lshl_b32", sMX, sWV, 12)
    I("s_mul_i32", sMQ, sWV, 4608)
    I("s_add_u32", sMW, sMQ, WSL)
    I("v_lshrrev_b32", T[0], 3, vL)
    I("v_mul_u32_u24", T[0], 1152, T[0])
    I("v_lshrrev_b32", vGL, 4, vL)
    I("v_and_b32", T[1], 7, vL)
    I("v_xor_b32", T[1], T[1], vGL)
    I("v_lshl_add_u32", vOX[0], T[1], 4, T[0])
    I("v_xor_b32", T[1], 4, T[1])
    I("v_lshl_add_u32", vOX[1], T[1], 4, T[0])
    I("v_add_u32", vOX[2], 16 * 1152 - 2048, vOX[0])
    I("v_add_u32", vOX[3], 24 * 1152 - 3072, vOX[1])
    I("v_add_u32", vOX[1], 8 * 1152 - 1024, vOX[1])
    I("s_mul_i32", sT2, sG, 144)
    I("s_mul_i32", sT0, sWV, 16 * 3456)
    I("s_add_u32", sT0, sT0, sT2)
    I("s_movk_i32", sT3, 3456)
    for i in range(5):
        piece_decode(i)
        I("v_mul_u32_u24", T[2], 1008, T[2])
        I("v_lshl_add_u32", T[1], T[1], 4, T[2])
        I("v_mad_u32_u24", T[0], T[0], sT3, T[1])
        I("s_add_u32", sT1, sT0, 1152 - (1024 * i if i < 4 else 0) & 0xffffffff)
        I("v_add_u32", vOW[i], sT1, T[0])
    wait(lgkm=0)
    I("s_cmp_lg_u32", sA, 0)
    I("s_cselect_b32", SX[0], s(4), s(10)); I("s_cselect_b32", SX[1], s(5), s(11))
    I("s_cselect_b32", SW[0], s(6), s(12)); I("s_cselect_b32", SW[1], s(7), s(13))
    I("s_cselect_b32", SWO[0], s(8), s(16)); I("s_cselect_b32", SWO[1], s(9), s(17))
    I("s_mov_b32", SX[2], 2048 * 1152); I("s_mov_b32", SX[3], 0x20000)
    I("s_mov_b32", SW[2], 576 * 3456); I("s_mov_b32", SW[3], 0x20000)
    for f in stage_dma(0): f()
    for f in stage_dma(1): f()
    I("s_mov_b32", SWO[2], 576 * 1152); I("s_mov_b32", SWO[3], 0x20000)
    srd(SWS, s(22), s(23), WS_BYTES)
    srd(SOUT, s(18), s(19), 2048 * 2304)
    srd(SDBG, s(20), s(21), 256)
    srd(SPHI, s(14), s(15), 32 * 648)
    stamp("issued01")
    I("s_lshl_b32", sT0, sG, 2); I("s_add_u32", sT0, sT0, sWV); I("s_mul_i32", sT0, sT0, 648)
    I("v_lshlrev_b32", T[0], 2, vL)
    PW = v(240, 3)
    for i in range(3):
        I("buffer_load_dword", PW[i], T[0], SPHI, sT0, mods="offen offset:%d" % (256 * i))
    I("v_and_b32", vN, 15, vL)
    I("v_lshlrev_b32", vL16, 4, vL)
    I("s_mov_b32", sC[0], f2u(LOG2E)); I("s_mov_b32", sC[1], f2u(LOG2E))
    I("s_mov_b32", sEPS[0], f2u(1e-6)); I("s_mov_b32", sEPS[1], f2u(1e-6))
    I("s_mov_b32", sODD[0], 0xffff0000); I("s_mov_b32", sODD[1], 0xffff0000)
    for i in range(4): I("v_mov_b32", vM1[i], -1)
    I("v_lshrrev_b32", T[0], 1, vN)
    I("v_xor_b32", T[0], T[0], vGL)
    I("v_lshlrev_b32", T[1], 7, vN)
    I("v_add_u32", T[1], sMX, T[1])
    I("v_lshl_add_u32", vXR[0], T[0], 4, T[1])
    I("v_xor_b32", T[0], 4, T[0])
    I("v_lshl_add_u32", vXR[1], T[0], 4, T[1])
    vR, vC = T[4], T[5]
    I("v_bfe_u32", vR, vL, 2, 2)
    I("v_and_b32", vC, 3, vL)
    I("v_and_b32", T[0], 1, vGL)
    I("v_lshlrev_b32", T[0], 2, T[0])
    I("v_lshl_add_u32", T[1], vGL, 3, vR)
    I("v_add_u32", T[2], T[1], T[0])
    I("v_xor_b32", T[3], 4, T[2])
    I("v_mul_u32_u24", T[2], 288, T[2]); I("v_mul_u32_u24", T[3], 288, T[3])
    I("v_add_u32", T[2], WSL, T[2]); I("v_add_u32", T[3], WSL, T[3])
    I("v_mul_u32_u24", T[0], 40, vC)
    I("v_lshrrev_b32", T[1], 1, vC)
    I("v_add_u32", vTR[0][0], T[2], T[0]); I("v_add_u32", vTR[0][1], T[3], T[0])
    I("v_lshlrev_b32", T[6], 5, T[1]); I("v_sub_u32", T[6], T[0], T[6]); I("v_add_u32", T[6], 24, T[6])
    I("v_add_u32", vTR[1][0], T[2], T[6]); I("v_add_u32", vTR[1][1], T[3], T[6])
    I("v_mul_u32_u24", T[6], 72, T[1]); I("v_add_u32", T[6], 32, T[6])
    I("v_add_u32", vTR[2][0], T[2], T[6]); I("v_add_u32", vTR[2][1], T[3], T[6])
    I("v_lshl_add_u32", vTR[3][0], vC, 3, T[2]); I("v_lshl_add_u32", vTR[3][1], vC, 3, T[3])
    I("v_and_b32", T[6], 1, vC); I("v_mul_u32_u24", T[6], 72, T[6]); I("v_add_u32", T[6], 32, T[6])
    I("v_add_u32", vTR[4][0], T[2], T[6]); I("v_add_u32", vTR[4][1], T[3], T[6])
    vPHA, vPSA = vA[0], vA[1]
    I("v_mul_u32_u24", T[0], 40, vR)
    I("v_mul_u32_u24", T[1], 960, vGL); I("v_add3_u32", T[1], T[1], T[0], 0); I("v_add_u32", T[1], PHI, T[1])
    I("v_mul_u32_u24", T[2], 1920, vGL); I("v_add3_u32", T[2], T[2], T[0], 0); I("v_add_u32", T[2], KVI, T[2])
    I("v_mov_b32", T[3], ZERO)
    I("v_cmp_eq_u32", "vcc", vC, vGL)
    I("v_cndmask_b32", vPHA, T[3], T[1], "vcc"); I("v_cndmask_b32", vPSA, T[3], T[2], "vcc")
    vKB0, vKB2 = vA[2], vA[3]
    I("v_lshl_add_u32", T[0], vGL, 2, vR); I("v_mul_u32_u24", T[0], 72, T[0])
    I("s_mul_i32", sT0, sWV, 9216)
    I("v_add_u32", T[0], sT0, T[0])
    I("v_lshl_add_u32", vKB0, vC, 3, T[0]); I("v_add_u32", vKB2, 64, T[0])
    Z4 = v(244, 4)
    for i in range(4): I("v_mov_b32", Z4[i], 0)
    I("s_mul_i32", sT0, sWV, 960); I("s_add_u32", sT0, sT0, PHI)
    I("v_min_u32", T[0], 59 * 16, vL16); I("v_add_u32", T[0], sT0, T[0])
    I("ds_write_b128", T[0], Z4)
    I("s_mul_i32", sT1, sWV, 384); I("s_add_u32", sT1, sT1, ZERO)
    I("v_min_u32", T[0], 23 * 16, vL16); I("v_add_u32", T[0], sT1, T[0])
    I("ds_write_b128", T[0], Z4)
    PA = v(248, 3)
    I("s_and_b32", sT1, sWV, 1); I("s_lshl_b32", sT1, sT1, 4)
    I("s_lshr_b32", sT2, sWV, 1); I("s_mul_i32", sT2, sT2, 12)
    for i in range(3):
        I("v_add_u32", T[0], 64 * i, vL) if i else I("v_mov_b32", T[0], vL)
        I("v_mul_u32_u24", T[1], 7282, T[0]); I("v_lshrrev_b32", T[1], 16, T[1])
        I("v_mul_u32_u24", T[2], 9, T[1]); I("v_sub_u32", T[2], T[0], T[2])
        I("v_add_u32", T[3], sT1, T[1])
        I("v_subrev_u32", T[6], 18, T[3]); I("v_min_u32", T[3], T[3], T[6])
        I("v_add_u32", T[6], sT2, T[3]); I("v_and_b32", T[6], 15, T[6])
        I("v_cmp_gt_u32", "vcc", 16, T[3])
        I("v_cndmask_b32", T[3], T[3], T[6], "vcc")
        if i == 2:
            I("v_cmp_gt_u32", "vcc", 162, T[0])
            I("v_cndmask_b32", T[3], 22, T[3], "vcc")
        I("v_mul_u32_u24", T[3], 40, T[3])
        I("v_lshl_add_u32", T[3], T[2], 2, T[3])
        I("v_add_u32", PA[i], sT0, T[3])
    I("s_and_b32", sT0, sWV, 1); I("s_lshl_b32", sT0, sT0, 4)
    I("s_mul_i32", sT2, sG, 144)
    I("s_movk_i32", sT3, 3456)
    I("s_movk_i32", s(59), 1152)
    for i in range(5):
        piece_decode(i)
        I("v_add_u32", T[0], sT0, T[0])
        I("s_add_u32", sT1, sT2, (-(1024 * i if i < 4 else 0)) & 0xffffffff)
        I("v_mul_u32_u24", T[3], 9, T[2]); I("v_sub_u32", T[1], T[1], T[3])
        I("v_lshlrev_b32", T[1], 4, T[1]); I("v_add_u32", T[1], sT1, T[1])
        I("v_lshl_add_u32", T[3], T[2], 5, T[0])
        I("v_mad_u32_u24", vOQ[i], T[3], sT3, T[1])
        I("v_lshrrev_b32", T[3], 3, T[0])
        I("v_and_b32", T[6], 7, T[0])
        I("v_and_b32", T[7], 1, T[3])
        I("v_mul_u32_u24", T[8], 18, T[3]); I("v_lshl_add_u32", T[8], T[7], 1, T[8])
        I("v_lshl_add_u32", T[8], T[2], 3, T[8]); I("v_add_u32", T[8], T[8], T[6])
        I("v_mad_u32_u24", vOO[i], T[8], s(59), T[1])
        I("v_lshrrev_b32", T[8], 1, T[6]); I("v_lshl_add_u32", T[8], T[2], 2, T[8])
        I("v_add_u32", T[8], sG, T[8]); I("v_and_b32", T[8], 7, T[8])
        I("v_mul_u32_u24", T[8], 72, T[8])
        I("v_lshrrev_b32", T[3], 1, T[3]); I("v_mul_u32_u24", T[3], 36, T[3])
        I("v_lshl_add_u32", T[3], T[7], 1, T[3]); I("v_and_b32", T[6], 1, T[6])
        I("v_add3_u32", T[8], T[8], T[3], T[6]); I("v_add_u32", T[8], 16, T[8])
        I("v_mad_u32_u24", vO8[i], T[8], s(59), T[1])
    I("s_lshl_b32", sT0, sA, 3); I("s_add_u32", sT0, sT0, sG)
    I("s_mul_i32", sPGR, sT0, 16 * 12288)
    I("s_mul_i32", sT1, sRT, 12288); I("s_add_u32", sPME, sPGR, sT1)
    I("s_mul_i32", sT1, sWV, 3072); I("s_add_u32", sPME, sPME, sT1)
    I("s_lshl_b32", sFG, sT0, 13); I("s_add_u32", sFG, sFG, WS_F)
    I("s_lshl_b32", sT0, sA, 4); I("s_add_u32", sT0, sT0, sRT); I("s_lshl_b32", sT0, sT0, 2); I("s_add_u32", sT0, sT0, sWV)
    I("s_mul_i32", sOB, sT0, 8 * 4608); I("s_add_u32", sOB, sOB, WS_O)
    for p in range(2):
        for i in (9, 10, 11): I("v_mov_b32", KB[p][i], 0)
        for i in (18, 19): I("v_mov_b32", PH[p][i], 0)
    stamp("prolog")

    vFS = vA[4]
    def poison_ops():
        ops = []
        for i in range(3):
            ops.append(lambda i=i: I("buffer_store_dwordx4", vM1, vL16, SWS, sPME, mods="offen offset:%d sc1" % (1024 * i)))
        def o0():
            I("s_mul_i32", sT0, sG, 4608); I("s_add_u32", sT0, sT0, sOB)
            I("buffer_store_dwordx4", vM1, vL16, SWS, sT0, mods="offen sc1")
        ops.append(o0)
        for i in range(1, 4):
            ops.append(lambda i=i: I("buffer_store_dwordx4", vM1, vL16, SWS, sT0, mods="offen offset:%d sc1" % (1024 * i)))
        def o4():
            I("s_add_u32", sT0, sT0, 4096)
            I("v_lshlrev_b32", T[0], 3, vL)
            I("buffer_store_dwordx2", vM1[0:2], T[0], SWS, sT0, mods="offen sc1")
        ops.append(o4)
        def f0():
            I("v_lshlrev_b32", T[0], 2, vL)
            I("v_mov_b32", T[1], OOB)
            I("v_cmp_gt_u32", "vcc", 24, vL)
            I("s_lshl_b32", sT0, sRT, 2); I("s_add_u32", sT0, sT0, sWV); I("s_mul_i32", sT0, sT0, 96); I("s_add_u32", sT0, sT0, sFG)
            I("v_cndmask_b32", vFS, T[1], T[0], "vcc")
            I("buffer_store_dword", vM1[0], vFS, SWS, sT0, mods="offen sc1")
        ops.append(f0)
        return ops
    POIS = 3
    for j in range(9):
        slot = j % 3
        P.comment("pass1 stage %d" % j)
        if j == 0: younger = 9 + 3
        elif j == 1: younger = 3 + 9
        elif j == 8: younger = 10
        else: younger = 9
        if j == POIS + 1: younger = 9 + 9
        if j == POIS + 2: younger = 9 + 9
        wait(vm=younger)
        if j == 2:
            pass
        I("s_barrier")
        if j == 8:
            I("s_cmp_lg_u32", sWV, 0)
            I("s_cbranch_scc1", "L_noat")
            I("s_lshl_b32", sT0, sA, 7)
            I("v_mov_b32", T[0], 0); I("v_mov_b32", T[1], 1)
            I("s_mov_b64", "exec", 1)
            I("buffer_atomic_add", T[1], T[0], SDBG, sT0, mods="offen")
            I("s_mov_b64", "exec", -1)
            P.label("L_noat")
        fill = []
        if j + 2 < 9: fill = stage_dma((j + 2) % 3)
        elif j == 7: fill = wq_pair_dma(0) + wq_pair_dma(2)
        elif j == 8: fill = wq_pair_dma(4)
        if j == POIS: fill = fill + poison_ops()
        if j == 2:
            def wphi():
                for i in range(3): I("ds_write_b32", PA[i], PW[i])
            wphi()
        if j == 3:
            for t in range(5):
                for jj in range(3):
                    tr(PHIF(t, jj)[0:2], vPHA, 8 * t + 8 * jj * 40)
                    if jj < 2: tr(PHIF(t, jj)[2:4], vPHA, 8 * t + (8 * jj + 4) * 40)
                    else:
                        I("v_accvgpr_write_b32", PHIF(t, jj)[2], 0); I("v_accvgpr_write_b32", PHIF(t, jj)[3], 0)
                wait(lgkm=5)
            wait(lgkm=0)
        pipe = Pipe(dist=4)
        for kap in range(2):
            ks = 2 * j + kap
            for T_ in range(10):
                ring = RING[(kap * 10 + T_) % 8]
                def rd(kap=kap, ks=ks, T_=T_, ring=ring):
                    if T_ == 0:
                        for p in range(2):
                            I("ds_read_b128", XF(ks, p), vXR[kap], mods="offset:%d" % (slot * XSLOT + p * 2048))
                    tile_read(ring, T_, slot * WSLOT + kap * 9216)
                def work(ks=ks, T_=T_, ring=ring):
                    for p in range(2):
                        if T_ < 5: mfma(ACK[p][T_], ring, XF(ks, p), 0 if ks == 0 else ACK[p][T_])
                        else: mfma(ACV[p][T_ - 5], XF(ks, p), ring, 0 if ks == 0 else ACV[p][T_ - 5])
                pipe.add(4 if T_ == 0 else 2, rd, work)
        pipe.emit(fill, every=(1 if len(fill) > 10 else 2), start=1)
    I("s_barrier")
    stamp("pass1")
    for f in wq_pair_dma(6): f()
    I("s_cmp_ge_u32", sWV, 2)
    I("s_cbranch_scc1", "L_noq8")
    for f in wq_pair_dma(8): f()
    P.label("L_noq8")

    VFR = v(144, 20)
    for t in range(5):
        for p in range(2):
            for h in range(2):
                I("v_cvt_pk_bf16_f32", VFR[4 * t + 2 * p + h], ACV[p][t][2 * h], ACV[p][t][2 * h + 1])
    I("v_cmp_eq_u32", "vcc", 8, vN)
    I("v_mov_b32", T[0], 0x3f803f80)
    for i in range(4): I("v_cndmask_b32", VFR[16 + i], VFR[16 + i], T[0], "vcc")
    I("s_mul_i32", sT0, sWV, 5120); I("s_add_u32", sT0, sT0, VF)
    I("v_add_u32", T[1], sT0, vL16)
    for t in range(5): I("ds_write_b128", T[1], VFR[4 * t:4 * t + 4], mods="offset:%d" % (1024 * t))
    wait(lgkm=0)
    feature_map("k")
    I("v_mul_u32_u24", T[0], 9216, vGL)
    I("v_mul_u32_u24", T[1], 72, vN)
    I("s_mul_i32", sT0, sWV, 32 * 72)
    I("v_add3_u32", T[0], T[0], T[1], sT0)
    for p in range(2):
        for i in range(9):
            I("ds_write_b64", T[0], PH[p][2 * i:2 * i + 2], mods="offset:%d" % (IMG + p * 1152 + 8 * i))
    I("s_lshl_b32", sT0, sWV, 10); I("s_add_u32", sT0, sT0, VF)
    I("v_add_u32", T[2], sT0, vL16)
    I("s_lshl_b32", sT0, sWV, 1)
    I("v_add_u32", T[3], sT0, vN)
    I("v_cmp_gt_u32", "vcc", 2, vN)
    I("v_cndmask_b32", T[3], 8, T[3], "vcc")
    I("v_lshl_add_u32", T[3], vGL, 4, T[3])
    I("v_lshlrev_b32", T[3], 4, T[3]); I("v_add_u32", T[3], VF + 4096, T[3])
    wait(lgkm=0)
    I("s_barrier")
    stamp("kpost")
    DM = [v(104 + 4 * j, 4) for j in range(3)]; DL = [v(116 + 4 * j, 4) for j in range(3)]
    pipe = Pipe(dist=3)
    for src in range(4):
        base = 64 + 20 * (src % 2)
        AM, AL = v(base, 4), v(base + 4, 4)
        BF = [v(base + 8 + 4 * j, 4) for j in range(3)]
        for j in range(3):
            def rd(src=src, AM=AM, AL=AL, BF=BF, j=j):
                if j == 0:
                    I("ds_read_b128", AM, T[2], mods="offset:%d" % (src * 5120))
                    I("ds_read_b128", AL, T[3], mods="offset:%d" % (src * 5120))
                for e in range(2):
                    tr(BF[j][2 * e:2 * e + 2], vKB0 if j < 2 else vKB2, IMG + src * 2304 + e * 1152 + (32 * j if j < 2 else 0))
            def work(src=src, AM=AM, AL=AL, BF=BF, j=j):
                mfma(DM[j], AM, BF[j], 0 if src == 0 else DM[j])
                mfma(DL[j], AL, BF[j], 0 if src == 0 else DL[j])
            pipe.add(4 if j == 0 else 2, rd, work)
    pipe.emit()
    I("v_mov_b32", T[4], OOB)
    I("v_lshl_add_u32", T[0], vGL, 2, vN); I("v_lshlrev_b32", T[0], 4, T[0])
    I("v_cmp_gt_u32", "vcc", 4, vN)
    I("v_cndmask_b32", T[0], T[4], T[0], "vcc")
    I("v_cmp_gt_u32", "vcc", 16, vL)
    I("v_cndmask_b32", T[1], T[4], vL16, "vcc")
    I("buffer_store_dwordx4", DM[0], vL16, SWS, sPME, mods="offen sc1")
    I("buffer_store_dwordx4", DM[1], vL16, SWS, sPME, mods="offen offset:1024 sc1")
    I("buffer_store_dwordx4", DM[2], T[0], SWS, sPME, mods="offen offset:2048 sc1")
    for j in range(3):
        I("buffer_store_dwordx4", DL[j], T[1], SWS, sPME, mods="offen offset:%d sc1" % (2304 + 256 * j))
    stamp("pubP")
    wait(vm=6)
    I("s_barrier")

    def rebase(delta):
        for pat in range(3):
            for e in range(2):
                I("v_add_u32", vTR[pat][e], delta & 0xffffffff, vTR[pat][e])
    def gemm2(bfrag, offs, rebases, fillers, pre=None, every=3):
        pipe = Pipe(dist=4)
        n = 0
        for ks in range(18):
            for T_ in range(5):
                ring = RING[n % 8]; n += 1
                def rd(ks=ks, T_=T_, ring=ring):
                    if T_ == 0 and ks in rebases: rebase(rebases[ks])
                    tile_read(ring, T_, offs(ks))
                def work(ks=ks, T_=T_, ring=ring):
                    if T_ == 0 and pre: pre(ks)
                    for p in range(2):
                        mfma(ACK[p][T_], ring, bfrag(ks, p), 0 if ks == 0 else ACK[p][T_])
                pipe.add(2, rd, work)
        pipe.emit(fillers, every=every, start=1)
    gemm2(XF, lambda ks: ((ks // 2) % 6) * 9216 + (ks & 1) * 144, {0: WQ0 - WSL, 12: WQ6 - WQ0},
          wo_pair_dma(0) + wo_pair_dma(2) + wo_pair_dma(4))
    stamp("qgemm")

    I("s_lshl_b32", sT0, sA, 7)
    I("v_mov_b32", T[0], 0)
    I("s_mov_b32", sCNT, 0)
    P.label("L_hs")
    I("buffer_load_dword", T[1], T[0], SDBG, sT0, mods="offen sc1")
    wait(vm=0)
    I("v_readfirstlane_b32", sT1, T[1])
    I("s_add_u32", sCNT, sCNT, 1)
    I("s_cmp_gt_u32", sCNT, SPIN)
    I("s_cbranch_scc1", "L_hsd")
    I("s_cmp_lt_u32", sT1, 128)
    I("s_cbranch_scc1", "L_hs")
    P.label("L_hsd")
    RS = v(104, 16)
    I("v_and_b32", T[0], 31, vL); I("v_min_u32", T[0], 23, T[0]); I("v_lshlrev_b32", T[0], 3, T[0])
    I("v_lshrrev_b32", T[1], 5, vL); I("v_mul_u32_u24", T[1], 8 * 12288, T[1]); I("v_add_u32", T[0], T[0], T[1])
    I("s_lshl_b32", sT2, sRT, 2); I("s_add_u32", sT2, sT2, sWV)
    I("s_mul_i32", sT0, sT2, 192); I("s_add_u32", sT0, sT0, sPGR)
    spin_header("rs")
    I("s_mov_b32", sT1, sT0)
    for i in range(8):
        I("buffer_load_dwordx2", RS[2 * i:2 * i + 2], T[0], SWS, sT1, mods="offen sc1")
        if i < 7: I("s_add_u32", sT1, sT1, 12288)
    wait(vm=0)
    umax(T[2], [RS[i] for i in range(16)])
    spin_footer("rs", T[2])
    for st in (8, 4, 2):
        for i in range(0, st, 2):
            I("v_pk_add_f32", RS[i:i + 2], RS[i:i + 2], RS[i + st:i + st + 2])
    I("v_mov_b32", RS[2], RS[0]); I("v_mov_b32", RS[3], RS[1])
    I("v_permlane32_swap_b32", RS[0], RS[2]); I("v_permlane32_swap_b32", RS[1], RS[3])
    I("v_pk_add_f32", RS[0:2], RS[0:2], RS[2:4])
    I("v_cvt_pk_bf16_f32", RS[0], RS[0], RS[1])
    I("s_mul_i32", sT0, sT2, 96); I("s_add_u32", sT0, sT0, sFG)
    I("buffer_store_dword", RS[0], vFS, SWS, sT0, mods="offen sc1")
    stamp("pubF")

    feature_map("q")
    stamp("qpost")
    I("v_lshlrev_b32", T[0], 3, vL)
    I("s_mul_i32", sT0, sWV, 1536); I("s_add_u32", sT0, sT0, sFG)
    I("s_mul_i32", sT1, sWV, 1920); I("s_add_u32", sT1, sT1, KVI)
    I("v_mul_u32_u24", T[1], 40, vN); I("v_lshl_add_u32", T[1], vGL, 3, T[1]); I("v_add_u32", T[1], sT1, T[1])
    I("v_and_b32", T[2], 3, vL); I("v_mul_u32_u24", T[2], 40, T[2]); I("v_lshrrev_b32", T[3], 2, vL)
    I("v_lshl_add_u32", T[2], T[3], 3, T[2]); I("v_add_u32", T[2], 32 * 40, T[2])
    I("v_mul_u32_u24", T[3], 40, vL); I("v_add_u32", T[3], (32 - 16 * 40) & 0xffffffff, T[3])
    I("v_cmp_gt_u32", "vcc", 16, vL)
    I("v_cndmask_b32", T[2], T[3], T[2], "vcc"); I("v_add_u32", T[2], sT1, T[2])
    spin_header("ag")
    for i in range(3):
        I("buffer_load_dwordx2", RS[2 * i:2 * i + 2], T[0], SWS, sT0, mods="offen offset:%d sc1" % (512 * i))
    wait(vm=0)
    umax(T[4], [RS[i] for i in range(6)])
    spin_footer("ag", T[4])
    I("ds_write_b64", T[1], RS[0:2]); I("ds_write_b64", T[1], RS[2:4], mods="offset:640"); I("ds_write_b64", T[2], RS[4:6])
    for t in range(5):
        I("v_accvgpr_write_b32", PSIF(t, 4)[2], 0); I("v_accvgpr_write_b32", PSIF(t, 4)[3], 0)
    wait(lgkm=0)
    I("s_barrier")
    stamp("gotkv")
    for f in wo_pair_dma(6): f()
    I("s_cmp_ge_u32", sWV, 2)
    I("s_cbranch_scc1", "L_noo8")
    for f in dma5(vO8, SWO, 0, sMQ, WO6 + 2 * 9216): f()
    P.label("L_noo8")

    pipe = Pipe(dist=4)
    for j in range(5):
        for t in range(5):
            def rd(j=j, t=t):
                tr(PSIF(t, j)[0:2], vPSA, 8 * t + 8 * j * 40)
                if j < 4: tr(PSIF(t, j)[2:4], vPSA, 8 * t + (8 * j + 4) * 40)
            def work(j=j, t=t):
                for p in range(2):
                    mfma(ACK[p][t], PSIF(t, j), PH[p][4 * j:4 * j + 4], 0 if j == 0 else ACK[p][t])
            pipe.add(2 if j < 4 else 1, rd, work)
    pipe.emit()
    pool = list(range(104, 144, 4)) + list(range(176, 256, 4)) + list(range(12, 20, 4))
    pool = list(range(104, 144, 4)) + list(range(176, 256, 4)) + [12, 16, 28, 32, 36, 40]
    assert len(pool) == 36
    OF = {}
    order = [(0, 0, 0), (0, 0, 1), (0, 1, 0), (0, 1, 1)]
    keys = order + [("L", k, p) for k in range(2) for p in range(2)] + [(u, p, X) for u in range(1, 8) for p in range(2) for X in range(2)]
    for k_, r_ in zip(keys, pool): OF[k_] = v(r_, 4)
    for p in range(2):
        o = v(64 + 20 * p, 20)
        I("v_add_f32", o[18], sEPS[0], o[18])
        I("v_rcp_f32", o[18], o[18])
        for i in range(0, 18, 2):
            I("v_pk_mul_f32", o[i:i + 2], o[i:i + 2], o[18:20], mods="op_sel:[0,0] op_sel_hi:[1,0]")
        for i in range(8):
            I("v_cvt_pk_bf16_f32", OF[(0, p, i // 4)][i % 4], o[2 * i], o[2 * i + 1])
        I("v_cvt_pk_bf16_f32", OF[("L", 0, p)][0], o[16], o[17])
    vL4 = vA[5]
    I("v_lshlrev_b32", vL4, 2, vL)
    I("s_mul_i32", sT0, sG, 4608); I("s_add_u32", sT0, sT0, sOB)
    I("s_add_u32", sT1, sT0, 4096)
    for p in range(2):
        for X in range(2):
            I("buffer_store_dwordx4", OF[(0, p, X)], vL16, SWS, sT0, mods="offen offset:%d sc1" % (p * 2048 + X * 1024))
        I("buffer_store_dword", OF[("L", 0, p)][0], vL4, SWS, sT1, mods="offen offset:%d sc1" % (p * 256))
    stamp("pubO")
    wait(vm=6)
    I("s_barrier")

    def oload(u):
        I("s_add_u32", sT0, sG, u); I("s_and_b32", sT0, sT0, 7)
        I("s_mul_i32", sT0, sT0, 4608); I("s_add_u32", sT0, sT0, sOB)
        I("s_add_u32", sT1, sT0, 4096)
        for p in range(2):
            for X in range(2):
                I("buffer_load_dwordx4", OF[(u, p, X)], vL16, SWS, sT0, mods="offen offset:%d sc1" % (p * 2048 + X * 1024))
        for p in range(2):
            I("buffer_load_dword", OF[("L", u // 4, p)][u % 4], vL4, SWS, sT1, mods="offen offset:%d sc1" % (p * 256))
    for u in range(1, 8): oload(u)
    def oregs(u):
        r = []
        for p in range(2):
            for X in range(2): r += [OF[(u, p, X)][i] for i in range(4)]
            r.append(OF[("L", u // 4, p)][u % 4])
        return r
    def pre(ks):
        if ks >= 16 or ks & 1 or ks == 0: return
        u = ks // 2
        wait(vm=6 * (7 - u))
        I("s_mov_b32", sCNT, 0)
        umax(T[0], oregs(u))
        I("v_cmp_eq_u32", "vcc", -1, T[0])
        I("s_cbranch_vccz", "L_ok%d" % u)
        P.label("L_sp_o%d" % u)
        oload(u)
        wait(vm=0)
        umax(T[0], oregs(u))
        spin_footer("o%d" % u, T[0])
        P.label("L_ok%d" % u)
    def bf(ks, p):
        if ks < 16: return OF[(ks // 2, p, ks & 1)]
        return OF[("L", ks - 16, p)]
    gemm2(bf, lambda ks: ((ks // 2) % 6) * 9216 + (ks & 1) * 144, {0: WO0 - WQ6, 12: WO6 - WO0}, [], pre=pre)
    stamp("ogemm")
    I("s_lshl_b32", sT0, sRT, 2); I("s_add_u32", sT0, sT0, sWV); I("s_mul_i32", sT0, sT0, 32 * 2304)
    I("s_mul_i32", sT1, sG, 144); I("s_add_u32", sT0, sT0, sT1)
    I("s_cmp_lg_u32", sA, 0); I("s_cselect_b32", sT1, 0, 1152); I("s_add_u32", sT0, sT0, sT1)
    I("s_add_u32", sT1, sT0, 16 * 2304)
    I("v_mul_u32_u24", T[0], 2304, vN)
    I("v_mul_u32_u24", T[1], 40, vGL); I("v_add_u32", T[1], T[0], T[1])
    I("v_lshrrev_b32", T[4], 1, vGL)
    I("v_lshlrev_b32", T[2], 5, T[4]); I("v_sub_u32", T[2], T[1], T[2])
    I("v_mul_u32_u24", T[3], 72, T[4]); I("v_add_u32", T[3], T[0], T[3])
    I("v_mov_b32", T[5], OOB)
    I("v_cndmask_b32", T[3], T[3], T[5], sODD)
    OUTR = v(104, 20)
    for p in range(2):
        for t in range(5):
            for h in range(2):
                I("v_cvt_pk_bf16_f32", OUTR[10 * p + 2 * t + h], ACK[p][t][2 * h], ACK[p][t][2 * h + 1])
        so = sT0 if p == 0 else sT1
        for t in range(5):
            ad, off = (T[1], 8 * t) if t < 3 else ((T[2], 24) if t == 3 else (T[3], 32))
            I("buffer_store_dwordx2", OUTR[10 * p + 2 * t:10 * p + 2 * t + 2], ad, SOUT, so, mods="offen offset:%d%s" % (off, ["", " sc1", " nt", " sc0 sc1"][OPT["outflag"]]))
    if OPT["stamps"]:
        wait(vm=0)
        stamp("end")
        I("s_memrealtime", s(100, 2))
        wait(lgkm=0)
        n = stamp_n[0]
        for k in range(n):
            I("s_sub_u32", s(sSTB + k), s(sSTB + k), s(98))
            I("v_mov_b32", v(64 + k), s(sSTB + k))
        I("v_mov_b32", v(64 + 14), s(96)); I("v_mov_b32", v(64 + 15), s(100))
        I("s_lshl_b32", sT0, s(2), 2); I("s_add_u32", sT0, sT0, sWV); I("s_lshl_b32", sT0, sT0, 6); I("s_add_u32", sT0, sT0, WS_ST)
        I("v_mov_b32", T[0], 0)
        I("s_mov_b64", "exec", 1)
        for q in range(4):
            I("buffer_store_dwordx4", v(64 + 4 * q, 4), T[0], SWS, sT0, mods="offen offset:%d" % (16 * q))
        if OPT["amp"] == 100:
            I("s_sub_u32", sT2, s(100), s(96))
            I("s_mul_i32", sT2, sT2, 5)
            P.label("L_amp")
            I("s_memrealtime", s(100, 2)); wait(lgkm=0)
            I("s_sub_u32", sT1, s(100), s(96))
            I("s_cmp_lt_u32", sT1, sT2)
            I("s_cbranch_scc1", "L_amp")
        elif OPT["amp"] == 101:
            I("s_mov_b32", sT2, 6000)
            P.label("L_amp")
            I("s_memrealtime", s(100, 2)); wait(lgkm=0)
            I("s_sub_u32", sT1, s(100), s(96))
            I("s_cmp_lt_u32", sT1, sT2)
            I("s_cbranch_scc1", "L_amp")
        elif OPT["amp"] >= 0:
            I("s_lshl_b32", sT2, s(sSTB + OPT["amp"]), 2)
            I("s_add_u32", sT2, sT2, s(sSTB + n - 1))
            P.label("L_amp")
            I("s_memtime", s(100, 2)); wait(lgkm=0)
            I("s_sub_u32", sT1, s(100), s(98))
            I("s_cmp_lt_u32", sT1, sT2)
            I("s_cbranch_scc1", "L_amp")
    if OPT["stamps"] and OPT["dbgst"]:
        I("s_not_b32", sT1, s(96))
        I("v_mov_b32", T[1], sT1); I("v_mov_b32", T[2], s(100))
        I("buffer_atomic_umax", T[1], T[0], SDBG, 0, mods="offen offset:4")
        I("buffer_atomic_umax", T[2], T[0], SDBG, 0, mods="offen offset:8")
        I("s_lshl_b32", sT0, s(2), 2); I("s_add_u32", sT0, sT0, sWV)
        I("s_cmp_lg_u32", sT0, 36)
        I("s_cbranch_scc1", "L_end")
        for q in range(3):
            I("buffer_store_dwordx4", v(64 + 4 * q, 4), T[0], SDBG, 0, mods="offen offset:%d" % (16 + 16 * q))
    P.label("L_end")
    I("s_endpgm")

HEADER = open("cdna_kernels/%s.s.ref" % NAME).read().split("; Override launch")[0]

def main(out):
    build()
    body = P.finalize()
    txt = HEADER + "; @launch grid=(256,1,1) block=(256,1,1) lds=%d\n" % LDS_BYTES
    txt += '.amdgcn_target "amdgcn-amd-amdhsa--gfx950"\n.text\n.globl %s_kernel\n.p2align 8\n.type %s_kernel,@function\n' % (NAME, NAME)
    txt += ".set CODE_SPAN, (L_end - %s_kernel - 64) & 0xffffff80\n" % NAME
    txt += "%s_kernel:\n%s\n" % (NAME, body)
    txt += """.section .rodata,"a"
.p2align 6
.amdhsa_kernel %s_kernel
  .amdhsa_next_free_vgpr 512
  .amdhsa_next_free_sgpr 102
  .amdhsa_accum_offset 256
  .amdhsa_group_segment_fixed_size 0
  .amdhsa_kernarg_size 80
  .amdhsa_user_sgpr_count 2
  .amdhsa_user_sgpr_kernarg_segment_ptr 1
  .amdhsa_system_sgpr_workgroup_id_x 1
.end_amdhsa_kernel
""" % NAME
    open(out, "w").write(txt)
    print("wrote", out, "nops inserted:", P.nops, "instrs:", sum(isinstance(x, Ins) for x in P.items))

if __name__ == "__main__":
    out = sys.argv[1]
    for kv in sys.argv[2:]:
        k, val = kv.split("=")
        OPT[k] = int(val)
    main(out)
```

```python
import re

class R:
    def __init__(self, kind, idx, n=1):
        self.kind, self.idx, self.n = kind, idx, n
    def __str__(self):
        if self.n == 1: return "%s%d" % (self.kind, self.idx)
        return "%s[%d:%d]" % (self.kind, self.idx, self.idx + self.n - 1)
    def __getitem__(self, i):
        if isinstance(i, slice):
            st = i.start or 0
            en = i.stop if i.stop is not None else self.n
            assert 0 <= st < en <= self.n, (st, en, self.n)
            return R(self.kind, self.idx + st, en - st)
        assert 0 <= i < self.n, (i, self.n)
        return R(self.kind, self.idx + i, 1)
    def regs(self):
        return {(self.kind, self.idx + i) for i in range(self.n)}

def v(i, n=1): return R('v', i, n)
def a(i, n=1): return R('a', i, n)
def s(i, n=1): return R('s', i, n)

class Neg:
    def __init__(self, r): self.r = r
    def __str__(self): return "-" + str(self.r)

TRANS = ("v_exp_f32", "v_rcp_f32", "v_log_f32", "v_rsq_f32", "v_sqrt_f32")

def regs_of(op):
    if isinstance(op, R): return op.regs()
    if isinstance(op, Neg): return op.r.regs()
    if op == "vcc": return {('s', 'vcc')}
    if op == "exec": return {('s', 'exec')}
    if op == "m0": return {('s', 'm0')}
    return set()

class Ins:
    def __init__(self, op, args, mods="", comment=""):
        self.op, self.args, self.mods, self.comment = op, list(args), mods, comment
        self.classify()
    def text(self):
        t = self.op
        if self.args: t += " " + ", ".join(str(x) for x in self.args)
        if self.mods: t += " " + self.mods
        if self.comment: t += "   ; " + self.comment
        return "  " + t
    def classify(self):
        op, A = self.op, self.args
        self.kind = None
        self.defs, self.uses = set(), set()
        self.srcc = set(); self.ab = set(); self.stdata = set()
        if op.startswith("v_mfma"):
            self.kind = "mfma"
            self.defs = regs_of(A[0]); self.ab = regs_of(A[1]) | regs_of(A[2]); self.srcc = regs_of(A[3])
            self.uses = self.ab | self.srcc
            self.passes = 4 if "16x16x32" in op else 8
        elif op.startswith("v_"):
            self.kind = "valu"
            if op.startswith("v_cmp"):
                self.defs = regs_of(A[0]); srcs = A[1:]
            elif op.startswith("v_readfirstlane") or op.startswith("v_readlane"):
                self.defs = regs_of(A[0]); srcs = A[1:]
            elif op.startswith("v_permlane"):
                self.defs = regs_of(A[0]) | regs_of(A[1]); srcs = A
            else:
                self.defs = regs_of(A[0]); srcs = A[1:]
                if op.startswith("v_fmac") or op.startswith("v_dot2c"): srcs = A
            for x in srcs: self.uses |= regs_of(x)
        elif op.startswith("ds_"):
            self.kind = "ds"
            if op.startswith("ds_read"):
                self.defs = regs_of(A[0]); self.uses = regs_of(A[1])
            else:
                for x in A: self.uses |= regs_of(x)
        elif op.startswith("buffer_") or op.startswith("global_"):
            self.kind = "vmem"
            islds = " lds" in (" " + self.mods)
            self.islds = islds
            if "load" in op and not islds:
                self.defs = regs_of(A[0])
                for x in A[1:]: self.uses |= regs_of(x)
            else:
                for x in A: self.uses |= regs_of(x)
                if islds: self.uses |= {('s', 'm0')}
                if "store" in op and ("x4" in op or "x3" in op):
                    self.stdata = regs_of(A[0]) if op.startswith("buffer_") else regs_of(A[1])
        elif op.startswith("s_"):
            self.kind = "salu"
            if op in ("s_waitcnt", "s_barrier", "s_nop", "s_endpgm", "s_sleep", "s_setprio") or op.startswith("s_cbranch") or op == "s_branch":
                self.kind = "ctl"
            elif op.startswith("s_cmp"):
                for x in A: self.uses |= regs_of(x)
            else:
                self.defs = regs_of(A[0])
                for x in A[1:]: self.uses |= regs_of(x)
        else:
            raise ValueError(op)
    def states(self):
        if self.op == "s_nop": return int(self.args[0]) + 1
        return 1

class Label:
    def __init__(self, name): self.name = name
    def text(self): return self.name + ":"

class Raw:
    def __init__(self, t): self.t = t
    def text(self): return self.t

def need(p, c):
    n = 0
    vg = lambda S: {r for r in S if r[0] in 'va'}
    sg = lambda S: {r for r in S if r[0] == 's'}
    if p.kind == "valu":
        if c.kind == "mfma" and vg(p.defs) & c.uses: n = max(n, 2)
        if c.kind == "vmem" and sg(p.defs) & c.uses: n = max(n, 5)
        if c.kind == "valu":
            if sg(p.defs) & c.uses: n = max(n, 2)
            if c.op.startswith("v_readlane") and sg(p.defs) & c.uses: n = max(n, 4)
            if (c.op.startswith("v_readfirstlane") or c.op.startswith("v_readlane")) and vg(p.defs) & c.uses: n = max(n, 1)
            if p.op in TRANS and vg(p.defs) & c.uses: n = max(n, 1)
            if c.op.startswith("v_permlane") and vg(p.defs) & c.uses: n = max(n, 2)
            if "dpp" in c.mods or "quad_perm" in c.mods or "row_" in c.mods:
                if vg(p.defs) & c.uses: n = max(n, 2)
        if p.op in TRANS and c.kind in ("ds", "vmem") and vg(p.defs) & c.uses: n = max(n, 1)
        if c.kind == "salu" and sg(p.defs) & c.uses: n = max(n, 1)
    if p.kind == "mfma":
        big = {4: 8, 8: 12}[p.passes]
        if c.kind == "mfma":
            if p.defs & c.ab: n = max(n, big)
            if p.defs & c.srcc and not (p.defs == c.srcc and p.passes == c.passes): n = max(n, big - 2)
            if p.defs & c.defs and not (p.defs == c.srcc): n = max(n, big)
        elif c.kind in ("valu", "ds", "vmem"):
            if p.defs & (c.uses | c.defs): n = max(n, big)
            if c.kind == "valu" and p.srcc & c.defs: n = max(n, {4: 3, 8: 7}[p.passes])
    if p.kind == "salu":
        if ('s', 'm0') in p.defs and c.kind == "vmem" and getattr(c, "islds", False): n = max(n, 1)
    if p.kind == "vmem" and p.stdata:
        if p.stdata & c.defs: n = max(n, 2)
    return n

class Prog:
    def __init__(self):
        self.items = []
    def I(self, op, *args, mods="", c=""):
        ins = Ins(op, args, mods, c)
        self.items.append(ins)
        return ins
    def label(self, name): self.items.append(Label(name))
    def raw(self, t): self.items.append(Raw(t))
    def comment(self, t): self.items.append(Raw("  ; ---- " + t))
    def finalize(self):
        out = []
        hist = []
        nops = 0
        for it in self.items:
            if isinstance(it, Ins):
                req = 0
                dist = 0
                for p in reversed(hist):
                    nd = need(p, it)
                    if nd > dist: req = max(req, nd - dist)
                    dist += p.states()
                    if dist >= 14: break
                if req > 0:
                    nop = Ins("s_nop", [req - 1], "", "hazard")
                    out.append(nop); hist.append(nop); nops += 1
                out.append(it); hist.append(it)
                hist = hist[-20:]
            else:
                out.append(it)
        self.nops = nops
        return "\n".join(x.text() for x in out)

def _capture(self, fn):
    saved = self.items
    self.items = []
    fn()
    got = self.items
    self.items = saved
    return got
Prog.capture = _capture
def _put(self, items): self.items.extend(items)
Prog.put = _put

import subprocess, os, tempfile

class VmWait(Ins):
    def __init__(self, tag, lgkm=None):
        self.tag_wait = tag; self.lgkm = lgkm
        Ins.__init__(self, "s_waitcnt", ["vmcnt(0)"], "", "for " + tag)

def resolve_vm(items):
    for i, it in enumerate(items):
        if isinstance(it, VmWait):
            res = []
            paths = [getattr(it, "path", None)] if getattr(it, "path", None) else ["A", "B"]
            for path in paths:
                n = 0; found = False
                for p in reversed(items[:i]):
                    if not isinstance(p, Ins) or p.kind != "vmem": continue
                    pp = getattr(p, "path", None)
                    if pp is not None and pp != path: continue
                    if getattr(p, "tag", None) == it.tag_wait: found = True; break
                    if getattr(p, "cond", False): continue
                    n += 1
                assert found, it.tag_wait
                res.append(n)
            n = min(min(res), 63)
            t = "vmcnt(%d)" % n
            if it.lgkm is not None: t += " lgkmcnt(%d)" % it.lgkm
            it.args = [t]

def sizes_of(text):
    d = tempfile.mkdtemp()
    src = os.path.join(d, "t.s"); obj = os.path.join(d, "t.o")
    open(src, "w").write(text)
    r = subprocess.run(["clang", "-x", "assembler", "-target", "amdgcn-amd-amdhsa", "-mcpu=gfx950", "-c", src, "-o", obj], capture_output=True, text=True)
    assert r.returncode == 0, r.stderr[:2000]
    o = subprocess.run(["llvm-objdump", "-d", "--mcpu=gfx950", obj], capture_output=True, text=True).stdout
    sz = []
    for line in o.splitlines():
        m = re.search(r"//\s*[0-9A-F]{12}:\s*((?:[0-9A-F]{8}\s*)+)", line)
        if m: sz.append(4 * len(m.group(1).split()))
    return sz

def _finalize2(self, wrap, minrun=6):
    resolve_vm(self.items)
    out = []; hist = []; nops = 0
    for it in self.items:
        if isinstance(it, Ins):
            req = 0; dist = 0
            for p in reversed(hist):
                nd = need(p, it)
                if nd > dist: req = max(req, nd - dist)
                dist += p.states()
                if dist >= 14: break
            if req > 0:
                nop = Ins("s_nop", [req - 1], "", "hazard")
                out.append(nop); hist.append(nop); nops += 1
            out.append(it); hist.append(it); hist = hist[-20:]
        else:
            out.append(it)
    self.nops = nops
    ins = [x for x in out if isinstance(x, Ins)]
    sz = sizes_of(wrap("\n".join(x.text() for x in out)))
    assert len(sz) == len(ins), (len(sz), len(ins))
    for x, z in zip(ins, sz): x.size = z
    fast8 = lambda x: x.size == 8 and x.kind in ("valu", "salu", "ds") and x.op not in TRANS
    run = [0] * (len(ins) + 1)
    for i in range(len(ins) - 1, -1, -1): run[i] = run[i + 1] + 1 if fast8(ins[i]) else 0
    res = []; addr = 0; k = 0; fixes = 0
    for it in out:
        if isinstance(it, Ins):
            start = run[k] >= minrun and (k == 0 or not fast8(ins[k - 1]))
            if start and addr % 8 == 4:
                prev = ins[k - 1]
                if prev.kind == "valu" and prev.size == 4 and not prev.op.startswith(("v_readfirst", "v_permlane", "v_accvgpr", "v_cmp", "v_cndmask")) and not prev.op.endswith("_e64"):
                    prev.op += "_e64"; prev.size = 8
                else:
                    n = Ins("s_nop", [0], "", "align"); res.append(n)
                addr += 4; fixes += 1
            addr += it.size; k += 1
        res.append(it)
    self.fixes = fixes; self.bytes = addr
    return wrap("\n".join(x.text() for x in res))
Prog.finalize2 = _finalize2
```

```python
import sys, struct
from asmdsl import *

NAME = "concat_heads__linear_attn_block__linear_kernel_hedgehog__prompt"
OPT = dict(stamps=0, nphase=2, amp=-1, ampsel=0, lite=0, outflag=0, rs_at=40, rs_chk=64, ag_frac=50, npre=3, ackw=1,
           stop="", p1st=0, fast=0, ost=0, xk=0)

def f2u(x): return struct.unpack("<I", struct.pack("<f", x))[0]
LOG2E = 1.4426950408889634

XSLOT = 16384
WSL = 49152; WSLOT = 18432
WQ0 = 104448
WQ6 = 76800
PHI = 104448
ZERO = 159744
IMG = 0
VF = 36864
KVI = 57344
WO0 = 0
WO6 = 104448
OUTB = 76800
LDS_BYTES = 163840
WS_F = 0x300000; WS_E = 0x380000; WS_R = 0x390000; WS_O = 0x400000; WS_ST = 0x900000; WS_BYTES = 0xA00000
OOB = 0x7ffffff0
SPIN = 30000
Q0 = [0, 32, 96, 160, 224]
WSTEP = 64 * 3456

SX, SW, SWO, SWS, SOUT, SPHI = s(24, 4), s(28, 4), s(32, 4), s(36, 4), s(40, 4), s(48, 4)
sL0, sL1, sL2, sL3 = s(44), s(45), s(46), s(47)
sA, sRT, sG, sWV = s(52), s(53), s(54), s(55)
sOQ, sOX, sOW = s(56), s(57), s(58)
s1152 = s(59)
sMX, sMW = s(60), s(61)
sT0, sT1, sT2, sT3 = s(62), s(63), s(64), s(65)
sSL = s(66)
sROT = s(67)
sPME, sRSB, sRF, sOB = s(68), s(69), s(70), s(71)
sCNT = s(72)
sFSL = s(73)
sC = s(74, 2)
sEPS = s(76, 2)
sODD = s(78, 2)
sMQ = s(80)
sOO = s(81)
sPC = s(82, 2)
sTAG, sMSK = s(82), s(83)
sOU = [s(84 + u) for u in range(8)]
sAG = s(92)
sO8 = s(93)
sOUTB = s(94)
sE = s(95)
sG144 = s(48); sRV = s(49); sQE = s(50); sOE = s(51)
STAMPS = [s(3)] + [s(4 + i % 20) for i in range(28)]

vL = v(0)
T = [v(i) for i in range(1, 10)]
vOX = [v(10 + i) for i in range(4)]
vOW = [v(14 + i) for i in range(5)]
vXR = [v(19), v(20)]
vTR = [[v(21 + 2 * p + e) for e in range(2)] for p in range(5)]
vOQ = [v(31 + i) for i in range(5)]
vOO = [v(36 + i) for i in range(5)]
vO8 = [v(41 + i) for i in range(5)]
vL16 = v(46)
vGL, vN = v(47), v(48)
vM, vPSA, vKB0, vKB2, vFS, vL4, vIW, vVW, vAM, vAL, vRSA = [v(49 + i) for i in range(11)]
vP2, vP3, vAG1, vAG2 = v(60), v(61), v(62), v(63)
ACK = [[v(64 + 20 * p + 4 * t, 4) for t in range(5)] for p in range(2)]
ACV = [[v(104 + 20 * p + 4 * t, 4) for t in range(5)] for p in range(2)]
RING = [v(144 + 4 * i, 4) for i in range(8)]
KB = [v(176 + 12 * p, 12) for p in range(2)]
PH = [v(200 + 20 * p, 20) for p in range(2)]
TMP = v(144, 24)
PW = v(240, 3); M1 = v(244, 4); PA = v(248, 3); vR, vC = v(251), v(252)
vPH = [v(243), v(253), v(254)]
def XF(ks, p): return a(ks * 8 + p * 4, 4)
def PHIF(t, j): return a(144 + (t * 3 + j) * 4, 4)
def PSIF(t, j): return a(144 + (t * 5 + j) * 4, 4)

P = Prog()
I = P.I
cap = P.capture
stamp_names = []
def stamp(name):
    if OPT["stamps"] and not OPT.get("mute"):
        k = len(stamp_names); stamp_names.append(name)
        real = True
        if OPT["lite"]:
            real = (k == OPT["amp"] or name == "end")
            if real: STAMPS[k] = s(5) if name == "end" else (s(4) if k else s(3))
        if real:
            I("s_memtime", s(100, 2), c="stamp " + name)
            I("s_waitcnt", "lgkmcnt(0)")
            I("s_mov_b32", STAMPS[k], s(100))
    if OPT["stop"] == name:
        I("s_branch", "L_fin"); OPT["mute"] = 1

def wait(vm=None, lgkm=None):
    t = []
    if vm is not None: t.append("vmcnt(%d)" % vm)
    if lgkm is not None: t.append("lgkmcnt(%d)" % lgkm)
    I("s_waitcnt", " ".join(t))
def wait_vm(tag, lgkm=None): P.items.append(VmWait(tag, lgkm))
def tagged(groups, tag):
    for g in groups:
        for x in g:
            if isinstance(x, Ins) and x.kind == "vmem": x.tag = tag
    return groups
def mark(items, **kw):
    for x in items:
        if isinstance(x, Ins):
            for k, val in kw.items(): setattr(x, k, val)
    return items

def srd(dst, lo, hi, size):
    I("s_mov_b32", dst[0], lo); I("s_mov_b32", dst[1], hi)
    I("s_mov_b32", dst[2], size); I("s_mov_b32", dst[3], 0x20000)
def singles(items): return [[x] for x in items]
def emit_groups(groups):
    for g in groups: P.put(g)

def dma5(voffs, srdreg, soff, m0base, m0imm):
    def first():
        I("s_add_u32", "m0", m0base, m0imm)
        I("s_mov_b32", "exec_hi", 0)
        I("buffer_load_dwordx4", voffs[0], srdreg, soff, mods="offen lds")
        I("s_mov_b32", "exec_hi", -1)
    g = [cap(first)]
    for i in range(1, 5):
        g += singles(cap(lambda: I("buffer_load_dwordx4", voffs[i], srdreg, soff, mods="offen offset:%d lds" % (16 * Q0[i]))))
    return g

def wraps_after(j):
    rots = {1: [0], 2: [0, 4], 3: [0, 3, 6]}[OPT["nphase"]]
    return any(r + j == 8 for r in rots) and j < 8
def x_dma(j):
    g = singles(cap(lambda: I("s_add_u32", "m0", sMX, (j % 3) * XSLOT)))
    for i in range(4):
        g += singles(cap(lambda: I("buffer_load_dwordx4", vOX[i], SX, sOX, mods="offen offset:%d lds" % (1024 * i))))
    return tagged(g, "S%d" % j)
def w_dma(j):
    g = tagged(dma5(vOW, SW, sOW, sMW, (j % 3) * WSLOT), "S%d" % j)
    if j < 8:
        g += singles(cap(lambda: (I("s_add_u32", sOX, sOX, 128), I("s_add_u32", sOW, sOW, WSTEP))))
        if wraps_after(j):
            def wr():
                I("s_cmp_eq_u32", sROT, 8 - j)
                I("s_cselect_b32", sT0, 1152, 0); I("s_cselect_b32", sT1, 9 * WSTEP, 0)
            g.append(cap(wr))
            g += singles(cap(lambda: (I("s_sub_u32", sOX, sOX, sT0), I("s_sub_u32", sOW, sOW, sT1))))
    return g
def stage_dma(j): return x_dma(j) + w_dma(j)

def advance(reg, step, end, span):
    def a1():
        I("s_add_u32", reg, reg, step)
        I("s_cmp_ge_u32", reg, end)
        I("s_cselect_b32", sT0, span, 0)
    return [cap(a1)] + singles(cap(lambda: I("s_sub_u32", reg, reg, sT0)))
def wq_pair_dma(j):
    pos = (WQ0 + j * 9216) if j < 6 else (WQ6 + (j - 6) * 9216)
    g = tagged(dma5(vOQ, SW, sOQ, sMQ, pos), "WQ%d" % j)
    if j < 8: g += advance(sOQ, 2 * WSTEP, sQE, 9 * WSTEP)
    return g
def wo_pair_dma(u):
    pos = (WO0 + u * 9216) if u < 6 else (WO6 + (u - 6) * 9216)
    g = tagged(dma5(vOO, SWO, sOO, sMQ, pos), "WO%d" % u)
    if u < 6: g += advance(sOO, 2 * 82944, sOE, 8 * 82944)
    return g
def only_waves01(groups, tag):
    def f():
        I("s_cmp_ge_u32", sWV, 2)
        I("s_cbranch_scc1", "L_skip_" + tag)
        for g in groups: P.put(mark(g, cond=True))
        P.label("L_skip_" + tag)
    return [cap(f)]

def tr(dst, addr, off):
    assert 0 <= off < 65536, off
    I("ds_read_b64_tr_b16", dst, addr, mods="offset:%d" % off)
def mfma(d, x, y, c): I("v_mfma_f32_16x16x32_bf16", d, x, y, c)
def tile_read(dstreg, T_, base_off):
    if T_ < 3: pat, o = 0, 8 * T_
    elif T_ == 3: pat, o = 1, 0
    elif T_ == 4: pat, o = 2, 0
    elif T_ < 9: pat, o = 3, 144 + 8 * [0, 5, 9, 14][T_ - 5]
    else: pat, o = 4, 144
    for e in range(2):
        tr(dstreg[2 * e:2 * e + 2], vTR[pat][e], base_off + o)

class Pipe:
    def __init__(self, dist=4, grp=2):
        self.units = []; self.dist = dist; self.grp = grp; self.hooks = {}
    def add(self, rd, work, pre=None, rt=None):
        k = len(self.units)
        self.units.append((cap(rd), cap(work), cap(pre) if pre else None, k - self.dist if rt is None else rt))
    def emit(self, fill=(), bulk=()):
        fill = list(fill); bulk = list(bulk)
        U = self.units; n = len(U)
        seq = []
        state = dict(done=0)
        def put(items, owner=-1):
            for x in items:
                if isinstance(x, Ins) and x.kind == "ds": seq.append(owner)
                if isinstance(x, Ins) and x.op == "s_waitcnt" and ("lgkmcnt(0)" in x.args[0] or getattr(x, "lgkm", None) == 0): state["done"] = len(seq)
            P.put(items)
        def need_wait(k):
            last = max([i for i, o in enumerate(seq) if o == k] + [-1])
            return last >= state["done"]
        byt = {}
        for k, u in enumerate(U): byt.setdefault(max(u[3], -1), []).append(k)
        for k in byt.get(-1, []): put(U[k][0], k)
        while bulk and bulk[0][0] < 0: put(bulk.pop(0)[1])
        def take(k):
            if fill and fill[0][0] <= k: put(fill.pop(0)[1]); return True
            if bulk and bulk[0][0] <= k + 6: put(bulk.pop(0)[1]); return True
            return False
        for k in range(n):
            if k in self.hooks: put(self.hooks[k])
            if U[k][2]: put(U[k][2])
            if need_wait(k):
                want = [q for q in range(k, min(n, k + self.grp)) if U[q][3] < k - 1 or q == k]
                last = max(i for i, o in enumerate(seq) if o in want)
                later = len(seq) - 1 - last
                assert later <= 15, later
                wait(lgkm=later); state["done"] = last + 1
            nxt = [(x, q) for q in byt.get(k, []) for x in U[q][0]]
            half = (len(nxt) + 1) // 2
            w = U[k][1]
            P.put([w[0]])
            for x, q in nxt[:half]: put([x], q)
            for _ in range(max(0, 2 - half)): take(k)
            P.put(w[1:])
            for x, q in nxt[half:]: put([x], q)
            rest = len(nxt) - half + (1 if (k + 1 < n and need_wait(k + 1)) else 0) + (2 if k + 1 in self.hooks else 0)
            for _ in range(max(0, 2 - rest)): take(k)
            while fill and fill[0][0] <= k - 3: put(fill.pop(0)[1])
            while bulk and bulk[0][0] <= k: put(bulk.pop(0)[1])
        for _, g in fill + bulk: put(g)

def at(unit, groups): return [(unit + i * 2 // 3, g) for i, g in enumerate(groups)]
def spread(groups, first, last):
    n = len(groups)
    return [(first + (last - first) * i // max(1, n), g) for i, g in enumerate(groups)]
def merge(main, extra, start=0, step=2):
    out = []; extra = list(extra)
    for i, x in enumerate(main):
        out.append(x)
        if extra and i >= start and (i - start) % step == step - 1: out += extra.pop(0)
    for g in extra: out += g
    return out

def sm_head(src18, tmp):
    mx, mn = tmp[18], tmp[19]
    I("v_max3_f32", mx, src18[0], src18[1], src18[2]); I("v_min3_f32", mn, src18[0], src18[1], src18[2])
    for i in range(3, 17, 2):
        I("v_max3_f32", mx, mx, src18[i], src18[i + 1]); I("v_min3_f32", mn, mn, src18[i], src18[i + 1])
    I("v_max_f32", mx, mx, src18[17]); I("v_min_f32", mn, mn, src18[17])
    I("v_mul_f32", tmp[20], sC[0], mx); I("v_mul_f32", tmp[21], sC[0], mn)
def sm_tail(src18, out18, tmp):
    ab = tmp[20:22]
    for i in range(0, 18, 2):
        I("v_pk_fma_f32", tmp[i:i + 2], src18[i:i + 2], sC, ab, mods="op_sel:[0,0,1] op_sel_hi:[1,1,1] neg_lo:[1,0,0] neg_hi:[1,0,0]")
        I("v_pk_fma_f32", src18[i:i + 2], src18[i:i + 2], sC, ab, mods="op_sel:[0,0,0] op_sel_hi:[1,1,0] neg_lo:[0,0,1] neg_hi:[0,0,1]")
    sp, sn = tmp[18:20], tmp[20:22]
    for i in range(0, 18, 2):
        for h in range(2):
            I("v_exp_f32", src18[i + h], src18[i + h]); I("v_exp_f32", tmp[i + h], tmp[i + h])
        if i == 4:
            I("v_pk_add_f32", sp, src18[0:2], src18[2:4]); I("v_pk_add_f32", sn, tmp[0:2], tmp[2:4])
        elif i > 4:
            I("v_pk_add_f32", sp, sp, src18[i - 2:i]); I("v_pk_add_f32", sn, sn, tmp[i - 2:i])
    I("v_pk_add_f32", sp, sp, src18[16:18]); I("v_pk_add_f32", sn, sn, tmp[16:18])
    rr = tmp[22:24]
    I("v_add_f32", rr[0], sp[0], sp[1]); I("v_add_f32", rr[1], sn[0], sn[1])
    I("v_rcp_f32", rr[0], rr[0]); I("v_rcp_f32", rr[1], rr[1])
    for i in range(0, 18, 2):
        I("v_pk_mul_f32", src18[i:i + 2], src18[i:i + 2], rr, mods="op_sel:[0,0] op_sel_hi:[1,0]")
    for i in range(9):
        I("v_cvt_pk_bf16_f32", out18[i], src18[2 * i], src18[2 * i + 1])
    for i in range(0, 18, 2):
        I("v_pk_mul_f32", tmp[i:i + 2], tmp[i:i + 2], rr, mods="op_sel:[0,1] op_sel_hi:[1,1]")
    for i in range(9):
        I("v_cvt_pk_bf16_f32", out18[9 + i], tmp[2 * i], tmp[2 * i + 1])

ACC = [v(64 + 20 * p, 20) for p in range(2)]
def cv(p):
    I("v_cndmask_b32", ACC[p][16], ACC[p][16], ACC[p][18], sODD)
    I("v_cndmask_b32", ACC[p][17], ACC[p][17], ACC[p][19], sODD)
    for i in range(9): I("v_cvt_pk_bf16_f32", KB[p][i], ACC[p][2 * i], ACC[p][2 * i + 1])

def chase(body, groups):
    out = []; groups = list(groups)
    lastdef = {}
    for i, x in enumerate(body):
        if isinstance(x, Ins):
            for r in x.defs: lastdef[r] = i
    pos = {}
    for g in groups:
        p_ = max([lastdef.get(r, -1) for x in g for r in x.uses] + [-1])
        pos.setdefault(p_, []).append(g)
    for g in pos.get(-1, []): out += g
    for i, x in enumerate(body):
        out.append(x)
        for g in pos.get(i, []): out += g
    return out

def feature_map(tag, cv_done, shadow, extra_fn, after_p):
    def sprinkle(lst, ex):
        out = []; ex = sorted(ex, key=lambda t: t[0]); n = len(lst)
        for i, x in enumerate(lst):
            out.append(x)
            if ex and ex[0][0] * n <= i * 100: out += ex.pop(0)[1]
        for _, g in ex: out += g
        return out
    I("s_cmp_lg_u32", sA, 0)
    I("s_cbranch_scc1", "L_phiA_" + tag)
    def mm(p):
        for j in range(3):
            for t in range(5):
                mfma(ACK[p][t], PHIF(t, j), KB[p][4 * j:4 * j + 4], 0 if j == 0 else ACK[p][t])
    body = [] if cv_done else cap(lambda: cv(0))
    sh = ([] if cv_done else cap(lambda: cv(1))) + list(shadow())
    for x in cap(lambda: mm(0)):
        body.append(x); body += sh[:2]; sh = sh[2:]
    m1 = cap(lambda: mm(1))
    head0 = cap(lambda: sm_head(ACC[0][0:18], TMP))
    for i, x in enumerate(m1):
        body.append(x)
        if len(sh) < 2 and i >= 3 and head0: sh = sh + head0; head0 = []
        body += sh[:2]; sh = sh[2:]
    body += sh + head0
    body += chase(cap(lambda: sm_tail(ACC[0][0:18], PH[0][0:18], TMP)), after_p(0))
    body += cap(lambda: sm_head(ACC[1][0:18], TMP))
    body += chase(cap(lambda: sm_tail(ACC[1][0:18], PH[1][0:18], TMP)), after_p(1))
    P.put(mark(sprinkle(body, extra_fn("B")), path="B"))
    I("s_branch", "L_phiE_" + tag)
    P.label("L_phiA_" + tag)
    I("s_nop", 7)
    def pa(p):
        x = ACC[p]
        if not cv_done:
            I("v_cndmask_b32", x[16], x[16], x[18], sODD); I("v_cndmask_b32", x[17], x[17], x[19], sODD)
        for i in range(0, 18, 2): I("v_pk_mul_f32", TMP[i:i + 2], x[i:i + 2], sC)
        for i in range(18):
            I("v_exp_f32", TMP[i], TMP[i], mods="clamp")
            I("v_max_f32", x[i], 0, x[i])
        for i in range(0, 18, 2): I("v_pk_add_f32", x[i:i + 2], x[i:i + 2], TMP[i:i + 2])
        for i in range(0, 18, 2): I("v_pk_add_f32", x[i:i + 2], x[i:i + 2], sEPS)
        for i in range(9):
            I("v_cvt_pk_bf16_f32", PH[p][i], x[2 * i], x[2 * i + 1])
            I("v_mov_b32", PH[p][9 + i], 0)
    body = list(shadow())
    for p in range(2): body += chase(cap(lambda: pa(p)), after_p(p))
    P.put(mark(sprinkle(body, extra_fn("A")), path="A"))
    P.label("L_phiE_" + tag)
    I("s_nop", 1)

def umax(dst, regs):
    regs = list(regs)
    I("v_max3_u32", dst, regs[0], regs[1], regs[2]); regs = regs[3:]
    while len(regs) >= 2:
        I("v_max3_u32", dst, dst, regs[0], regs[1]); regs = regs[2:]
    if regs: I("v_max_u32", dst, dst, regs[0])

SLOW = []
def check_or_retry(tag, fold, cmp_bad, loads):
    g = singles(cap(fold))
    def test():
        cmp_bad()
        I("s_cbranch_vccnz", "L_slow_" + tag)
        P.label("L_back_" + tag)
    g.append(cap(test))
    def slow():
        P.label("L_slow_" + tag)
        I("s_mov_b32", sCNT, 0)
        P.label("L_sp_" + tag)
        loads()
        wait(vm=0)
        fold()
        cmp_bad()
        I("s_add_u32", sCNT, sCNT, 1)
        I("s_cmp_gt_u32", sCNT, SPIN)
        I("s_cbranch_scc1", "L_back_" + tag)
        I("s_cbranch_vccnz", "L_sp_" + tag)
        I("s_branch", "L_back_" + tag)
    SLOW.append(cap(slow))
    return g
def check_sent(tag, chk, regs, loads):
    return check_or_retry(tag, lambda: umax(chk, regs), lambda: I("v_cmp_eq_u32", "vcc", -1, chk), loads)
def check_tag(tag, chk, regs, loads):
    def fold():
        I("v_xor_b32", chk, sTAG, regs[0])
        for r in regs[1:]:
            I("v_bitop3_b32", chk, chk, sTAG, r, mods="bitop3:0xf6")
        I("v_and_b32", chk, 0xff, chk)
    return check_or_retry(tag, fold, lambda: I("v_cmp_ne_u32", "vcc", 0, chk), loads)

def build():
    I("s_cmp_ge_u32", s(2), 256)
    I("s_cbranch_scc1", "L_end")
    I("s_load_dwordx16", s(4, 16), s(0, 2), 0)
    I("s_load_dwordx4", s(20, 4), s(0, 2), 64)
    I("s_getpc_b64", sPC)
    I("s_and_b32", sT0, s(2), 0xf8)
    I("v_lshrrev_b32", T[0], 5, v(0))
    I("v_add_lshl_u32", T[1], T[0], sT0, 7)
    I("v_min_u32", T[1], "CODE_SPAN", T[1])
    I("global_load_dword", v(255), T[1], sPC)
    if OPT["stamps"]:
        I("s_memtime", s(98, 2)); I("s_memrealtime", s(96, 2))
    I("v_readfirstlane_b32", sWV, T[0])
    I("v_and_b32", vL, 63, v(0))
    I("s_bfe_u32", sA, s(2), 0x10002)
    I("s_and_b32", sT0, s(2), 3)
    I("s_lshr_b32", sT1, s(2), 6)
    I("s_lshr_b32", sWV, sWV, 1)
    I("s_lshl2_add_u32", sRT, sT0, sT1)
    I("s_bfe_u32", sG, s(2), 0x30003)
    if OPT["nphase"] == 3:
        I("s_add_u32", sT0, sG, sT1)
        I("s_mul_i32", sT1, sT0, 86)
        I("s_lshr_b32", sT1, sT1, 8)
        I("s_mul_i32", sT1, sT1, 3)
        I("s_sub_u32", sT0, sT0, sT1)
        I("s_mul_i32", sROT, sT0, 3)
    elif OPT["nphase"] == 2:
        I("s_add_u32", sT0, sG, sT1)
        I("s_and_b32", sT0, sT0, 1)
        I("s_lshl_b32", sROT, sT0, 2)
    else:
        I("s_mov_b32", sROT, 0)
    I("s_lshl2_add_u32", sSL, sRT, sWV)
    I("s_mul_i32", sOX, sSL, 32 * 1152)
    I("s_lshl_b32", sT0, sROT, 7)
    I("s_add_u32", sOX, sOX, sT0)
    I("s_lshl_b32", sMX, sWV, 12)
    I("s_mul_i32", sMQ, sWV, 4608)
    I("s_add_u32", sMW, sMQ, WSL)
    I("s_movk_i32", s1152, 1152)
    I("v_lshrrev_b32", T[0], 3, vL)
    I("v_mul_u32_u24", T[0], s1152, T[0])
    I("v_lshrrev_b32", vGL, 4, vL)
    I("v_and_b32", T[1], 7, vL)
    I("v_xor_b32", T[1], T[1], vGL)
    I("v_lshl_add_u32", vOX[0], T[1], 4, T[0])
    I("v_xor_b32", vOX[1], 64, vOX[0])
    I("v_add_u32", vOX[2], 16 * 1152 - 2048, vOX[0])
    I("v_add_u32", vOX[3], 24 * 1152 - 3072, vOX[1])
    I("v_add_u32", vOX[1], 8 * 1152 - 1024, vOX[1])
    I("s_mov_b32", SX[2], 2048 * 1152); I("s_mov_b32", SX[3], 0x20000)
    I("s_mov_b32", SW[2], 576 * 3456); I("s_mov_b32", SW[3], 0x20000)
    I("s_mul_i32", sL3, sG, 144)
    I("s_lshl2_add_u32", sT0, sROT, sWV)
    I("s_mul_i32", sOW, sT0, 16 * 3456)
    I("s_add_u32", sOW, sOW, sL3)
    I("s_add_u32", sOW, sOW, s1152)
    I("s_movk_i32", sL0, 3456); I("s_movk_i32", sL1, -144)
    I("v_lshlrev_b32", vL16, 4, vL)
    I("v_mul_u32_u24", vM, 7282, vL)
    DR = [v(64 + i) for i in range(5)]; DP = [v(70 + i) for i in range(5)]; DC = [v(76 + i) for i in range(5)]
    for i in range(5):
        t = vM
        if i:
            I("v_add_u32", T[0], Q0[i] * 7282, vM); t = T[0]
        I("v_lshrrev_b32", T[1], 16, t)
        I("v_lshrrev_b32", DR[i], 17, t)
        I("v_and_b32", DP[i], 1, T[1])
        I("v_mad_i32_i24", DC[i], T[1], sL1, vL16)
        if i == 2:
            I("v_lshrrev_b32", T[2], 1, DR[i]); I("v_and_b32", T[2], 4, T[2]); I("v_xor_b32", DR[i], DR[i], T[2])
        elif i > 2:
            I("v_xor_b32", DR[i], 4, DR[i])
        I("v_mad_u32_u24", T[2], DR[i], sL0, DC[i])
        I("v_mad_u32_u24", vOW[i], DP[i], s1152, T[2])
    wait(lgkm=0)
    if OPT["stamps"] and not OPT["lite"]:
        I("s_memtime", s(100, 2)); wait(lgkm=0); I("s_mov_b32", s(99), s(100))
    I("s_cmp_lg_u32", sA, 0)
    I("s_cselect_b32", SX[0], s(4), s(10)); I("s_cselect_b32", SX[1], s(5), s(11))
    I("s_cselect_b32", SW[0], s(6), s(12)); I("s_cselect_b32", SW[1], s(7), s(13))
    I("s_cselect_b32", SWO[0], s(8), s(16)); I("s_cselect_b32", SWO[1], s(9), s(17))
    emit_groups(stage_dma(0))
    stamp("S0iss")
    I("s_lshl_b32", sT0, sA, 7); I("s_add_u32", sT0, sT0, WS_E)
    I("s_load_dword", sE, s(22, 2), sT0)
    I("v_lshlrev_b32", vL4, 2, vL)
    I("s_mov_b32", SWO[2], 576 * 1152); I("s_mov_b32", SWO[3], 0x20000)
    srd(SWS, s(22), s(23), WS_BYTES)
    srd(SOUT, s(18), s(19), 2048 * 2304)
    I("s_lshl3_add_u32", sL2, sA, sG)
    I("s_lshl_b32", sAG, sL2, 13); I("s_add_u32", sAG, sAG, WS_F)
    I("s_mul_i32", sT1, sSL, 96); I("s_add_u32", sFSL, sAG, sT1)
    I("v_cmp_gt_u32", "vcc", 24, vL)
    I("v_mov_b32", T[4], OOB)
    I("v_mov_b32", M1[0], -1)
    I("v_cndmask_b32", vFS, T[4], vL4, "vcc")
    I("v_and_b32", vN, 15, vL)
    I("v_lshrrev_b32", T[0], 1, vN)
    I("v_xor_b32", T[0], T[0], vGL)
    I("v_lshl_add_u32", T[1], vN, 7, sMX)
    I("v_lshl_add_u32", vXR[0], T[0], 4, T[1])
    I("v_xor_b32", vXR[1], 64, vXR[0])
    I("v_bfe_u32", vR, vL, 2, 2)
    I("v_and_b32", vC, 3, vL)
    I("v_and_b32", T[7], 1, vGL)
    I("v_lshl_add_u32", T[1], vGL, 3, vR)
    I("v_lshl_add_u32", T[2], T[7], 2, T[1])
    I("v_xor_b32", T[3], 4, T[2])
    I("s_movk_i32", sT0, 288); I("v_mov_b32", T[4], WSL)
    I("v_mad_u32_u24", T[2], T[2], sT0, T[4]); I("v_mad_u32_u24", T[3], T[3], sT0, T[4])
    I("v_mul_u32_u24", T[0], 40, vC)
    I("v_lshrrev_b32", T[1], 1, vC)
    I("v_add_u32", vTR[0][0], T[2], T[0]); I("v_add_u32", vTR[0][1], T[3], T[0])
    I("v_lshlrev_b32", T[6], 5, T[1]); I("v_sub_u32", T[6], T[0], T[6])
    I("v_add3_u32", vTR[1][0], T[2], T[6], 24); I("v_add3_u32", vTR[1][1], T[3], T[6], 24)
    I("v_mul_u32_u24", T[6], 72, T[1])
    I("v_add3_u32", vTR[2][0], T[2], T[6], 32); I("v_add3_u32", vTR[2][1], T[3], T[6], 32)
    I("v_lshl_add_u32", vTR[3][0], vC, 3, T[2]); I("v_lshl_add_u32", vTR[3][1], vC, 3, T[3])
    I("v_and_b32", T[6], 1, vC); I("v_mul_u32_u24", T[6], 72, T[6])
    I("v_add3_u32", vTR[4][0], T[2], T[6], 32); I("v_add3_u32", vTR[4][1], T[3], T[6], 32)
    I("s_mov_b32", sT0, 32 * 3456 - 1152); I("s_movk_i32", sT1, 72)
    for i in range(5):
        I("v_mad_u32_u24", vOQ[i], DP[i], sT0, vOW[i])
        I("v_lshl_add_u32", T[0], DP[i], 3, DR[i])
        I("v_and_b32", T[3], 1, DR[i])
        if i == 2:
            I("v_lshrrev_b32", T[1], 3, DR[i])
            I("v_mad_u32_u24", T[0], T[1], 12, T[0])
            I("v_lshl_add_u32", T[3], T[1], 1, T[3])
        elif i > 2:
            I("v_add_u32", T[0], 12, T[0])
        I("v_mad_u32_u24", vOO[i], T[0], s1152, DC[i])
        I("v_bfe_u32", T[2], DR[i], 1, 2)
        I("v_lshl_add_u32", T[2], DP[i], 2, T[2])
        I("v_add_u32", T[2], sG, T[2]); I("v_and_b32", T[2], 7, T[2])
        I("v_add_u32", T[3], 18 if i > 2 else 16, T[3])
        I("v_mad_u32_u24", T[2], T[2], sT1, T[3])
        I("v_mad_u32_u24", vO8[i], T[2], s1152, DC[i])
    for i in range(4): I("v_mov_b32", v(84 + i), 0)
    I("s_mul_i32", sT1, sWV, 384); I("s_add_u32", sT1, sT1, ZERO)
    I("v_min_u32", T[0], 23 * 16, vL16); I("v_add_u32", T[0], sT1, T[0])
    I("ds_write_b128", T[0], v(84, 4))
    I("s_mul_i32", sT0, sWV, 960); I("s_add_u32", sT0, sT0, PHI)
    for i in range(3):
        t = vM
        if i:
            I("v_add_u32", T[0], 64 * i * 7282, vM); t = T[0]
        I("v_lshrrev_b32", T[0], 16, t); I("v_add_u32", T[0], T[0], vL)
        I("v_lshl_add_u32", PA[i], T[0], 2, sT0)
    I("v_cmp_eq_u32", "vcc", vC, vGL)
    I("v_mul_u32_u24", T[0], 40, vR)
    I("v_mul_u32_u24", T[1], 1040, vGL)
    I("v_mov_b32", T[3], ZERO)
    I("v_add3_u32", T[1], T[1], T[0], T[3])
    I("v_add_u32", T[2], (PHI - ZERO) & 0xffffffff, T[1])
    I("v_cndmask_b32", vPH[0], T[3], T[2], "vcc")
    I("v_lshrrev_b32", T[4], 1, vGL); I("v_mul_u32_u24", T[4], 640, T[4])
    I("v_sub_u32", T[2], T[2], T[4]); I("v_add_u32", T[2], 480, T[2])
    I("v_cndmask_b32", vPH[1], T[3], T[2], "vcc")
    I("v_mul_u32_u24", T[1], 1920, vGL); I("v_add_u32", T[1], T[1], T[0]); I("v_add_u32", T[2], KVI, T[1])
    I("v_cndmask_b32", vPSA, T[3], T[2], "vcc")
    I("v_mul_u32_u24", T[1], 960, vGL); I("v_mul_u32_u24", T[4], 640, T[7])
    I("v_sub_u32", T[1], T[1], T[4]); I("v_add_u32", T[1], T[1], T[0]); I("v_add_u32", T[1], PHI + 640, T[1])
    I("v_cndmask_b32", T[1], T[3], T[1], "vcc")
    I("v_cmp_gt_u32", "vcc", 2, vR)
    I("s_mul_i32", sRSB, sL2, 16 * 12288)
    srd(SPHI, s(14), s(15), 32 * 648)
    I("v_cndmask_b32", vPH[2], T[3], T[1], "vcc")
    I("s_lshl2_add_u32", sT0, sG, sWV); I("s_mul_i32", sT0, sT0, 648)
    stamp("P1")
    for i in range(3):
        I("buffer_load_dword", PW[i], vL4, SPHI, sT0, mods="offen offset:%d" % (256 * i))
    I("s_mov_b32", sG144, sL3)
    emit_groups(stage_dma(1))
    I("buffer_store_dword", M1[0], vFS, SWS, sFSL, mods="offen sc1")
    stamp("S1iss")

    def late():
        I("s_and_b32", sL0, sWV, 1); I("s_lshr_b32", sL1, sWV, 1)
        I("s_mul_i32", sL2, sL0, 16 * 3456); I("s_add_u32", sL2, sL2, sG144)
        I("s_add_u32", sQE, sL2, 9 * WSTEP)
        I("s_add_u32", sL3, sL1, sROT); I("s_mul_i32", sL3, sL3, WSTEP); I("s_add_u32", sOQ, sL3, sL2)
        I("s_mul_i32", sO8, sL0, 36 * 1152); I("s_add_u32", sO8, sO8, sG144)
        I("s_add_u32", sOE, sO8, 8 * 82944)
        I("s_add_u32", sL3, sL1, sG); I("s_and_b32", sL3, sL3, 7); I("s_mul_i32", sL3, sL3, 82944); I("s_add_u32", sOO, sL3, sO8)
        I("s_mov_b32", sC[0], f2u(LOG2E)); I("s_mov_b32", sC[1], f2u(LOG2E))
        I("s_mov_b32", sEPS[0], f2u(1e-6)); I("s_mov_b32", sEPS[1], f2u(1e-6))
        I("s_mov_b32", sODD[0], 0xffff0000); I("s_mov_b32", sODD[1], 0xffff0000)
        I("s_add_u32", sE, sE, 1); I("s_and_b32", sTAG, sE, 0xff); I("s_mov_b32", sMSK, 0xffffff00)
        I("s_getreg_b32", sL0, "hwreg(HW_REG_XCC_ID, 0, 4)")
        I("s_lshl4_add_u32", sRV, sE, sL0)
        for i in range(1, 4): I("v_mov_b32", M1[i], -1)
        I("s_mul_i32", sL1, sSL, 3072); I("s_add_u32", sPME, sRSB, sL1)
        I("s_mul_i32", sL1, sSL, 192); I("s_add_u32", sRSB, sRSB, sL1)
        I("s_mul_i32", sL1, sWV, 1536); I("s_add_u32", sAG, sAG, sL1)
        I("s_lshl_b32", sL0, sA, 6); I("s_add_u32", sL0, sL0, sSL)
        I("s_lshl_b32", sRF, sL0, 7); I("s_add_u32", sRF, sRF, WS_R)
        I("s_mul_i32", sOB, sL0, 8 * 4608); I("s_add_u32", sOB, sOB, WS_O)
        I("s_lshl_b32", sL0, sG144, 5); I("s_add_u32", sOU[0], sL0, sOB)
        I("v_add_u32", vL4, 4096, vL4)
        I("v_lshl_add_u32", T[0], vGL, 2, vR)
        I("v_mul_u32_u24", T[0], 72, T[0])
        I("s_lshl_b32", sL0, sMQ, 1)
        I("v_add_u32", T[0], sL0, T[0])
        I("v_lshl_add_u32", vKB0, vC, 3, T[0]); I("v_add_u32", vKB2, 64, T[0])
        for p in range(2):
            for i in (9, 10, 11): I("v_mov_b32", KB[p][i], 0)
            for i in (18, 19): I("v_mov_b32", PH[p][i], 0)
        I("v_mul_u32_u24", T[0], 9216, vGL)
        I("v_mul_u32_u24", T[1], 72, vN)
        I("s_lshr_b32", sL0, sMQ, 1)
        I("v_add3_u32", vIW, T[0], T[1], sL0)
        I("s_mul_i32", sL0, sWV, 5120); I("s_add_u32", sL0, sL0, VF)
        I("v_add_u32", vVW, sL0, vL16)
        I("s_lshl_b32", sL0, sWV, 10); I("s_add_u32", sL0, sL0, VF)
        I("v_add_u32", vAM, sL0, vL16)
        I("s_lshl_b32", sL0, sWV, 1)
        I("v_cmp_gt_u32", "vcc", 2, vN)
        I("v_add_u32", T[3], sL0, vN)
        I("v_and_b32", T[0], 31, vL); I("v_min_u32", T[0], 23, T[0])
        I("v_cndmask_b32", T[3], 8, T[3], "vcc")
        I("v_lshl_add_u32", T[3], vGL, 4, T[3])
        I("v_lshlrev_b32", T[3], 4, T[3]); I("v_add_u32", vAL, VF + 4096, T[3])
        I("v_lshrrev_b32", T[1], 5, vL); I("v_mul_u32_u24", T[1], 8 * 12288, T[1]); I("v_lshl_add_u32", vRSA, T[0], 3, T[1])
        I("v_cmp_gt_u32", "vcc", 4, vN)
        I("v_mov_b32", T[4], OOB)
        I("v_lshl_add_u32", T[0], vGL, 2, vN); I("v_lshlrev_b32", T[0], 4, T[0])
        I("v_cndmask_b32", vP2, T[4], T[0], "vcc")
        I("v_cmp_gt_u32", "vcc", 16, vL)
        I("s_mul_i32", sL1, sWV, 1920); I("s_add_u32", sL1, sL1, KVI)
        I("v_cndmask_b32", vP3, T[4], vL16, "vcc")
        I("v_mul_u32_u24", T[1], 40, vN); I("v_lshl_add_u32", T[1], vGL, 3, T[1])
        I("v_add_u32", vAG1, sL1, T[1])
        I("v_mul_u32_u24", T[2], 40, vC); I("v_lshrrev_b32", T[3], 2, vL)
        I("v_lshl_add_u32", T[2], T[3], 3, T[2]); I("v_add_u32", T[2], 32 * 40, T[2])
        I("v_mul_u32_u24", T[3], 40, vL); I("v_add_u32", T[3], (32 - 16 * 40) & 0xffffffff, T[3])
        I("v_cndmask_b32", T[2], T[3], T[2], "vcc"); I("v_add_u32", vAG2, sL1, T[2])
        for t in range(5):
            I("v_accvgpr_write_b32", PHIF(t, 2)[2], 0); I("v_accvgpr_write_b32", PHIF(t, 2)[3], 0)
    lt = singles(cap(late))

    wait_vm("S0", lgkm=0)
    I("s_barrier")
    stamp("S0land")
    pipe = Pipe(dist=4)
    RT = list(range(-4, 10)) + [10, 10, 11, 11, 12, 12]
    fill = []
    for j in range(9):
        slot = j % 3
        order = [(kap, T_) for kap in range(2) for T_ in range(10)]
        if j == 8: order = [(kap, T_) for T0 in (0, 5) for kap in range(2) for T_ in range(T0, T0 + 5)]
        seen = set()
        for m, (kap, T_) in enumerate(order):
            ks = 2 * j + kap
            ring = RING[(20 * j + m) % 8]
            def rd():
                if kap not in seen:
                    seen.add(kap)
                    for p in range(2):
                        I("ds_read_b128", XF(ks, p), vXR[kap], mods="offset:%d" % (slot * XSLOT + p * 2048))
                tile_read(ring, T_, slot * WSLOT + kap * 9216)
            def work():
                for p in range(2):
                    if T_ < 5: mfma(ACK[p][T_], ring, XF(ks, p), 0 if ks == 0 else ACK[p][T_])
                    else: mfma(ACV[p][T_ - 5], XF(ks, p), ring, 0 if ks == 0 else ACV[p][T_ - 5])
            pipe.add(rd, work, rt=20 * j + RT[m])
        def hook():
            if j < 8: wait_vm("S%d" % (j + 1), lgkm=0)
            else: wait(lgkm=0)
            I("s_barrier")
            if OPT["p1st"]: stamp("b%d" % (j + 1))
        pipe.hooks[20 * j + 16] = cap(hook)
        t0 = max(0, 20 * j - 4)
        if j + 2 < 9: fill += spread(stage_dma(j + 2), t0, 20 * j + 13)
        elif j == 7: fill += spread(wq_pair_dma(0), t0, 20 * j + 13)
        else: fill += spread(wq_pair_dma(2), t0, 20 * j + 8)
    phw = singles(cap(lambda: [I("ds_write_b32", PA[i], PW[i], mods="offset:%d" % (256 * i)) for i in range(3)]))
    def phir():
        for t in range(5):
            for tp in range(5):
                ad, o = (vPH[0], 160 * tp) if tp < 3 else (vPH[tp - 2], 0)
                tr(PHIF(t, tp // 2)[2 * (tp & 1):2 * (tp & 1) + 2], ad, 8 * t + o)
    phr = singles(cap(phir))
    nl = len(lt)
    bulk = spread(lt[:8], -1, -1) + spread(lt[8:30], 0, 24) + spread(phw, 24, 30) + spread(lt[30:40], 30, 42)
    bulk += spread(phr, 42, 80) + spread(lt[40:], 80, 150)
    bulk += spread(singles(cap(lambda: (cv(0), cv(1)))), 178, 180)
    pipe.emit(fill, bulk)
    stamp("pass1")

    def vshadow():
        def f():
            VT = v(168, 8)
            I("v_cmp_eq_u32", "vcc", 8, vN)
            I("v_mov_b32", T[0], 0x3f803f80)
            for t in range(5):
                d = VT[4 * (t & 1):4 * (t & 1) + 4]
                for p in range(2):
                    for h in range(2):
                        I("v_cvt_pk_bf16_f32", d[2 * p + h], ACV[p][t][2 * h], ACV[p][t][2 * h + 1])
                if t == 4:
                    for i in range(4): I("v_cndmask_b32", d[i], d[i], T[0], "vcc")
                I("ds_write_b128", vVW, d, mods="offset:%d" % (1024 * t))
        return cap(f) if not OPT["xk"] & 8 else []
    def kwrites(p):
        if OPT["xk"] & 4: return []
        return singles(cap(lambda: [I("ds_write_b64", vIW, PH[p][2 * i:2 * i + 2], mods="offset:%d" % (IMG + p * 1152 + 8 * i)) for i in range(9)]))
    def kextra(path):
        g = wq_pair_dma(4) + wq_pair_dma(6) + only_waves01(wq_pair_dma(8), "q8" + path)
        if OPT["xk"] & 1: return []
        return [(12 + 75 * i // len(g), x) for i, x in enumerate(g)]
    feature_map("k", True, vshadow, kextra, kwrites)
    wait(lgkm=0)
    I("s_barrier")
    stamp("kpost")
    DM = [v(104 + 4 * j, 4) for j in range(3)]; DL = [v(116 + 4 * j, 4) for j in range(3)]
    pipe = Pipe(dist=4, grp=1)
    for src in range(4):
        base = [64, 84, 144][src % 3]
        AM, AL = v(base, 4), v(base + 4, 4)
        BF = [v(base + 8 + 4 * j, 4) for j in range(3)]
        for j in range(3):
            def rd():
                if j == 0: I("ds_read_b128", AM, vAM, mods="offset:%d" % (src * 5120))
                for e in range(2):
                    tr(BF[j][2 * e:2 * e + 2], vKB0 if j < 2 else vKB2, IMG + src * 2304 + e * 1152 + (32 * j if j < 2 else 0))
                if j == 0: I("ds_read_b128", AL, vAL, mods="offset:%d" % (src * 5120))
            def work():
                mfma(DM[j], AM, BF[j], 0 if src == 0 else DM[j])
                mfma(DL[j], AL, BF[j], 0 if src == 0 else DL[j])
            pipe.add(rd, work)
    def rebase(delta):
        for pat in range(3):
            for e in range(2):
                I("v_add_u32", vTR[pat][e], delta & 0xffffffff, vTR[pat][e])
    pipe.emit(at(8, singles(cap(lambda: (I("v_mov_b32", T[0], sTAG), rebase(WQ0 - WSL))))))
    def pstores():
        for D, ad, off in ((DM[0], vL16, 0), (DL[0], vP3, 2304), (DM[1], vL16, 1024), (DL[1], vP3, 2560), (DM[2], vP2, 2048), (DL[2], vP3, 2816)):
            for i in range(4): I("v_and_or_b32", D[i], D[i], sMSK, T[0])
            I("buffer_store_dwordx4", D, ad, SWS, sPME, mods="offen offset:%d sc1" % off)
    pstores()
    stamp("pubP")
    wait(vm=6)
    I("s_barrier")
    stamp("wqland")

    def gemm2(bfrag, offs, rebases, fill, pre=None, k0=0, k1=18):
        pipe = Pipe(dist=4)
        n = 0
        for ks in range(k0, k1):
            for T_ in range(5):
                ring = RING[n % 8]; n += 1
                def rd():
                    if T_ == 0 and ks in rebases: rebase(rebases[ks])
                    tile_read(ring, T_, offs(ks))
                def work():
                    for p in range(2):
                        mfma(ACK[p][T_], ring, bfrag(ks, p), 0 if ks == 0 else ACK[p][T_])
                pipe.add(rd, work, (lambda: pre(ks)) if (pre and T_ == 0) else None)
        pipe.emit(fill)
    RS = v(128, 16)
    vCK = T[6]
    def poison():
        for i in range(4):
            I("buffer_store_dwordx4", M1, vL16, SWS, sOU[0], mods="offen offset:%d sc1" % (1024 * i))
        for i in range(2):
            I("buffer_store_dword", M1[0], vL4, SWS, sOU[0], mods="offen offset:%d sc1" % (256 * i))
    def rs_loads():
        I("s_mov_b32", sT3, sRSB)
        for i in range(8):
            I("buffer_load_dwordx2", RS[2 * i:2 * i + 2], vRSA, SWS, sT3, mods="offen sc1")
            if i < 7: I("s_add_u32", sT3, sT3, 12288)
    def rs_reduce():
        for i in range(16): I("v_and_b32", RS[i], sMSK, RS[i])
        for st in (8, 4, 2):
            for i in range(st): I("v_add_f32", RS[i], RS[i], RS[i + st])
        I("v_mov_b32", RS[2], RS[0]); I("v_mov_b32", RS[3], RS[1])
        I("v_permlane32_swap_b32", RS[0], RS[2]); I("v_permlane32_swap_b32", RS[1], RS[3])
        I("v_add_f32", RS[0], RS[0], RS[2]); I("v_add_f32", RS[1], RS[1], RS[3])
        I("v_cvt_pk_bf16_f32", RS[0], RS[0], RS[1])
        I("buffer_store_dword", RS[0], vFS, SWS, sFSL, mods="offen sc1")
    def rflag():
        I("v_mov_b32", T[7], sRV); I("s_lshl_b32", sT1, sG, 2); I("v_mov_b32", T[8], sT1)
        I("buffer_store_dword", T[7], T[8], SWS, sRF, mods="offen sc1")
        if OPT["fast"]:
            I("v_min_u32", T[8], 35, vL); I("v_lshlrev_b32", T[8], 7, T[8])
            I("buffer_load_dword", v(255), T[8], SWS, sOU[0], mods="offen sc1")
    ra, rc = OPT["rs_at"], OPT["rs_chk"]
    fill = at(0, singles(cap(poison)))
    fill += spread(wo_pair_dma(0), 8, ra - 4)
    fill += at(ra, tagged(singles(cap(rs_loads)), "RS"))
    fill += spread(wo_pair_dma(2), ra + 10, rc - 2)
    chk = [cap(lambda: wait_vm("RS"))] + check_tag("rs", vCK, [RS[i] for i in range(16)], rs_loads) + singles(cap(rs_reduce)) + singles(cap(rflag))
    fill += spread(chk, rc, 90)
    if OPT["xk"] & 16: fill = []
    if OPT["xk"] & 32: fill = at(0, singles(cap(poison)))
    if OPT["xk"] & 64: fill = spread(wo_pair_dma(0), 8, ra - 4) + spread(wo_pair_dma(2), ra + 10, rc - 2)
    if OPT["xk"] & 128: fill = at(ra, tagged(singles(cap(rs_loads)), "RS")) + spread(chk, rc, 90)
    if OPT["xk"] & (16 | 32 | 64): P.label("L_back_rs")
    gemm2(XF, lambda ks: ((ks // 2) % 6) * 9216 + (ks & 1) * 144, {12: WQ6 - WQ0}, fill)
    stamp("qgemm")

    AG = v(104, 6); RF = v(112)
    def ag_loads():
        for i in range(3):
            I("buffer_load_dwordx2", AG[2 * i:2 * i + 2], T[5], SWS, sAG, mods="offen offset:%d sc1" % (512 * i))
    def rf_load(): I("buffer_load_dword", RF, T[4], SWS, sRF, mods="offen sc1")
    def qshadow():
        def f():
            I("v_lshlrev_b32", T[5], 3, vL)
            I("v_and_b32", T[4], 7, vL); I("v_lshlrev_b32", T[4], 2, T[4])
            rebase(WO0 - WQ6)
            for u in range(1, 8):
                I("s_add_u32", sT2, sG, u); I("s_and_b32", sT2, sT2, 7)
                I("s_mul_i32", sT2, sT2, 4608); I("s_add_u32", sOU[u], sT2, sOB)
        return cap(f)
    def qextra(path):
        fr = OPT["ag_frac"] if path == "B" else 90
        g = wo_pair_dma(4)
        return [(5 + (fr - 10) * i // len(g), x) for i, x in enumerate(g)] + [(fr, x) for x in singles(cap(ag_loads)) + singles(cap(rf_load))]
    feature_map("q", False, qshadow, qextra, lambda p: [])
    stamp("qpost")
    for t in range(5):
        I("v_accvgpr_write_b32", PSIF(t, 4)[2], 0); I("v_accvgpr_write_b32", PSIF(t, 4)[3], 0)
    wait(vm=1)
    emit_groups(check_sent("ag", vCK, [AG[i] for i in range(6)], ag_loads))
    I("ds_write_b64", vAG1, AG[0:2]); I("ds_write_b64", vAG1, AG[2:4], mods="offset:640"); I("ds_write_b64", vAG2, AG[4:6])
    wait(lgkm=0)
    I("s_barrier")
    stamp("gotkv")

    pipe = Pipe(dist=4)
    for j in range(5):
        for t in (4, 0, 1, 2, 3):
            def rd():
                tr(PSIF(t, j)[0:2], vPSA, 8 * t + 8 * j * 40)
                if j < 4: tr(PSIF(t, j)[2:4], vPSA, 8 * t + (8 * j + 4) * 40)
            def work():
                for p in range(2):
                    mfma(ACK[p][t], PSIF(t, j), PH[p][4 * j:4 * j + 4], 0 if j == 0 else ACK[p][t])
            pipe.add(rd, work)
    def rf_fold(): I("v_xor_b32", vCK, sRV, RF)
    rfchk = [cap(lambda: wait(vm=0))] + check_or_retry("rf", rf_fold, lambda: I("v_cmp_lt_u32", "vcc", 15, vCK), rf_load)
    if OPT["fast"]:
        rfchk += [cap(lambda: I("v_cmp_ne_u32", s(50, 2), 0, vCK))]
    pipe.emit(at(0, rfchk) + spread(wo_pair_dma(6), 4, 14) + at(15, only_waves01(dma5(vO8, SWO, sO8, sMQ, WO6 + 2 * 9216), "o8")))
    pool = list(range(104, 144, 4)) + list(range(176, 256, 4)) + [12, 16, 28, 32, 36, 40]
    OF = {}
    keys = [(0, p, X) for p in range(2) for X in range(2)] + [("L", k, p) for k in range(2) for p in range(2)] + [(u, p, X) for u in range(1, 8) for p in range(2) for X in range(2)]
    for k_, r_ in zip(keys, pool): OF[k_] = v(r_, 4)
    o = ACC
    def ofin(flag):
        for p in range(2):
            for X in range(2):
                for i in range(8 * X, 8 * X + 8, 2):
                    I("v_pk_mul_f32", o[p][i:i + 2], o[p][i:i + 2], o[p][18:20], mods="op_sel:[0,0] op_sel_hi:[1,0]")
                for i in range(4):
                    I("v_cvt_pk_bf16_f32", OF[(0, p, X)][i], o[p][8 * X + 2 * i], o[p][8 * X + 2 * i + 1])
                I("buffer_store_dwordx4", OF[(0, p, X)], vL16, SWS, sOU[0], mods="offen offset:%d%s" % (p * 2048 + X * 1024, flag))
            I("v_pk_mul_f32", o[p][16:18], o[p][16:18], o[p][18:20], mods="op_sel:[0,0] op_sel_hi:[1,0]")
            I("v_cvt_pk_bf16_f32", OF[("L", 0, p)][0], o[p][16], o[p][17])
            I("buffer_store_dword", OF[("L", 0, p)][0], vL4, SWS, sOU[0], mods="offen offset:%d%s" % (p * 256, flag))
    for p in range(2): I("v_add_f32", o[p][18], sEPS[0], o[p][18])
    for p in range(2): I("v_rcp_f32", o[p][18], o[p][18])
    if OPT["fast"]:
        I("s_cmp_lg_u64", s(50, 2), 0)
        I("s_nop", 3)
        I("s_cbranch_scc1", "L_ofar")
        ofin("")
        P.label("L_ofin")
        def far():
            P.label("L_ofar")
            ofin(" sc1")
            I("s_branch", "L_ofin")
        SLOW.append(cap(far))
        I("s_nop", 1)
    else:
        ofin(" sc1")
    stamp("pubO")

    def oload(u):
        for p in range(2):
            for X in range(2):
                I("buffer_load_dwordx4", OF[(u, p, X)], vL16, SWS, sOU[u], mods="offen offset:%d sc1" % (p * 2048 + X * 1024))
        for p in range(2):
            I("buffer_load_dword", OF[("L", u // 4, p)][u % 4], vL4, SWS, sOU[u], mods="offen offset:%d sc1" % (p * 256))
    def oregs(u):
        r = []
        for p in range(2):
            for X in range(2): r += [OF[(u, p, X)][i] for i in range(4)]
            r.append(OF[("L", u // 4, p)][u % 4])
        return r
    def bf(ks, p):
        if ks < 16: return OF[(ks // 2, p, ks & 1)]
        return OF[("L", ks - 16, p)]
    offs = lambda ks: ((ks // 2) % 6) * 9216 + (ks & 1) * 144
    vW1, vW2, vW3, vRD = vIW, vVW, vAM, vAL
    vST = [vP2, vPSA, vKB0, vKB2, vRSA]
    def out_addr():
        I("s_add_u32", sT0, sMQ, OUTB)
        I("v_mul_u32_u24", T[0], 144, vN); I("v_add_u32", T[0], sT0, T[0])
        I("v_mul_u32_u24", T[1], 40, vGL); I("v_add_u32", vW1, T[0], T[1])
        I("v_lshrrev_b32", T[4], 1, vGL)
        I("v_lshlrev_b32", T[2], 5, T[4]); I("v_sub_u32", vW2, vW1, T[2])
        I("v_mul_u32_u24", T[3], 72, T[4]); I("v_add_u32", vW3, T[0], T[3])
        I("v_add_u32", vRD, sT0, vL16)
        I("s_movk_i32", sT1, 2304 - 144)
        for i in range(5):
            t = vM
            if i:
                I("v_add_u32", T[3], Q0[i] * 7282, vM); t = T[3]
            I("v_lshrrev_b32", T[0], 16, t)
            I("v_mad_u32_u24", vST[i], T[0], sT1, vL16)
        I("s_mul_i32", sT0, sSL, 32 * 2304)
        I("s_add_u32", sT0, sT0, sG144)
        I("s_xor_b32", sT1, sA, 1); I("s_mul_i32", sT1, sT1, 1152); I("s_add_u32", sOUTB, sT0, sT1)
    NPRE = OPT["npre"]
    if OPT["ackw"]:
        gemm2(bf, offs, {}, spread(singles(cap(out_addr)), 0, 10), k0=0, k1=2)
        wait(vm=0)
        I("s_barrier")
        stamp("ackO")
        for u in range(1, NPRE + 1): P.put(tagged([cap(lambda: oload(u))], "O%d" % u)[0])
        k0 = 2; fill = []
    else:
        wait(vm=6)
        I("s_barrier")
        stamp("ackO")
        k0 = 0; fill = []
        g = []
        for u in range(1, NPRE + 1): g += tagged(singles(cap(lambda: oload(u))), "O%d" % u)
        fill = spread(g, 0, 9)
    def pre(ks):
        if ks >= 16 or ks & 1 or ks == 0: return
        u = ks // 2
        wait_vm("O%d" % u)
        emit_groups(check_sent("o%d" % u, vCK, oregs(u), lambda: oload(u)))
        if OPT["ost"] and u in (1, 3, 5, 7): stamp("u%d" % u)
    for u in range(NPRE + 1, 8):
        fill += at((u - NPRE) * 10 - 5 * k0, tagged(singles(cap(lambda: oload(u))), "O%d" % u))
    if not OPT["ackw"]: fill += spread(singles(cap(out_addr)), 56, 80)
    gemm2(bf, offs, {12: WO6 - WO0}, fill, pre=pre, k0=k0, k1=18)
    stamp("ogemm")
    OUTR = v(104, 20)
    for p in range(2):
        for t in range(5):
            for h in range(2):
                I("v_cvt_pk_bf16_f32", OUTR[10 * p + 2 * t + h], ACK[p][t][2 * h], ACK[p][t][2 * h + 1])
            ad, off = (vW1, 8 * t) if t < 3 else ((vW2, 24) if t == 3 else (vW3, 32))
            I("ds_write_b64", ad, OUTR[10 * p + 2 * t:10 * p + 2 * t + 2], mods="offset:%d" % (off + p * 2304))
    OB = v(176, 20)
    for i in range(5):
        I("ds_read_b128", OB[4 * i:4 * i + 4], vRD, mods="offset:%d" % (16 * Q0[i]))
    fl = ["", " sc1", " nt", " sc0 sc1"][OPT["outflag"]]
    wait(lgkm=4)
    I("s_mov_b32", "exec_hi", 0)
    I("buffer_store_dwordx4", OB[0:4], vST[0], SOUT, sOUTB, mods="offen" + fl)
    I("s_mov_b32", "exec_hi", -1)
    for i in range(1, 5):
        wait(lgkm=4 - i)
        I("buffer_store_dwordx4", OB[4 * i:4 * i + 4], vST[i], SOUT, sOUTB, mods="offen offset:%d%s" % (16 * Q0[i], fl))
    I("s_or_b32", sT0, sSL, sG)
    I("s_cmp_lg_u32", sT0, 0)
    I("s_cbranch_scc1", "L_noep")
    I("s_lshl_b32", sT0, sA, 7); I("s_add_u32", sT0, sT0, WS_E)
    I("v_mov_b32", T[0], 0); I("v_mov_b32", T[1], sE)
    I("buffer_store_dword", T[1], T[0], SWS, sT0, mods="offen")
    P.label("L_noep")
    if OPT["stamps"]:
        stamp("stiss")
        P.label("L_fin")
        OPT["mute"] = 0
        wait(vm=0)
        stamp("end")
        I("s_memrealtime", s(100, 2))
        wait(lgkm=0)
        n = len(stamp_names)
        for k in range(n):
            if OPT["lite"] and k != OPT["amp"] and k != n - 1: continue
            assert OPT["lite"] or n <= 21
            I("s_sub_u32", STAMPS[k], STAMPS[k], s(98))
            I("v_mov_b32", v(64 + k), STAMPS[k])
        if not OPT["lite"]:
            I("s_sub_u32", s(99), s(99), s(98)); I("v_mov_b32", v(64 + n), s(99)); stamp_names.append("karg")
        I("v_mov_b32", v(64 + 30), s(96)); I("v_mov_b32", v(64 + 31), s(100))
        I("s_lshl_b32", sT0, s(2), 2); I("s_add_u32", sT0, sT0, sWV); I("s_lshl_b32", sT0, sT0, 7); I("s_add_u32", sT0, sT0, WS_ST)
        I("v_mov_b32", T[0], 0)
        I("s_mov_b64", "exec", 1)
        for q in range(8):
            I("buffer_store_dwordx4", v(64 + 4 * q, 4), T[0], SWS, sT0, mods="offen offset:%d" % (16 * q))
        if OPT["amp"] >= 0:
            if OPT["ampsel"]:
                I("s_cmp_lg_u32", sA, 1 if OPT["ampsel"] == 1 else 0)
                I("s_cbranch_scc1", "L_end")
            I("s_lshl_b32", sT2, STAMPS[OPT["amp"]], 2)
            I("s_add_u32", sT2, sT2, STAMPS[n - 1])
            P.label("L_amp")
            I("s_memtime", s(100, 2)); wait(lgkm=0)
            I("s_sub_u32", sT1, s(100), s(98))
            I("s_cmp_lt_u32", sT1, sT2)
            I("s_cbranch_scc1", "L_amp")
    P.label("L_end")
    I("s_endpgm")
    for sl in SLOW: P.put(sl)

HEADER = open("cdna_kernels/%s.s.ref" % NAME).read().split("; Override launch")[0]

def wrap(body):
    txt = HEADER + "; @launch grid=(256,1,1) block=(256,1,1) lds=%d\n" % LDS_BYTES
    txt += "; stamps: %s\n" % ",".join(stamp_names) if stamp_names else ""
    txt += '.amdgcn_target "amdgcn-amd-amdhsa--gfx950"\n.text\n.globl %s_kernel\n.p2align 8\n.type %s_kernel,@function\n' % (NAME, NAME)
    txt += ".set CODE_SPAN, (L_end - %s_kernel - 64) & 0xffffff80\n" % NAME
    txt += "%s_kernel:\n%s\n" % (NAME, body)
    txt += """.section .rodata,"a"
.p2align 6
.amdhsa_kernel %s_kernel
  .amdhsa_next_free_vgpr 512
  .amdhsa_next_free_sgpr 102
  .amdhsa_accum_offset 256
  .amdhsa_group_segment_fixed_size 0
  .amdhsa_kernarg_size 80
  .amdhsa_user_sgpr_count 2
  .amdhsa_user_sgpr_kernarg_segment_ptr 1
  .amdhsa_system_sgpr_workgroup_id_x 1
.end_amdhsa_kernel
""" % NAME
    return txt

def main(out):
    build()
    txt = P.finalize2(wrap)
    open(out, "w").write(txt)
    print("wrote", out, "hazard nops:", P.nops, "align fixes:", P.fixes, "bytes:", P.bytes)

if __name__ == "__main__":
    out = sys.argv[1]
    for kv in sys.argv[2:]:
        k, val = kv.split("=")
        assert k in OPT, k
        OPT[k] = val if k == "stop" else int(val)
    main(out)
```

```python
import sys, struct
from asmdsl import *

NAME = "concat_heads__linear_attn_block__linear_kernel_hedgehog__prompt"
OPT = dict(stamps=0, nphase=2, amp=-1, ampsel=0, lite=0, outflag=0, rs_at=40, rs_chk=64, ag_frac=50, npre=3, ackw=1,
           stop="", p1st=0, fast=0, ost=0, xk=0)

def f2u(x): return struct.unpack("<I", struct.pack("<f", x))[0]
LOG2E = 1.4426950408889634

XSLOT = 16384
WSL = 49152; WSLOT = 18432
WQ0 = 104448
WQ6 = 76800
PHI = 104448
ZERO = 159744
IMG = 0
VF = 36864
KVI = 57344
WO0 = 0
WO6 = 104448
OUTB = 76800
LDS_BYTES = 163840
WS_F = 0x300000; WS_E = 0x380000; WS_R = 0x390000; WS_O = 0x400000; WS_ST = 0x900000; WS_BYTES = 0xA00000
OOB = 0x7ffffff0
SPIN = 30000
Q0 = [0, 32, 96, 160, 224]
WSTEP = 64 * 3456

SX, SW, SWO, SWS, SOUT, SPHI = s(24, 4), s(28, 4), s(32, 4), s(36, 4), s(40, 4), s(48, 4)
sL0, sL1, sL2, sL3 = s(44), s(45), s(46), s(47)
sA, sRT, sG, sWV = s(52), s(53), s(54), s(55)
sOQ, sOX, sOW = s(56), s(57), s(58)
s1152 = s(59)
sMX, sMW = s(60), s(61)
sT0, sT1, sT2, sT3 = s(62), s(63), s(64), s(65)
sSL = s(66)
sROT = s(67)
sPME, sRSB, sRF, sOB = s(68), s(69), s(70), s(71)
sCNT = s(72)
sFSL = s(73)
sC = s(74, 2)
sEPS = s(76, 2)
sODD = s(78, 2)
sMQ = s(80)
sOO = s(81)
sPC = s(82, 2)
sTAG, sMSK = s(82), s(83)
sOU = [s(84 + u) for u in range(8)]
sAG = s(92)
sO8 = s(93)
sOUTB = s(94)
sE = s(95)
sG144 = s(48); sRV = s(49); sQE = s(50); sOE = s(51)
STAMPS = [s(3)] + [s(4 + i % 20) for i in range(28)]

vL = v(0)
T = [v(i) for i in range(1, 10)]
vOX = [v(10 + i) for i in range(4)]
vOW = [v(14 + i) for i in range(5)]
vXR = [v(19), v(20)]
vTR = [[v(21 + 2 * p + e) for e in range(2)] for p in range(5)]
vOQ = [v(31 + i) for i in range(5)]
vOO = [v(36 + i) for i in range(5)]
vO8 = [v(41 + i) for i in range(5)]
vL16 = v(46)
vGL, vN = v(47), v(48)
vM, vPSA, vKB0, vKB2, vFS, vL4, vIW, vVW, vAM, vAL, vRSA = [v(49 + i) for i in range(11)]
vP2, vP3, vAG1, vAG2 = v(60), v(61), v(62), v(63)
ACK = [[v(64 + 20 * p + 4 * t, 4) for t in range(5)] for p in range(2)]
ACV = [[v(104 + 20 * p + 4 * t, 4) for t in range(5)] for p in range(2)]
RING = [v(144 + 4 * i, 4) for i in range(8)]
KB = [v(176 + 12 * p, 12) for p in range(2)]
PH = [v(200 + 20 * p, 20) for p in range(2)]
TMP = v(144, 24)
PW = v(240, 3); M1 = v(244, 4); PA = v(248, 3); vR, vC = v(251), v(252)
vPH = [v(243), v(253), v(254)]
def XF(ks, p): return a(ks * 8 + p * 4, 4)
def PHIF(t, j): return a(144 + (t * 3 + j) * 4, 4)
def PSIF(t, j): return a(144 + (t * 5 + j) * 4, 4)

P = Prog()
I = P.I
cap = P.capture
stamp_names = []
def stamp(name):
    if OPT["stamps"] and not OPT.get("mute"):
        k = len(stamp_names); stamp_names.append(name)
        real = True
        if OPT["lite"]:
            real = (k == OPT["amp"] or name == "end")
            if real: STAMPS[k] = s(5) if name == "end" else (s(4) if k else s(3))
        if real:
            I("s_memrealtime" if OPT["lite"] == 2 else "s_memtime", s(100, 2), c="stamp " + name)
            I("s_waitcnt", "lgkmcnt(0)")
            I("s_mov_b32", STAMPS[k], s(100))
    if OPT["stop"] == name:
        I("s_branch", "L_fin"); OPT["mute"] = 1

def wait(vm=None, lgkm=None):
    t = []
    if vm is not None: t.append("vmcnt(%d)" % vm)
    if lgkm is not None: t.append("lgkmcnt(%d)" % lgkm)
    I("s_waitcnt", " ".join(t))
def wait_vm(tag, lgkm=None): P.items.append(VmWait(tag, lgkm))
def tagged(groups, tag):
    for g in groups:
        for x in g:
            if isinstance(x, Ins) and x.kind == "vmem": x.tag = tag
    return groups
def mark(items, **kw):
    for x in items:
        if isinstance(x, Ins):
            for k, val in kw.items(): setattr(x, k, val)
    return items

def srd(dst, lo, hi, size):
    I("s_mov_b32", dst[0], lo); I("s_mov_b32", dst[1], hi)
    I("s_mov_b32", dst[2], size); I("s_mov_b32", dst[3], 0x20000)
def singles(items): return [[x] for x in items]
def emit_groups(groups):
    for g in groups: P.put(g)

def dma5(voffs, srdreg, soff, m0base, m0imm):
    def first():
        I("s_add_u32", "m0", m0base, m0imm)
        I("s_mov_b32", "exec_hi", 0)
        I("buffer_load_dwordx4", voffs[0], srdreg, soff, mods="offen lds")
        I("s_mov_b32", "exec_hi", -1)
    g = [cap(first)]
    for i in range(1, 5):
        g += singles(cap(lambda: I("buffer_load_dwordx4", voffs[i], srdreg, soff, mods="offen offset:%d lds" % (16 * Q0[i]))))
    return g

def wraps_after(j):
    rots = {1: [0], 2: [0, 4], 3: [0, 3, 6]}[OPT["nphase"]]
    return any(r + j == 8 for r in rots) and j < 8
def x_dma(j):
    g = singles(cap(lambda: I("s_add_u32", "m0", sMX, (j % 3) * XSLOT)))
    for i in range(4):
        g += singles(cap(lambda: I("buffer_load_dwordx4", vOX[i], SX, sOX, mods="offen offset:%d lds" % (1024 * i))))
    return tagged(g, "S%d" % j)
def w_dma(j):
    g = tagged(dma5(vOW, SW, sOW, sMW, (j % 3) * WSLOT), "S%d" % j)
    if j < 8:
        g += singles(cap(lambda: (I("s_add_u32", sOX, sOX, 128), I("s_add_u32", sOW, sOW, WSTEP))))
        if wraps_after(j):
            def wr():
                I("s_cmp_eq_u32", sROT, 8 - j)
                I("s_cselect_b32", sT0, 1152, 0); I("s_cselect_b32", sT1, 9 * WSTEP, 0)
            g.append(cap(wr))
            g += singles(cap(lambda: (I("s_sub_u32", sOX, sOX, sT0), I("s_sub_u32", sOW, sOW, sT1))))
    return g
def stage_dma(j): return x_dma(j) + w_dma(j)

def advance(reg, step, end, span):
    def a1():
        I("s_add_u32", reg, reg, step)
        I("s_cmp_ge_u32", reg, end)
        I("s_cselect_b32", sT0, span, 0)
    return [cap(a1)] + singles(cap(lambda: I("s_sub_u32", reg, reg, sT0)))
def wq_pair_dma(j):
    pos = (WQ0 + j * 9216) if j < 6 else (WQ6 + (j - 6) * 9216)
    g = tagged(dma5(vOQ, SW, sOQ, sMQ, pos), "WQ%d" % j)
    if j < 8: g += advance(sOQ, 2 * WSTEP, sQE, 9 * WSTEP)
    return g
def wo_pair_dma(u):
    pos = (WO0 + u * 9216) if u < 6 else (WO6 + (u - 6) * 9216)
    g = tagged(dma5(vOO, SWO, sOO, sMQ, pos), "WO%d" % u)
    if u < 6: g += advance(sOO, 2 * 82944, sOE, 8 * 82944)
    return g
def only_waves01(groups, tag):
    def f():
        I("s_cmp_ge_u32", sWV, 2)
        I("s_cbranch_scc1", "L_skip_" + tag)
        for g in groups: P.put(mark(g, cond=True))
        P.label("L_skip_" + tag)
    return [cap(f)]

def tr(dst, addr, off):
    assert 0 <= off < 65536, off
    I("ds_read_b64_tr_b16", dst, addr, mods="offset:%d" % off)
def mfma(d, x, y, c): I("v_mfma_f32_16x16x32_bf16", d, x, y, c)
def tile_read(dstreg, T_, base_off):
    if T_ < 3: pat, o = 0, 8 * T_
    elif T_ == 3: pat, o = 1, 0
    elif T_ == 4: pat, o = 2, 0
    elif T_ < 9: pat, o = 3, 144 + 8 * [0, 5, 9, 14][T_ - 5]
    else: pat, o = 4, 144
    for e in range(2):
        tr(dstreg[2 * e:2 * e + 2], vTR[pat][e], base_off + o)

class Pipe:
    def __init__(self, dist=4, grp=2):
        self.units = []; self.dist = dist; self.grp = grp; self.hooks = {}
    def add(self, rd, work, pre=None, rt=None):
        k = len(self.units)
        self.units.append((cap(rd), cap(work), cap(pre) if pre else None, k - self.dist if rt is None else rt))
    def emit(self, fill=(), bulk=()):
        fill = list(fill); bulk = list(bulk)
        U = self.units; n = len(U)
        seq = []
        state = dict(done=0)
        def put(items, owner=-1):
            for x in items:
                if isinstance(x, Ins) and x.kind == "ds": seq.append(owner)
                if isinstance(x, Ins) and x.op == "s_waitcnt" and ("lgkmcnt(0)" in x.args[0] or getattr(x, "lgkm", None) == 0): state["done"] = len(seq)
            P.put(items)
        def need_wait(k):
            last = max([i for i, o in enumerate(seq) if o == k] + [-1])
            return last >= state["done"]
        byt = {}
        for k, u in enumerate(U): byt.setdefault(max(u[3], -1), []).append(k)
        for k in byt.get(-1, []): put(U[k][0], k)
        while bulk and bulk[0][0] < 0: put(bulk.pop(0)[1])
        def take(k):
            if fill and fill[0][0] <= k: put(fill.pop(0)[1]); return True
            if bulk and bulk[0][0] <= k + 6: put(bulk.pop(0)[1]); return True
            return False
        for k in range(n):
            if k in self.hooks: put(self.hooks[k])
            if U[k][2]: put(U[k][2])
            if need_wait(k):
                want = [q for q in range(k, min(n, k + self.grp)) if U[q][3] < k - 1 or q == k]
                last = max(i for i, o in enumerate(seq) if o in want)
                later = len(seq) - 1 - last
                assert later <= 15, later
                wait(lgkm=later); state["done"] = last + 1
            nxt = [(x, q) for q in byt.get(k, []) for x in U[q][0]]
            half = (len(nxt) + 1) // 2
            w = U[k][1]
            P.put([w[0]])
            for x, q in nxt[:half]: put([x], q)
            for _ in range(max(0, 2 - half)): take(k)
            P.put(w[1:])
            for x, q in nxt[half:]: put([x], q)
            rest = len(nxt) - half + (1 if (k + 1 < n and need_wait(k + 1)) else 0) + (2 if k + 1 in self.hooks else 0)
            for _ in range(max(0, 2 - rest)): take(k)
            while fill and fill[0][0] <= k - 3: put(fill.pop(0)[1])
            while bulk and bulk[0][0] <= k: put(bulk.pop(0)[1])
        for _, g in fill + bulk: put(g)

def at(unit, groups): return [(unit + i * 2 // 3, g) for i, g in enumerate(groups)]
def spread(groups, first, last):
    n = len(groups)
    return [(first + (last - first) * i // max(1, n), g) for i, g in enumerate(groups)]
def merge(main, extra, start=0, step=2):
    out = []; extra = list(extra)
    for i, x in enumerate(main):
        out.append(x)
        if extra and i >= start and (i - start) % step == step - 1: out += extra.pop(0)
    for g in extra: out += g
    return out

def sm_head(src18, tmp):
    mx, mn = tmp[18], tmp[19]
    I("v_max3_f32", mx, src18[0], src18[1], src18[2]); I("v_min3_f32", mn, src18[0], src18[1], src18[2])
    for i in range(3, 17, 2):
        I("v_max3_f32", mx, mx, src18[i], src18[i + 1]); I("v_min3_f32", mn, mn, src18[i], src18[i + 1])
    I("v_max_f32", mx, mx, src18[17]); I("v_min_f32", mn, mn, src18[17])
    I("v_mul_f32", tmp[20], sC[0], mx); I("v_mul_f32", tmp[21], sC[0], mn)
def sm_tail(src18, out18, tmp):
    ab = tmp[20:22]
    for i in range(0, 18, 2):
        I("v_pk_fma_f32", tmp[i:i + 2], src18[i:i + 2], sC, ab, mods="op_sel:[0,0,1] op_sel_hi:[1,1,1] neg_lo:[1,0,0] neg_hi:[1,0,0]")
        I("v_pk_fma_f32", src18[i:i + 2], src18[i:i + 2], sC, ab, mods="op_sel:[0,0,0] op_sel_hi:[1,1,0] neg_lo:[0,0,1] neg_hi:[0,0,1]")
    sp, sn = tmp[18:20], tmp[20:22]
    for i in range(0, 18, 2):
        for h in range(2):
            I("v_exp_f32", src18[i + h], src18[i + h]); I("v_exp_f32", tmp[i + h], tmp[i + h])
        if i == 4:
            I("v_pk_add_f32", sp, src18[0:2], src18[2:4]); I("v_pk_add_f32", sn, tmp[0:2], tmp[2:4])
        elif i > 4:
            I("v_pk_add_f32", sp, sp, src18[i - 2:i]); I("v_pk_add_f32", sn, sn, tmp[i - 2:i])
    I("v_pk_add_f32", sp, sp, src18[16:18]); I("v_pk_add_f32", sn, sn, tmp[16:18])
    rr = tmp[22:24]
    I("v_add_f32", rr[0], sp[0], sp[1]); I("v_add_f32", rr[1], sn[0], sn[1])
    I("v_rcp_f32", rr[0], rr[0]); I("v_rcp_f32", rr[1], rr[1])
    for i in range(0, 18, 2):
        I("v_pk_mul_f32", src18[i:i + 2], src18[i:i + 2], rr, mods="op_sel:[0,0] op_sel_hi:[1,0]")
    for i in range(9):
        I("v_cvt_pk_bf16_f32", out18[i], src18[2 * i], src18[2 * i + 1])
    for i in range(0, 18, 2):
        I("v_pk_mul_f32", tmp[i:i + 2], tmp[i:i + 2], rr, mods="op_sel:[0,1] op_sel_hi:[1,1]")
    for i in range(9):
        I("v_cvt_pk_bf16_f32", out18[9 + i], tmp[2 * i], tmp[2 * i + 1])

ACC = [v(64 + 20 * p, 20) for p in range(2)]
def cv(p):
    I("v_cndmask_b32", ACC[p][16], ACC[p][16], ACC[p][18], sODD)
    I("v_cndmask_b32", ACC[p][17], ACC[p][17], ACC[p][19], sODD)
    for i in range(9): I("v_cvt_pk_bf16_f32", KB[p][i], ACC[p][2 * i], ACC[p][2 * i + 1])

def chase(body, groups):
    out = []; groups = list(groups)
    lastdef = {}
    for i, x in enumerate(body):
        if isinstance(x, Ins):
            for r in x.defs: lastdef[r] = i
    pos = {}
    for g in groups:
        p_ = max([lastdef.get(r, -1) for x in g for r in x.uses] + [-1])
        pos.setdefault(p_, []).append(g)
    for g in pos.get(-1, []): out += g
    for i, x in enumerate(body):
        out.append(x)
        for g in pos.get(i, []): out += g
    return out

def feature_map(tag, cv_done, shadow, extra_fn, after_p):
    def sprinkle(lst, ex):
        out = []; ex = sorted(ex, key=lambda t: t[0]); n = len(lst)
        for i, x in enumerate(lst):
            out.append(x)
            if ex and ex[0][0] * n <= i * 100: out += ex.pop(0)[1]
        for _, g in ex: out += g
        return out
    I("s_cmp_lg_u32", sA, 0)
    I("s_cbranch_scc1", "L_phiA_" + tag)
    def mm(p):
        for j in range(3):
            for t in range(5):
                mfma(ACK[p][t], PHIF(t, j), KB[p][4 * j:4 * j + 4], 0 if j == 0 else ACK[p][t])
    body = [] if cv_done else cap(lambda: cv(0))
    sh = ([] if cv_done else cap(lambda: cv(1))) + list(shadow())
    for x in cap(lambda: mm(0)):
        body.append(x); body += sh[:2]; sh = sh[2:]
    m1 = cap(lambda: mm(1))
    head0 = cap(lambda: sm_head(ACC[0][0:18], TMP))
    for i, x in enumerate(m1):
        body.append(x)
        if len(sh) < 2 and i >= 3 and head0: sh = sh + head0; head0 = []
        body += sh[:2]; sh = sh[2:]
    body += sh + head0
    body += chase(cap(lambda: sm_tail(ACC[0][0:18], PH[0][0:18], TMP)), after_p(0))
    body += cap(lambda: sm_head(ACC[1][0:18], TMP))
    body += chase(cap(lambda: sm_tail(ACC[1][0:18], PH[1][0:18], TMP)), after_p(1))
    P.put(mark(sprinkle(body, extra_fn("B")), path="B"))
    I("s_branch", "L_phiE_" + tag)
    P.label("L_phiA_" + tag)
    I("s_nop", 7)
    def pa(p):
        x = ACC[p]
        if not cv_done:
            I("v_cndmask_b32", x[16], x[16], x[18], sODD); I("v_cndmask_b32", x[17], x[17], x[19], sODD)
        for i in range(0, 18, 2): I("v_pk_mul_f32", TMP[i:i + 2], x[i:i + 2], sC)
        for i in range(18):
            I("v_exp_f32", TMP[i], TMP[i], mods="clamp")
            I("v_max_f32", x[i], 0, x[i])
        for i in range(0, 18, 2): I("v_pk_add_f32", x[i:i + 2], x[i:i + 2], TMP[i:i + 2])
        for i in range(0, 18, 2): I("v_pk_add_f32", x[i:i + 2], x[i:i + 2], sEPS)
        for i in range(9):
            I("v_cvt_pk_bf16_f32", PH[p][i], x[2 * i], x[2 * i + 1])
            I("v_mov_b32", PH[p][9 + i], 0)
    body = list(shadow())
    for p in range(2): body += chase(cap(lambda: pa(p)), after_p(p))
    P.put(mark(sprinkle(body, extra_fn("A")), path="A"))
    P.label("L_phiE_" + tag)
    I("s_nop", 1)

def umax(dst, regs):
    regs = list(regs)
    I("v_max3_u32", dst, regs[0], regs[1], regs[2]); regs = regs[3:]
    while len(regs) >= 2:
        I("v_max3_u32", dst, dst, regs[0], regs[1]); regs = regs[2:]
    if regs: I("v_max_u32", dst, dst, regs[0])

SLOW = []
def check_or_retry(tag, fold, cmp_bad, loads):
    g = singles(cap(fold))
    def test():
        cmp_bad()
        I("s_cbranch_vccnz", "L_slow_" + tag)
        P.label("L_back_" + tag)
    g.append(cap(test))
    def slow():
        P.label("L_slow_" + tag)
        I("s_mov_b32", sCNT, 0)
        P.label("L_sp_" + tag)
        loads()
        wait(vm=0)
        fold()
        cmp_bad()
        I("s_add_u32", sCNT, sCNT, 1)
        I("s_cmp_gt_u32", sCNT, SPIN)
        I("s_cbranch_scc1", "L_back_" + tag)
        I("s_cbranch_vccnz", "L_sp_" + tag)
        I("s_branch", "L_back_" + tag)
    SLOW.append(cap(slow))
    return g
def check_sent(tag, chk, regs, loads):
    return check_or_retry(tag, lambda: umax(chk, regs), lambda: I("v_cmp_eq_u32", "vcc", -1, chk), loads)
def check_tag(tag, chk, regs, loads):
    def fold():
        I("v_xor_b32", chk, sTAG, regs[0])
        for r in regs[1:]:
            I("v_bitop3_b32", chk, chk, sTAG, r, mods="bitop3:0xf6")
        I("v_and_b32", chk, 0xff, chk)
    return check_or_retry(tag, fold, lambda: I("v_cmp_ne_u32", "vcc", 0, chk), loads)

def build():
    I("s_cmp_ge_u32", s(2), 256)
    I("s_cbranch_scc1", "L_end")
    I("s_load_dwordx16", s(4, 16), s(0, 2), 0)
    I("s_load_dwordx4", s(20, 4), s(0, 2), 64)
    I("s_getpc_b64", sPC)
    I("s_and_b32", sT0, s(2), 0xf8)
    I("v_lshrrev_b32", T[0], 5, v(0))
    I("v_add_lshl_u32", T[1], T[0], sT0, 7)
    I("v_min_u32", T[1], "CODE_SPAN", T[1])
    I("global_load_dword", v(255), T[1], sPC)
    if OPT["stamps"]:
        I("s_memtime", s(98, 2)); I("s_memrealtime", s(96, 2))
    I("v_readfirstlane_b32", sWV, T[0])
    I("v_and_b32", vL, 63, v(0))
    I("s_bfe_u32", sA, s(2), 0x10002)
    I("s_and_b32", sT0, s(2), 3)
    I("s_lshr_b32", sT1, s(2), 6)
    I("s_lshr_b32", sWV, sWV, 1)
    I("s_lshl2_add_u32", sRT, sT0, sT1)
    I("s_bfe_u32", sG, s(2), 0x30003)
    if OPT["nphase"] == 3:
        I("s_add_u32", sT0, sG, sT1)
        I("s_mul_i32", sT1, sT0, 86)
        I("s_lshr_b32", sT1, sT1, 8)
        I("s_mul_i32", sT1, sT1, 3)
        I("s_sub_u32", sT0, sT0, sT1)
        I("s_mul_i32", sROT, sT0, 3)
    elif OPT["nphase"] == 2:
        I("s_add_u32", sT0, sG, sT1)
        I("s_and_b32", sT0, sT0, 1)
        I("s_lshl_b32", sROT, sT0, 2)
    else:
        I("s_mov_b32", sROT, 0)
    I("s_lshl2_add_u32", sSL, sRT, sWV)
    I("s_mul_i32", sOX, sSL, 32 * 1152)
    I("s_lshl_b32", sT0, sROT, 7)
    I("s_add_u32", sOX, sOX, sT0)
    I("s_lshl_b32", sMX, sWV, 12)
    I("s_mul_i32", sMQ, sWV, 4608)
    I("s_add_u32", sMW, sMQ, WSL)
    I("s_movk_i32", s1152, 1152)
    I("v_lshrrev_b32", T[0], 3, vL)
    I("v_mul_u32_u24", T[0], s1152, T[0])
    I("v_lshrrev_b32", vGL, 4, vL)
    I("v_and_b32", T[1], 7, vL)
    I("v_xor_b32", T[1], T[1], vGL)
    I("v_lshl_add_u32", vOX[0], T[1], 4, T[0])
    I("v_xor_b32", vOX[1], 64, vOX[0])
    I("v_add_u32", vOX[2], 16 * 1152 - 2048, vOX[0])
    I("v_add_u32", vOX[3], 24 * 1152 - 3072, vOX[1])
    I("v_add_u32", vOX[1], 8 * 1152 - 1024, vOX[1])
    I("s_mov_b32", SX[2], 2048 * 1152); I("s_mov_b32", SX[3], 0x20000)
    I("s_mov_b32", SW[2], 576 * 3456); I("s_mov_b32", SW[3], 0x20000)
    I("s_mul_i32", sL3, sG, 144)
    I("s_lshl2_add_u32", sT0, sROT, sWV)
    I("s_mul_i32", sOW, sT0, 16 * 3456)
    I("s_add_u32", sOW, sOW, sL3)
    I("s_add_u32", sOW, sOW, s1152)
    I("s_movk_i32", sL0, 3456); I("s_movk_i32", sL1, -144)
    I("v_lshlrev_b32", vL16, 4, vL)
    I("v_mul_u32_u24", vM, 7282, vL)
    DR = [v(64 + i) for i in range(5)]; DP = [v(70 + i) for i in range(5)]; DC = [v(76 + i) for i in range(5)]
    for i in range(5):
        t = vM
        if i:
            I("v_add_u32", T[0], Q0[i] * 7282, vM); t = T[0]
        I("v_lshrrev_b32", T[1], 16, t)
        I("v_lshrrev_b32", DR[i], 17, t)
        I("v_and_b32", DP[i], 1, T[1])
        I("v_mad_i32_i24", DC[i], T[1], sL1, vL16)
        if i == 2:
            I("v_lshrrev_b32", T[2], 1, DR[i]); I("v_and_b32", T[2], 4, T[2]); I("v_xor_b32", DR[i], DR[i], T[2])
        elif i > 2:
            I("v_xor_b32", DR[i], 4, DR[i])
        I("v_mad_u32_u24", T[2], DR[i], sL0, DC[i])
        I("v_mad_u32_u24", vOW[i], DP[i], s1152, T[2])
    wait(lgkm=0)
    if OPT["stamps"] and not OPT["lite"]:
        I("s_memtime", s(100, 2)); wait(lgkm=0); I("s_mov_b32", s(99), s(100))
    I("s_cmp_lg_u32", sA, 0)
    I("s_cselect_b32", SX[0], s(4), s(10)); I("s_cselect_b32", SX[1], s(5), s(11))
    I("s_cselect_b32", SW[0], s(6), s(12)); I("s_cselect_b32", SW[1], s(7), s(13))
    I("s_cselect_b32", SWO[0], s(8), s(16)); I("s_cselect_b32", SWO[1], s(9), s(17))
    emit_groups(stage_dma(0))
    stamp("S0iss")
    I("s_lshl_b32", sT0, sA, 7); I("s_add_u32", sT0, sT0, WS_E)
    I("s_load_dword", sE, s(22, 2), sT0)
    I("v_lshlrev_b32", vL4, 2, vL)
    I("s_mov_b32", SWO[2], 576 * 1152); I("s_mov_b32", SWO[3], 0x20000)
    srd(SWS, s(22), s(23), WS_BYTES)
    srd(SOUT, s(18), s(19), 2048 * 2304)
    I("s_lshl3_add_u32", sL2, sA, sG)
    I("s_lshl_b32", sAG, sL2, 13); I("s_add_u32", sAG, sAG, WS_F)
    I("s_mul_i32", sT1, sSL, 96); I("s_add_u32", sFSL, sAG, sT1)
    I("v_cmp_gt_u32", "vcc", 24, vL)
    I("v_mov_b32", T[4], OOB)
    I("v_mov_b32", M1[0], -1)
    I("v_cndmask_b32", vFS, T[4], vL4, "vcc")
    I("v_and_b32", vN, 15, vL)
    I("v_lshrrev_b32", T[0], 1, vN)
    I("v_xor_b32", T[0], T[0], vGL)
    I("v_lshl_add_u32", T[1], vN, 7, sMX)
    I("v_lshl_add_u32", vXR[0], T[0], 4, T[1])
    I("v_xor_b32", vXR[1], 64, vXR[0])
    I("v_bfe_u32", vR, vL, 2, 2)
    I("v_and_b32", vC, 3, vL)
    I("v_and_b32", T[7], 1, vGL)
    I("v_lshl_add_u32", T[1], vGL, 3, vR)
    I("v_lshl_add_u32", T[2], T[7], 2, T[1])
    I("v_xor_b32", T[3], 4, T[2])
    I("s_movk_i32", sT0, 288); I("v_mov_b32", T[4], WSL)
    I("v_mad_u32_u24", T[2], T[2], sT0, T[4]); I("v_mad_u32_u24", T[3], T[3], sT0, T[4])
    I("v_mul_u32_u24", T[0], 40, vC)
    I("v_lshrrev_b32", T[1], 1, vC)
    I("v_add_u32", vTR[0][0], T[2], T[0]); I("v_add_u32", vTR[0][1], T[3], T[0])
    I("v_lshlrev_b32", T[6], 5, T[1]); I("v_sub_u32", T[6], T[0], T[6])
    I("v_add3_u32", vTR[1][0], T[2], T[6], 24); I("v_add3_u32", vTR[1][1], T[3], T[6], 24)
    I("v_mul_u32_u24", T[6], 72, T[1])
    I("v_add3_u32", vTR[2][0], T[2], T[6], 32); I("v_add3_u32", vTR[2][1], T[3], T[6], 32)
    I("v_lshl_add_u32", vTR[3][0], vC, 3, T[2]); I("v_lshl_add_u32", vTR[3][1], vC, 3, T[3])
    I("v_and_b32", T[6], 1, vC); I("v_mul_u32_u24", T[6], 72, T[6])
    I("v_add3_u32", vTR[4][0], T[2], T[6], 32); I("v_add3_u32", vTR[4][1], T[3], T[6], 32)
    I("s_mov_b32", sT0, 32 * 3456 - 1152); I("s_movk_i32", sT1, 72)
    for i in range(5):
        I("v_mad_u32_u24", vOQ[i], DP[i], sT0, vOW[i])
        I("v_lshl_add_u32", T[0], DP[i], 3, DR[i])
        I("v_and_b32", T[3], 1, DR[i])
        if i == 2:
            I("v_lshrrev_b32", T[1], 3, DR[i])
            I("v_mad_u32_u24", T[0], T[1], 12, T[0])
            I("v_lshl_add_u32", T[3], T[1], 1, T[3])
        elif i > 2:
            I("v_add_u32", T[0], 12, T[0])
        I("v_mad_u32_u24", vOO[i], T[0], s1152, DC[i])
        I("v_bfe_u32", T[2], DR[i], 1, 2)
        I("v_lshl_add_u32", T[2], DP[i], 2, T[2])
        I("v_add_u32", T[2], sG, T[2]); I("v_and_b32", T[2], 7, T[2])
        I("v_add_u32", T[3], 18 if i > 2 else 16, T[3])
        I("v_mad_u32_u24", T[2], T[2], sT1, T[3])
        I("v_mad_u32_u24", vO8[i], T[2], s1152, DC[i])
    for i in range(4): I("v_mov_b32", v(84 + i), 0)
    I("s_mul_i32", sT1, sWV, 384); I("s_add_u32", sT1, sT1, ZERO)
    I("v_min_u32", T[0], 23 * 16, vL16); I("v_add_u32", T[0], sT1, T[0])
    I("ds_write_b128", T[0], v(84, 4))
    I("s_mul_i32", sT0, sWV, 960); I("s_add_u32", sT0, sT0, PHI)
    for i in range(3):
        t = vM
        if i:
            I("v_add_u32", T[0], 64 * i * 7282, vM); t = T[0]
        I("v_lshrrev_b32", T[0], 16, t); I("v_add_u32", T[0], T[0], vL)
        I("v_lshl_add_u32", PA[i], T[0], 2, sT0)
    I("v_cmp_eq_u32", "vcc", vC, vGL)
    I("v_mul_u32_u24", T[0], 40, vR)
    I("v_mul_u32_u24", T[1], 1040, vGL)
    I("v_mov_b32", T[3], ZERO)
    I("v_add3_u32", T[1], T[1], T[0], T[3])
    I("v_add_u32", T[2], (PHI - ZERO) & 0xffffffff, T[1])
    I("v_cndmask_b32", vPH[0], T[3], T[2], "vcc")
    I("v_lshrrev_b32", T[4], 1, vGL); I("v_mul_u32_u24", T[4], 640, T[4])
    I("v_sub_u32", T[2], T[2], T[4]); I("v_add_u32", T[2], 480, T[2])
    I("v_cndmask_b32", vPH[1], T[3], T[2], "vcc")
    I("v_mul_u32_u24", T[1], 1920, vGL); I("v_add_u32", T[1], T[1], T[0]); I("v_add_u32", T[2], KVI, T[1])
    I("v_cndmask_b32", vPSA, T[3], T[2], "vcc")
    I("v_mul_u32_u24", T[1], 960, vGL); I("v_mul_u32_u24", T[4], 640, T[7])
    I("v_sub_u32", T[1], T[1], T[4]); I("v_add_u32", T[1], T[1], T[0]); I("v_add_u32", T[1], PHI + 640, T[1])
    I("v_cndmask_b32", T[1], T[3], T[1], "vcc")
    I("v_cmp_gt_u32", "vcc", 2, vR)
    I("s_mul_i32", sRSB, sL2, 16 * 12288)
    srd(SPHI, s(14), s(15), 32 * 648)
    I("v_cndmask_b32", vPH[2], T[3], T[1], "vcc")
    I("s_lshl2_add_u32", sT0, sG, sWV); I("s_mul_i32", sT0, sT0, 648)
    stamp("P1")
    for i in range(3):
        I("buffer_load_dword", PW[i], vL4, SPHI, sT0, mods="offen offset:%d" % (256 * i))
    I("s_mov_b32", sG144, sL3)
    emit_groups(stage_dma(1))
    I("buffer_store_dword", M1[0], vFS, SWS, sFSL, mods="offen sc1")
    stamp("S1iss")

    def late():
        I("s_and_b32", sL0, sWV, 1); I("s_lshr_b32", sL1, sWV, 1)
        I("s_mul_i32", sL2, sL0, 16 * 3456); I("s_add_u32", sL2, sL2, sG144)
        I("s_add_u32", sQE, sL2, 9 * WSTEP)
        I("s_add_u32", sL3, sL1, sROT); I("s_mul_i32", sL3, sL3, WSTEP); I("s_add_u32", sOQ, sL3, sL2)
        I("s_mul_i32", sO8, sL0, 36 * 1152); I("s_add_u32", sO8, sO8, sG144)
        I("s_add_u32", sOE, sO8, 8 * 82944)
        I("s_add_u32", sL3, sL1, sG); I("s_and_b32", sL3, sL3, 7); I("s_mul_i32", sL3, sL3, 82944); I("s_add_u32", sOO, sL3, sO8)
        I("s_mov_b32", sC[0], f2u(LOG2E)); I("s_mov_b32", sC[1], f2u(LOG2E))
        I("s_mov_b32", sEPS[0], f2u(1e-6)); I("s_mov_b32", sEPS[1], f2u(1e-6))
        I("s_mov_b32", sODD[0], 0xffff0000); I("s_mov_b32", sODD[1], 0xffff0000)
        I("s_add_u32", sE, sE, 1); I("s_and_b32", sTAG, sE, 0xff); I("s_mov_b32", sMSK, 0xffffff00)
        I("s_getreg_b32", sL0, "hwreg(HW_REG_XCC_ID, 0, 4)")
        I("s_lshl4_add_u32", sRV, sE, sL0)
        for i in range(1, 4): I("v_mov_b32", M1[i], -1)
        I("s_mul_i32", sL1, sSL, 3072); I("s_add_u32", sPME, sRSB, sL1)
        I("s_mul_i32", sL1, sSL, 192); I("s_add_u32", sRSB, sRSB, sL1)
        I("s_mul_i32", sL1, sWV, 1536); I("s_add_u32", sAG, sAG, sL1)
        I("s_lshl_b32", sL0, sA, 6); I("s_add_u32", sL0, sL0, sSL)
        I("s_lshl_b32", sRF, sL0, 7); I("s_add_u32", sRF, sRF, WS_R)
        I("s_mul_i32", sOB, sL0, 8 * 4608); I("s_add_u32", sOB, sOB, WS_O)
        I("s_lshl_b32", sL0, sG144, 5); I("s_add_u32", sOU[0], sL0, sOB)
        I("v_add_u32", vL4, 4096, vL4)
        I("v_lshl_add_u32", T[0], vGL, 2, vR)
        I("v_mul_u32_u24", T[0], 72, T[0])
        I("s_lshl_b32", sL0, sMQ, 1)
        I("v_add_u32", T[0], sL0, T[0])
        I("v_lshl_add_u32", vKB0, vC, 3, T[0]); I("v_add_u32", vKB2, 64, T[0])
        for p in range(2):
            for i in (9, 10, 11): I("v_mov_b32", KB[p][i], 0)
            for i in (18, 19): I("v_mov_b32", PH[p][i], 0)
        I("v_mul_u32_u24", T[0], 9216, vGL)
        I("v_mul_u32_u24", T[1], 72, vN)
        I("s_lshr_b32", sL0, sMQ, 1)
        I("v_add3_u32", vIW, T[0], T[1], sL0)
        I("s_mul_i32", sL0, sWV, 5120); I("s_add_u32", sL0, sL0, VF)
        I("v_add_u32", vVW, sL0, vL16)
        I("s_lshl_b32", sL0, sWV, 10); I("s_add_u32", sL0, sL0, VF)
        I("v_add_u32", vAM, sL0, vL16)
        I("s_lshl_b32", sL0, sWV, 1)
        I("v_cmp_gt_u32", "vcc", 2, vN)
        I("v_add_u32", T[3], sL0, vN)
        I("v_and_b32", T[0], 31, vL); I("v_min_u32", T[0], 23, T[0])
        I("v_cndmask_b32", T[3], 8, T[3], "vcc")
        I("v_lshl_add_u32", T[3], vGL, 4, T[3])
        I("v_lshlrev_b32", T[3], 4, T[3]); I("v_add_u32", vAL, VF + 4096, T[3])
        I("v_lshrrev_b32", T[1], 5, vL); I("v_mul_u32_u24", T[1], 8 * 12288, T[1]); I("v_lshl_add_u32", vRSA, T[0], 3, T[1])
        I("v_cmp_gt_u32", "vcc", 4, vN)
        I("v_mov_b32", T[4], OOB)
        I("v_lshl_add_u32", T[0], vGL, 2, vN); I("v_lshlrev_b32", T[0], 4, T[0])
        I("v_cndmask_b32", vP2, T[4], T[0], "vcc")
        I("v_cmp_gt_u32", "vcc", 16, vL)
        I("s_mul_i32", sL1, sWV, 1920); I("s_add_u32", sL1, sL1, KVI)
        I("v_cndmask_b32", vP3, T[4], vL16, "vcc")
        I("v_mul_u32_u24", T[1], 40, vN); I("v_lshl_add_u32", T[1], vGL, 3, T[1])
        I("v_add_u32", vAG1, sL1, T[1])
        I("v_mul_u32_u24", T[2], 40, vC); I("v_lshrrev_b32", T[3], 2, vL)
        I("v_lshl_add_u32", T[2], T[3], 3, T[2]); I("v_add_u32", T[2], 32 * 40, T[2])
        I("v_mul_u32_u24", T[3], 40, vL); I("v_add_u32", T[3], (32 - 16 * 40) & 0xffffffff, T[3])
        I("v_cndmask_b32", T[2], T[3], T[2], "vcc"); I("v_add_u32", vAG2, sL1, T[2])
        for t in range(5):
            I("v_accvgpr_write_b32", PHIF(t, 2)[2], 0); I("v_accvgpr_write_b32", PHIF(t, 2)[3], 0)
    lt = singles(cap(late))

    wait_vm("S0", lgkm=0)
    I("s_barrier")
    stamp("S0land")
    pipe = Pipe(dist=4)
    RT = list(range(-4, 10)) + [10, 10, 11, 11, 12, 12]
    fill = []
    for j in range(9):
        slot = j % 3
        order = [(kap, T_) for kap in range(2) for T_ in range(10)]
        if j == 8: order = [(kap, T_) for T0 in (0, 5) for kap in range(2) for T_ in range(T0, T0 + 5)]
        seen = set()
        for m, (kap, T_) in enumerate(order):
            ks = 2 * j + kap
            ring = RING[(20 * j + m) % 8]
            def rd():
                if kap not in seen:
                    seen.add(kap)
                    for p in range(2):
                        I("ds_read_b128", XF(ks, p), vXR[kap], mods="offset:%d" % (slot * XSLOT + p * 2048))
                tile_read(ring, T_, slot * WSLOT + kap * 9216)
            def work():
                for p in range(2):
                    if T_ < 5: mfma(ACK[p][T_], ring, XF(ks, p), 0 if ks == 0 else ACK[p][T_])
                    else: mfma(ACV[p][T_ - 5], XF(ks, p), ring, 0 if ks == 0 else ACV[p][T_ - 5])
            pipe.add(rd, work, rt=20 * j + RT[m])
        def hook():
            if j < 8: wait_vm("S%d" % (j + 1), lgkm=0)
            else: wait(lgkm=0)
            I("s_barrier")
            if OPT["p1st"]: stamp("b%d" % (j + 1))
        pipe.hooks[20 * j + 16] = cap(hook)
        t0 = max(0, 20 * j - 4)
        if j + 2 < 9: fill += spread(stage_dma(j + 2), t0, 20 * j + 13)
        elif j == 7: fill += spread(wq_pair_dma(0), t0, 20 * j + 13)
        else: fill += spread(wq_pair_dma(2), t0, 20 * j + 8)
    phw = singles(cap(lambda: [I("ds_write_b32", PA[i], PW[i], mods="offset:%d" % (256 * i)) for i in range(3)]))
    def phir():
        for t in range(5):
            for tp in range(5):
                ad, o = (vPH[0], 160 * tp) if tp < 3 else (vPH[tp - 2], 0)
                tr(PHIF(t, tp // 2)[2 * (tp & 1):2 * (tp & 1) + 2], ad, 8 * t + o)
    phr = singles(cap(phir))
    nl = len(lt)
    bulk = spread(lt[:8], -1, -1) + spread(lt[8:30], 0, 24) + spread(phw, 24, 30) + spread(lt[30:40], 30, 42)
    bulk += spread(phr, 42, 80) + spread(lt[40:], 80, 150)
    bulk += spread(singles(cap(lambda: (cv(0), cv(1)))), 178, 180)
    pipe.emit(fill, bulk)
    stamp("pass1")

    def vshadow():
        def f():
            VT = v(168, 8)
            I("v_cmp_eq_u32", "vcc", 8, vN)
            I("v_mov_b32", T[0], 0x3f803f80)
            for t in range(5):
                d = VT[4 * (t & 1):4 * (t & 1) + 4]
                for p in range(2):
                    for h in range(2):
                        I("v_cvt_pk_bf16_f32", d[2 * p + h], ACV[p][t][2 * h], ACV[p][t][2 * h + 1])
                if t == 4:
                    for i in range(4): I("v_cndmask_b32", d[i], d[i], T[0], "vcc")
                I("ds_write_b128", vVW, d, mods="offset:%d" % (1024 * t))
        return cap(f) if not OPT["xk"] & 8 else []
    def kwrites(p):
        if OPT["xk"] & 4: return []
        return singles(cap(lambda: [I("ds_write_b64", vIW, PH[p][2 * i:2 * i + 2], mods="offset:%d" % (IMG + p * 1152 + 8 * i)) for i in range(9)]))
    def kextra(path):
        g = wq_pair_dma(4) + wq_pair_dma(6) + only_waves01(wq_pair_dma(8), "q8" + path)
        if OPT["xk"] & 1: return []
        return [(12 + 75 * i // len(g), x) for i, x in enumerate(g)]
    feature_map("k", True, vshadow, kextra, kwrites)
    wait(lgkm=0)
    I("s_barrier")
    stamp("kpost")
    DM = [v(104 + 4 * j, 4) for j in range(3)]; DL = [v(116 + 4 * j, 4) for j in range(3)]
    pipe = Pipe(dist=4, grp=1)
    for src in range(4):
        base = [64, 84, 144][src % 3]
        AM, AL = v(base, 4), v(base + 4, 4)
        BF = [v(base + 8 + 4 * j, 4) for j in range(3)]
        for j in range(3):
            def rd():
                if j == 0: I("ds_read_b128", AM, vAM, mods="offset:%d" % (src * 5120))
                for e in range(2):
                    tr(BF[j][2 * e:2 * e + 2], vKB0 if j < 2 else vKB2, IMG + src * 2304 + e * 1152 + (32 * j if j < 2 else 0))
                if j == 0: I("ds_read_b128", AL, vAL, mods="offset:%d" % (src * 5120))
            def work():
                mfma(DM[j], AM, BF[j], 0 if src == 0 else DM[j])
                mfma(DL[j], AL, BF[j], 0 if src == 0 else DL[j])
            pipe.add(rd, work)
    def rebase(delta):
        for pat in range(3):
            for e in range(2):
                I("v_add_u32", vTR[pat][e], delta & 0xffffffff, vTR[pat][e])
    pipe.emit(at(8, singles(cap(lambda: (I("v_mov_b32", T[0], sTAG), rebase(WQ0 - WSL))))))
    def pstores():
        for D, ad, off in ((DM[0], vL16, 0), (DL[0], vP3, 2304), (DM[1], vL16, 1024), (DL[1], vP3, 2560), (DM[2], vP2, 2048), (DL[2], vP3, 2816)):
            for i in range(4): I("v_and_or_b32", D[i], D[i], sMSK, T[0])
            I("buffer_store_dwordx4", D, ad, SWS, sPME, mods="offen offset:%d sc1" % off)
    pstores()
    stamp("pubP")
    wait(vm=6)
    I("s_barrier")
    stamp("wqland")

    def gemm2(bfrag, offs, rebases, fill, pre=None, k0=0, k1=18):
        pipe = Pipe(dist=4)
        n = 0
        for ks in range(k0, k1):
            for T_ in range(5):
                ring = RING[n % 8]; n += 1
                def rd():
                    if T_ == 0 and ks in rebases: rebase(rebases[ks])
                    tile_read(ring, T_, offs(ks))
                def work():
                    for p in range(2):
                        mfma(ACK[p][T_], ring, bfrag(ks, p), 0 if ks == 0 else ACK[p][T_])
                pipe.add(rd, work, (lambda: pre(ks)) if (pre and T_ == 0) else None)
        pipe.emit(fill)
    RS = v(128, 16)
    vCK = T[6]
    def poison():
        for i in range(4):
            I("buffer_store_dwordx4", M1, vL16, SWS, sOU[0], mods="offen offset:%d sc1" % (1024 * i))
        for i in range(2):
            I("buffer_store_dword", M1[0], vL4, SWS, sOU[0], mods="offen offset:%d sc1" % (256 * i))
    def rs_loads():
        I("s_mov_b32", sT3, sRSB)
        for i in range(8):
            I("buffer_load_dwordx2", RS[2 * i:2 * i + 2], vRSA, SWS, sT3, mods="offen sc1")
            if i < 7: I("s_add_u32", sT3, sT3, 12288)
    def rs_reduce():
        for i in range(16): I("v_and_b32", RS[i], sMSK, RS[i])
        for st in (8, 4, 2):
            for i in range(st): I("v_add_f32", RS[i], RS[i], RS[i + st])
        I("v_mov_b32", RS[2], RS[0]); I("v_mov_b32", RS[3], RS[1])
        I("v_permlane32_swap_b32", RS[0], RS[2]); I("v_permlane32_swap_b32", RS[1], RS[3])
        I("v_add_f32", RS[0], RS[0], RS[2]); I("v_add_f32", RS[1], RS[1], RS[3])
        I("v_cvt_pk_bf16_f32", RS[0], RS[0], RS[1])
        I("buffer_store_dword", RS[0], vFS, SWS, sFSL, mods="offen sc1")
    def rflag():
        I("v_mov_b32", T[7], sRV); I("s_lshl_b32", sT1, sG, 2); I("v_mov_b32", T[8], sT1)
        I("buffer_store_dword", T[7], T[8], SWS, sRF, mods="offen sc1")
        if OPT["fast"]:
            I("v_min_u32", T[8], 35, vL); I("v_lshlrev_b32", T[8], 7, T[8])
            I("buffer_load_dword", v(255), T[8], SWS, sOU[0], mods="offen sc1")
    ra, rc = OPT["rs_at"], OPT["rs_chk"]
    fill = at(0, singles(cap(poison)))
    fill += spread(wo_pair_dma(0), 8, ra - 4)
    fill += at(ra, tagged(singles(cap(rs_loads)), "RS"))
    fill += spread(wo_pair_dma(2), ra + 10, rc - 2)
    chk = [cap(lambda: wait_vm("RS"))] + check_tag("rs", vCK, [RS[i] for i in range(16)], rs_loads) + singles(cap(rs_reduce)) + singles(cap(rflag))
    fill += spread(chk, rc, 90)
    if OPT["xk"] & 16: fill = []
    if OPT["xk"] & 32: fill = at(0, singles(cap(poison)))
    if OPT["xk"] & 64: fill = spread(wo_pair_dma(0), 8, ra - 4) + spread(wo_pair_dma(2), ra + 10, rc - 2)
    if OPT["xk"] & 128: fill = at(ra, tagged(singles(cap(rs_loads)), "RS")) + spread(chk, rc, 90)
    if OPT["xk"] & (16 | 32 | 64): P.label("L_back_rs")
    gemm2(XF, lambda ks: ((ks // 2) % 6) * 9216 + (ks & 1) * 144, {12: WQ6 - WQ0}, fill)
    stamp("qgemm")

    AG = v(104, 6); RF = v(112)
    def ag_loads():
        for i in range(3):
            I("buffer_load_dwordx2", AG[2 * i:2 * i + 2], T[5], SWS, sAG, mods="offen offset:%d sc1" % (512 * i))
    def rf_load(): I("buffer_load_dword", RF, T[4], SWS, sRF, mods="offen sc1")
    def qshadow():
        def f():
            I("v_lshlrev_b32", T[5], 3, vL)
            I("v_and_b32", T[4], 7, vL); I("v_lshlrev_b32", T[4], 2, T[4])
            rebase(WO0 - WQ6)
            for u in range(1, 8):
                I("s_add_u32", sT2, sG, u); I("s_and_b32", sT2, sT2, 7)
                I("s_mul_i32", sT2, sT2, 4608); I("s_add_u32", sOU[u], sT2, sOB)
        return cap(f)
    def qextra(path):
        fr = OPT["ag_frac"] if path == "B" else 90
        g = wo_pair_dma(4)
        return [(5 + (fr - 10) * i // len(g), x) for i, x in enumerate(g)] + [(fr, x) for x in singles(cap(ag_loads)) + singles(cap(rf_load))]
    feature_map("q", False, qshadow, qextra, lambda p: [])
    stamp("qpost")
    for t in range(5):
        I("v_accvgpr_write_b32", PSIF(t, 4)[2], 0); I("v_accvgpr_write_b32", PSIF(t, 4)[3], 0)
    wait(vm=1)
    emit_groups(check_sent("ag", vCK, [AG[i] for i in range(6)], ag_loads))
    I("ds_write_b64", vAG1, AG[0:2]); I("ds_write_b64", vAG1, AG[2:4], mods="offset:640"); I("ds_write_b64", vAG2, AG[4:6])
    wait(lgkm=0)
    I("s_barrier")
    stamp("gotkv")

    pipe = Pipe(dist=4)
    for j in range(5):
        for t in (4, 0, 1, 2, 3):
            def rd():
                tr(PSIF(t, j)[0:2], vPSA, 8 * t + 8 * j * 40)
                if j < 4: tr(PSIF(t, j)[2:4], vPSA, 8 * t + (8 * j + 4) * 40)
            def work():
                for p in range(2):
                    mfma(ACK[p][t], PSIF(t, j), PH[p][4 * j:4 * j + 4], 0 if j == 0 else ACK[p][t])
            pipe.add(rd, work)
    def rf_fold(): I("v_xor_b32", vCK, sRV, RF)
    rfchk = [cap(lambda: wait(vm=0))] + check_or_retry("rf", rf_fold, lambda: I("v_cmp_lt_u32", "vcc", 15, vCK), rf_load)
    if OPT["fast"]:
        rfchk += [cap(lambda: I("v_cmp_ne_u32", s(50, 2), 0, vCK))]
    pipe.emit(at(0, rfchk) + spread(wo_pair_dma(6), 4, 14) + at(15, only_waves01(dma5(vO8, SWO, sO8, sMQ, WO6 + 2 * 9216), "o8")))
    pool = list(range(104, 144, 4)) + list(range(176, 256, 4)) + [12, 16, 28, 32, 36, 40]
    OF = {}
    keys = [(0, p, X) for p in range(2) for X in range(2)] + [("L", k, p) for k in range(2) for p in range(2)] + [(u, p, X) for u in range(1, 8) for p in range(2) for X in range(2)]
    for k_, r_ in zip(keys, pool): OF[k_] = v(r_, 4)
    o = ACC
    def ofin(flag):
        for p in range(2):
            for X in range(2):
                for i in range(8 * X, 8 * X + 8, 2):
                    I("v_pk_mul_f32", o[p][i:i + 2], o[p][i:i + 2], o[p][18:20], mods="op_sel:[0,0] op_sel_hi:[1,0]")
                for i in range(4):
                    I("v_cvt_pk_bf16_f32", OF[(0, p, X)][i], o[p][8 * X + 2 * i], o[p][8 * X + 2 * i + 1])
                I("buffer_store_dwordx4", OF[(0, p, X)], vL16, SWS, sOU[0], mods="offen offset:%d%s" % (p * 2048 + X * 1024, flag))
            I("v_pk_mul_f32", o[p][16:18], o[p][16:18], o[p][18:20], mods="op_sel:[0,0] op_sel_hi:[1,0]")
            I("v_cvt_pk_bf16_f32", OF[("L", 0, p)][0], o[p][16], o[p][17])
            I("buffer_store_dword", OF[("L", 0, p)][0], vL4, SWS, sOU[0], mods="offen offset:%d%s" % (p * 256, flag))
    for p in range(2): I("v_add_f32", o[p][18], sEPS[0], o[p][18])
    for p in range(2): I("v_rcp_f32", o[p][18], o[p][18])
    if OPT["fast"]:
        I("s_cmp_lg_u64", s(50, 2), 0)
        I("s_nop", 3)
        I("s_cbranch_scc1", "L_ofar")
        ofin("")
        P.label("L_ofin")
        def far():
            P.label("L_ofar")
            ofin(" sc1")
            I("s_branch", "L_ofin")
        SLOW.append(cap(far))
        I("s_nop", 1)
    else:
        ofin(" sc1")
    stamp("pubO")

    def oload(u):
        for p in range(2):
            for X in range(2):
                I("buffer_load_dwordx4", OF[(u, p, X)], vL16, SWS, sOU[u], mods="offen offset:%d sc1" % (p * 2048 + X * 1024))
        for p in range(2):
            I("buffer_load_dword", OF[("L", u // 4, p)][u % 4], vL4, SWS, sOU[u], mods="offen offset:%d sc1" % (p * 256))
    def oregs(u):
        r = []
        for p in range(2):
            for X in range(2): r += [OF[(u, p, X)][i] for i in range(4)]
            r.append(OF[("L", u // 4, p)][u % 4])
        return r
    def bf(ks, p):
        if ks < 16: return OF[(ks // 2, p, ks & 1)]
        return OF[("L", ks - 16, p)]
    offs = lambda ks: ((ks // 2) % 6) * 9216 + (ks & 1) * 144
    vW1, vW2, vW3, vRD = vIW, vVW, vAM, vAL
    vST = [vP2, vPSA, vKB0, vKB2, vRSA]
    def out_addr():
        I("s_add_u32", sT0, sMQ, OUTB)
        I("v_mul_u32_u24", T[0], 144, vN); I("v_add_u32", T[0], sT0, T[0])
        I("v_mul_u32_u24", T[1], 40, vGL); I("v_add_u32", vW1, T[0], T[1])
        I("v_lshrrev_b32", T[4], 1, vGL)
        I("v_lshlrev_b32", T[2], 5, T[4]); I("v_sub_u32", vW2, vW1, T[2])
        I("v_mul_u32_u24", T[3], 72, T[4]); I("v_add_u32", vW3, T[0], T[3])
        I("v_add_u32", vRD, sT0, vL16)
        I("s_movk_i32", sT1, 2304 - 144)
        for i in range(5):
            t = vM
            if i:
                I("v_add_u32", T[3], Q0[i] * 7282, vM); t = T[3]
            I("v_lshrrev_b32", T[0], 16, t)
            I("v_mad_u32_u24", vST[i], T[0], sT1, vL16)
        I("s_mul_i32", sT0, sSL, 32 * 2304)
        I("s_add_u32", sT0, sT0, sG144)
        I("s_xor_b32", sT1, sA, 1); I("s_mul_i32", sT1, sT1, 1152); I("s_add_u32", sOUTB, sT0, sT1)
    NPRE = OPT["npre"]
    if OPT["ackw"]:
        gemm2(bf, offs, {}, spread(singles(cap(out_addr)), 0, 10), k0=0, k1=2)
        wait(vm=0)
        I("s_barrier")
        stamp("ackO")
        for u in range(1, NPRE + 1): P.put(tagged([cap(lambda: oload(u))], "O%d" % u)[0])
        k0 = 2; fill = []
    else:
        wait(vm=6)
        I("s_barrier")
        stamp("ackO")
        k0 = 0; fill = []
        g = []
        for u in range(1, NPRE + 1): g += tagged(singles(cap(lambda: oload(u))), "O%d" % u)
        fill = spread(g, 0, 9)
    def pre(ks):
        if ks >= 16 or ks & 1 or ks == 0: return
        u = ks // 2
        wait_vm("O%d" % u)
        emit_groups(check_sent("o%d" % u, vCK, oregs(u), lambda: oload(u)))
        if OPT["ost"] and u in (1, 3, 5, 7): stamp("u%d" % u)
    for u in range(NPRE + 1, 8):
        fill += at((u - NPRE) * 10 - 5 * k0, tagged(singles(cap(lambda: oload(u))), "O%d" % u))
    if not OPT["ackw"]: fill += spread(singles(cap(out_addr)), 56, 80)
    gemm2(bf, offs, {12: WO6 - WO0}, fill, pre=pre, k0=k0, k1=18)
    stamp("ogemm")
    OUTR = v(104, 20)
    for p in range(2):
        for t in range(5):
            for h in range(2):
                I("v_cvt_pk_bf16_f32", OUTR[10 * p + 2 * t + h], ACK[p][t][2 * h], ACK[p][t][2 * h + 1])
            ad, off = (vW1, 8 * t) if t < 3 else ((vW2, 24) if t == 3 else (vW3, 32))
            I("ds_write_b64", ad, OUTR[10 * p + 2 * t:10 * p + 2 * t + 2], mods="offset:%d" % (off + p * 2304))
    OB = v(176, 20)
    for i in range(5):
        I("ds_read_b128", OB[4 * i:4 * i + 4], vRD, mods="offset:%d" % (16 * Q0[i]))
    fl = ["", " sc1", " nt", " sc0 sc1"][OPT["outflag"]]
    wait(lgkm=4)
    I("s_mov_b32", "exec_hi", 0)
    I("buffer_store_dwordx4", OB[0:4], vST[0], SOUT, sOUTB, mods="offen" + fl)
    I("s_mov_b32", "exec_hi", -1)
    for i in range(1, 5):
        wait(lgkm=4 - i)
        I("buffer_store_dwordx4", OB[4 * i:4 * i + 4], vST[i], SOUT, sOUTB, mods="offen offset:%d%s" % (16 * Q0[i], fl))
    I("s_or_b32", sT0, sSL, sG)
    I("s_cmp_lg_u32", sT0, 0)
    I("s_cbranch_scc1", "L_noep")
    I("s_lshl_b32", sT0, sA, 7); I("s_add_u32", sT0, sT0, WS_E)
    I("v_mov_b32", T[0], 0); I("v_mov_b32", T[1], sE)
    I("buffer_store_dword", T[1], T[0], SWS, sT0, mods="offen")
    P.label("L_noep")
    if OPT["stamps"]:
        stamp("stiss")
        P.label("L_fin")
        OPT["mute"] = 0
        wait(vm=0)
        stamp("end")
        I("s_memrealtime", s(100, 2))
        wait(lgkm=0)
        n = len(stamp_names)
        for k in range(n):
            if OPT["lite"] and k != OPT["amp"] and k != n - 1: continue
            assert OPT["lite"] or n <= 21
            I("s_sub_u32", STAMPS[k], STAMPS[k], s(96 if OPT["lite"] == 2 else 98))
            I("v_mov_b32", v(64 + k), STAMPS[k])
        if not OPT["lite"]:
            I("s_sub_u32", s(99), s(99), s(98)); I("v_mov_b32", v(64 + n), s(99)); stamp_names.append("karg")
        I("v_mov_b32", v(64 + 30), s(96)); I("v_mov_b32", v(64 + 31), s(100))
        I("s_lshl_b32", sT0, s(2), 2); I("s_add_u32", sT0, sT0, sWV); I("s_lshl_b32", sT0, sT0, 7); I("s_add_u32", sT0, sT0, WS_ST)
        I("v_mov_b32", T[0], 0)
        I("s_mov_b64", "exec", 1)
        for q in range(8):
            I("buffer_store_dwordx4", v(64 + 4 * q, 4), T[0], SWS, sT0, mods="offen offset:%d" % (16 * q))
        if OPT["amp"] >= 0:
            if OPT["ampsel"]:
                I("s_cmp_lg_u32", sA, 1 if OPT["ampsel"] == 1 else 0)
                I("s_cbranch_scc1", "L_end")
            I("s_lshl_b32", sT2, STAMPS[OPT["amp"]], 3)
            I("s_add_u32", sT2, sT2, STAMPS[n - 1])
            P.label("L_amp")
            I("s_memrealtime" if OPT["lite"] == 2 else "s_memtime", s(100, 2)); wait(lgkm=0)
            I("s_sub_u32", sT1, s(100), s(96 if OPT["lite"] == 2 else 98))
            I("s_cmp_lt_u32", sT1, sT2)
            I("s_cbranch_scc1", "L_amp")
    P.label("L_end")
    I("s_endpgm")
    for sl in SLOW: P.put(sl)

HEADER = open("cdna_kernels/%s.s.ref" % NAME).read().split("; Override launch")[0]

def wrap(body):
    txt = HEADER + "; @launch grid=(256,1,1) block=(256,1,1) lds=%d\n" % LDS_BYTES
    txt += "; stamps: %s\n" % ",".join(stamp_names) if stamp_names else ""
    txt += '.amdgcn_target "amdgcn-amd-amdhsa--gfx950"\n.text\n.globl %s_kernel\n.p2align 8\n.type %s_kernel,@function\n' % (NAME, NAME)
    txt += ".set CODE_SPAN, (L_end - %s_kernel - 64) & 0xffffff80\n" % NAME
    txt += "%s_kernel:\n%s\n" % (NAME, body)
    txt += """.section .rodata,"a"
.p2align 6
.amdhsa_kernel %s_kernel
  .amdhsa_next_free_vgpr 512
  .amdhsa_next_free_sgpr 102
  .amdhsa_accum_offset 256
  .amdhsa_group_segment_fixed_size 0
  .amdhsa_kernarg_size 80
  .amdhsa_user_sgpr_count 2
  .amdhsa_user_sgpr_kernarg_segment_ptr 1
  .amdhsa_system_sgpr_workgroup_id_x 1
.end_amdhsa_kernel
""" % NAME
    return txt

def main(out):
    build()
    txt = P.finalize2(wrap)
    open(out, "w").write(txt)
    print("wrote", out, "hazard nops:", P.nops, "align fixes:", P.fixes, "bytes:", P.bytes)

if __name__ == "__main__":
    out = sys.argv[1]
    for kv in sys.argv[2:]:
        k, val = kv.split("=")
        assert k in OPT, k
        OPT[k] = val if k == "stop" else int(val)
    main(out)
```

```python
import re

class R:
    def __init__(self, kind, idx, n=1):
        self.kind, self.idx, self.n = kind, idx, n
    def __str__(self):
        if self.n == 1: return "%s%d" % (self.kind, self.idx)
        return "%s[%d:%d]" % (self.kind, self.idx, self.idx + self.n - 1)
    def __getitem__(self, i):
        if isinstance(i, slice):
            st = i.start or 0
            en = i.stop if i.stop is not None else self.n
            assert 0 <= st < en <= self.n, (st, en, self.n)
            return R(self.kind, self.idx + st, en - st)
        assert 0 <= i < self.n, (i, self.n)
        return R(self.kind, self.idx + i, 1)
    def regs(self):
        return {(self.kind, self.idx + i) for i in range(self.n)}

def v(i, n=1): return R('v', i, n)
def a(i, n=1): return R('a', i, n)
def s(i, n=1): return R('s', i, n)

class Neg:
    def __init__(self, r): self.r = r
    def __str__(self): return "-" + str(self.r)

TRANS = ("v_exp_f32", "v_rcp_f32", "v_log_f32", "v_rsq_f32", "v_sqrt_f32")

def regs_of(op):
    if isinstance(op, R): return op.regs()
    if isinstance(op, Neg): return op.r.regs()
    if op == "vcc": return {('s', 'vcc')}
    if op == "exec": return {('s', 'exec')}
    if op == "m0": return {('s', 'm0')}
    return set()

class Ins:
    def __init__(self, op, args, mods="", comment=""):
        self.op, self.args, self.mods, self.comment = op, list(args), mods, comment
        self.classify()
    def text(self):
        t = self.op
        if self.args: t += " " + ", ".join(str(x) for x in self.args)
        if self.mods: t += " " + self.mods
        if self.comment: t += "   ; " + self.comment
        return "  " + t
    def classify(self):
        op, A = self.op, self.args
        self.kind = None
        self.defs, self.uses = set(), set()
        self.srcc = set(); self.ab = set(); self.stdata = set()
        if op.startswith("v_mfma"):
            self.kind = "mfma"
            self.defs = regs_of(A[0]); self.ab = regs_of(A[1]) | regs_of(A[2]); self.srcc = regs_of(A[3])
            self.uses = self.ab | self.srcc
            self.passes = 4 if "16x16x32" in op else 8
        elif op.startswith("v_"):
            self.kind = "valu"
            if op.startswith("v_cmp"):
                self.defs = regs_of(A[0]); srcs = A[1:]
            elif op.startswith("v_readfirstlane") or op.startswith("v_readlane"):
                self.defs = regs_of(A[0]); srcs = A[1:]
            elif op.startswith("v_permlane"):
                self.defs = regs_of(A[0]) | regs_of(A[1]); srcs = A
            elif "_co_" in op:
                self.defs = regs_of(A[0]) | regs_of(A[1]); srcs = A[2:]
            else:
                self.defs = regs_of(A[0]); srcs = A[1:]
                if op.startswith("v_fmac") or op.startswith("v_dot2c"): srcs = A
            for x in srcs: self.uses |= regs_of(x)
        elif op.startswith("ds_"):
            self.kind = "ds"
            if op.startswith("ds_read"):
                self.defs = regs_of(A[0]); self.uses = regs_of(A[1])
            else:
                for x in A: self.uses |= regs_of(x)
        elif op.startswith("buffer_") or op.startswith("global_"):
            self.kind = "vmem"
            islds = " lds" in (" " + self.mods)
            self.islds = islds
            if "load" in op and not islds:
                self.defs = regs_of(A[0])
                for x in A[1:]: self.uses |= regs_of(x)
            else:
                for x in A: self.uses |= regs_of(x)
                if islds: self.uses |= {('s', 'm0')}
                if "store" in op and ("x4" in op or "x3" in op):
                    self.stdata = regs_of(A[0]) if op.startswith("buffer_") else regs_of(A[1])
        elif op.startswith("s_"):
            self.kind = "salu"
            if op in ("s_waitcnt", "s_barrier", "s_nop", "s_endpgm", "s_sleep", "s_setprio") or op.startswith("s_cbranch") or op == "s_branch":
                self.kind = "ctl"
            elif op.startswith("s_cmp"):
                for x in A: self.uses |= regs_of(x)
            else:
                self.defs = regs_of(A[0])
                for x in A[1:]: self.uses |= regs_of(x)
        else:
            raise ValueError(op)
    def states(self):
        if self.op == "s_nop": return int(self.args[0]) + 1
        return 1

class Label:
    def __init__(self, name): self.name = name
    def text(self): return self.name + ":"

class Raw:
    def __init__(self, t): self.t = t
    def text(self): return self.t

def need(p, c):
    n = 0
    vg = lambda S: {r for r in S if r[0] in 'va'}
    sg = lambda S: {r for r in S if r[0] == 's'}
    if p.kind == "valu":
        if c.kind == "mfma" and vg(p.defs) & c.uses: n = max(n, 2)
        if c.kind == "vmem" and sg(p.defs) & c.uses: n = max(n, 5)
        if c.kind == "valu":
            if sg(p.defs) & c.uses: n = max(n, 2)
            if c.op.startswith("v_readlane") and sg(p.defs) & c.uses: n = max(n, 4)
            if (c.op.startswith("v_readfirstlane") or c.op.startswith("v_readlane")) and vg(p.defs) & c.uses: n = max(n, 1)
            if p.op in TRANS and vg(p.defs) & c.uses: n = max(n, 1)
            if c.op.startswith("v_permlane") and vg(p.defs) & c.uses: n = max(n, 2)
            if "dpp" in c.mods or "quad_perm" in c.mods or "row_" in c.mods:
                if vg(p.defs) & c.uses: n = max(n, 2)
        if p.op in TRANS and c.kind in ("ds", "vmem") and vg(p.defs) & c.uses: n = max(n, 1)
        if c.kind == "salu" and sg(p.defs) & c.uses: n = max(n, 1)
    if p.kind == "mfma":
        big = {4: 8, 8: 12}[p.passes]
        if c.kind == "mfma":
            if p.defs & c.ab: n = max(n, big)
            if p.defs & c.srcc and not (p.defs == c.srcc and p.passes == c.passes): n = max(n, big - 2)
            if p.defs & c.defs and not (p.defs == c.srcc): n = max(n, big)
        elif c.kind in ("valu", "ds", "vmem"):
            if p.defs & (c.uses | c.defs): n = max(n, big)
            if c.kind == "valu" and p.srcc & c.defs: n = max(n, {4: 3, 8: 7}[p.passes])
    if p.kind == "salu":
        if ('s', 'm0') in p.defs and c.kind == "vmem" and getattr(c, "islds", False): n = max(n, 1)
    if p.kind == "vmem" and p.stdata:
        if p.stdata & c.defs: n = max(n, 2)
    return n

class Prog:
    def __init__(self):
        self.items = []
    def I(self, op, *args, mods="", c=""):
        ins = Ins(op, args, mods, c)
        self.items.append(ins)
        return ins
    def label(self, name): self.items.append(Label(name))
    def raw(self, t): self.items.append(Raw(t))
    def comment(self, t): self.items.append(Raw("  ; ---- " + t))
    def finalize(self):
        out = []
        hist = []
        nops = 0
        for it in self.items:
            if isinstance(it, Ins):
                req = 0
                dist = 0
                for p in reversed(hist):
                    nd = need(p, it)
                    if nd > dist: req = max(req, nd - dist)
                    dist += p.states()
                    if dist >= 14: break
                if req > 0:
                    nop = Ins("s_nop", [req - 1], "", "hazard")
                    out.append(nop); hist.append(nop); nops += 1
                out.append(it); hist.append(it)
                hist = hist[-20:]
            else:
                out.append(it)
        self.nops = nops
        return "\n".join(x.text() for x in out)

def _capture(self, fn):
    saved = self.items
    self.items = []
    fn()
    got = self.items
    self.items = saved
    return got
Prog.capture = _capture
def _put(self, items): self.items.extend(items)
Prog.put = _put

import subprocess, os, tempfile

class VmWait(Ins):
    def __init__(self, tag, lgkm=None):
        self.tag_wait = tag; self.lgkm = lgkm
        Ins.__init__(self, "s_waitcnt", ["vmcnt(0)"], "", "for " + tag)

def resolve_vm(items):
    for i, it in enumerate(items):
        if isinstance(it, VmWait):
            res = []
            paths = [getattr(it, "path", None)] if getattr(it, "path", None) else ["A", "B"]
            for path in paths:
                n = 0; found = False
                for p in reversed(items[:i]):
                    if not isinstance(p, Ins) or p.kind != "vmem": continue
                    pp = getattr(p, "path", None)
                    if pp is not None and pp != path: continue
                    if getattr(p, "tag", None) == it.tag_wait: found = True; break
                    if getattr(p, "cond", False): continue
                    n += 1
                assert found, it.tag_wait
                res.append(n)
            n = min(min(res), 63)
            t = "vmcnt(%d)" % n
            if it.lgkm is not None: t += " lgkmcnt(%d)" % it.lgkm
            it.args = [t]

def sizes_of(text):
    d = tempfile.mkdtemp()
    src = os.path.join(d, "t.s"); obj = os.path.join(d, "t.o")
    open(src, "w").write(text)
    r = subprocess.run(["clang", "-x", "assembler", "-target", "amdgcn-amd-amdhsa", "-mcpu=gfx950", "-c", src, "-o", obj], capture_output=True, text=True)
    assert r.returncode == 0, r.stderr[:2000]
    o = subprocess.run(["llvm-objdump", "-d", "--mcpu=gfx950", obj], capture_output=True, text=True).stdout
    sz = []
    for line in o.splitlines():
        m = re.search(r"//\s*[0-9A-F]{12}:\s*((?:[0-9A-F]{8}\s*)+)", line)
        if m: sz.append(4 * len(m.group(1).split()))
    return sz

def _finalize2(self, wrap, minrun=6):
    resolve_vm(self.items)
    out = []; hist = []; nops = 0
    for it in self.items:
        if isinstance(it, Ins):
            req = 0; dist = 0
            for p in reversed(hist):
                nd = need(p, it)
                if nd > dist: req = max(req, nd - dist)
                dist += p.states()
                if dist >= 14: break
            if req > 0:
                nop = Ins("s_nop", [req - 1], "", "hazard")
                out.append(nop); hist.append(nop); nops += 1
            out.append(it); hist.append(it); hist = hist[-20:]
        else:
            out.append(it)
    self.nops = nops
    ins = [x for x in out if isinstance(x, Ins)]
    sz = sizes_of(wrap("\n".join(x.text() for x in out if not (isinstance(x, Raw) and x.t.startswith(".p2align"))) + "\n" + "".join(".set L_th%s%d%d, L_end\n" % (p, r, w) for p in "AB" for r in range(4) for w in range(4))))
    assert len(sz) == len(ins), (len(sz), len(ins))
    for x, z in zip(ins, sz): x.size = z
    fast8 = lambda x: x.size == 8 and x.kind in ("valu", "salu", "ds") and x.op not in TRANS
    run = [0] * (len(ins) + 1)
    for i in range(len(ins) - 1, -1, -1): run[i] = run[i + 1] + 1 if fast8(ins[i]) else 0
    res = []; addr = 0; k = 0; fixes = 0
    base = getattr(self, "base", 0x300)
    touch = getattr(self, "touch", None)
    points = []
    page = (base + addr) >> 12
    active = False; pending = False
    def add_point(path):
        n = len(points)
        res.append(Label("L_tp%d" % n))
        b = Ins("s_cbranch_execz", ["L_tret"], "", "instruction-cache touch point")
        res.append(b); points.append((b, path))
    for it in out:
        if isinstance(it, Label):
            if it.name == "L_tret0": active = True
            if it.name.startswith("L_notouch"): active = False
            if it.name.startswith("L_dotouch"): active = True
            if touch is not None and it.name in touch: pending = True
        if isinstance(it, Ins):
            if touch is not None and active and (pending or ((base + addr) >> 12) != page):
                add_point(getattr(it, "path", None)); addr += 4
            pending = False
            page = (base + addr) >> 12
            start = run[k] >= minrun and (k == 0 or not fast8(ins[k - 1]) or isinstance(res[-1], Ins) and res[-1].op == "s_cbranch_execz")
            if start and addr % 8 == 4:
                prev = res[-1]
                if isinstance(prev, Ins) and prev.kind == "valu" and prev.size == 4 and not prev.op.startswith(("v_readfirst", "v_permlane", "v_accvgpr", "v_cmp", "v_cndmask")) and not prev.op.endswith("_e64"):
                    prev.op += "_e64"; prev.size = 8
                else:
                    n = Ins("s_nop", [0], "", "align"); res.append(n)
                addr += 4; fixes += 1
            addr += it.size; k += 1
        elif isinstance(it, Raw) and it.t.startswith(".p2align"):
            al = 1 << int(it.t.split()[1])
            addr = ((base + addr + al - 1) // al) * al - base
        res.append(it)
    nr = getattr(self, "rounds", 0)
    heads = {}
    for path in ("A", "B"):
        pts = [i for i, (b, p) in enumerate(points) if p is None or p == path]
        assert touch is None or len(pts) <= 4 * nr, (len(pts), nr)
        for r in range(nr):
            for w in range(4):
                j = 4 * r + w
                if j < len(pts):
                    points[pts[j]][0].args = ["L_tret%d" % r]
                    heads[(path, r, w)] = "L_tp%d" % pts[j]
                else:
                    heads[(path, r, w)] = "L_tret%d" % r
    self.fixes = fixes; self.bytes = addr; self.points = len(points)
    txt = "\n".join(x.text() for x in res)
    sets = "".join(".set L_th%s%d%d, %s\n" % (p, r, w, l) for (p, r, w), l in heads.items())
    return wrap(txt + "\n" + sets)
Prog.finalize2 = _finalize2
```

```python
import sys, struct
from asmdsl import *

NAME = "concat_heads__linear_attn_block__linear_kernel_hedgehog__prompt"
OPT = dict(stamps=0, nphase=2, amp=-1, ampsel=0, lite=0, outflag=0, rs_at=40, rs_chk=62, rs_len=27, ag_frac=56, ag_fracA=90, dA=4, npre=3, t0=16, t1=36, pw=150,
           stop="", p1st=0, touch=1, fine="", itouch=1)

def f2u(x): return struct.unpack("<I", struct.pack("<f", x))[0]
LOG2E = 1.4426950408889634

XSLOT = 16384
WSL = 49152; WSLOT = 18432
WQ0 = 104448
WQ6 = 76800
PHI = 104448
ZERO = 159744
IMG = 0
VF = 36864
KVI = 57344
WO0 = 0
WO6 = 104448
OUTB = 76800
LDS_BYTES = 163840
PGRP = 48 * 4096
WS_F = 0x300000; WS_E = 0x380000; WS_R = 0x390000; WS_O = 0x400000; WS_ST = 0x900000; WS_BYTES = 0xA00000
OOB = 0x7ffffff0
SPIN = 30000
Q0 = [0, 32, 96, 160, 224]
WSTEP = 64 * 3456

SX, SW, SWO, SWS, SOUT, SPHI = s(24, 4), s(28, 4), s(32, 4), s(36, 4), s(40, 4), s(48, 4)
sL0, sL1, sL2, sL3 = s(44), s(45), s(46), s(47)
sA, sRT, sG, sWV = s(52), s(53), s(54), s(55)
sOQ, sOX, sOW = s(56), s(57), s(58)
s1152 = s(59)
sMX, sMW = s(60), s(61)
sT0, sT1, sT2, sT3 = s(62), s(63), s(64), s(65)
sSL = s(66)
sROT = s(67)
sPME, sRSB, sRF, sOB = s(68), s(69), s(70), s(71)
sCNT = s(72)
sFSL = s(73)
sC = s(74, 2)
sEPS = s(76, 2)
sODD = s(78, 2)
sMQ = s(80)
sOO = s(81)
sPC = s(82, 2)
sTAG, sMSK = s(82), s(83)
sOU = [s(84 + u) for u in range(8)]
sAG = s(92)
sO8 = s(93)
sOUTB = s(94)
sE = s(95)
sM8 = s(20); sQ8 = s(21); sPM2 = s(22); sPM3 = s(23)
sG144 = s(48); sRV = s(49); sQE = s(50); sOE = s(51)
STAMPS = [s(3 + i % 17) for i in range(28)]

vL = v(0)
T = [v(i) for i in range(1, 10)]
vOX = [v(10 + i) for i in range(4)]
vOW = [v(14 + i) for i in range(5)]
vXR = [v(19), v(20)]
vTR = [[v(21 + 2 * p + e) for e in range(2)] for p in range(5)]
vOQ = [v(31 + i) for i in range(5)]
vOO = [v(36 + i) for i in range(5)]
vO8 = [v(41 + i) for i in range(5)]
vL16 = v(46)
vGL, vN = v(47), v(48)
vM, vPSA, vKB0, vKB2, vFS, vL4, vIW, vVW, vAM, vAL, vP1 = [v(49 + i) for i in range(11)]
vP2, vP3, vAG1, vAG2 = v(60), v(61), v(62), v(63)
ACK = [[v(64 + 20 * p + 4 * t, 4) for t in range(5)] for p in range(2)]
ACV = [[v(104 + 20 * p + 4 * t, 4) for t in range(5)] for p in range(2)]
RING = [v(144 + 4 * i, 4) for i in range(8)]
KB = [v(176 + 12 * p, 12) for p in range(2)]
PH = [v(200 + 20 * p, 20) for p in range(2)]
TMP = v(144, 24)
PW = v(240, 3); M1 = v(244, 4); PA = v(248, 3); vR, vC = v(251), v(252)
vPH = [v(243), v(253), v(254)]
def XF(ks, p): return a(ks * 8 + p * 4, 4)
def PHIF(t, j): return a(144 + (t * 3 + j) * 4, 4)
def PSIF(t, j): return a(144 + (t * 5 + j) * 4, 4)

P = Prog()
I = P.I
cap = P.capture
stamp_names = []
def fst(name):
    names = OPT["fine"].split(",")
    if name in names:
        k = names.index(name)
        I("s_memtime", s(4 + 2 * k, 2), c="fine " + name)
def stamp(name):
    if OPT["fine"]:
        fst(name)
    elif OPT["stamps"] and not OPT.get("mute"):
        k = len(stamp_names); stamp_names.append(name)
        real = True
        if OPT["lite"]:
            real = (k == OPT["amp"] or name == "end")
            if real: STAMPS[k] = s(5) if name == "end" else (s(4) if k else s(3))
        if real:
            I("s_memrealtime" if OPT["lite"] == 2 else "s_memtime", s(100, 2), c="stamp " + name)
            I("s_waitcnt", "lgkmcnt(0)")
            I("s_mov_b32", STAMPS[k], s(100))
    if OPT["stop"] == name:
        I("s_branch", "L_fin"); OPT["mute"] = 1

def wait(vm=None, lgkm=None):
    t = []
    if vm is not None: t.append("vmcnt(%d)" % vm)
    if lgkm is not None: t.append("lgkmcnt(%d)" % lgkm)
    I("s_waitcnt", " ".join(t))
def wait_vm(tag, lgkm=None): P.items.append(VmWait(tag, lgkm))
def tagged(groups, tag):
    for g in groups:
        for x in g:
            if isinstance(x, Ins) and x.kind == "vmem": x.tag = tag
    return groups
def mark(items, **kw):
    for x in items:
        if isinstance(x, Ins):
            for k, val in kw.items(): setattr(x, k, val)
    return items

def srd(dst, lo, hi, size):
    I("s_mov_b32", dst[0], lo); I("s_mov_b32", dst[1], hi)
    I("s_mov_b32", dst[2], size); I("s_mov_b32", dst[3], 0x20000)
def singles(items): return [[x] for x in items]
def emit_groups(groups):
    for g in groups: P.put(g)

def dma5(voffs, srdreg, soff, m0base, m0imm):
    def first():
        I("s_add_u32", "m0", m0base, m0imm)
        I("s_mov_b32", "exec_hi", 0)
        I("buffer_load_dwordx4", voffs[0], srdreg, soff, mods="offen lds")
        I("s_mov_b32", "exec_hi", -1)
    g = [cap(first)]
    for i in range(1, 5):
        g += singles(cap(lambda: I("buffer_load_dwordx4", voffs[i], srdreg, soff, mods="offen offset:%d lds" % (16 * Q0[i]))))
    return g

def wraps_after(j):
    rots = {1: [0], 2: [0, 4], 3: [0, 3, 6]}[OPT["nphase"]]
    return any(r + j == 8 for r in rots) and j < 8
def x_dma(j):
    g = singles(cap(lambda: I("s_add_u32", "m0", sMX, (j % 3) * XSLOT)))
    for i in range(4):
        g += singles(cap(lambda: I("buffer_load_dwordx4", vOX[i], SX, sOX, mods="offen offset:%d lds" % (1024 * i))))
    return tagged(g, "S%d" % j)
def w_dma(j):
    g = tagged(dma5(vOW, SW, sOW, sMW, (j % 3) * WSLOT), "S%d" % j)
    if j < 8:
        g += singles(cap(lambda: (I("s_add_u32", sOX, sOX, 128), I("s_add_u32", sOW, sOW, WSTEP))))
        if wraps_after(j):
            def wr():
                I("s_cmp_eq_u32", sROT, 8 - j)
                I("s_cselect_b32", sT0, 1152, 0); I("s_cselect_b32", sT1, 9 * WSTEP, 0)
            g.append(cap(wr))
            g += singles(cap(lambda: (I("s_sub_u32", sOX, sOX, sT0), I("s_sub_u32", sOW, sOW, sT1))))
    return g
def stage_dma(j): return x_dma(j) + w_dma(j)

def advance(reg, step, end, span):
    def a1():
        I("s_add_u32", reg, reg, step)
        I("s_cmp_ge_u32", reg, end)
        I("s_cselect_b32", sT0, span, 0)
    return [cap(a1)] + singles(cap(lambda: I("s_sub_u32", reg, reg, sT0)))
def wq_pair_dma(j):
    pos = (WQ0 + j * 9216) if j < 6 else (WQ6 + (j - 6) * 9216)
    if j == 8:
        return singles(cap(lambda: I("s_add_u32", sOQ, sOQ, sQ8))) + tagged(dma5(vOQ, SW, sOQ, sM8, pos), "WQ8")
    g = tagged(dma5(vOQ, SW, sOQ, sMQ, pos), "WQ%d" % j)
    g += advance(sOQ, 2 * WSTEP, sQE, 9 * WSTEP)
    return g
def wo_pair_dma(u):
    pos = (WO0 + u * 9216) if u < 6 else (WO6 + (u - 6) * 9216)
    g = tagged(dma5(vOO, SWO, sOO, sMQ, pos), "WO%d" % u)
    if u < 6: g += advance(sOO, 2 * 82944, sOE, 8 * 82944)
    return g
def only_waves01(groups, tag):
    def f():
        I("s_cmp_ge_u32", sWV, 2)
        I("s_cbranch_scc1", "L_skip_" + tag)
        for g in groups: P.put(mark(g, cond=True))
        P.label("L_skip_" + tag)
    return [cap(f)]

def tr(dst, addr, off):
    assert 0 <= off < 65536, off
    I("ds_read_b64_tr_b16", dst, addr, mods="offset:%d" % off)
def mfma(d, x, y, c): I("v_mfma_f32_16x16x32_bf16", d, x, y, c)
def tile_read(dstreg, T_, base_off):
    if T_ < 3: pat, o = 0, 8 * T_
    elif T_ == 3: pat, o = 1, 0
    elif T_ == 4: pat, o = 2, 0
    elif T_ < 9: pat, o = 3, 144 + 8 * [0, 5, 9, 14][T_ - 5]
    else: pat, o = 4, 144
    for e in range(2):
        tr(dstreg[2 * e:2 * e + 2], vTR[pat][e], base_off + o)

class Pipe:
    def __init__(self, dist=4, grp=2):
        self.units = []; self.dist = dist; self.grp = grp; self.hooks = {}
    def add(self, rd, work, pre=None, rt=None):
        k = len(self.units)
        self.units.append((cap(rd), cap(work), cap(pre) if pre else None, k - self.dist if rt is None else rt))
    def emit(self, fill=(), bulk=()):
        fill = list(fill); bulk = list(bulk)
        U = self.units; n = len(U)
        seq = []
        state = dict(done=0)
        def put(items, owner=-1):
            for x in items:
                if isinstance(x, Ins) and x.kind == "ds": seq.append(owner)
                if isinstance(x, Ins) and x.op == "s_waitcnt" and ("lgkmcnt(0)" in x.args[0] or getattr(x, "lgkm", None) == 0): state["done"] = len(seq)
            P.put(items)
        def need_wait(k):
            last = max([i for i, o in enumerate(seq) if o == k] + [-1])
            return last >= state["done"]
        byt = {}
        for k, u in enumerate(U): byt.setdefault(max(u[3], -1), []).append(k)
        for k in byt.get(-1, []): put(U[k][0], k)
        while bulk and bulk[0][0] < 0: put(bulk.pop(0)[1])
        def take(k):
            if fill and fill[0][0] <= k: put(fill.pop(0)[1]); return True
            if bulk and bulk[0][0] <= k + 6: put(bulk.pop(0)[1]); return True
            return False
        for k in range(n):
            if k in self.hooks: put(self.hooks[k])
            if U[k][2]: put(U[k][2])
            if need_wait(k):
                want = [q for q in range(k, min(n, k + self.grp)) if U[q][3] < k - 1 or q == k]
                last = max(i for i, o in enumerate(seq) if o in want)
                later = len(seq) - 1 - last
                assert later <= 15, later
                wait(lgkm=later); state["done"] = last + 1
            nxt = [(x, q) for q in byt.get(k, []) for x in U[q][0]]
            half = (len(nxt) + 1) // 2
            w = U[k][1]
            P.put([w[0]])
            for x, q in nxt[:half]: put([x], q)
            for _ in range(max(0, 2 - half)): take(k)
            P.put(w[1:])
            for x, q in nxt[half:]: put([x], q)
            rest = len(nxt) - half + (1 if (k + 1 < n and need_wait(k + 1)) else 0) + (2 if k + 1 in self.hooks else 0)
            for _ in range(max(0, 2 - rest)): take(k)
            while fill and fill[0][0] <= k - 3: put(fill.pop(0)[1])
            while bulk and bulk[0][0] <= k: put(bulk.pop(0)[1])
        for _, g in fill + bulk: put(g)

def vm_only(groups):
    out = []
    for g in groups:
        if any(x.kind == "vmem" for x in g) or not out: out.append(list(g))
        else: out[-1] += g
    return out
def weave(a_, b_):
    out = []; na, nb = len(a_), len(b_); i = j = 0
    while i < na or j < nb:
        if j >= nb or (i < na and i * nb <= j * na): out.append(a_[i]); i += 1
        else: out.append(b_[j]); j += 1
    return out
def at(unit, groups): return [(unit + i * 2 // 3, g) for i, g in enumerate(groups)]
def spread(groups, first, last):
    n = len(groups)
    return [(first + (last - first) * i // max(1, n), g) for i, g in enumerate(groups)]
def merge(main, extra, start=0, step=2):
    out = []; extra = list(extra)
    for i, x in enumerate(main):
        out.append(x)
        if extra and i >= start and (i - start) % step == step - 1: out += extra.pop(0)
    for g in extra: out += g
    return out

def sm_head(src18, tmp):
    mx, mn = tmp[18], tmp[19]
    I("v_max3_f32", mx, src18[0], src18[1], src18[2]); I("v_min3_f32", mn, src18[0], src18[1], src18[2])
    for i in range(3, 17, 2):
        I("v_max3_f32", mx, mx, src18[i], src18[i + 1]); I("v_min3_f32", mn, mn, src18[i], src18[i + 1])
    I("v_max_f32", mx, mx, src18[17]); I("v_min_f32", mn, mn, src18[17])
    I("v_mul_f32", tmp[20], sC[0], mx); I("v_mul_f32", tmp[21], sC[0], mn)
def sm_tail(src18, out18, tmp):
    ab = tmp[20:22]
    for i in range(0, 18, 2):
        I("v_pk_fma_f32", tmp[i:i + 2], src18[i:i + 2], sC, ab, mods="op_sel:[0,0,1] op_sel_hi:[1,1,1] neg_lo:[1,0,0] neg_hi:[1,0,0]")
        I("v_pk_fma_f32", src18[i:i + 2], src18[i:i + 2], sC, ab, mods="op_sel:[0,0,0] op_sel_hi:[1,1,0] neg_lo:[0,0,1] neg_hi:[0,0,1]")
    sp, sn = tmp[18:20], tmp[20:22]
    for i in range(0, 18, 2):
        for h in range(2):
            I("v_exp_f32", src18[i + h], src18[i + h]); I("v_exp_f32", tmp[i + h], tmp[i + h])
        if i == 4:
            I("v_pk_add_f32", sp, src18[0:2], src18[2:4]); I("v_pk_add_f32", sn, tmp[0:2], tmp[2:4])
        elif i > 4:
            I("v_pk_add_f32", sp, sp, src18[i - 2:i]); I("v_pk_add_f32", sn, sn, tmp[i - 2:i])
    I("v_pk_add_f32", sp, sp, src18[16:18]); I("v_pk_add_f32", sn, sn, tmp[16:18])
    rr = tmp[22:24]
    I("v_add_f32", rr[0], sp[0], sp[1]); I("v_add_f32", rr[1], sn[0], sn[1])
    I("v_rcp_f32", rr[0], rr[0]); I("v_rcp_f32", rr[1], rr[1])
    def el(d): return (src18[2 * d:2 * d + 2], "op_sel:[0,0] op_sel_hi:[1,0]") if d < 9 else (tmp[2 * (d - 9):2 * (d - 9) + 2], "op_sel:[0,1] op_sel_hi:[1,1]")
    for d in range(0, 18, 2):
        for h in range(2): I("v_pk_mul_f32", el(d + h)[0], el(d + h)[0], rr, mods=el(d + h)[1])
        for h in range(2): I("v_cvt_pk_bf16_f32", out18[d + h], el(d + h)[0][0], el(d + h)[0][1])

ACC = [v(64 + 20 * p, 20) for p in range(2)]
def cv(p):
    I("v_cndmask_b32", ACC[p][16], ACC[p][16], ACC[p][18], sODD)
    I("v_cndmask_b32", ACC[p][17], ACC[p][17], ACC[p][19], sODD)
    for i in range(9): I("v_cvt_pk_bf16_f32", KB[p][i], ACC[p][2 * i], ACC[p][2 * i + 1])

def chase(body, groups):
    out = []; groups = list(groups)
    lastdef = {}
    for i, x in enumerate(body):
        if isinstance(x, Ins):
            for r in x.defs: lastdef[r] = i
    pos = {}
    for g in groups:
        p_ = max([lastdef.get(r, -1) for x in g for r in x.uses] + [-1])
        pos.setdefault(p_, []).append(g)
    for g in pos.get(-1, []): out += g
    for i, x in enumerate(body):
        out.append(x)
        for g in pos.get(i, []): out += g
    return out

def evenly(lst, groups, lo=0, hi=100):
    out = []; groups = list(groups); n = len(lst); m = len(groups)
    pos = [n * lo // 100 + (n * (hi - lo) // 100) * i // max(1, m) for i in range(m)]
    for i, x in enumerate(lst):
        out.append(x)
        while groups and pos[0] <= i:
            out += groups.pop(0); pos.pop(0)
    for g in groups: out += g
    return out

def feature_map(path, tag, cv_done, shadow, mid0, mid1, after_p):
    if path == "B":
        def mm(p):
            for j in range(3):
                for t in range(5):
                    mfma(ACK[p][t], PHIF(t, j), KB[p][4 * j:4 * j + 4], 0 if j == 0 else ACK[p][t])
        body = [] if cv_done else cap(lambda: cv(0))
        sh = ([] if cv_done else singles(cap(lambda: cv(1)))) + list(shadow)
        head0 = singles(cap(lambda: sm_head(ACC[0][0:18], TMP)))
        ms = cap(lambda: (mm(0), mm(1)))
        for i, x in enumerate(ms):
            body.append(x)
            if i == 19: sh = head0 + sh
            k = 0
            while sh and k < 2:
                g = sh.pop(0); body += g; k += len(g)
        for g in sh: body += g
        body += cap(lambda: fst(tag + "mm"))
        body += evenly(cap(lambda: sm_tail(ACC[0][0:18], PH[0][0:18], TMP)), *mid0)
        body += cap(lambda: fst(tag + "t0"))
        t1 = cap(lambda: (sm_head(ACC[1][0:18], TMP), sm_tail(ACC[1][0:18], PH[1][0:18], TMP)))
        t1 = evenly(t1, after_p(0), 2, 66)
        t1 = evenly(t1, *mid1)
        body += chase(t1, after_p(1))
    else:
        def pa(p):
            x = ACC[p]
            if not cv_done:
                I("v_cndmask_b32", x[16], x[16], x[18], sODD); I("v_cndmask_b32", x[17], x[17], x[19], sODD)
            for i in range(0, 18, 2): I("v_pk_mul_f32", TMP[i:i + 2], x[i:i + 2], sC)
            for d in range(9):
                for i in (2 * d, 2 * d + 1):
                    I("v_exp_f32", TMP[i], TMP[i], mods="clamp")
                    I("v_max_f32", x[i], 0, x[i])
                I("v_pk_add_f32", x[2 * d:2 * d + 2], x[2 * d:2 * d + 2], sEPS)
                I("v_pk_add_f32", x[2 * d:2 * d + 2], x[2 * d:2 * d + 2], TMP[2 * d:2 * d + 2])
                I("v_cvt_pk_bf16_f32", KB[p][d], x[2 * d], x[2 * d + 1])
        body = []
        for g in shadow: body += g
        body += cap(lambda: fst(tag + "mm"))
        body += chase(evenly(cap(lambda: pa(0)), *mid0), after_p(0))
        body += cap(lambda: fst(tag + "t0"))
        t1 = cap(lambda: pa(1))
        t1 = evenly(t1, *mid1)
        body += chase(t1, after_p(1))
    P.put(body)
    fst(tag + "t1")

def umax(dst, regs):
    regs = list(regs)
    I("v_max3_u32", dst, regs[0], regs[1], regs[2]); regs = regs[3:]
    while len(regs) >= 2:
        I("v_max3_u32", dst, dst, regs[0], regs[1]); regs = regs[2:]
    if regs: I("v_max_u32", dst, dst, regs[0])

SLOW = []
def check_or_retry(tag, fold, cmp_bad, loads):
    g = singles(cap(fold))
    def test():
        cmp_bad()
        I("s_cbranch_vccnz", "L_slow_" + tag)
        P.label("L_back_" + tag)
    g.append(cap(test))
    def slow():
        P.label("L_slow_" + tag)
        I("s_mov_b32", sCNT, 0)
        P.label("L_sp_" + tag)
        loads()
        wait(vm=0)
        fold()
        cmp_bad()
        I("s_add_u32", sCNT, sCNT, 1)
        I("s_cmp_gt_u32", sCNT, SPIN)
        I("s_cbranch_scc1", "L_back_" + tag)
        I("s_cbranch_vccnz", "L_sp_" + tag)
        I("s_branch", "L_back_" + tag)
    SLOW.append(cap(slow))
    return g
def check_sent(tag, chk, regs, loads):
    return check_or_retry(tag, lambda: umax(chk, regs), lambda: I("v_cmp_eq_u32", "vcc", -1, chk), loads)
def check_tag(tag, chk, regs, loads):
    def fold():
        for r in regs: I("v_xor_b32", r, sTAG, r)
        I("v_or3_b32", chk, regs[0], regs[1], regs[2])
        for i in range(3, len(regs) - 1, 2): I("v_or3_b32", chk, chk, regs[i], regs[i + 1])
        I("v_or_b32", chk, chk, regs[-1])
        I("v_and_b32", chk, 0xff, chk)
    return check_or_retry(tag, fold, lambda: I("v_cmp_ne_u32", "vcc", 0, chk), loads)

def build():
    I("s_cmp_ge_u32", s(2), 256)
    I("s_cbranch_scc1", "L_end")
    I("s_bfe_u32", sA, s(2), 0x10002)
    I("s_cmp_lg_u32", sA, 0)
    I("s_cselect_b32", sT0, 0, 24)
    I("s_cselect_b32", sT1, 8, 32)
    I("s_cselect_b32", sT2, 16, 48)
    I("s_load_dwordx2", SX[0:2], s(0, 2), sT0)
    I("s_load_dwordx2", SW[0:2], s(0, 2), sT1)
    I("s_load_dwordx2", SWO[0:2], s(0, 2), sT2)
    I("s_load_dwordx2", SPHI[0:2], s(0, 2), 40)
    I("s_load_dwordx2", SOUT[0:2], s(0, 2), 56)
    I("s_load_dwordx2", SWS[0:2], s(0, 2), 72)
    I("s_getpc_b64", sPC)
    I("s_and_b32", sT0, s(2), 0xf8)
    I("v_lshrrev_b32", T[0], 5, v(0))
    I("v_add_lshl_u32", T[1], T[0], sT0, 7)
    I("s_cmp_ge_u32", sT0, "HEAD_LINES")
    I("s_cselect_b32", sT1, sA, 0)
    I("s_mul_i32", sT1, sT1, "A_SHIFT")
    I("v_add_u32", T[1], sT1, T[1])
    I("v_min_u32", T[1], "CODE_SPAN", T[1])
    I("global_load_dword", v(255), T[1], sPC)
    if OPT["stamps"]:
        I("s_memtime", s(98, 2)); I("s_memrealtime", s(96, 2))
    I("v_readfirstlane_b32", sWV, T[0])
    I("v_and_b32", vL, 63, v(0))
    I("s_and_b32", sT0, s(2), 3)
    I("s_lshr_b32", sT1, s(2), 6)
    I("s_lshr_b32", sWV, sWV, 1)
    I("s_lshl2_add_u32", sRT, sT0, sT1)
    I("s_bfe_u32", sG, s(2), 0x30003)
    if OPT["nphase"] == 3:
        I("s_add_u32", sT0, sG, sT1)
        I("s_mul_i32", sT1, sT0, 86)
        I("s_lshr_b32", sT1, sT1, 8)
        I("s_mul_i32", sT1, sT1, 3)
        I("s_sub_u32", sT0, sT0, sT1)
        I("s_mul_i32", sROT, sT0, 3)
    elif OPT["nphase"] == 2:
        I("s_add_u32", sT0, sG, sT1)
        I("s_and_b32", sT0, sT0, 1)
        I("s_lshl_b32", sROT, sT0, 2)
    else:
        I("s_mov_b32", sROT, 0)
    I("s_lshl2_add_u32", sSL, sRT, sWV)
    I("s_mul_i32", sOX, sSL, 32 * 1152)
    I("s_lshl_b32", sT0, sROT, 7)
    I("s_add_u32", sOX, sOX, sT0)
    I("s_lshl_b32", sMX, sWV, 12)
    I("s_mul_i32", sMQ, sWV, 4608)
    I("s_add_u32", sMW, sMQ, WSL)
    I("s_movk_i32", s1152, 1152)
    I("v_lshrrev_b32", T[0], 3, vL)
    I("v_mul_u32_u24", T[0], s1152, T[0])
    I("v_lshrrev_b32", vGL, 4, vL)
    I("v_and_b32", T[1], 7, vL)
    I("v_xor_b32", T[1], T[1], vGL)
    I("v_lshl_add_u32", vOX[0], T[1], 4, T[0])
    I("v_xor_b32", vOX[1], 64, vOX[0])
    I("v_add_u32", vOX[2], 16 * 1152 - 2048, vOX[0])
    I("v_add_u32", vOX[3], 24 * 1152 - 3072, vOX[1])
    I("v_add_u32", vOX[1], 8 * 1152 - 1024, vOX[1])
    I("s_mov_b32", SX[2], 2048 * 1152); I("s_mov_b32", SX[3], 0x20000)
    I("s_mov_b32", SW[2], 576 * 3456); I("s_mov_b32", SW[3], 0x20000)
    I("s_mul_i32", sL3, sG, 144)
    I("s_lshl2_add_u32", sT0, sROT, sWV)
    I("s_mul_i32", sOW, sT0, 16 * 3456)
    I("s_add_u32", sOW, sOW, sL3)
    I("s_add_u32", sOW, sOW, s1152)
    I("s_movk_i32", sL0, 3456); I("s_movk_i32", sL1, -144)
    I("v_lshlrev_b32", vL16, 4, vL)
    I("v_mul_u32_u24", vM, 7282, vL)
    DR = [v(64 + i) for i in range(5)]; DP = [v(70 + i) for i in range(5)]; DC = [v(76 + i) for i in range(5)]
    for i in range(5):
        t = vM
        if i:
            I("v_add_u32", T[0], Q0[i] * 7282, vM); t = T[0]
        I("v_lshrrev_b32", T[1], 16, t)
        I("v_lshrrev_b32", DR[i], 17, t)
        I("v_and_b32", DP[i], 1, T[1])
        I("v_mad_i32_i24", DC[i], T[1], sL1, vL16)
        if i == 2:
            I("v_lshrrev_b32", T[2], 1, DR[i]); I("v_and_b32", T[2], 4, T[2]); I("v_xor_b32", DR[i], DR[i], T[2])
        elif i > 2:
            I("v_xor_b32", DR[i], 4, DR[i])
        I("v_mad_u32_u24", T[2], DR[i], sL0, DC[i])
        I("v_mad_u32_u24", vOW[i], DP[i], s1152, T[2])
    for r_, z_ in ((SWO, 576 * 1152), (SPHI, 32 * 648), (SOUT, 2048 * 2304), (SWS, WS_BYTES)):
        I("s_mov_b32", r_[2], z_); I("s_mov_b32", r_[3], 0x20000)
    I("v_lshlrev_b32", vL4, 2, vL)
    I("s_lshl2_add_u32", sT2, sG, sWV); I("s_mul_i32", sT2, sT2, 648)
    I("s_lshl3_add_u32", sL2, sA, sG)
    I("s_lshl_b32", sAG, sL2, 13); I("s_add_u32", sAG, sAG, WS_F)
    I("s_sub_u32", sT0, 2, sA)
    I("s_min_u32", sT1, sWV, sT0); I("s_mul_i32", sT3, sRT, sT0); I("s_add_u32", sT3, sT3, sRT); I("s_add_u32", sRSB, sT1, sT3)
    I("s_lshl_b32", sT1, sRSB, 7); I("s_add_u32", sFSL, sAG, sT1)
    I("s_cmp_gt_u32", sWV, sT0)
    I("s_cselect_b32", sFSL, OOB, sFSL)
    I("s_lshl3_add_u32", sT0, sA, 0); I("s_and_b32", sT1, sRSB, 7); I("s_or_b32", sT0, sT0, sT1)
    I("s_cmp_eq_u32", sT0, 15)
    I("s_cselect_b32", sFSL, OOB, sFSL)
    I("s_subb_u32", sRSB, sRSB, 0)
    I("v_and_b32", vN, 15, vL)
    I("v_and_b32", T[7], 1, vGL)
    I("v_lshlrev_b32", T[0], 1, vGL); I("v_lshl_add_u32", T[0], vN, 3, T[0])
    I("v_lshl_or_b32", vFS, T[7], 30, T[0])
    I("v_mov_b32", M1[0], -1)
    I("s_mul_i32", sT0, sSL, 32 * 2304)
    I("s_add_u32", sT0, sT0, sL3)
    I("s_xor_b32", sT1, sA, 1); I("s_mul_i32", sT1, sT1, 1152); I("s_add_u32", sOUTB, sT0, sT1)
    I("s_lshl_b32", sT0, sA, 6); I("s_add_u32", sT0, sT0, sSL)
    I("s_lshl_b32", sRF, sT0, 7); I("s_add_u32", sRF, sRF, WS_R)
    I("v_lshlrev_b32", T[1], 20, vL)
    I("v_mov_b32", T[2], 0)
    I("s_lshl_b32", sT0, sA, 7); I("s_add_u32", sT0, sT0, WS_E)
    wait(lgkm=0)
    fst("karg")
    emit_groups(x_dma(0))
    I("s_load_dword", sE, SWS[0:2], sT0)
    for i in range(3):
        I("buffer_load_dword", PW[i], vL4, SPHI, sT2, mods="offen offset:%d" % (256 * i))
    I("buffer_store_dword", M1[0], vFS, SWS, sFSL, mods="offen sc1")
    I("buffer_load_dword", v(255), T[2], SWS, sRF, mods="offen sc1")
    if OPT["touch"]:
        I("buffer_load_dword", v(255), T[1], SWS, 0, mods="offen")
        I("buffer_load_dword", v(255), T[2], SOUT, sOUTB, mods="offen")
        I("buffer_load_dword", v(255), T[2], SWO, sL3, mods="offen")
    emit_groups(w_dma(0))
    stamp("S0iss")
    I("s_mov_b32", sG144, sL3)
    I("v_lshrrev_b32", T[0], 1, vN)
    I("v_xor_b32", T[0], T[0], vGL)
    I("v_lshl_add_u32", T[1], vN, 7, sMX)
    I("v_lshl_add_u32", vXR[0], T[0], 4, T[1])
    I("v_xor_b32", vXR[1], 64, vXR[0])
    I("v_bfe_u32", vR, vL, 2, 2)
    I("v_and_b32", vC, 3, vL)
    I("v_lshl_add_u32", T[1], vGL, 3, vR)
    I("v_lshl_add_u32", T[2], T[7], 2, T[1])
    I("v_xor_b32", T[3], 4, T[2])
    I("s_movk_i32", sT0, 288); I("v_mov_b32", T[4], WSL)
    I("v_mad_u32_u24", T[2], T[2], sT0, T[4]); I("v_mad_u32_u24", T[3], T[3], sT0, T[4])
    I("v_mul_u32_u24", T[0], 40, vC)
    I("v_lshrrev_b32", T[1], 1, vC)
    I("v_add_u32", vTR[0][0], T[2], T[0]); I("v_add_u32", vTR[0][1], T[3], T[0])
    I("v_lshlrev_b32", T[6], 5, T[1]); I("v_sub_u32", T[6], T[0], T[6])
    I("v_add3_u32", vTR[1][0], T[2], T[6], 24); I("v_add3_u32", vTR[1][1], T[3], T[6], 24)
    I("v_mul_u32_u24", T[6], 72, T[1])
    I("v_add3_u32", vTR[2][0], T[2], T[6], 32); I("v_add3_u32", vTR[2][1], T[3], T[6], 32)
    I("v_lshl_add_u32", vTR[3][0], vC, 3, T[2]); I("v_lshl_add_u32", vTR[3][1], vC, 3, T[3])
    I("v_and_b32", T[6], 1, vC); I("v_mul_u32_u24", T[6], 72, T[6])
    I("v_add3_u32", vTR[4][0], T[2], T[6], 32); I("v_add3_u32", vTR[4][1], T[3], T[6], 32)
    I("s_mov_b32", sT0, 32 * 3456 - 1152); I("s_movk_i32", sT1, 72)
    for i in range(5):
        I("v_mad_u32_u24", vOQ[i], DP[i], sT0, vOW[i])
        I("v_lshl_add_u32", T[0], DP[i], 3, DR[i])
        I("v_and_b32", T[3], 1, DR[i])
        if i == 2:
            I("v_lshrrev_b32", T[1], 3, DR[i])
            I("v_mad_u32_u24", T[0], T[1], 12, T[0])
            I("v_lshl_add_u32", T[3], T[1], 1, T[3])
        elif i > 2:
            I("v_add_u32", T[0], 12, T[0])
        I("v_mad_u32_u24", vOO[i], T[0], s1152, DC[i])
        I("v_bfe_u32", T[2], DR[i], 1, 2)
        I("v_lshl_add_u32", T[2], DP[i], 2, T[2])
        I("v_add_u32", T[2], sG, T[2]); I("v_and_b32", T[2], 7, T[2])
        I("v_add_u32", T[3], 18 if i > 2 else 16, T[3])
        I("v_mad_u32_u24", T[2], T[2], sT1, T[3])
        I("v_mad_u32_u24", vO8[i], T[2], s1152, DC[i])
    for i in range(4): I("v_mov_b32", v(84 + i), 0)
    I("s_mul_i32", sT1, sWV, 384); I("s_add_u32", sT1, sT1, ZERO)
    I("v_min_u32", T[0], 23 * 16, vL16); I("v_add_u32", T[0], sT1, T[0])
    I("ds_write_b128", T[0], v(84, 4))
    I("s_mul_i32", sT0, sWV, 960); I("s_add_u32", sT0, sT0, PHI)
    for i in range(3):
        t = vM
        if i:
            I("v_add_u32", T[0], 64 * i * 7282, vM); t = T[0]
        I("v_lshrrev_b32", T[0], 16, t); I("v_add_u32", T[0], T[0], vL)
        I("v_lshl_add_u32", PA[i], T[0], 2, sT0)
    I("v_cmp_eq_u32", "vcc", vC, vGL)
    I("v_mul_u32_u24", T[0], 40, vR)
    I("v_mul_u32_u24", T[1], 1040, vGL)
    I("v_mov_b32", T[3], ZERO)
    I("v_add3_u32", T[1], T[1], T[0], T[3])
    I("v_add_u32", T[2], (PHI - ZERO) & 0xffffffff, T[1])
    I("v_cndmask_b32", vPH[0], T[3], T[2], "vcc")
    I("v_lshrrev_b32", T[4], 1, vGL); I("v_mul_u32_u24", T[4], 640, T[4])
    I("v_sub_u32", T[2], T[2], T[4]); I("v_add_u32", T[2], 480, T[2])
    I("v_cndmask_b32", vPH[1], T[3], T[2], "vcc")
    I("v_mul_u32_u24", T[1], 1920, vGL); I("v_add_u32", T[1], T[1], T[0]); I("v_add_u32", T[2], KVI, T[1])
    I("v_cndmask_b32", vPSA, T[3], T[2], "vcc")
    I("v_mul_u32_u24", T[1], 960, vGL); I("v_mul_u32_u24", T[4], 640, T[7])
    I("v_sub_u32", T[1], T[1], T[4]); I("v_add_u32", T[1], T[1], T[0]); I("v_add_u32", T[1], PHI + 640, T[1])
    I("v_cndmask_b32", T[1], T[3], T[1], "vcc")
    I("v_cmp_gt_u32", "vcc", 2, vR)
    I("s_mul_i32", sPME, sL2, PGRP)
    I("s_lshl_b32", sRSB, sRSB, 12)
    I("v_cndmask_b32", vPH[2], T[3], T[1], "vcc")
    I("s_add_u32", sRSB, sRSB, sPME)
    stamp("P1")
    emit_groups(stage_dma(1))
    stamp("S1iss")
    def touch_round(r):
        I("s_lshl2_add_u32", sCNT, sA, sWV)
        I("s_mov_b64", "exec", 0)
        for k_ in range(7):
            I("s_cmp_eq_u32", sCNT, k_)
            I("s_cbranch_scc1", "L_th%s%d%d" % ("BA"[k_ // 4], r, k_ % 4))
        I("s_branch", "L_thA%d3" % r)
        P.label("L_tret%d" % r)
        I("s_mov_b64", "exec", -1)
    if OPT["itouch"]:
        P.touch = {"L_tailA"}; P.rounds = 2

    def late():
        I("s_and_b32", sL0, sWV, 1); I("s_lshr_b32", sL1, sWV, 1)
        I("s_mul_i32", sL2, sL0, 16 * 3456); I("s_add_u32", sL2, sL2, sG144)
        I("s_add_u32", sQE, sL2, 9 * WSTEP)
        I("s_add_u32", sL3, sL1, sROT); I("s_mul_i32", sL3, sL3, WSTEP); I("s_add_u32", sOQ, sL3, sL2)
        I("s_mul_i32", sO8, sL0, 36 * 1152); I("s_add_u32", sO8, sO8, sG144)
        I("s_add_u32", sOE, sO8, 8 * 82944)
        I("s_add_u32", sL3, sL1, sG); I("s_and_b32", sL3, sL3, 7); I("s_mul_i32", sL3, sL3, 82944); I("s_add_u32", sOO, sL3, sO8)
        I("s_mov_b32", sC[0], f2u(LOG2E)); I("s_mov_b32", sC[1], f2u(LOG2E))
        I("s_mov_b32", sEPS[0], f2u(1e-6)); I("s_mov_b32", sEPS[1], f2u(1e-6))
        I("s_mov_b32", sODD[0], 0xffff0000); I("s_mov_b32", sODD[1], 0xffff0000)
        I("s_add_u32", sE, sE, 1); I("s_and_b32", sTAG, sE, 0xff); I("s_mov_b32", sMSK, 0xffffff00)
        I("s_getreg_b32", sL0, "hwreg(HW_REG_XCC_ID, 0, 4)")
        I("s_lshl4_add_u32", sRV, sE, sL0)
        for i in range(1, 4): I("v_mov_b32", M1[i], -1)
        I("s_sub_u32", sL2, 3, sA); I("s_mul_i32", sL2, sL2, sWV)
        I("s_lshl_b32", sL1, sL2, 14); I("s_add_u32", sPME, sPME, sL1)
        I("s_lshl_b32", sL1, sRT, 8); I("s_add_u32", sPME, sPME, sL1)
        I("s_lshl_b32", sL1, sL2, 9); I("s_add_u32", sAG, sAG, sL1)
        I("s_lshr_b32", sL1, sWV, 1)
        I("s_mul_i32", sQ8, sL1, 0x40000000); I("s_mul_i32", sM8, sL1, 100000); I("s_add_u32", sM8, sM8, sMQ)
        I("s_lshl_b32", sL0, sA, 6); I("s_add_u32", sL0, sL0, sSL)
        I("s_mul_i32", sOB, sL0, 8 * 4608); I("s_add_u32", sOB, sOB, WS_O)
        I("s_lshl_b32", sL0, sG144, 5); I("s_add_u32", sOU[0], sL0, sOB)
        for u in range(1, 8):
            I("s_add_u32", sL0, sG, u); I("s_and_b32", sL0, sL0, 7)
            I("s_mul_i32", sL0, sL0, 4608); I("s_add_u32", sOU[u], sL0, sOB)
        I("v_add_u32", vL4, 4096, vL4)
        I("v_lshl_add_u32", T[0], vGL, 2, vR)
        I("v_mul_u32_u24", T[0], 72, T[0])
        I("s_lshl_b32", sL0, sMQ, 1)
        I("v_add_u32", vKB2, sL0, T[0])
        I("v_lshl_add_u32", vKB0, vC, 3, vKB2)
        for p in range(2):
            for i in (9, 10, 11): I("v_mov_b32", KB[p][i], 0)
            for i in (18, 19): I("v_mov_b32", PH[p][i], 0)
        I("v_mul_u32_u24", T[0], 9216, vGL)
        I("v_mul_u32_u24", T[1], 72, vN)
        I("s_lshr_b32", sL0, sMQ, 1)
        I("v_add3_u32", vIW, T[0], T[1], sL0)
        I("s_mul_i32", sL0, sWV, 5120); I("s_add_u32", sL0, sL0, VF)
        I("v_add_u32", vVW, sL0, vL16)
        I("s_lshl_b32", sL0, sWV, 10); I("s_add_u32", sL0, sL0, VF)
        I("v_add_u32", vAM, sL0, vL16)
        I("s_lshl_b32", sL0, sWV, 1)
        I("v_cmp_gt_u32", "vcc", 2, vN)
        I("v_add_u32", T[3], sL0, vN)
        I("v_lshlrev_b32", T[0], 4, vN); I("v_lshl_add_u32", vP1, vGL, 12, T[0])
        I("v_cndmask_b32", T[3], 8, T[3], "vcc")
        I("v_lshl_add_u32", T[3], vGL, 4, T[3])
        I("v_lshlrev_b32", T[3], 4, T[3]); I("v_add_u32", vAL, VF + 4096, T[3])
        I("v_cmp_gt_u32", "vcc", 4, vN)
        I("v_mov_b32", T[4], OOB)
        I("v_lshl_add_u32", T[0], vGL, 2, vN); I("v_lshlrev_b32", T[0], 4, T[0])
        I("v_cndmask_b32", vP2, T[4], T[0], "vcc")
        I("v_cmp_gt_u32", "vcc", 16, vL)
        I("s_mul_i32", sL1, sWV, 1920); I("s_add_u32", sL1, sL1, KVI)
        I("v_cndmask_b32", vP3, T[4], vL16, "vcc")
        I("v_mul_u32_u24", T[1], 40, vN); I("v_lshl_add_u32", T[1], vGL, 3, T[1])
        I("v_add_u32", vAG1, sL1, T[1])
        I("v_mul_u32_u24", T[2], 40, vC); I("v_lshrrev_b32", T[3], 2, vL)
        I("s_lshr_b32", sL0, 32 * 40, sA)
        I("v_lshl_add_u32", T[2], T[3], 3, T[2]); I("v_add_u32", T[2], sL0, T[2])
        I("v_mul_u32_u24", T[3], 40, vL); I("v_add_u32", T[3], (32 - 16 * 40) & 0xffffffff, T[3])
        I("v_cndmask_b32", T[2], T[3], T[2], "vcc"); I("v_add_u32", vAG2, sL1, T[2])
        for t in range(5):
            I("v_accvgpr_write_b32", PHIF(t, 2)[2], 0); I("v_accvgpr_write_b32", PHIF(t, 2)[3], 0)
    lt = singles(cap(late))

    wait_vm("S0", lgkm=0)
    I("s_barrier")
    stamp("S0land")
    pipe = Pipe(dist=4)
    RT = list(range(-4, 10)) + [10, 10, 11, 11, 12, 12]
    fill = []
    for j in range(9):
        slot = j % 3
        order = [(kap, T_) for kap in range(2) for T_ in range(10)]
        if j == 8: order = [(kap, T_) for T0 in (0, 5) for kap in range(2) for T_ in range(T0, T0 + 5)]
        seen = set()
        for m, (kap, T_) in enumerate(order):
            ks = 2 * j + kap
            ring = RING[(20 * j + m) % 8]
            def rd():
                if kap not in seen:
                    seen.add(kap)
                    for p in range(2):
                        I("ds_read_b128", XF(ks, p), vXR[kap], mods="offset:%d" % (slot * XSLOT + p * 2048))
                tile_read(ring, T_, slot * WSLOT + kap * 9216)
            def work():
                for p in range(2):
                    if T_ < 5: mfma(ACK[p][T_], ring, XF(ks, p), 0 if ks == 0 else ACK[p][T_])
                    else: mfma(ACV[p][T_ - 5], XF(ks, p), ring, 0 if ks == 0 else ACV[p][T_ - 5])
            pipe.add(rd, work, rt=20 * j + RT[m])
        def hook():
            if OPT["itouch"] and 20 * j + 16 == OPT["t0"]: touch_round(0)
            if OPT["itouch"] and 20 * j + 16 == OPT["t1"]: touch_round(1)
            if j < 8: wait_vm("S%d" % (j + 1), lgkm=0)
            else: wait(lgkm=0)
            I("s_barrier")
            if OPT["p1st"]: stamp("b%d" % (j + 1))
        pipe.hooks[20 * j + 16] = cap(hook)
        t0 = max(0, 20 * j - 4)
        if j + 2 < 9: fill += spread(stage_dma(j + 2), t0, 20 * j + 13)
        elif j == 7: fill += spread(wq_pair_dma(0) + wq_pair_dma(2), t0 + 2, 20 * j + 36)
    phw = singles(cap(lambda: [I("ds_write_b32", PA[i], PW[i], mods="offset:%d" % (256 * i)) for i in range(3)]))
    def phir():
        for t in range(5):
            for tp in range(5):
                ad, o = (vPH[0], 160 * tp) if tp < 3 else (vPH[tp - 2], 0)
                tr(PHIF(t, tp // 2)[2 * (tp & 1):2 * (tp & 1) + 2], ad, 8 * t + o)
    phr = singles(cap(phir))
    nl = len(lt)
    bulk = spread(lt[:8], -1, -1) + spread(lt[8:30], 0, 24) + spread(phw, 24, 30) + spread(lt[30:40], 30, 42)
    bulk += spread(phr, 42, 80) + spread(lt[40:], 80, 150)
    bulk += spread(singles(cap(lambda: (cv(0), cv(1)))), 178, 180)
    pipe.emit(fill, bulk)
    stamp("pass1")

    I("s_cmp_lg_u32", sA, 0)
    I("s_cbranch_scc1", "L_tailA")
    P.label("L_tailB")
    names0 = list(stamp_names); mute0 = OPT.get("mute")
    P.put(mark(cap(lambda: tail("B")), path="B"))
    P.label("L_end")
    P.label("L_notouchB")
    I("s_endpgm")
    for sl in SLOW: P.put(mark(sl, path="B"))
    del SLOW[:]
    stamp_names[:] = names0; OPT["mute"] = mute0
    P.raw(".p2align 7")
    P.label("L_dotouch")
    P.label("L_tailA")
    P.put(mark(cap(lambda: (I("s_nop", 7), tail("A"))), path="A"))
    P.label("L_notouchA")
    I("s_endpgm")
    for sl in SLOW: P.put(mark(sl, path="A"))
    P.label("L_last")

def rebase(delta):
    for pat in range(3):
        for e in range(2):
            I("v_add_u32", vTR[pat][e], delta & 0xffffffff, vTR[pat][e])

def tail(path):
    B = path == "B"
    FT = [0, 1, 2] if B else [0, 2]
    PHI_ = PH if B else KB
    NJ = 5 if B else 3
    def poison():
        for i in range(4):
            I("buffer_store_dwordx4", M1, vL16, SWS, sOU[0], mods="offen offset:%d sc1" % (1024 * i))
        for i in range(2):
            I("buffer_store_dword", M1[0], vL4, SWS, sOU[0], mods="offen offset:%d sc1" % (256 * i))
    def vpack():
        I("v_cmp_eq_u32", "vcc", 8, vN)
        I("v_mov_b32", T[0], 0x3f803f80)
        for t in range(5):
            d = ACV[0][t]
            for p in range(2):
                for h in range(2):
                    I("v_cvt_pk_bf16_f32", d[2 * p + h], ACV[p][t][2 * h], ACV[p][t][2 * h + 1])
        for i in range(4): I("v_cndmask_b32", ACV[0][4][i], ACV[0][4][i], T[0], "vcc")
    def prewarm():
        I("v_min_u32", T[1], 35, vL); I("v_lshlrev_b32", T[1], 7, T[1])
        I("buffer_load_dword", v(255), T[1], SWS, sOU[0], mods="offen sc1")
    vp = singles(cap(vpack))
    w = singles(cap(lambda: [I("ds_write_b128", vVW, ACV[0][t], mods="offset:%d" % (1024 * t)) for t in range(5)]))
    q = tagged(singles(cap(poison)), "POIS")
    pwm = [cap(prewarm)] if OPT["pw"] else []
    q4, q6, q8 = vm_only(wq_pair_dma(4)), vm_only(wq_pair_dma(6)), vm_only(wq_pair_dma(8))
    if B:
        ksh = weave(q4[:4], vp); km0 = weave(q4[4:] + q6, w); km1 = q8 + q
        late_q = []
    else:
        ksh = weave(q4[:1], vp); km0 = weave(q4[1:], w); km1 = q6[:3] + q
        late_q = q6[3:] + q8
    def kwrites(p):
        return singles(cap(lambda: [I("ds_write_b64", vIW, PHI_[p][2 * i:2 * i + 2], mods="offset:%d" % (IMG + p * 1152 + 8 * i)) for i in range(9 if B else 5)]))
    feature_map(path, "k", True, ksh, (km0, 2, 98), (km1, 0, 70 if B else 95), kwrites)
    wait(lgkm=0)
    I("s_barrier")
    stamp("kpost")
    DM = [v(104 + 4 * j, 4) for j in range(3)]; DL = [v(116 + 4 * j, 4) for j in range(3)]
    pipe = Pipe(dist=3, grp=1)
    n = 0
    for j in FT:
        for src in range(4):
            AM, AL = v(64 + 8 * src, 4), v(68 + 8 * src, 4)
            BF = RING[n % 8]; n += 1
            def rd():
                if j == 0: I("ds_read_b128", AM, vAM, mods="offset:%d" % (src * 5120))
                for e in range(2):
                    tr(BF[2 * e:2 * e + 2], vKB0 if j < 2 else vKB2, IMG + src * 2304 + e * 1152 + (32 * j if (B or j < 2) else 32))
                if j == 0: I("ds_read_b128", AL, vAL, mods="offset:%d" % (src * 5120))
            def work():
                mfma(DM[j], AM, BF, 0 if src == 0 else DM[j])
                mfma(DL[j], AL, BF, 0 if src == 0 else DL[j])
            pipe.add(rd, work)
    SLM = {0: 0, 1: 4, 2: 8} if B else {0: 0, 2: 4}
    SLL = {0: 9, 1: 10, 2: 11} if B else {0: 5, 2: 6}
    def pstore(j):
        for D, ad, sl in ((DM[j], vP1 if j < 2 else vP2, SLM[j]), (DL[j], vP3, SLL[j])):
            if sl: I("s_add_u32", sT1, sPME, sl * 4096)
            for i in range(4): I("v_and_or_b32", D[i], D[i], sMSK, T[0])
            I("buffer_store_dwordx4", D, ad, SWS, sT1 if sl else sPME, mods="offen sc1")
    fill = at(1, singles(cap(lambda: (I("v_mov_b32", T[0], sTAG), rebase(WQ0 - WSL)))))
    for k_, j in enumerate(FT[:-1]): fill += spread(tagged(singles(cap(lambda: pstore(j))), "P"), 4 * k_ + 5, 4 * k_ + 8)
    pipe.emit(fill)
    fst("kvmm")
    pstore(FT[-1])
    stamp("pubP")
    wait_vm("WQ4")
    I("s_barrier")
    stamp("wqland")

    def gemm2(bfrag, offs, rebases, fill, nm, hooks={}):
        pipe = Pipe(dist=4)
        pipe.hooks = hooks
        n = 0
        for ks in range(18):
            for T_ in range(5):
                ring = RING[n % 8]; n += 1
                def rd():
                    if T_ == 0 and ks in rebases: rebase(rebases[ks])
                    tile_read(ring, T_, offs(ks))
                def work():
                    for p in range(2):
                        mfma(ACK[p][T_], ring, bfrag(ks, p), 0 if ks == 0 else ACK[p][T_])
                pipe.add(rd, work, (lambda: fst("%s%d" % (nm, ks))) if T_ == 0 else None)
        pipe.emit(fill)
    RS = v(128, 16)
    vCK = T[6]
    def rs_loads():
        for i in range(4):
            I("buffer_load_dwordx4", RS[4 * i:4 * i + 4], vL16, SWS, sRSB, mods="offen offset:%d sc1" % (1024 * i))
    def rs_reduce():
        for st in (8, 4):
            for i in range(st): I("v_add_f32", RS[i], RS[i], RS[i + st])
        I("v_permlane32_swap_b32", RS[0], RS[2]); I("v_permlane32_swap_b32", RS[1], RS[3])
        I("v_add_f32", RS[0], RS[0], RS[2]); I("v_add_f32", RS[1], RS[1], RS[3])
        I("v_mov_b32", RS[2], RS[0]); I("v_mov_b32", RS[3], RS[1])
        I("v_permlane16_swap_b32", RS[0], RS[2]); I("v_permlane16_swap_b32", RS[1], RS[3])
        I("v_add_f32", RS[0], RS[0], RS[2]); I("v_add_f32", RS[1], RS[1], RS[3])
        I("v_cvt_pk_bf16_f32", RS[0], RS[0], RS[1])
        I("buffer_store_dword", RS[0], vFS, SWS, sFSL, mods="offen sc1")
    vRV, vRA = T[7], T[8]
    def rflag():
        I("v_mov_b32", vRV, sRV); I("s_lshl_b32", sT1, sG, 2); I("v_mov_b32", vRA, sT1)
        I("buffer_store_dword", vRV, vRA, SWS, sRF, mods="offen sc1")
    ra, rc = OPT["rs_at"], OPT["rs_chk"]
    if not B: ra -= OPT["dA"]; rc -= OPT["dA"]
    fill = spread(late_q if late_q else wo_pair_dma(0), 4, 30)
    fill += spread(tagged(singles(cap(rs_loads)), "RS"), ra, ra + 4)
    fill += spread(wo_pair_dma(2 if B else 0), ra + 4, rc)
    w4 = spread(wo_pair_dma(4 if B else 2), rc + 1, rc + OPT["rs_len"] - 2)
    chk = [cap(lambda: wait_vm("RS"))] + singles(sum(pwm, [])) + check_tag("rs" + path, vCK, [RS[i] for i in range(16)], rs_loads) + singles(cap(rs_reduce)) + singles(cap(rflag))
    fill += sorted(spread(chk, rc, rc + OPT["rs_len"]) + w4, key=lambda t: t[0])
    gemm2(XF, lambda ks: ((ks // 2) % 6) * 9216 + (ks & 1) * 144, {12: WQ6 - WQ0}, fill, "q", {54: cap(lambda: (wait_vm("WQ8"), I("s_barrier")))})
    stamp("qgemm")

    NAG = 3 if B else 2
    AG = v(104, 2 * NAG); RF = v(112)
    def ag_loads():
        for i in range(NAG):
            I("buffer_load_dwordx2", AG[2 * i:2 * i + 2], T[5] if (B or i == 0) else T[3], SWS, sAG, mods="offen offset:%d sc1" % (512 * i))
    def rf_load(): I("buffer_load_dword", RF, T[4], SWS, sRF, mods="offen sc1")
    def qsh():
        I("v_lshlrev_b32", T[5], 3, vL)
        if not B: I("v_min_u32", T[3], 47 * 8, T[5])
        I("v_and_b32", T[4], 7, vL); I("v_lshlrev_b32", T[4], 2, T[4])
        rebase(WO0 - WQ6)
    fr = OPT["ag_frac"] if B else OPT["ag_fracA"]
    g = singles(cap(rf_load)) + tagged(singles(cap(ag_loads)), "AG")
    lo = (fr - 50) * 2
    w6 = vm_only(wo_pair_dma(6 if B else 4))
    if B: feature_map(path, "q", False, weave(singles(cap(qsh)), w6[:3]), (w6[3:], 10, 70), (g, lo, min(100, lo + 10)), lambda p: [])
    else: feature_map(path, "q", False, singles(cap(qsh)), (w6[:3], 0, 100), (w6[3:] + g, 0, 100), lambda p: [])
    stamp("qpost")
    for t in range(5):
        I("v_accvgpr_write_b32", PSIF(t, NJ - 1)[2], 0); I("v_accvgpr_write_b32", PSIF(t, NJ - 1)[3], 0)
    wait_vm("AG")
    fst("agw")
    emit_groups(check_sent("ag" + path, vCK, [AG[i] for i in range(2 * NAG)], ag_loads))
    fst("agok")
    I("ds_write_b64", vAG1, AG[0:2])
    if B: I("ds_write_b64", vAG1, AG[2:4], mods="offset:640")
    I("ds_write_b64", vAG2, AG[2 * NAG - 2:2 * NAG])
    wait(lgkm=0)
    I("s_barrier")
    stamp("gotkv")

    pool = list(range(104, 144, 4)) + list(range(176, 256, 4)) + [12, 16, 28, 32, 36, 40]
    OF = {}
    keys = [(0, p, X) for X in range(2) for p in range(2)] + [("L", k, p) for k in range(2) for p in range(2)] + [(u, p, X) for u in range(1, 8) for p in range(2) for X in range(2)]
    for k_, r_ in zip(keys, pool): OF[k_] = v(r_, 4)
    o = ACC
    pipe = Pipe(dist=4)
    for t in (4, 0, 1, 2, 3):
        for j in range(NJ):
            def rd():
                tr(PSIF(t, j)[0:2], vPSA, 8 * t + 8 * j * 40)
                if j < NJ - 1: tr(PSIF(t, j)[2:4], vPSA, 8 * t + (8 * j + 4) * 40)
            def work():
                for p in range(2):
                    mfma(ACK[p][t], PSIF(t, j), PHI_[p][4 * j:4 * j + 4], 0 if j == 0 else ACK[p][t])
            pipe.add(rd, work)
    def ostore(key, flag=""):
        if key[0] == "L": I("buffer_store_dword", OF[key][0], vL4, SWS, sOU[0], mods="offen offset:%d%s" % (key[2] * 256, flag))
        else: I("buffer_store_dwordx4", OF[key], vL16, SWS, sOU[0], mods="offen offset:%d%s" % (key[1] * 2048 + key[2] * 1024, flag))
    def fin_den():
        for p in range(2): I("v_add_f32", o[p][18], sEPS[0], o[p][18])
        for p in range(2): I("v_rcp_f32", o[p][18], o[p][18])
        for p in range(2):
            for i in (16, 17): I("v_mul_f32", o[p][i], o[p][i], o[p][18])
        for p in range(2):
            I("v_cvt_pk_bf16_f32", OF[("L", 0, p)][0], o[p][16], o[p][17])
            ostore(("L", 0, p))
    def fin_tile(t, packed):
        for p in range(2):
            if packed:
                for i in (4 * t, 4 * t + 2): I("v_pk_mul_f32", o[p][i:i + 2], o[p][i:i + 2], o[p][18:20], mods="op_sel:[0,0] op_sel_hi:[1,0]")
            else:
                for i in range(4 * t, 4 * t + 4): I("v_mul_f32", o[p][i], o[p][i], o[p][18])
            for h in range(2):
                I("v_cvt_pk_bf16_f32", OF[(0, p, t // 2)][2 * (t & 1) + h], o[p][4 * t + 2 * h], o[p][4 * t + 2 * h + 1])
            if t & 1: ostore((0, p, t // 2))
    rfchk = check_or_retry("rf" + path, lambda: I("v_xor_b32", vCK, sRV, RF), lambda: I("v_cmp_lt_u32", "vcc", 15, vCK), rf_load)
    rfchk += [cap(lambda: I("v_cmp_ne_u32", s(50, 2), 0, vCK))]
    w8 = vm_only(([] if B else wo_pair_dma(6)) + singles(cap(lambda: I("s_add_u32", sO8, sO8, sQ8))) + tagged(dma5(vO8, SWO, sO8, sM8, WO6 + 2 * 9216), "WO8"))
    fill = at(0, rfchk)
    fill += spread(singles(cap(fin_den)), NJ + 2, 2 * NJ + 1)
    for t in range(3): fill += spread(singles(cap(lambda: fin_tile(t, False))), (2 + t) * NJ + 1 + (1 if B else 0), (3 + t) * NJ + 1)
    fill = sorted(fill + spread(w8, 0, 4 * NJ), key=lambda t: t[0])
    pipe.emit(fill)
    fst("omm")
    fin_tile(3, True)
    I("s_cmp_lg_u64", s(50, 2), 0)
    I("s_cbranch_scc1", "L_far" + path)
    P.label("L_near" + path)
    def far():
        P.label("L_far" + path)
        for key in keys[:4] + [("L", 0, 0), ("L", 0, 1)]: ostore(key, " sc1")
        wait(vm=0)
        I("buffer_store_dword", vRV, vRA, SWS, sRF, mods="offen offset:32 sc1")
        I("s_mov_b32", sCNT, 0)
        P.label("L_farp" + path)
        I("buffer_load_dword", vCK, T[4], SWS, sRF, mods="offen offset:32 sc1")
        wait(vm=0)
        I("v_xor_b32", vCK, sRV, vCK)
        I("v_cmp_lt_u32", "vcc", 15, vCK)
        I("s_add_u32", sCNT, sCNT, 1)
        I("s_cmp_gt_u32", sCNT, SPIN)
        I("s_cbranch_scc1", "L_near" + path)
        I("s_cbranch_vccnz", "L_farp" + path)
        I("s_branch", "L_near" + path)
    SLOW.append(cap(far))
    stamp("pubO")

    def oload(u):
        for X in (1, 0):
            for p in (1, 0):
                I("buffer_load_dwordx4", OF[(u, p, X)], vL16, SWS, sOU[u], mods="offen offset:%d sc1" % (p * 2048 + X * 1024))
        for p in range(2):
            I("buffer_load_dword", OF[("L", u // 4, p)][u % 4], vL4, SWS, sOU[u], mods="offen offset:%d sc1" % (p * 256))
    def bf(ks, p):
        if ks < 16: return OF[(ks // 2, p, ks & 1)]
        return OF[("L", ks - 16, p)]
    offs = lambda ks: ((ks // 2) % 6) * 9216 + (ks & 1) * 144
    vW1, vW2, vW3, vRD = vIW, vVW, vAM, vAL
    vST = [vP2, vPSA, vKB0, vKB2, vP1]
    def out_addr():
        I("s_add_u32", sT0, sMQ, OUTB)
        I("v_mul_u32_u24", T[0], 144, vN); I("v_add_u32", T[0], sT0, T[0])
        I("v_mul_u32_u24", T[1], 40, vGL); I("v_add_u32", vW1, T[0], T[1])
        I("v_lshrrev_b32", T[4], 1, vGL)
        I("v_lshlrev_b32", T[2], 5, T[4]); I("v_sub_u32", vW2, vW1, T[2])
        I("v_mul_u32_u24", T[3], 72, T[4]); I("v_add_u32", vW3, T[0], T[3])
        I("v_add_u32", vRD, sT0, vL16)
        I("s_movk_i32", sT1, 2304 - 144)
        for i in range(5):
            t = vM
            if i:
                I("v_add_u32", T[3], Q0[i] * 7282, vM); t = T[3]
            I("v_lshrrev_b32", T[0], 16, t)
            I("v_mad_u32_u24", vST[i], T[0], sT1, vL16)
    NPRE = OPT["npre"]
    wait_vm("WO8")
    I("s_barrier")
    stamp("ackO")
    I("s_mov_b32", sT2, 0)
    P.label("L_redo" + path)
    g = []
    for u in range(1, NPRE + 1): g += tagged(singles(cap(lambda: oload(u))), "O%d" % u)
    fill = spread(g, 0, 7)
    def ochk(u):
        regs = [OF[(u, 0, 1)][3], OF[(u, 1, 1)][3], OF[(u, 1, 0)][3]]
        return [cap(lambda: wait_vm("O%d" % u))] + check_sent("o%d%s" % (u, path), vCK, regs, lambda: oload(u))
    for u in range(0, 7):
        b0 = u * 10
        blk = spread(ochk(u + 1), b0 + 6, b0 + 6)
        if u and u + NPRE <= 7: blk += spread(tagged(singles(cap(lambda: oload(u + NPRE))), "O%d" % (u + NPRE)), b0, b0 + 10)
        fill += sorted(blk, key=lambda t: t[0])
    fill += spread(singles(cap(out_addr)), 70, 88)
    gemm2(bf, offs, {12: WO6 - WO0}, fill, "o")
    stamp("ogemm")
    I("v_cmp_u_f32", "vcc", ACK[0][0][0], ACK[1][0][0])
    I("s_cbranch_vccnz", "L_again" + path)
    P.label("L_done" + path)
    def again():
        P.label("L_again" + path)
        I("s_add_u32", sT2, sT2, 1)
        I("s_cmp_gt_u32", sT2, 200)
        I("s_cbranch_scc1", "L_done" + path)
        rebase(WO0 - WO6)
        I("s_nop", 7)
        I("s_branch", "L_redo" + path)
    SLOW.append(cap(again))
    OUTR = v(104, 20)
    for p in range(2):
        for t in range(5):
            for h in range(2):
                I("v_cvt_pk_bf16_f32", OUTR[10 * p + 2 * t + h], ACK[p][t][2 * h], ACK[p][t][2 * h + 1])
            ad, off = (vW1, 8 * t) if t < 3 else ((vW2, 24) if t == 3 else (vW3, 32))
            I("ds_write_b64", ad, OUTR[10 * p + 2 * t:10 * p + 2 * t + 2], mods="offset:%d" % (off + p * 2304))
    OB = v(176, 20)
    for i in range(5):
        I("ds_read_b128", OB[4 * i:4 * i + 4], vRD, mods="offset:%d" % (16 * Q0[i]))
    fl = ["", " sc1", " nt", " sc0 sc1"][OPT["outflag"]]
    wait(lgkm=4)
    I("s_mov_b32", "exec_hi", 0)
    I("buffer_store_dwordx4", OB[0:4], vST[0], SOUT, sOUTB, mods="offen" + fl)
    I("s_mov_b32", "exec_hi", -1)
    for i in range(1, 5):
        wait(lgkm=4 - i)
        I("buffer_store_dwordx4", OB[4 * i:4 * i + 4], vST[i], SOUT, sOUTB, mods="offen offset:%d%s" % (16 * Q0[i], fl))
    I("s_or_b32", sT0, sSL, sG)
    I("s_cmp_lg_u32", sT0, 0)
    I("s_cbranch_scc1", "L_noep" + path)
    I("s_lshl_b32", sT0, sA, 7); I("s_add_u32", sT0, sT0, WS_E)
    I("v_mov_b32", T[0], 0); I("v_mov_b32", T[1], sE)
    I("buffer_store_dword", T[1], T[0], SWS, sT0, mods="offen")
    P.label("L_noep" + path)
    if OPT["stamps"]:
        stamp("stiss")
        if B: P.label("L_fin")
        OPT["mute"] = 0
        wait(vm=0)
        stamp("end")
        I("s_memrealtime", s(100, 2))
        wait(lgkm=0)
        if OPT["fine"]:
            for k, nm in enumerate(OPT["fine"].split(",")):
                stamp_names.append(nm); STAMPS[k] = s(4 + 2 * k)
        n = len(stamp_names)
        for k in range(n):
            if OPT["lite"] and k != OPT["amp"] and k != n - 1: continue
            assert OPT["lite"] or n <= 17
            I("s_sub_u32", STAMPS[k], STAMPS[k], s(96 if OPT["lite"] == 2 else 98))
            I("v_mov_b32", v(64 + k), STAMPS[k])
        I("v_mov_b32", v(64 + 30), s(96)); I("v_mov_b32", v(64 + 31), s(100))
        I("s_lshl_b32", sT0, s(2), 2); I("s_add_u32", sT0, sT0, sWV); I("s_lshl_b32", sT0, sT0, 7); I("s_add_u32", sT0, sT0, WS_ST)
        I("v_mov_b32", T[0], 0)
        I("s_mov_b64", "exec", 1)
        for q in range(8):
            I("buffer_store_dwordx4", v(64 + 4 * q, 4), T[0], SWS, sT0, mods="offen offset:%d" % (16 * q))
        if OPT["amp"] >= 0 and OPT["ampsel"] in (0, 2 if B else 1):
            I("s_lshl_b32", sT2, STAMPS[OPT["amp"]], 3)
            I("s_add_u32", sT2, sT2, STAMPS[n - 1])
            P.label("L_amp" + path)
            I("s_memrealtime" if OPT["lite"] == 2 else "s_memtime", s(100, 2)); wait(lgkm=0)
            I("s_sub_u32", sT1, s(100), s(96 if OPT["lite"] == 2 else 98))
            I("s_cmp_lt_u32", sT1, sT2)
            I("s_cbranch_scc1", "L_amp" + path)

HEADER = open("cdna_kernels/%s.s.ref" % NAME).read().split("; Override launch")[0]

def wrap(body):
    txt = HEADER + "; @launch grid=(256,1,1) block=(256,1,1) lds=%d\n" % LDS_BYTES
    txt += "; stamps: %s\n" % ",".join(stamp_names) if stamp_names else ""
    txt += '.amdgcn_target "amdgcn-amd-amdhsa--gfx950"\n.text\n.globl %s_kernel\n.p2align 12\n.type %s_kernel,@function\n' % (NAME, NAME)
    txt += ".set CODE_SPAN, (L_last - %s_kernel - 128) & 0xffffff80\n" % NAME
    txt += ".set HEAD_LINES, ((L_tailB - %s_kernel) >> 7) + 8\n.set A_SHIFT, (L_tailA - L_tailB - 2048) & 0xffffff80\n" % NAME
    txt += "%s_kernel:\n%s\n" % (NAME, body)
    txt += """.section .rodata,"a"
.p2align 6
.amdhsa_kernel %s_kernel
  .amdhsa_next_free_vgpr 512
  .amdhsa_next_free_sgpr 102
  .amdhsa_accum_offset 256
  .amdhsa_group_segment_fixed_size 0
  .amdhsa_kernarg_size 80
  .amdhsa_user_sgpr_count 2
  .amdhsa_user_sgpr_kernarg_segment_ptr 1
  .amdhsa_system_sgpr_workgroup_id_x 1
.end_amdhsa_kernel
""" % NAME
    return txt

def main(out):
    build()
    txt = P.finalize2(wrap)
    open(out, "w").write(txt)
    print("wrote", out, "hazard nops:", P.nops, "align fixes:", P.fixes, "bytes:", P.bytes, "touch points:", P.points)

if __name__ == "__main__":
    out = sys.argv[1]
    for kv in sys.argv[2:]:
        k, val = kv.split("=")
        assert k in OPT, k
        OPT[k] = val if k in ("stop", "fine") else int(val)
    main(out)
```

```python
import sys, struct
from asmdsl import *

NAME = "concat_heads__linear_attn_block__linear_kernel_hedgehog__prompt"
OPT = dict(stamps=0, nphase=2, amp=-1, ampsel=0, lite=0, outflag=0, rs_at=40, rs_chk=62, rs_len=27, ag_frac=56, ag_fracA=90, dA=4, npre=3, t0=16, t1=36, pw=1, pfo=1, pfq=0,
           stop="", p1st=0, touch=1, fine="", itouch=1)

def f2u(x): return struct.unpack("<I", struct.pack("<f", x))[0]
LOG2E = 1.4426950408889634

XSLOT = 16384
WSL = 49152; WSLOT = 18432
WQ0 = 104448
WQ6 = 76800
PHI = 104448
ZERO = 159744
IMG = 0
VF = 36864
KVI = 57344
WO0 = 0
WO6 = 104448
OUTB = 76800
LDS_BYTES = 163840
PGRP = 48 * 4096
WS_F = 0x300000; WS_E = 0x380000; WS_R = 0x390000; WS_O = 0x400000; WS_ST = 0x900000; WS_BYTES = 0xA00000
OOB = 0x7ffffff0
SPIN = 30000
Q0 = [0, 32, 96, 160, 224]
WSTEP = 64 * 3456

SX, SW, SWO, SWS, SOUT, SPHI = s(24, 4), s(28, 4), s(32, 4), s(36, 4), s(40, 4), s(48, 4)
sL0, sL1, sL2, sL3 = s(44), s(45), s(46), s(47)
sA, sRT, sG, sWV = s(52), s(53), s(54), s(55)
sOQ, sOX, sOW = s(56), s(57), s(58)
s1152 = s(59)
sMX, sMW = s(60), s(61)
sT0, sT1, sT2, sT3 = s(62), s(63), s(64), s(65)
sSL = s(66)
sROT = s(67)
sPME, sRSB, sRF, sOB = s(68), s(69), s(70), s(71)
sCNT = s(72)
sFSL = s(73)
sC = s(74, 2)
sEPS = s(76, 2)
sODD = s(78, 2)
sMQ = s(80)
sOO = s(81)
sPC = s(82, 2)
sTAG, sMSK = s(82), s(83)
sOU = [s(84 + u) for u in range(8)]
sAG = s(92)
sO8 = s(93)
sOUTB = s(94)
sE = s(95)
sM8 = s(20); sQ8 = s(21); sPM2 = s(22); sPM3 = s(23)
sG144 = s(48); sRV = s(49); sQE = s(50); sOE = s(51)
STAMPS = [s(3 + i % 17) for i in range(28)]

vL = v(0)
T = [v(i) for i in range(1, 10)]
vOX = [v(10 + i) for i in range(4)]
vOW = [v(14 + i) for i in range(5)]
vXR = [v(19), v(20)]
vTR = [[v(21 + 2 * p + e) for e in range(2)] for p in range(5)]
vOQ = [v(31 + i) for i in range(5)]
vOO = [v(36 + i) for i in range(5)]
vO8 = [v(41 + i) for i in range(5)]
vL16 = v(46)
vGL, vN = v(47), v(48)
vM, vPSA, vKB0, vKB2, vFS, vL4, vIW, vVW, vAM, vAL, vP1 = [v(49 + i) for i in range(11)]
vP2, vP3, vAG1, vAG2 = v(60), v(61), v(62), v(63)
ACK = [[v(64 + 20 * p + 4 * t, 4) for t in range(5)] for p in range(2)]
ACV = [[v(104 + 20 * p + 4 * t, 4) for t in range(5)] for p in range(2)]
RING = [v(144 + 4 * i, 4) for i in range(8)]
KB = [v(176 + 12 * p, 12) for p in range(2)]
PH = [v(200 + 20 * p, 20) for p in range(2)]
TMP = v(144, 24)
PW = v(240, 3); M1 = v(244, 4); PA = v(248, 3); vR, vC = v(251), v(252)
vPH = [v(243), v(253), v(254)]
def XF(ks, p): return a(ks * 8 + p * 4, 4)
def PHIF(t, j): return a(144 + (t * 3 + j) * 4, 4)
def PSIF(t, j): return a(144 + (t * 5 + j) * 4, 4)

P = Prog()
I = P.I
cap = P.capture
stamp_names = []
def fst(name):
    names = OPT["fine"].split(",")
    if name in names:
        k = names.index(name)
        I("s_memtime", s(4 + 2 * k, 2), c="fine " + name)
def stamp(name):
    if OPT["fine"]:
        fst(name)
    elif OPT["stamps"] and not OPT.get("mute"):
        k = len(stamp_names); stamp_names.append(name)
        real = True
        if OPT["lite"]:
            real = (k == OPT["amp"] or name == "end")
            if real: STAMPS[k] = s(5) if name == "end" else (s(4) if k else s(3))
        if real:
            I("s_memrealtime" if OPT["lite"] == 2 else "s_memtime", s(100, 2), c="stamp " + name)
            I("s_waitcnt", "lgkmcnt(0)")
            I("s_mov_b32", STAMPS[k], s(100))
    if OPT["stop"] == name:
        I("s_branch", "L_fin"); OPT["mute"] = 1

def wait(vm=None, lgkm=None):
    t = []
    if vm is not None: t.append("vmcnt(%d)" % vm)
    if lgkm is not None: t.append("lgkmcnt(%d)" % lgkm)
    I("s_waitcnt", " ".join(t))
def wait_vm(tag, lgkm=None): P.items.append(VmWait(tag, lgkm))
def tagged(groups, tag):
    for g in groups:
        for x in g:
            if isinstance(x, Ins) and x.kind == "vmem": x.tag = tag
    return groups
def mark(items, **kw):
    for x in items:
        if isinstance(x, Ins):
            for k, val in kw.items(): setattr(x, k, val)
    return items

def srd(dst, lo, hi, size):
    I("s_mov_b32", dst[0], lo); I("s_mov_b32", dst[1], hi)
    I("s_mov_b32", dst[2], size); I("s_mov_b32", dst[3], 0x20000)
def singles(items): return [[x] for x in items]
def emit_groups(groups):
    for g in groups: P.put(g)

def dma5(voffs, srdreg, soff, m0base, m0imm):
    def first():
        I("s_add_u32", "m0", m0base, m0imm)
        I("s_mov_b32", "exec_hi", 0)
        I("buffer_load_dwordx4", voffs[0], srdreg, soff, mods="offen lds")
        I("s_mov_b32", "exec_hi", -1)
    g = [cap(first)]
    for i in range(1, 5):
        g += singles(cap(lambda: I("buffer_load_dwordx4", voffs[i], srdreg, soff, mods="offen offset:%d lds" % (16 * Q0[i]))))
    return g

def wraps_after(j):
    rots = {1: [0], 2: [0, 4], 3: [0, 3, 6]}[OPT["nphase"]]
    return any(r + j == 8 for r in rots) and j < 8
def x_dma(j):
    g = singles(cap(lambda: I("s_add_u32", "m0", sMX, (j % 3) * XSLOT)))
    for i in range(4):
        g += singles(cap(lambda: I("buffer_load_dwordx4", vOX[i], SX, sOX, mods="offen offset:%d lds" % (1024 * i))))
    return tagged(g, "S%d" % j)
def w_dma(j):
    g = tagged(dma5(vOW, SW, sOW, sMW, (j % 3) * WSLOT), "S%d" % j)
    if j < 8:
        g += singles(cap(lambda: (I("s_add_u32", sOX, sOX, 128), I("s_add_u32", sOW, sOW, WSTEP))))
        if wraps_after(j):
            def wr():
                I("s_cmp_eq_u32", sROT, 8 - j)
                I("s_cselect_b32", sT0, 1152, 0); I("s_cselect_b32", sT1, 9 * WSTEP, 0)
            g.append(cap(wr))
            g += singles(cap(lambda: (I("s_sub_u32", sOX, sOX, sT0), I("s_sub_u32", sOW, sOW, sT1))))
    return g
def stage_dma(j): return x_dma(j) + w_dma(j)

def advance(reg, step, end, span):
    def a1():
        I("s_add_u32", reg, reg, step)
        I("s_cmp_ge_u32", reg, end)
        I("s_cselect_b32", sT0, span, 0)
    return [cap(a1)] + singles(cap(lambda: I("s_sub_u32", reg, reg, sT0)))
def wq_pair_dma(j):
    pos = (WQ0 + j * 9216) if j < 6 else (WQ6 + (j - 6) * 9216)
    if j == 8:
        return singles(cap(lambda: I("s_add_u32", sOQ, sOQ, sQ8))) + tagged(dma5(vOQ, SW, sOQ, sM8, pos), "WQ8")
    g = tagged(dma5(vOQ, SW, sOQ, sMQ, pos), "WQ%d" % j)
    g += advance(sOQ, 2 * WSTEP, sQE, 9 * WSTEP)
    return g
def wo_pair_dma(u):
    pos = (WO0 + u * 9216) if u < 6 else (WO6 + (u - 6) * 9216)
    g = tagged(dma5(vOO, SWO, sOO, sMQ, pos), "WO%d" % u)
    if u < 6: g += advance(sOO, 2 * 82944, sOE, 8 * 82944)
    return g
def only_waves01(groups, tag):
    def f():
        I("s_cmp_ge_u32", sWV, 2)
        I("s_cbranch_scc1", "L_skip_" + tag)
        for g in groups: P.put(mark(g, cond=True))
        P.label("L_skip_" + tag)
    return [cap(f)]

def tr(dst, addr, off):
    assert 0 <= off < 65536, off
    I("ds_read_b64_tr_b16", dst, addr, mods="offset:%d" % off)
def mfma(d, x, y, c): I("v_mfma_f32_16x16x32_bf16", d, x, y, c)
def tile_read(dstreg, T_, base_off):
    if T_ < 3: pat, o = 0, 8 * T_
    elif T_ == 3: pat, o = 1, 0
    elif T_ == 4: pat, o = 2, 0
    elif T_ < 9: pat, o = 3, 144 + 8 * [0, 5, 9, 14][T_ - 5]
    else: pat, o = 4, 144
    for e in range(2):
        tr(dstreg[2 * e:2 * e + 2], vTR[pat][e], base_off + o)

class Pipe:
    def __init__(self, dist=4, grp=2):
        self.units = []; self.dist = dist; self.grp = grp; self.hooks = {}
    def add(self, rd, work, pre=None, rt=None):
        k = len(self.units)
        self.units.append((cap(rd), cap(work), cap(pre) if pre else None, k - self.dist if rt is None else rt))
    def emit(self, fill=(), bulk=()):
        fill = list(fill); bulk = list(bulk)
        U = self.units; n = len(U)
        seq = []
        state = dict(done=0)
        def put(items, owner=-1):
            for x in items:
                if isinstance(x, Ins) and x.kind == "ds": seq.append(owner)
                if isinstance(x, Ins) and x.op == "s_waitcnt" and ("lgkmcnt(0)" in x.args[0] or getattr(x, "lgkm", None) == 0): state["done"] = len(seq)
            P.put(items)
        def need_wait(k):
            last = max([i for i, o in enumerate(seq) if o == k] + [-1])
            return last >= state["done"]
        byt = {}
        for k, u in enumerate(U): byt.setdefault(max(u[3], -1), []).append(k)
        for k in byt.get(-1, []): put(U[k][0], k)
        while bulk and bulk[0][0] < 0: put(bulk.pop(0)[1])
        def take(k):
            if fill and fill[0][0] <= k: put(fill.pop(0)[1]); return True
            if bulk and bulk[0][0] <= k + 6: put(bulk.pop(0)[1]); return True
            return False
        for k in range(n):
            if k in self.hooks: put(self.hooks[k])
            if U[k][2]: put(U[k][2])
            if need_wait(k):
                want = [q for q in range(k, min(n, k + self.grp)) if U[q][3] < k - 1 or q == k]
                last = max(i for i, o in enumerate(seq) if o in want)
                later = len(seq) - 1 - last
                assert later <= 15, later
                wait(lgkm=later); state["done"] = last + 1
            nxt = [(x, q) for q in byt.get(k, []) for x in U[q][0]]
            half = (len(nxt) + 1) // 2
            w = U[k][1]
            P.put([w[0]])
            for x, q in nxt[:half]: put([x], q)
            for _ in range(max(0, 2 - half)): take(k)
            P.put(w[1:])
            for x, q in nxt[half:]: put([x], q)
            rest = len(nxt) - half + (1 if (k + 1 < n and need_wait(k + 1)) else 0) + (2 if k + 1 in self.hooks else 0)
            for _ in range(max(0, 2 - rest)): take(k)
            while fill and fill[0][0] <= k - 3: put(fill.pop(0)[1])
            while bulk and bulk[0][0] <= k: put(bulk.pop(0)[1])
        for _, g in fill + bulk: put(g)

def vm_only(groups):
    out = []
    for g in groups:
        if any(x.kind == "vmem" for x in g) or not out: out.append(list(g))
        else: out[-1] += g
    return out
def weave(a_, b_):
    out = []; na, nb = len(a_), len(b_); i = j = 0
    while i < na or j < nb:
        if j >= nb or (i < na and i * nb <= j * na): out.append(a_[i]); i += 1
        else: out.append(b_[j]); j += 1
    return out
def at(unit, groups): return [(unit + i * 2 // 3, g) for i, g in enumerate(groups)]
def spread(groups, first, last):
    n = len(groups)
    return [(first + (last - first) * i // max(1, n), g) for i, g in enumerate(groups)]
def merge(main, extra, start=0, step=2):
    out = []; extra = list(extra)
    for i, x in enumerate(main):
        out.append(x)
        if extra and i >= start and (i - start) % step == step - 1: out += extra.pop(0)
    for g in extra: out += g
    return out

def sm_head(src18, tmp):
    mx, mn = tmp[18], tmp[19]
    I("v_max3_f32", mx, src18[0], src18[1], src18[2]); I("v_min3_f32", mn, src18[0], src18[1], src18[2])
    for i in range(3, 17, 2):
        I("v_max3_f32", mx, mx, src18[i], src18[i + 1]); I("v_min3_f32", mn, mn, src18[i], src18[i + 1])
    I("v_max_f32", mx, mx, src18[17]); I("v_min_f32", mn, mn, src18[17])
    I("v_mul_f32", tmp[20], sC[0], mx); I("v_mul_f32", tmp[21], sC[0], mn)
def sm_tail(src18, out18, tmp):
    ab = tmp[20:22]
    for i in range(0, 18, 2):
        I("v_pk_fma_f32", tmp[i:i + 2], src18[i:i + 2], sC, ab, mods="op_sel:[0,0,1] op_sel_hi:[1,1,1] neg_lo:[1,0,0] neg_hi:[1,0,0]")
        I("v_pk_fma_f32", src18[i:i + 2], src18[i:i + 2], sC, ab, mods="op_sel:[0,0,0] op_sel_hi:[1,1,0] neg_lo:[0,0,1] neg_hi:[0,0,1]")
    sp, sn = tmp[18:20], tmp[20:22]
    for i in range(0, 18, 2):
        for h in range(2):
            I("v_exp_f32", src18[i + h], src18[i + h]); I("v_exp_f32", tmp[i + h], tmp[i + h])
        if i == 4:
            I("v_pk_add_f32", sp, src18[0:2], src18[2:4]); I("v_pk_add_f32", sn, tmp[0:2], tmp[2:4])
        elif i > 4:
            I("v_pk_add_f32", sp, sp, src18[i - 2:i]); I("v_pk_add_f32", sn, sn, tmp[i - 2:i])
    I("v_pk_add_f32", sp, sp, src18[16:18]); I("v_pk_add_f32", sn, sn, tmp[16:18])
    rr = tmp[22:24]
    I("v_add_f32", rr[0], sp[0], sp[1]); I("v_add_f32", rr[1], sn[0], sn[1])
    I("v_rcp_f32", rr[0], rr[0]); I("v_rcp_f32", rr[1], rr[1])
    def el(d): return (src18[2 * d:2 * d + 2], "op_sel:[0,0] op_sel_hi:[1,0]") if d < 9 else (tmp[2 * (d - 9):2 * (d - 9) + 2], "op_sel:[0,1] op_sel_hi:[1,1]")
    for d in range(0, 18, 2):
        for h in range(2): I("v_pk_mul_f32", el(d + h)[0], el(d + h)[0], rr, mods=el(d + h)[1])
        for h in range(2): I("v_cvt_pk_bf16_f32", out18[d + h], el(d + h)[0][0], el(d + h)[0][1])

ACC = [v(64 + 20 * p, 20) for p in range(2)]
def cv(p):
    I("v_cndmask_b32", ACC[p][16], ACC[p][16], ACC[p][18], sODD)
    I("v_cndmask_b32", ACC[p][17], ACC[p][17], ACC[p][19], sODD)
    for i in range(9): I("v_cvt_pk_bf16_f32", KB[p][i], ACC[p][2 * i], ACC[p][2 * i + 1])

def chase(body, groups):
    out = []; groups = list(groups)
    lastdef = {}
    for i, x in enumerate(body):
        if isinstance(x, Ins):
            for r in x.defs: lastdef[r] = i
    pos = {}
    for g in groups:
        p_ = max([lastdef.get(r, -1) for x in g for r in x.uses] + [-1])
        pos.setdefault(p_, []).append(g)
    for g in pos.get(-1, []): out += g
    for i, x in enumerate(body):
        out.append(x)
        for g in pos.get(i, []): out += g
    return out

def evenly(lst, groups, lo=0, hi=100):
    out = []; groups = list(groups); n = len(lst); m = len(groups)
    pos = [n * lo // 100 + (n * (hi - lo) // 100) * i // max(1, m) for i in range(m)]
    for i, x in enumerate(lst):
        out.append(x)
        while groups and pos[0] <= i:
            out += groups.pop(0); pos.pop(0)
    for g in groups: out += g
    return out

def feature_map(path, tag, cv_done, shadow, mid0, mid1, after_p):
    if path == "B":
        def mm(p):
            for j in range(3):
                for t in range(5):
                    mfma(ACK[p][t], PHIF(t, j), KB[p][4 * j:4 * j + 4], 0 if j == 0 else ACK[p][t])
        body = [] if cv_done else cap(lambda: cv(0))
        sh = ([] if cv_done else singles(cap(lambda: cv(1)))) + list(shadow)
        head0 = singles(cap(lambda: sm_head(ACC[0][0:18], TMP)))
        ms = cap(lambda: (mm(0), mm(1)))
        for i, x in enumerate(ms):
            body.append(x)
            if i == 19: sh = head0 + sh
            k = 0
            while sh and k < 2:
                g = sh.pop(0); body += g; k += len(g)
        for g in sh: body += g
        body += cap(lambda: fst(tag + "mm"))
        body += evenly(cap(lambda: sm_tail(ACC[0][0:18], PH[0][0:18], TMP)), *mid0)
        body += cap(lambda: fst(tag + "t0"))
        t1 = cap(lambda: (sm_head(ACC[1][0:18], TMP), sm_tail(ACC[1][0:18], PH[1][0:18], TMP)))
        t1 = evenly(t1, after_p(0), 2, 66)
        t1 = evenly(t1, *mid1)
        body += chase(t1, after_p(1))
    else:
        def pa(p):
            x = ACC[p]
            if not cv_done:
                I("v_cndmask_b32", x[16], x[16], x[18], sODD); I("v_cndmask_b32", x[17], x[17], x[19], sODD)
            for i in range(0, 18, 2): I("v_pk_mul_f32", TMP[i:i + 2], x[i:i + 2], sC)
            for d in range(9):
                for i in (2 * d, 2 * d + 1):
                    I("v_exp_f32", TMP[i], TMP[i], mods="clamp")
                    I("v_max_f32", x[i], 0, x[i])
                I("v_pk_add_f32", x[2 * d:2 * d + 2], x[2 * d:2 * d + 2], sEPS)
                I("v_pk_add_f32", x[2 * d:2 * d + 2], x[2 * d:2 * d + 2], TMP[2 * d:2 * d + 2])
                I("v_cvt_pk_bf16_f32", KB[p][d], x[2 * d], x[2 * d + 1])
        body = []
        for g in shadow: body += g
        body += cap(lambda: fst(tag + "mm"))
        body += chase(evenly(cap(lambda: pa(0)), *mid0), after_p(0))
        body += cap(lambda: fst(tag + "t0"))
        t1 = cap(lambda: pa(1))
        t1 = evenly(t1, *mid1)
        body += chase(t1, after_p(1))
    P.put(body)
    fst(tag + "t1")

def umax(dst, regs):
    regs = list(regs)
    I("v_max3_u32", dst, regs[0], regs[1], regs[2]); regs = regs[3:]
    while len(regs) >= 2:
        I("v_max3_u32", dst, dst, regs[0], regs[1]); regs = regs[2:]
    if regs: I("v_max_u32", dst, dst, regs[0])

SLOW = []
def check_or_retry(tag, fold, cmp_bad, loads):
    g = singles(cap(fold))
    def test():
        cmp_bad()
        I("s_cbranch_vccnz", "L_slow_" + tag)
        P.label("L_back_" + tag)
    g.append(cap(test))
    def slow():
        P.label("L_slow_" + tag)
        I("s_mov_b32", sCNT, 0)
        P.label("L_sp_" + tag)
        loads()
        wait(vm=0)
        fold()
        cmp_bad()
        I("s_add_u32", sCNT, sCNT, 1)
        I("s_cmp_gt_u32", sCNT, SPIN)
        I("s_cbranch_scc1", "L_back_" + tag)
        I("s_cbranch_vccnz", "L_sp_" + tag)
        I("s_branch", "L_back_" + tag)
    SLOW.append(cap(slow))
    return g
def check_sent(tag, chk, regs, loads):
    return check_or_retry(tag, lambda: umax(chk, regs), lambda: I("v_cmp_eq_u32", "vcc", -1, chk), loads)
def check_tag(tag, chk, regs, loads):
    def fold():
        for r in regs: I("v_xor_b32", r, sTAG, r)
        I("v_or3_b32", chk, regs[0], regs[1], regs[2])
        for i in range(3, len(regs) - 1, 2): I("v_or3_b32", chk, chk, regs[i], regs[i + 1])
        I("v_or_b32", chk, chk, regs[-1])
        I("v_and_b32", chk, 0xff, chk)
    return check_or_retry(tag, fold, lambda: I("v_cmp_ne_u32", "vcc", 0, chk), loads)

def build():
    I("s_cmp_ge_u32", s(2), 256)
    I("s_cbranch_scc1", "L_end")
    I("s_bfe_u32", sA, s(2), 0x10002)
    I("s_cmp_lg_u32", sA, 0)
    I("s_cselect_b32", sT0, 0, 24)
    I("s_cselect_b32", sT1, 8, 32)
    I("s_cselect_b32", sT2, 16, 48)
    I("s_load_dwordx2", SX[0:2], s(0, 2), sT0)
    I("s_load_dwordx2", SW[0:2], s(0, 2), sT1)
    I("s_load_dwordx2", SWO[0:2], s(0, 2), sT2)
    I("s_load_dwordx2", SPHI[0:2], s(0, 2), 40)
    I("s_load_dwordx2", SOUT[0:2], s(0, 2), 56)
    I("s_load_dwordx2", SWS[0:2], s(0, 2), 72)
    I("s_getpc_b64", sPC)
    I("s_and_b32", sT0, s(2), 0xf8)
    I("v_lshrrev_b32", T[0], 5, v(0))
    I("v_add_lshl_u32", T[1], T[0], sT0, 7)
    I("s_cmp_ge_u32", sT0, "HEAD_LINES")
    I("s_cselect_b32", sT1, sA, 0)
    I("s_mul_i32", sT1, sT1, "A_SHIFT")
    I("v_add_u32", T[1], sT1, T[1])
    I("v_min_u32", T[1], "CODE_SPAN", T[1])
    I("global_load_dword", v(255), T[1], sPC)
    if OPT["stamps"]:
        I("s_memtime", s(98, 2)); I("s_memrealtime", s(96, 2))
    I("v_readfirstlane_b32", sWV, T[0])
    I("v_and_b32", vL, 63, v(0))
    I("s_and_b32", sT0, s(2), 3)
    I("s_lshr_b32", sT1, s(2), 6)
    I("s_lshr_b32", sWV, sWV, 1)
    I("s_lshl2_add_u32", sRT, sT0, sT1)
    I("s_bfe_u32", sG, s(2), 0x30003)
    if OPT["nphase"] == 3:
        I("s_add_u32", sT0, sG, sT1)
        I("s_mul_i32", sT1, sT0, 86)
        I("s_lshr_b32", sT1, sT1, 8)
        I("s_mul_i32", sT1, sT1, 3)
        I("s_sub_u32", sT0, sT0, sT1)
        I("s_mul_i32", sROT, sT0, 3)
    elif OPT["nphase"] == 2:
        I("s_add_u32", sT0, sG, sT1)
        I("s_and_b32", sT0, sT0, 1)
        I("s_lshl_b32", sROT, sT0, 2)
    else:
        I("s_mov_b32", sROT, 0)
    I("s_lshl2_add_u32", sSL, sRT, sWV)
    I("s_mul_i32", sOX, sSL, 32 * 1152)
    I("s_lshl_b32", sT0, sROT, 7)
    I("s_add_u32", sOX, sOX, sT0)
    I("s_lshl_b32", sMX, sWV, 12)
    I("s_mul_i32", sMQ, sWV, 4608)
    I("s_add_u32", sMW, sMQ, WSL)
    I("s_movk_i32", s1152, 1152)
    I("v_lshrrev_b32", T[0], 3, vL)
    I("v_mul_u32_u24", T[0], s1152, T[0])
    I("v_lshrrev_b32", vGL, 4, vL)
    I("v_and_b32", T[1], 7, vL)
    I("v_xor_b32", T[1], T[1], vGL)
    I("v_lshl_add_u32", vOX[0], T[1], 4, T[0])
    I("v_xor_b32", vOX[1], 64, vOX[0])
    I("v_add_u32", vOX[2], 16 * 1152 - 2048, vOX[0])
    I("v_add_u32", vOX[3], 24 * 1152 - 3072, vOX[1])
    I("v_add_u32", vOX[1], 8 * 1152 - 1024, vOX[1])
    I("s_mov_b32", SX[2], 2048 * 1152); I("s_mov_b32", SX[3], 0x20000)
    I("s_mov_b32", SW[2], 576 * 3456); I("s_mov_b32", SW[3], 0x20000)
    I("s_mul_i32", sL3, sG, 144)
    I("s_lshl2_add_u32", sT0, sROT, sWV)
    I("s_mul_i32", sOW, sT0, 16 * 3456)
    I("s_add_u32", sOW, sOW, sL3)
    I("s_add_u32", sOW, sOW, s1152)
    I("s_movk_i32", sL0, 3456); I("s_movk_i32", sL1, -144)
    I("v_lshlrev_b32", vL16, 4, vL)
    I("v_mul_u32_u24", vM, 7282, vL)
    DR = [v(64 + i) for i in range(5)]; DP = [v(70 + i) for i in range(5)]; DC = [v(76 + i) for i in range(5)]
    for i in range(5):
        t = vM
        if i:
            I("v_add_u32", T[0], Q0[i] * 7282, vM); t = T[0]
        I("v_lshrrev_b32", T[1], 16, t)
        I("v_lshrrev_b32", DR[i], 17, t)
        I("v_and_b32", DP[i], 1, T[1])
        I("v_mad_i32_i24", DC[i], T[1], sL1, vL16)
        if i == 2:
            I("v_lshrrev_b32", T[2], 1, DR[i]); I("v_and_b32", T[2], 4, T[2]); I("v_xor_b32", DR[i], DR[i], T[2])
        elif i > 2:
            I("v_xor_b32", DR[i], 4, DR[i])
        I("v_mad_u32_u24", T[2], DR[i], sL0, DC[i])
        I("v_mad_u32_u24", vOW[i], DP[i], s1152, T[2])
    for r_, z_ in ((SWO, 576 * 1152), (SPHI, 32 * 648), (SOUT, 2048 * 2304), (SWS, WS_BYTES)):
        I("s_mov_b32", r_[2], z_); I("s_mov_b32", r_[3], 0x20000)
    I("v_lshlrev_b32", vL4, 2, vL)
    I("s_lshl2_add_u32", sT2, sG, sWV); I("s_mul_i32", sT2, sT2, 648)
    I("s_lshl3_add_u32", sL2, sA, sG)
    I("s_lshl_b32", sAG, sL2, 13); I("s_add_u32", sAG, sAG, WS_F)
    I("s_sub_u32", sT0, 2, sA)
    I("s_min_u32", sT1, sWV, sT0); I("s_mul_i32", sT3, sRT, sT0); I("s_add_u32", sT3, sT3, sRT); I("s_add_u32", sRSB, sT1, sT3)
    I("s_lshl_b32", sT1, sRSB, 7); I("s_add_u32", sFSL, sAG, sT1)
    I("s_cmp_gt_u32", sWV, sT0)
    I("s_cselect_b32", sFSL, OOB, sFSL)
    I("s_lshl3_add_u32", sT0, sA, 0); I("s_and_b32", sT1, sRSB, 7); I("s_or_b32", sT0, sT0, sT1)
    I("s_cmp_eq_u32", sT0, 15)
    I("s_cselect_b32", sFSL, OOB, sFSL)
    I("s_subb_u32", sRSB, sRSB, 0)
    I("v_and_b32", vN, 15, vL)
    I("v_and_b32", T[7], 1, vGL)
    I("v_lshlrev_b32", T[0], 1, vGL); I("v_lshl_add_u32", T[0], vN, 3, T[0])
    I("v_lshl_or_b32", vFS, T[7], 30, T[0])
    I("v_mov_b32", M1[0], -1)
    I("s_mul_i32", sT0, sSL, 32 * 2304)
    I("s_add_u32", sT0, sT0, sL3)
    I("s_xor_b32", sT1, sA, 1); I("s_mul_i32", sT1, sT1, 1152); I("s_add_u32", sOUTB, sT0, sT1)
    I("s_lshl_b32", sT0, sA, 6); I("s_add_u32", sT0, sT0, sSL)
    I("s_lshl_b32", sRF, sT0, 7); I("s_add_u32", sRF, sRF, WS_R)
    I("v_lshlrev_b32", T[1], 20, vL)
    I("v_mov_b32", T[2], 0)
    I("s_lshl_b32", sT0, sA, 7); I("s_add_u32", sT0, sT0, WS_E)
    wait(lgkm=0)
    fst("karg")
    emit_groups(x_dma(0))
    I("s_load_dword", sE, SWS[0:2], sT0)
    for i in range(3):
        I("buffer_load_dword", PW[i], vL4, SPHI, sT2, mods="offen offset:%d" % (256 * i))
    I("buffer_store_dword", M1[0], vFS, SWS, sFSL, mods="offen sc1")
    I("buffer_load_dword", v(255), T[2], SWS, sRF, mods="offen sc1")
    if OPT["touch"]:
        I("buffer_load_dword", v(255), T[1], SWS, 0, mods="offen")
        I("buffer_load_dword", v(255), T[2], SOUT, sOUTB, mods="offen")
        I("buffer_load_dword", v(255), T[2], SWO, sL3, mods="offen")
    emit_groups(w_dma(0))
    stamp("S0iss")
    I("s_mov_b32", sG144, sL3)
    I("v_lshrrev_b32", T[0], 1, vN)
    I("v_xor_b32", T[0], T[0], vGL)
    I("v_lshl_add_u32", T[1], vN, 7, sMX)
    I("v_lshl_add_u32", vXR[0], T[0], 4, T[1])
    I("v_xor_b32", vXR[1], 64, vXR[0])
    I("v_bfe_u32", vR, vL, 2, 2)
    I("v_and_b32", vC, 3, vL)
    I("v_lshl_add_u32", T[1], vGL, 3, vR)
    I("v_lshl_add_u32", T[2], T[7], 2, T[1])
    I("v_xor_b32", T[3], 4, T[2])
    I("s_movk_i32", sT0, 288); I("v_mov_b32", T[4], WSL)
    I("v_mad_u32_u24", T[2], T[2], sT0, T[4]); I("v_mad_u32_u24", T[3], T[3], sT0, T[4])
    I("v_mul_u32_u24", T[0], 40, vC)
    I("v_lshrrev_b32", T[1], 1, vC)
    I("v_add_u32", vTR[0][0], T[2], T[0]); I("v_add_u32", vTR[0][1], T[3], T[0])
    I("v_lshlrev_b32", T[6], 5, T[1]); I("v_sub_u32", T[6], T[0], T[6])
    I("v_add3_u32", vTR[1][0], T[2], T[6], 24); I("v_add3_u32", vTR[1][1], T[3], T[6], 24)
    I("v_mul_u32_u24", T[6], 72, T[1])
    I("v_add3_u32", vTR[2][0], T[2], T[6], 32); I("v_add3_u32", vTR[2][1], T[3], T[6], 32)
    I("v_lshl_add_u32", vTR[3][0], vC, 3, T[2]); I("v_lshl_add_u32", vTR[3][1], vC, 3, T[3])
    I("v_and_b32", T[6], 1, vC); I("v_mul_u32_u24", T[6], 72, T[6])
    I("v_add3_u32", vTR[4][0], T[2], T[6], 32); I("v_add3_u32", vTR[4][1], T[3], T[6], 32)
    I("s_mov_b32", sT0, 32 * 3456 - 1152); I("s_movk_i32", sT1, 72)
    for i in range(5):
        I("v_mad_u32_u24", vOQ[i], DP[i], sT0, vOW[i])
        I("v_lshl_add_u32", T[0], DP[i], 3, DR[i])
        I("v_and_b32", T[3], 1, DR[i])
        if i == 2:
            I("v_lshrrev_b32", T[1], 3, DR[i])
            I("v_mad_u32_u24", T[0], T[1], 12, T[0])
            I("v_lshl_add_u32", T[3], T[1], 1, T[3])
        elif i > 2:
            I("v_add_u32", T[0], 12, T[0])
        I("v_mad_u32_u24", vOO[i], T[0], s1152, DC[i])
        I("v_bfe_u32", T[2], DR[i], 1, 2)
        I("v_lshl_add_u32", T[2], DP[i], 2, T[2])
        I("v_add_u32", T[2], sG, T[2]); I("v_and_b32", T[2], 7, T[2])
        I("v_add_u32", T[3], 18 if i > 2 else 16, T[3])
        I("v_mad_u32_u24", T[2], T[2], sT1, T[3])
        I("v_mad_u32_u24", vO8[i], T[2], s1152, DC[i])
    for i in range(4): I("v_mov_b32", v(84 + i), 0)
    I("s_mul_i32", sT1, sWV, 384); I("s_add_u32", sT1, sT1, ZERO)
    I("v_min_u32", T[0], 23 * 16, vL16); I("v_add_u32", T[0], sT1, T[0])
    I("ds_write_b128", T[0], v(84, 4))
    I("s_mul_i32", sT0, sWV, 960); I("s_add_u32", sT0, sT0, PHI)
    for i in range(3):
        t = vM
        if i:
            I("v_add_u32", T[0], 64 * i * 7282, vM); t = T[0]
        I("v_lshrrev_b32", T[0], 16, t); I("v_add_u32", T[0], T[0], vL)
        I("v_lshl_add_u32", PA[i], T[0], 2, sT0)
    I("v_cmp_eq_u32", "vcc", vC, vGL)
    I("v_mul_u32_u24", T[0], 40, vR)
    I("v_mul_u32_u24", T[1], 1040, vGL)
    I("v_mov_b32", T[3], ZERO)
    I("v_add3_u32", T[1], T[1], T[0], T[3])
    I("v_add_u32", T[2], (PHI - ZERO) & 0xffffffff, T[1])
    I("v_cndmask_b32", vPH[0], T[3], T[2], "vcc")
    I("v_lshrrev_b32", T[4], 1, vGL); I("v_mul_u32_u24", T[4], 640, T[4])
    I("v_sub_u32", T[2], T[2], T[4]); I("v_add_u32", T[2], 480, T[2])
    I("v_cndmask_b32", vPH[1], T[3], T[2], "vcc")
    I("v_mul_u32_u24", T[1], 1920, vGL); I("v_add_u32", T[1], T[1], T[0]); I("v_add_u32", T[2], KVI, T[1])
    I("v_cndmask_b32", vPSA, T[3], T[2], "vcc")
    I("v_mul_u32_u24", T[1], 960, vGL); I("v_mul_u32_u24", T[4], 640, T[7])
    I("v_sub_u32", T[1], T[1], T[4]); I("v_add_u32", T[1], T[1], T[0]); I("v_add_u32", T[1], PHI + 640, T[1])
    I("v_cndmask_b32", T[1], T[3], T[1], "vcc")
    I("v_cmp_gt_u32", "vcc", 2, vR)
    I("s_mul_i32", sPME, sL2, PGRP)
    I("s_lshl_b32", sRSB, sRSB, 12)
    I("v_cndmask_b32", vPH[2], T[3], T[1], "vcc")
    I("s_add_u32", sRSB, sRSB, sPME)
    stamp("P1")
    emit_groups(stage_dma(1))
    stamp("S1iss")
    def touch_round(r):
        I("s_lshl2_add_u32", sCNT, sA, sWV)
        I("s_mov_b64", "exec", 0)
        for k_ in range(7):
            I("s_cmp_eq_u32", sCNT, k_)
            I("s_cbranch_scc1", "L_th%s%d%d" % ("BA"[k_ // 4], r, k_ % 4))
        I("s_branch", "L_thA%d3" % r)
        P.label("L_tret%d" % r)
        I("s_mov_b64", "exec", -1)
    if OPT["itouch"]:
        P.touch = {"L_tailA"}; P.rounds = 2

    def late():
        I("s_and_b32", sL0, sWV, 1); I("s_lshr_b32", sL1, sWV, 1)
        I("s_mul_i32", sL2, sL0, 16 * 3456); I("s_add_u32", sL2, sL2, sG144)
        I("s_add_u32", sQE, sL2, 9 * WSTEP)
        I("s_add_u32", sL3, sL1, sROT); I("s_mul_i32", sL3, sL3, WSTEP); I("s_add_u32", sOQ, sL3, sL2)
        I("s_mul_i32", sO8, sL0, 36 * 1152); I("s_add_u32", sO8, sO8, sG144)
        I("s_add_u32", sOE, sO8, 8 * 82944)
        I("s_add_u32", sL3, sL1, sG); I("s_and_b32", sL3, sL3, 7); I("s_mul_i32", sL3, sL3, 82944); I("s_add_u32", sOO, sL3, sO8)
        I("s_mov_b32", sC[0], f2u(LOG2E)); I("s_mov_b32", sC[1], f2u(LOG2E))
        I("s_mov_b32", sEPS[0], f2u(1e-6)); I("s_mov_b32", sEPS[1], f2u(1e-6))
        I("s_mov_b32", sODD[0], 0xffff0000); I("s_mov_b32", sODD[1], 0xffff0000)
        I("s_add_u32", sE, sE, 1); I("s_and_b32", sTAG, sE, 0xff); I("s_mov_b32", sMSK, 0xffffff00)
        I("s_getreg_b32", sL0, "hwreg(HW_REG_XCC_ID, 0, 4)")
        I("s_lshl4_add_u32", sRV, sE, sL0)
        for i in range(1, 4): I("v_mov_b32", M1[i], -1)
        I("s_sub_u32", sL2, 3, sA); I("s_mul_i32", sL2, sL2, sWV)
        I("s_lshl_b32", sL1, sL2, 14); I("s_add_u32", sPME, sPME, sL1)
        I("s_lshl_b32", sL1, sRT, 8); I("s_add_u32", sPME, sPME, sL1)
        I("s_lshl_b32", sL1, sL2, 9); I("s_add_u32", sAG, sAG, sL1)
        I("s_lshr_b32", sL1, sWV, 1)
        I("s_mul_i32", sQ8, sL1, 0x40000000); I("s_mul_i32", sM8, sL1, 100000); I("s_add_u32", sM8, sM8, sMQ)
        I("s_lshl_b32", sL0, sA, 6); I("s_add_u32", sL0, sL0, sSL)
        I("s_mul_i32", sOB, sL0, 8 * 4608); I("s_add_u32", sOB, sOB, WS_O)
        I("s_lshl_b32", sL0, sG144, 5); I("s_add_u32", sOU[0], sL0, sOB)
        for u in range(1, 8):
            I("s_add_u32", sL0, sG, u); I("s_and_b32", sL0, sL0, 7)
            I("s_mul_i32", sL0, sL0, 4608); I("s_add_u32", sOU[u], sL0, sOB)
        I("v_add_u32", vL4, 4096, vL4)
        I("v_lshl_add_u32", T[0], vGL, 2, vR)
        I("v_mul_u32_u24", T[0], 72, T[0])
        I("s_lshl_b32", sL0, sMQ, 1)
        I("v_add_u32", vKB2, sL0, T[0])
        I("v_lshl_add_u32", vKB0, vC, 3, vKB2)
        for p in range(2):
            for i in (9, 10, 11): I("v_mov_b32", KB[p][i], 0)
            for i in (18, 19): I("v_mov_b32", PH[p][i], 0)
        I("v_mul_u32_u24", T[0], 9216, vGL)
        I("v_mul_u32_u24", T[1], 72, vN)
        I("s_lshr_b32", sL0, sMQ, 1)
        I("v_add3_u32", vIW, T[0], T[1], sL0)
        I("s_mul_i32", sL0, sWV, 5120); I("s_add_u32", sL0, sL0, VF)
        I("v_add_u32", vVW, sL0, vL16)
        I("s_lshl_b32", sL0, sWV, 10); I("s_add_u32", sL0, sL0, VF)
        I("v_add_u32", vAM, sL0, vL16)
        I("s_lshl_b32", sL0, sWV, 1)
        I("v_cmp_gt_u32", "vcc", 2, vN)
        I("v_add_u32", T[3], sL0, vN)
        I("v_lshlrev_b32", T[0], 4, vN); I("v_lshl_add_u32", vP1, vGL, 12, T[0])
        I("v_cndmask_b32", T[3], 8, T[3], "vcc")
        I("v_lshl_add_u32", T[3], vGL, 4, T[3])
        I("v_lshlrev_b32", T[3], 4, T[3]); I("v_add_u32", vAL, VF + 4096, T[3])
        I("v_cmp_gt_u32", "vcc", 4, vN)
        I("v_mov_b32", T[4], OOB)
        I("v_lshl_add_u32", T[0], vGL, 2, vN); I("v_lshlrev_b32", T[0], 4, T[0])
        I("v_cndmask_b32", vP2, T[4], T[0], "vcc")
        I("v_cmp_gt_u32", "vcc", 16, vL)
        I("s_mul_i32", sL1, sWV, 1920); I("s_add_u32", sL1, sL1, KVI)
        I("v_cndmask_b32", vP3, T[4], vL16, "vcc")
        I("v_mul_u32_u24", T[1], 40, vN); I("v_lshl_add_u32", T[1], vGL, 3, T[1])
        I("v_add_u32", vAG1, sL1, T[1])
        I("v_mul_u32_u24", T[2], 40, vC); I("v_lshrrev_b32", T[3], 2, vL)
        I("s_lshr_b32", sL0, 32 * 40, sA)
        I("v_lshl_add_u32", T[2], T[3], 3, T[2]); I("v_add_u32", T[2], sL0, T[2])
        I("v_mul_u32_u24", T[3], 40, vL); I("v_add_u32", T[3], (32 - 16 * 40) & 0xffffffff, T[3])
        I("v_cndmask_b32", T[2], T[3], T[2], "vcc"); I("v_add_u32", vAG2, sL1, T[2])
        for t in range(5):
            I("v_accvgpr_write_b32", PHIF(t, 2)[2], 0); I("v_accvgpr_write_b32", PHIF(t, 2)[3], 0)
    lt = singles(cap(late))

    wait_vm("S0", lgkm=0)
    I("s_barrier")
    stamp("S0land")
    pipe = Pipe(dist=4)
    RT = list(range(-4, 10)) + [10, 10, 11, 11, 12, 12]
    fill = []
    for j in range(9):
        slot = j % 3
        order = [(kap, T_) for kap in range(2) for T_ in range(10)]
        if j == 8: order = [(kap, T_) for T0 in (0, 5) for kap in range(2) for T_ in range(T0, T0 + 5)]
        seen = set()
        for m, (kap, T_) in enumerate(order):
            ks = 2 * j + kap
            ring = RING[(20 * j + m) % 8]
            def rd():
                if kap not in seen:
                    seen.add(kap)
                    for p in range(2):
                        I("ds_read_b128", XF(ks, p), vXR[kap], mods="offset:%d" % (slot * XSLOT + p * 2048))
                tile_read(ring, T_, slot * WSLOT + kap * 9216)
            def work():
                for p in range(2):
                    if T_ < 5: mfma(ACK[p][T_], ring, XF(ks, p), 0 if ks == 0 else ACK[p][T_])
                    else: mfma(ACV[p][T_ - 5], XF(ks, p), ring, 0 if ks == 0 else ACV[p][T_ - 5])
            pipe.add(rd, work, rt=20 * j + RT[m])
        def hook():
            if OPT["itouch"] and 20 * j + 16 == OPT["t0"]: touch_round(0)
            if OPT["itouch"] and 20 * j + 16 == OPT["t1"]: touch_round(1)
            if j < 8: wait_vm("S%d" % (j + 1), lgkm=0)
            else: wait(lgkm=0)
            I("s_barrier")
            if OPT["p1st"]: stamp("b%d" % (j + 1))
        pipe.hooks[20 * j + 16] = cap(hook)
        t0 = max(0, 20 * j - 4)
        if j + 2 < 9: fill += spread(stage_dma(j + 2), t0, 20 * j + 13)
        elif j == 7: fill += spread(wq_pair_dma(0) + wq_pair_dma(2), t0 + 2, 20 * j + 36)
    if OPT["pfq"]:
        fill += at(OPT["pfq"], singles(cap(lambda: prefetch("wq"))))
    if OPT["pfo"] > 1:
        fill += at(OPT["pfo"], singles(cap(lambda: prefetch("wo"))))
    fill.sort(key=lambda t: t[0])
    phw = singles(cap(lambda: [I("ds_write_b32", PA[i], PW[i], mods="offset:%d" % (256 * i)) for i in range(3)]))
    def phir():
        for t in range(5):
            for tp in range(5):
                ad, o = (vPH[0], 160 * tp) if tp < 3 else (vPH[tp - 2], 0)
                tr(PHIF(t, tp // 2)[2 * (tp & 1):2 * (tp & 1) + 2], ad, 8 * t + o)
    phr = singles(cap(phir))
    nl = len(lt)
    bulk = spread(lt[:8], -1, -1) + spread(lt[8:30], 0, 24) + spread(phw, 24, 30) + spread(lt[30:40], 30, 42)
    bulk += spread(phr, 42, 80) + spread(lt[40:], 80, 150)
    bulk += spread(singles(cap(lambda: (cv(0), cv(1)))), 178, 180)
    pipe.emit(fill, bulk)
    stamp("pass1")

    I("s_cmp_lg_u32", sA, 0)
    I("s_cbranch_scc1", "L_tailA")
    P.label("L_tailB")
    names0 = list(stamp_names); mute0 = OPT.get("mute")
    P.put(mark(cap(lambda: tail("B")), path="B"))
    P.label("L_end")
    P.label("L_notouchB")
    I("s_endpgm")
    for sl in SLOW: P.put(mark(sl, path="B"))
    del SLOW[:]
    stamp_names[:] = names0; OPT["mute"] = mute0
    P.raw(".p2align 7")
    P.label("L_dotouch")
    P.label("L_tailA")
    P.put(mark(cap(lambda: (I("s_nop", 7), tail("A"))), path="A"))
    P.label("L_notouchA")
    I("s_endpgm")
    for sl in SLOW: P.put(mark(sl, path="A"))
    P.label("L_last")

def prefetch(kind):
    I("s_lshr_b32", sT2, s(2), 3); I("s_lshl2_add_u32", sT2, sT2, sWV); I("s_mul_i32", sT2, sT2, 81); I("s_lshr_b32", sT2, sT2, 1)
    I("v_min_u32", T[5], 40, vL); I("v_add_u32", T[5], sT2, T[5])
    if kind == "wo":
        I("v_lshlrev_b32", T[5], 7, T[5])
        I("buffer_load_dword", v(255), T[5], SWO, 0, mods="offen")
    else:
        I("v_mul_u32_u24", T[6], 7282, T[5]); I("v_lshrrev_b32", T[6], 16, T[6])
        I("v_mul_u32_u24", T[6], 18, T[6]); I("v_add_lshl_u32", T[5], T[5], T[6], 7)
        I("buffer_load_dword", v(255), T[5], SW, 0, mods="offen")

def rebase(delta):
    for pat in range(3):
        for e in range(2):
            I("v_add_u32", vTR[pat][e], delta & 0xffffffff, vTR[pat][e])

def tail(path):
    B = path == "B"
    FT = [0, 1, 2] if B else [0, 2]
    PHI_ = PH if B else KB
    NJ = 5 if B else 3
    def poison():
        for i in range(4):
            I("buffer_store_dwordx4", M1, vL16, SWS, sOU[0], mods="offen offset:%d sc1" % (1024 * i))
        for i in range(2):
            I("buffer_store_dword", M1[0], vL4, SWS, sOU[0], mods="offen offset:%d sc1" % (256 * i))
    def vpack():
        I("v_cmp_eq_u32", "vcc", 8, vN)
        I("v_mov_b32", T[0], 0x3f803f80)
        for t in range(5):
            d = ACV[0][t]
            for p in range(2):
                for h in range(2):
                    I("v_cvt_pk_bf16_f32", d[2 * p + h], ACV[p][t][2 * h], ACV[p][t][2 * h + 1])
        for i in range(4): I("v_cndmask_b32", ACV[0][4][i], ACV[0][4][i], T[0], "vcc")
    def prewarm():
        I("v_min_u32", T[1], 35, vL); I("v_lshlrev_b32", T[1], 7, T[1])
        I("buffer_load_dword", v(255), T[1], SWS, sOU[0], mods="offen sc1")
    vp = singles(cap(vpack))
    w = singles(cap(lambda: [I("ds_write_b128", vVW, ACV[0][t], mods="offset:%d" % (1024 * t)) for t in range(5)]))
    q = tagged(singles(cap(poison)), "POIS")
    pwm = [cap(prewarm)] if OPT["pw"] else []
    pfo = [cap(lambda: prefetch("wo"))] if OPT["pfo"] == 1 else []
    q4, q6, q8 = vm_only(wq_pair_dma(4)), vm_only(wq_pair_dma(6)), vm_only(wq_pair_dma(8))
    if B:
        ksh = weave(q4[:4], vp); km0 = weave(q4[4:] + q6, w); km1 = q8 + pfo + q
        late_q = []
    else:
        ksh = weave(q4[:1], vp); km0 = weave(q4[1:], w); km1 = q6[:3] + pfo + q
        late_q = q6[3:] + q8
    def kwrites(p):
        return singles(cap(lambda: [I("ds_write_b64", vIW, PHI_[p][2 * i:2 * i + 2], mods="offset:%d" % (IMG + p * 1152 + 8 * i)) for i in range(9 if B else 5)]))
    feature_map(path, "k", True, ksh, (km0, 2, 98), (km1, 0, 70 if B else 95), kwrites)
    wait(lgkm=0)
    I("s_barrier")
    stamp("kpost")
    DM = [v(104 + 4 * j, 4) for j in range(3)]; DL = [v(116 + 4 * j, 4) for j in range(3)]
    pipe = Pipe(dist=3, grp=1)
    n = 0
    for j in FT:
        for src in range(4):
            AM, AL = v(64 + 8 * src, 4), v(68 + 8 * src, 4)
            BF = RING[n % 8]; n += 1
            def rd():
                if j == 0: I("ds_read_b128", AM, vAM, mods="offset:%d" % (src * 5120))
                for e in range(2):
                    tr(BF[2 * e:2 * e + 2], vKB0 if j < 2 else vKB2, IMG + src * 2304 + e * 1152 + (32 * j if (B or j < 2) else 32))
                if j == 0: I("ds_read_b128", AL, vAL, mods="offset:%d" % (src * 5120))
            def work():
                mfma(DM[j], AM, BF, 0 if src == 0 else DM[j])
                mfma(DL[j], AL, BF, 0 if src == 0 else DL[j])
            pipe.add(rd, work)
    SLM = {0: 0, 1: 4, 2: 8} if B else {0: 0, 2: 4}
    SLL = {0: 9, 1: 10, 2: 11} if B else {0: 5, 2: 6}
    def pstore(j):
        for D, ad, sl in ((DM[j], vP1 if j < 2 else vP2, SLM[j]), (DL[j], vP3, SLL[j])):
            if sl: I("s_add_u32", sT1, sPME, sl * 4096)
            for i in range(4): I("v_and_or_b32", D[i], D[i], sMSK, T[0])
            I("buffer_store_dwordx4", D, ad, SWS, sT1 if sl else sPME, mods="offen sc1")
    fill = at(1, singles(cap(lambda: (I("v_mov_b32", T[0], sTAG), rebase(WQ0 - WSL)))))
    for k_, j in enumerate(FT[:-1]): fill += spread(tagged(singles(cap(lambda: pstore(j))), "P"), 4 * k_ + 5, 4 * k_ + 8)
    pipe.emit(fill)
    fst("kvmm")
    pstore(FT[-1])
    stamp("pubP")
    wait_vm("WQ4")
    I("s_barrier")
    stamp("wqland")

    def gemm2(bfrag, offs, rebases, fill, nm, hooks={}):
        pipe = Pipe(dist=4)
        pipe.hooks = hooks
        n = 0
        for ks in range(18):
            for T_ in range(5):
                ring = RING[n % 8]; n += 1
                def rd():
                    if T_ == 0 and ks in rebases: rebase(rebases[ks])
                    tile_read(ring, T_, offs(ks))
                def work():
                    for p in range(2):
                        mfma(ACK[p][T_], ring, bfrag(ks, p), 0 if ks == 0 else ACK[p][T_])
                pipe.add(rd, work, (lambda: fst("%s%d" % (nm, ks))) if T_ == 0 else None)
        pipe.emit(fill)
    RS = v(128, 16)
    vCK = T[6]
    def rs_loads():
        for i in range(4):
            I("buffer_load_dwordx4", RS[4 * i:4 * i + 4], vL16, SWS, sRSB, mods="offen offset:%d sc1" % (1024 * i))
    def rs_reduce():
        for st in (8, 4):
            for i in range(st): I("v_add_f32", RS[i], RS[i], RS[i + st])
        I("v_permlane32_swap_b32", RS[0], RS[2]); I("v_permlane32_swap_b32", RS[1], RS[3])
        I("v_add_f32", RS[0], RS[0], RS[2]); I("v_add_f32", RS[1], RS[1], RS[3])
        I("v_mov_b32", RS[2], RS[0]); I("v_mov_b32", RS[3], RS[1])
        I("v_permlane16_swap_b32", RS[0], RS[2]); I("v_permlane16_swap_b32", RS[1], RS[3])
        I("v_add_f32", RS[0], RS[0], RS[2]); I("v_add_f32", RS[1], RS[1], RS[3])
        I("v_cvt_pk_bf16_f32", RS[0], RS[0], RS[1])
        I("buffer_store_dword", RS[0], vFS, SWS, sFSL, mods="offen sc1")
    vRV, vRA = T[7], T[8]
    def rflag():
        I("v_mov_b32", vRV, sRV); I("s_lshl_b32", sT1, sG, 2); I("v_mov_b32", vRA, sT1)
        I("buffer_store_dword", vRV, vRA, SWS, sRF, mods="offen sc1")
    ra, rc = OPT["rs_at"], OPT["rs_chk"]
    if not B: ra -= OPT["dA"]; rc -= OPT["dA"]
    fill = spread(late_q if late_q else wo_pair_dma(0), 4, 30)
    fill += spread(tagged(singles(cap(rs_loads)), "RS"), ra, ra + 4)
    fill += spread(wo_pair_dma(2 if B else 0), ra + 4, rc)
    w4 = spread(wo_pair_dma(4 if B else 2), rc + 1, rc + OPT["rs_len"] - 2)
    chk = [cap(lambda: wait_vm("RS"))] + singles(sum(pwm, [])) + check_tag("rs" + path, vCK, [RS[i] for i in range(16)], rs_loads) + singles(cap(rs_reduce)) + singles(cap(rflag))
    fill += sorted(spread(chk, rc, rc + OPT["rs_len"]) + w4, key=lambda t: t[0])
    gemm2(XF, lambda ks: ((ks // 2) % 6) * 9216 + (ks & 1) * 144, {12: WQ6 - WQ0}, fill, "q", {54: cap(lambda: (wait_vm("WQ8"), I("s_barrier")))})
    stamp("qgemm")

    NAG = 3 if B else 2
    AG = v(104, 2 * NAG); RF = v(112)
    def ag_loads():
        for i in range(NAG):
            I("buffer_load_dwordx2", AG[2 * i:2 * i + 2], T[5] if (B or i == 0) else T[3], SWS, sAG, mods="offen offset:%d sc1" % (512 * i))
    def rf_load(): I("buffer_load_dword", RF, T[4], SWS, sRF, mods="offen sc1")
    def qsh():
        I("v_lshlrev_b32", T[5], 3, vL)
        if not B: I("v_min_u32", T[3], 47 * 8, T[5])
        I("v_and_b32", T[4], 7, vL); I("v_lshlrev_b32", T[4], 2, T[4])
        rebase(WO0 - WQ6)
    fr = OPT["ag_frac"] if B else OPT["ag_fracA"]
    g = singles(cap(rf_load)) + tagged(singles(cap(ag_loads)), "AG")
    lo = (fr - 50) * 2
    w6 = vm_only(wo_pair_dma(6 if B else 4))
    if B: feature_map(path, "q", False, weave(singles(cap(qsh)), w6[:3]), (w6[3:], 10, 70), (g, lo, min(100, lo + 10)), lambda p: [])
    else: feature_map(path, "q", False, singles(cap(qsh)), (w6[:3], 0, 100), (w6[3:] + g, 0, 100), lambda p: [])
    stamp("qpost")
    for t in range(5):
        I("v_accvgpr_write_b32", PSIF(t, NJ - 1)[2], 0); I("v_accvgpr_write_b32", PSIF(t, NJ - 1)[3], 0)
    wait_vm("AG")
    fst("agw")
    emit_groups(check_sent("ag" + path, vCK, [AG[i] for i in range(2 * NAG)], ag_loads))
    fst("agok")
    I("ds_write_b64", vAG1, AG[0:2])
    if B: I("ds_write_b64", vAG1, AG[2:4], mods="offset:640")
    I("ds_write_b64", vAG2, AG[2 * NAG - 2:2 * NAG])
    wait(lgkm=0)
    I("s_barrier")
    stamp("gotkv")

    pool = list(range(104, 144, 4)) + list(range(176, 256, 4)) + [12, 16, 28, 32, 36, 40]
    OF = {}
    keys = [(0, p, X) for X in range(2) for p in range(2)] + [("L", k, p) for k in range(2) for p in range(2)] + [(u, p, X) for u in range(1, 8) for p in range(2) for X in range(2)]
    for k_, r_ in zip(keys, pool): OF[k_] = v(r_, 4)
    o = ACC
    pipe = Pipe(dist=4)
    for t in (4, 0, 1, 2, 3):
        for j in range(NJ):
            def rd():
                tr(PSIF(t, j)[0:2], vPSA, 8 * t + 8 * j * 40)
                if j < NJ - 1: tr(PSIF(t, j)[2:4], vPSA, 8 * t + (8 * j + 4) * 40)
            def work():
                for p in range(2):
                    mfma(ACK[p][t], PSIF(t, j), PHI_[p][4 * j:4 * j + 4], 0 if j == 0 else ACK[p][t])
            pipe.add(rd, work)
    def ostore(key, flag=""):
        if key[0] == "L": I("buffer_store_dword", OF[key][0], vL4, SWS, sOU[0], mods="offen offset:%d%s" % (key[2] * 256, flag))
        else: I("buffer_store_dwordx4", OF[key], vL16, SWS, sOU[0], mods="offen offset:%d%s" % (key[1] * 2048 + key[2] * 1024, flag))
    def fin_den():
        for p in range(2): I("v_add_f32", o[p][18], sEPS[0], o[p][18])
        for p in range(2): I("v_rcp_f32", o[p][18], o[p][18])
        for p in range(2):
            for i in (16, 17): I("v_mul_f32", o[p][i], o[p][i], o[p][18])
        for p in range(2):
            I("v_cvt_pk_bf16_f32", OF[("L", 0, p)][0], o[p][16], o[p][17])
            ostore(("L", 0, p))
    def fin_tile(t, packed):
        for p in range(2):
            if packed:
                for i in (4 * t, 4 * t + 2): I("v_pk_mul_f32", o[p][i:i + 2], o[p][i:i + 2], o[p][18:20], mods="op_sel:[0,0] op_sel_hi:[1,0]")
            else:
                for i in range(4 * t, 4 * t + 4): I("v_mul_f32", o[p][i], o[p][i], o[p][18])
            for h in range(2):
                I("v_cvt_pk_bf16_f32", OF[(0, p, t // 2)][2 * (t & 1) + h], o[p][4 * t + 2 * h], o[p][4 * t + 2 * h + 1])
            if t & 1: ostore((0, p, t // 2))
    rfchk = check_or_retry("rf" + path, lambda: I("v_xor_b32", vCK, sRV, RF), lambda: I("v_cmp_lt_u32", "vcc", 15, vCK), rf_load)
    rfchk += [cap(lambda: I("v_cmp_ne_u32", s(50, 2), 0, vCK))]
    w8 = vm_only(([] if B else wo_pair_dma(6)) + singles(cap(lambda: I("s_add_u32", sO8, sO8, sQ8))) + tagged(dma5(vO8, SWO, sO8, sM8, WO6 + 2 * 9216), "WO8"))
    fill = at(0, rfchk)
    fill += spread(singles(cap(fin_den)), NJ + 2, 2 * NJ + 1)
    for t in range(3): fill += spread(singles(cap(lambda: fin_tile(t, False))), (2 + t) * NJ + 1 + (1 if B else 0), (3 + t) * NJ + 1)
    fill = sorted(fill + spread(w8, 0, 4 * NJ), key=lambda t: t[0])
    pipe.emit(fill)
    fst("omm")
    fin_tile(3, True)
    I("s_cmp_lg_u64", s(50, 2), 0)
    I("s_cbranch_scc1", "L_far" + path)
    P.label("L_near" + path)
    def far():
        P.label("L_far" + path)
        for key in keys[:4] + [("L", 0, 0), ("L", 0, 1)]: ostore(key, " sc1")
        wait(vm=0)
        I("buffer_store_dword", vRV, vRA, SWS, sRF, mods="offen offset:32 sc1")
        I("s_mov_b32", sCNT, 0)
        P.label("L_farp" + path)
        I("buffer_load_dword", vCK, T[4], SWS, sRF, mods="offen offset:32 sc1")
        wait(vm=0)
        I("v_xor_b32", vCK, sRV, vCK)
        I("v_cmp_lt_u32", "vcc", 15, vCK)
        I("s_add_u32", sCNT, sCNT, 1)
        I("s_cmp_gt_u32", sCNT, SPIN)
        I("s_cbranch_scc1", "L_near" + path)
        I("s_cbranch_vccnz", "L_farp" + path)
        I("s_branch", "L_near" + path)
    SLOW.append(cap(far))
    stamp("pubO")

    def oload(u):
        for X in (1, 0):
            for p in (1, 0):
                I("buffer_load_dwordx4", OF[(u, p, X)], vL16, SWS, sOU[u], mods="offen offset:%d sc1" % (p * 2048 + X * 1024))
        for p in range(2):
            I("buffer_load_dword", OF[("L", u // 4, p)][u % 4], vL4, SWS, sOU[u], mods="offen offset:%d sc1" % (p * 256))
    def bf(ks, p):
        if ks < 16: return OF[(ks // 2, p, ks & 1)]
        return OF[("L", ks - 16, p)]
    offs = lambda ks: ((ks // 2) % 6) * 9216 + (ks & 1) * 144
    vW1, vW2, vW3, vRD = vIW, vVW, vAM, vAL
    vST = [vP2, vPSA, vKB0, vKB2, vP1]
    def out_addr():
        I("s_add_u32", sT0, sMQ, OUTB)
        I("v_mul_u32_u24", T[0], 144, vN); I("v_add_u32", T[0], sT0, T[0])
        I("v_mul_u32_u24", T[1], 40, vGL); I("v_add_u32", vW1, T[0], T[1])
        I("v_lshrrev_b32", T[4], 1, vGL)
        I("v_lshlrev_b32", T[2], 5, T[4]); I("v_sub_u32", vW2, vW1, T[2])
        I("v_mul_u32_u24", T[3], 72, T[4]); I("v_add_u32", vW3, T[0], T[3])
        I("v_add_u32", vRD, sT0, vL16)
        I("s_movk_i32", sT1, 2304 - 144)
        for i in range(5):
            t = vM
            if i:
                I("v_add_u32", T[3], Q0[i] * 7282, vM); t = T[3]
            I("v_lshrrev_b32", T[0], 16, t)
            I("v_mad_u32_u24", vST[i], T[0], sT1, vL16)
    NPRE = OPT["npre"]
    wait_vm("WO8")
    I("s_barrier")
    stamp("ackO")
    I("s_mov_b32", sT2, 0)
    P.label("L_redo" + path)
    g = []
    for u in range(1, NPRE + 1): g += tagged(singles(cap(lambda: oload(u))), "O%d" % u)
    fill = spread(g, 0, 7)
    def ochk(u):
        regs = [OF[(u, 0, 1)][3], OF[(u, 1, 1)][3], OF[(u, 1, 0)][3]]
        return [cap(lambda: wait_vm("O%d" % u))] + check_sent("o%d%s" % (u, path), vCK, regs, lambda: oload(u))
    for u in range(0, 7):
        b0 = u * 10
        blk = spread(ochk(u + 1), b0 + 6, b0 + 6)
        if u and u + NPRE <= 7: blk += spread(tagged(singles(cap(lambda: oload(u + NPRE))), "O%d" % (u + NPRE)), b0, b0 + 10)
        fill += sorted(blk, key=lambda t: t[0])
    fill += spread(singles(cap(out_addr)), 70, 88)
    gemm2(bf, offs, {12: WO6 - WO0}, fill, "o")
    stamp("ogemm")
    I("v_cmp_u_f32", "vcc", ACK[0][0][0], ACK[1][0][0])
    I("s_cbranch_vccnz", "L_again" + path)
    P.label("L_done" + path)
    def again():
        P.label("L_again" + path)
        I("s_add_u32", sT2, sT2, 1)
        I("s_cmp_gt_u32", sT2, 200)
        I("s_cbranch_scc1", "L_done" + path)
        rebase(WO0 - WO6)
        I("s_nop", 7)
        I("s_branch", "L_redo" + path)
    SLOW.append(cap(again))
    OUTR = v(104, 20)
    for p in range(2):
        for t in range(5):
            for h in range(2):
                I("v_cvt_pk_bf16_f32", OUTR[10 * p + 2 * t + h], ACK[p][t][2 * h], ACK[p][t][2 * h + 1])
            ad, off = (vW1, 8 * t) if t < 3 else ((vW2, 24) if t == 3 else (vW3, 32))
            I("ds_write_b64", ad, OUTR[10 * p + 2 * t:10 * p + 2 * t + 2], mods="offset:%d" % (off + p * 2304))
    OB = v(176, 20)
    for i in range(5):
        I("ds_read_b128", OB[4 * i:4 * i + 4], vRD, mods="offset:%d" % (16 * Q0[i]))
    fl = ["", " sc1", " nt", " sc0 sc1"][OPT["outflag"]]
    wait(lgkm=4)
    I("s_mov_b32", "exec_hi", 0)
    I("buffer_store_dwordx4", OB[0:4], vST[0], SOUT, sOUTB, mods="offen" + fl)
    I("s_mov_b32", "exec_hi", -1)
    for i in range(1, 5):
        wait(lgkm=4 - i)
        I("buffer_store_dwordx4", OB[4 * i:4 * i + 4], vST[i], SOUT, sOUTB, mods="offen offset:%d%s" % (16 * Q0[i], fl))
    I("s_or_b32", sT0, sSL, sG)
    I("s_cmp_lg_u32", sT0, 0)
    I("s_cbranch_scc1", "L_noep" + path)
    I("s_lshl_b32", sT0, sA, 7); I("s_add_u32", sT0, sT0, WS_E)
    I("v_mov_b32", T[0], 0); I("v_mov_b32", T[1], sE)
    I("buffer_store_dword", T[1], T[0], SWS, sT0, mods="offen")
    P.label("L_noep" + path)
    if OPT["stamps"]:
        stamp("stiss")
        if B: P.label("L_fin")
        OPT["mute"] = 0
        wait(vm=0)
        stamp("end")
        I("s_memrealtime", s(100, 2))
        wait(lgkm=0)
        if OPT["fine"]:
            for k, nm in enumerate(OPT["fine"].split(",")):
                stamp_names.append(nm); STAMPS[k] = s(4 + 2 * k)
        n = len(stamp_names)
        for k in range(n):
            if OPT["lite"] and k != OPT["amp"] and k != n - 1: continue
            assert OPT["lite"] or n <= 17
            I("s_sub_u32", STAMPS[k], STAMPS[k], s(96 if OPT["lite"] == 2 else 98))
            I("v_mov_b32", v(64 + k), STAMPS[k])
        I("v_mov_b32", v(64 + 30), s(96)); I("v_mov_b32", v(64 + 31), s(100))
        I("s_lshl_b32", sT0, s(2), 2); I("s_add_u32", sT0, sT0, sWV); I("s_lshl_b32", sT0, sT0, 7); I("s_add_u32", sT0, sT0, WS_ST)
        I("v_mov_b32", T[0], 0)
        I("s_mov_b64", "exec", 1)
        for q in range(8):
            I("buffer_store_dwordx4", v(64 + 4 * q, 4), T[0], SWS, sT0, mods="offen offset:%d" % (16 * q))
        if OPT["amp"] >= 0 and OPT["ampsel"] in (0, 2 if B else 1):
            I("s_lshl_b32", sT2, STAMPS[OPT["amp"]], 3)
            I("s_add_u32", sT2, sT2, STAMPS[n - 1])
            P.label("L_amp" + path)
            I("s_memrealtime" if OPT["lite"] == 2 else "s_memtime", s(100, 2)); wait(lgkm=0)
            I("s_sub_u32", sT1, s(100), s(96 if OPT["lite"] == 2 else 98))
            I("s_cmp_lt_u32", sT1, sT2)
            I("s_cbranch_scc1", "L_amp" + path)

HEADER = open("cdna_kernels/%s.s.ref" % NAME).read().split("; Override launch")[0]

def wrap(body):
    txt = HEADER + "; @launch grid=(256,1,1) block=(256,1,1) lds=%d\n" % LDS_BYTES
    txt += "; stamps: %s\n" % ",".join(stamp_names) if stamp_names else ""
    txt += '.amdgcn_target "amdgcn-amd-amdhsa--gfx950"\n.text\n.globl %s_kernel\n.p2align 12\n.type %s_kernel,@function\n' % (NAME, NAME)
    txt += ".set CODE_SPAN, (L_last - %s_kernel - 128) & 0xffffff80\n" % NAME
    txt += ".set HEAD_LINES, ((L_tailB - %s_kernel) >> 7) + 8\n.set A_SHIFT, (L_tailA - L_tailB - 2048) & 0xffffff80\n" % NAME
    txt += "%s_kernel:\n%s\n" % (NAME, body)
    txt += """.section .rodata,"a"
.p2align 6
.amdhsa_kernel %s_kernel
  .amdhsa_next_free_vgpr 512
  .amdhsa_next_free_sgpr 102
  .amdhsa_accum_offset 256
  .amdhsa_group_segment_fixed_size 0
  .amdhsa_kernarg_size 80
  .amdhsa_user_sgpr_count 2
  .amdhsa_user_sgpr_kernarg_segment_ptr 1
  .amdhsa_system_sgpr_workgroup_id_x 1
.end_amdhsa_kernel
""" % NAME
    return txt

def main(out):
    build()
    txt = P.finalize2(wrap)
    open(out, "w").write(txt)
    print("wrote", out, "hazard nops:", P.nops, "align fixes:", P.fixes, "bytes:", P.bytes, "touch points:", P.points)

if __name__ == "__main__":
    out = sys.argv[1]
    for kv in sys.argv[2:]:
        k, val = kv.split("=")
        assert k in OPT, k
        OPT[k] = val if k in ("stop", "fine") else int(val)
    main(out)
```

```python
import sys, struct
from asmdsl import *

NAME = "concat_heads__linear_attn_block__linear_kernel_hedgehog__prompt"
OPT = dict(stamps=0, nphase=3, amp=-1, ampsel=0, lite=0, outflag=0, rs_at=40, rs_chk=62, rs_len=27, ag_frac=56, ag_fracA=90, dA=4, npre=3, t0=16, t1=36, pw=1, pfo=0, pfq=0,
           stop="", p1st=0, touch=1, fine="", itouch=1)

def f2u(x): return struct.unpack("<I", struct.pack("<f", x))[0]
LOG2E = 1.4426950408889634

XSLOT = 16384
WSL = 49152; WSLOT = 18432
WQ0 = 104448
WQ6 = 76800
PHI = 104448
ZERO = 159744
IMG = 0
VF = 36864
KVI = 57344
WO0 = 0
WO6 = 104448
OUTB = 76800
LDS_BYTES = 163840
PGRP = 48 * 4096
WS_F = 0x300000; WS_E = 0x380000; WS_R = 0x390000; WS_O = 0x400000; WS_ST = 0x900000; WS_BYTES = 0xA00000
OOB = 0x7ffffff0
SPIN = 30000
Q0 = [0, 32, 96, 160, 224]
WSTEP = 64 * 3456

SX, SW, SWO, SWS, SOUT, SPHI = s(24, 4), s(28, 4), s(32, 4), s(36, 4), s(40, 4), s(48, 4)
sL0, sL1, sL2, sL3 = s(44), s(45), s(46), s(47)
sA, sRT, sG, sWV = s(52), s(53), s(54), s(55)
sOQ, sOX, sOW = s(56), s(57), s(58)
s1152 = s(59)
sMX, sMW = s(60), s(61)
sT0, sT1, sT2, sT3 = s(62), s(63), s(64), s(65)
sSL = s(66)
sROT = s(67)
sPME, sRSB, sRF, sOB = s(68), s(69), s(70), s(71)
sCNT = s(72)
sFSL = s(73)
sC = s(74, 2)
sEPS = s(76, 2)
sODD = s(78, 2)
sMQ = s(80)
sOO = s(81)
sPC = s(82, 2)
sTAG, sMSK = s(82), s(83)
sOU = [s(84 + u) for u in range(8)]
sAG = s(92)
sO8 = s(93)
sOUTB = s(94)
sE = s(95)
sM8 = s(20); sQ8 = s(21); sPM2 = s(22); sPM3 = s(23)
sG144 = s(48); sRV = s(49); sQE = s(50); sOE = s(51)
STAMPS = [s(3 + i % 17) for i in range(28)]

vL = v(0)
T = [v(i) for i in range(1, 10)]
vOX = [v(10 + i) for i in range(4)]
vOW = [v(14 + i) for i in range(5)]
vXR = [v(19), v(20)]
vTR = [[v(21 + 2 * p + e) for e in range(2)] for p in range(5)]
vOQ = [v(31 + i) for i in range(5)]
vOO = [v(36 + i) for i in range(5)]
vO8 = [v(41 + i) for i in range(5)]
vL16 = v(46)
vGL, vN = v(47), v(48)
vM, vPSA, vKB0, vKB2, vFS, vL4, vIW, vVW, vAM, vAL, vP1 = [v(49 + i) for i in range(11)]
vP2, vP3, vAG1, vAG2 = v(60), v(61), v(62), v(63)
ACK = [[v(64 + 20 * p + 4 * t, 4) for t in range(5)] for p in range(2)]
ACV = [[v(104 + 20 * p + 4 * t, 4) for t in range(5)] for p in range(2)]
RING = [v(144 + 4 * i, 4) for i in range(8)]
KB = [v(176 + 12 * p, 12) for p in range(2)]
PH = [v(200 + 20 * p, 20) for p in range(2)]
TMP = v(144, 24)
PW = v(240, 3); M1 = v(244, 4); PA = v(248, 3); vR, vC = v(251), v(252)
vPH = [v(243), v(253), v(254)]
def XF(ks, p): return a(ks * 8 + p * 4, 4)
def PHIF(t, j): return a(144 + (t * 3 + j) * 4, 4)
def PSIF(t, j): return a(144 + (t * 5 + j) * 4, 4)

P = Prog()
I = P.I
cap = P.capture
stamp_names = []
def fst(name):
    names = OPT["fine"].split(",")
    if name in names:
        k = names.index(name)
        I("s_memtime", s(4 + 2 * k, 2), c="fine " + name)
def stamp(name):
    if OPT["fine"]:
        fst(name)
    elif OPT["stamps"] and not OPT.get("mute"):
        k = len(stamp_names); stamp_names.append(name)
        real = True
        if OPT["lite"]:
            real = (k == OPT["amp"] or name == "end")
            if real: STAMPS[k] = s(5) if name == "end" else (s(4) if k else s(3))
        if real:
            I("s_memrealtime" if OPT["lite"] == 2 else "s_memtime", s(100, 2), c="stamp " + name)
            I("s_waitcnt", "lgkmcnt(0)")
            I("s_mov_b32", STAMPS[k], s(100))
    if OPT["stop"] == name:
        I("s_branch", "L_fin"); OPT["mute"] = 1

def wait(vm=None, lgkm=None):
    t = []
    if vm is not None: t.append("vmcnt(%d)" % vm)
    if lgkm is not None: t.append("lgkmcnt(%d)" % lgkm)
    I("s_waitcnt", " ".join(t))
def wait_vm(tag, lgkm=None): P.items.append(VmWait(tag, lgkm))
def tagged(groups, tag):
    for g in groups:
        for x in g:
            if isinstance(x, Ins) and x.kind == "vmem": x.tag = tag
    return groups
def mark(items, **kw):
    for x in items:
        if isinstance(x, Ins):
            for k, val in kw.items(): setattr(x, k, val)
    return items

def srd(dst, lo, hi, size):
    I("s_mov_b32", dst[0], lo); I("s_mov_b32", dst[1], hi)
    I("s_mov_b32", dst[2], size); I("s_mov_b32", dst[3], 0x20000)
def singles(items): return [[x] for x in items]
def emit_groups(groups):
    for g in groups: P.put(g)

def dma5(voffs, srdreg, soff, m0base, m0imm):
    def first():
        I("s_add_u32", "m0", m0base, m0imm)
        I("s_mov_b32", "exec_hi", 0)
        I("buffer_load_dwordx4", voffs[0], srdreg, soff, mods="offen lds")
        I("s_mov_b32", "exec_hi", -1)
    g = [cap(first)]
    for i in range(1, 5):
        g += singles(cap(lambda: I("buffer_load_dwordx4", voffs[i], srdreg, soff, mods="offen offset:%d lds" % (16 * Q0[i]))))
    return g

def wraps_after(j):
    rots = {1: [0], 2: [0, 4], 3: [0, 3, 6], 4: [0, 2, 4, 6], 5: [0, 2, 5, 7], 8: list(range(8))}[OPT["nphase"]]
    return any(r + j == 8 for r in rots) and j < 8
def x_dma(j):
    g = singles(cap(lambda: I("s_add_u32", "m0", sMX, (j % 3) * XSLOT)))
    for i in range(4):
        g += singles(cap(lambda: I("buffer_load_dwordx4", vOX[i], SX, sOX, mods="offen offset:%d lds" % (1024 * i))))
    return tagged(g, "S%d" % j)
def w_dma(j):
    g = tagged(dma5(vOW, SW, sOW, sMW, (j % 3) * WSLOT), "S%d" % j)
    if j < 8:
        g += singles(cap(lambda: (I("s_add_u32", sOX, sOX, 128), I("s_add_u32", sOW, sOW, WSTEP))))
        if wraps_after(j):
            def wr():
                I("s_cmp_eq_u32", sROT, 8 - j)
                I("s_cselect_b32", sT0, 1152, 0); I("s_cselect_b32", sT1, 9 * WSTEP, 0)
            g.append(cap(wr))
            g += singles(cap(lambda: (I("s_sub_u32", sOX, sOX, sT0), I("s_sub_u32", sOW, sOW, sT1))))
    return g
def stage_dma(j): return x_dma(j) + w_dma(j)

def advance(reg, step, end, span):
    def a1():
        I("s_add_u32", reg, reg, step)
        I("s_cmp_ge_u32", reg, end)
        I("s_cselect_b32", sT0, span, 0)
    return [cap(a1)] + singles(cap(lambda: I("s_sub_u32", reg, reg, sT0)))
def wq_pair_dma(j):
    pos = (WQ0 + j * 9216) if j < 6 else (WQ6 + (j - 6) * 9216)
    if j == 8:
        return singles(cap(lambda: I("s_add_u32", sOQ, sOQ, sQ8))) + tagged(dma5(vOQ, SW, sOQ, sM8, pos), "WQ8")
    g = tagged(dma5(vOQ, SW, sOQ, sMQ, pos), "WQ%d" % j)
    g += advance(sOQ, 2 * WSTEP, sQE, 9 * WSTEP)
    return g
def wo_pair_dma(u):
    pos = (WO0 + u * 9216) if u < 6 else (WO6 + (u - 6) * 9216)
    g = tagged(dma5(vOO, SWO, sOO, sMQ, pos), "WO%d" % u)
    if u < 6: g += advance(sOO, 2 * 82944, sOE, 8 * 82944)
    return g
def only_waves01(groups, tag):
    def f():
        I("s_cmp_ge_u32", sWV, 2)
        I("s_cbranch_scc1", "L_skip_" + tag)
        for g in groups: P.put(mark(g, cond=True))
        P.label("L_skip_" + tag)
    return [cap(f)]

def tr(dst, addr, off):
    assert 0 <= off < 65536, off
    I("ds_read_b64_tr_b16", dst, addr, mods="offset:%d" % off)
def mfma(d, x, y, c): I("v_mfma_f32_16x16x32_bf16", d, x, y, c)
def tile_read(dstreg, T_, base_off):
    if T_ < 3: pat, o = 0, 8 * T_
    elif T_ == 3: pat, o = 1, 0
    elif T_ == 4: pat, o = 2, 0
    elif T_ < 9: pat, o = 3, 144 + 8 * [0, 5, 9, 14][T_ - 5]
    else: pat, o = 4, 144
    for e in range(2):
        tr(dstreg[2 * e:2 * e + 2], vTR[pat][e], base_off + o)

class Pipe:
    def __init__(self, dist=4, grp=2):
        self.units = []; self.dist = dist; self.grp = grp; self.hooks = {}
    def add(self, rd, work, pre=None, rt=None):
        k = len(self.units)
        self.units.append((cap(rd), cap(work), cap(pre) if pre else None, k - self.dist if rt is None else rt))
    def emit(self, fill=(), bulk=()):
        fill = list(fill); bulk = list(bulk)
        U = self.units; n = len(U)
        seq = []
        state = dict(done=0)
        def put(items, owner=-1):
            for x in items:
                if isinstance(x, Ins) and x.kind == "ds": seq.append(owner)
                if isinstance(x, Ins) and x.op == "s_waitcnt" and ("lgkmcnt(0)" in x.args[0] or getattr(x, "lgkm", None) == 0): state["done"] = len(seq)
            P.put(items)
        def need_wait(k):
            last = max([i for i, o in enumerate(seq) if o == k] + [-1])
            return last >= state["done"]
        byt = {}
        for k, u in enumerate(U): byt.setdefault(max(u[3], -1), []).append(k)
        for k in byt.get(-1, []): put(U[k][0], k)
        while bulk and bulk[0][0] < 0: put(bulk.pop(0)[1])
        def take(k):
            if fill and fill[0][0] <= k: put(fill.pop(0)[1]); return True
            if bulk and bulk[0][0] <= k + 6: put(bulk.pop(0)[1]); return True
            return False
        for k in range(n):
            if k in self.hooks: put(self.hooks[k])
            if U[k][2]: put(U[k][2])
            if need_wait(k):
                want = [q for q in range(k, min(n, k + self.grp)) if U[q][3] < k - 1 or q == k]
                last = max(i for i, o in enumerate(seq) if o in want)
                later = len(seq) - 1 - last
                assert later <= 15, later
                wait(lgkm=later); state["done"] = last + 1
            nxt = [(x, q) for q in byt.get(k, []) for x in U[q][0]]
            half = (len(nxt) + 1) // 2
            w = U[k][1]
            P.put([w[0]])
            for x, q in nxt[:half]: put([x], q)
            for _ in range(max(0, 2 - half)): take(k)
            P.put(w[1:])
            for x, q in nxt[half:]: put([x], q)
            rest = len(nxt) - half + (1 if (k + 1 < n and need_wait(k + 1)) else 0) + (2 if k + 1 in self.hooks else 0)
            for _ in range(max(0, 2 - rest)): take(k)
            while fill and fill[0][0] <= k - 3: put(fill.pop(0)[1])
            while bulk and bulk[0][0] <= k: put(bulk.pop(0)[1])
        for _, g in fill + bulk: put(g)

def vm_only(groups):
    out = []
    for g in groups:
        if any(x.kind == "vmem" for x in g) or not out: out.append(list(g))
        else: out[-1] += g
    return out
def weave(a_, b_):
    out = []; na, nb = len(a_), len(b_); i = j = 0
    while i < na or j < nb:
        if j >= nb or (i < na and i * nb <= j * na): out.append(a_[i]); i += 1
        else: out.append(b_[j]); j += 1
    return out
def at(unit, groups): return [(unit + i * 2 // 3, g) for i, g in enumerate(groups)]
def spread(groups, first, last):
    n = len(groups)
    return [(first + (last - first) * i // max(1, n), g) for i, g in enumerate(groups)]
def merge(main, extra, start=0, step=2):
    out = []; extra = list(extra)
    for i, x in enumerate(main):
        out.append(x)
        if extra and i >= start and (i - start) % step == step - 1: out += extra.pop(0)
    for g in extra: out += g
    return out

def sm_head(src18, tmp):
    mx, mn = tmp[18], tmp[19]
    I("v_max3_f32", mx, src18[0], src18[1], src18[2]); I("v_min3_f32", mn, src18[0], src18[1], src18[2])
    for i in range(3, 17, 2):
        I("v_max3_f32", mx, mx, src18[i], src18[i + 1]); I("v_min3_f32", mn, mn, src18[i], src18[i + 1])
    I("v_max_f32", mx, mx, src18[17]); I("v_min_f32", mn, mn, src18[17])
    I("v_mul_f32", tmp[20], sC[0], mx); I("v_mul_f32", tmp[21], sC[0], mn)
def sm_tail(src18, out18, tmp):
    ab = tmp[20:22]
    for i in range(0, 18, 2):
        I("v_pk_fma_f32", tmp[i:i + 2], src18[i:i + 2], sC, ab, mods="op_sel:[0,0,1] op_sel_hi:[1,1,1] neg_lo:[1,0,0] neg_hi:[1,0,0]")
        I("v_pk_fma_f32", src18[i:i + 2], src18[i:i + 2], sC, ab, mods="op_sel:[0,0,0] op_sel_hi:[1,1,0] neg_lo:[0,0,1] neg_hi:[0,0,1]")
    sp, sn = tmp[18:20], tmp[20:22]
    for i in range(0, 18, 2):
        for h in range(2):
            I("v_exp_f32", src18[i + h], src18[i + h]); I("v_exp_f32", tmp[i + h], tmp[i + h])
        if i == 4:
            I("v_pk_add_f32", sp, src18[0:2], src18[2:4]); I("v_pk_add_f32", sn, tmp[0:2], tmp[2:4])
        elif i > 4:
            I("v_pk_add_f32", sp, sp, src18[i - 2:i]); I("v_pk_add_f32", sn, sn, tmp[i - 2:i])
    I("v_pk_add_f32", sp, sp, src18[16:18]); I("v_pk_add_f32", sn, sn, tmp[16:18])
    rr = tmp[22:24]
    I("v_add_f32", rr[0], sp[0], sp[1]); I("v_add_f32", rr[1], sn[0], sn[1])
    I("v_rcp_f32", rr[0], rr[0]); I("v_rcp_f32", rr[1], rr[1])
    def el(d): return (src18[2 * d:2 * d + 2], "op_sel:[0,0] op_sel_hi:[1,0]") if d < 9 else (tmp[2 * (d - 9):2 * (d - 9) + 2], "op_sel:[0,1] op_sel_hi:[1,1]")
    for d in range(0, 18, 2):
        for h in range(2): I("v_pk_mul_f32", el(d + h)[0], el(d + h)[0], rr, mods=el(d + h)[1])
        for h in range(2): I("v_cvt_pk_bf16_f32", out18[d + h], el(d + h)[0][0], el(d + h)[0][1])

ACC = [v(64 + 20 * p, 20) for p in range(2)]
def cv(p):
    I("v_cndmask_b32", ACC[p][16], ACC[p][16], ACC[p][18], sODD)
    I("v_cndmask_b32", ACC[p][17], ACC[p][17], ACC[p][19], sODD)
    for i in range(9): I("v_cvt_pk_bf16_f32", KB[p][i], ACC[p][2 * i], ACC[p][2 * i + 1])

def chase(body, groups):
    out = []; groups = list(groups)
    lastdef = {}
    for i, x in enumerate(body):
        if isinstance(x, Ins):
            for r in x.defs: lastdef[r] = i
    pos = {}
    for g in groups:
        p_ = max([lastdef.get(r, -1) for x in g for r in x.uses] + [-1])
        pos.setdefault(p_, []).append(g)
    for g in pos.get(-1, []): out += g
    for i, x in enumerate(body):
        out.append(x)
        for g in pos.get(i, []): out += g
    return out

def evenly(lst, groups, lo=0, hi=100):
    out = []; groups = list(groups); n = len(lst); m = len(groups)
    pos = [n * lo // 100 + (n * (hi - lo) // 100) * i // max(1, m) for i in range(m)]
    for i, x in enumerate(lst):
        out.append(x)
        while groups and pos[0] <= i:
            out += groups.pop(0); pos.pop(0)
    for g in groups: out += g
    return out

def feature_map(path, tag, cv_done, shadow, mid0, mid1, after_p):
    if path == "B":
        def mm(p):
            for j in range(3):
                for t in range(5):
                    mfma(ACK[p][t], PHIF(t, j), KB[p][4 * j:4 * j + 4], 0 if j == 0 else ACK[p][t])
        body = [] if cv_done else cap(lambda: cv(0))
        sh = ([] if cv_done else singles(cap(lambda: cv(1)))) + list(shadow)
        head0 = singles(cap(lambda: sm_head(ACC[0][0:18], TMP)))
        ms = cap(lambda: (mm(0), mm(1)))
        for i, x in enumerate(ms):
            body.append(x)
            if i == 19: sh = head0 + sh
            k = 0
            while sh and k < 2:
                g = sh.pop(0); body += g; k += len(g)
        for g in sh: body += g
        body += cap(lambda: fst(tag + "mm"))
        body += evenly(cap(lambda: sm_tail(ACC[0][0:18], PH[0][0:18], TMP)), *mid0)
        body += cap(lambda: fst(tag + "t0"))
        t1 = cap(lambda: (sm_head(ACC[1][0:18], TMP), sm_tail(ACC[1][0:18], PH[1][0:18], TMP)))
        t1 = evenly(t1, after_p(0), 2, 66)
        t1 = evenly(t1, *mid1)
        body += chase(t1, after_p(1))
    else:
        def pa(p):
            x = ACC[p]
            if not cv_done:
                I("v_cndmask_b32", x[16], x[16], x[18], sODD); I("v_cndmask_b32", x[17], x[17], x[19], sODD)
            for i in range(0, 18, 2): I("v_pk_mul_f32", TMP[i:i + 2], x[i:i + 2], sC)
            for d in range(9):
                for i in (2 * d, 2 * d + 1):
                    I("v_exp_f32", TMP[i], TMP[i], mods="clamp")
                    I("v_max_f32", x[i], 0, x[i])
                I("v_pk_add_f32", x[2 * d:2 * d + 2], x[2 * d:2 * d + 2], sEPS)
                I("v_pk_add_f32", x[2 * d:2 * d + 2], x[2 * d:2 * d + 2], TMP[2 * d:2 * d + 2])
                I("v_cvt_pk_bf16_f32", KB[p][d], x[2 * d], x[2 * d + 1])
        body = []
        for g in shadow: body += g
        body += cap(lambda: fst(tag + "mm"))
        body += chase(evenly(cap(lambda: pa(0)), *mid0), after_p(0))
        body += cap(lambda: fst(tag + "t0"))
        t1 = cap(lambda: pa(1))
        t1 = evenly(t1, *mid1)
        body += chase(t1, after_p(1))
    P.put(body)
    fst(tag + "t1")

def umax(dst, regs):
    regs = list(regs)
    I("v_max3_u32", dst, regs[0], regs[1], regs[2]); regs = regs[3:]
    while len(regs) >= 2:
        I("v_max3_u32", dst, dst, regs[0], regs[1]); regs = regs[2:]
    if regs: I("v_max_u32", dst, dst, regs[0])

SLOW = []
def check_or_retry(tag, fold, cmp_bad, loads):
    g = singles(cap(fold))
    def test():
        cmp_bad()
        I("s_cbranch_vccnz", "L_slow_" + tag)
        P.label("L_back_" + tag)
    g.append(cap(test))
    def slow():
        P.label("L_slow_" + tag)
        I("s_mov_b32", sCNT, 0)
        P.label("L_sp_" + tag)
        loads()
        wait(vm=0)
        fold()
        cmp_bad()
        I("s_add_u32", sCNT, sCNT, 1)
        I("s_cmp_gt_u32", sCNT, SPIN)
        I("s_cbranch_scc1", "L_back_" + tag)
        I("s_cbranch_vccnz", "L_sp_" + tag)
        I("s_branch", "L_back_" + tag)
    SLOW.append(cap(slow))
    return g
def check_sent(tag, chk, regs, loads):
    return check_or_retry(tag, lambda: umax(chk, regs), lambda: I("v_cmp_eq_u32", "vcc", -1, chk), loads)
def check_tag(tag, chk, regs, loads):
    def fold():
        for r in regs: I("v_xor_b32", r, sTAG, r)
        I("v_or3_b32", chk, regs[0], regs[1], regs[2])
        for i in range(3, len(regs) - 1, 2): I("v_or3_b32", chk, chk, regs[i], regs[i + 1])
        I("v_or_b32", chk, chk, regs[-1])
        I("v_and_b32", chk, 0xff, chk)
    return check_or_retry(tag, fold, lambda: I("v_cmp_ne_u32", "vcc", 0, chk), loads)

def build():
    I("s_cmp_ge_u32", s(2), 256)
    I("s_cbranch_scc1", "L_end")
    I("s_bfe_u32", sA, s(2), 0x10002)
    I("s_cmp_lg_u32", sA, 0)
    I("s_cselect_b32", sT0, 0, 24)
    I("s_cselect_b32", sT1, 8, 32)
    I("s_cselect_b32", sT2, 16, 48)
    I("s_load_dwordx2", SX[0:2], s(0, 2), sT0)
    I("s_load_dwordx2", SW[0:2], s(0, 2), sT1)
    I("s_load_dwordx2", SWO[0:2], s(0, 2), sT2)
    I("s_load_dwordx2", SPHI[0:2], s(0, 2), 40)
    I("s_load_dwordx2", SOUT[0:2], s(0, 2), 56)
    I("s_load_dwordx2", SWS[0:2], s(0, 2), 72)
    I("s_getpc_b64", sPC)
    I("s_and_b32", sT0, s(2), 0xf8)
    I("v_lshrrev_b32", T[0], 5, v(0))
    I("v_add_lshl_u32", T[1], T[0], sT0, 7)
    I("s_cmp_ge_u32", sT0, "HEAD_LINES")
    I("s_cselect_b32", sT1, sA, 0)
    I("s_mul_i32", sT1, sT1, "A_SHIFT")
    I("v_add_u32", T[1], sT1, T[1])
    I("v_min_u32", T[1], "CODE_SPAN", T[1])
    I("global_load_dword", v(255), T[1], sPC)
    if OPT["stamps"]:
        I("s_memtime", s(98, 2)); I("s_memrealtime", s(96, 2))
    I("v_readfirstlane_b32", sWV, T[0])
    I("v_and_b32", vL, 63, v(0))
    I("s_and_b32", sT0, s(2), 3)
    I("s_lshr_b32", sT1, s(2), 6)
    I("s_lshr_b32", sWV, sWV, 1)
    I("s_lshl2_add_u32", sRT, sT0, sT1)
    I("s_bfe_u32", sG, s(2), 0x30003)
    if OPT["nphase"] == 3:
        I("s_add_u32", sT0, sG, sT1)
        I("s_mul_i32", sT1, sT0, 86)
        I("s_lshr_b32", sT1, sT1, 8)
        I("s_mul_i32", sT1, sT1, 3)
        I("s_sub_u32", sT0, sT0, sT1)
        I("s_mul_i32", sROT, sT0, 3)
    elif OPT["nphase"] == 4:
        I("s_add_u32", sT0, sG, sT1)
        I("s_and_b32", sT0, sT0, 3)
        I("s_lshl_b32", sROT, sT0, 1)
    elif OPT["nphase"] == 5:
        I("s_add_u32", sT0, sG, sT1)
        I("s_and_b32", sT0, sT0, 3)
        I("s_mul_i32", sT0, sT0, 5)
        I("s_lshr_b32", sROT, sT0, 1)
    elif OPT["nphase"] == 8:
        I("s_lshl1_add_u32", sT0, sT1, sG)
        I("s_and_b32", sROT, sT0, 7)
    elif OPT["nphase"] == 2:
        I("s_add_u32", sT0, sG, sT1)
        I("s_and_b32", sT0, sT0, 1)
        I("s_lshl_b32", sROT, sT0, 2)
    else:
        I("s_mov_b32", sROT, 0)
    I("s_lshl2_add_u32", sSL, sRT, sWV)
    I("s_mul_i32", sOX, sSL, 32 * 1152)
    I("s_lshl_b32", sT0, sROT, 7)
    I("s_add_u32", sOX, sOX, sT0)
    I("s_lshl_b32", sMX, sWV, 12)
    I("s_mul_i32", sMQ, sWV, 4608)
    I("s_add_u32", sMW, sMQ, WSL)
    I("s_movk_i32", s1152, 1152)
    I("v_lshrrev_b32", T[0], 3, vL)
    I("v_mul_u32_u24", T[0], s1152, T[0])
    I("v_lshrrev_b32", vGL, 4, vL)
    I("v_and_b32", T[1], 7, vL)
    I("v_xor_b32", T[1], T[1], vGL)
    I("v_lshl_add_u32", vOX[0], T[1], 4, T[0])
    I("v_xor_b32", vOX[1], 64, vOX[0])
    I("v_add_u32", vOX[2], 16 * 1152 - 2048, vOX[0])
    I("v_add_u32", vOX[3], 24 * 1152 - 3072, vOX[1])
    I("v_add_u32", vOX[1], 8 * 1152 - 1024, vOX[1])
    I("s_mov_b32", SX[2], 2048 * 1152); I("s_mov_b32", SX[3], 0x20000)
    I("s_mov_b32", SW[2], 576 * 3456); I("s_mov_b32", SW[3], 0x20000)
    I("s_mul_i32", sL3, sG, 144)
    I("s_lshl2_add_u32", sT0, sROT, sWV)
    I("s_mul_i32", sOW, sT0, 16 * 3456)
    I("s_add_u32", sOW, sOW, sL3)
    I("s_add_u32", sOW, sOW, s1152)
    I("s_movk_i32", sL0, 3456); I("s_movk_i32", sL1, -144)
    I("v_lshlrev_b32", vL16, 4, vL)
    I("v_mul_u32_u24", vM, 7282, vL)
    DR = [v(64 + i) for i in range(5)]; DP = [v(70 + i) for i in range(5)]; DC = [v(76 + i) for i in range(5)]
    for i in range(5):
        t = vM
        if i:
            I("v_add_u32", T[0], Q0[i] * 7282, vM); t = T[0]
        I("v_lshrrev_b32", T[1], 16, t)
        I("v_lshrrev_b32", DR[i], 17, t)
        I("v_and_b32", DP[i], 1, T[1])
        I("v_mad_i32_i24", DC[i], T[1], sL1, vL16)
        if i == 2:
            I("v_lshrrev_b32", T[2], 1, DR[i]); I("v_and_b32", T[2], 4, T[2]); I("v_xor_b32", DR[i], DR[i], T[2])
        elif i > 2:
            I("v_xor_b32", DR[i], 4, DR[i])
        I("v_mad_u32_u24", T[2], DR[i], sL0, DC[i])
        I("v_mad_u32_u24", vOW[i], DP[i], s1152, T[2])
    for r_, z_ in ((SWO, 576 * 1152), (SPHI, 32 * 648), (SOUT, 2048 * 2304), (SWS, WS_BYTES)):
        I("s_mov_b32", r_[2], z_); I("s_mov_b32", r_[3], 0x20000)
    I("v_lshlrev_b32", vL4, 2, vL)
    I("s_lshl2_add_u32", sT2, sG, sWV); I("s_mul_i32", sT2, sT2, 648)
    I("s_lshl3_add_u32", sL2, sA, sG)
    I("s_lshl_b32", sAG, sL2, 13); I("s_add_u32", sAG, sAG, WS_F)
    I("s_sub_u32", sT0, 2, sA)
    I("s_min_u32", sT1, sWV, sT0); I("s_mul_i32", sT3, sRT, sT0); I("s_add_u32", sT3, sT3, sRT); I("s_add_u32", sRSB, sT1, sT3)
    I("s_lshl_b32", sT1, sRSB, 7); I("s_add_u32", sFSL, sAG, sT1)
    I("s_cmp_gt_u32", sWV, sT0)
    I("s_cselect_b32", sFSL, OOB, sFSL)
    I("s_lshl3_add_u32", sT0, sA, 0); I("s_and_b32", sT1, sRSB, 7); I("s_or_b32", sT0, sT0, sT1)
    I("s_cmp_eq_u32", sT0, 15)
    I("s_cselect_b32", sFSL, OOB, sFSL)
    I("s_subb_u32", sRSB, sRSB, 0)
    I("v_and_b32", vN, 15, vL)
    I("v_and_b32", T[7], 1, vGL)
    I("v_lshlrev_b32", T[0], 1, vGL); I("v_lshl_add_u32", T[0], vN, 3, T[0])
    I("v_lshl_or_b32", vFS, T[7], 30, T[0])
    I("v_mov_b32", M1[0], -1)
    I("s_mul_i32", sT0, sSL, 32 * 2304)
    I("s_add_u32", sT0, sT0, sL3)
    I("s_xor_b32", sT1, sA, 1); I("s_mul_i32", sT1, sT1, 1152); I("s_add_u32", sOUTB, sT0, sT1)
    I("s_lshl_b32", sT0, sA, 6); I("s_add_u32", sT0, sT0, sSL)
    I("s_lshl_b32", sRF, sT0, 7); I("s_add_u32", sRF, sRF, WS_R)
    I("v_lshlrev_b32", T[1], 20, vL)
    I("v_mov_b32", T[2], 0)
    I("s_lshl_b32", sT0, sA, 7); I("s_add_u32", sT0, sT0, WS_E)
    wait(lgkm=0)
    fst("karg")
    emit_groups(x_dma(0))
    I("s_load_dword", sE, SWS[0:2], sT0)
    for i in range(3):
        I("buffer_load_dword", PW[i], vL4, SPHI, sT2, mods="offen offset:%d" % (256 * i))
    I("buffer_store_dword", M1[0], vFS, SWS, sFSL, mods="offen sc1")
    I("buffer_load_dword", v(255), T[2], SWS, sRF, mods="offen sc1")
    if OPT["touch"]:
        I("buffer_load_dword", v(255), T[1], SWS, 0, mods="offen")
        I("buffer_load_dword", v(255), T[2], SOUT, sOUTB, mods="offen")
        I("buffer_load_dword", v(255), T[2], SWO, sL3, mods="offen")
    emit_groups(w_dma(0))
    stamp("S0iss")
    I("s_mov_b32", sG144, sL3)
    I("v_lshrrev_b32", T[0], 1, vN)
    I("v_xor_b32", T[0], T[0], vGL)
    I("v_lshl_add_u32", T[1], vN, 7, sMX)
    I("v_lshl_add_u32", vXR[0], T[0], 4, T[1])
    I("v_xor_b32", vXR[1], 64, vXR[0])
    I("v_bfe_u32", vR, vL, 2, 2)
    I("v_and_b32", vC, 3, vL)
    I("v_lshl_add_u32", T[1], vGL, 3, vR)
    I("v_lshl_add_u32", T[2], T[7], 2, T[1])
    I("v_xor_b32", T[3], 4, T[2])
    I("s_movk_i32", sT0, 288); I("v_mov_b32", T[4], WSL)
    I("v_mad_u32_u24", T[2], T[2], sT0, T[4]); I("v_mad_u32_u24", T[3], T[3], sT0, T[4])
    I("v_mul_u32_u24", T[0], 40, vC)
    I("v_lshrrev_b32", T[1], 1, vC)
    I("v_add_u32", vTR[0][0], T[2], T[0]); I("v_add_u32", vTR[0][1], T[3], T[0])
    I("v_lshlrev_b32", T[6], 5, T[1]); I("v_sub_u32", T[6], T[0], T[6])
    I("v_add3_u32", vTR[1][0], T[2], T[6], 24); I("v_add3_u32", vTR[1][1], T[3], T[6], 24)
    I("v_mul_u32_u24", T[6], 72, T[1])
    I("v_add3_u32", vTR[2][0], T[2], T[6], 32); I("v_add3_u32", vTR[2][1], T[3], T[6], 32)
    I("v_lshl_add_u32", vTR[3][0], vC, 3, T[2]); I("v_lshl_add_u32", vTR[3][1], vC, 3, T[3])
    I("v_and_b32", T[6], 1, vC); I("v_mul_u32_u24", T[6], 72, T[6])
    I("v_add3_u32", vTR[4][0], T[2], T[6], 32); I("v_add3_u32", vTR[4][1], T[3], T[6], 32)
    I("s_mov_b32", sT0, 32 * 3456 - 1152); I("s_movk_i32", sT1, 72)
    for i in range(5):
        I("v_mad_u32_u24", vOQ[i], DP[i], sT0, vOW[i])
        I("v_lshl_add_u32", T[0], DP[i], 3, DR[i])
        I("v_and_b32", T[3], 1, DR[i])
        if i == 2:
            I("v_lshrrev_b32", T[1], 3, DR[i])
            I("v_mad_u32_u24", T[0], T[1], 12, T[0])
            I("v_lshl_add_u32", T[3], T[1], 1, T[3])
        elif i > 2:
            I("v_add_u32", T[0], 12, T[0])
        I("v_mad_u32_u24", vOO[i], T[0], s1152, DC[i])
        I("v_bfe_u32", T[2], DR[i], 1, 2)
        I("v_lshl_add_u32", T[2], DP[i], 2, T[2])
        I("v_add_u32", T[2], sG, T[2]); I("v_and_b32", T[2], 7, T[2])
        I("v_add_u32", T[3], 18 if i > 2 else 16, T[3])
        I("v_mad_u32_u24", T[2], T[2], sT1, T[3])
        I("v_mad_u32_u24", vO8[i], T[2], s1152, DC[i])
    for i in range(4): I("v_mov_b32", v(84 + i), 0)
    I("s_mul_i32", sT1, sWV, 384); I("s_add_u32", sT1, sT1, ZERO)
    I("v_min_u32", T[0], 23 * 16, vL16); I("v_add_u32", T[0], sT1, T[0])
    I("ds_write_b128", T[0], v(84, 4))
    I("s_mul_i32", sT0, sWV, 960); I("s_add_u32", sT0, sT0, PHI)
    for i in range(3):
        t = vM
        if i:
            I("v_add_u32", T[0], 64 * i * 7282, vM); t = T[0]
        I("v_lshrrev_b32", T[0], 16, t); I("v_add_u32", T[0], T[0], vL)
        I("v_lshl_add_u32", PA[i], T[0], 2, sT0)
    I("v_cmp_eq_u32", "vcc", vC, vGL)
    I("v_mul_u32_u24", T[0], 40, vR)
    I("v_mul_u32_u24", T[1], 1040, vGL)
    I("v_mov_b32", T[3], ZERO)
    I("v_add3_u32", T[1], T[1], T[0], T[3])
    I("v_add_u32", T[2], (PHI - ZERO) & 0xffffffff, T[1])
    I("v_cndmask_b32", vPH[0], T[3], T[2], "vcc")
    I("v_lshrrev_b32", T[4], 1, vGL); I("v_mul_u32_u24", T[4], 640, T[4])
    I("v_sub_u32", T[2], T[2], T[4]); I("v_add_u32", T[2], 480, T[2])
    I("v_cndmask_b32", vPH[1], T[3], T[2], "vcc")
    I("v_mul_u32_u24", T[1], 1920, vGL); I("v_add_u32", T[1], T[1], T[0]); I("v_add_u32", T[2], KVI, T[1])
    I("v_cndmask_b32", vPSA, T[3], T[2], "vcc")
    I("v_mul_u32_u24", T[1], 960, vGL); I("v_mul_u32_u24", T[4], 640, T[7])
    I("v_sub_u32", T[1], T[1], T[4]); I("v_add_u32", T[1], T[1], T[0]); I("v_add_u32", T[1], PHI + 640, T[1])
    I("v_cndmask_b32", T[1], T[3], T[1], "vcc")
    I("v_cmp_gt_u32", "vcc", 2, vR)
    I("s_mul_i32", sPME, sL2, PGRP)
    I("s_lshl_b32", sRSB, sRSB, 12)
    I("v_cndmask_b32", vPH[2], T[3], T[1], "vcc")
    I("s_add_u32", sRSB, sRSB, sPME)
    stamp("P1")
    emit_groups(stage_dma(1))
    stamp("S1iss")
    def touch_round(r):
        I("s_lshl2_add_u32", sCNT, sA, sWV)
        I("s_mov_b64", "exec", 0)
        for k_ in range(7):
            I("s_cmp_eq_u32", sCNT, k_)
            I("s_cbranch_scc1", "L_th%s%d%d" % ("BA"[k_ // 4], r, k_ % 4))
        I("s_branch", "L_thA%d3" % r)
        P.label("L_tret%d" % r)
        I("s_mov_b64", "exec", -1)
    if OPT["itouch"]:
        P.touch = {"L_tailA"}; P.rounds = 2

    def late():
        I("s_and_b32", sL0, sWV, 1); I("s_lshr_b32", sL1, sWV, 1)
        I("s_mul_i32", sL2, sL0, 16 * 3456); I("s_add_u32", sL2, sL2, sG144)
        I("s_add_u32", sQE, sL2, 9 * WSTEP)
        I("s_add_u32", sL3, sL1, sROT); I("s_mul_i32", sL3, sL3, WSTEP); I("s_add_u32", sOQ, sL3, sL2)
        I("s_mul_i32", sO8, sL0, 36 * 1152); I("s_add_u32", sO8, sO8, sG144)
        I("s_add_u32", sOE, sO8, 8 * 82944)
        I("s_add_u32", sL3, sL1, sG); I("s_and_b32", sL3, sL3, 7); I("s_mul_i32", sL3, sL3, 82944); I("s_add_u32", sOO, sL3, sO8)
        I("s_mov_b32", sC[0], f2u(LOG2E)); I("s_mov_b32", sC[1], f2u(LOG2E))
        I("s_mov_b32", sEPS[0], f2u(1e-6)); I("s_mov_b32", sEPS[1], f2u(1e-6))
        I("s_mov_b32", sODD[0], 0xffff0000); I("s_mov_b32", sODD[1], 0xffff0000)
        I("s_add_u32", sE, sE, 1); I("s_and_b32", sTAG, sE, 0xff); I("s_mov_b32", sMSK, 0xffffff00)
        I("s_getreg_b32", sL0, "hwreg(HW_REG_XCC_ID, 0, 4)")
        I("s_lshl4_add_u32", sRV, sE, sL0)
        for i in range(1, 4): I("v_mov_b32", M1[i], -1)
        I("s_sub_u32", sL2, 3, sA); I("s_mul_i32", sL2, sL2, sWV)
        I("s_lshl_b32", sL1, sL2, 14); I("s_add_u32", sPME, sPME, sL1)
        I("s_lshl_b32", sL1, sRT, 8); I("s_add_u32", sPME, sPME, sL1)
        I("s_lshl_b32", sL1, sL2, 9); I("s_add_u32", sAG, sAG, sL1)
        I("s_lshr_b32", sL1, sWV, 1)
        I("s_mul_i32", sQ8, sL1, 0x40000000); I("s_mul_i32", sM8, sL1, 100000); I("s_add_u32", sM8, sM8, sMQ)
        I("s_lshl_b32", sL0, sA, 6); I("s_add_u32", sL0, sL0, sSL)
        I("s_mul_i32", sOB, sL0, 8 * 4608); I("s_add_u32", sOB, sOB, WS_O)
        I("s_lshl_b32", sL0, sG144, 5); I("s_add_u32", sOU[0], sL0, sOB)
        for u in range(1, 8):
            I("s_add_u32", sL0, sG, u); I("s_and_b32", sL0, sL0, 7)
            I("s_mul_i32", sL0, sL0, 4608); I("s_add_u32", sOU[u], sL0, sOB)
        I("v_add_u32", vL4, 4096, vL4)
        I("v_lshl_add_u32", T[0], vGL, 2, vR)
        I("v_mul_u32_u24", T[0], 72, T[0])
        I("s_lshl_b32", sL0, sMQ, 1)
        I("v_add_u32", vKB2, sL0, T[0])
        I("v_lshl_add_u32", vKB0, vC, 3, vKB2)
        for p in range(2):
            for i in (9, 10, 11): I("v_mov_b32", KB[p][i], 0)
            for i in (18, 19): I("v_mov_b32", PH[p][i], 0)
        I("v_mul_u32_u24", T[0], 9216, vGL)
        I("v_mul_u32_u24", T[1], 72, vN)
        I("s_lshr_b32", sL0, sMQ, 1)
        I("v_add3_u32", vIW, T[0], T[1], sL0)
        I("s_mul_i32", sL0, sWV, 5120); I("s_add_u32", sL0, sL0, VF)
        I("v_add_u32", vVW, sL0, vL16)
        I("s_lshl_b32", sL0, sWV, 10); I("s_add_u32", sL0, sL0, VF)
        I("v_add_u32", vAM, sL0, vL16)
        I("s_lshl_b32", sL0, sWV, 1)
        I("v_cmp_gt_u32", "vcc", 2, vN)
        I("v_add_u32", T[3], sL0, vN)
        I("v_lshlrev_b32", T[0], 4, vN); I("v_lshl_add_u32", vP1, vGL, 12, T[0])
        I("v_cndmask_b32", T[3], 8, T[3], "vcc")
        I("v_lshl_add_u32", T[3], vGL, 4, T[3])
        I("v_lshlrev_b32", T[3], 4, T[3]); I("v_add_u32", vAL, VF + 4096, T[3])
        I("v_cmp_gt_u32", "vcc", 4, vN)
        I("v_mov_b32", T[4], OOB)
        I("v_lshl_add_u32", T[0], vGL, 2, vN); I("v_lshlrev_b32", T[0], 4, T[0])
        I("v_cndmask_b32", vP2, T[4], T[0], "vcc")
        I("v_cmp_gt_u32", "vcc", 16, vL)
        I("s_mul_i32", sL1, sWV, 1920); I("s_add_u32", sL1, sL1, KVI)
        I("v_cndmask_b32", vP3, T[4], vL16, "vcc")
        I("v_mul_u32_u24", T[1], 40, vN); I("v_lshl_add_u32", T[1], vGL, 3, T[1])
        I("v_add_u32", vAG1, sL1, T[1])
        I("v_mul_u32_u24", T[2], 40, vC); I("v_lshrrev_b32", T[3], 2, vL)
        I("s_lshr_b32", sL0, 32 * 40, sA)
        I("v_lshl_add_u32", T[2], T[3], 3, T[2]); I("v_add_u32", T[2], sL0, T[2])
        I("v_mul_u32_u24", T[3], 40, vL); I("v_add_u32", T[3], (32 - 16 * 40) & 0xffffffff, T[3])
        I("v_cndmask_b32", T[2], T[3], T[2], "vcc"); I("v_add_u32", vAG2, sL1, T[2])
        for t in range(5):
            I("v_accvgpr_write_b32", PHIF(t, 2)[2], 0); I("v_accvgpr_write_b32", PHIF(t, 2)[3], 0)
    lt = singles(cap(late))

    wait_vm("S0", lgkm=0)
    I("s_barrier")
    stamp("S0land")
    pipe = Pipe(dist=4)
    RT = list(range(-4, 10)) + [10, 10, 11, 11, 12, 12]
    fill = []
    for j in range(9):
        slot = j % 3
        order = [(kap, T_) for kap in range(2) for T_ in range(10)]
        if j == 8: order = [(kap, T_) for T0 in (0, 5) for kap in range(2) for T_ in range(T0, T0 + 5)]
        seen = set()
        for m, (kap, T_) in enumerate(order):
            ks = 2 * j + kap
            ring = RING[(20 * j + m) % 8]
            def rd():
                if kap not in seen:
                    seen.add(kap)
                    for p in range(2):
                        I("ds_read_b128", XF(ks, p), vXR[kap], mods="offset:%d" % (slot * XSLOT + p * 2048))
                tile_read(ring, T_, slot * WSLOT + kap * 9216)
            def work():
                for p in range(2):
                    if T_ < 5: mfma(ACK[p][T_], ring, XF(ks, p), 0 if ks == 0 else ACK[p][T_])
                    else: mfma(ACV[p][T_ - 5], XF(ks, p), ring, 0 if ks == 0 else ACV[p][T_ - 5])
            pipe.add(rd, work, rt=20 * j + RT[m])
        def hook():
            if OPT["itouch"] and 20 * j + 16 == OPT["t0"]: touch_round(0)
            if OPT["itouch"] and 20 * j + 16 == OPT["t1"]: touch_round(1)
            if j < 8: wait_vm("S%d" % (j + 1), lgkm=0)
            else: wait(lgkm=0)
            I("s_barrier")
            if OPT["p1st"]: stamp("b%d" % (j + 1))
        pipe.hooks[20 * j + 16] = cap(hook)
        t0 = max(0, 20 * j - 4)
        if j + 2 < 9: fill += spread(stage_dma(j + 2), t0, 20 * j + 13)
        elif j == 7: fill += spread(wq_pair_dma(0) + wq_pair_dma(2), t0 + 2, 20 * j + 36)
    if OPT["pfq"]:
        fill += at(OPT["pfq"], singles(cap(lambda: prefetch("wq"))))
    if OPT["pfo"] > 1:
        fill += at(OPT["pfo"], singles(cap(lambda: prefetch("wo"))))
    fill.sort(key=lambda t: t[0])
    phw = singles(cap(lambda: [I("ds_write_b32", PA[i], PW[i], mods="offset:%d" % (256 * i)) for i in range(3)]))
    def phir():
        for t in range(5):
            for tp in range(5):
                ad, o = (vPH[0], 160 * tp) if tp < 3 else (vPH[tp - 2], 0)
                tr(PHIF(t, tp // 2)[2 * (tp & 1):2 * (tp & 1) + 2], ad, 8 * t + o)
    phr = singles(cap(phir))
    nl = len(lt)
    bulk = spread(lt[:8], -1, -1) + spread(lt[8:30], 0, 24) + spread(phw, 24, 30) + spread(lt[30:40], 30, 42)
    bulk += spread(phr, 42, 80) + spread(lt[40:], 80, 150)
    bulk += spread(singles(cap(lambda: (cv(0), cv(1)))), 178, 180)
    pipe.emit(fill, bulk)
    stamp("pass1")

    I("s_cmp_lg_u32", sA, 0)
    I("s_cbranch_scc1", "L_tailA")
    P.label("L_tailB")
    names0 = list(stamp_names); mute0 = OPT.get("mute")
    P.put(mark(cap(lambda: tail("B")), path="B"))
    P.label("L_end")
    P.label("L_notouchB")
    I("s_endpgm")
    for sl in SLOW: P.put(mark(sl, path="B"))
    del SLOW[:]
    stamp_names[:] = names0; OPT["mute"] = mute0
    P.raw(".p2align 7")
    P.label("L_dotouch")
    P.label("L_tailA")
    P.put(mark(cap(lambda: (I("s_nop", 7), tail("A"))), path="A"))
    P.label("L_notouchA")
    I("s_endpgm")
    for sl in SLOW: P.put(mark(sl, path="A"))
    P.label("L_last")

def prefetch(kind):
    I("s_lshr_b32", sT2, s(2), 3); I("s_lshl2_add_u32", sT2, sT2, sWV); I("s_mul_i32", sT2, sT2, 81); I("s_lshr_b32", sT2, sT2, 1)
    I("v_min_u32", T[5], 40, vL); I("v_add_u32", T[5], sT2, T[5])
    if kind == "wo":
        I("v_lshlrev_b32", T[5], 7, T[5])
        I("buffer_load_dword", v(255), T[5], SWO, 0, mods="offen")
    else:
        I("v_mul_u32_u24", T[6], 7282, T[5]); I("v_lshrrev_b32", T[6], 16, T[6])
        I("v_mul_u32_u24", T[6], 18, T[6]); I("v_add_lshl_u32", T[5], T[5], T[6], 7)
        I("buffer_load_dword", v(255), T[5], SW, 0, mods="offen")

def rebase(delta):
    for pat in range(3):
        for e in range(2):
            I("v_add_u32", vTR[pat][e], delta & 0xffffffff, vTR[pat][e])

def tail(path):
    B = path == "B"
    FT = [0, 1, 2] if B else [0, 2]
    PHI_ = PH if B else KB
    NJ = 5 if B else 3
    def poison():
        for i in range(4):
            I("buffer_store_dwordx4", M1, vL16, SWS, sOU[0], mods="offen offset:%d sc1" % (1024 * i))
        for i in range(2):
            I("buffer_store_dword", M1[0], vL4, SWS, sOU[0], mods="offen offset:%d sc1" % (256 * i))
    def vpack():
        I("v_cmp_eq_u32", "vcc", 8, vN)
        I("v_mov_b32", T[0], 0x3f803f80)
        for t in range(5):
            d = ACV[0][t]
            for p in range(2):
                for h in range(2):
                    I("v_cvt_pk_bf16_f32", d[2 * p + h], ACV[p][t][2 * h], ACV[p][t][2 * h + 1])
        for i in range(4): I("v_cndmask_b32", ACV[0][4][i], ACV[0][4][i], T[0], "vcc")
    def prewarm():
        I("v_min_u32", T[1], 35, vL); I("v_lshlrev_b32", T[1], 7, T[1])
        I("buffer_load_dword", v(255), T[1], SWS, sOU[0], mods="offen sc1")
    vp = singles(cap(vpack))
    w = singles(cap(lambda: [I("ds_write_b128", vVW, ACV[0][t], mods="offset:%d" % (1024 * t)) for t in range(5)]))
    q = tagged(singles(cap(poison)), "POIS")
    pwm = [cap(prewarm)] if OPT["pw"] else []
    pfo = [cap(lambda: prefetch("wo"))] if OPT["pfo"] == 1 else []
    q4, q6, q8 = vm_only(wq_pair_dma(4)), vm_only(wq_pair_dma(6)), vm_only(wq_pair_dma(8))
    if B:
        ksh = weave(q4[:4], vp); km0 = weave(q4[4:] + q6, w); km1 = q8 + pfo + q
        late_q = []
    else:
        ksh = weave(q4[:1], vp); km0 = weave(q4[1:], w); km1 = q6[:3] + pfo + q
        late_q = q6[3:] + q8
    def kwrites(p):
        return singles(cap(lambda: [I("ds_write_b64", vIW, PHI_[p][2 * i:2 * i + 2], mods="offset:%d" % (IMG + p * 1152 + 8 * i)) for i in range(9 if B else 5)]))
    feature_map(path, "k", True, ksh, (km0, 2, 98), (km1, 0, 70 if B else 95), kwrites)
    wait(lgkm=0)
    I("s_barrier")
    stamp("kpost")
    DM = [v(104 + 4 * j, 4) for j in range(3)]; DL = [v(116 + 4 * j, 4) for j in range(3)]
    pipe = Pipe(dist=3, grp=1)
    n = 0
    for j in FT:
        for src in range(4):
            AM, AL = v(64 + 8 * src, 4), v(68 + 8 * src, 4)
            BF = RING[n % 8]; n += 1
            def rd():
                if j == 0: I("ds_read_b128", AM, vAM, mods="offset:%d" % (src * 5120))
                for e in range(2):
                    tr(BF[2 * e:2 * e + 2], vKB0 if j < 2 else vKB2, IMG + src * 2304 + e * 1152 + (32 * j if (B or j < 2) else 32))
                if j == 0: I("ds_read_b128", AL, vAL, mods="offset:%d" % (src * 5120))
            def work():
                mfma(DM[j], AM, BF, 0 if src == 0 else DM[j])
                mfma(DL[j], AL, BF, 0 if src == 0 else DL[j])
            pipe.add(rd, work)
    SLM = {0: 0, 1: 4, 2: 8} if B else {0: 0, 2: 4}
    SLL = {0: 9, 1: 10, 2: 11} if B else {0: 5, 2: 6}
    def pstore(j):
        for D, ad, sl in ((DM[j], vP1 if j < 2 else vP2, SLM[j]), (DL[j], vP3, SLL[j])):
            if sl: I("s_add_u32", sT1, sPME, sl * 4096)
            for i in range(4): I("v_and_or_b32", D[i], D[i], sMSK, T[0])
            I("buffer_store_dwordx4", D, ad, SWS, sT1 if sl else sPME, mods="offen sc1")
    fill = at(1, singles(cap(lambda: (I("v_mov_b32", T[0], sTAG), rebase(WQ0 - WSL)))))
    for k_, j in enumerate(FT[:-1]): fill += spread(tagged(singles(cap(lambda: pstore(j))), "P"), 4 * k_ + 5, 4 * k_ + 8)
    pipe.emit(fill)
    fst("kvmm")
    pstore(FT[-1])
    stamp("pubP")
    wait_vm("WQ4")
    I("s_barrier")
    stamp("wqland")

    def gemm2(bfrag, offs, rebases, fill, nm, hooks={}):
        pipe = Pipe(dist=4)
        pipe.hooks = hooks
        n = 0
        for ks in range(18):
            for T_ in range(5):
                ring = RING[n % 8]; n += 1
                def rd():
                    if T_ == 0 and ks in rebases: rebase(rebases[ks])
                    tile_read(ring, T_, offs(ks))
                def work():
                    for p in range(2):
                        mfma(ACK[p][T_], ring, bfrag(ks, p), 0 if ks == 0 else ACK[p][T_])
                pipe.add(rd, work, (lambda: fst("%s%d" % (nm, ks))) if T_ == 0 else None)
        pipe.emit(fill)
    RS = v(128, 16)
    vCK = T[6]
    def rs_loads():
        for i in range(4):
            I("buffer_load_dwordx4", RS[4 * i:4 * i + 4], vL16, SWS, sRSB, mods="offen offset:%d sc1" % (1024 * i))
    def rs_reduce():
        for st in (8, 4):
            for i in range(st): I("v_add_f32", RS[i], RS[i], RS[i + st])
        I("v_permlane32_swap_b32", RS[0], RS[2]); I("v_permlane32_swap_b32", RS[1], RS[3])
        I("v_add_f32", RS[0], RS[0], RS[2]); I("v_add_f32", RS[1], RS[1], RS[3])
        I("v_mov_b32", RS[2], RS[0]); I("v_mov_b32", RS[3], RS[1])
        I("v_permlane16_swap_b32", RS[0], RS[2]); I("v_permlane16_swap_b32", RS[1], RS[3])
        I("v_add_f32", RS[0], RS[0], RS[2]); I("v_add_f32", RS[1], RS[1], RS[3])
        I("v_cvt_pk_bf16_f32", RS[0], RS[0], RS[1])
        I("buffer_store_dword", RS[0], vFS, SWS, sFSL, mods="offen sc1")
    vRV, vRA = T[7], T[8]
    def rflag():
        I("v_mov_b32", vRV, sRV); I("s_lshl_b32", sT1, sG, 2); I("v_mov_b32", vRA, sT1)
        I("buffer_store_dword", vRV, vRA, SWS, sRF, mods="offen sc1")
    ra, rc = OPT["rs_at"], OPT["rs_chk"]
    if not B: ra -= OPT["dA"]; rc -= OPT["dA"]
    fill = spread(late_q if late_q else wo_pair_dma(0), 4, 30)
    fill += spread(tagged(singles(cap(rs_loads)), "RS"), ra, ra + 4)
    fill += spread(wo_pair_dma(2 if B else 0), ra + 4, rc)
    w4 = spread(wo_pair_dma(4 if B else 2), rc + 1, rc + OPT["rs_len"] - 2)
    chk = [cap(lambda: wait_vm("RS"))] + singles(sum(pwm, [])) + check_tag("rs" + path, vCK, [RS[i] for i in range(16)], rs_loads) + singles(cap(rs_reduce)) + singles(cap(rflag))
    fill += sorted(spread(chk, rc, rc + OPT["rs_len"]) + w4, key=lambda t: t[0])
    gemm2(XF, lambda ks: ((ks // 2) % 6) * 9216 + (ks & 1) * 144, {12: WQ6 - WQ0}, fill, "q", {54: cap(lambda: (wait_vm("WQ8"), I("s_barrier")))})
    stamp("qgemm")

    NAG = 3 if B else 2
    AG = v(104, 2 * NAG); RF = v(112)
    def ag_loads():
        for i in range(NAG):
            I("buffer_load_dwordx2", AG[2 * i:2 * i + 2], T[5] if (B or i == 0) else T[3], SWS, sAG, mods="offen offset:%d sc1" % (512 * i))
    def rf_load(): I("buffer_load_dword", RF, T[4], SWS, sRF, mods="offen sc1")
    def qsh():
        I("v_lshlrev_b32", T[5], 3, vL)
        if not B: I("v_min_u32", T[3], 47 * 8, T[5])
        I("v_and_b32", T[4], 7, vL); I("v_lshlrev_b32", T[4], 2, T[4])
        rebase(WO0 - WQ6)
    fr = OPT["ag_frac"] if B else OPT["ag_fracA"]
    g = singles(cap(rf_load)) + tagged(singles(cap(ag_loads)), "AG")
    lo = (fr - 50) * 2
    w6 = vm_only(wo_pair_dma(6 if B else 4))
    if B: feature_map(path, "q", False, weave(singles(cap(qsh)), w6[:3]), (w6[3:], 10, 70), (g, lo, min(100, lo + 10)), lambda p: [])
    else: feature_map(path, "q", False, singles(cap(qsh)), (w6[:3], 0, 100), (w6[3:] + g, 0, 100), lambda p: [])
    stamp("qpost")
    for t in range(5):
        I("v_accvgpr_write_b32", PSIF(t, NJ - 1)[2], 0); I("v_accvgpr_write_b32", PSIF(t, NJ - 1)[3], 0)
    wait_vm("AG")
    fst("agw")
    emit_groups(check_sent("ag" + path, vCK, [AG[i] for i in range(2 * NAG)], ag_loads))
    fst("agok")
    I("ds_write_b64", vAG1, AG[0:2])
    if B: I("ds_write_b64", vAG1, AG[2:4], mods="offset:640")
    I("ds_write_b64", vAG2, AG[2 * NAG - 2:2 * NAG])
    wait(lgkm=0)
    I("s_barrier")
    stamp("gotkv")

    pool = list(range(104, 144, 4)) + list(range(176, 256, 4)) + [12, 16, 28, 32, 36, 40]
    OF = {}
    keys = [(0, p, X) for X in range(2) for p in range(2)] + [("L", k, p) for k in range(2) for p in range(2)] + [(u, p, X) for u in range(1, 8) for p in range(2) for X in range(2)]
    for k_, r_ in zip(keys, pool): OF[k_] = v(r_, 4)
    o = ACC
    pipe = Pipe(dist=4)
    for t in (4, 0, 1, 2, 3):
        for j in range(NJ):
            def rd():
                tr(PSIF(t, j)[0:2], vPSA, 8 * t + 8 * j * 40)
                if j < NJ - 1: tr(PSIF(t, j)[2:4], vPSA, 8 * t + (8 * j + 4) * 40)
            def work():
                for p in range(2):
                    mfma(ACK[p][t], PSIF(t, j), PHI_[p][4 * j:4 * j + 4], 0 if j == 0 else ACK[p][t])
            pipe.add(rd, work)
    def ostore(key, flag=""):
        if key[0] == "L": I("buffer_store_dword", OF[key][0], vL4, SWS, sOU[0], mods="offen offset:%d%s" % (key[2] * 256, flag))
        else: I("buffer_store_dwordx4", OF[key], vL16, SWS, sOU[0], mods="offen offset:%d%s" % (key[1] * 2048 + key[2] * 1024, flag))
    def fin_den():
        for p in range(2): I("v_add_f32", o[p][18], sEPS[0], o[p][18])
        for p in range(2): I("v_rcp_f32", o[p][18], o[p][18])
        for p in range(2):
            for i in (16, 17): I("v_mul_f32", o[p][i], o[p][i], o[p][18])
        for p in range(2):
            I("v_cvt_pk_bf16_f32", OF[("L", 0, p)][0], o[p][16], o[p][17])
            ostore(("L", 0, p))
    def fin_tile(t, packed):
        for p in range(2):
            if packed:
                for i in (4 * t, 4 * t + 2): I("v_pk_mul_f32", o[p][i:i + 2], o[p][i:i + 2], o[p][18:20], mods="op_sel:[0,0] op_sel_hi:[1,0]")
            else:
                for i in range(4 * t, 4 * t + 4): I("v_mul_f32", o[p][i], o[p][i], o[p][18])
            for h in range(2):
                I("v_cvt_pk_bf16_f32", OF[(0, p, t // 2)][2 * (t & 1) + h], o[p][4 * t + 2 * h], o[p][4 * t + 2 * h + 1])
            if t & 1: ostore((0, p, t // 2))
    rfchk = check_or_retry("rf" + path, lambda: I("v_xor_b32", vCK, sRV, RF), lambda: I("v_cmp_lt_u32", "vcc", 15, vCK), rf_load)
    rfchk += [cap(lambda: I("v_cmp_ne_u32", s(50, 2), 0, vCK))]
    w8 = vm_only(([] if B else wo_pair_dma(6)) + singles(cap(lambda: I("s_add_u32", sO8, sO8, sQ8))) + tagged(dma5(vO8, SWO, sO8, sM8, WO6 + 2 * 9216), "WO8"))
    fill = at(0, rfchk)
    fill += spread(singles(cap(fin_den)), NJ + 2, 2 * NJ + 1)
    for t in range(3): fill += spread(singles(cap(lambda: fin_tile(t, False))), (2 + t) * NJ + 1 + (1 if B else 0), (3 + t) * NJ + 1)
    fill = sorted(fill + spread(w8, 0, 4 * NJ), key=lambda t: t[0])
    pipe.emit(fill)
    fst("omm")
    fin_tile(3, True)
    I("s_cmp_lg_u64", s(50, 2), 0)
    I("s_cbranch_scc1", "L_far" + path)
    P.label("L_near" + path)
    def far():
        P.label("L_far" + path)
        for key in keys[:4] + [("L", 0, 0), ("L", 0, 1)]: ostore(key, " sc1")
        wait(vm=0)
        I("buffer_store_dword", vRV, vRA, SWS, sRF, mods="offen offset:32 sc1")
        I("s_mov_b32", sCNT, 0)
        P.label("L_farp" + path)
        I("buffer_load_dword", vCK, T[4], SWS, sRF, mods="offen offset:32 sc1")
        wait(vm=0)
        I("v_xor_b32", vCK, sRV, vCK)
        I("v_cmp_lt_u32", "vcc", 15, vCK)
        I("s_add_u32", sCNT, sCNT, 1)
        I("s_cmp_gt_u32", sCNT, SPIN)
        I("s_cbranch_scc1", "L_near" + path)
        I("s_cbranch_vccnz", "L_farp" + path)
        I("s_branch", "L_near" + path)
    SLOW.append(cap(far))
    stamp("pubO")

    def oload(u):
        for X in (1, 0):
            for p in (1, 0):
                I("buffer_load_dwordx4", OF[(u, p, X)], vL16, SWS, sOU[u], mods="offen offset:%d sc1" % (p * 2048 + X * 1024))
        for p in range(2):
            I("buffer_load_dword", OF[("L", u // 4, p)][u % 4], vL4, SWS, sOU[u], mods="offen offset:%d sc1" % (p * 256))
    def bf(ks, p):
        if ks < 16: return OF[(ks // 2, p, ks & 1)]
        return OF[("L", ks - 16, p)]
    offs = lambda ks: ((ks // 2) % 6) * 9216 + (ks & 1) * 144
    vW1, vW2, vW3, vRD = vIW, vVW, vAM, vAL
    vST = [vP2, vPSA, vKB0, vKB2, vP1]
    def out_addr():
        I("s_add_u32", sT0, sMQ, OUTB)
        I("v_mul_u32_u24", T[0], 144, vN); I("v_add_u32", T[0], sT0, T[0])
        I("v_mul_u32_u24", T[1], 40, vGL); I("v_add_u32", vW1, T[0], T[1])
        I("v_lshrrev_b32", T[4], 1, vGL)
        I("v_lshlrev_b32", T[2], 5, T[4]); I("v_sub_u32", vW2, vW1, T[2])
        I("v_mul_u32_u24", T[3], 72, T[4]); I("v_add_u32", vW3, T[0], T[3])
        I("v_add_u32", vRD, sT0, vL16)
        I("s_movk_i32", sT1, 2304 - 144)
        for i in range(5):
            t = vM
            if i:
                I("v_add_u32", T[3], Q0[i] * 7282, vM); t = T[3]
            I("v_lshrrev_b32", T[0], 16, t)
            I("v_mad_u32_u24", vST[i], T[0], sT1, vL16)
    NPRE = OPT["npre"]
    wait_vm("WO8")
    I("s_barrier")
    stamp("ackO")
    I("s_mov_b32", sT2, 0)
    P.label("L_redo" + path)
    g = []
    for u in range(1, NPRE + 1): g += tagged(singles(cap(lambda: oload(u))), "O%d" % u)
    fill = spread(g, 0, 7)
    def ochk(u):
        regs = [OF[(u, 0, 1)][3], OF[(u, 1, 1)][3], OF[(u, 1, 0)][3]]
        return [cap(lambda: wait_vm("O%d" % u))] + check_sent("o%d%s" % (u, path), vCK, regs, lambda: oload(u))
    for u in range(0, 7):
        b0 = u * 10
        blk = spread(ochk(u + 1), b0 + 6, b0 + 6)
        if u and u + NPRE <= 7: blk += spread(tagged(singles(cap(lambda: oload(u + NPRE))), "O%d" % (u + NPRE)), b0, b0 + 10)
        fill += sorted(blk, key=lambda t: t[0])
    fill += spread(singles(cap(out_addr)), 70, 88)
    gemm2(bf, offs, {12: WO6 - WO0}, fill, "o")
    stamp("ogemm")
    I("v_cmp_u_f32", "vcc", ACK[0][0][0], ACK[1][0][0])
    I("s_cbranch_vccnz", "L_again" + path)
    P.label("L_done" + path)
    def again():
        P.label("L_again" + path)
        I("s_add_u32", sT2, sT2, 1)
        I("s_cmp_gt_u32", sT2, 200)
        I("s_cbranch_scc1", "L_done" + path)
        rebase(WO0 - WO6)
        I("s_nop", 7)
        I("s_branch", "L_redo" + path)
    SLOW.append(cap(again))
    OUTR = v(104, 20)
    for p in range(2):
        for t in range(5):
            for h in range(2):
                I("v_cvt_pk_bf16_f32", OUTR[10 * p + 2 * t + h], ACK[p][t][2 * h], ACK[p][t][2 * h + 1])
            ad, off = (vW1, 8 * t) if t < 3 else ((vW2, 24) if t == 3 else (vW3, 32))
            I("ds_write_b64", ad, OUTR[10 * p + 2 * t:10 * p + 2 * t + 2], mods="offset:%d" % (off + p * 2304))
    OB = v(176, 20)
    for i in range(5):
        I("ds_read_b128", OB[4 * i:4 * i + 4], vRD, mods="offset:%d" % (16 * Q0[i]))
    fl = ["", " sc1", " nt", " sc0 sc1"][OPT["outflag"]]
    wait(lgkm=4)
    I("s_mov_b32", "exec_hi", 0)
    I("buffer_store_dwordx4", OB[0:4], vST[0], SOUT, sOUTB, mods="offen" + fl)
    I("s_mov_b32", "exec_hi", -1)
    for i in range(1, 5):
        wait(lgkm=4 - i)
        I("buffer_store_dwordx4", OB[4 * i:4 * i + 4], vST[i], SOUT, sOUTB, mods="offen offset:%d%s" % (16 * Q0[i], fl))
    I("s_or_b32", sT0, sSL, sG)
    I("s_cmp_lg_u32", sT0, 0)
    I("s_cbranch_scc1", "L_noep" + path)
    I("s_lshl_b32", sT0, sA, 7); I("s_add_u32", sT0, sT0, WS_E)
    I("v_mov_b32", T[0], 0); I("v_mov_b32", T[1], sE)
    I("buffer_store_dword", T[1], T[0], SWS, sT0, mods="offen")
    P.label("L_noep" + path)
    if OPT["stamps"]:
        stamp("stiss")
        if B: P.label("L_fin")
        OPT["mute"] = 0
        wait(vm=0)
        stamp("end")
        I("s_memrealtime", s(100, 2))
        wait(lgkm=0)
        if OPT["fine"]:
            for k, nm in enumerate(OPT["fine"].split(",")):
                stamp_names.append(nm); STAMPS[k] = s(4 + 2 * k)
        n = len(stamp_names)
        for k in range(n):
            if OPT["lite"] and k != OPT["amp"] and k != n - 1: continue
            assert OPT["lite"] or n <= 17
            I("s_sub_u32", STAMPS[k], STAMPS[k], s(96 if OPT["lite"] == 2 else 98))
            I("v_mov_b32", v(64 + k), STAMPS[k])
        I("v_mov_b32", v(64 + 30), s(96)); I("v_mov_b32", v(64 + 31), s(100))
        I("s_lshl_b32", sT0, s(2), 2); I("s_add_u32", sT0, sT0, sWV); I("s_lshl_b32", sT0, sT0, 7); I("s_add_u32", sT0, sT0, WS_ST)
        I("v_mov_b32", T[0], 0)
        I("s_mov_b64", "exec", 1)
        for q in range(8):
            I("buffer_store_dwordx4", v(64 + 4 * q, 4), T[0], SWS, sT0, mods="offen offset:%d" % (16 * q))
        if OPT["amp"] >= 0 and OPT["ampsel"] in (0, 2 if B else 1):
            I("s_lshl_b32", sT2, STAMPS[OPT["amp"]], 3)
            I("s_add_u32", sT2, sT2, STAMPS[n - 1])
            P.label("L_amp" + path)
            I("s_memrealtime" if OPT["lite"] == 2 else "s_memtime", s(100, 2)); wait(lgkm=0)
            I("s_sub_u32", sT1, s(100), s(96 if OPT["lite"] == 2 else 98))
            I("s_cmp_lt_u32", sT1, sT2)
            I("s_cbranch_scc1", "L_amp" + path)

HEADER = open("cdna_kernels/%s.s.ref" % NAME).read().split("; Override launch")[0]

def wrap(body):
    txt = HEADER + "; @launch grid=(256,1,1) block=(256,1,1) lds=%d\n" % LDS_BYTES
    txt += "; stamps: %s\n" % ",".join(stamp_names) if stamp_names else ""
    txt += '.amdgcn_target "amdgcn-amd-amdhsa--gfx950"\n.text\n.globl %s_kernel\n.p2align 12\n.type %s_kernel,@function\n' % (NAME, NAME)
    txt += ".set CODE_SPAN, (L_last - %s_kernel - 128) & 0xffffff80\n" % NAME
    txt += ".set HEAD_LINES, ((L_tailB - %s_kernel) >> 7) + 8\n.set A_SHIFT, (L_tailA - L_tailB - 2048) & 0xffffff80\n" % NAME
    txt += "%s_kernel:\n%s\n" % (NAME, body)
    txt += """.section .rodata,"a"
.p2align 6
.amdhsa_kernel %s_kernel
  .amdhsa_next_free_vgpr 512
  .amdhsa_next_free_sgpr 102
  .amdhsa_accum_offset 256
  .amdhsa_group_segment_fixed_size 0
  .amdhsa_kernarg_size 80
  .amdhsa_user_sgpr_count 2
  .amdhsa_user_sgpr_kernarg_segment_ptr 1
  .amdhsa_system_sgpr_workgroup_id_x 1
.end_amdhsa_kernel
""" % NAME
    return txt

def main(out):
    build()
    txt = P.finalize2(wrap)
    open(out, "w").write(txt)
    print("wrote", out, "hazard nops:", P.nops, "align fixes:", P.fixes, "bytes:", P.bytes, "touch points:", P.points)

if __name__ == "__main__":
    out = sys.argv[1]
    for kv in sys.argv[2:]:
        k, val = kv.split("=")
        assert k in OPT, k
        OPT[k] = val if k in ("stop", "fine") else int(val)
    main(out)
```

```python
import sys, struct
from asmdsl import *

NAME = "concat_heads__linear_attn_block__linear_kernel_hedgehog__prompt"
OPT = dict(stamps=0, nphase=6, amp=-1, ampsel=0, lite=0, outflag=0, rs_at=40, rs_chk=62, rs_len=27, ag_frac=56, ag_fracA=90, dA=4, npre=3, t0=16, t1=36, pw=0, pfo=0, pfq=0, wdn=8, pfx=0, perm=0, xsh=0, swap07=1,
           stop="", p1st=0, touch=1, fine="", itouch=1, rt=0)

def f2u(x): return struct.unpack("<I", struct.pack("<f", x))[0]
LOG2E = 1.4426950408889634

XSLOT = 16384
WSL = 49152; WSLOT = 18432
WQ0 = 104448
WQ6 = 76800
PHI = 104448
ZERO = 159744
IMG = 0
VF = 36864
KVI = 57344
WO0 = 0
WO6 = 104448
OUTB = 76800
LDS_BYTES = 163840
PGRP = 48 * 4096
WS_F = 0x300000; WS_E = 0x380000; WS_R = 0x390000; WS_O = 0x400000; WS_ST = 0x900000; WS_BYTES = 0xA00000
OOB = 0x7ffffff0
SPIN = 30000
Q0 = [0, 32, 96, 160, 224]
WSTEP = 64 * 3456

SX, SW, SWO, SWS, SOUT, SPHI = s(24, 4), s(28, 4), s(32, 4), s(36, 4), s(40, 4), s(48, 4)
sL0, sL1, sL2, sL3 = s(44), s(45), s(46), s(47)
sA, sRT, sG, sWV = s(52), s(53), s(54), s(55)
sOQ, sOX, sOW = s(56), s(57), s(58)
s1152 = s(59)
sMX, sMW = s(60), s(61)
sT0, sT1, sT2, sT3 = s(62), s(63), s(64), s(65)
sSL = s(66)
sROT = s(67)
sPME, sRSB, sRF, sOB = s(68), s(69), s(70), s(71)
sCNT = s(72)
sFSL = s(73)
sC = s(74, 2)
sEPS = s(76, 2)
sODD = s(78, 2)
sMQ = s(80)
sOO = s(81)
sPC = s(82, 2)
sTAG, sMSK = s(82), s(83)
sOU = [s(84 + u) for u in range(8)]
sAG = s(92)
sO8 = s(93)
sOUTB = s(94)
sE = s(95)
sM8 = s(20); sQ8 = s(21); sPM2 = s(22); sPM3 = s(23)
sG144 = s(48); sRV = s(49); sQE = s(50); sOE = s(51)
STAMPS = [s(3 + i % 17) for i in range(28)]

vL = v(0)
T = [v(i) for i in range(1, 10)]
vOX = [v(10 + i) for i in range(4)]
vOW = [v(14 + i) for i in range(5)]
vXR = [v(19), v(20)]
vTR = [[v(21 + 2 * p + e) for e in range(2)] for p in range(5)]
vOQ = [v(31 + i) for i in range(5)]
vOO = [v(36 + i) for i in range(5)]
vO8 = [v(41 + i) for i in range(5)]
vL16 = v(46)
vGL, vN = v(47), v(48)
vM, vPSA, vKB0, vKB2, vFS, vL4, vIW, vVW, vAM, vAL, vP1 = [v(49 + i) for i in range(11)]
vP2, vP3, vAG1, vAG2 = v(60), v(61), v(62), v(63)
ACK = [[v(64 + 20 * p + 4 * t, 4) for t in range(5)] for p in range(2)]
ACV = [[v(104 + 20 * p + 4 * t, 4) for t in range(5)] for p in range(2)]
RING = [v(144 + 4 * i, 4) for i in range(8)]
KB = [v(176 + 12 * p, 12) for p in range(2)]
PH = [v(200 + 20 * p, 20) for p in range(2)]
TMP = v(144, 24)
PW = v(240, 3); M1 = v(244, 4); PA = v(248, 3); vR, vC = v(251), v(252)
vPH = [v(243), v(253), v(254)]
def XF(ks, p): return a(ks * 8 + p * 4, 4)
def PHIF(t, j): return a(144 + (t * 3 + j) * 4, 4)
def PSIF(t, j): return a(144 + (t * 5 + j) * 4, 4)

P = Prog()
I = P.I
cap = P.capture
stamp_names = []
def fst(name):
    names = OPT["fine"].split(",")
    if name in names:
        k = names.index(name)
        I("s_memrealtime" if OPT["rt"] else "s_memtime", s(4 + 2 * k, 2), c="fine " + name)
def stamp(name):
    if OPT["fine"]:
        fst(name)
    elif OPT["stamps"] and not OPT.get("mute"):
        k = len(stamp_names); stamp_names.append(name)
        real = True
        if OPT["lite"]:
            real = (k == OPT["amp"] or name == "end")
            if real: STAMPS[k] = s(5) if name == "end" else (s(4) if k else s(3))
        if real:
            I("s_memrealtime" if OPT["lite"] == 2 else "s_memtime", s(100, 2), c="stamp " + name)
            I("s_waitcnt", "lgkmcnt(0)")
            I("s_mov_b32", STAMPS[k], s(100))
    if OPT["stop"] == name:
        I("s_branch", "L_fin"); OPT["mute"] = 1

def wait(vm=None, lgkm=None):
    t = []
    if vm is not None: t.append("vmcnt(%d)" % vm)
    if lgkm is not None: t.append("lgkmcnt(%d)" % lgkm)
    I("s_waitcnt", " ".join(t))
def wait_vm(tag, lgkm=None): P.items.append(VmWait(tag, lgkm))
def tagged(groups, tag):
    for g in groups:
        for x in g:
            if isinstance(x, Ins) and x.kind == "vmem": x.tag = tag
    return groups
def mark(items, **kw):
    for x in items:
        if isinstance(x, Ins):
            for k, val in kw.items(): setattr(x, k, val)
    return items

def srd(dst, lo, hi, size):
    I("s_mov_b32", dst[0], lo); I("s_mov_b32", dst[1], hi)
    I("s_mov_b32", dst[2], size); I("s_mov_b32", dst[3], 0x20000)
def singles(items): return [[x] for x in items]
def emit_groups(groups):
    for g in groups: P.put(g)

def dma5(voffs, srdreg, soff, m0base, m0imm):
    def first():
        I("s_add_u32", "m0", m0base, m0imm)
        I("s_mov_b32", "exec_hi", 0)
        I("buffer_load_dwordx4", voffs[0], srdreg, soff, mods="offen lds")
        I("s_mov_b32", "exec_hi", -1)
    g = [cap(first)]
    for i in range(1, 5):
        g += singles(cap(lambda: I("buffer_load_dwordx4", voffs[i], srdreg, soff, mods="offen offset:%d lds" % (16 * Q0[i]))))
    return g

PERMS = {
    1: (3, [[7, 3, 6, 1, 8, 4, 2, 0, 5], [1, 3, 7, 2, 4, 8, 6, 0, 5], [3, 8, 1, 6, 2, 7, 0, 4, 5]]),
    2: (4, [[4, 0, 1, 5, 6, 2, 8, 7, 3], [4, 1, 5, 2, 7, 0, 6, 8, 3], [1, 4, 6, 7, 0, 2, 3, 5, 8], [4, 6, 1, 7, 3, 0, 5, 2, 8]]),
    3: (3, [[0, 1, 2, 3, 4, 5, 6, 7, 8], [1, 2, 0, 4, 5, 3, 7, 8, 6], [2, 0, 1, 5, 3, 4, 8, 6, 7]]),
    4: (8, [[3, 7, 5, 0, 8, 1, 4, 2, 6], [3, 5, 0, 4, 7, 6, 1, 8, 2], [5, 7, 4, 2, 0, 8, 3, 1, 6], [5, 3, 0, 8, 7, 2, 6, 1, 4], [3, 0, 4, 5, 8, 7, 6, 2, 1], [3, 5, 7, 0, 1, 2, 4, 8, 6], [7, 5, 2, 0, 4, 8, 6, 1, 3], [3, 4, 7, 0, 2, 1, 6, 8, 5]]),
    5: (3, [[0, 1, 2, 3, 4, 5, 6, 7, 8], [3, 4, 5, 6, 7, 8, 0, 1, 2], [6, 7, 8, 0, 1, 2, 3, 4, 5]]),
}
sPM = s(22, 2)
sPQ = s(90, 2)
sXB0, sWB0, sXSH = s(84 + 1), s(84 + 2), s(84 + 3)
def stage_of(dst, src):
    I("s_and_b32", dst, src, 15)
    if OPT["xsh"]:
        I("s_add_u32", dst, dst, sXSH)
def stage_fix(dst):
    I("s_cmp_ge_u32", dst, 9)
    I("s_cselect_b32", sT1, 9, 0)
def perm_next():
    g = singles(cap(lambda: stage_of(sT0, sPM[0])))
    if OPT["xsh"]: g += [cap(lambda: stage_fix(sT0))] + singles(cap(lambda: I("s_sub_u32", sT0, sT0, sT1)))
    def f():
        I("s_lshr_b64", sPM, sPM, 4)
        I("s_lshl_b32", sOX, sT0, 7); I("s_add_u32", sOX, sOX, sXB0)
        I("s_mul_i32", sOW, sT0, WSTEP); I("s_add_u32", sOW, sOW, sWB0)
    return g + singles(cap(f))
def permq_next():
    g = singles(cap(lambda: stage_of(sT0, sPQ[0])))
    if OPT["xsh"]: g += [cap(lambda: stage_fix(sT0))] + singles(cap(lambda: I("s_sub_u32", sT0, sT0, sT1)))
    def f():
        I("s_lshr_b64", sPQ, sPQ, 8)
        I("s_mul_i32", sOQ, sT0, WSTEP); I("s_add_u32", sOQ, sOQ, sQE)
    return g + singles(cap(f))
def wraps_after(j):
    rots = {1: [0], 2: [0, 4], 3: [0, 3, 6], 4: [0, 2, 4, 6], 5: [0, 2, 5, 7], 8: list(range(8)), 6: list(range(9)), 7: list(range(9))}[OPT["nphase"]]
    return any(r + j == 8 for r in rots) and j < 8
def x_dma(j):
    g = singles(cap(lambda: I("s_add_u32", "m0", sMX, (j % 3) * XSLOT)))
    for i in range(4):
        g += singles(cap(lambda: I("buffer_load_dwordx4", vOX[i], SX, sOX, mods="offen offset:%d lds" % (1024 * i))))
    return tagged(g, "S%d" % j)
def w_dma(j):
    g = tagged(dma5(vOW, SW, sOW, sMW, (j % 3) * WSLOT), "S%d" % j)
    if j < 8 and OPT["perm"]:
        g += perm_next()
    elif j < 8:
        g += singles(cap(lambda: (I("s_add_u32", sOX, sOX, 128), I("s_add_u32", sOW, sOW, WSTEP))))
        if wraps_after(j):
            def wr():
                I("s_cmp_eq_u32", sROT, 8 - j)
                I("s_cselect_b32", sT0, 1152, 0); I("s_cselect_b32", sT1, 9 * WSTEP, 0)
            g.append(cap(wr))
            g += singles(cap(lambda: (I("s_sub_u32", sOX, sOX, sT0), I("s_sub_u32", sOW, sOW, sT1))))
    return g
def stage_dma(j): return x_dma(j) + w_dma(j)

def advance(reg, step, end, span):
    def a1():
        I("s_add_u32", reg, reg, step)
        I("s_cmp_ge_u32", reg, end)
        I("s_cselect_b32", sT0, span, 0)
    return [cap(a1)] + singles(cap(lambda: I("s_sub_u32", reg, reg, sT0)))
def wq_pair_dma(j):
    pos = (WQ0 + j * 9216) if j < 6 else (WQ6 + (j - 6) * 9216)
    if j == 8:
        return singles(cap(lambda: I("s_add_u32", sOQ, sOQ, sQ8))) + tagged(dma5(vOQ, SW, sOQ, sM8, pos), "WQ8")
    g = tagged(dma5(vOQ, SW, sOQ, sMQ, pos), "WQ%d" % j)
    g += permq_next() if OPT["perm"] else advance(sOQ, 2 * WSTEP, sQE, 9 * WSTEP)
    if j == 0 and OPT["perm"]: g = permq_next() + g
    return g
def wo_pair_dma(u):
    pos = (WO0 + u * 9216) if u < 6 else (WO6 + (u - 6) * 9216)
    g = tagged(dma5(vOO, SWO, sOO, sMQ, pos), "WO%d" % u)
    if u < 6: g += advance(sOO, 2 * 82944, sOE, 8 * 82944)
    return g
def only_waves01(groups, tag):
    def f():
        I("s_cmp_ge_u32", sWV, 2)
        I("s_cbranch_scc1", "L_skip_" + tag)
        for g in groups: P.put(mark(g, cond=True))
        P.label("L_skip_" + tag)
    return [cap(f)]

def tr(dst, addr, off):
    assert 0 <= off < 65536, off
    I("ds_read_b64_tr_b16", dst, addr, mods="offset:%d" % off)
def mfma(d, x, y, c): I("v_mfma_f32_16x16x32_bf16", d, x, y, c)
def tile_read(dstreg, T_, base_off):
    if T_ < 3: pat, o = 0, 8 * T_
    elif T_ == 3: pat, o = 1, 0
    elif T_ == 4: pat, o = 2, 0
    elif T_ < 9: pat, o = 3, 144 + 8 * [0, 5, 9, 14][T_ - 5]
    else: pat, o = 4, 144
    for e in range(2):
        tr(dstreg[2 * e:2 * e + 2], vTR[pat][e], base_off + o)

class Pipe:
    def __init__(self, dist=4, grp=2):
        self.units = []; self.dist = dist; self.grp = grp; self.hooks = {}
    def add(self, rd, work, pre=None, rt=None):
        k = len(self.units)
        self.units.append((cap(rd), cap(work), cap(pre) if pre else None, k - self.dist if rt is None else rt))
    def emit(self, fill=(), bulk=()):
        fill = list(fill); bulk = list(bulk)
        U = self.units; n = len(U)
        seq = []
        state = dict(done=0)
        def put(items, owner=-1):
            for x in items:
                if isinstance(x, Ins) and x.kind == "ds": seq.append(owner)
                if isinstance(x, Ins) and x.op == "s_waitcnt" and ("lgkmcnt(0)" in x.args[0] or getattr(x, "lgkm", None) == 0): state["done"] = len(seq)
            P.put(items)
        def need_wait(k):
            last = max([i for i, o in enumerate(seq) if o == k] + [-1])
            return last >= state["done"]
        byt = {}
        for k, u in enumerate(U): byt.setdefault(max(u[3], -1), []).append(k)
        for k in byt.get(-1, []): put(U[k][0], k)
        while bulk and bulk[0][0] < 0: put(bulk.pop(0)[1])
        def take(k):
            if fill and fill[0][0] <= k: put(fill.pop(0)[1]); return True
            if bulk and bulk[0][0] <= k + 6: put(bulk.pop(0)[1]); return True
            return False
        for k in range(n):
            if k in self.hooks: put(self.hooks[k])
            if U[k][2]: put(U[k][2])
            if need_wait(k):
                want = [q for q in range(k, min(n, k + self.grp)) if U[q][3] < k - 1 or q == k]
                last = max(i for i, o in enumerate(seq) if o in want)
                later = len(seq) - 1 - last
                assert later <= 15, later
                wait(lgkm=later); state["done"] = last + 1
            nxt = [(x, q) for q in byt.get(k, []) for x in U[q][0]]
            half = (len(nxt) + 1) // 2
            w = U[k][1]
            P.put([w[0]])
            for x, q in nxt[:half]: put([x], q)
            for _ in range(max(0, 2 - half)): take(k)
            P.put(w[1:])
            for x, q in nxt[half:]: put([x], q)
            rest = len(nxt) - half + (1 if (k + 1 < n and need_wait(k + 1)) else 0) + (2 if k + 1 in self.hooks else 0)
            for _ in range(max(0, 2 - rest)): take(k)
            while fill and fill[0][0] <= k - 3: put(fill.pop(0)[1])
            while bulk and bulk[0][0] <= k: put(bulk.pop(0)[1])
        for _, g in fill + bulk: put(g)

def vm_only(groups):
    out = []
    for g in groups:
        if any(x.kind == "vmem" for x in g) or not out: out.append(list(g))
        else: out[-1] += g
    return out
def weave(a_, b_):
    out = []; na, nb = len(a_), len(b_); i = j = 0
    while i < na or j < nb:
        if j >= nb or (i < na and i * nb <= j * na): out.append(a_[i]); i += 1
        else: out.append(b_[j]); j += 1
    return out
def at(unit, groups): return [(unit + i * 2 // 3, g) for i, g in enumerate(groups)]
def spread(groups, first, last):
    n = len(groups)
    return [(first + (last - first) * i // max(1, n), g) for i, g in enumerate(groups)]
def merge(main, extra, start=0, step=2):
    out = []; extra = list(extra)
    for i, x in enumerate(main):
        out.append(x)
        if extra and i >= start and (i - start) % step == step - 1: out += extra.pop(0)
    for g in extra: out += g
    return out

def sm_head(src18, tmp):
    mx, mn = tmp[18], tmp[19]
    I("v_max3_f32", mx, src18[0], src18[1], src18[2]); I("v_min3_f32", mn, src18[0], src18[1], src18[2])
    for i in range(3, 17, 2):
        I("v_max3_f32", mx, mx, src18[i], src18[i + 1]); I("v_min3_f32", mn, mn, src18[i], src18[i + 1])
    I("v_max_f32", mx, mx, src18[17]); I("v_min_f32", mn, mn, src18[17])
    I("v_mul_f32", tmp[20], sC[0], mx); I("v_mul_f32", tmp[21], sC[0], mn)
def sm_tail(src18, out18, tmp):
    ab = tmp[20:22]
    for i in range(0, 18, 2):
        I("v_pk_fma_f32", tmp[i:i + 2], src18[i:i + 2], sC, ab, mods="op_sel:[0,0,1] op_sel_hi:[1,1,1] neg_lo:[1,0,0] neg_hi:[1,0,0]")
        I("v_pk_fma_f32", src18[i:i + 2], src18[i:i + 2], sC, ab, mods="op_sel:[0,0,0] op_sel_hi:[1,1,0] neg_lo:[0,0,1] neg_hi:[0,0,1]")
    sp, sn = tmp[18:20], tmp[20:22]
    for i in range(0, 18, 2):
        for h in range(2):
            I("v_exp_f32", src18[i + h], src18[i + h]); I("v_exp_f32", tmp[i + h], tmp[i + h])
        if i == 4:
            I("v_pk_add_f32", sp, src18[0:2], src18[2:4]); I("v_pk_add_f32", sn, tmp[0:2], tmp[2:4])
        elif i > 4:
            I("v_pk_add_f32", sp, sp, src18[i - 2:i]); I("v_pk_add_f32", sn, sn, tmp[i - 2:i])
    I("v_pk_add_f32", sp, sp, src18[16:18]); I("v_pk_add_f32", sn, sn, tmp[16:18])
    rr = tmp[22:24]
    I("v_add_f32", rr[0], sp[0], sp[1]); I("v_add_f32", rr[1], sn[0], sn[1])
    I("v_rcp_f32", rr[0], rr[0]); I("v_rcp_f32", rr[1], rr[1])
    def el(d): return (src18[2 * d:2 * d + 2], "op_sel:[0,0] op_sel_hi:[1,0]") if d < 9 else (tmp[2 * (d - 9):2 * (d - 9) + 2], "op_sel:[0,1] op_sel_hi:[1,1]")
    for d in range(0, 18, 2):
        for h in range(2): I("v_pk_mul_f32", el(d + h)[0], el(d + h)[0], rr, mods=el(d + h)[1])
        for h in range(2): I("v_cvt_pk_bf16_f32", out18[d + h], el(d + h)[0][0], el(d + h)[0][1])

ACC = [v(64 + 20 * p, 20) for p in range(2)]
def cv(p):
    I("v_cndmask_b32", ACC[p][16], ACC[p][16], ACC[p][18], sODD)
    I("v_cndmask_b32", ACC[p][17], ACC[p][17], ACC[p][19], sODD)
    for i in range(9): I("v_cvt_pk_bf16_f32", KB[p][i], ACC[p][2 * i], ACC[p][2 * i + 1])

def chase(body, groups):
    out = []; groups = list(groups)
    lastdef = {}
    for i, x in enumerate(body):
        if isinstance(x, Ins):
            for r in x.defs: lastdef[r] = i
    pos = {}
    for g in groups:
        p_ = max([lastdef.get(r, -1) for x in g for r in x.uses] + [-1])
        pos.setdefault(p_, []).append(g)
    for g in pos.get(-1, []): out += g
    for i, x in enumerate(body):
        out.append(x)
        for g in pos.get(i, []): out += g
    return out

def evenly(lst, groups, lo=0, hi=100):
    out = []; groups = list(groups); n = len(lst); m = len(groups)
    pos = [n * lo // 100 + (n * (hi - lo) // 100) * i // max(1, m) for i in range(m)]
    for i, x in enumerate(lst):
        out.append(x)
        while groups and pos[0] <= i:
            out += groups.pop(0); pos.pop(0)
    for g in groups: out += g
    return out

def feature_map(path, tag, cv_done, shadow, mid0, mid1, after_p):
    if path == "B":
        def mm(p):
            for j in range(3):
                for t in range(5):
                    mfma(ACK[p][t], PHIF(t, j), KB[p][4 * j:4 * j + 4], 0 if j == 0 else ACK[p][t])
        body = [] if cv_done else cap(lambda: cv(0))
        sh = ([] if cv_done else singles(cap(lambda: cv(1)))) + list(shadow)
        head0 = singles(cap(lambda: sm_head(ACC[0][0:18], TMP)))
        ms = cap(lambda: (mm(0), mm(1)))
        for i, x in enumerate(ms):
            body.append(x)
            if i == 19: sh = head0 + sh
            k = 0
            while sh and k < 2:
                g = sh.pop(0); body += g; k += len(g)
        for g in sh: body += g
        body += cap(lambda: fst(tag + "mm"))
        body += evenly(cap(lambda: sm_tail(ACC[0][0:18], PH[0][0:18], TMP)), *mid0)
        body += cap(lambda: fst(tag + "t0"))
        t1 = cap(lambda: (sm_head(ACC[1][0:18], TMP), sm_tail(ACC[1][0:18], PH[1][0:18], TMP)))
        t1 = evenly(t1, after_p(0), 2, 66)
        t1 = evenly(t1, *mid1)
        body += chase(t1, after_p(1))
    else:
        def pa(p):
            x = ACC[p]
            if not cv_done:
                I("v_cndmask_b32", x[16], x[16], x[18], sODD); I("v_cndmask_b32", x[17], x[17], x[19], sODD)
            for i in range(0, 18, 2): I("v_pk_mul_f32", TMP[i:i + 2], x[i:i + 2], sC)
            for d in range(9):
                for i in (2 * d, 2 * d + 1):
                    I("v_exp_f32", TMP[i], TMP[i], mods="clamp")
                    I("v_max_f32", x[i], 0, x[i])
                I("v_pk_add_f32", x[2 * d:2 * d + 2], x[2 * d:2 * d + 2], sEPS)
                I("v_pk_add_f32", x[2 * d:2 * d + 2], x[2 * d:2 * d + 2], TMP[2 * d:2 * d + 2])
                I("v_cvt_pk_bf16_f32", KB[p][d], x[2 * d], x[2 * d + 1])
        body = []
        for g in shadow: body += g
        body += cap(lambda: fst(tag + "mm"))
        body += chase(evenly(cap(lambda: pa(0)), *mid0), after_p(0))
        body += cap(lambda: fst(tag + "t0"))
        t1 = cap(lambda: pa(1))
        t1 = evenly(t1, *mid1)
        body += chase(t1, after_p(1))
    P.put(body)
    fst(tag + "t1")

def umax(dst, regs):
    regs = list(regs)
    I("v_max3_u32", dst, regs[0], regs[1], regs[2]); regs = regs[3:]
    while len(regs) >= 2:
        I("v_max3_u32", dst, dst, regs[0], regs[1]); regs = regs[2:]
    if regs: I("v_max_u32", dst, dst, regs[0])

SLOW = []
def check_or_retry(tag, fold, cmp_bad, loads):
    g = singles(cap(fold))
    def test():
        cmp_bad()
        I("s_cbranch_vccnz", "L_slow_" + tag)
        P.label("L_back_" + tag)
    g.append(cap(test))
    def slow():
        P.label("L_slow_" + tag)
        I("s_mov_b32", sCNT, 0)
        P.label("L_sp_" + tag)
        if OPT["stamps"] and not OPT["lite"]: I("s_add_u32", s(3), s(3), {"r": 1, "a": 0x100, "o": 0x10000}[tag[0]] if not tag.startswith("rf") else 0x1000000)
        loads()
        wait(vm=0)
        fold()
        cmp_bad()
        I("s_add_u32", sCNT, sCNT, 1)
        I("s_cmp_gt_u32", sCNT, SPIN)
        I("s_cbranch_scc1", "L_back_" + tag)
        I("s_cbranch_vccnz", "L_sp_" + tag)
        I("s_branch", "L_back_" + tag)
    SLOW.append(cap(slow))
    return g
def check_sent(tag, chk, regs, loads):
    return check_or_retry(tag, lambda: umax(chk, regs), lambda: I("v_cmp_eq_u32", "vcc", -1, chk), loads)
def check_tag(tag, chk, regs, loads):
    def fold():
        for r in regs: I("v_xor_b32", r, sTAG, r)
        I("v_or3_b32", chk, regs[0], regs[1], regs[2])
        for i in range(3, len(regs) - 1, 2): I("v_or3_b32", chk, chk, regs[i], regs[i + 1])
        I("v_or_b32", chk, chk, regs[-1])
        I("v_and_b32", chk, 0xff, chk)
    return check_or_retry(tag, fold, lambda: I("v_cmp_ne_u32", "vcc", 0, chk), loads)

def build():
    I("s_cmp_ge_u32", s(2), 256)
    I("s_cbranch_scc1", "L_end")
    if OPT["swap07"]:
        I("s_add_u32", sT0, s(2), 1); I("s_and_b32", sT0, sT0, 6)
        I("s_cselect_b32", sT0, 0, 7)
        I("s_xor_b32", s(2), s(2), sT0)
    I("s_bfe_u32", sA, s(2), 0x10002)
    I("s_cmp_lg_u32", sA, 0)
    I("s_cselect_b32", sT0, 0, 24)
    I("s_cselect_b32", sT1, 8, 32)
    I("s_cselect_b32", sT2, 16, 48)
    I("s_load_dwordx2", SX[0:2], s(0, 2), sT0)
    I("s_load_dwordx2", SW[0:2], s(0, 2), sT1)
    I("s_load_dwordx2", SWO[0:2], s(0, 2), sT2)
    I("s_load_dwordx2", SPHI[0:2], s(0, 2), 40)
    I("s_load_dwordx2", SOUT[0:2], s(0, 2), 56)
    I("s_load_dwordx2", SWS[0:2], s(0, 2), 72)
    I("s_getpc_b64", sPC)
    I("s_and_b32", sT0, s(2), 0xf8)
    I("v_lshrrev_b32", T[0], 5, v(0))
    I("v_add_lshl_u32", T[1], T[0], sT0, 7)
    I("s_cmp_ge_u32", sT0, "HEAD_LINES")
    I("s_cselect_b32", sT1, sA, 0)
    I("s_mul_i32", sT1, sT1, "A_SHIFT")
    I("v_add_u32", T[1], sT1, T[1])
    I("v_min_u32", T[1], "CODE_SPAN", T[1])
    I("global_load_dword", v(255), T[1], sPC)
    if OPT["stamps"]:
        I("s_memtime", s(98, 2)); I("s_memrealtime", s(96, 2))
        if OPT["fine"]: I("s_mov_b32", s(3), 0)
    I("v_readfirstlane_b32", sWV, T[0])
    I("v_and_b32", vL, 63, v(0))
    I("s_and_b32", sT0, s(2), 3)
    I("s_lshr_b32", sT1, s(2), 6)
    I("s_lshr_b32", sWV, sWV, 1)
    I("s_lshl2_add_u32", sRT, sT0, sT1)
    I("s_bfe_u32", sG, s(2), 0x30003)
    if OPT["perm"]:
        K, tab = PERMS[OPT["perm"]]
        if OPT["xsh"]: I("s_mul_i32", sXSH, sT0, OPT["xsh"])
        if K == 8:
            I("s_lshl1_add_u32", sT0, sT1, sG); I("s_and_b32", sT0, sT0, 7)
        elif K == 4:
            I("s_add_u32", sT0, sG, sT1); I("s_and_b32", sT0, sT0, 3)
        else:
            I("s_add_u32", sT0, sG, sT1); I("s_mul_i32", sT1, sT0, 86); I("s_lshr_b32", sT1, sT1, 8)
            I("s_mul_i32", sT1, sT1, 3); I("s_sub_u32", sT0, sT0, sT1)
        lo = [sum(p[i] << (4 * i) for i in range(8)) for p in tab]
        I("s_mov_b32", sPM[0], lo[0])
        for k_ in range(1, K):
            I("s_cmp_eq_u32", sT0, k_); I("s_cselect_b32", sPM[0], lo[k_], sPM[0])
        I("s_lshl_b32", sT0, sT0, 2)
        I("s_lshr_b32", sPM[1], sum(p[8] << (4 * k_) for k_, p in enumerate(tab)), sT0)
        I("s_and_b32", sPM[1], sPM[1], 15)
        I("s_lshl_b32", sT0, sWV, 1); I("s_and_b32", sT0, sT0, 4)
        I("s_lshr_b64", sPQ, sPM, sT0)
        I("s_mov_b32", sROT, 0)
    elif OPT["nphase"] == 7:
        I("s_add_u32", sT1, sG, sT1)
        I("s_and_b32", sT1, sT1, 1)
        I("s_lshl2_add_u32", sROT, sT1, sT0)
        I("s_add_u32", sROT, sROT, sT1)
    elif OPT["nphase"] in (3, 6):
        if OPT["nphase"] == 6:
            I("s_cmp_eq_u32", sT0, 3); I("s_cselect_b32", sT2, 1, sT0)
        I("s_add_u32", sT0, sG, sT1)
        I("s_mul_i32", sT1, sT0, 86)
        I("s_lshr_b32", sT1, sT1, 8)
        I("s_mul_i32", sT1, sT1, 3)
        I("s_sub_u32", sT0, sT0, sT1)
        I("s_mul_i32", sROT, sT0, 3)
        if OPT["nphase"] == 6: I("s_add_u32", sROT, sROT, sT2)
    elif OPT["nphase"] == 4:
        I("s_add_u32", sT0, sG, sT1)
        I("s_and_b32", sT0, sT0, 3)
        I("s_lshl_b32", sROT, sT0, 1)
    elif OPT["nphase"] == 5:
        I("s_add_u32", sT0, sG, sT1)
        I("s_and_b32", sT0, sT0, 3)
        I("s_mul_i32", sT0, sT0, 5)
        I("s_lshr_b32", sROT, sT0, 1)
    elif OPT["nphase"] == 8:
        I("s_lshl1_add_u32", sT0, sT1, sG)
        I("s_and_b32", sROT, sT0, 7)
    elif OPT["nphase"] == 2:
        I("s_add_u32", sT0, sG, sT1)
        I("s_and_b32", sT0, sT0, 1)
        I("s_lshl_b32", sROT, sT0, 2)
    else:
        I("s_mov_b32", sROT, 0)
    I("s_lshl2_add_u32", sSL, sRT, sWV)
    I("s_mul_i32", sOX, sSL, 32 * 1152)
    I("s_lshl_b32", sT0, sROT, 7)
    I("s_add_u32", sOX, sOX, sT0)
    I("s_lshl_b32", sMX, sWV, 12)
    I("s_mul_i32", sMQ, sWV, 4608)
    I("s_add_u32", sMW, sMQ, WSL)
    I("s_movk_i32", s1152, 1152)
    I("v_lshrrev_b32", T[0], 3, vL)
    I("v_mul_u32_u24", T[0], s1152, T[0])
    I("v_lshrrev_b32", vGL, 4, vL)
    I("v_and_b32", T[1], 7, vL)
    I("v_xor_b32", T[1], T[1], vGL)
    I("v_lshl_add_u32", vOX[0], T[1], 4, T[0])
    I("v_xor_b32", vOX[1], 64, vOX[0])
    I("v_add_u32", vOX[2], 16 * 1152 - 2048, vOX[0])
    I("v_add_u32", vOX[3], 24 * 1152 - 3072, vOX[1])
    I("v_add_u32", vOX[1], 8 * 1152 - 1024, vOX[1])
    I("s_mov_b32", SX[2], 2048 * 1152); I("s_mov_b32", SX[3], 0x20000)
    I("s_mov_b32", SW[2], 576 * 3456); I("s_mov_b32", SW[3], 0x20000)
    I("s_mul_i32", sL3, sG, 144)
    I("s_lshl2_add_u32", sT0, sROT, sWV)
    I("s_mul_i32", sOW, sT0, 16 * 3456)
    I("s_add_u32", sOW, sOW, sL3)
    I("s_add_u32", sOW, sOW, s1152)
    if OPT["perm"]:
        I("s_mov_b32", sXB0, sOX); I("s_mov_b32", sWB0, sOW)
        emit_groups(perm_next())
    I("s_movk_i32", sL0, 3456); I("s_movk_i32", sL1, -144)
    I("v_lshlrev_b32", vL16, 4, vL)
    I("v_mul_u32_u24", vM, 7282, vL)
    DR = [v(64 + i) for i in range(5)]; DP = [v(70 + i) for i in range(5)]; DC = [v(76 + i) for i in range(5)]
    for i in range(5):
        t = vM
        if i:
            I("v_add_u32", T[0], Q0[i] * 7282, vM); t = T[0]
        I("v_lshrrev_b32", T[1], 16, t)
        I("v_lshrrev_b32", DR[i], 17, t)
        I("v_and_b32", DP[i], 1, T[1])
        I("v_mad_i32_i24", DC[i], T[1], sL1, vL16)
        if i == 2:
            I("v_lshrrev_b32", T[2], 1, DR[i]); I("v_and_b32", T[2], 4, T[2]); I("v_xor_b32", DR[i], DR[i], T[2])
        elif i > 2:
            I("v_xor_b32", DR[i], 4, DR[i])
        I("v_mad_u32_u24", T[2], DR[i], sL0, DC[i])
        I("v_mad_u32_u24", vOW[i], DP[i], s1152, T[2])
    for r_, z_ in ((SWO, 576 * 1152), (SPHI, 32 * 648), (SOUT, 2048 * 2304), (SWS, WS_BYTES)):
        I("s_mov_b32", r_[2], z_); I("s_mov_b32", r_[3], 0x20000)
    I("v_lshlrev_b32", vL4, 2, vL)
    I("s_lshl2_add_u32", sT2, sG, sWV); I("s_mul_i32", sT2, sT2, 648)
    I("s_lshl3_add_u32", sL2, sA, sG)
    I("s_lshl_b32", sAG, sL2, 14); I("s_add_u32", sAG, sAG, WS_F)
    I("s_sub_u32", sT0, 2, sA)
    I("s_min_u32", sT1, sWV, sT0); I("s_mul_i32", sT3, sRT, sT0); I("s_add_u32", sT3, sT3, sRT); I("s_add_u32", sRSB, sT1, sT3)
    I("s_lshl_b32", sT1, sRSB, 8); I("s_add_u32", sFSL, sAG, sT1)
    I("s_cmp_gt_u32", sWV, sT0)
    I("s_cselect_b32", sFSL, OOB, sFSL)
    I("s_lshl3_add_u32", sT0, sA, 0); I("s_and_b32", sT1, sRSB, 7); I("s_or_b32", sT0, sT0, sT1)
    I("s_cmp_eq_u32", sT0, 15)
    I("s_cselect_b32", sFSL, OOB, sFSL)
    I("s_subb_u32", sRSB, sRSB, 0)
    I("v_and_b32", vN, 15, vL)
    I("v_and_b32", T[7], 1, vGL)
    I("v_lshlrev_b32", T[0], 2, vGL); I("v_lshl_add_u32", T[0], vN, 4, T[0])
    I("v_lshl_or_b32", vFS, T[7], 30, T[0])
    I("s_mul_i32", sT0, sSL, 32 * 2304)
    I("s_add_u32", sT0, sT0, sL3)
    I("s_xor_b32", sT1, sA, 1); I("s_mul_i32", sT1, sT1, 1152); I("s_add_u32", sOUTB, sT0, sT1)
    I("s_lshl_b32", sT0, sA, 6); I("s_add_u32", sT0, sT0, sSL)
    I("s_lshl_b32", sRF, sT0, 7); I("s_add_u32", sRF, sRF, WS_R)
    I("v_lshlrev_b32", T[1], 20, vL)
    I("v_mov_b32", T[2], 0)
    I("s_lshl_b32", sT0, sA, 7); I("s_add_u32", sT0, sT0, WS_E)
    wait(lgkm=0)
    fst("karg")
    emit_groups(x_dma(0))
    I("s_load_dword", sE, SWS[0:2], sT0)
    for i in range(3):
        I("buffer_load_dword", PW[i], vL4, SPHI, sT2, mods="offen offset:%d" % (256 * i))
    I("buffer_load_dword", v(255), T[2], SWS, sRF, mods="offen sc1")
    if OPT["touch"]:
        I("buffer_load_dword", v(255), T[1], SWS, 0, mods="offen")
        I("buffer_load_dword", v(255), T[2], SOUT, sOUTB, mods="offen")
        I("buffer_load_dword", v(255), T[2], SWO, sL3, mods="offen")
    emit_groups(w_dma(0))
    def xpf():
        I("s_lshl3_add_u32", sT0, sRT, sG); I("s_lshl2_add_u32", sT0, sT0, sWV); I("s_mul_i32", sT0, sT0, 4 * 1152)
        I("v_min_u32", T[1], 35, vL); I("v_lshlrev_b32", T[1], 7, T[1])
        I("buffer_load_dword", v(255), T[1], SX, sT0, mods="offen")
    if OPT["pfx"] == 1: xpf()
    stamp("S0iss")
    I("s_mov_b32", sG144, sL3)
    I("v_lshrrev_b32", T[0], 1, vN)
    I("v_xor_b32", T[0], T[0], vGL)
    I("v_lshl_add_u32", T[1], vN, 7, sMX)
    I("v_lshl_add_u32", vXR[0], T[0], 4, T[1])
    I("v_xor_b32", vXR[1], 64, vXR[0])
    I("v_bfe_u32", vR, vL, 2, 2)
    I("v_and_b32", vC, 3, vL)
    I("v_lshl_add_u32", T[1], vGL, 3, vR)
    I("v_lshl_add_u32", T[2], T[7], 2, T[1])
    I("v_xor_b32", T[3], 4, T[2])
    I("s_movk_i32", sT0, 288); I("v_mov_b32", T[4], WSL)
    I("v_mad_u32_u24", T[2], T[2], sT0, T[4]); I("v_mad_u32_u24", T[3], T[3], sT0, T[4])
    I("v_mul_u32_u24", T[0], 40, vC)
    I("v_lshrrev_b32", T[1], 1, vC)
    I("v_add_u32", vTR[0][0], T[2], T[0]); I("v_add_u32", vTR[0][1], T[3], T[0])
    I("v_lshlrev_b32", T[6], 5, T[1]); I("v_sub_u32", T[6], T[0], T[6])
    I("v_add3_u32", vTR[1][0], T[2], T[6], 24); I("v_add3_u32", vTR[1][1], T[3], T[6], 24)
    I("v_mul_u32_u24", T[6], 72, T[1])
    I("v_add3_u32", vTR[2][0], T[2], T[6], 32); I("v_add3_u32", vTR[2][1], T[3], T[6], 32)
    I("v_lshl_add_u32", vTR[3][0], vC, 3, T[2]); I("v_lshl_add_u32", vTR[3][1], vC, 3, T[3])
    I("v_and_b32", T[6], 1, vC); I("v_mul_u32_u24", T[6], 72, T[6])
    I("v_add3_u32", vTR[4][0], T[2], T[6], 32); I("v_add3_u32", vTR[4][1], T[3], T[6], 32)
    I("s_mov_b32", sT0, 32 * 3456 - 1152); I("s_movk_i32", sT1, 72)
    for i in range(5):
        I("v_mad_u32_u24", vOQ[i], DP[i], sT0, vOW[i])
        I("v_lshl_add_u32", T[0], DP[i], 3, DR[i])
        I("v_and_b32", T[3], 1, DR[i])
        if i == 2:
            I("v_lshrrev_b32", T[1], 3, DR[i])
            I("v_mad_u32_u24", T[0], T[1], 12, T[0])
            I("v_lshl_add_u32", T[3], T[1], 1, T[3])
        elif i > 2:
            I("v_add_u32", T[0], 12, T[0])
        I("v_mad_u32_u24", vOO[i], T[0], s1152, DC[i])
        I("v_bfe_u32", T[2], DR[i], 1, 2)
        I("v_lshl_add_u32", T[2], DP[i], 2, T[2])
        I("v_add_u32", T[2], sG, T[2]); I("v_and_b32", T[2], 7, T[2])
        I("v_add_u32", T[3], 18 if i > 2 else 16, T[3])
        I("v_mad_u32_u24", T[2], T[2], sT1, T[3])
        I("v_mad_u32_u24", vO8[i], T[2], s1152, DC[i])
    for i in range(4): I("v_mov_b32", v(84 + i), 0)
    I("s_mul_i32", sT1, sWV, 384); I("s_add_u32", sT1, sT1, ZERO)
    I("v_min_u32", T[0], 23 * 16, vL16); I("v_add_u32", T[0], sT1, T[0])
    I("ds_write_b128", T[0], v(84, 4))
    I("s_mul_i32", sT0, sWV, 960); I("s_add_u32", sT0, sT0, PHI)
    for i in range(3):
        t = vM
        if i:
            I("v_add_u32", T[0], 64 * i * 7282, vM); t = T[0]
        I("v_lshrrev_b32", T[0], 16, t); I("v_add_u32", T[0], T[0], vL)
        I("v_lshl_add_u32", PA[i], T[0], 2, sT0)
    I("v_cmp_eq_u32", "vcc", vC, vGL)
    I("v_mul_u32_u24", T[0], 40, vR)
    I("v_mul_u32_u24", T[1], 1040, vGL)
    I("v_mov_b32", T[3], ZERO)
    I("v_add3_u32", T[1], T[1], T[0], T[3])
    I("v_add_u32", T[2], (PHI - ZERO) & 0xffffffff, T[1])
    I("v_cndmask_b32", vPH[0], T[3], T[2], "vcc")
    I("v_lshrrev_b32", T[4], 1, vGL); I("v_mul_u32_u24", T[4], 640, T[4])
    I("v_sub_u32", T[2], T[2], T[4]); I("v_add_u32", T[2], 480, T[2])
    I("v_cndmask_b32", vPH[1], T[3], T[2], "vcc")
    I("v_mul_u32_u24", T[1], 1920, vGL); I("v_add_u32", T[1], T[1], T[0]); I("v_add_u32", T[2], KVI, T[1])
    I("v_cndmask_b32", vPSA, T[3], T[2], "vcc")
    I("v_mul_u32_u24", T[1], 960, vGL); I("v_mul_u32_u24", T[4], 640, T[7])
    I("v_sub_u32", T[1], T[1], T[4]); I("v_add_u32", T[1], T[1], T[0]); I("v_add_u32", T[1], PHI + 640, T[1])
    I("v_cndmask_b32", T[1], T[3], T[1], "vcc")
    I("v_cmp_gt_u32", "vcc", 2, vR)
    I("s_mul_i32", sPME, sL2, PGRP)
    I("s_lshl_b32", sRSB, sRSB, 12)
    I("v_cndmask_b32", vPH[2], T[3], T[1], "vcc")
    I("s_add_u32", sRSB, sRSB, sPME)
    stamp("P1")
    if OPT["pfx"] == 2: xpf()
    emit_groups(stage_dma(1))
    stamp("S1iss")
    def touch_round(r):
        I("s_lshl2_add_u32", sCNT, sA, sWV)
        I("s_mov_b64", "exec", 0)
        for k_ in range(7):
            I("s_cmp_eq_u32", sCNT, k_)
            I("s_cbranch_scc1", "L_th%s%d%d" % ("BA"[k_ // 4], r, k_ % 4))
        I("s_branch", "L_thA%d3" % r)
        P.label("L_tret%d" % r)
        I("s_mov_b64", "exec", -1)
    if OPT["itouch"]:
        P.touch = {"L_tailA"}; P.rounds = 2

    def late():
        I("s_and_b32", sL0, sWV, 1); I("s_lshr_b32", sL1, sWV, 1)
        I("s_mul_i32", sL2, sL0, 16 * 3456); I("s_add_u32", sL2, sL2, sG144)
        I("s_add_u32", sQE, sL2, 0 if OPT["perm"] else 9 * WSTEP)
        I("s_add_u32", sL3, sL1, sROT)
        if OPT["nphase"] in (6, 7):
            I("s_add_u32", sOQ, sL3, 7); I("s_lshr_b32", sOQ, sOQ, 4); I("s_mul_i32", sOQ, sOQ, 9); I("s_sub_u32", sL3, sL3, sOQ)
        I("s_mul_i32", sL3, sL3, WSTEP); I("s_add_u32", sOQ, sL3, sL2)
        I("s_mul_i32", sO8, sL0, 36 * 1152); I("s_add_u32", sO8, sO8, sG144)
        I("s_add_u32", sOE, sO8, 8 * 82944)
        I("s_add_u32", sL3, sL1, sG); I("s_and_b32", sL3, sL3, 7); I("s_mul_i32", sL3, sL3, 82944); I("s_add_u32", sOO, sL3, sO8)
        I("s_mov_b32", sC[0], f2u(LOG2E)); I("s_mov_b32", sC[1], f2u(LOG2E))
        I("s_mov_b32", sEPS[0], f2u(1e-6)); I("s_mov_b32", sEPS[1], f2u(1e-6))
        I("s_mov_b32", sODD[0], 0xffff0000); I("s_mov_b32", sODD[1], 0xffff0000)
        I("s_add_u32", sE, sE, 1); I("s_and_b32", sTAG, sE, 0xff); I("s_mov_b32", sMSK, 0xffffff00)
        I("s_getreg_b32", sL0, "hwreg(HW_REG_XCC_ID, 0, 4)")
        I("s_lshl4_add_u32", sRV, sE, sL0)
        for i in range(4): I("v_mov_b32", M1[i], -1)
        I("s_sub_u32", sL2, 3, sA); I("s_mul_i32", sL2, sL2, sWV)
        I("s_lshl_b32", sL1, sL2, 14); I("s_add_u32", sPME, sPME, sL1)
        I("s_lshl_b32", sL1, sRT, 8); I("s_add_u32", sPME, sPME, sL1)
        I("s_lshl_b32", sL1, sL2, 10); I("s_add_u32", sAG, sAG, sL1)
        I("s_lshr_b32", sL1, sWV, 1)
        I("s_mul_i32", sQ8, sL1, 0x40000000); I("s_mul_i32", sM8, sL1, 100000); I("s_add_u32", sM8, sM8, sMQ)
        I("s_lshl_b32", sL0, sA, 6); I("s_add_u32", sL0, sL0, sSL)
        I("s_mul_i32", sOB, sL0, 8 * 4608); I("s_add_u32", sOB, sOB, WS_O)
        I("s_lshl_b32", sL0, sG144, 5); I("s_add_u32", sOU[0], sL0, sOB)
        I("v_add_u32", vL4, 4096, vL4)
        I("v_lshl_add_u32", T[0], vGL, 2, vR)
        I("v_mul_u32_u24", T[0], 72, T[0])
        I("s_lshl_b32", sL0, sMQ, 1)
        I("v_add_u32", vKB2, sL0, T[0])
        I("v_lshl_add_u32", vKB0, vC, 3, vKB2)
        for p in range(2):
            for i in (9, 10, 11): I("v_mov_b32", KB[p][i], 0)
            for i in (18, 19): I("v_mov_b32", PH[p][i], 0)
        I("v_mul_u32_u24", T[0], 9216, vGL)
        I("v_mul_u32_u24", T[1], 72, vN)
        I("s_lshr_b32", sL0, sMQ, 1)
        I("v_add3_u32", vIW, T[0], T[1], sL0)
        I("s_mul_i32", sL0, sWV, 5120); I("s_add_u32", sL0, sL0, VF)
        I("v_add_u32", vVW, sL0, vL16)
        I("s_lshl_b32", sL0, sWV, 10); I("s_add_u32", sL0, sL0, VF)
        I("v_add_u32", vAM, sL0, vL16)
        I("s_lshl_b32", sL0, sWV, 1)
        I("v_cmp_gt_u32", "vcc", 2, vN)
        I("v_add_u32", T[3], sL0, vN)
        I("v_lshlrev_b32", T[0], 4, vN); I("v_lshl_add_u32", vP1, vGL, 12, T[0])
        I("v_cndmask_b32", T[3], 8, T[3], "vcc")
        I("v_lshl_add_u32", T[3], vGL, 4, T[3])
        I("v_lshlrev_b32", T[3], 4, T[3]); I("v_add_u32", vAL, VF + 4096, T[3])
        I("v_cmp_gt_u32", "vcc", 4, vN)
        I("v_mov_b32", T[4], OOB)
        I("v_lshl_add_u32", T[0], vGL, 2, vN); I("v_lshlrev_b32", T[0], 4, T[0])
        I("v_cndmask_b32", vP2, T[4], T[0], "vcc")
        I("v_cmp_gt_u32", "vcc", 16, vL)
        I("s_mul_i32", sL1, sWV, 1920); I("s_add_u32", sL1, sL1, KVI)
        I("v_cndmask_b32", vP3, T[4], vL16, "vcc")
        I("v_mul_u32_u24", T[1], 40, vN); I("v_lshl_add_u32", T[1], vGL, 3, T[1])
        I("v_add_u32", vAG1, sL1, T[1])
        I("v_mul_u32_u24", T[2], 40, vC); I("v_lshrrev_b32", T[3], 2, vL)
        I("s_lshr_b32", sL0, 32 * 40, sA)
        I("v_lshl_add_u32", T[2], T[3], 3, T[2]); I("v_add_u32", T[2], sL0, T[2])
        I("v_mul_u32_u24", T[3], 40, vL); I("v_add_u32", T[3], (32 - 16 * 40) & 0xffffffff, T[3])
        I("v_cndmask_b32", T[2], T[3], T[2], "vcc"); I("v_add_u32", vAG2, sL1, T[2])
        for t in range(5):
            I("v_accvgpr_write_b32", PHIF(t, 2)[2], 0); I("v_accvgpr_write_b32", PHIF(t, 2)[3], 0)
    lt = singles(cap(late))

    wait_vm("S0", lgkm=0)
    I("s_barrier")
    stamp("S0land")
    pipe = Pipe(dist=4)
    RT = list(range(-4, 10)) + [10, 10, 11, 11, 12, 12]
    fill = []
    for j in range(9):
        slot = j % 3
        order = [(kap, T_) for kap in range(2) for T_ in range(10)]
        if j == 8: order = [(kap, T_) for T0 in (0, 5) for kap in range(2) for T_ in range(T0, T0 + 5)]
        seen = set()
        for m, (kap, T_) in enumerate(order):
            ks = 2 * j + kap
            ring = RING[(20 * j + m) % 8]
            def rd():
                if kap not in seen:
                    seen.add(kap)
                    for p in range(2):
                        I("ds_read_b128", XF(ks, p), vXR[kap], mods="offset:%d" % (slot * XSLOT + p * 2048))
                tile_read(ring, T_, slot * WSLOT + kap * 9216)
            def work():
                for p in range(2):
                    if T_ < 5: mfma(ACK[p][T_], ring, XF(ks, p), 0 if ks == 0 else ACK[p][T_])
                    else: mfma(ACV[p][T_ - 5], XF(ks, p), ring, 0 if ks == 0 else ACV[p][T_ - 5])
            pipe.add(rd, work, rt=20 * j + RT[m])
        def hook():
            if OPT["itouch"] and 20 * j + 16 == OPT["t0"]: touch_round(0)
            if OPT["itouch"] and 20 * j + 16 == OPT["t1"]: touch_round(1)
            if j < 8: wait_vm("S%d" % (j + 1), lgkm=0)
            else: wait(lgkm=0)
            I("s_barrier")
            if OPT["p1st"]: stamp("b%d" % (j + 1))
        pipe.hooks[20 * j + 16] = cap(hook)
        t0 = max(0, 20 * j - 4)
        if j + 2 < 9: fill += spread(stage_dma(j + 2), t0, 20 * j + 13)
        elif j == 7: fill += spread(wq_pair_dma(0) + wq_pair_dma(2), t0 + 2, 20 * j + 36)
    if OPT["pfq"]:
        fill += at(OPT["pfq"], singles(cap(lambda: prefetch("wq"))))
    if OPT["pfo"] > 1:
        fill += at(OPT["pfo"], singles(cap(lambda: prefetch("wo"))))
    fill.sort(key=lambda t: t[0])
    phw = singles(cap(lambda: [I("ds_write_b32", PA[i], PW[i], mods="offset:%d" % (256 * i)) for i in range(3)]))
    def phir():
        for t in range(5):
            for tp in range(5):
                ad, o = (vPH[0], 160 * tp) if tp < 3 else (vPH[tp - 2], 0)
                tr(PHIF(t, tp // 2)[2 * (tp & 1):2 * (tp & 1) + 2], ad, 8 * t + o)
    phr = singles(cap(phir))
    nl = len(lt)
    bulk = spread(lt[:8], -1, -1) + spread(lt[8:30], 0, 24) + spread(phw, 24, 30) + spread(lt[30:40], 30, 42)
    bulk += spread(phr, 42, 80) + spread(lt[40:], 80, 150)
    bulk += spread(singles(cap(lambda: (cv(0), cv(1)))), 178, 180)
    pipe.emit(fill, bulk)
    stamp("pass1")

    I("s_cmp_lg_u32", sA, 0)
    I("s_cbranch_scc1", "L_tailA")
    P.label("L_tailB")
    names0 = list(stamp_names); mute0 = OPT.get("mute")
    P.put(mark(cap(lambda: tail("B")), path="B"))
    P.label("L_end")
    P.label("L_notouchB")
    I("s_endpgm")
    for sl in SLOW: P.put(mark(sl, path="B"))
    del SLOW[:]
    stamp_names[:] = names0; OPT["mute"] = mute0
    P.raw(".p2align 7")
    P.label("L_dotouch")
    P.label("L_tailA")
    P.put(mark(cap(lambda: (I("s_nop", 7), tail("A"))), path="A"))
    P.label("L_notouchA")
    I("s_endpgm")
    for sl in SLOW: P.put(mark(sl, path="A"))
    P.label("L_last")

def prefetch(kind):
    I("s_lshr_b32", sT2, s(2), 3); I("s_lshl2_add_u32", sT2, sT2, sWV); I("s_mul_i32", sT2, sT2, 81); I("s_lshr_b32", sT2, sT2, 1)
    I("v_min_u32", T[5], 40, vL); I("v_add_u32", T[5], sT2, T[5])
    if kind == "wo":
        I("v_lshlrev_b32", T[5], 7, T[5])
        I("buffer_load_dword", v(255), T[5], SWO, 0, mods="offen")
    else:
        I("v_mul_u32_u24", T[6], 7282, T[5]); I("v_lshrrev_b32", T[6], 16, T[6])
        I("v_mul_u32_u24", T[6], 18, T[6]); I("v_add_lshl_u32", T[5], T[5], T[6], 7)
        I("buffer_load_dword", v(255), T[5], SW, 0, mods="offen")

def rebase(delta):
    for pat in range(3):
        for e in range(2):
            I("v_add_u32", vTR[pat][e], delta & 0xffffffff, vTR[pat][e])

def tail(path):
    B = path == "B"
    FT = [0, 1, 2] if B else [0, 2]
    PHI_ = PH if B else KB
    NJ = 5 if B else 3
    def poison():
        for i in range(4):
            I("buffer_store_dwordx4", M1, vL16, SWS, sOU[0], mods="offen offset:%d sc1" % (1024 * i))
        for i in range(2):
            I("buffer_store_dword", M1[0], vL4, SWS, sOU[0], mods="offen offset:%d sc1" % (256 * i))
    def vpack():
        I("v_cmp_eq_u32", "vcc", 8, vN)
        I("v_mov_b32", T[0], 0x3f803f80)
        for t in range(5):
            d = ACV[0][t]
            for p in range(2):
                for h in range(2):
                    I("v_cvt_pk_bf16_f32", d[2 * p + h], ACV[p][t][2 * h], ACV[p][t][2 * h + 1])
        for i in range(4): I("v_cndmask_b32", ACV[0][4][i], ACV[0][4][i], T[0], "vcc")
    def prewarm():
        I("v_min_u32", T[1], 35, vL); I("v_lshlrev_b32", T[1], 7, T[1])
        I("buffer_load_dword", v(255), T[1], SWS, sOU[0], mods="offen sc1")
    vp = singles(cap(vpack))
    w = singles(cap(lambda: [I("ds_write_b128", vVW, ACV[0][t], mods="offset:%d" % (1024 * t)) for t in range(5)]))
    q = tagged(singles(cap(poison)), "POIS")
    pwm = [cap(prewarm)] if OPT["pw"] else []
    pfo = [cap(lambda: prefetch("wo"))] if OPT["pfo"] == 1 else []
    q4, q6, q8 = vm_only(wq_pair_dma(4)), vm_only(wq_pair_dma(6)), vm_only(wq_pair_dma(8))
    if B:
        ksh = weave(q4[:4], vp); km0 = weave(q4[4:] + q6, w); km1 = q8 + pfo + q
        late_q = []
    else:
        ksh = weave(q4[:2], vp); km0 = weave(q4[2:] + q6[:3], w); km1 = q6[3:] + q8 + pfo + q
        late_q = []
    def kwrites(p):
        return singles(cap(lambda: [I("ds_write_b64", vIW, PHI_[p][2 * i:2 * i + 2], mods="offset:%d" % (IMG + p * 1152 + 8 * i)) for i in range(9 if B else 5)]))
    feature_map(path, "k", True, ksh, (km0, 2, 98), (km1, 0, 70 if B else 95), kwrites)
    wait(lgkm=0)
    I("s_barrier")
    stamp("kpost")
    DM = [v(104 + 4 * j, 4) for j in range(3)]; DL = [v(116 + 4 * j, 4) for j in range(3)]
    pipe = Pipe(dist=3, grp=1)
    n = 0
    for j in FT:
        for src in range(4):
            AM, AL = v(64 + 8 * src, 4), v(68 + 8 * src, 4)
            BF = RING[n % 8]; n += 1
            def rd():
                if j == 0: I("ds_read_b128", AM, vAM, mods="offset:%d" % (src * 5120))
                for e in range(2):
                    tr(BF[2 * e:2 * e + 2], vKB0 if j < 2 else vKB2, IMG + src * 2304 + e * 1152 + (32 * j if (B or j < 2) else 32))
                if j == 0: I("ds_read_b128", AL, vAL, mods="offset:%d" % (src * 5120))
            def work():
                mfma(DM[j], AM, BF, 0 if src == 0 else DM[j])
                mfma(DL[j], AL, BF, 0 if src == 0 else DL[j])
            pipe.add(rd, work)
    SLM = {0: 0, 1: 4, 2: 8} if B else {0: 0, 2: 4}
    SLL = {0: 9, 1: 10, 2: 11} if B else {0: 5, 2: 6}
    def pstore(j):
        for D, ad, sl in ((DM[j], vP1 if j < 2 else vP2, SLM[j]), (DL[j], vP3, SLL[j])):
            if sl: I("s_add_u32", sT1, sPME, sl * 4096)
            for i in range(4): I("v_and_or_b32", D[i], D[i], sMSK, T[0])
            I("buffer_store_dwordx4", D, ad, SWS, sT1 if sl else sPME, mods="offen sc1")
    fill = at(1, singles(cap(lambda: (I("v_mov_b32", T[0], sTAG), rebase(WQ0 - WSL)))))
    for k_, j in enumerate(FT[:-1]): fill += spread(tagged(singles(cap(lambda: pstore(j))), "P"), 4 * k_ + 5, 4 * k_ + 8)
    pipe.emit(fill)
    fst("kvmm")
    pstore(FT[-1])
    stamp("pubP")
    wait_vm("WQ4")
    I("s_barrier")
    stamp("wqland")

    def gemm2(bfrag, offs, rebases, fill, nm, hooks={}):
        pipe = Pipe(dist=4)
        pipe.hooks = hooks
        n = 0
        for ks in range(18):
            for T_ in range(5):
                ring = RING[n % 8]; n += 1
                def rd():
                    if T_ == 0 and ks in rebases: rebase(rebases[ks])
                    tile_read(ring, T_, offs(ks))
                def work():
                    for p in range(2):
                        mfma(ACK[p][T_], ring, bfrag(ks, p), 0 if ks == 0 else ACK[p][T_])
                pipe.add(rd, work, (lambda: fst("%s%d" % (nm, ks))) if T_ == 0 else None)
        pipe.emit(fill)
    RS = v(128, 16)
    vCK = T[6]
    def rs_loads():
        for i in range(4):
            I("buffer_load_dwordx4", RS[4 * i:4 * i + 4], vL16, SWS, sRSB, mods="offen offset:%d sc1" % (1024 * i))
    def rs_reduce():
        for st in (8, 4):
            for i in range(st): I("v_add_f32", RS[i], RS[i], RS[i + st])
        I("v_permlane32_swap_b32", RS[0], RS[2]); I("v_permlane32_swap_b32", RS[1], RS[3])
        I("v_add_f32", RS[0], RS[0], RS[2]); I("v_add_f32", RS[1], RS[1], RS[3])
        I("v_mov_b32", RS[2], RS[0]); I("v_mov_b32", RS[3], RS[1])
        I("v_permlane16_swap_b32", RS[0], RS[2]); I("v_permlane16_swap_b32", RS[1], RS[3])
        I("v_add_f32", RS[0], RS[0], RS[2]); I("v_add_f32", RS[1], RS[1], RS[3])
        I("v_cvt_pk_bf16_f32", RS[0], RS[0], RS[1])
        I("v_mov_b32", RS[1], sE)
        I("buffer_store_dwordx2", RS[0:2], vFS, SWS, sFSL, mods="offen sc1")
    vRV, vRA = T[7], T[8]
    def rflag():
        I("v_mov_b32", vRV, sRV); I("s_lshl_b32", sT1, sG, 2); I("v_mov_b32", vRA, sT1)
        I("buffer_store_dword", vRV, vRA, SWS, sRF, mods="offen sc1")
    ra, rc = OPT["rs_at"], OPT["rs_chk"]
    if not B: ra -= OPT["dA"]; rc -= OPT["dA"]
    wo = [vm_only(wo_pair_dma(u)) for u in (0, 2, 4, 6)]
    wo.append(vm_only(singles(cap(lambda: I("s_add_u32", sO8, sO8, sQ8))) + tagged(dma5(vO8, SWO, sO8, sM8, WO6 + 2 * 9216), "WO8")))
    def ou():
        for u in range(1, 8):
            I("s_add_u32", sL0, sG, u); I("s_and_b32", sL0, sL0, 7)
            I("s_mul_i32", sL0, sL0, 4608); I("s_add_u32", sOU[u], sL0, sOB)
    fill = sorted(spread(wo.pop(0), 2, 26) + spread(singles(cap(ou)), 1, 28), key=lambda t: t[0]) + (at(28, singles(sum(pwm, []))) if OPT["pw"] == 1 else [])
    fill += spread(tagged(singles(cap(rs_loads)), "RS"), ra, ra + 4)
    fill += spread((pwm if OPT["pw"] == 4 else []) + wo.pop(0), ra + 4, ra + 20)
    wx = [] if B else spread(wo.pop(0), rc + 1, rc + OPT["rs_len"] - 6)
    chk = [cap(lambda: wait_vm("RS"))] + check_tag("rs" + path, vCK, [RS[i] for i in range(16)], rs_loads) + singles(cap(rs_reduce)) + singles(cap(rflag))
    fill += sorted(spread(chk, rc, rc + OPT["rs_len"]) + wx, key=lambda t: t[0])
    gemm2(XF, lambda ks: ((ks // 2) % 6) * 9216 + (ks & 1) * 144, {12: WQ6 - WQ0}, fill, "q", {54: cap(lambda: (wait_vm("WQ8"), I("s_barrier")))})
    stamp("qgemm")

    NAG = 3 if B else 2
    AG = v(104, 4 * NAG); RF = v(116)
    def ag_loads():
        for i in range(NAG):
            I("buffer_load_dwordx4", AG[4 * i:4 * i + 4], vL16 if (B or i == 0) else T[3], SWS, sAG, mods="offen offset:%d sc1" % (1024 * i))
    def ag_fold():
        I("v_xor_b32", vCK, sE, AG[1])
        for i in range(3, 4 * NAG, 2): I("v_bitop3_b32", vCK, vCK, sE, AG[i], mods="bitop3:0xf6")
    def rf_load(): I("buffer_load_dword", RF, T[4], SWS, sRF, mods="offen sc1")
    def qsh():
        if not B: I("v_min_u32", T[3], 47 * 16, vL16)
        I("v_and_b32", T[4], 7, vL); I("v_lshlrev_b32", T[4], 2, T[4])
        rebase(WO0 - WQ6)
    fr = OPT["ag_frac"] if B else OPT["ag_fracA"]
    g = singles(cap(rf_load)) + tagged(singles(cap(ag_loads)), "AG") + (pwm if OPT["pw"] == 2 else [])
    lo = (fr - 50) * 2
    wc = wo.pop(0)
    if OPT["pw"] == 3: wc = pwm + wc
    wd = sum(wo, [])
    if B: feature_map(path, "q", False, weave(singles(cap(qsh)), wc[:3]), (wc[3:], 10, 60), (g + wd[:OPT["wdn"]], lo, 100), lambda p: [])
    else: feature_map(path, "q", False, singles(cap(qsh)), (wc[:3], 0, 100), (wc[3:] + g, 0, 100), lambda p: [])
    emit_groups(wd[OPT["wdn"] if B else 0:])
    stamp("qpost")
    for t in range(5):
        I("v_accvgpr_write_b32", PSIF(t, NJ - 1)[2], 0); I("v_accvgpr_write_b32", PSIF(t, NJ - 1)[3], 0)
    wait_vm("AG")
    fst("agw")
    emit_groups(check_or_retry("ag" + path, ag_fold, lambda: I("v_cmp_ne_u32", "vcc", 0, vCK), ag_loads))
    fst("agok")
    I("ds_write2_b32", vAG1, AG[0], AG[2], mods="offset0:0 offset1:1")
    if B: I("ds_write2_b32", vAG1, AG[4], AG[6], mods="offset0:160 offset1:161")
    I("ds_write2_b32", vAG2, AG[4 * NAG - 4], AG[4 * NAG - 2], mods="offset0:0 offset1:1")
    wait(lgkm=0)
    I("s_barrier")
    stamp("gotkv")

    pool = list(range(104, 144, 4)) + list(range(176, 256, 4)) + [12, 16, 28, 32, 36, 40]
    OF = {}
    keys = [(0, p, X) for X in range(2) for p in range(2)] + [("L", k, p) for k in range(2) for p in range(2)] + [(u, p, X) for u in range(1, 8) for p in range(2) for X in range(2)]
    for k_, r_ in zip(keys, pool): OF[k_] = v(r_, 4)
    o = ACC
    pipe = Pipe(dist=4)
    for t in (4, 0, 1, 2, 3):
        for j in range(NJ):
            def rd():
                tr(PSIF(t, j)[0:2], vPSA, 8 * t + 8 * j * 40)
                if j < NJ - 1: tr(PSIF(t, j)[2:4], vPSA, 8 * t + (8 * j + 4) * 40)
            def work():
                for p in range(2):
                    mfma(ACK[p][t], PSIF(t, j), PHI_[p][4 * j:4 * j + 4], 0 if j == 0 else ACK[p][t])
            pipe.add(rd, work)
    def ostore(key, flag=""):
        if key[0] == "L": I("buffer_store_dword", OF[key][0], vL4, SWS, sOU[0], mods="offen offset:%d%s" % (key[2] * 256, flag))
        else: I("buffer_store_dwordx4", OF[key], vL16, SWS, sOU[0], mods="offen offset:%d%s" % (key[1] * 2048 + key[2] * 1024, flag))
    def fin_den():
        for p in range(2): I("v_add_f32", o[p][18], sEPS[0], o[p][18])
        for p in range(2): I("v_rcp_f32", o[p][18], o[p][18])
        for p in range(2):
            for i in (16, 17): I("v_mul_f32", o[p][i], o[p][i], o[p][18])
        for p in range(2):
            I("v_cvt_pk_bf16_f32", OF[("L", 0, p)][0], o[p][16], o[p][17])
            ostore(("L", 0, p))
    def fin_tile(t, packed):
        for p in range(2):
            if packed:
                for i in (4 * t, 4 * t + 2): I("v_pk_mul_f32", o[p][i:i + 2], o[p][i:i + 2], o[p][18:20], mods="op_sel:[0,0] op_sel_hi:[1,0]")
            else:
                for i in range(4 * t, 4 * t + 4): I("v_mul_f32", o[p][i], o[p][i], o[p][18])
            for h in range(2):
                I("v_cvt_pk_bf16_f32", OF[(0, p, t // 2)][2 * (t & 1) + h], o[p][4 * t + 2 * h], o[p][4 * t + 2 * h + 1])
            if t & 1: ostore((0, p, t // 2))
    rfchk = check_or_retry("rf" + path, lambda: I("v_xor_b32", vCK, sRV, RF), lambda: I("v_cmp_lt_u32", "vcc", 15, vCK), rf_load)
    rfchk += [cap(lambda: I("v_cmp_ne_u32", s(50, 2), 0, vCK))]
    fill = at(0, rfchk)
    fill += spread(singles(cap(fin_den)), NJ + 2, 2 * NJ + 1)
    for t in range(3): fill += spread(singles(cap(lambda: fin_tile(t, False))), (2 + t) * NJ + 1 + (1 if B else 0), (3 + t) * NJ + 1)
    pipe.emit(fill)
    fst("omm")
    fin_tile(3, True)
    I("s_cmp_lg_u64", s(50, 2), 0)
    I("s_cbranch_scc1", "L_far" + path)
    P.label("L_near" + path)
    def far():
        P.label("L_far" + path)
        for key in keys[:4] + [("L", 0, 0), ("L", 0, 1)]: ostore(key, " sc1")
        wait(vm=0)
        I("buffer_store_dword", vRV, vRA, SWS, sRF, mods="offen offset:32 sc1")
        I("s_mov_b32", sCNT, 0)
        P.label("L_farp" + path)
        I("buffer_load_dword", vCK, T[4], SWS, sRF, mods="offen offset:32 sc1")
        wait(vm=0)
        I("v_xor_b32", vCK, sRV, vCK)
        I("v_cmp_lt_u32", "vcc", 15, vCK)
        I("s_add_u32", sCNT, sCNT, 1)
        I("s_cmp_gt_u32", sCNT, SPIN)
        I("s_cbranch_scc1", "L_near" + path)
        I("s_cbranch_vccnz", "L_farp" + path)
        I("s_branch", "L_near" + path)
    SLOW.append(cap(far))
    stamp("pubO")

    def oload(u):
        for X in (1, 0):
            for p in (1, 0):
                I("buffer_load_dwordx4", OF[(u, p, X)], vL16, SWS, sOU[u], mods="offen offset:%d sc1" % (p * 2048 + X * 1024))
        for p in range(2):
            I("buffer_load_dword", OF[("L", u // 4, p)][u % 4], vL4, SWS, sOU[u], mods="offen offset:%d sc1" % (p * 256))
    def bf(ks, p):
        if ks < 16: return OF[(ks // 2, p, ks & 1)]
        return OF[("L", ks - 16, p)]
    offs = lambda ks: ((ks // 2) % 6) * 9216 + (ks & 1) * 144
    vW1, vW2, vW3, vRD = vIW, vVW, vAM, vAL
    vST = [vP2, vPSA, vKB0, vKB2, vP1]
    def out_addr():
        I("s_add_u32", sT0, sMQ, OUTB)
        I("v_mul_u32_u24", T[0], 144, vN); I("v_add_u32", T[0], sT0, T[0])
        I("v_mul_u32_u24", T[1], 40, vGL); I("v_add_u32", vW1, T[0], T[1])
        I("v_lshrrev_b32", T[4], 1, vGL)
        I("v_lshlrev_b32", T[2], 5, T[4]); I("v_sub_u32", vW2, vW1, T[2])
        I("v_mul_u32_u24", T[3], 72, T[4]); I("v_add_u32", vW3, T[0], T[3])
        I("v_add_u32", vRD, sT0, vL16)
        I("s_movk_i32", sT1, 2304 - 144)
        for i in range(5):
            t = vM
            if i:
                I("v_add_u32", T[3], Q0[i] * 7282, vM); t = T[3]
            I("v_lshrrev_b32", T[0], 16, t)
            I("v_mad_u32_u24", vST[i], T[0], sT1, vL16)
    NPRE = OPT["npre"]
    wait_vm("WO8")
    I("s_barrier")
    stamp("ackO")
    I("s_mov_b32", sT2, 0)
    P.label("L_redo" + path)
    g = []
    for u in range(1, NPRE + 1): g += tagged(singles(cap(lambda: oload(u))), "O%d" % u)
    fill = spread(g, 0, 7)
    def ochk(u):
        regs = [OF[(u, 0, 1)][3], OF[(u, 1, 1)][3], OF[(u, 1, 0)][3]]
        return [cap(lambda: wait_vm("O%d" % u))] + check_sent("o%d%s" % (u, path), vCK, regs, lambda: oload(u))
    for u in range(0, 7):
        b0 = u * 10
        blk = spread(ochk(u + 1), b0 + 6, b0 + 6)
        if u and u + NPRE <= 7: blk += spread(tagged(singles(cap(lambda: oload(u + NPRE))), "O%d" % (u + NPRE)), b0, b0 + 10)
        fill += sorted(blk, key=lambda t: t[0])
    fill += spread(singles(cap(out_addr)), 70, 88)
    gemm2(bf, offs, {12: WO6 - WO0}, fill, "o")
    stamp("ogemm")
    I("v_cmp_u_f32", "vcc", ACK[0][0][0], ACK[1][0][0])
    I("s_cbranch_vccnz", "L_again" + path)
    P.label("L_done" + path)
    def again():
        P.label("L_again" + path)
        I("s_add_u32", sT2, sT2, 1)
        I("s_cmp_gt_u32", sT2, 200)
        I("s_cbranch_scc1", "L_done" + path)
        rebase(WO0 - WO6)
        I("s_nop", 7)
        I("s_branch", "L_redo" + path)
    SLOW.append(cap(again))
    OUTR = v(104, 20)
    for p in range(2):
        for t in range(5):
            for h in range(2):
                I("v_cvt_pk_bf16_f32", OUTR[10 * p + 2 * t + h], ACK[p][t][2 * h], ACK[p][t][2 * h + 1])
            ad, off = (vW1, 8 * t) if t < 3 else ((vW2, 24) if t == 3 else (vW3, 32))
            I("ds_write_b64", ad, OUTR[10 * p + 2 * t:10 * p + 2 * t + 2], mods="offset:%d" % (off + p * 2304))
    OB = v(176, 20)
    for i in range(5):
        I("ds_read_b128", OB[4 * i:4 * i + 4], vRD, mods="offset:%d" % (16 * Q0[i]))
    fl = ["", " sc1", " nt", " sc0 sc1"][OPT["outflag"]]
    wait(lgkm=4)
    I("s_mov_b32", "exec_hi", 0)
    I("buffer_store_dwordx4", OB[0:4], vST[0], SOUT, sOUTB, mods="offen" + fl)
    I("s_mov_b32", "exec_hi", -1)
    for i in range(1, 5):
        wait(lgkm=4 - i)
        I("buffer_store_dwordx4", OB[4 * i:4 * i + 4], vST[i], SOUT, sOUTB, mods="offen offset:%d%s" % (16 * Q0[i], fl))
    I("s_or_b32", sT0, sSL, sG)
    I("s_cmp_lg_u32", sT0, 0)
    I("s_cbranch_scc1", "L_noep" + path)
    I("s_lshl_b32", sT0, sA, 7); I("s_add_u32", sT0, sT0, WS_E)
    I("v_mov_b32", T[0], 0); I("v_mov_b32", T[1], sE)
    I("buffer_store_dword", T[1], T[0], SWS, sT0, mods="offen")
    P.label("L_noep" + path)
    if OPT["stamps"]:
        stamp("stiss")
        if B: P.label("L_fin")
        OPT["mute"] = 0
        wait(vm=0)
        stamp("end")
        I("s_memrealtime", s(100, 2))
        wait(lgkm=0)
        if OPT["fine"]:
            for k, nm in enumerate(OPT["fine"].split(",")):
                stamp_names.append(nm); STAMPS[k] = s(4 + 2 * k)
        n = len(stamp_names)
        for k in range(n):
            if OPT["lite"] and k != OPT["amp"] and k != n - 1: continue
            assert OPT["lite"] or n <= 17
            I("s_sub_u32", STAMPS[k], STAMPS[k], s(96 if (OPT["lite"] == 2 or OPT["rt"]) else 98))
            I("v_mov_b32", v(64 + k), STAMPS[k])
        I("v_mov_b32", v(64 + 28), sT2); I("v_mov_b32", v(64 + 29), s(3))
        I("v_mov_b32", v(64 + 30), s(96)); I("v_mov_b32", v(64 + 31), s(100))
        I("s_lshl_b32", sT0, s(2), 2); I("s_add_u32", sT0, sT0, sWV); I("s_lshl_b32", sT0, sT0, 7); I("s_add_u32", sT0, sT0, WS_ST)
        I("v_mov_b32", T[0], 0)
        I("s_mov_b64", "exec", 1)
        for q in range(8):
            I("buffer_store_dwordx4", v(64 + 4 * q, 4), T[0], SWS, sT0, mods="offen offset:%d" % (16 * q))
        if OPT["amp"] >= 0 and OPT["ampsel"] in (0, 2 if B else 1):
            I("s_lshl_b32", sT2, STAMPS[OPT["amp"]], 3)
            I("s_add_u32", sT2, sT2, STAMPS[n - 1])
            P.label("L_amp" + path)
            I("s_memrealtime" if OPT["lite"] == 2 else "s_memtime", s(100, 2)); wait(lgkm=0)
            I("s_sub_u32", sT1, s(100), s(96 if OPT["lite"] == 2 else 98))
            I("s_cmp_lt_u32", sT1, sT2)
            I("s_cbranch_scc1", "L_amp" + path)

HEADER = open("cdna_kernels/%s.s.ref" % NAME).read().split("; Override launch")[0]

def wrap(body):
    txt = HEADER + "; @launch grid=(256,1,1) block=(256,1,1) lds=%d\n" % LDS_BYTES
    txt += "; stamps: %s\n" % ",".join(stamp_names) if stamp_names else ""
    txt += '.amdgcn_target "amdgcn-amd-amdhsa--gfx950"\n.text\n.globl %s_kernel\n.p2align 12\n.type %s_kernel,@function\n' % (NAME, NAME)
    txt += ".set CODE_SPAN, (L_last - %s_kernel - 128) & 0xffffff80\n" % NAME
    txt += ".set HEAD_LINES, ((L_tailB - %s_kernel) >> 7) + 8\n.set A_SHIFT, (L_tailA - L_tailB - 2048) & 0xffffff80\n" % NAME
    txt += "%s_kernel:\n%s\n" % (NAME, body)
    txt += """.section .rodata,"a"
.p2align 6
.amdhsa_kernel %s_kernel
  .amdhsa_next_free_vgpr 512
  .amdhsa_next_free_sgpr 102
  .amdhsa_accum_offset 256
  .amdhsa_group_segment_fixed_size 0
  .amdhsa_kernarg_size 80
  .amdhsa_user_sgpr_count 2
  .amdhsa_user_sgpr_kernarg_segment_ptr 1
  .amdhsa_system_sgpr_workgroup_id_x 1
.end_amdhsa_kernel
""" % NAME
    return txt

def main(out):
    build()
    txt = P.finalize2(wrap)
    open(out, "w").write(txt)
    print("wrote", out, "hazard nops:", P.nops, "align fixes:", P.fixes, "bytes:", P.bytes, "touch points:", P.points)

if __name__ == "__main__":
    out = sys.argv[1]
    for kv in sys.argv[2:]:
        k, val = kv.split("=")
        assert k in OPT, k
        OPT[k] = val if k in ("stop", "fine") else int(val)
    main(out)
```

```python
import sys, struct
from asmdsl import *

NAME = "concat_heads__linear_attn_block__linear_kernel_hedgehog__prompt"
OPT = dict(stamps=0, nphase=6, amp=-1, ampsel=0, lite=0, outflag=2, oflag=0, wb=0, rs_at=40, rs_chk=62, rs_len=27, ag_frac=56, ag_fracA=90, dA=4, npre=3, t0=16, t1=36, pw=0, pfo=0, pfq=0, wdn=8, pfx=0, perm=0, xsh=0, swap07=1,
           stop="", p1st=0, touch=1, fine="", itouch=1, rt=0)

def f2u(x): return struct.unpack("<I", struct.pack("<f", x))[0]
LOG2E = 1.4426950408889634

XSLOT = 16384
WSL = 49152; WSLOT = 18432
WQ0 = 104448
WQ6 = 76800
PHI = 104448
ZERO = 159744
IMG = 0
VF = 36864
KVI = 57344
WO0 = 0
WO6 = 104448
OUTB = 76800
LDS_BYTES = 163840
PGRP = 48 * 4096
WS_F = 0x300000; WS_E = 0x380000; WS_R = 0x390000; WS_O = 0x400000; WS_ST = 0x900000; WS_BYTES = 0xA00000
OOB = 0x7ffffff0
SPIN = 30000
Q0 = [0, 32, 96, 160, 224]
WSTEP = 64 * 3456

SX, SW, SWO, SWS, SOUT, SPHI = s(24, 4), s(28, 4), s(32, 4), s(36, 4), s(40, 4), s(48, 4)
sL0, sL1, sL2, sL3 = s(44), s(45), s(46), s(47)
sA, sRT, sG, sWV = s(52), s(53), s(54), s(55)
sOQ, sOX, sOW = s(56), s(57), s(58)
s1152 = s(59)
sMX, sMW = s(60), s(61)
sT0, sT1, sT2, sT3 = s(62), s(63), s(64), s(65)
sSL = s(66)
sROT = s(67)
sPME, sRSB, sRF, sOB = s(68), s(69), s(70), s(71)
sCNT = s(72)
sFSL = s(73)
sC = s(74, 2)
sEPS = s(76, 2)
sODD = s(78, 2)
sMQ = s(80)
sOO = s(81)
sPC = s(82, 2)
sTAG, sMSK = s(82), s(83)
sOU = [s(84 + u) for u in range(8)]
sAG = s(92)
sO8 = s(93)
sOUTB = s(94)
sE = s(95)
sM8 = s(20); sQ8 = s(21); sPM2 = s(22); sPM3 = s(23)
sG144 = s(48); sRV = s(49); sQE = s(50); sOE = s(51)
STAMPS = [s(3 + i % 17) for i in range(28)]

vL = v(0)
T = [v(i) for i in range(1, 10)]
vOX = [v(10 + i) for i in range(4)]
vOW = [v(14 + i) for i in range(5)]
vXR = [v(19), v(20)]
vTR = [[v(21 + 2 * p + e) for e in range(2)] for p in range(5)]
vOQ = [v(31 + i) for i in range(5)]
vOO = [v(36 + i) for i in range(5)]
vO8 = [v(41 + i) for i in range(5)]
vL16 = v(46)
vGL, vN = v(47), v(48)
vM, vPSA, vKB0, vKB2, vFS, vL4, vIW, vVW, vAM, vAL, vP1 = [v(49 + i) for i in range(11)]
vP2, vP3, vAG1, vAG2 = v(60), v(61), v(62), v(63)
ACK = [[v(64 + 20 * p + 4 * t, 4) for t in range(5)] for p in range(2)]
ACV = [[v(104 + 20 * p + 4 * t, 4) for t in range(5)] for p in range(2)]
RING = [v(144 + 4 * i, 4) for i in range(8)]
KB = [v(176 + 12 * p, 12) for p in range(2)]
PH = [v(200 + 20 * p, 20) for p in range(2)]
TMP = v(144, 24)
PW = v(240, 3); M1 = v(244, 4); PA = v(248, 3); vR, vC = v(251), v(252)
vPH = [v(243), v(253), v(254)]
def XF(ks, p): return a(ks * 8 + p * 4, 4)
def PHIF(t, j): return a(144 + (t * 3 + j) * 4, 4)
def PSIF(t, j): return a(144 + (t * 5 + j) * 4, 4)

P = Prog()
I = P.I
cap = P.capture
stamp_names = []
def fst(name):
    names = OPT["fine"].split(",")
    if name in names:
        k = names.index(name)
        I("s_memrealtime" if OPT["rt"] else "s_memtime", s(4 + 2 * k, 2), c="fine " + name)
def stamp(name):
    if OPT["fine"]:
        fst(name)
    elif OPT["stamps"] and not OPT.get("mute"):
        k = len(stamp_names); stamp_names.append(name)
        real = True
        if OPT["lite"]:
            real = (k == OPT["amp"] or name == "end")
            if real: STAMPS[k] = s(5) if name == "end" else (s(4) if k else s(3))
        if real:
            I("s_memrealtime" if OPT["lite"] == 2 else "s_memtime", s(100, 2), c="stamp " + name)
            I("s_waitcnt", "lgkmcnt(0)")
            I("s_mov_b32", STAMPS[k], s(100))
    if OPT["stop"] == name:
        I("s_branch", "L_fin"); OPT["mute"] = 1

def wait(vm=None, lgkm=None):
    t = []
    if vm is not None: t.append("vmcnt(%d)" % vm)
    if lgkm is not None: t.append("lgkmcnt(%d)" % lgkm)
    I("s_waitcnt", " ".join(t))
def wait_vm(tag, lgkm=None): P.items.append(VmWait(tag, lgkm))
def tagged(groups, tag):
    for g in groups:
        for x in g:
            if isinstance(x, Ins) and x.kind == "vmem": x.tag = tag
    return groups
def mark(items, **kw):
    for x in items:
        if isinstance(x, Ins):
            for k, val in kw.items(): setattr(x, k, val)
    return items

def srd(dst, lo, hi, size):
    I("s_mov_b32", dst[0], lo); I("s_mov_b32", dst[1], hi)
    I("s_mov_b32", dst[2], size); I("s_mov_b32", dst[3], 0x20000)
def singles(items): return [[x] for x in items]
def emit_groups(groups):
    for g in groups: P.put(g)

def dma5(voffs, srdreg, soff, m0base, m0imm):
    def first():
        I("s_add_u32", "m0", m0base, m0imm)
        I("s_mov_b32", "exec_hi", 0)
        I("buffer_load_dwordx4", voffs[0], srdreg, soff, mods="offen lds")
        I("s_mov_b32", "exec_hi", -1)
    g = [cap(first)]
    for i in range(1, 5):
        g += singles(cap(lambda: I("buffer_load_dwordx4", voffs[i], srdreg, soff, mods="offen offset:%d lds" % (16 * Q0[i]))))
    return g

PERMS = {
    1: (3, [[7, 3, 6, 1, 8, 4, 2, 0, 5], [1, 3, 7, 2, 4, 8, 6, 0, 5], [3, 8, 1, 6, 2, 7, 0, 4, 5]]),
    2: (4, [[4, 0, 1, 5, 6, 2, 8, 7, 3], [4, 1, 5, 2, 7, 0, 6, 8, 3], [1, 4, 6, 7, 0, 2, 3, 5, 8], [4, 6, 1, 7, 3, 0, 5, 2, 8]]),
    3: (3, [[0, 1, 2, 3, 4, 5, 6, 7, 8], [1, 2, 0, 4, 5, 3, 7, 8, 6], [2, 0, 1, 5, 3, 4, 8, 6, 7]]),
    4: (8, [[3, 7, 5, 0, 8, 1, 4, 2, 6], [3, 5, 0, 4, 7, 6, 1, 8, 2], [5, 7, 4, 2, 0, 8, 3, 1, 6], [5, 3, 0, 8, 7, 2, 6, 1, 4], [3, 0, 4, 5, 8, 7, 6, 2, 1], [3, 5, 7, 0, 1, 2, 4, 8, 6], [7, 5, 2, 0, 4, 8, 6, 1, 3], [3, 4, 7, 0, 2, 1, 6, 8, 5]]),
    5: (3, [[0, 1, 2, 3, 4, 5, 6, 7, 8], [3, 4, 5, 6, 7, 8, 0, 1, 2], [6, 7, 8, 0, 1, 2, 3, 4, 5]]),
}
sPM = s(22, 2)
sPQ = s(90, 2)
sXB0, sWB0, sXSH = s(84 + 1), s(84 + 2), s(84 + 3)
def stage_of(dst, src):
    I("s_and_b32", dst, src, 15)
    if OPT["xsh"]:
        I("s_add_u32", dst, dst, sXSH)
def stage_fix(dst):
    I("s_cmp_ge_u32", dst, 9)
    I("s_cselect_b32", sT1, 9, 0)
def perm_next():
    g = singles(cap(lambda: stage_of(sT0, sPM[0])))
    if OPT["xsh"]: g += [cap(lambda: stage_fix(sT0))] + singles(cap(lambda: I("s_sub_u32", sT0, sT0, sT1)))
    def f():
        I("s_lshr_b64", sPM, sPM, 4)
        I("s_lshl_b32", sOX, sT0, 7); I("s_add_u32", sOX, sOX, sXB0)
        I("s_mul_i32", sOW, sT0, WSTEP); I("s_add_u32", sOW, sOW, sWB0)
    return g + singles(cap(f))
def permq_next():
    g = singles(cap(lambda: stage_of(sT0, sPQ[0])))
    if OPT["xsh"]: g += [cap(lambda: stage_fix(sT0))] + singles(cap(lambda: I("s_sub_u32", sT0, sT0, sT1)))
    def f():
        I("s_lshr_b64", sPQ, sPQ, 8)
        I("s_mul_i32", sOQ, sT0, WSTEP); I("s_add_u32", sOQ, sOQ, sQE)
    return g + singles(cap(f))
def wraps_after(j):
    rots = {1: [0], 2: [0, 4], 3: [0, 3, 6], 4: [0, 2, 4, 6], 5: [0, 2, 5, 7], 8: list(range(8)), 6: list(range(9)), 7: list(range(9))}[OPT["nphase"]]
    return any(r + j == 8 for r in rots) and j < 8
def x_dma(j):
    g = singles(cap(lambda: I("s_add_u32", "m0", sMX, (j % 3) * XSLOT)))
    for i in range(4):
        g += singles(cap(lambda: I("buffer_load_dwordx4", vOX[i], SX, sOX, mods="offen offset:%d lds" % (1024 * i))))
    return tagged(g, "S%d" % j)
def w_dma(j):
    g = tagged(dma5(vOW, SW, sOW, sMW, (j % 3) * WSLOT), "S%d" % j)
    if j < 8 and OPT["perm"]:
        g += perm_next()
    elif j < 8:
        g += singles(cap(lambda: (I("s_add_u32", sOX, sOX, 128), I("s_add_u32", sOW, sOW, WSTEP))))
        if wraps_after(j):
            def wr():
                I("s_cmp_eq_u32", sROT, 8 - j)
                I("s_cselect_b32", sT0, 1152, 0); I("s_cselect_b32", sT1, 9 * WSTEP, 0)
            g.append(cap(wr))
            g += singles(cap(lambda: (I("s_sub_u32", sOX, sOX, sT0), I("s_sub_u32", sOW, sOW, sT1))))
    return g
def stage_dma(j): return x_dma(j) + w_dma(j)

def advance(reg, step, end, span):
    def a1():
        I("s_add_u32", reg, reg, step)
        I("s_cmp_ge_u32", reg, end)
        I("s_cselect_b32", sT0, span, 0)
    return [cap(a1)] + singles(cap(lambda: I("s_sub_u32", reg, reg, sT0)))
def wq_pair_dma(j):
    pos = (WQ0 + j * 9216) if j < 6 else (WQ6 + (j - 6) * 9216)
    if j == 8:
        return singles(cap(lambda: I("s_add_u32", sOQ, sOQ, sQ8))) + tagged(dma5(vOQ, SW, sOQ, sM8, pos), "WQ8")
    g = tagged(dma5(vOQ, SW, sOQ, sMQ, pos), "WQ%d" % j)
    g += permq_next() if OPT["perm"] else advance(sOQ, 2 * WSTEP, sQE, 9 * WSTEP)
    if j == 0 and OPT["perm"]: g = permq_next() + g
    return g
def wo_pair_dma(u):
    pos = (WO0 + u * 9216) if u < 6 else (WO6 + (u - 6) * 9216)
    g = tagged(dma5(vOO, SWO, sOO, sMQ, pos), "WO%d" % u)
    if u < 6: g += advance(sOO, 2 * 82944, sOE, 8 * 82944)
    return g
def only_waves01(groups, tag):
    def f():
        I("s_cmp_ge_u32", sWV, 2)
        I("s_cbranch_scc1", "L_skip_" + tag)
        for g in groups: P.put(mark(g, cond=True))
        P.label("L_skip_" + tag)
    return [cap(f)]

def tr(dst, addr, off):
    assert 0 <= off < 65536, off
    I("ds_read_b64_tr_b16", dst, addr, mods="offset:%d" % off)
def mfma(d, x, y, c): I("v_mfma_f32_16x16x32_bf16", d, x, y, c)
def tile_read(dstreg, T_, base_off):
    if T_ < 3: pat, o = 0, 8 * T_
    elif T_ == 3: pat, o = 1, 0
    elif T_ == 4: pat, o = 2, 0
    elif T_ < 9: pat, o = 3, 144 + 8 * [0, 5, 9, 14][T_ - 5]
    else: pat, o = 4, 144
    for e in range(2):
        tr(dstreg[2 * e:2 * e + 2], vTR[pat][e], base_off + o)

class Pipe:
    def __init__(self, dist=4, grp=2):
        self.units = []; self.dist = dist; self.grp = grp; self.hooks = {}
    def add(self, rd, work, pre=None, rt=None):
        k = len(self.units)
        self.units.append((cap(rd), cap(work), cap(pre) if pre else None, k - self.dist if rt is None else rt))
    def emit(self, fill=(), bulk=()):
        fill = list(fill); bulk = list(bulk)
        U = self.units; n = len(U)
        seq = []
        state = dict(done=0)
        def put(items, owner=-1):
            for x in items:
                if isinstance(x, Ins) and x.kind == "ds": seq.append(owner)
                if isinstance(x, Ins) and x.op == "s_waitcnt" and ("lgkmcnt(0)" in x.args[0] or getattr(x, "lgkm", None) == 0): state["done"] = len(seq)
            P.put(items)
        def need_wait(k):
            last = max([i for i, o in enumerate(seq) if o == k] + [-1])
            return last >= state["done"]
        byt = {}
        for k, u in enumerate(U): byt.setdefault(max(u[3], -1), []).append(k)
        for k in byt.get(-1, []): put(U[k][0], k)
        while bulk and bulk[0][0] < 0: put(bulk.pop(0)[1])
        def take(k):
            if fill and fill[0][0] <= k: put(fill.pop(0)[1]); return True
            if bulk and bulk[0][0] <= k + 6: put(bulk.pop(0)[1]); return True
            return False
        for k in range(n):
            if k in self.hooks: put(self.hooks[k])
            if U[k][2]: put(U[k][2])
            if need_wait(k):
                want = [q for q in range(k, min(n, k + self.grp)) if U[q][3] < k - 1 or q == k]
                last = max(i for i, o in enumerate(seq) if o in want)
                later = len(seq) - 1 - last
                assert later <= 15, later
                wait(lgkm=later); state["done"] = last + 1
            nxt = [(x, q) for q in byt.get(k, []) for x in U[q][0]]
            half = (len(nxt) + 1) // 2
            w = U[k][1]
            P.put([w[0]])
            for x, q in nxt[:half]: put([x], q)
            for _ in range(max(0, 2 - half)): take(k)
            P.put(w[1:])
            for x, q in nxt[half:]: put([x], q)
            rest = len(nxt) - half + (1 if (k + 1 < n and need_wait(k + 1)) else 0) + (2 if k + 1 in self.hooks else 0)
            for _ in range(max(0, 2 - rest)): take(k)
            while fill and fill[0][0] <= k - 3: put(fill.pop(0)[1])
            while bulk and bulk[0][0] <= k: put(bulk.pop(0)[1])
        for _, g in fill + bulk: put(g)

def vm_only(groups):
    out = []
    for g in groups:
        if any(x.kind == "vmem" for x in g) or not out: out.append(list(g))
        else: out[-1] += g
    return out
def weave(a_, b_):
    out = []; na, nb = len(a_), len(b_); i = j = 0
    while i < na or j < nb:
        if j >= nb or (i < na and i * nb <= j * na): out.append(a_[i]); i += 1
        else: out.append(b_[j]); j += 1
    return out
def at(unit, groups): return [(unit + i * 2 // 3, g) for i, g in enumerate(groups)]
def spread(groups, first, last):
    n = len(groups)
    return [(first + (last - first) * i // max(1, n), g) for i, g in enumerate(groups)]
def merge(main, extra, start=0, step=2):
    out = []; extra = list(extra)
    for i, x in enumerate(main):
        out.append(x)
        if extra and i >= start and (i - start) % step == step - 1: out += extra.pop(0)
    for g in extra: out += g
    return out

def sm_head(src18, tmp):
    mx, mn = tmp[18], tmp[19]
    I("v_max3_f32", mx, src18[0], src18[1], src18[2]); I("v_min3_f32", mn, src18[0], src18[1], src18[2])
    for i in range(3, 17, 2):
        I("v_max3_f32", mx, mx, src18[i], src18[i + 1]); I("v_min3_f32", mn, mn, src18[i], src18[i + 1])
    I("v_max_f32", mx, mx, src18[17]); I("v_min_f32", mn, mn, src18[17])
    I("v_mul_f32", tmp[20], sC[0], mx); I("v_mul_f32", tmp[21], sC[0], mn)
def sm_tail(src18, out18, tmp):
    ab = tmp[20:22]
    for i in range(0, 18, 2):
        I("v_pk_fma_f32", tmp[i:i + 2], src18[i:i + 2], sC, ab, mods="op_sel:[0,0,1] op_sel_hi:[1,1,1] neg_lo:[1,0,0] neg_hi:[1,0,0]")
        I("v_pk_fma_f32", src18[i:i + 2], src18[i:i + 2], sC, ab, mods="op_sel:[0,0,0] op_sel_hi:[1,1,0] neg_lo:[0,0,1] neg_hi:[0,0,1]")
    sp, sn = tmp[18:20], tmp[20:22]
    for i in range(0, 18, 2):
        for h in range(2):
            I("v_exp_f32", src18[i + h], src18[i + h]); I("v_exp_f32", tmp[i + h], tmp[i + h])
        if i == 4:
            I("v_pk_add_f32", sp, src18[0:2], src18[2:4]); I("v_pk_add_f32", sn, tmp[0:2], tmp[2:4])
        elif i > 4:
            I("v_pk_add_f32", sp, sp, src18[i - 2:i]); I("v_pk_add_f32", sn, sn, tmp[i - 2:i])
    I("v_pk_add_f32", sp, sp, src18[16:18]); I("v_pk_add_f32", sn, sn, tmp[16:18])
    rr = tmp[22:24]
    I("v_add_f32", rr[0], sp[0], sp[1]); I("v_add_f32", rr[1], sn[0], sn[1])
    I("v_rcp_f32", rr[0], rr[0]); I("v_rcp_f32", rr[1], rr[1])
    def el(d): return (src18[2 * d:2 * d + 2], "op_sel:[0,0] op_sel_hi:[1,0]") if d < 9 else (tmp[2 * (d - 9):2 * (d - 9) + 2], "op_sel:[0,1] op_sel_hi:[1,1]")
    for d in range(0, 18, 2):
        for h in range(2): I("v_pk_mul_f32", el(d + h)[0], el(d + h)[0], rr, mods=el(d + h)[1])
        for h in range(2): I("v_cvt_pk_bf16_f32", out18[d + h], el(d + h)[0][0], el(d + h)[0][1])

ACC = [v(64 + 20 * p, 20) for p in range(2)]
def cv(p):
    I("v_cndmask_b32", ACC[p][16], ACC[p][16], ACC[p][18], sODD)
    I("v_cndmask_b32", ACC[p][17], ACC[p][17], ACC[p][19], sODD)
    for i in range(9): I("v_cvt_pk_bf16_f32", KB[p][i], ACC[p][2 * i], ACC[p][2 * i + 1])

def chase(body, groups):
    out = []; groups = list(groups)
    lastdef = {}
    for i, x in enumerate(body):
        if isinstance(x, Ins):
            for r in x.defs: lastdef[r] = i
    pos = {}
    for g in groups:
        p_ = max([lastdef.get(r, -1) for x in g for r in x.uses] + [-1])
        pos.setdefault(p_, []).append(g)
    for g in pos.get(-1, []): out += g
    for i, x in enumerate(body):
        out.append(x)
        for g in pos.get(i, []): out += g
    return out

def evenly(lst, groups, lo=0, hi=100):
    out = []; groups = list(groups); n = len(lst); m = len(groups)
    pos = [n * lo // 100 + (n * (hi - lo) // 100) * i // max(1, m) for i in range(m)]
    for i, x in enumerate(lst):
        out.append(x)
        while groups and pos[0] <= i:
            out += groups.pop(0); pos.pop(0)
    for g in groups: out += g
    return out

def feature_map(path, tag, cv_done, shadow, mid0, mid1, after_p):
    if path == "B":
        def mm(p):
            for j in range(3):
                for t in range(5):
                    mfma(ACK[p][t], PHIF(t, j), KB[p][4 * j:4 * j + 4], 0 if j == 0 else ACK[p][t])
        body = [] if cv_done else cap(lambda: cv(0))
        sh = ([] if cv_done else singles(cap(lambda: cv(1)))) + list(shadow)
        head0 = singles(cap(lambda: sm_head(ACC[0][0:18], TMP)))
        ms = cap(lambda: (mm(0), mm(1)))
        for i, x in enumerate(ms):
            body.append(x)
            if i == 19: sh = head0 + sh
            k = 0
            while sh and k < 2:
                g = sh.pop(0); body += g; k += len(g)
        for g in sh: body += g
        body += cap(lambda: fst(tag + "mm"))
        body += evenly(cap(lambda: sm_tail(ACC[0][0:18], PH[0][0:18], TMP)), *mid0)
        body += cap(lambda: fst(tag + "t0"))
        t1 = cap(lambda: (sm_head(ACC[1][0:18], TMP), sm_tail(ACC[1][0:18], PH[1][0:18], TMP)))
        t1 = evenly(t1, after_p(0), 2, 66)
        t1 = evenly(t1, *mid1)
        body += chase(t1, after_p(1))
    else:
        def pa(p):
            x = ACC[p]
            if not cv_done:
                I("v_cndmask_b32", x[16], x[16], x[18], sODD); I("v_cndmask_b32", x[17], x[17], x[19], sODD)
            for i in range(0, 18, 2): I("v_pk_mul_f32", TMP[i:i + 2], x[i:i + 2], sC)
            for d in range(9):
                for i in (2 * d, 2 * d + 1):
                    I("v_exp_f32", TMP[i], TMP[i], mods="clamp")
                    I("v_max_f32", x[i], 0, x[i])
                I("v_pk_add_f32", x[2 * d:2 * d + 2], x[2 * d:2 * d + 2], sEPS)
                I("v_pk_add_f32", x[2 * d:2 * d + 2], x[2 * d:2 * d + 2], TMP[2 * d:2 * d + 2])
                I("v_cvt_pk_bf16_f32", KB[p][d], x[2 * d], x[2 * d + 1])
        body = []
        for g in shadow: body += g
        body += cap(lambda: fst(tag + "mm"))
        body += chase(evenly(cap(lambda: pa(0)), *mid0), after_p(0))
        body += cap(lambda: fst(tag + "t0"))
        t1 = cap(lambda: pa(1))
        t1 = evenly(t1, *mid1)
        body += chase(t1, after_p(1))
    P.put(body)
    fst(tag + "t1")

def umax(dst, regs):
    regs = list(regs)
    I("v_max3_u32", dst, regs[0], regs[1], regs[2]); regs = regs[3:]
    while len(regs) >= 2:
        I("v_max3_u32", dst, dst, regs[0], regs[1]); regs = regs[2:]
    if regs: I("v_max_u32", dst, dst, regs[0])

SLOW = []
def check_or_retry(tag, fold, cmp_bad, loads):
    g = singles(cap(fold))
    def test():
        cmp_bad()
        I("s_cbranch_vccnz", "L_slow_" + tag)
        P.label("L_back_" + tag)
    g.append(cap(test))
    def slow():
        P.label("L_slow_" + tag)
        I("s_mov_b32", sCNT, 0)
        P.label("L_sp_" + tag)
        if OPT["stamps"] and not OPT["lite"]: I("s_add_u32", s(3), s(3), {"r": 1, "a": 0x100, "o": 0x10000}[tag[0]] if not tag.startswith("rf") else 0x1000000)
        loads()
        wait(vm=0)
        fold()
        cmp_bad()
        I("s_add_u32", sCNT, sCNT, 1)
        I("s_cmp_gt_u32", sCNT, SPIN)
        I("s_cbranch_scc1", "L_back_" + tag)
        I("s_cbranch_vccnz", "L_sp_" + tag)
        I("s_branch", "L_back_" + tag)
    SLOW.append(cap(slow))
    return g
def check_sent(tag, chk, regs, loads):
    return check_or_retry(tag, lambda: umax(chk, regs), lambda: I("v_cmp_eq_u32", "vcc", -1, chk), loads)
def check_tag(tag, chk, regs, loads):
    def fold():
        for r in regs: I("v_xor_b32", r, sTAG, r)
        I("v_or3_b32", chk, regs[0], regs[1], regs[2])
        for i in range(3, len(regs) - 1, 2): I("v_or3_b32", chk, chk, regs[i], regs[i + 1])
        I("v_or_b32", chk, chk, regs[-1])
        I("v_and_b32", chk, 0xff, chk)
    return check_or_retry(tag, fold, lambda: I("v_cmp_ne_u32", "vcc", 0, chk), loads)

def build():
    I("s_cmp_ge_u32", s(2), 256)
    I("s_cbranch_scc1", "L_end")
    if OPT["swap07"]:
        I("s_add_u32", sT0, s(2), 1); I("s_and_b32", sT0, sT0, 6)
        I("s_cselect_b32", sT0, 0, 7)
        I("s_xor_b32", s(2), s(2), sT0)
    I("s_bfe_u32", sA, s(2), 0x10002)
    I("s_cmp_lg_u32", sA, 0)
    I("s_cselect_b32", sT0, 0, 24)
    I("s_cselect_b32", sT1, 8, 32)
    I("s_cselect_b32", sT2, 16, 48)
    I("s_load_dwordx2", SX[0:2], s(0, 2), sT0)
    I("s_load_dwordx2", SW[0:2], s(0, 2), sT1)
    I("s_load_dwordx2", SWO[0:2], s(0, 2), sT2)
    I("s_load_dwordx2", SPHI[0:2], s(0, 2), 40)
    I("s_load_dwordx2", SOUT[0:2], s(0, 2), 56)
    I("s_load_dwordx2", SWS[0:2], s(0, 2), 72)
    I("s_getpc_b64", sPC)
    I("s_and_b32", sT0, s(2), 0xf8)
    I("v_lshrrev_b32", T[0], 5, v(0))
    I("v_add_lshl_u32", T[1], T[0], sT0, 7)
    I("s_cmp_ge_u32", sT0, "HEAD_LINES")
    I("s_cselect_b32", sT1, sA, 0)
    I("s_mul_i32", sT1, sT1, "A_SHIFT")
    I("v_add_u32", T[1], sT1, T[1])
    I("v_min_u32", T[1], "CODE_SPAN", T[1])
    I("global_load_dword", v(255), T[1], sPC)
    if OPT["stamps"]:
        I("s_memtime", s(98, 2)); I("s_memrealtime", s(96, 2))
        if OPT["fine"]: I("s_mov_b32", s(3), 0)
    I("v_readfirstlane_b32", sWV, T[0])
    I("v_and_b32", vL, 63, v(0))
    I("s_and_b32", sT0, s(2), 3)
    I("s_lshr_b32", sT1, s(2), 6)
    I("s_lshr_b32", sWV, sWV, 1)
    I("s_lshl2_add_u32", sRT, sT0, sT1)
    I("s_bfe_u32", sG, s(2), 0x30003)
    if OPT["perm"]:
        K, tab = PERMS[OPT["perm"]]
        if OPT["xsh"]: I("s_mul_i32", sXSH, sT0, OPT["xsh"])
        if K == 8:
            I("s_lshl1_add_u32", sT0, sT1, sG); I("s_and_b32", sT0, sT0, 7)
        elif K == 4:
            I("s_add_u32", sT0, sG, sT1); I("s_and_b32", sT0, sT0, 3)
        else:
            I("s_add_u32", sT0, sG, sT1); I("s_mul_i32", sT1, sT0, 86); I("s_lshr_b32", sT1, sT1, 8)
            I("s_mul_i32", sT1, sT1, 3); I("s_sub_u32", sT0, sT0, sT1)
        lo = [sum(p[i] << (4 * i) for i in range(8)) for p in tab]
        I("s_mov_b32", sPM[0], lo[0])
        for k_ in range(1, K):
            I("s_cmp_eq_u32", sT0, k_); I("s_cselect_b32", sPM[0], lo[k_], sPM[0])
        I("s_lshl_b32", sT0, sT0, 2)
        I("s_lshr_b32", sPM[1], sum(p[8] << (4 * k_) for k_, p in enumerate(tab)), sT0)
        I("s_and_b32", sPM[1], sPM[1], 15)
        I("s_lshl_b32", sT0, sWV, 1); I("s_and_b32", sT0, sT0, 4)
        I("s_lshr_b64", sPQ, sPM, sT0)
        I("s_mov_b32", sROT, 0)
    elif OPT["nphase"] == 7:
        I("s_add_u32", sT1, sG, sT1)
        I("s_and_b32", sT1, sT1, 1)
        I("s_lshl2_add_u32", sROT, sT1, sT0)
        I("s_add_u32", sROT, sROT, sT1)
    elif OPT["nphase"] in (3, 6):
        if OPT["nphase"] == 6:
            I("s_cmp_eq_u32", sT0, 3); I("s_cselect_b32", sT2, 1, sT0)
        I("s_add_u32", sT0, sG, sT1)
        I("s_mul_i32", sT1, sT0, 86)
        I("s_lshr_b32", sT1, sT1, 8)
        I("s_mul_i32", sT1, sT1, 3)
        I("s_sub_u32", sT0, sT0, sT1)
        I("s_mul_i32", sROT, sT0, 3)
        if OPT["nphase"] == 6: I("s_add_u32", sROT, sROT, sT2)
    elif OPT["nphase"] == 4:
        I("s_add_u32", sT0, sG, sT1)
        I("s_and_b32", sT0, sT0, 3)
        I("s_lshl_b32", sROT, sT0, 1)
    elif OPT["nphase"] == 5:
        I("s_add_u32", sT0, sG, sT1)
        I("s_and_b32", sT0, sT0, 3)
        I("s_mul_i32", sT0, sT0, 5)
        I("s_lshr_b32", sROT, sT0, 1)
    elif OPT["nphase"] == 8:
        I("s_lshl1_add_u32", sT0, sT1, sG)
        I("s_and_b32", sROT, sT0, 7)
    elif OPT["nphase"] == 2:
        I("s_add_u32", sT0, sG, sT1)
        I("s_and_b32", sT0, sT0, 1)
        I("s_lshl_b32", sROT, sT0, 2)
    else:
        I("s_mov_b32", sROT, 0)
    I("s_lshl2_add_u32", sSL, sRT, sWV)
    I("s_mul_i32", sOX, sSL, 32 * 1152)
    I("s_lshl_b32", sT0, sROT, 7)
    I("s_add_u32", sOX, sOX, sT0)
    I("s_lshl_b32", sMX, sWV, 12)
    I("s_mul_i32", sMQ, sWV, 4608)
    I("s_add_u32", sMW, sMQ, WSL)
    I("s_movk_i32", s1152, 1152)
    I("v_lshrrev_b32", T[0], 3, vL)
    I("v_mul_u32_u24", T[0], s1152, T[0])
    I("v_lshrrev_b32", vGL, 4, vL)
    I("v_and_b32", T[1], 7, vL)
    I("v_xor_b32", T[1], T[1], vGL)
    I("v_lshl_add_u32", vOX[0], T[1], 4, T[0])
    I("v_xor_b32", vOX[1], 64, vOX[0])
    I("v_add_u32", vOX[2], 16 * 1152 - 2048, vOX[0])
    I("v_add_u32", vOX[3], 24 * 1152 - 3072, vOX[1])
    I("v_add_u32", vOX[1], 8 * 1152 - 1024, vOX[1])
    I("s_mov_b32", SX[2], 2048 * 1152); I("s_mov_b32", SX[3], 0x20000)
    I("s_mov_b32", SW[2], 576 * 3456); I("s_mov_b32", SW[3], 0x20000)
    I("s_mul_i32", sL3, sG, 144)
    I("s_lshl2_add_u32", sT0, sROT, sWV)
    I("s_mul_i32", sOW, sT0, 16 * 3456)
    I("s_add_u32", sOW, sOW, sL3)
    I("s_add_u32", sOW, sOW, s1152)
    if OPT["perm"]:
        I("s_mov_b32", sXB0, sOX); I("s_mov_b32", sWB0, sOW)
        emit_groups(perm_next())
    I("s_movk_i32", sL0, 3456); I("s_movk_i32", sL1, -144)
    I("v_lshlrev_b32", vL16, 4, vL)
    I("v_mul_u32_u24", vM, 7282, vL)
    DR = [v(64 + i) for i in range(5)]; DP = [v(70 + i) for i in range(5)]; DC = [v(76 + i) for i in range(5)]
    for i in range(5):
        t = vM
        if i:
            I("v_add_u32", T[0], Q0[i] * 7282, vM); t = T[0]
        I("v_lshrrev_b32", T[1], 16, t)
        I("v_lshrrev_b32", DR[i], 17, t)
        I("v_and_b32", DP[i], 1, T[1])
        I("v_mad_i32_i24", DC[i], T[1], sL1, vL16)
        if i == 2:
            I("v_lshrrev_b32", T[2], 1, DR[i]); I("v_and_b32", T[2], 4, T[2]); I("v_xor_b32", DR[i], DR[i], T[2])
        elif i > 2:
            I("v_xor_b32", DR[i], 4, DR[i])
        I("v_mad_u32_u24", T[2], DR[i], sL0, DC[i])
        I("v_mad_u32_u24", vOW[i], DP[i], s1152, T[2])
    for r_, z_ in ((SWO, 576 * 1152), (SPHI, 32 * 648), (SOUT, 2048 * 2304), (SWS, WS_BYTES)):
        I("s_mov_b32", r_[2], z_); I("s_mov_b32", r_[3], 0x20000)
    I("v_lshlrev_b32", vL4, 2, vL)
    I("s_lshl2_add_u32", sT2, sG, sWV); I("s_mul_i32", sT2, sT2, 648)
    I("s_lshl3_add_u32", sL2, sA, sG)
    I("s_lshl_b32", sAG, sL2, 14); I("s_add_u32", sAG, sAG, WS_F)
    I("s_sub_u32", sT0, 2, sA)
    I("s_min_u32", sT1, sWV, sT0); I("s_mul_i32", sT3, sRT, sT0); I("s_add_u32", sT3, sT3, sRT); I("s_add_u32", sRSB, sT1, sT3)
    I("s_lshl_b32", sT1, sRSB, 8); I("s_add_u32", sFSL, sAG, sT1)
    I("s_cmp_gt_u32", sWV, sT0)
    I("s_cselect_b32", sFSL, OOB, sFSL)
    I("s_lshl3_add_u32", sT0, sA, 0); I("s_and_b32", sT1, sRSB, 7); I("s_or_b32", sT0, sT0, sT1)
    I("s_cmp_eq_u32", sT0, 15)
    I("s_cselect_b32", sFSL, OOB, sFSL)
    I("s_subb_u32", sRSB, sRSB, 0)
    I("v_and_b32", vN, 15, vL)
    I("v_and_b32", T[7], 1, vGL)
    I("v_lshlrev_b32", T[0], 2, vGL); I("v_lshl_add_u32", T[0], vN, 4, T[0])
    I("v_lshl_or_b32", vFS, T[7], 30, T[0])
    I("s_mul_i32", sT0, sSL, 32 * 2304)
    I("s_add_u32", sT0, sT0, sL3)
    I("s_xor_b32", sT1, sA, 1); I("s_mul_i32", sT1, sT1, 1152); I("s_add_u32", sOUTB, sT0, sT1)
    I("s_lshl_b32", sT0, sA, 6); I("s_add_u32", sT0, sT0, sSL)
    I("s_lshl_b32", sRF, sT0, 7); I("s_add_u32", sRF, sRF, WS_R)
    I("v_lshlrev_b32", T[1], 20, vL)
    I("v_mov_b32", T[2], 0)
    I("s_lshl_b32", sT0, sA, 7); I("s_add_u32", sT0, sT0, WS_E)
    wait(lgkm=0)
    fst("karg")
    emit_groups(x_dma(0))
    I("s_load_dword", sE, SWS[0:2], sT0)
    for i in range(3):
        I("buffer_load_dword", PW[i], vL4, SPHI, sT2, mods="offen offset:%d" % (256 * i))
    I("buffer_load_dword", v(255), T[2], SWS, sRF, mods="offen sc1")
    if OPT["touch"]:
        I("buffer_load_dword", v(255), T[1], SWS, 0, mods="offen")
        I("buffer_load_dword", v(255), T[2], SOUT, sOUTB, mods="offen")
        I("buffer_load_dword", v(255), T[2], SWO, sL3, mods="offen")
    emit_groups(w_dma(0))
    def xpf():
        I("s_lshl3_add_u32", sT0, sRT, sG); I("s_lshl2_add_u32", sT0, sT0, sWV); I("s_mul_i32", sT0, sT0, 4 * 1152)
        I("v_min_u32", T[1], 35, vL); I("v_lshlrev_b32", T[1], 7, T[1])
        I("buffer_load_dword", v(255), T[1], SX, sT0, mods="offen")
    if OPT["pfx"] == 1: xpf()
    stamp("S0iss")
    I("s_mov_b32", sG144, sL3)
    I("v_lshrrev_b32", T[0], 1, vN)
    I("v_xor_b32", T[0], T[0], vGL)
    I("v_lshl_add_u32", T[1], vN, 7, sMX)
    I("v_lshl_add_u32", vXR[0], T[0], 4, T[1])
    I("v_xor_b32", vXR[1], 64, vXR[0])
    I("v_bfe_u32", vR, vL, 2, 2)
    I("v_and_b32", vC, 3, vL)
    I("v_lshl_add_u32", T[1], vGL, 3, vR)
    I("v_lshl_add_u32", T[2], T[7], 2, T[1])
    I("v_xor_b32", T[3], 4, T[2])
    I("s_movk_i32", sT0, 288); I("v_mov_b32", T[4], WSL)
    I("v_mad_u32_u24", T[2], T[2], sT0, T[4]); I("v_mad_u32_u24", T[3], T[3], sT0, T[4])
    I("v_mul_u32_u24", T[0], 40, vC)
    I("v_lshrrev_b32", T[1], 1, vC)
    I("v_add_u32", vTR[0][0], T[2], T[0]); I("v_add_u32", vTR[0][1], T[3], T[0])
    I("v_lshlrev_b32", T[6], 5, T[1]); I("v_sub_u32", T[6], T[0], T[6])
    I("v_add3_u32", vTR[1][0], T[2], T[6], 24); I("v_add3_u32", vTR[1][1], T[3], T[6], 24)
    I("v_mul_u32_u24", T[6], 72, T[1])
    I("v_add3_u32", vTR[2][0], T[2], T[6], 32); I("v_add3_u32", vTR[2][1], T[3], T[6], 32)
    I("v_lshl_add_u32", vTR[3][0], vC, 3, T[2]); I("v_lshl_add_u32", vTR[3][1], vC, 3, T[3])
    I("v_and_b32", T[6], 1, vC); I("v_mul_u32_u24", T[6], 72, T[6])
    I("v_add3_u32", vTR[4][0], T[2], T[6], 32); I("v_add3_u32", vTR[4][1], T[3], T[6], 32)
    I("s_mov_b32", sT0, 32 * 3456 - 1152); I("s_movk_i32", sT1, 72)
    for i in range(5):
        I("v_mad_u32_u24", vOQ[i], DP[i], sT0, vOW[i])
        I("v_lshl_add_u32", T[0], DP[i], 3, DR[i])
        I("v_and_b32", T[3], 1, DR[i])
        if i == 2:
            I("v_lshrrev_b32", T[1], 3, DR[i])
            I("v_mad_u32_u24", T[0], T[1], 12, T[0])
            I("v_lshl_add_u32", T[3], T[1], 1, T[3])
        elif i > 2:
            I("v_add_u32", T[0], 12, T[0])
        I("v_mad_u32_u24", vOO[i], T[0], s1152, DC[i])
        I("v_bfe_u32", T[2], DR[i], 1, 2)
        I("v_lshl_add_u32", T[2], DP[i], 2, T[2])
        I("v_add_u32", T[2], sG, T[2]); I("v_and_b32", T[2], 7, T[2])
        I("v_add_u32", T[3], 18 if i > 2 else 16, T[3])
        I("v_mad_u32_u24", T[2], T[2], sT1, T[3])
        I("v_mad_u32_u24", vO8[i], T[2], s1152, DC[i])
    for i in range(4): I("v_mov_b32", v(84 + i), 0)
    I("s_mul_i32", sT1, sWV, 384); I("s_add_u32", sT1, sT1, ZERO)
    I("v_min_u32", T[0], 23 * 16, vL16); I("v_add_u32", T[0], sT1, T[0])
    I("ds_write_b128", T[0], v(84, 4))
    I("s_mul_i32", sT0, sWV, 960); I("s_add_u32", sT0, sT0, PHI)
    for i in range(3):
        t = vM
        if i:
            I("v_add_u32", T[0], 64 * i * 7282, vM); t = T[0]
        I("v_lshrrev_b32", T[0], 16, t); I("v_add_u32", T[0], T[0], vL)
        I("v_lshl_add_u32", PA[i], T[0], 2, sT0)
    I("v_cmp_eq_u32", "vcc", vC, vGL)
    I("v_mul_u32_u24", T[0], 40, vR)
    I("v_mul_u32_u24", T[1], 1040, vGL)
    I("v_mov_b32", T[3], ZERO)
    I("v_add3_u32", T[1], T[1], T[0], T[3])
    I("v_add_u32", T[2], (PHI - ZERO) & 0xffffffff, T[1])
    I("v_cndmask_b32", vPH[0], T[3], T[2], "vcc")
    I("v_lshrrev_b32", T[4], 1, vGL); I("v_mul_u32_u24", T[4], 640, T[4])
    I("v_sub_u32", T[2], T[2], T[4]); I("v_add_u32", T[2], 480, T[2])
    I("v_cndmask_b32", vPH[1], T[3], T[2], "vcc")
    I("v_mul_u32_u24", T[1], 1920, vGL); I("v_add_u32", T[1], T[1], T[0]); I("v_add_u32", T[2], KVI, T[1])
    I("v_cndmask_b32", vPSA, T[3], T[2], "vcc")
    I("v_mul_u32_u24", T[1], 960, vGL); I("v_mul_u32_u24", T[4], 640, T[7])
    I("v_sub_u32", T[1], T[1], T[4]); I("v_add_u32", T[1], T[1], T[0]); I("v_add_u32", T[1], PHI + 640, T[1])
    I("v_cndmask_b32", T[1], T[3], T[1], "vcc")
    I("v_cmp_gt_u32", "vcc", 2, vR)
    I("s_mul_i32", sPME, sL2, PGRP)
    I("s_lshl_b32", sRSB, sRSB, 12)
    I("v_cndmask_b32", vPH[2], T[3], T[1], "vcc")
    I("s_add_u32", sRSB, sRSB, sPME)
    stamp("P1")
    if OPT["pfx"] == 2: xpf()
    emit_groups(stage_dma(1))
    stamp("S1iss")
    def touch_round(r):
        I("s_lshl2_add_u32", sCNT, sA, sWV)
        I("s_mov_b64", "exec", 0)
        for k_ in range(7):
            I("s_cmp_eq_u32", sCNT, k_)
            I("s_cbranch_scc1", "L_th%s%d%d" % ("BA"[k_ // 4], r, k_ % 4))
        I("s_branch", "L_thA%d3" % r)
        P.label("L_tret%d" % r)
        I("s_mov_b64", "exec", -1)
    if OPT["itouch"]:
        P.touch = {"L_tailA"}; P.rounds = 2

    def late():
        I("s_and_b32", sL0, sWV, 1); I("s_lshr_b32", sL1, sWV, 1)
        I("s_mul_i32", sL2, sL0, 16 * 3456); I("s_add_u32", sL2, sL2, sG144)
        I("s_add_u32", sQE, sL2, 0 if OPT["perm"] else 9 * WSTEP)
        I("s_add_u32", sL3, sL1, sROT)
        if OPT["nphase"] in (6, 7):
            I("s_add_u32", sOQ, sL3, 7); I("s_lshr_b32", sOQ, sOQ, 4); I("s_mul_i32", sOQ, sOQ, 9); I("s_sub_u32", sL3, sL3, sOQ)
        I("s_mul_i32", sL3, sL3, WSTEP); I("s_add_u32", sOQ, sL3, sL2)
        I("s_mul_i32", sO8, sL0, 36 * 1152); I("s_add_u32", sO8, sO8, sG144)
        I("s_add_u32", sOE, sO8, 8 * 82944)
        I("s_add_u32", sL3, sL1, sG); I("s_and_b32", sL3, sL3, 7); I("s_mul_i32", sL3, sL3, 82944); I("s_add_u32", sOO, sL3, sO8)
        I("s_mov_b32", sC[0], f2u(LOG2E)); I("s_mov_b32", sC[1], f2u(LOG2E))
        I("s_mov_b32", sEPS[0], f2u(1e-6)); I("s_mov_b32", sEPS[1], f2u(1e-6))
        I("s_mov_b32", sODD[0], 0xffff0000); I("s_mov_b32", sODD[1], 0xffff0000)
        I("s_add_u32", sE, sE, 1); I("s_and_b32", sTAG, sE, 0xff); I("s_mov_b32", sMSK, 0xffffff00)
        I("s_getreg_b32", sL0, "hwreg(HW_REG_XCC_ID, 0, 4)")
        I("s_lshl4_add_u32", sRV, sE, sL0)
        for i in range(4): I("v_mov_b32", M1[i], -1)
        I("s_sub_u32", sL2, 3, sA); I("s_mul_i32", sL2, sL2, sWV)
        I("s_lshl_b32", sL1, sL2, 14); I("s_add_u32", sPME, sPME, sL1)
        I("s_lshl_b32", sL1, sRT, 8); I("s_add_u32", sPME, sPME, sL1)
        I("s_lshl_b32", sL1, sL2, 10); I("s_add_u32", sAG, sAG, sL1)
        I("s_lshr_b32", sL1, sWV, 1)
        I("s_mul_i32", sQ8, sL1, 0x40000000); I("s_mul_i32", sM8, sL1, 100000); I("s_add_u32", sM8, sM8, sMQ)
        I("s_lshl_b32", sL0, sA, 6); I("s_add_u32", sL0, sL0, sSL)
        I("s_mul_i32", sOB, sL0, 8 * 4608); I("s_add_u32", sOB, sOB, WS_O)
        I("s_lshl_b32", sL0, sG144, 5); I("s_add_u32", sOU[0], sL0, sOB)
        I("v_add_u32", vL4, 4096, vL4)
        I("v_lshl_add_u32", T[0], vGL, 2, vR)
        I("v_mul_u32_u24", T[0], 72, T[0])
        I("s_lshl_b32", sL0, sMQ, 1)
        I("v_add_u32", vKB2, sL0, T[0])
        I("v_lshl_add_u32", vKB0, vC, 3, vKB2)
        for p in range(2):
            for i in (9, 10, 11): I("v_mov_b32", KB[p][i], 0)
            for i in (18, 19): I("v_mov_b32", PH[p][i], 0)
        I("v_mul_u32_u24", T[0], 9216, vGL)
        I("v_mul_u32_u24", T[1], 72, vN)
        I("s_lshr_b32", sL0, sMQ, 1)
        I("v_add3_u32", vIW, T[0], T[1], sL0)
        I("s_mul_i32", sL0, sWV, 5120); I("s_add_u32", sL0, sL0, VF)
        I("v_add_u32", vVW, sL0, vL16)
        I("s_lshl_b32", sL0, sWV, 10); I("s_add_u32", sL0, sL0, VF)
        I("v_add_u32", vAM, sL0, vL16)
        I("s_lshl_b32", sL0, sWV, 1)
        I("v_cmp_gt_u32", "vcc", 2, vN)
        I("v_add_u32", T[3], sL0, vN)
        I("v_lshlrev_b32", T[0], 4, vN); I("v_lshl_add_u32", vP1, vGL, 12, T[0])
        I("v_cndmask_b32", T[3], 8, T[3], "vcc")
        I("v_lshl_add_u32", T[3], vGL, 4, T[3])
        I("v_lshlrev_b32", T[3], 4, T[3]); I("v_add_u32", vAL, VF + 4096, T[3])
        I("v_cmp_gt_u32", "vcc", 4, vN)
        I("v_mov_b32", T[4], OOB)
        I("v_lshl_add_u32", T[0], vGL, 2, vN); I("v_lshlrev_b32", T[0], 4, T[0])
        I("v_cndmask_b32", vP2, T[4], T[0], "vcc")
        I("v_cmp_gt_u32", "vcc", 16, vL)
        I("s_mul_i32", sL1, sWV, 1920); I("s_add_u32", sL1, sL1, KVI)
        I("v_cndmask_b32", vP3, T[4], vL16, "vcc")
        I("v_mul_u32_u24", T[1], 40, vN); I("v_lshl_add_u32", T[1], vGL, 3, T[1])
        I("v_add_u32", vAG1, sL1, T[1])
        I("v_mul_u32_u24", T[2], 40, vC); I("v_lshrrev_b32", T[3], 2, vL)
        I("s_lshr_b32", sL0, 32 * 40, sA)
        I("v_lshl_add_u32", T[2], T[3], 3, T[2]); I("v_add_u32", T[2], sL0, T[2])
        I("v_mul_u32_u24", T[3], 40, vL); I("v_add_u32", T[3], (32 - 16 * 40) & 0xffffffff, T[3])
        I("v_cndmask_b32", T[2], T[3], T[2], "vcc"); I("v_add_u32", vAG2, sL1, T[2])
        for t in range(5):
            I("v_accvgpr_write_b32", PHIF(t, 2)[2], 0); I("v_accvgpr_write_b32", PHIF(t, 2)[3], 0)
    lt = singles(cap(late))

    wait_vm("S0", lgkm=0)
    I("s_barrier")
    stamp("S0land")
    pipe = Pipe(dist=4)
    RT = list(range(-4, 10)) + [10, 10, 11, 11, 12, 12]
    fill = []
    for j in range(9):
        slot = j % 3
        order = [(kap, T_) for kap in range(2) for T_ in range(10)]
        if j == 8: order = [(kap, T_) for T0 in (0, 5) for kap in range(2) for T_ in range(T0, T0 + 5)]
        seen = set()
        for m, (kap, T_) in enumerate(order):
            ks = 2 * j + kap
            ring = RING[(20 * j + m) % 8]
            def rd():
                if kap not in seen:
                    seen.add(kap)
                    for p in range(2):
                        I("ds_read_b128", XF(ks, p), vXR[kap], mods="offset:%d" % (slot * XSLOT + p * 2048))
                tile_read(ring, T_, slot * WSLOT + kap * 9216)
            def work():
                for p in range(2):
                    if T_ < 5: mfma(ACK[p][T_], ring, XF(ks, p), 0 if ks == 0 else ACK[p][T_])
                    else: mfma(ACV[p][T_ - 5], XF(ks, p), ring, 0 if ks == 0 else ACV[p][T_ - 5])
            pipe.add(rd, work, rt=20 * j + RT[m])
        def hook():
            if OPT["itouch"] and 20 * j + 16 == OPT["t0"]: touch_round(0)
            if OPT["itouch"] and 20 * j + 16 == OPT["t1"]: touch_round(1)
            if j < 8: wait_vm("S%d" % (j + 1), lgkm=0)
            else: wait(lgkm=0)
            I("s_barrier")
            if OPT["p1st"]: stamp("b%d" % (j + 1))
        pipe.hooks[20 * j + 16] = cap(hook)
        t0 = max(0, 20 * j - 4)
        if j + 2 < 9: fill += spread(stage_dma(j + 2), t0, 20 * j + 13)
        elif j == 7: fill += spread(wq_pair_dma(0) + wq_pair_dma(2), t0 + 2, 20 * j + 36)
    if OPT["pfq"]:
        fill += at(OPT["pfq"], singles(cap(lambda: prefetch("wq"))))
    if OPT["pfo"] > 1:
        fill += at(OPT["pfo"], singles(cap(lambda: prefetch("wo"))))
    fill.sort(key=lambda t: t[0])
    phw = singles(cap(lambda: [I("ds_write_b32", PA[i], PW[i], mods="offset:%d" % (256 * i)) for i in range(3)]))
    def phir():
        for t in range(5):
            for tp in range(5):
                ad, o = (vPH[0], 160 * tp) if tp < 3 else (vPH[tp - 2], 0)
                tr(PHIF(t, tp // 2)[2 * (tp & 1):2 * (tp & 1) + 2], ad, 8 * t + o)
    phr = singles(cap(phir))
    nl = len(lt)
    bulk = spread(lt[:8], -1, -1) + spread(lt[8:30], 0, 24) + spread(phw, 24, 30) + spread(lt[30:40], 30, 42)
    bulk += spread(phr, 42, 80) + spread(lt[40:], 80, 150)
    bulk += spread(singles(cap(lambda: (cv(0), cv(1)))), 178, 180)
    pipe.emit(fill, bulk)
    stamp("pass1")

    I("s_cmp_lg_u32", sA, 0)
    I("s_cbranch_scc1", "L_tailA")
    P.label("L_tailB")
    names0 = list(stamp_names); mute0 = OPT.get("mute")
    P.put(mark(cap(lambda: tail("B")), path="B"))
    P.label("L_end")
    P.label("L_notouchB")
    I("s_endpgm")
    for sl in SLOW: P.put(mark(sl, path="B"))
    del SLOW[:]
    stamp_names[:] = names0; OPT["mute"] = mute0
    P.raw(".p2align 7")
    P.label("L_dotouch")
    P.label("L_tailA")
    P.put(mark(cap(lambda: (I("s_nop", 7), tail("A"))), path="A"))
    P.label("L_notouchA")
    I("s_endpgm")
    for sl in SLOW: P.put(mark(sl, path="A"))
    P.label("L_last")

def prefetch(kind):
    I("s_lshr_b32", sT2, s(2), 3); I("s_lshl2_add_u32", sT2, sT2, sWV); I("s_mul_i32", sT2, sT2, 81); I("s_lshr_b32", sT2, sT2, 1)
    I("v_min_u32", T[5], 40, vL); I("v_add_u32", T[5], sT2, T[5])
    if kind == "wo":
        I("v_lshlrev_b32", T[5], 7, T[5])
        I("buffer_load_dword", v(255), T[5], SWO, 0, mods="offen")
    else:
        I("v_mul_u32_u24", T[6], 7282, T[5]); I("v_lshrrev_b32", T[6], 16, T[6])
        I("v_mul_u32_u24", T[6], 18, T[6]); I("v_add_lshl_u32", T[5], T[5], T[6], 7)
        I("buffer_load_dword", v(255), T[5], SW, 0, mods="offen")

def rebase(delta):
    for pat in range(3):
        for e in range(2):
            I("v_add_u32", vTR[pat][e], delta & 0xffffffff, vTR[pat][e])

def tail(path):
    B = path == "B"
    FT = [0, 1, 2] if B else [0, 2]
    PHI_ = PH if B else KB
    NJ = 5 if B else 3
    def poison():
        for i in range(4):
            I("buffer_store_dwordx4", M1, vL16, SWS, sOU[0], mods="offen offset:%d sc1" % (1024 * i))
        for i in range(2):
            I("buffer_store_dword", M1[0], vL4, SWS, sOU[0], mods="offen offset:%d sc1" % (256 * i))
    def vpack():
        I("v_cmp_eq_u32", "vcc", 8, vN)
        I("v_mov_b32", T[0], 0x3f803f80)
        for t in range(5):
            d = ACV[0][t]
            for p in range(2):
                for h in range(2):
                    I("v_cvt_pk_bf16_f32", d[2 * p + h], ACV[p][t][2 * h], ACV[p][t][2 * h + 1])
        for i in range(4): I("v_cndmask_b32", ACV[0][4][i], ACV[0][4][i], T[0], "vcc")
    def prewarm():
        I("v_min_u32", T[1], 35, vL); I("v_lshlrev_b32", T[1], 7, T[1])
        I("buffer_load_dword", v(255), T[1], SWS, sOU[0], mods="offen sc1")
    vp = singles(cap(vpack))
    w = singles(cap(lambda: [I("ds_write_b128", vVW, ACV[0][t], mods="offset:%d" % (1024 * t)) for t in range(5)]))
    q = tagged(singles(cap(poison)), "POIS")
    pwm = [cap(prewarm)] if OPT["pw"] else []
    pfo = [cap(lambda: prefetch("wo"))] if OPT["pfo"] == 1 else []
    q4, q6, q8 = vm_only(wq_pair_dma(4)), vm_only(wq_pair_dma(6)), vm_only(wq_pair_dma(8))
    if B:
        ksh = weave(q4[:4], vp); km0 = weave(q4[4:] + q6, w); km1 = q8 + pfo + q
        late_q = []
    else:
        ksh = weave(q4[:2], vp); km0 = weave(q4[2:] + q6[:3], w); km1 = q6[3:] + q8 + pfo + q
        late_q = []
    def kwrites(p):
        return singles(cap(lambda: [I("ds_write_b64", vIW, PHI_[p][2 * i:2 * i + 2], mods="offset:%d" % (IMG + p * 1152 + 8 * i)) for i in range(9 if B else 5)]))
    feature_map(path, "k", True, ksh, (km0, 2, 98), (km1, 0, 70 if B else 95), kwrites)
    wait(lgkm=0)
    I("s_barrier")
    stamp("kpost")
    DM = [v(104 + 4 * j, 4) for j in range(3)]; DL = [v(116 + 4 * j, 4) for j in range(3)]
    pipe = Pipe(dist=3, grp=1)
    n = 0
    for j in FT:
        for src in range(4):
            AM, AL = v(64 + 8 * src, 4), v(68 + 8 * src, 4)
            BF = RING[n % 8]; n += 1
            def rd():
                if j == 0: I("ds_read_b128", AM, vAM, mods="offset:%d" % (src * 5120))
                for e in range(2):
                    tr(BF[2 * e:2 * e + 2], vKB0 if j < 2 else vKB2, IMG + src * 2304 + e * 1152 + (32 * j if (B or j < 2) else 32))
                if j == 0: I("ds_read_b128", AL, vAL, mods="offset:%d" % (src * 5120))
            def work():
                mfma(DM[j], AM, BF, 0 if src == 0 else DM[j])
                mfma(DL[j], AL, BF, 0 if src == 0 else DL[j])
            pipe.add(rd, work)
    SLM = {0: 0, 1: 4, 2: 8} if B else {0: 0, 2: 4}
    SLL = {0: 9, 1: 10, 2: 11} if B else {0: 5, 2: 6}
    def pstore(j):
        for D, ad, sl in ((DM[j], vP1 if j < 2 else vP2, SLM[j]), (DL[j], vP3, SLL[j])):
            if sl: I("s_add_u32", sT1, sPME, sl * 4096)
            for i in range(4): I("v_and_or_b32", D[i], D[i], sMSK, T[0])
            I("buffer_store_dwordx4", D, ad, SWS, sT1 if sl else sPME, mods="offen sc1")
    fill = at(1, singles(cap(lambda: (I("v_mov_b32", T[0], sTAG), rebase(WQ0 - WSL)))))
    for k_, j in enumerate(FT[:-1]): fill += spread(tagged(singles(cap(lambda: pstore(j))), "P"), 4 * k_ + 5, 4 * k_ + 8)
    pipe.emit(fill)
    fst("kvmm")
    pstore(FT[-1])
    stamp("pubP")
    wait_vm("WQ4")
    I("s_barrier")
    stamp("wqland")

    def gemm2(bfrag, offs, rebases, fill, nm, hooks={}):
        pipe = Pipe(dist=4)
        pipe.hooks = hooks
        n = 0
        for ks in range(18):
            for T_ in range(5):
                ring = RING[n % 8]; n += 1
                def rd():
                    if T_ == 0 and ks in rebases: rebase(rebases[ks])
                    tile_read(ring, T_, offs(ks))
                def work():
                    for p in range(2):
                        mfma(ACK[p][T_], ring, bfrag(ks, p), 0 if ks == 0 else ACK[p][T_])
                pipe.add(rd, work, (lambda: fst("%s%d" % (nm, ks))) if T_ == 0 else None)
        pipe.emit(fill)
    RS = v(128, 16)
    vCK = T[6]
    def rs_loads():
        for i in range(4):
            I("buffer_load_dwordx4", RS[4 * i:4 * i + 4], vL16, SWS, sRSB, mods="offen offset:%d sc1" % (1024 * i))
    def rs_reduce():
        for st in (8, 4):
            for i in range(st): I("v_add_f32", RS[i], RS[i], RS[i + st])
        I("v_permlane32_swap_b32", RS[0], RS[2]); I("v_permlane32_swap_b32", RS[1], RS[3])
        I("v_add_f32", RS[0], RS[0], RS[2]); I("v_add_f32", RS[1], RS[1], RS[3])
        I("v_mov_b32", RS[2], RS[0]); I("v_mov_b32", RS[3], RS[1])
        I("v_permlane16_swap_b32", RS[0], RS[2]); I("v_permlane16_swap_b32", RS[1], RS[3])
        I("v_add_f32", RS[0], RS[0], RS[2]); I("v_add_f32", RS[1], RS[1], RS[3])
        I("v_cvt_pk_bf16_f32", RS[0], RS[0], RS[1])
        I("v_mov_b32", RS[1], sE)
        I("buffer_store_dwordx2", RS[0:2], vFS, SWS, sFSL, mods="offen sc1")
    vRV, vRA = T[7], T[8]
    def rflag():
        I("v_mov_b32", vRV, sRV); I("s_lshl_b32", sT1, sG, 2); I("v_mov_b32", vRA, sT1)
        I("buffer_store_dword", vRV, vRA, SWS, sRF, mods="offen sc1")
    ra, rc = OPT["rs_at"], OPT["rs_chk"]
    if not B: ra -= OPT["dA"]; rc -= OPT["dA"]
    wo = [vm_only(wo_pair_dma(u)) for u in (0, 2, 4, 6)]
    wo.append(vm_only(singles(cap(lambda: I("s_add_u32", sO8, sO8, sQ8))) + tagged(dma5(vO8, SWO, sO8, sM8, WO6 + 2 * 9216), "WO8")))
    def ou():
        for u in range(1, 8):
            I("s_add_u32", sL0, sG, u); I("s_and_b32", sL0, sL0, 7)
            I("s_mul_i32", sL0, sL0, 4608); I("s_add_u32", sOU[u], sL0, sOB)
    fill = sorted(spread(wo.pop(0), 2, 26) + spread(singles(cap(ou)), 1, 28), key=lambda t: t[0]) + (at(28, singles(sum(pwm, []))) if OPT["pw"] == 1 else [])
    fill += spread(tagged(singles(cap(rs_loads)), "RS"), ra, ra + 4)
    fill += spread((pwm if OPT["pw"] == 4 else []) + wo.pop(0), ra + 4, ra + 20)
    wx = [] if B else spread(wo.pop(0), rc + 1, rc + OPT["rs_len"] - 6)
    chk = [cap(lambda: wait_vm("RS"))] + check_tag("rs" + path, vCK, [RS[i] for i in range(16)], rs_loads) + singles(cap(rs_reduce)) + singles(cap(rflag))
    fill += sorted(spread(chk, rc, rc + OPT["rs_len"]) + wx, key=lambda t: t[0])
    gemm2(XF, lambda ks: ((ks // 2) % 6) * 9216 + (ks & 1) * 144, {12: WQ6 - WQ0}, fill, "q", {54: cap(lambda: (wait_vm("WQ8"), I("s_barrier")))})
    stamp("qgemm")

    NAG = 3 if B else 2
    AG = v(104, 4 * NAG); RF = v(116)
    def ag_loads():
        for i in range(NAG):
            I("buffer_load_dwordx4", AG[4 * i:4 * i + 4], vL16 if (B or i == 0) else T[3], SWS, sAG, mods="offen offset:%d sc1" % (1024 * i))
    def ag_fold():
        I("v_xor_b32", vCK, sE, AG[1])
        for i in range(3, 4 * NAG, 2): I("v_bitop3_b32", vCK, vCK, sE, AG[i], mods="bitop3:0xf6")
    def rf_load(): I("buffer_load_dword", RF, T[4], SWS, sRF, mods="offen sc1")
    def qsh():
        if not B: I("v_min_u32", T[3], 47 * 16, vL16)
        I("v_and_b32", T[4], 7, vL); I("v_lshlrev_b32", T[4], 2, T[4])
        rebase(WO0 - WQ6)
    fr = OPT["ag_frac"] if B else OPT["ag_fracA"]
    g = singles(cap(rf_load)) + tagged(singles(cap(ag_loads)), "AG") + (pwm if OPT["pw"] == 2 else [])
    lo = (fr - 50) * 2
    wc = wo.pop(0)
    if OPT["pw"] == 3: wc = pwm + wc
    wd = sum(wo, [])
    if B: feature_map(path, "q", False, weave(singles(cap(qsh)), wc[:3]), (wc[3:], 10, 60), (g + wd[:OPT["wdn"]], lo, 100), lambda p: [])
    else: feature_map(path, "q", False, singles(cap(qsh)), (wc[:3], 0, 100), (wc[3:] + g, 0, 100), lambda p: [])
    emit_groups(wd[OPT["wdn"] if B else 0:])
    stamp("qpost")
    for t in range(5):
        I("v_accvgpr_write_b32", PSIF(t, NJ - 1)[2], 0); I("v_accvgpr_write_b32", PSIF(t, NJ - 1)[3], 0)
    wait_vm("AG")
    fst("agw")
    emit_groups(check_or_retry("ag" + path, ag_fold, lambda: I("v_cmp_ne_u32", "vcc", 0, vCK), ag_loads))
    fst("agok")
    I("ds_write2_b32", vAG1, AG[0], AG[2], mods="offset0:0 offset1:1")
    if B: I("ds_write2_b32", vAG1, AG[4], AG[6], mods="offset0:160 offset1:161")
    I("ds_write2_b32", vAG2, AG[4 * NAG - 4], AG[4 * NAG - 2], mods="offset0:0 offset1:1")
    wait(lgkm=0)
    I("s_barrier")
    stamp("gotkv")

    pool = list(range(104, 144, 4)) + list(range(176, 256, 4)) + [12, 16, 28, 32, 36, 40]
    OF = {}
    keys = [(0, p, X) for X in range(2) for p in range(2)] + [("L", k, p) for k in range(2) for p in range(2)] + [(u, p, X) for u in range(1, 8) for p in range(2) for X in range(2)]
    for k_, r_ in zip(keys, pool): OF[k_] = v(r_, 4)
    o = ACC
    pipe = Pipe(dist=4)
    for t in (4, 0, 1, 2, 3):
        for j in range(NJ):
            def rd():
                tr(PSIF(t, j)[0:2], vPSA, 8 * t + 8 * j * 40)
                if j < NJ - 1: tr(PSIF(t, j)[2:4], vPSA, 8 * t + (8 * j + 4) * 40)
            def work():
                for p in range(2):
                    mfma(ACK[p][t], PSIF(t, j), PHI_[p][4 * j:4 * j + 4], 0 if j == 0 else ACK[p][t])
            pipe.add(rd, work)
    def ostore(key, flag=None):
        if flag is None: flag = ["", " sc1", " nt"][OPT["oflag"]]
        if key[0] == "L": I("buffer_store_dword", OF[key][0], vL4, SWS, sOU[0], mods="offen offset:%d%s" % (key[2] * 256, flag))
        else: I("buffer_store_dwordx4", OF[key], vL16, SWS, sOU[0], mods="offen offset:%d%s" % (key[1] * 2048 + key[2] * 1024, flag))
    def fin_den():
        for p in range(2): I("v_add_f32", o[p][18], sEPS[0], o[p][18])
        for p in range(2): I("v_rcp_f32", o[p][18], o[p][18])
        for p in range(2):
            for i in (16, 17): I("v_mul_f32", o[p][i], o[p][i], o[p][18])
        for p in range(2):
            I("v_cvt_pk_bf16_f32", OF[("L", 0, p)][0], o[p][16], o[p][17])
            ostore(("L", 0, p))
    def fin_tile(t, packed):
        for p in range(2):
            if packed:
                for i in (4 * t, 4 * t + 2): I("v_pk_mul_f32", o[p][i:i + 2], o[p][i:i + 2], o[p][18:20], mods="op_sel:[0,0] op_sel_hi:[1,0]")
            else:
                for i in range(4 * t, 4 * t + 4): I("v_mul_f32", o[p][i], o[p][i], o[p][18])
            for h in range(2):
                I("v_cvt_pk_bf16_f32", OF[(0, p, t // 2)][2 * (t & 1) + h], o[p][4 * t + 2 * h], o[p][4 * t + 2 * h + 1])
            if t & 1: ostore((0, p, t // 2))
    rfchk = check_or_retry("rf" + path, lambda: I("v_xor_b32", vCK, sRV, RF), lambda: I("v_cmp_lt_u32", "vcc", 15, vCK), rf_load)
    rfchk += [cap(lambda: I("v_cmp_ne_u32", s(50, 2), 0, vCK))]
    fill = at(0, rfchk)
    fill += spread(singles(cap(fin_den)), NJ + 2, 2 * NJ + 1)
    for t in range(3): fill += spread(singles(cap(lambda: fin_tile(t, False))), (2 + t) * NJ + 1 + (1 if B else 0), (3 + t) * NJ + 1)
    pipe.emit(fill)
    fst("omm")
    fin_tile(3, True)
    I("s_cmp_lg_u64", s(50, 2), 0)
    I("s_cbranch_scc1", "L_far" + path)
    P.label("L_near" + path)
    def far():
        P.label("L_far" + path)
        for key in keys[:4] + [("L", 0, 0), ("L", 0, 1)]: ostore(key, " sc1")
        wait(vm=0)
        I("buffer_store_dword", vRV, vRA, SWS, sRF, mods="offen offset:32 sc1")
        I("s_mov_b32", sCNT, 0)
        P.label("L_farp" + path)
        I("buffer_load_dword", vCK, T[4], SWS, sRF, mods="offen offset:32 sc1")
        wait(vm=0)
        I("v_xor_b32", vCK, sRV, vCK)
        I("v_cmp_lt_u32", "vcc", 15, vCK)
        I("s_add_u32", sCNT, sCNT, 1)
        I("s_cmp_gt_u32", sCNT, SPIN)
        I("s_cbranch_scc1", "L_near" + path)
        I("s_cbranch_vccnz", "L_farp" + path)
        I("s_branch", "L_near" + path)
    SLOW.append(cap(far))
    stamp("pubO")

    def oload(u):
        for X in (1, 0):
            for p in (1, 0):
                I("buffer_load_dwordx4", OF[(u, p, X)], vL16, SWS, sOU[u], mods="offen offset:%d sc1" % (p * 2048 + X * 1024))
        for p in range(2):
            I("buffer_load_dword", OF[("L", u // 4, p)][u % 4], vL4, SWS, sOU[u], mods="offen offset:%d sc1" % (p * 256))
    def bf(ks, p):
        if ks < 16: return OF[(ks // 2, p, ks & 1)]
        return OF[("L", ks - 16, p)]
    offs = lambda ks: ((ks // 2) % 6) * 9216 + (ks & 1) * 144
    vW1, vW2, vW3, vRD = vIW, vVW, vAM, vAL
    vST = [vP2, vPSA, vKB0, vKB2, vP1]
    def out_addr():
        I("s_add_u32", sT0, sMQ, OUTB)
        I("v_mul_u32_u24", T[0], 144, vN); I("v_add_u32", T[0], sT0, T[0])
        I("v_mul_u32_u24", T[1], 40, vGL); I("v_add_u32", vW1, T[0], T[1])
        I("v_lshrrev_b32", T[4], 1, vGL)
        I("v_lshlrev_b32", T[2], 5, T[4]); I("v_sub_u32", vW2, vW1, T[2])
        I("v_mul_u32_u24", T[3], 72, T[4]); I("v_add_u32", vW3, T[0], T[3])
        I("v_add_u32", vRD, sT0, vL16)
        I("s_movk_i32", sT1, 2304 - 144)
        for i in range(5):
            t = vM
            if i:
                I("v_add_u32", T[3], Q0[i] * 7282, vM); t = T[3]
            I("v_lshrrev_b32", T[0], 16, t)
            I("v_mad_u32_u24", vST[i], T[0], sT1, vL16)
    NPRE = OPT["npre"]
    wait_vm("WO8")
    I("s_barrier")
    stamp("ackO")
    I("s_mov_b32", sT2, 0)
    P.label("L_redo" + path)
    g = []
    for u in range(1, NPRE + 1): g += tagged(singles(cap(lambda: oload(u))), "O%d" % u)
    fill = spread(g, 0, 7)
    def ochk(u):
        regs = [OF[(u, 0, 1)][3], OF[(u, 1, 1)][3], OF[(u, 1, 0)][3]]
        return [cap(lambda: wait_vm("O%d" % u))] + check_sent("o%d%s" % (u, path), vCK, regs, lambda: oload(u))
    for u in range(0, 7):
        b0 = u * 10
        blk = spread(ochk(u + 1), b0 + 6, b0 + 6)
        if u and u + NPRE <= 7: blk += spread(tagged(singles(cap(lambda: oload(u + NPRE))), "O%d" % (u + NPRE)), b0, b0 + 10)
        fill += sorted(blk, key=lambda t: t[0])
    if OPT["wb"]:
        def wbk():
            I("s_or_b32", sT0, sG, sWV)
            I("s_cbranch_scc1", "L_nowb" + path)
            x = I("buffer_wbl2", mods="sc1"); x.cond = True
            P.label("L_nowb" + path)
        fill += [(OPT["wb"], cap(wbk))]
    fill += spread(singles(cap(out_addr)), 70, 88)
    gemm2(bf, offs, {12: WO6 - WO0}, fill, "o")
    stamp("ogemm")
    I("v_cmp_u_f32", "vcc", ACK[0][0][0], ACK[1][0][0])
    I("s_cbranch_vccnz", "L_again" + path)
    P.label("L_done" + path)
    def again():
        P.label("L_again" + path)
        I("s_add_u32", sT2, sT2, 1)
        I("s_cmp_gt_u32", sT2, 200)
        I("s_cbranch_scc1", "L_done" + path)
        rebase(WO0 - WO6)
        I("s_nop", 7)
        I("s_branch", "L_redo" + path)
    SLOW.append(cap(again))
    OUTR = v(104, 20)
    for p in range(2):
        for t in range(5):
            for h in range(2):
                I("v_cvt_pk_bf16_f32", OUTR[10 * p + 2 * t + h], ACK[p][t][2 * h], ACK[p][t][2 * h + 1])
            ad, off = (vW1, 8 * t) if t < 3 else ((vW2, 24) if t == 3 else (vW3, 32))
            I("ds_write_b64", ad, OUTR[10 * p + 2 * t:10 * p + 2 * t + 2], mods="offset:%d" % (off + p * 2304))
    OB = v(176, 20)
    for i in range(5):
        I("ds_read_b128", OB[4 * i:4 * i + 4], vRD, mods="offset:%d" % (16 * Q0[i]))
    fl = ["", " sc1", " nt", " sc0 sc1"][OPT["outflag"]]
    wait(lgkm=4)
    I("s_mov_b32", "exec_hi", 0)
    I("buffer_store_dwordx4", OB[0:4], vST[0], SOUT, sOUTB, mods="offen" + fl)
    I("s_mov_b32", "exec_hi", -1)
    for i in range(1, 5):
        wait(lgkm=4 - i)
        I("buffer_store_dwordx4", OB[4 * i:4 * i + 4], vST[i], SOUT, sOUTB, mods="offen offset:%d%s" % (16 * Q0[i], fl))
    I("s_or_b32", sT0, sSL, sG)
    I("s_cmp_lg_u32", sT0, 0)
    I("s_cbranch_scc1", "L_noep" + path)
    I("s_lshl_b32", sT0, sA, 7); I("s_add_u32", sT0, sT0, WS_E)
    I("v_mov_b32", T[0], 0); I("v_mov_b32", T[1], sE)
    I("buffer_store_dword", T[1], T[0], SWS, sT0, mods="offen")
    P.label("L_noep" + path)
    if OPT["stamps"]:
        stamp("stiss")
        if B: P.label("L_fin")
        OPT["mute"] = 0
        wait(vm=0)
        stamp("end")
        I("s_memrealtime", s(100, 2))
        wait(lgkm=0)
        if OPT["fine"]:
            for k, nm in enumerate(OPT["fine"].split(",")):
                stamp_names.append(nm); STAMPS[k] = s(4 + 2 * k)
        n = len(stamp_names)
        for k in range(n):
            if OPT["lite"] and k != OPT["amp"] and k != n - 1: continue
            assert OPT["lite"] or n <= 17
            I("s_sub_u32", STAMPS[k], STAMPS[k], s(96 if (OPT["lite"] == 2 or OPT["rt"]) else 98))
            I("v_mov_b32", v(64 + k), STAMPS[k])
        I("v_mov_b32", v(64 + 28), sT2); I("v_mov_b32", v(64 + 29), s(3))
        I("v_mov_b32", v(64 + 30), s(96)); I("v_mov_b32", v(64 + 31), s(100))
        I("s_lshl_b32", sT0, s(2), 2); I("s_add_u32", sT0, sT0, sWV); I("s_lshl_b32", sT0, sT0, 7); I("s_add_u32", sT0, sT0, WS_ST)
        I("v_mov_b32", T[0], 0)
        I("s_mov_b64", "exec", 1)
        for q in range(8):
            I("buffer_store_dwordx4", v(64 + 4 * q, 4), T[0], SWS, sT0, mods="offen offset:%d" % (16 * q))
        if OPT["amp"] >= 0 and OPT["ampsel"] in (0, 2 if B else 1):
            I("s_lshl_b32", sT2, STAMPS[OPT["amp"]], 3)
            I("s_add_u32", sT2, sT2, STAMPS[n - 1])
            P.label("L_amp" + path)
            I("s_memrealtime" if OPT["lite"] == 2 else "s_memtime", s(100, 2)); wait(lgkm=0)
            I("s_sub_u32", sT1, s(100), s(96 if OPT["lite"] == 2 else 98))
            I("s_cmp_lt_u32", sT1, sT2)
            I("s_cbranch_scc1", "L_amp" + path)

HEADER = open("cdna_kernels/%s.s.ref" % NAME).read().split("; Override launch")[0]

def wrap(body):
    txt = HEADER + "; @launch grid=(256,1,1) block=(256,1,1) lds=%d\n" % LDS_BYTES
    txt += "; stamps: %s\n" % ",".join(stamp_names) if stamp_names else ""
    txt += '.amdgcn_target "amdgcn-amd-amdhsa--gfx950"\n.text\n.globl %s_kernel\n.p2align 12\n.type %s_kernel,@function\n' % (NAME, NAME)
    txt += ".set CODE_SPAN, (L_last - %s_kernel - 128) & 0xffffff80\n" % NAME
    txt += ".set HEAD_LINES, ((L_tailB - %s_kernel) >> 7) + 8\n.set A_SHIFT, (L_tailA - L_tailB - 2048) & 0xffffff80\n" % NAME
    txt += "%s_kernel:\n%s\n" % (NAME, body)
    txt += """.section .rodata,"a"
.p2align 6
.amdhsa_kernel %s_kernel
  .amdhsa_next_free_vgpr 512
  .amdhsa_next_free_sgpr 102
  .amdhsa_accum_offset 256
  .amdhsa_group_segment_fixed_size 0
  .amdhsa_kernarg_size 80
  .amdhsa_user_sgpr_count 2
  .amdhsa_user_sgpr_kernarg_segment_ptr 1
  .amdhsa_system_sgpr_workgroup_id_x 1
.end_amdhsa_kernel
""" % NAME
    return txt

def main(out):
    build()
    txt = P.finalize2(wrap)
    open(out, "w").write(txt)
    print("wrote", out, "hazard nops:", P.nops, "align fixes:", P.fixes, "bytes:", P.bytes, "touch points:", P.points)

if __name__ == "__main__":
    out = sys.argv[1]
    for kv in sys.argv[2:]:
        k, val = kv.split("=")
        assert k in OPT, k
        OPT[k] = val if k in ("stop", "fine") else int(val)
    main(out)
```

```python
import sys, struct
from asmdsl import *

NAME = "concat_heads__linear_attn_block__linear_kernel_hedgehog__prompt"
OPT = dict(stamps=0, nphase=6, amp=-1, ampsel=0, lite=0, outflag=2, oflag=0, wb=0, rs_at=40, rs_chk=62, rs_len=27, ag_frac=56, ag_fracA=90, dA=4, npre=3, t0=16, t1=36, pw=0, pfo=0, pfq=0, wdn=8, pfx=0, perm=0, gord=1, xo=2, zv=1, s1m=0, ex=0, snake=0, pois0=0, j1=1, j2=1, j3=1, pf2=0, nowa=0, apo=168, apq=0, apx=0, npf=6, agc=86, agb=93, xsh=0, swap07=1,
           stop="", p1st=0, touch=1, fine="", itouch=1, rt=0)

def f2u(x): return struct.unpack("<I", struct.pack("<f", x))[0]
LOG2E = 1.4426950408889634

XSLOT = 16384
WSL = 49152; WSLOT = 18432
WQ0 = 104448
WQ6 = 76800
PHI = 104448
ZERO = 159744
IMG = 0
IR = 80
VF = 40960
KVI = 61440
WO0 = 0
WO6 = 104448
OUTB = 76800
LDS_BYTES = 163840
PGRP = 48 * 4096
WS_F = 0x300000; WS_E = 0x380000; WS_R = 0x390000; WS_O = 0x400000; WS_ST = 0x900000; WS_BYTES = 0xA00000
OOB = 0x7ffffff0
SPIN = 30000
Q0 = [0, 32, 96, 160, 224]
WSTEP = 64 * 3456

SX, SW, SWO, SWS, SOUT, SPHI = s(24, 4), s(28, 4), s(32, 4), s(36, 4), s(40, 4), s(48, 4)
sL0, sL1, sL2, sL3 = s(44), s(45), s(46), s(47)
sA, sRT, sG, sWV = s(52), s(53), s(54), s(55)
sOQ, sOX, sOW = s(56), s(57), s(58)
s1152 = s(59)
sMX, sMW = s(60), s(61)
sT0, sT1, sT2, sT3 = s(62), s(63), s(64), s(65)
sSL = s(66)
sROT = s(67)
sPME, sRSB, sRF, sOB = s(68), s(69), s(70), s(71)
sCNT = s(72)
sFSL = s(73)
sC = s(74, 2)
sEPS = s(76, 2)
sODD = s(78, 2)
sMQ = s(80)
sOO = s(81)
sPC = s(82, 2)
sTAG, sMSK = s(82), s(83)
sOU = [s(84 + u) for u in range(8)]
sAG = s(92)
sO8 = s(93)
sOUTB = s(94)
sE = s(95)
sM8 = s(20); sQ8 = s(21); sPM2 = s(22); sPM3 = s(23)
sG144 = s(48); sRV = s(49); sQE = s(50); sOE = s(51)
STAMPS = [s(3 + i % 17) for i in range(28)]

vL = v(0)
T = [v(i) for i in range(1, 10)]
vOX = [v(10 + i) for i in range(4)]
vOW = [v(14 + i) for i in range(5)]
vXR = [v(19), v(20)]
vTR = [[v(21 + 2 * p + e) for e in range(2)] for p in range(5)]
vOQ = [v(31 + i) for i in range(5)]
vOO = [v(36 + i) for i in range(5)]
vO8 = [v(41 + i) for i in range(5)]
vL16 = v(46)
vGL, vN = v(47), v(48)
vM, vPSA, vKB0, vKB2, vFS, vL4, vIW, vVW, vAM, vAL, vP1 = [v(49 + i) for i in range(11)]
vP2, vP3, vAG1, vAG2 = v(60), v(61), v(62), v(63)
ACK = [[v(64 + 20 * p + 4 * t, 4) for t in range(5)] for p in range(2)]
ACV = [[v(104 + 20 * p + 4 * t, 4) for t in range(5)] for p in range(2)]
RING = [v(144 + 4 * i, 4) for i in range(8)]
KB = [v(176 + 12 * p, 12) for p in range(2)]
PH = [v(200 + 20 * p, 20) for p in range(2)]
TMP = v(144, 24)
PW = v(240, 3); M1 = v(244, 4); PA = v(248, 3); vR, vC = v(251), v(252)
vPH = [v(243), v(253), v(254)]
def XF(ks, p): return a(ks * 8 + p * 4, 4)
def PHIF(t, j): return a(144 + (t * 3 + j) * 4, 4)
def PSIF(t, j): return a((t * 5 + j) * 4, 4)

P = Prog()
I = P.I
cap = P.capture
stamp_names = []
def fst(name):
    names = OPT["fine"].split(",")
    if name in names:
        k = names.index(name)
        I("s_memrealtime" if OPT["rt"] else "s_memtime", s(4 + 2 * k, 2), c="fine " + name)
def stamp(name):
    if OPT["fine"]:
        fst(name)
    elif OPT["stamps"] and not OPT.get("mute"):
        k = len(stamp_names); stamp_names.append(name)
        real = True
        if OPT["lite"]:
            real = (k == OPT["amp"] or name == "end")
            if real: STAMPS[k] = s(5) if name == "end" else (s(4) if k else s(3))
        if real:
            I("s_memrealtime" if OPT["lite"] == 2 else "s_memtime", s(100, 2), c="stamp " + name)
            I("s_waitcnt", "lgkmcnt(0)")
            I("s_mov_b32", STAMPS[k], s(100))
    if OPT["stop"] == name:
        I("s_branch", "L_fin"); OPT["mute"] = 1

def wait(vm=None, lgkm=None):
    t = []
    if vm is not None: t.append("vmcnt(%d)" % vm)
    if lgkm is not None: t.append("lgkmcnt(%d)" % lgkm)
    I("s_waitcnt", " ".join(t))
def wait_vm(tag, lgkm=None): P.items.append(VmWait(tag, lgkm))
def tagged(groups, tag):
    for g in groups:
        for x in g:
            if isinstance(x, Ins) and x.kind == "vmem": x.tag = tag
    return groups
def mark(items, **kw):
    for x in items:
        if isinstance(x, Ins):
            for k, val in kw.items(): setattr(x, k, val)
    return items

def srd(dst, lo, hi, size):
    I("s_mov_b32", dst[0], lo); I("s_mov_b32", dst[1], hi)
    I("s_mov_b32", dst[2], size); I("s_mov_b32", dst[3], 0x20000)
def singles(items): return [[x] for x in items]
def emit_groups(groups):
    for g in groups: P.put(g)

def dma5(voffs, srdreg, soff, m0base, m0imm):
    def first():
        I("s_add_u32", "m0", m0base, m0imm)
        I("s_mov_b32", "exec_hi", 0)
        I("buffer_load_dwordx4", voffs[0], srdreg, soff, mods="offen lds")
        I("s_mov_b32", "exec_hi", -1)
    g = [cap(first)]
    for i in range(1, 5):
        g += singles(cap(lambda: I("buffer_load_dwordx4", voffs[i], srdreg, soff, mods="offen offset:%d lds" % (16 * Q0[i]))))
    return g

PERMS = {
    1: (3, [[7, 3, 6, 1, 8, 4, 2, 0, 5], [1, 3, 7, 2, 4, 8, 6, 0, 5], [3, 8, 1, 6, 2, 7, 0, 4, 5]]),
    2: (4, [[4, 0, 1, 5, 6, 2, 8, 7, 3], [4, 1, 5, 2, 7, 0, 6, 8, 3], [1, 4, 6, 7, 0, 2, 3, 5, 8], [4, 6, 1, 7, 3, 0, 5, 2, 8]]),
    3: (3, [[0, 1, 2, 3, 4, 5, 6, 7, 8], [1, 2, 0, 4, 5, 3, 7, 8, 6], [2, 0, 1, 5, 3, 4, 8, 6, 7]]),
    4: (8, [[3, 7, 5, 0, 8, 1, 4, 2, 6], [3, 5, 0, 4, 7, 6, 1, 8, 2], [5, 7, 4, 2, 0, 8, 3, 1, 6], [5, 3, 0, 8, 7, 2, 6, 1, 4], [3, 0, 4, 5, 8, 7, 6, 2, 1], [3, 5, 7, 0, 1, 2, 4, 8, 6], [7, 5, 2, 0, 4, 8, 6, 1, 3], [3, 4, 7, 0, 2, 1, 6, 8, 5]]),
    5: (3, [[0, 1, 2, 3, 4, 5, 6, 7, 8], [3, 4, 5, 6, 7, 8, 0, 1, 2], [6, 7, 8, 0, 1, 2, 3, 4, 5]]),
}
SBO = s(88, 4)
SBQ = s(12, 4)
SBX = s(76, 4)
sPM = s(22, 2)
sPQ = s(90, 2)
sXB0, sWB0, sXSH = s(84 + 1), s(84 + 2), s(84 + 3)
def stage_of(dst, src):
    I("s_and_b32", dst, src, 15)
    if OPT["xsh"]:
        I("s_add_u32", dst, dst, sXSH)
def stage_fix(dst):
    I("s_cmp_ge_u32", dst, 9)
    I("s_cselect_b32", sT1, 9, 0)
def perm_next():
    g = singles(cap(lambda: stage_of(sT0, sPM[0])))
    if OPT["xsh"]: g += [cap(lambda: stage_fix(sT0))] + singles(cap(lambda: I("s_sub_u32", sT0, sT0, sT1)))
    def f():
        I("s_lshr_b64", sPM, sPM, 4)
        I("s_lshl_b32", sOX, sT0, 7); I("s_add_u32", sOX, sOX, sXB0)
        I("s_mul_i32", sOW, sT0, WSTEP); I("s_add_u32", sOW, sOW, sWB0)
    return g + singles(cap(f))
def permq_next():
    g = singles(cap(lambda: stage_of(sT0, sPQ[0])))
    if OPT["xsh"]: g += [cap(lambda: stage_fix(sT0))] + singles(cap(lambda: I("s_sub_u32", sT0, sT0, sT1)))
    def f():
        I("s_lshr_b64", sPQ, sPQ, 8)
        I("s_mul_i32", sOQ, sT0, WSTEP); I("s_add_u32", sOQ, sOQ, sQE)
    return g + singles(cap(f))
def wraps_after(j):
    rots = {1: [0], 2: [0, 4], 3: [0, 3, 6], 4: [0, 2, 4, 6], 5: [0, 2, 5, 7], 8: list(range(8)), 6: list(range(9)), 7: list(range(9))}[OPT["nphase"]]
    return any(r + j == 8 for r in rots) and j < 8
def x_dma(j):
    g = singles(cap(lambda: I("s_add_u32", "m0", sMX, (j % 3) * XSLOT)))
    for i in range(4):
        g += singles(cap(lambda: I("buffer_load_dwordx4", vOX[i], SX, sOX, mods="offen offset:%d lds" % (1024 * i))))
    return tagged(g, "S%d" % j)
def w_dma(j):
    g = tagged(dma5(vOW, SW, sOW, sMW, (j % 3) * WSLOT), "S%d" % j)
    if j < 8 and OPT["perm"]:
        g += perm_next()
    elif j < 8:
        g += singles(cap(lambda: (I("s_add_u32", sOX, sOX, 128), I("s_add_u32", sOW, sOW, WSTEP))))
        if wraps_after(j):
            def wr():
                I("s_cmp_eq_u32", sROT, 8 - j)
                I("s_cselect_b32", sT0, 1152, 0); I("s_cselect_b32", sT1, 9 * WSTEP, 0)
            g.append(cap(wr))
            g += singles(cap(lambda: (I("s_sub_u32", sOX, sOX, sT0), I("s_sub_u32", sOW, sOW, sT1))))
    return g
def stage_dma(j): return x_dma(j) + w_dma(j)

def advance(reg, step, end, span):
    def a1():
        I("s_add_u32", reg, reg, step)
        I("s_cmp_ge_u32", reg, end)
        I("s_cselect_b32", sT0, span, 0)
    return [cap(a1)] + singles(cap(lambda: I("s_sub_u32", reg, reg, sT0)))
def wq_pair_dma(j):
    pos = (WQ0 + j * 9216) if j < 6 else (WQ6 + (j - 6) * 9216)
    if j == 8:
        return singles(cap(lambda: I("s_add_u32", sOQ, sOQ, sQ8))) + tagged(dma5(vOQ, SW, sOQ, sM8, pos), "WQ8")
    g = tagged(dma5(vOQ, SW, sOQ, sMQ, pos), "WQ%d" % j)
    g += permq_next() if OPT["perm"] else advance(sOQ, 2 * WSTEP, sQE, 9 * WSTEP)
    if j == 0 and OPT["perm"]: g = permq_next() + g
    return g
def wo_pair_dma(u):
    pos = (WO0 + u * 9216) if u < 6 else (WO6 + (u - 6) * 9216)
    g = tagged(dma5(vOO, SWO, sOO, sMQ, pos), "WO%d" % u)
    if OPT["nowa"] & 1: return [cap(lambda: I("s_nop", 0)) for _ in range(5)]
    if u < 6 and OPT["gord"]:
        def nx():
            I("s_add_u32", sT0, sOE, u + 1)
            I("s_cmp_ge_u32", sT0, sG)
            I("s_addc_u32", sT0, sT0, 0)
        g += [cap(nx)] + singles(cap(lambda: (I("s_mul_i32", sT0, sT0, 82944), I("s_add_u32", sOO, sT0, sO8))))
    elif u < 6: g += advance(sOO, 2 * 82944, sOE, 8 * 82944)
    return g
def only_waves01(groups, tag):
    def f():
        I("s_cmp_ge_u32", sWV, 2)
        I("s_cbranch_scc1", "L_skip_" + tag)
        for g in groups: P.put(mark(g, cond=True))
        P.label("L_skip_" + tag)
    return [cap(f)]

def tr(dst, addr, off):
    assert 0 <= off < 65536, off
    I("ds_read_b64_tr_b16", dst, addr, mods="offset:%d" % off)
def mfma(d, x, y, c): I("v_mfma_f32_16x16x32_bf16", d, x, y, c)
def tile_read(dstreg, T_, base_off):
    if T_ < 3: pat, o = 0, 8 * T_
    elif T_ == 3: pat, o = 1, 0
    elif T_ == 4: pat, o = 2, 0
    elif T_ < 9: pat, o = 3, 144 + 8 * [0, 5, 9, 14][T_ - 5]
    else: pat, o = 4, 144
    for e in range(2):
        tr(dstreg[2 * e:2 * e + 2], vTR[pat][e], base_off + o)

class Pipe:
    def __init__(self, dist=4, grp=2):
        self.units = []; self.dist = dist; self.grp = grp; self.hooks = {}
    def add(self, rd, work, pre=None, rt=None):
        k = len(self.units)
        wk = cap(work)
        if OPT["snake"] and k & 1 and self.grp == 2: wk = wk[::-1]
        self.units.append((cap(rd), wk, cap(pre) if pre else None, k - self.dist if rt is None else rt))
    def emit(self, fill=(), bulk=(), lead=()):
        fill = list(fill); bulk = list(bulk)
        U = self.units; n = len(U)
        seq = []
        state = dict(done=0)
        def put(items, owner=-1):
            for x in items:
                if isinstance(x, Ins) and x.kind == "ds": seq.append(owner)
                if isinstance(x, Ins) and x.op == "s_waitcnt" and ("lgkmcnt(0)" in x.args[0] or getattr(x, "lgkm", None) == 0): state["done"] = len(seq)
            P.put(items)
        def need_wait(k):
            last = max([i for i, o in enumerate(seq) if o == k] + [-1])
            return last >= state["done"]
        byt = {}
        for k, u in enumerate(U): byt.setdefault(max(u[3], -1), []).append(k)
        for k in byt.get(-1, []): put(U[k][0], k)
        put(list(lead))
        while bulk and bulk[0][0] < 0: put(bulk.pop(0)[1])
        def take(k):
            if fill and fill[0][0] <= k: put(fill.pop(0)[1]); return True
            if bulk and bulk[0][0] <= k + 6: put(bulk.pop(0)[1]); return True
            return False
        for k in range(n):
            if k in self.hooks: put(self.hooks[k])
            if U[k][2]: put(U[k][2])
            if need_wait(k):
                want = [q for q in range(k, min(n, k + self.grp)) if U[q][3] < k - 1 or q == k]
                last = max(i for i, o in enumerate(seq) if o in want)
                later = len(seq) - 1 - last
                assert later <= 15, later
                wait(lgkm=later); state["done"] = last + 1
            nxt = [(x, q) for q in byt.get(k, []) for x in U[q][0]]
            half = (len(nxt) + 1) // 2
            w = U[k][1]
            P.put([w[0]])
            for x, q in nxt[:half]: put([x], q)
            for _ in range(max(0, 2 - half)): take(k)
            P.put(w[1:])
            for x, q in nxt[half:]: put([x], q)
            rest = len(nxt) - half + (1 if (k + 1 < n and need_wait(k + 1)) else 0) + (2 if k + 1 in self.hooks else 0)
            for _ in range(max(0, 2 - rest)): take(k)
            while fill and fill[0][0] <= k - 3: put(fill.pop(0)[1])
            while bulk and bulk[0][0] <= k: put(bulk.pop(0)[1])
        for _, g in fill + bulk: put(g)

def vm_only(groups):
    if groups[0][0].op == "s_nop": return groups
    out = []
    for g in groups:
        if any(x.kind == "vmem" for x in g) or not out: out.append(list(g))
        else: out[-1] += g
    return out
def weave(a_, b_):
    out = []; na, nb = len(a_), len(b_); i = j = 0
    while i < na or j < nb:
        if j >= nb or (i < na and i * nb <= j * na): out.append(a_[i]); i += 1
        else: out.append(b_[j]); j += 1
    return out
def at(unit, groups): return [(unit + i * 2 // 3, g) for i, g in enumerate(groups)]
def spread(groups, first, last):
    n = len(groups)
    return [(first + (last - first) * i // max(1, n), g) for i, g in enumerate(groups)]
def merge(main, extra, start=0, step=2):
    out = []; extra = list(extra)
    for i, x in enumerate(main):
        out.append(x)
        if extra and i >= start and (i - start) % step == step - 1: out += extra.pop(0)
    for g in extra: out += g
    return out

def sm_head(src18, tmp):
    mx, mn = tmp[18], tmp[19]
    I("v_max3_f32", mx, src18[0], src18[1], src18[2]); I("v_min3_f32", mn, src18[0], src18[1], src18[2])
    for i in range(3, 17, 2):
        I("v_max3_f32", mx, mx, src18[i], src18[i + 1]); I("v_min3_f32", mn, mn, src18[i], src18[i + 1])
    I("v_max_f32", mx, mx, src18[17]); I("v_min_f32", mn, mn, src18[17])
    I("v_mul_f32", tmp[20], sC[0], mx); I("v_mul_f32", tmp[21], sC[0], mn)
def sm_tail(src18, out18, tmp):
    ab = tmp[20:22]
    for i in range(0, 18, 2):
        I("v_pk_fma_f32", tmp[i:i + 2], src18[i:i + 2], sC, ab, mods="op_sel:[0,0,1] op_sel_hi:[1,1,1] neg_lo:[1,0,0] neg_hi:[1,0,0]")
        I("v_pk_fma_f32", src18[i:i + 2], src18[i:i + 2], sC, ab, mods="op_sel:[0,0,0] op_sel_hi:[1,1,0] neg_lo:[0,0,1] neg_hi:[0,0,1]")
    sp, sn = tmp[18:20], tmp[20:22]
    for i in range(0, 18, 2):
        for h in range(2):
            I("v_exp_f32", src18[i + h], src18[i + h]); I("v_exp_f32", tmp[i + h], tmp[i + h])
        if i == 4:
            I("v_pk_add_f32", sp, src18[0:2], src18[2:4]); I("v_pk_add_f32", sn, tmp[0:2], tmp[2:4])
        elif i > 4:
            I("v_pk_add_f32", sp, sp, src18[i - 2:i]); I("v_pk_add_f32", sn, sn, tmp[i - 2:i])
    I("v_pk_add_f32", sp, sp, src18[16:18]); I("v_pk_add_f32", sn, sn, tmp[16:18])
    rr = tmp[22:24]
    I("v_add_f32", rr[0], sp[0], sp[1]); I("v_add_f32", rr[1], sn[0], sn[1])
    I("v_rcp_f32", rr[0], rr[0]); I("v_rcp_f32", rr[1], rr[1])
    def el(d): return (src18[2 * d:2 * d + 2], "op_sel:[0,0] op_sel_hi:[1,0]") if d < 9 else (tmp[2 * (d - 9):2 * (d - 9) + 2], "op_sel:[0,1] op_sel_hi:[1,1]")
    for d in range(0, 18, 2):
        for h in range(2): I("v_pk_mul_f32", el(d + h)[0], el(d + h)[0], rr, mods=el(d + h)[1])
        for h in range(2): I("v_cvt_pk_bf16_f32", out18[d + h], el(d + h)[0][0], el(d + h)[0][1])

ACC = [v(64 + 20 * p, 20) for p in range(2)]
def cv(p):
    I("v_cndmask_b32", ACC[p][16], ACC[p][16], ACC[p][18], sODD)
    I("v_cndmask_b32", ACC[p][17], ACC[p][17], ACC[p][19], sODD)
    for i in range(9): I("v_cvt_pk_bf16_f32", KB[p][i], ACC[p][2 * i], ACC[p][2 * i + 1])

def chase(body, groups):
    out = []; groups = list(groups)
    lastdef = {}
    for i, x in enumerate(body):
        if isinstance(x, Ins):
            for r in x.defs: lastdef[r] = i
    pos = {}
    for g in groups:
        p_ = max([lastdef.get(r, -1) for x in g for r in x.uses] + [-1])
        pos.setdefault(p_, []).append(g)
    for g in pos.get(-1, []): out += g
    for i, x in enumerate(body):
        out.append(x)
        for g in pos.get(i, []): out += g
    return out

def evenly(lst, groups, lo=0, hi=100):
    out = []; groups = list(groups); n = len(lst); m = len(groups)
    pos = [n * lo // 100 + (n * (hi - lo) // 100) * i // max(1, m) for i in range(m)]
    for i, x in enumerate(lst):
        out.append(x)
        while groups and pos[0] <= i:
            out += groups.pop(0); pos.pop(0)
    for g in groups: out += g
    return out

def feature_map(path, tag, cv_done, shadow, mid0, mid1, after_p):
    if path == "B":
        def mm(p):
            for j in range(3):
                for t in range(5):
                    mfma(ACK[p][t], PHIF(t, j), KB[p][4 * j:4 * j + 4], 0 if j == 0 else ACK[p][t])
        body = [] if cv_done else cap(lambda: cv(0))
        sh = ([] if cv_done else singles(cap(lambda: cv(1)))) + list(shadow)
        head0 = singles(cap(lambda: sm_head(ACC[0][0:18], TMP)))
        ms = cap(lambda: (mm(0), mm(1)))
        for i, x in enumerate(ms):
            body.append(x)
            if i == 19: sh = head0 + sh
            k = 0
            while sh and k < 2:
                g = sh.pop(0); body += g; k += len(g)
        for g in sh: body += g
        body += cap(lambda: fst(tag + "mm"))
        body += evenly(cap(lambda: sm_tail(ACC[0][0:18], PH[0][0:18], TMP)), *mid0)
        body += cap(lambda: fst(tag + "t0"))
        t1 = cap(lambda: (sm_head(ACC[1][0:18], TMP), sm_tail(ACC[1][0:18], PH[1][0:18], TMP)))
        t1 = evenly(t1, after_p(0), 2, 66)
        t1 = evenly(t1, *mid1)
        body += chase(t1, after_p(1))
    else:
        def pa(p):
            x = ACC[p]
            if not cv_done:
                I("v_cndmask_b32", x[16], x[16], x[18], sODD); I("v_cndmask_b32", x[17], x[17], x[19], sODD)
            for i in range(0, 18, 2): I("v_pk_mul_f32", TMP[i:i + 2], x[i:i + 2], sC)
            for d in range(9):
                for i in (2 * d, 2 * d + 1):
                    I("v_exp_f32", TMP[i], TMP[i], mods="clamp")
                    I("v_max_f32", x[i], 0, x[i])
                I("v_pk_add_f32", x[2 * d:2 * d + 2], x[2 * d:2 * d + 2], sEPS)
                I("v_pk_add_f32", x[2 * d:2 * d + 2], x[2 * d:2 * d + 2], TMP[2 * d:2 * d + 2])
                I("v_cvt_pk_bf16_f32", KB[p][d], x[2 * d], x[2 * d + 1])
        body = []
        for g in shadow: body += g
        body += cap(lambda: fst(tag + "mm"))
        body += chase(evenly(cap(lambda: pa(0)), *mid0), after_p(0))
        body += cap(lambda: fst(tag + "t0"))
        t1 = cap(lambda: pa(1))
        t1 = evenly(t1, *mid1)
        body += chase(t1, after_p(1))
    return body + cap(lambda: fst(tag + "t1"))

def umax(dst, regs):
    regs = list(regs)
    I("v_max3_u32", dst, regs[0], regs[1], regs[2]); regs = regs[3:]
    while len(regs) >= 2:
        I("v_max3_u32", dst, dst, regs[0], regs[1]); regs = regs[2:]
    if regs: I("v_max_u32", dst, dst, regs[0])

SLOW = []
def check_or_retry(tag, fold, cmp_bad, loads):
    g = singles(cap(fold))
    def test():
        cmp_bad()
        I("s_cbranch_vccnz", "L_slow_" + tag)
        P.label("L_back_" + tag)
    g.append(cap(test))
    def slow():
        P.label("L_slow_" + tag)
        I("s_mov_b32", sCNT, 0)
        P.label("L_sp_" + tag)
        if OPT["stamps"] and not OPT["lite"]: I("s_add_u32", s(3), s(3), {"r": 1, "a": 0x100, "o": 0x10000}[tag[0]] if not tag.startswith("rf") else 0x1000000)
        loads()
        wait(vm=0)
        fold()
        cmp_bad()
        I("s_add_u32", sCNT, sCNT, 1)
        I("s_cmp_gt_u32", sCNT, SPIN)
        I("s_cbranch_scc1", "L_back_" + tag)
        I("s_cbranch_vccnz", "L_sp_" + tag)
        I("s_branch", "L_back_" + tag)
    SLOW.append(cap(slow))
    return g
def check_sent(tag, chk, regs, loads):
    return check_or_retry(tag, lambda: umax(chk, regs), lambda: I("v_cmp_eq_u32", "vcc", -1, chk), loads)
def check_tag(tag, chk, regs, loads):
    def fold():
        for r in regs: I("v_xor_b32", r, sTAG, r)
        I("v_or3_b32", chk, regs[0], regs[1], regs[2])
        for i in range(3, len(regs) - 1, 2): I("v_or3_b32", chk, chk, regs[i], regs[i + 1])
        I("v_or_b32", chk, chk, regs[-1])
        I("v_and_b32", chk, 0xff, chk)
    return check_or_retry(tag, fold, lambda: I("v_cmp_ne_u32", "vcc", 0, chk), loads)

def build():
    I("s_cmp_ge_u32", s(2), 256)
    I("s_cbranch_scc1", "L_end")
    if OPT["swap07"]:
        I("s_add_u32", sT0, s(2), 1); I("s_and_b32", sT0, sT0, 6)
        I("s_cselect_b32", sT0, 0, 7)
        I("s_xor_b32", s(2), s(2), sT0)
    I("s_bfe_u32", sA, s(2), 0x10002)
    I("s_cmp_lg_u32", sA, 0)
    I("s_cselect_b32", sT0, 0, 24)
    I("s_cselect_b32", sT1, 8, 32)
    I("s_cselect_b32", sT2, 16, 48)
    I("s_load_dwordx2", SX[0:2], s(0, 2), sT0)
    I("s_load_dwordx2", SW[0:2], s(0, 2), sT1)
    I("s_load_dwordx2", SWO[0:2], s(0, 2), sT2)
    I("s_load_dwordx2", SPHI[0:2], s(0, 2), 40)
    I("s_load_dwordx2", SOUT[0:2], s(0, 2), 56)
    I("s_load_dwordx2", SWS[0:2], s(0, 2), 72)
    if OPT["apo"]: I("s_load_dwordx2", SBO[0:2], s(0, 2), 48)
    if OPT["apq"]: I("s_load_dwordx2", SBQ[0:2], s(0, 2), 32)
    if OPT["apx"]: I("s_load_dwordx2", SBX[0:2], s(0, 2), 24)
    I("s_getpc_b64", sPC)
    I("s_and_b32", sT0, s(2), 0xf8)
    I("v_lshrrev_b32", T[0], 5, v(0))
    I("v_add_lshl_u32", T[1], T[0], sT0, 7)
    I("s_cmp_ge_u32", sT0, "HEAD_LINES")
    I("s_cselect_b32", sT1, sA, 0)
    I("s_mul_i32", sT1, sT1, "A_SHIFT")
    I("v_add_u32", T[1], sT1, T[1])
    I("v_min_u32", T[1], "CODE_SPAN", T[1])
    I("global_load_dword", v(255), T[1], sPC)
    if OPT["stamps"]:
        I("s_memtime", s(98, 2)); I("s_memrealtime", s(96, 2))
        if OPT["fine"]: I("s_mov_b32", s(3), 0)
    I("v_readfirstlane_b32", sWV, T[0])
    I("v_and_b32", vL, 63, v(0))
    I("s_and_b32", sT0, s(2), 3)
    I("s_lshr_b32", sT1, s(2), 6)
    I("s_lshr_b32", sWV, sWV, 1)
    I("s_lshl2_add_u32", sRT, sT0, sT1)
    I("s_bfe_u32", sG, s(2), 0x30003)
    if OPT["perm"]:
        K, tab = PERMS[OPT["perm"]]
        if OPT["xsh"]: I("s_mul_i32", sXSH, sT0, OPT["xsh"])
        if K == 8:
            I("s_lshl1_add_u32", sT0, sT1, sG); I("s_and_b32", sT0, sT0, 7)
        elif K == 4:
            I("s_add_u32", sT0, sG, sT1); I("s_and_b32", sT0, sT0, 3)
        else:
            I("s_add_u32", sT0, sG, sT1); I("s_mul_i32", sT1, sT0, 86); I("s_lshr_b32", sT1, sT1, 8)
            I("s_mul_i32", sT1, sT1, 3); I("s_sub_u32", sT0, sT0, sT1)
        lo = [sum(p[i] << (4 * i) for i in range(8)) for p in tab]
        I("s_mov_b32", sPM[0], lo[0])
        for k_ in range(1, K):
            I("s_cmp_eq_u32", sT0, k_); I("s_cselect_b32", sPM[0], lo[k_], sPM[0])
        I("s_lshl_b32", sT0, sT0, 2)
        I("s_lshr_b32", sPM[1], sum(p[8] << (4 * k_) for k_, p in enumerate(tab)), sT0)
        I("s_and_b32", sPM[1], sPM[1], 15)
        I("s_lshl_b32", sT0, sWV, 1); I("s_and_b32", sT0, sT0, 4)
        I("s_lshr_b64", sPQ, sPM, sT0)
        I("s_mov_b32", sROT, 0)
    elif OPT["nphase"] == 7:
        I("s_add_u32", sT1, sG, sT1)
        I("s_and_b32", sT1, sT1, 1)
        I("s_lshl2_add_u32", sROT, sT1, sT0)
        I("s_add_u32", sROT, sROT, sT1)
    elif OPT["nphase"] in (3, 6):
        if OPT["nphase"] == 6:
            I("s_cmp_eq_u32", sT0, 3); I("s_cselect_b32", sT2, 1, sT0)
        I("s_add_u32", sT0, sG, sT1)
        I("s_mul_i32", sT1, sT0, 86)
        I("s_lshr_b32", sT1, sT1, 8)
        I("s_mul_i32", sT1, sT1, 3)
        I("s_sub_u32", sT0, sT0, sT1)
        I("s_mul_i32", sROT, sT0, 3)
        if OPT["nphase"] == 6: I("s_add_u32", sROT, sROT, sT2)
    elif OPT["nphase"] == 4:
        I("s_add_u32", sT0, sG, sT1)
        I("s_and_b32", sT0, sT0, 3)
        I("s_lshl_b32", sROT, sT0, 1)
    elif OPT["nphase"] == 5:
        I("s_add_u32", sT0, sG, sT1)
        I("s_and_b32", sT0, sT0, 3)
        I("s_mul_i32", sT0, sT0, 5)
        I("s_lshr_b32", sROT, sT0, 1)
    elif OPT["nphase"] == 8:
        I("s_lshl1_add_u32", sT0, sT1, sG)
        I("s_and_b32", sROT, sT0, 7)
    elif OPT["nphase"] == 2:
        I("s_add_u32", sT0, sG, sT1)
        I("s_and_b32", sT0, sT0, 1)
        I("s_lshl_b32", sROT, sT0, 2)
    else:
        I("s_mov_b32", sROT, 0)
    I("s_lshl2_add_u32", sSL, sRT, sWV)
    I("s_mul_i32", sOX, sSL, 32 * 1152)
    I("s_lshl_b32", sT0, sROT, 7)
    I("s_add_u32", sOX, sOX, sT0)
    I("s_lshl_b32", sMX, sWV, 12)
    I("s_mul_i32", sMQ, sWV, 4608)
    I("s_add_u32", sMW, sMQ, WSL)
    I("s_movk_i32", s1152, 1152)
    I("v_lshrrev_b32", T[0], 3, vL)
    I("v_mul_u32_u24", T[0], s1152, T[0])
    I("v_lshrrev_b32", vGL, 4, vL)
    I("v_and_b32", T[1], 7, vL)
    I("v_xor_b32", T[1], T[1], vGL)
    I("v_lshl_add_u32", vOX[0], T[1], 4, T[0])
    I("v_xor_b32", vOX[1], 64, vOX[0])
    I("v_add_u32", vOX[2], 16 * 1152 - 2048, vOX[0])
    I("v_add_u32", vOX[3], 24 * 1152 - 3072, vOX[1])
    I("v_add_u32", vOX[1], 8 * 1152 - 1024, vOX[1])
    I("s_mov_b32", SX[2], 2048 * 1152); I("s_mov_b32", SX[3], 0x20000)
    I("s_mov_b32", SW[2], 576 * 3456); I("s_mov_b32", SW[3], 0x20000)
    I("s_mul_i32", sL3, sG, 144)
    I("s_lshl2_add_u32", sT0, sROT, sWV)
    I("s_mul_i32", sOW, sT0, 16 * 3456)
    I("s_add_u32", sOW, sOW, sL3)
    I("s_add_u32", sOW, sOW, s1152)
    if OPT["perm"]:
        I("s_mov_b32", sXB0, sOX); I("s_mov_b32", sWB0, sOW)
        emit_groups(perm_next())
    I("s_movk_i32", sL0, 3456); I("s_movk_i32", sL1, -144)
    I("v_lshlrev_b32", vL16, 4, vL)
    I("v_mul_u32_u24", vM, 7282, vL)
    DR = [v(64 + i) for i in range(5)]; DP = [v(70 + i) for i in range(5)]; DC = [v(76 + i) for i in range(5)]
    for i in range(5):
        t = vM
        if i:
            I("v_add_u32", T[0], Q0[i] * 7282, vM); t = T[0]
        I("v_lshrrev_b32", T[1], 16, t)
        I("v_lshrrev_b32", DR[i], 17, t)
        I("v_and_b32", DP[i], 1, T[1])
        I("v_mad_i32_i24", DC[i], T[1], sL1, vL16)
        if i == 2:
            I("v_lshrrev_b32", T[2], 1, DR[i]); I("v_and_b32", T[2], 4, T[2]); I("v_xor_b32", DR[i], DR[i], T[2])
        elif i > 2:
            I("v_xor_b32", DR[i], 4, DR[i])
        I("v_mad_u32_u24", T[2], DR[i], sL0, DC[i])
        I("v_mad_u32_u24", vOW[i], DP[i], s1152, T[2])
    for r_, z_ in ((SWO, 576 * 1152), (SPHI, 32 * 648), (SOUT, 2048 * 2304), (SWS, WS_BYTES)):
        I("s_mov_b32", r_[2], z_); I("s_mov_b32", r_[3], 0x20000)
    I("v_lshlrev_b32", vL4, 2, vL)
    I("s_lshl2_add_u32", sT2, sG, sWV); I("s_mul_i32", sT2, sT2, 648)
    I("s_lshl3_add_u32", sL2, sA, sG)
    I("s_lshl_b32", sAG, sL2, 14); I("s_add_u32", sAG, sAG, WS_F)
    I("s_sub_u32", sT0, 2, sA)
    I("s_min_u32", sT1, sWV, sT0); I("s_mul_i32", sT3, sRT, sT0); I("s_add_u32", sT3, sT3, sRT); I("s_add_u32", sRSB, sT1, sT3)
    I("s_lshl_b32", sT1, sRSB, 8); I("s_add_u32", sFSL, sAG, sT1)
    I("s_cmp_gt_u32", sWV, sT0)
    I("s_cselect_b32", sFSL, OOB, sFSL)
    I("s_lshl3_add_u32", sT0, sA, 0); I("s_and_b32", sT1, sRSB, 7); I("s_or_b32", sT0, sT0, sT1)
    I("s_cmp_eq_u32", sT0, 15)
    I("s_cselect_b32", sFSL, OOB, sFSL)
    I("s_subb_u32", sRSB, sRSB, 0)
    I("v_and_b32", vN, 15, vL)
    I("v_and_b32", T[7], 1, vGL)
    I("v_lshlrev_b32", T[0], 2, vGL); I("v_lshl_add_u32", T[0], vN, 4, T[0])
    I("v_lshl_or_b32", vFS, T[7], 30, T[0])
    I("s_mul_i32", sT0, sSL, 32 * 2304)
    I("s_add_u32", sT0, sT0, sL3)
    I("s_xor_b32", sT1, sA, 1); I("s_mul_i32", sT1, sT1, 1152); I("s_add_u32", sOUTB, sT0, sT1)
    I("s_lshl_b32", sT0, sA, 6); I("s_add_u32", sT0, sT0, sSL)
    I("s_lshl_b32", sRF, sT0, 7); I("s_add_u32", sRF, sRF, WS_R)
    if OPT["pois0"]:
        I("s_mul_i32", sOB, sT0, 8 * 4608); I("s_add_u32", sOB, sOB, WS_O)
        I("s_lshl_b32", sT0, sL3, 5); I("s_add_u32", sOU[0], sT0, sOB)
        for i in range(4): I("v_mov_b32", M1[i], -1)
        I("v_lshlrev_b32", v(92), 3, vL); I("v_add_u32", v(92), 4096, v(92))
    if OPT["apx"]:
        I("s_mul_i32", SBX[2], sA, 2048 * 1152); I("s_mov_b32", SBX[3], 0x20000)
        I("s_lshl3_add_u32", sCNT, sSL, sG); I("s_mul_i32", sCNT, sCNT, 4 * 1152)
        I("v_min_u32", v(93), 35, vL); I("v_lshlrev_b32", v(93), 7, v(93))
    I("v_lshlrev_b32", v(90), 20, vL)
    I("v_mov_b32", v(91), 0)
    I("s_lshl_b32", sT0, sA, 7); I("s_add_u32", sT0, sT0, WS_E)
    wait(lgkm=0)
    fst("karg")
    def extras():
        for i in range(3):
            I("buffer_load_dword", PW[i], vL4, SPHI, sT2, mods="offen offset:%d" % (256 * i))
        I("buffer_load_dword", v(255), v(91), SWS, sRF, mods="offen sc1")
        if OPT["touch"]:
            I("buffer_load_dword", v(255), v(90), SWS, 0, mods="offen")
            I("buffer_load_dword", v(255), v(91), SOUT, sOUTB, mods="offen")
            I("buffer_load_dword", v(255), v(91), SWO, sL3, mods="offen")
    def pois0():
        for i in range(4):
            I("buffer_store_dwordx4", M1, vL16, SWS, sOU[0], mods="offen offset:%d sc1" % (1024 * i))
        I("buffer_store_dwordx2", M1[0:2], v(92), SWS, sOU[0], mods="offen sc1")
    if OPT["pois0"] == 1: pois0()
    apx = lambda: I("buffer_load_dword", v(255), v(93), SBX, sCNT, mods="offen")
    if OPT["apx"] == 1: apx()
    emit_groups(x_dma(0))
    I("s_load_dword", sE, SWS[0:2], sT0)
    if OPT["xo"] == 0: extras()
    emit_groups(w_dma(0))
    if OPT["xo"] == 1: extras()
    if OPT["apx"] == 2: apx()
    def xpf():
        I("s_lshl3_add_u32", sT0, sRT, sG); I("s_lshl2_add_u32", sT0, sT0, sWV); I("s_mul_i32", sT0, sT0, 4 * 1152)
        I("v_min_u32", T[1], 35, vL); I("v_lshlrev_b32", T[1], 7, T[1])
        I("buffer_load_dword", v(255), T[1], SX, sT0, mods="offen")
    if OPT["pfx"] == 1: xpf()
    stamp("S0iss")
    I("v_lshrrev_b32", T[0], 1, vN)
    I("v_xor_b32", T[0], T[0], vGL)
    I("v_lshl_add_u32", T[1], vN, 7, sMX)
    I("v_lshl_add_u32", vXR[0], T[0], 4, T[1])
    I("v_xor_b32", vXR[1], 64, vXR[0])
    I("v_bfe_u32", vR, vL, 2, 2)
    I("v_and_b32", vC, 3, vL)
    I("v_lshl_add_u32", T[1], vGL, 3, vR)
    I("v_lshl_add_u32", T[2], T[7], 2, T[1])
    I("v_xor_b32", T[3], 4, T[2])
    I("s_movk_i32", sT0, 288); I("v_mov_b32", T[4], WSL)
    I("v_mad_u32_u24", T[2], T[2], sT0, T[4]); I("v_mad_u32_u24", T[3], T[3], sT0, T[4])
    I("v_mul_u32_u24", T[0], 40, vC)
    I("v_lshrrev_b32", T[1], 1, vC)
    I("v_add_u32", vTR[0][0], T[2], T[0]); I("v_add_u32", vTR[0][1], T[3], T[0])
    I("v_lshlrev_b32", T[6], 5, T[1]); I("v_sub_u32", T[6], T[0], T[6])
    I("v_add3_u32", vTR[1][0], T[2], T[6], 24); I("v_add3_u32", vTR[1][1], T[3], T[6], 24)
    I("v_mul_u32_u24", T[6], 72, T[1])
    I("v_add3_u32", vTR[2][0], T[2], T[6], 32); I("v_add3_u32", vTR[2][1], T[3], T[6], 32)
    I("v_lshl_add_u32", vTR[3][0], vC, 3, T[2]); I("v_lshl_add_u32", vTR[3][1], vC, 3, T[3])
    I("v_and_b32", T[6], 1, vC); I("v_mul_u32_u24", T[6], 72, T[6])
    if OPT["zv"]: I("v_lshl_add_u32", T[6], T[1], 17, T[6])
    I("v_add3_u32", vTR[4][0], T[2], T[6], 32); I("v_add3_u32", vTR[4][1], T[3], T[6], 32)
    I("s_mov_b32", sT0, 32 * 3456 - 1152); I("s_movk_i32", sT1, 72)
    for i in range(5):
        I("v_mad_u32_u24", vOQ[i], DP[i], sT0, vOW[i])
        I("v_lshl_add_u32", T[0], DP[i], 3, DR[i])
        I("v_and_b32", T[3], 1, DR[i])
        if i == 2:
            I("v_lshrrev_b32", T[1], 3, DR[i])
            I("v_mad_u32_u24", T[0], T[1], 12, T[0])
            I("v_lshl_add_u32", T[3], T[1], 1, T[3])
        elif i > 2:
            I("v_add_u32", T[0], 12, T[0])
        I("v_mad_u32_u24", vOO[i], T[0], s1152, DC[i])
        I("v_bfe_u32", T[2], DR[i], 1, 2)
        I("v_lshl_add_u32", T[2], DP[i], 2, T[2])
        if OPT["gord"]:
            I("v_cmp_ge_u32", "vcc", sG, T[2])
            I("v_subb_co_u32", T[2], "vcc", T[2], 0, "vcc")
            I("v_min_u32", T[5], sG, T[2]); I("v_cmp_gt_i32", "vcc", 0, T[2])
            I("v_cndmask_b32", T[2], T[2], T[5], "vcc")
        else:
            I("v_add_u32", T[2], sG, T[2]); I("v_and_b32", T[2], 7, T[2])
        I("v_add_u32", T[3], 18 if i > 2 else 16, T[3])
        I("v_mad_u32_u24", T[2], T[2], sT1, T[3])
        I("v_mad_u32_u24", vO8[i], T[2], s1152, DC[i])
    if OPT["s1m"]: emit_groups(x_dma(1))
    for i in range(4): I("v_mov_b32", v(84 + i), 0)
    I("s_mul_i32", sT1, sWV, 384); I("s_add_u32", sT1, sT1, ZERO)
    I("v_min_u32", T[0], 23 * 16, vL16); I("v_add_u32", T[0], sT1, T[0])
    I("ds_write_b128", T[0], v(84, 4))
    I("s_mul_i32", sT0, sWV, 960); I("s_add_u32", sT0, sT0, PHI)
    for i in range(3):
        t = vM
        if i:
            I("v_add_u32", T[0], 64 * i * 7282, vM); t = T[0]
        I("v_lshrrev_b32", T[0], 16, t); I("v_add_u32", T[0], T[0], vL)
        I("v_lshl_add_u32", PA[i], T[0], 2, sT0)
    I("v_cmp_eq_u32", "vcc", vC, vGL)
    I("v_mul_u32_u24", T[0], 40, vR)
    I("v_mul_u32_u24", T[1], 1040, vGL)
    I("v_mov_b32", T[3], ZERO)
    I("v_add3_u32", T[1], T[1], T[0], T[3])
    I("v_add_u32", T[2], (PHI - ZERO) & 0xffffffff, T[1])
    I("v_cndmask_b32", vPH[0], T[3], T[2], "vcc")
    I("v_lshrrev_b32", T[4], 1, vGL); I("v_mul_u32_u24", T[4], 640, T[4])
    I("v_sub_u32", T[2], T[2], T[4]); I("v_add_u32", T[2], 480, T[2])
    I("v_cndmask_b32", vPH[1], T[3], T[2], "vcc")
    I("v_mul_u32_u24", T[1], 1920, vGL); I("v_add_u32", T[1], T[1], T[0]); I("v_add_u32", T[2], KVI, T[1])
    I("v_cndmask_b32", vPSA, T[3], T[2], "vcc")
    I("v_mul_u32_u24", T[1], 960, vGL); I("v_mul_u32_u24", T[4], 640, T[7])
    I("v_sub_u32", T[1], T[1], T[4]); I("v_add_u32", T[1], T[1], T[0]); I("v_add_u32", T[1], PHI + 640, T[1])
    I("v_cndmask_b32", T[1], T[3], T[1], "vcc")
    I("v_cmp_gt_u32", "vcc", 2, vR)
    I("s_mul_i32", sPME, sL2, PGRP)
    I("s_lshl_b32", sRSB, sRSB, 12)
    I("v_cndmask_b32", vPH[2], T[3], T[1], "vcc")
    I("s_add_u32", sRSB, sRSB, sPME)
    stamp("P1")
    if OPT["pfx"] == 2: xpf()
    if OPT["xo"] == 2: extras()
    if OPT["pois0"] == 2: pois0()
    if OPT["apx"] == 3: apx()
    I("s_mov_b32", sG144, sL3)
    emit_groups(w_dma(1) if OPT["s1m"] else stage_dma(1))
    if OPT["pois0"] == 3: pois0()
    stamp("S1iss")
    def touch_round(r):
        I("s_lshl2_add_u32", sCNT, sA, sWV)
        I("s_mov_b64", "exec", 0)
        for k_ in range(7):
            I("s_cmp_eq_u32", sCNT, k_)
            I("s_cbranch_scc1", "L_th%s%d%d" % ("BA"[k_ // 4], r, k_ % 4))
        I("s_branch", "L_thA%d3" % r)
        P.label("L_tret%d" % r)
        I("s_mov_b64", "exec", -1)
    if OPT["itouch"]:
        P.touch = {"L_tailA"}; P.rounds = 2

    def late():
        I("s_and_b32", sL0, sWV, 1); I("s_lshr_b32", sL1, sWV, 1)
        I("s_mul_i32", sL2, sL0, 16 * 3456); I("s_add_u32", sL2, sL2, sG144)
        I("s_add_u32", sQE, sL2, 0 if OPT["perm"] else 9 * WSTEP)
        I("s_add_u32", sL3, sL1, sROT)
        if OPT["nphase"] in (6, 7):
            I("s_add_u32", sOQ, sL3, 7); I("s_lshr_b32", sOQ, sOQ, 4); I("s_mul_i32", sOQ, sOQ, 9); I("s_sub_u32", sL3, sL3, sOQ)
        I("s_mul_i32", sL3, sL3, WSTEP); I("s_add_u32", sOQ, sL3, sL2)
        I("s_mul_i32", sO8, sL0, 36 * 1152); I("s_add_u32", sO8, sO8, sG144)
        if OPT["gord"]:
            I("s_mov_b32", sOE, sL1)
            I("s_min_u32", sL3, sG, 1); I("s_xor_b32", sL3, sL3, 1); I("s_mul_i32", sL3, sL3, sL1)
            I("s_xor_b32", sL2, sL1, 1); I("s_mul_i32", sL2, sL2, sG); I("s_add_u32", sL3, sL3, sL2)
            I("s_mul_i32", sL3, sL3, 82944); I("s_add_u32", sOO, sL3, sO8)
        else:
            I("s_add_u32", sOE, sO8, 8 * 82944)
            I("s_add_u32", sL3, sL1, sG); I("s_and_b32", sL3, sL3, 7); I("s_mul_i32", sL3, sL3, 82944); I("s_add_u32", sOO, sL3, sO8)
        I("s_mov_b32", sC[0], f2u(LOG2E)); I("s_mov_b32", sC[1], f2u(LOG2E))
        I("s_mov_b32", sEPS[0], f2u(1e-6)); I("s_mov_b32", sEPS[1], f2u(1e-6))
        I("s_mov_b32", sODD[0], 0xffff0000); I("s_mov_b32", sODD[1], 0xffff0000)
        I("s_add_u32", sE, sE, 1); I("s_and_b32", sTAG, sE, 0xff); I("s_mov_b32", sMSK, 0xffffff00)
        I("s_getreg_b32", sL0, "hwreg(HW_REG_XCC_ID, 0, 4)")
        I("s_lshl4_add_u32", sRV, sE, sL0)
        for i in range(4): I("v_mov_b32", M1[i], -1)
        I("s_sub_u32", sL2, 3, sA); I("s_mul_i32", sL2, sL2, sWV)
        I("s_lshl_b32", sL1, sL2, 14); I("s_add_u32", sPME, sPME, sL1)
        I("s_lshl_b32", sL1, sRT, 8); I("s_add_u32", sPME, sPME, sL1)
        I("s_lshl_b32", sL1, sL2, 10); I("s_add_u32", sAG, sAG, sL1)
        I("s_lshr_b32", sL1, sWV, 1)
        I("s_mul_i32", sQ8, sL1, 0x40000000); I("s_mul_i32", sM8, sL1, 100000); I("s_add_u32", sM8, sM8, sMQ)
        I("s_lshl_b32", sL0, sA, 6); I("s_add_u32", sL0, sL0, sSL)
        I("s_mul_i32", sOB, sL0, 8 * 4608); I("s_add_u32", sOB, sOB, WS_O)
        I("s_lshl_b32", sL0, sG144, 5); I("s_add_u32", sOU[0], sL0, sOB)
        I("v_add_u32", vL4, 4096, vL4)
        I("v_lshl_add_u32", T[0], vGL, 2, vR)
        I("v_mul_u32_u24", T[0], IR, T[0])
        I("s_mul_i32", sL0, sWV, 128 * IR)
        I("v_add_u32", vKB2, sL0, T[0])
        I("v_lshl_add_u32", vKB0, vC, 3, vKB2)
        for p in range(2):
            for i in (9, 10, 11): I("v_mov_b32", KB[p][i], 0)
            for i in (18, 19): I("v_mov_b32", PH[p][i], 0)
        I("v_mul_u32_u24", T[0], 128 * IR, vGL)
        I("v_mul_u32_u24", T[1], IR, vN)
        I("s_mul_i32", sL0, sWV, 32 * IR)
        I("v_add3_u32", vIW, T[0], T[1], sL0)
        I("s_mul_i32", sL0, sWV, 5120); I("s_add_u32", sL0, sL0, VF)
        I("v_add_u32", vVW, sL0, vL16)
        I("s_lshl_b32", sL0, sWV, 10); I("s_add_u32", sL0, sL0, VF)
        I("v_add_u32", vAM, sL0, vL16)
        I("s_lshl_b32", sL0, sWV, 1)
        I("v_cmp_gt_u32", "vcc", 2, vN)
        I("v_add_u32", T[3], sL0, vN)
        I("v_lshlrev_b32", T[0], 4, vN); I("v_lshl_add_u32", vP1, vGL, 12, T[0])
        I("v_cndmask_b32", T[3], 8, T[3], "vcc")
        I("v_lshl_add_u32", T[3], vGL, 4, T[3])
        I("v_lshlrev_b32", T[3], 4, T[3]); I("v_add_u32", vAL, VF + 4096, T[3])
        I("v_cmp_gt_u32", "vcc", 4, vN)
        I("v_mov_b32", T[4], OOB)
        I("v_lshl_add_u32", T[0], vGL, 2, vN); I("v_lshlrev_b32", T[0], 4, T[0])
        I("v_cndmask_b32", vP2, T[4], T[0], "vcc")
        I("v_cmp_gt_u32", "vcc", 16, vL)
        I("s_mul_i32", sL1, sWV, 1920); I("s_add_u32", sL1, sL1, KVI)
        I("v_cndmask_b32", vP3, T[4], vL16, "vcc")
        I("v_mul_u32_u24", T[1], 40, vN); I("v_lshl_add_u32", T[1], vGL, 3, T[1])
        I("v_add_u32", vAG1, sL1, T[1])
        I("v_mul_u32_u24", T[2], 40, vC); I("v_lshrrev_b32", T[3], 2, vL)
        I("s_lshr_b32", sL0, 32 * 40, sA)
        I("v_lshl_add_u32", T[2], T[3], 3, T[2]); I("v_add_u32", T[2], sL0, T[2])
        I("v_mul_u32_u24", T[3], 40, vL); I("v_add_u32", T[3], (32 - 16 * 40) & 0xffffffff, T[3])
        I("v_cndmask_b32", T[2], T[3], T[2], "vcc"); I("v_add_u32", vAG2, sL1, T[2])
        for t in range(5):
            I("v_accvgpr_write_b32", PHIF(t, 2)[2], 0); I("v_accvgpr_write_b32", PHIF(t, 2)[3], 0)
    lt = singles(cap(late))

    wait_vm("S0", lgkm=0)
    I("s_barrier")
    stamp("S0land")
    pipe = Pipe(dist=4)
    RT = list(range(-4, 10)) + [10, 10, 11, 11, 12, 12]
    fill = []
    for j in range(9):
        slot = j % 3
        order = [(kap, T_) for kap in range(2) for T_ in range(10)]
        if j == 8: order = [(kap, T_) for T0 in (0, 5) for kap in range(2) for T_ in range(T0, T0 + 5)]
        seen = set()
        for m, (kap, T_) in enumerate(order):
            ks = 2 * j + kap
            ring = RING[(20 * j + m) % 8]
            def rd():
                if kap not in seen:
                    seen.add(kap)
                    for p in range(2):
                        I("ds_read_b128", XF(ks, p), vXR[kap], mods="offset:%d" % (slot * XSLOT + p * 2048))
                if OPT["ex"] & 2 and (j > 0 or m >= 8): return
                if OPT["ex"] & 4 and T_ >= 5: return
                tile_read(ring, T_, slot * WSLOT + kap * 9216)
            def work():
                if OPT["ex"] & 1:
                    I("s_nop", 1); I("s_nop", 1); return
                for p in range(2):
                    if T_ < 5: mfma(ACK[p][T_], ring, XF(ks, p), 0 if ks == 0 else ACK[p][T_])
                    else: mfma(ACV[p][T_ - 5], XF(ks, p), ring, 0 if ks == 0 else ACV[p][T_ - 5])
            pipe.add(rd, work, rt=20 * j + RT[m])
        def hook():
            if OPT["itouch"] and 20 * j + 16 == OPT["t0"]: touch_round(0)
            if OPT["itouch"] and 20 * j + 16 == OPT["t1"]: touch_round(1)
            if j < 8: wait_vm("S%d" % (j + 1), lgkm=0)
            else: wait(lgkm=0)
            I("s_barrier")
            if OPT["p1st"]: stamp("b%d" % (j + 1))
        pipe.hooks[20 * j + 16] = cap(hook)
        t0 = max(0, 20 * j - 4)
        if j + 2 < 9: fill += spread(stage_dma(j + 2), t0, 20 * j + 13)
        elif j == 7: fill += spread(wq_pair_dma(0) + wq_pair_dma(2), t0 + 2, 20 * j + 36)
    def apre(kind):
        tag = "ap" + kind
        def pre():
            I("s_lshl3_add_u32", sT2, sSL, sG); I("s_mul_i32", sT2, sT2, 81); I("s_lshr_b32", sT2, sT2, 3)
            I("v_min_u32", T[5], 10, vL); I("v_add_u32", T[5], sT2, T[5])
            if kind == "o":
                I("v_lshlrev_b32", T[5], 7, T[5])
                I("s_mov_b32", SBO[2], 576 * 1152); I("s_mov_b32", SBO[3], 0x20000)
            else:
                I("v_mul_u32_u24", T[6], 7282, T[5]); I("v_lshrrev_b32", T[6], 16, T[6])
                I("v_mul_u32_u24", T[6], 18, T[6]); I("v_add_lshl_u32", T[5], T[5], T[6], 7)
                I("s_mov_b32", SBQ[2], 576 * 3456); I("s_mov_b32", SBQ[3], 0x20000)
        def go():
            I("s_cmp_eq_u32", sA, 0)
            I("s_cbranch_scc1", "L_skip_" + tag)
            for r_ in ((SBO, SWO) if kind == "o" else (SBQ, SW)):
                x = I("buffer_load_dword", v(255), T[5], r_, 0, mods="offen"); x.cond = True
            P.label("L_skip_" + tag)
        return singles(cap(pre)) + [cap(go)]
    if OPT["apo"]: fill += at(OPT["apo"], apre("o"))
    if OPT["apq"]: fill += at(OPT["apq"], apre("q"))
    if OPT["pfq"]:
        fill += at(OPT["pfq"], singles(cap(lambda: prefetch("wq"))))
    if OPT["pfo"] > 1:
        fill += at(OPT["pfo"], singles(cap(lambda: prefetch("wo"))))
    fill.sort(key=lambda t: t[0])
    phw = singles(cap(lambda: [I("ds_write_b32", PA[i], PW[i], mods="offset:%d" % (256 * i)) for i in range(3)]))
    def phir():
        for t in range(5):
            for tp in range(5):
                ad, o = (vPH[0], 160 * tp) if tp < 3 else (vPH[tp - 2], 0)
                tr(PHIF(t, tp // 2)[2 * (tp & 1):2 * (tp & 1) + 2], ad, 8 * t + o)
    phr = singles(cap(phir))
    nl = len(lt)
    bulk = spread(lt[:8], -1, -1) + spread(lt[8:30], 0, 24) + spread(phw, 24, 30) + spread(lt[30:40], 30, 42)
    bulk += spread(phr, 42, 80) + spread(lt[40:], 80, 150)
    bulk += spread(singles(cap(lambda: (cv(0), cv(1)))), 178, 180)
    pipe.emit(fill, bulk)
    stamp("pass1")

    I("s_cmp_lg_u32", sA, 0)
    I("s_cbranch_scc1", "L_tailA")
    P.label("L_tailB")
    names0 = list(stamp_names); mute0 = OPT.get("mute")
    P.put(mark(cap(lambda: tail("B")), path="B"))
    P.label("L_end")
    P.label("L_notouchB")
    I("s_endpgm")
    for sl in SLOW: P.put(mark(sl, path="B"))
    del SLOW[:]
    stamp_names[:] = names0; OPT["mute"] = mute0
    P.raw(".p2align 7")
    P.label("L_dotouch")
    P.label("L_tailA")
    P.put(mark(cap(lambda: (I("s_nop", 7), tail("A"))), path="A"))
    P.label("L_notouchA")
    I("s_endpgm")
    for sl in SLOW: P.put(mark(sl, path="A"))
    P.label("L_last")

def prefetch(kind):
    I("s_lshr_b32", sT2, s(2), 3); I("s_lshl2_add_u32", sT2, sT2, sWV); I("s_mul_i32", sT2, sT2, 81); I("s_lshr_b32", sT2, sT2, 1)
    I("v_min_u32", T[5], 40, vL); I("v_add_u32", T[5], sT2, T[5])
    if kind == "wo":
        I("v_lshlrev_b32", T[5], 7, T[5])
        I("buffer_load_dword", v(255), T[5], SWO, 0, mods="offen")
    else:
        I("v_mul_u32_u24", T[6], 7282, T[5]); I("v_lshrrev_b32", T[6], 16, T[6])
        I("v_mul_u32_u24", T[6], 18, T[6]); I("v_add_lshl_u32", T[5], T[5], T[6], 7)
        I("buffer_load_dword", v(255), T[5], SW, 0, mods="offen")

def rebase(delta):
    for pat in range(3):
        for e in range(2):
            I("v_add_u32", vTR[pat][e], delta & 0xffffffff, vTR[pat][e])

def tail(path):
    B = path == "B"
    FT = [0, 1, 2] if B else [0, 2]
    PHI_ = PH if B else KB
    NJ = 5 if B else 3
    def poison():
        for i in range(4):
            I("buffer_store_dwordx4", M1, vL16, SWS, sOU[0], mods="offen offset:%d sc1" % (1024 * i))
        for i in range(2):
            I("buffer_store_dword", M1[0], vL4, SWS, sOU[0], mods="offen offset:%d sc1" % (256 * i))
    def vpack():
        I("v_cmp_eq_u32", "vcc", 8, vN)
        I("v_mov_b32", T[0], 0x3f803f80)
        for t in range(5):
            d = ACV[0][t]
            for p in range(2):
                for h in range(2):
                    I("v_cvt_pk_bf16_f32", d[2 * p + h], ACV[p][t][2 * h], ACV[p][t][2 * h + 1])
        for i in range(4): I("v_cndmask_b32", ACV[0][4][i], ACV[0][4][i], T[0], "vcc")
        I("v_mov_b32", T[0], sTAG)
        rebase(WQ0 - WSL)
    def prewarm():
        I("v_min_u32", T[1], 35, vL); I("v_lshlrev_b32", T[1], 7, T[1])
        I("buffer_load_dword", v(255), T[1], SWS, sOU[0], mods="offen sc1")
    vp = singles(cap(vpack))
    w = singles(cap(lambda: [I("ds_write_b128", vVW, ACV[0][t], mods="offset:%d" % (1024 * t)) for t in range(5)]))
    q = tagged(singles(cap(poison)), "POIS") if not OPT["pois0"] else []
    pwm = [cap(prewarm)] if OPT["pw"] else []
    pfo = [cap(lambda: prefetch("wo"))] if OPT["pfo"] == 1 else []
    q4, q6, q8 = vm_only(wq_pair_dma(4)), vm_only(wq_pair_dma(6)), vm_only(wq_pair_dma(8))
    if B:
        ksh = weave(q4[:4], vp); km0 = weave(q4[4:] + q6, w); km1 = q8 + pfo + q
        late_q = []
    else:
        ksh = weave(q4[:2], vp); km0 = weave(q4[2:] + q6[:3], w); km1 = q6[3:] + q8 + pfo + q
        late_q = []
    kvq = []
    if OPT["pf2"]:
        pf = [cap(lambda: prefetch("wo"))]
        if B:
            ksh = weave(q4, vp); km0 = weave(q6 + q8, w) + pf; km1 = []
        else:
            ksh = weave(q4[:2], vp); km0 = weave(q4[2:] + q6[:3], w); km1 = q6[3:] + q8 + pf
        kvq = q
    def kwrites(p):
        def f():
            n4 = 4 if B else 2
            for i in range(n4): I("ds_write_b128", vIW, PHI_[p][4 * i:4 * i + 4], mods="offset:%d" % (IMG + p * 16 * IR + 16 * i))
            I("ds_write_b64", vIW, PHI_[p][4 * n4:4 * n4 + 2], mods="offset:%d" % (IMG + p * 16 * IR + 16 * n4))
        return singles(cap(f))
    P.put(feature_map(path, "k", True, ksh, (km0, 2, 98), (km1, 0, 70 if B else 95), kwrites))
    wait_vm("WQ4", lgkm=0)
    I("s_barrier")
    stamp("kpost")
    DM = [v(104 + 4 * j, 4) for j in range(3)]; DL = [v(116 + 4 * j, 4) for j in range(3)]
    pipe = Pipe(dist=3, grp=1)
    n = 0
    for j in FT:
        for src in range(4):
            AM, AL = v(64 + 8 * src, 4), v(68 + 8 * src, 4)
            BF = RING[n % 8]; n += 1
            def rd():
                if j == 0: I("ds_read_b128", AM, vAM, mods="offset:%d" % (src * 5120))
                for e in range(2):
                    tr(BF[2 * e:2 * e + 2], vKB0 if j < 2 else vKB2, IMG + src * 32 * IR + e * 16 * IR + (32 * j if (B or j < 2) else 32))
                if j == 0: I("ds_read_b128", AL, vAL, mods="offset:%d" % (src * 5120))
            def work():
                mfma(DM[j], AM, BF, 0 if src == 0 else DM[j])
                mfma(DL[j], AL, BF, 0 if src == 0 else DL[j])
            pipe.add(rd, work)
    SLM = {0: 0, 1: 4, 2: 8} if B else {0: 0, 2: 4}
    SLL = {0: 9, 1: 10, 2: 11} if B else {0: 5, 2: 6}
    def pstore(j):
        for D, ad, sl in ((DM[j], vP1 if j < 2 else vP2, SLM[j]), (DL[j], vP3, SLL[j])):
            if sl: I("s_add_u32", sT1, sPME, sl * 4096)
            for i in range(4): I("v_and_or_b32", D[i], D[i], sMSK, T[0])
            I("buffer_store_dwordx4", D, ad, SWS, sT1 if sl else sPME, mods="offen sc1")
    fill = []
    for k_, j in enumerate(FT[:-1]): fill += spread(tagged(singles(cap(lambda: pstore(j))), "P"), 4 * k_ + 5, 4 * k_ + 8)
    pipe.emit(fill)
    fst("kvmm")
    qlead = cap(lambda: (pstore(FT[-1]), stamp("pubP")))
    if not OPT["j1"]:
        P.put(qlead); qlead = []
        I("s_barrier")
    stamp("wqland")

    def gemm2(bfrag, offs, rebases, fill, nm, hooks={}, lead=(), n=0, nks=18, extra=None):
        pipe = Pipe(dist=4)
        pipe.hooks = hooks
        for ks in range(nks):
            for T_ in range(5):
                ring = RING[n % 8]; n += 1
                def rd():
                    if T_ == 0 and ks in rebases: rebase(rebases[ks])
                    tile_read(ring, T_, offs(ks))
                def work():
                    for p in range(2):
                        mfma(ACK[p][T_], ring, bfrag(ks, p), 0 if ks == 0 else ACK[p][T_])
                pipe.add(rd, work, (lambda: fst("%s%d" % (nm, ks))) if T_ == 0 else None)
        if extra: extra(pipe)
        pipe.emit(fill, lead=lead)
    RS = v(128, 16)
    vCK = T[6]
    def rs_loads():
        for i in range(4):
            I("buffer_load_dwordx4", RS[4 * i:4 * i + 4], vL16, SWS, sRSB, mods="offen offset:%d sc1" % (1024 * i))
    def rs_reduce():
        for st in (8, 4):
            for i in range(st): I("v_add_f32", RS[i], RS[i], RS[i + st])
        I("v_permlane32_swap_b32", RS[0], RS[2]); I("v_permlane32_swap_b32", RS[1], RS[3])
        I("v_add_f32", RS[0], RS[0], RS[2]); I("v_add_f32", RS[1], RS[1], RS[3])
        I("v_mov_b32", RS[2], RS[0]); I("v_mov_b32", RS[3], RS[1])
        I("v_permlane16_swap_b32", RS[0], RS[2]); I("v_permlane16_swap_b32", RS[1], RS[3])
        I("v_add_f32", RS[0], RS[0], RS[2]); I("v_add_f32", RS[1], RS[1], RS[3])
        I("v_cvt_pk_bf16_f32", RS[0], RS[0], RS[1])
        I("v_mov_b32", RS[1], sE)
        I("buffer_store_dwordx2", RS[0:2], vFS, SWS, sFSL, mods="offen sc1")
        fst("pubF")
    vRV, vRA = T[7], T[8]
    def rflag():
        I("v_mov_b32", vRV, sRV); I("s_lshl_b32", sT1, sG, 2); I("v_mov_b32", vRA, sT1)
        I("buffer_store_dword", vRV, vRA, SWS, sRF, mods="offen sc1")
    ra, rc = OPT["rs_at"], OPT["rs_chk"]
    if not B: ra -= OPT["dA"]; rc -= OPT["dA"]
    wo = [vm_only(wo_pair_dma(u)) for u in (0, 2, 4, 6)]
    wo.append(vm_only(singles(cap(lambda: I("s_add_u32", sO8, sO8, sQ8))) + tagged(dma5(vO8, SWO, sO8, sM8, WO6 + 2 * 9216), "WO8")))
    def ou():
        for u in range(1, 8):
            if OPT["gord"]:
                I("s_sub_u32", sL0, sG, u); I("s_lshr_b32", sL0, sL0, 31)
                I("s_add_u32", sL0, sL0, u - 1)
            else:
                I("s_add_u32", sL0, sG, u); I("s_and_b32", sL0, sL0, 7)
            I("s_mul_i32", sL0, sL0, 4608); I("s_add_u32", sOU[u], sL0, sOB)
    fill = sorted(spread(kvq, 1, 22) + spread(wo.pop(0), 3 if not kvq else 22, 26 if not kvq else ra - 1) + spread(singles(cap(ou)), 1, 28), key=lambda t: t[0]) + (at(28, singles(sum(pwm, []))) if OPT["pw"] == 1 else [])
    fill += spread(singles(cap(lambda: fst("rsi"))) + tagged(singles(cap(rs_loads)), "RS") + singles(cap(lambda: fst("rsd"))), ra, ra + 4)
    fill += spread((pwm if OPT["pw"] == 4 else []) + wo.pop(0), ra + 4, ra + 20)
    wx = [] if B else spread(wo.pop(0), rc + 1, rc + OPT["rs_len"] - 6)
    chk = [cap(lambda: (fst("rsb"), wait_vm("RS"), fst("rsw")))] + check_tag("rs" + path, vCK, [RS[i] for i in range(16)], rs_loads) + singles(cap(rs_reduce)) + (singles(cap(rflag)) if not OPT["pois0"] else [])
    fill += sorted(spread(chk, rc, rc + OPT["rs_len"]) + wx, key=lambda t: t[0])
    gemm2(XF, lambda ks: ((ks // 2) % 6) * 9216 + (ks & 1) * 144, {12: WQ6 - WQ0}, fill, "q",
          dict([(54, cap(lambda: (wait_vm("WQ8"), I("s_barrier"))))] + ([(1, cap(lambda: I("s_barrier")))] if OPT["j1"] else [])), lead=qlead, n=4 * len(FT))
    stamp("qgemm")

    NAG = 3 if B else 2
    AG = v(104, 4 * NAG); RF = v(116)
    def ag_loads():
        for i in range(NAG):
            I("buffer_load_dwordx4", AG[4 * i:4 * i + 4], vL16 if (B or i == 0) else T[3], SWS, sAG, mods="offen offset:%d sc1" % (1024 * i))
    def ag_fold():
        I("v_xor_b32", vCK, sE, AG[1])
        for i in range(3, 4 * NAG, 2): I("v_bitop3_b32", vCK, vCK, sE, AG[i], mods="bitop3:0xf6")
    def rf_load(): I("buffer_load_dword", RF, T[4], SWS, sRF, mods="offen sc1")
    def qsh():
        if not B: I("v_min_u32", T[3], 47 * 16, vL16)
        I("v_and_b32", T[4], 7, vL); I("v_lshlrev_b32", T[4], 2, T[4])
        rebase(WO0 - WQ6)
        for t in range(5):
            I("v_accvgpr_write_b32", PSIF(t, NJ - 1)[2], 0); I("v_accvgpr_write_b32", PSIF(t, NJ - 1)[3], 0)
    fr = OPT["ag_frac"] if B else OPT["ag_fracA"]
    g = singles(cap(rf_load)) + singles(cap(lambda: fst("agi"))) + tagged(singles(cap(ag_loads)), "AG") + (pwm if OPT["pw"] == 2 else [])
    lo = (fr - 50) * 2
    wc = wo.pop(0)
    if OPT["pw"] == 3: wc = pwm + wc
    wd = sum(wo, [])
    def agw():
        I("ds_write2_b32", vAG1, AG[0], AG[2], mods="offset0:0 offset1:1")
        if B: I("ds_write2_b32", vAG1, AG[4], AG[6], mods="offset0:160 offset1:161")
        I("ds_write2_b32", vAG2, AG[4 * NAG - 4], AG[4 * NAG - 2], mods="offset0:0 offset1:1")
    agc = cap(lambda: (fst("agb"), wait_vm("AG"), fst("agw"))) + sum(check_or_retry("ag" + path, ag_fold, lambda: I("v_cmp_ne_u32", "vcc", 0, vCK), ag_loads), []) + cap(agw)
    agb = cap(lambda: (wait(lgkm=0), I("s_barrier"), stamp("gotkv")))
    olead = []
    if B:
        body = feature_map(path, "q", False, weave(singles(cap(qsh)), wc[:3]), (wc[3:], 10, 60), (g + wd[:OPT["wdn"]], lo, 100), lambda p: [])
        body += sum(wd[OPT["wdn"]:], [])
        if OPT["j2"]:
            ok = lambda i: isinstance(body[i], Ins) and body[i].kind == "valu" and isinstance(body[i - 1], Ins) and body[i - 1].kind == "valu"
            c1 = len(body) * OPT["agc"] // 100; c2 = len(body) * OPT["agb"] // 100
            while not ok(c1): c1 += 1
            while not ok(c2): c2 += 1
            P.put(body[:c1] + agc + body[c1:c2] + agb); olead = body[c2:]
        else:
            P.put(body + agc + agb)
    else:
        P.put(feature_map(path, "q", False, singles(cap(qsh)), (wc[:3], 0, 100), (wc[3:] + g, 0, 100), lambda p: []))
        emit_groups(wd)
        P.put(agc + agb)

    pool = list(range(104, 144, 4)) + list(range(176, 256, 4)) + [12, 16, 28, 32, 36, 40]
    OF = {}
    keys = [(0, p, X) for X in range(2) for p in range(2)] + [("L", k, p) for k in range(2) for p in range(2)] + [(u, p, X) for u in range(1, 8) for p in range(2) for X in range(2)]
    for k_, r_ in zip(keys, pool): OF[k_] = v(r_, 4)
    o = ACC
    pipe = Pipe(dist=4)
    for t in (4, 0, 1, 2, 3):
        for j in range(NJ):
            def rd():
                tr(PSIF(t, j)[0:2], vPSA, 8 * t + 8 * j * 40)
                if j < NJ - 1: tr(PSIF(t, j)[2:4], vPSA, 8 * t + (8 * j + 4) * 40)
            def work():
                for p in range(2):
                    mfma(ACK[p][t], PSIF(t, j), PHI_[p][4 * j:4 * j + 4], 0 if j == 0 else ACK[p][t])
            pipe.add(rd, work)
    def ostore(key, flag=None):
        if flag is None: flag = ["", " sc1", " nt"][OPT["oflag"]]
        if key[0] == "L": I("buffer_store_dword", OF[key][0], vL4, SWS, sOU[0], mods="offen offset:%d%s" % (key[2] * 256, flag))
        else: I("buffer_store_dwordx4", OF[key], vL16, SWS, sOU[0], mods="offen offset:%d%s" % (key[1] * 2048 + key[2] * 1024, flag))
    def fin_den():
        for p in range(2): I("v_add_f32", o[p][18], sEPS[0], o[p][18])
        for p in range(2): I("v_rcp_f32", o[p][18], o[p][18])
        for p in range(2):
            for i in (16, 17): I("v_mul_f32", o[p][i], o[p][i], o[p][18])
        for p in range(2):
            I("v_cvt_pk_bf16_f32", OF[("L", 0, p)][0], o[p][16], o[p][17])
            ostore(("L", 0, p))
    def fin_tile(t, packed):
        for p in range(2):
            if packed:
                for i in (4 * t, 4 * t + 2): I("v_pk_mul_f32", o[p][i:i + 2], o[p][i:i + 2], o[p][18:20], mods="op_sel:[0,0] op_sel_hi:[1,0]")
            else:
                for i in range(4 * t, 4 * t + 4): I("v_mul_f32", o[p][i], o[p][i], o[p][18])
            for h in range(2):
                I("v_cvt_pk_bf16_f32", OF[(0, p, t // 2)][2 * (t & 1) + h], o[p][4 * t + 2 * h], o[p][4 * t + 2 * h + 1])
            if t & 1: ostore((0, p, t // 2))
    rfchk = check_or_retry("rf" + path, lambda: I("v_xor_b32", vCK, sRV, RF), lambda: I("v_cmp_lt_u32", "vcc", 15, vCK), rf_load)
    rfchk += [cap(lambda: I("v_cmp_ne_u32", s(50, 2), 0, vCK))]
    fill = at(0, rfchk)
    fill += spread(singles(cap(fin_den)), NJ + 2, 2 * NJ + 1)
    for t in range(3): fill += spread(singles(cap(lambda: fin_tile(t, False))), (2 + t) * NJ + 1 + (1 if B else 0), (3 + t) * NJ + 1)
    pipe.emit(fill, lead=olead)
    fst("omm")
    fin_tile(3, True)
    I("s_cmp_lg_u64", s(50, 2), 0)
    I("s_cbranch_scc1", "L_far" + path)
    P.label("L_near" + path)
    def far():
        P.label("L_far" + path)
        for key in keys[:4] + [("L", 0, 0), ("L", 0, 1)]: ostore(key, " sc1")
        wait(vm=0)
        I("buffer_store_dword", vRV, vRA, SWS, sRF, mods="offen offset:32 sc1")
        I("s_mov_b32", sCNT, 0)
        P.label("L_farp" + path)
        I("buffer_load_dword", vCK, T[4], SWS, sRF, mods="offen offset:32 sc1")
        wait(vm=0)
        I("v_xor_b32", vCK, sRV, vCK)
        I("v_cmp_lt_u32", "vcc", 15, vCK)
        I("s_add_u32", sCNT, sCNT, 1)
        I("s_cmp_gt_u32", sCNT, SPIN)
        I("s_cbranch_scc1", "L_near" + path)
        I("s_cbranch_vccnz", "L_farp" + path)
        I("s_branch", "L_near" + path)
    SLOW.append(cap(far))
    stamp("pubO")

    def oload(u):
        for X in (1, 0):
            for p in (1, 0):
                I("buffer_load_dwordx4", OF[(u, p, X)], vL16, SWS, sOU[u], mods="offen offset:%d sc1" % (p * 2048 + X * 1024))
        for p in range(2):
            I("buffer_load_dword", OF[("L", u // 4, p)][u % 4], vL4, SWS, sOU[u], mods="offen offset:%d sc1" % (p * 256))
    def bf(ks, p):
        if ks < 16: return OF[(ks // 2, p, ks & 1)]
        return OF[("L", ks - 16, p)]
    offs = lambda ks: ((ks // 2) % 6) * 9216 + (ks & 1) * 144
    vW1, vW2, vW3, vRD = vIW, vVW, vAM, vAL
    vST = [vP2, vPSA, vKB0, vKB2, vP1]
    def out_addr():
        I("s_add_u32", sT0, sMQ, OUTB)
        I("v_mul_u32_u24", T[0], 144, vN); I("v_add_u32", T[0], sT0, T[0])
        I("v_mul_u32_u24", T[1], 40, vGL); I("v_add_u32", vW1, T[0], T[1])
        I("v_lshrrev_b32", T[4], 1, vGL)
        I("v_lshlrev_b32", T[2], 5, T[4]); I("v_sub_u32", vW2, vW1, T[2])
        I("v_mul_u32_u24", T[3], 72, T[4]); I("v_add_u32", vW3, T[0], T[3])
        I("v_add_u32", vRD, sT0, vL16)
        I("s_movk_i32", sT1, 2304 - 144)
        for i in range(5):
            t = vM
            if i:
                I("v_add_u32", T[3], Q0[i] * 7282, vM); t = T[3]
            I("v_lshrrev_b32", T[0], 16, t)
            I("v_mad_u32_u24", vST[i], T[0], sT1, vL16)
    NPRE = OPT["npre"]
    wait_vm("WO8")
    I("s_barrier")
    stamp("ackO")
    I("s_mov_b32", sT2, 0)
    P.label("L_redo" + path)
    g = []
    for u in range(1, NPRE + 1): g += tagged(singles(cap(lambda: oload(u))), "O%d" % u)
    if OPT["j3"]:
        def preread():
            rebase(WO6 - WO0)
            for ks in range(18 - OPT["npf"], 18):
                for t in range(5): tile_read(a(100 + ((ks - (18 - OPT["npf"])) * 5 + t) * 4, 4), t, offs(ks))
            rebase(WO0 - WO6)
        emit_groups(weave(singles(cap(preread)), g))
        fill = []
    else:
        fill = spread(g, 0, 7)
    def ochk(u):
        regs = [OF[(u, 0, 1)][3], OF[(u, 1, 1)][3], OF[(u, 1, 0)][3]]
        return [cap(lambda: wait_vm("O%d" % u))] + check_sent("o%d%s" % (u, path), vCK, regs, lambda: oload(u))
    for u in range(0, 7):
        b0 = u * 10
        blk = spread(ochk(u + 1), b0 + 6, b0 + 6)
        if u and u + NPRE <= 7: blk += spread(tagged(singles(cap(lambda: oload(u + NPRE))), "O%d" % (u + NPRE)), b0, b0 + 10)
        fill += sorted(blk, key=lambda t: t[0])
    NPF = OPT["npf"] if OPT["j3"] else 0
    assert NPF in (0, 2, 4, 6)
    WF = lambda ks, t: a(100 + ((ks - (18 - NPF)) * 5 + t) * 4, 4)
    OUTR = [OF[(1 + t // 2, p, 0)][2 * (t & 1):2 * (t & 1) + 2] for p in range(2) for t in range(5)]
    OB = [OF[(1, 0, 1)], OF[(1, 1, 1)], OF[(2, 0, 1)], OF[(2, 1, 1)], OF[(3, 0, 1)]]
    fl = ["", " sc1", " nt", " sc0 sc1"][OPT["outflag"]]
    def ocvt(p):
        for t in range(5):
            r_ = OUTR[5 * p + t]
            for h in range(2): I("v_cvt_pk_bf16_f32", r_[h], ACK[p][t][2 * h], ACK[p][t][2 * h + 1])
            ad, off = (vW1, 8 * t) if t < 3 else ((vW2, 24) if t == 3 else (vW3, 32))
            I("ds_write_b64", ad, r_, mods="offset:%d" % (off + p * 2304))
    def ord_(i): I("ds_read_b128", OB[i], vRD, mods="offset:%d" % (16 * Q0[i]))
    def ost(i):
        if i == 0: I("s_mov_b32", "exec_hi", 0)
        I("buffer_store_dwordx4", OB[i], vST[i], SOUT, sOUTB, mods="offen offset:%d%s" % (16 * Q0[i], fl))
        if i == 0: I("s_mov_b32", "exec_hi", -1)
    def nanchk(regs, back):
        I("v_cmp_u_f32", "vcc", regs[0], regs[1])
        I("s_cbranch_vccnz", "L_again%s" % back + path)
        P.label("L_done%s" % back + path)
        def again():
            P.label("L_again%s" % back + path)
            I("s_add_u32", sT2, sT2, 1)
            I("s_cmp_gt_u32", sT2, 200)
            I("s_cbranch_scc1", "L_done%s" % back + path)
            wait(vm=0, lgkm=0)
            if NPF < 6: rebase(WO0 - WO6)
            I("s_nop", 7)
            I("s_branch", "L_redo" + path)
        SLOW.append(cap(again))
    if NPF:
        nb = (18 - NPF) * 5
        half = NPF * 5 // 2
        def extra(pipe):
            for p in range(2):
                ms = [(ks, t) for ks in range(18 - NPF, 18) for t in range(5)]
                for i in range(0, len(ms), 2):
                    pipe.add(lambda: None, lambda: [mfma(ACK[p][t], WF(ks, t), bf(ks, p), ACK[p][t]) for ks, t in ms[i:i + 2]])
        fill = [((nb + (t_ - nb) // 2 - 2) if t_ > nb else t_, g) for t_, g in fill]
        fill += spread(singles(cap(out_addr)), 42, 56)
        tail0 = [cap(lambda: nanchk((ACK[0][0][0], ACK[0][1][0]), "0"))] + singles(cap(lambda: ocvt(0))) + singles(cap(lambda: (ord_(0), ord_(1))))
        fill += spread(tail0, nb + half + 2, nb + half + 8)
        fill += [(nb + half + 11, cap(lambda: (wait(lgkm=0), ost(0)))), (min(89, nb + half + 13), cap(lambda: ost(1)))]
        fill.sort(key=lambda t: t[0])
        gemm2(bf, offs, {12: WO6 - WO0}, fill, "o", nks=18 - NPF, extra=extra)
        stamp("ogemm")
        nanchk((ACK[1][0][0], ACK[1][1][0]), "1")
        ocvt(1)
        for i in (2, 3, 4): ord_(i)
        for i in (2, 3, 4):
            wait(lgkm=4 - i); ost(i)
    else:
        fill += spread(singles(cap(out_addr)), 70, 88)
        gemm2(bf, offs, {12: WO6 - WO0}, fill, "o")
        stamp("ogemm")
        nanchk((ACK[0][0][0], ACK[1][0][0]), "1")
        ocvt(0); ocvt(1)
        for i in range(5): ord_(i)
        for i in range(5):
            wait(lgkm=4 - i); ost(i)
    I("s_or_b32", sT0, sSL, sG)
    I("s_cmp_lg_u32", sT0, 0)
    I("s_cbranch_scc1", "L_noep" + path)
    I("s_lshl_b32", sT0, sA, 7); I("s_add_u32", sT0, sT0, WS_E)
    I("v_mov_b32", T[0], 0); I("v_mov_b32", T[1], sE)
    I("buffer_store_dword", T[1], T[0], SWS, sT0, mods="offen")
    P.label("L_noep" + path)
    if OPT["stamps"]:
        stamp("stiss")
        if B: P.label("L_fin")
        OPT["mute"] = 0
        wait(vm=0)
        stamp("end")
        I("s_memrealtime", s(100, 2))
        wait(lgkm=0)
        if OPT["fine"]:
            for k, nm in enumerate(OPT["fine"].split(",")):
                stamp_names.append(nm); STAMPS[k] = s(4 + 2 * k)
        n = len(stamp_names)
        for k in range(n):
            if OPT["lite"] and k != OPT["amp"] and k != n - 1: continue
            assert OPT["lite"] or n <= 17
            I("s_sub_u32", STAMPS[k], STAMPS[k], s(96 if (OPT["lite"] == 2 or OPT["rt"]) else 98))
            I("v_mov_b32", v(64 + k), STAMPS[k])
        I("v_mov_b32", v(64 + 28), sT2); I("v_mov_b32", v(64 + 29), s(3))
        I("v_mov_b32", v(64 + 30), s(96)); I("v_mov_b32", v(64 + 31), s(100))
        I("s_lshl_b32", sT0, s(2), 2); I("s_add_u32", sT0, sT0, sWV); I("s_lshl_b32", sT0, sT0, 7); I("s_add_u32", sT0, sT0, WS_ST)
        I("v_mov_b32", T[0], 0)
        I("s_mov_b64", "exec", 1)
        for q in range(8):
            I("buffer_store_dwordx4", v(64 + 4 * q, 4), T[0], SWS, sT0, mods="offen offset:%d" % (16 * q))
        if OPT["amp"] >= 0 and OPT["ampsel"] in (0, 2 if B else 1):
            I("s_lshl_b32", sT2, STAMPS[OPT["amp"]], 3)
            I("s_add_u32", sT2, sT2, STAMPS[n - 1])
            P.label("L_amp" + path)
            I("s_memrealtime" if OPT["lite"] == 2 else "s_memtime", s(100, 2)); wait(lgkm=0)
            I("s_sub_u32", sT1, s(100), s(96 if OPT["lite"] == 2 else 98))
            I("s_cmp_lt_u32", sT1, sT2)
            I("s_cbranch_scc1", "L_amp" + path)

HEADER = open("cdna_kernels/%s.s.ref" % NAME).read().split("; Override launch")[0]

def wrap(body):
    txt = HEADER + "; @launch grid=(256,1,1) block=(256,1,1) lds=%d\n" % LDS_BYTES
    txt += "; stamps: %s\n" % ",".join(stamp_names) if stamp_names else ""
    txt += '.amdgcn_target "amdgcn-amd-amdhsa--gfx950"\n.text\n.globl %s_kernel\n.p2align 12\n.type %s_kernel,@function\n' % (NAME, NAME)
    txt += ".set CODE_SPAN, (L_last - %s_kernel - 128) & 0xffffff80\n" % NAME
    txt += ".set HEAD_LINES, ((L_tailB - %s_kernel) >> 7) + 8\n.set A_SHIFT, (L_tailA - L_tailB - 2048) & 0xffffff80\n" % NAME
    txt += "%s_kernel:\n%s\n" % (NAME, body)
    txt += """.section .rodata,"a"
.p2align 6
.amdhsa_kernel %s_kernel
  .amdhsa_next_free_vgpr 512
  .amdhsa_next_free_sgpr 102
  .amdhsa_accum_offset 256
  .amdhsa_group_segment_fixed_size 0
  .amdhsa_kernarg_size 80
  .amdhsa_user_sgpr_count 2
  .amdhsa_user_sgpr_kernarg_segment_ptr 1
  .amdhsa_system_sgpr_workgroup_id_x 1
.end_amdhsa_kernel
""" % NAME
    return txt

def main(out):
    build()
    txt = P.finalize2(wrap)
    open(out, "w").write(txt)
    print("wrote", out, "hazard nops:", P.nops, "align fixes:", P.fixes, "bytes:", P.bytes, "touch points:", P.points)

if __name__ == "__main__":
    out = sys.argv[1]
    for kv in sys.argv[2:]:
        k, val = kv.split("=")
        assert k in OPT, k
        OPT[k] = val if k in ("stop", "fine") else int(val)
    main(out)
```

```python
import sys, struct
from asmdsl import *

NAME = "concat_heads__linear_attn_block__linear_kernel_hedgehog__prompt"
OPT = dict(stamps=0, nphase=6, amp=-1, ampsel=0, lite=0, outflag=2, oflag=0, wb=0, rs_at=40, rs_chk=62, rs_len=27, ag_frac=56, ag_fracA=90, dA=4, npre=3, t0=16, t1=36, pw=0, pfo=0, pfq=0, wdn=8, pfx=0, perm=0, gord=1, xo=2, zv=1, s1m=0, ex=0, snake=0, pois0=0, j1=1, j2=0, j3=1, j4=0, psp=3, w0=3, qd=4, od=4, nq=26, pf2=0, nowa=0, apo=150, apq=0, apx=0, ars=1, rb_at=62, rb_chk=84, rf_at=48, bfirst=0, rb_len=16, npf=6, agc=86, agb=93, xsh=0, swap07=1,
           stop="", p1st=0, touch=1, fine="", itouch=1, rt=0)

def f2u(x): return struct.unpack("<I", struct.pack("<f", x))[0]
LOG2E = 1.4426950408889634

XSLOT = 16384
WSL = 49152; WSLOT = 18432
WQ0 = 104448
WQ6 = 76800
PHI = 104448
ZERO = 159744
IMG = 0
IR = 80
VF = 40960
KVI = 61440
WO0 = 0
WO6 = 104448
OUTB = 76800
LDS_BYTES = 163840
PGRP = 48 * 4096
WS_F = 0x300000; WS_E = 0x380000; WS_R = 0x390000; WS_O = 0x400000; WS_ST = 0x900000; WS_BYTES = 0xA00000
OOB = 0x7ffffff0
SPIN = 30000
Q0 = [0, 32, 96, 160, 224]
WSTEP = 64 * 3456

SX, SW, SWO, SWS, SOUT, SPHI = s(24, 4), s(28, 4), s(32, 4), s(36, 4), s(40, 4), s(48, 4)
sL0, sL1, sL2, sL3 = s(44), s(45), s(46), s(47)
sA, sRT, sG, sWV = s(52), s(53), s(54), s(55)
sOQ, sOX, sOW = s(56), s(57), s(58)
s1152 = s(59)
sMX, sMW = s(60), s(61)
sT0, sT1, sT2, sT3 = s(62), s(63), s(64), s(65)
sSL = s(66)
sROT = s(67)
sPME, sRSB, sRF, sOB = s(68), s(69), s(70), s(71)
sCNT = s(72)
sFSL = s(73)
sC = s(74, 2)
sEPS = s(76, 2)
sODD = s(78, 2)
sMQ = s(80)
sOO = s(81)
sPC = s(82, 2)
sTAG, sMSK = s(82), s(83)
sOU = [s(84 + u) for u in range(8)]
sAG = s(92)
sO8 = s(93)
sOUTB = s(94)
sE = s(95)
sM8 = s(20); sQ8 = s(21); sPM2 = s(22); sPM3 = s(23)
sG144 = s(48); sRV = s(49); sQE = s(50); sOE = s(51)
STAMPS = [s(3 + i % 17) for i in range(28)]

vL = v(0)
T = [v(i) for i in range(1, 10)]
vOX = [v(10 + i) for i in range(4)]
vOW = [v(14 + i) for i in range(5)]
vXR = [v(19), v(20)]
vTR = [[v(21 + 2 * p + e) for e in range(2)] for p in range(5)]
vOQ = [v(31 + i) for i in range(5)]
vOO = [v(36 + i) for i in range(5)]
vO8 = [v(41 + i) for i in range(5)]
vL16 = v(46)
vGL, vN = v(47), v(48)
vM, vPSA, vKB0, vKB2, vFS, vL4, vIW, vVW, vAM, vAL, vP1 = [v(49 + i) for i in range(11)]
vP2, vP3, vAG1, vAG2 = v(60), v(61), v(62), v(63)
ACK = [[v(64 + 20 * p + 4 * t, 4) for t in range(5)] for p in range(2)]
ACV = [[v(104 + 20 * p + 4 * t, 4) for t in range(5)] for p in range(2)]
RING = [v(144 + 4 * i, 4) for i in range(8)]
KB = [v(176 + 12 * p, 12) for p in range(2)]
PH = [v(200 + 20 * p, 20) for p in range(2)]
TMP = v(144, 24)
PW = v(240, 3); M1 = v(244, 4); PA = v(248, 3); vR, vC = v(251), v(252)
vPH = [v(243), v(253), v(254)]
def XF(ks, p): return a(ks * 8 + p * 4, 4)
def PHIF(t, j): return a(144 + (t * 3 + j) * 4, 4)
def PSIF(t, j): return a((t * 5 + j) * 4, 4)

P = Prog()
I = P.I
cap = P.capture
stamp_names = []
def fst(name):
    names = OPT["fine"].split(",")
    if name in names:
        k = names.index(name)
        I("s_memrealtime" if OPT["rt"] else "s_memtime", s(4 + 2 * k, 2), c="fine " + name)
def stamp(name):
    if OPT["fine"]:
        fst(name)
    elif OPT["stamps"] and not OPT.get("mute"):
        k = len(stamp_names); stamp_names.append(name)
        real = True
        if OPT["lite"]:
            real = (k == OPT["amp"] or name == "end")
            if real: STAMPS[k] = s(5) if name == "end" else (s(4) if k else s(3))
        if real:
            I("s_memrealtime" if OPT["lite"] == 2 else "s_memtime", s(100, 2), c="stamp " + name)
            I("s_waitcnt", "lgkmcnt(0)")
            I("s_mov_b32", STAMPS[k], s(100))
    if OPT["stop"] == name:
        I("s_branch", "L_fin"); OPT["mute"] = 1

def wait(vm=None, lgkm=None):
    t = []
    if vm is not None: t.append("vmcnt(%d)" % vm)
    if lgkm is not None: t.append("lgkmcnt(%d)" % lgkm)
    I("s_waitcnt", " ".join(t))
def wait_vm(tag, lgkm=None): P.items.append(VmWait(tag, lgkm))
def tagged(groups, tag):
    for g in groups:
        for x in g:
            if isinstance(x, Ins) and x.kind == "vmem": x.tag = tag
    return groups
def mark(items, **kw):
    for x in items:
        if isinstance(x, Ins):
            for k, val in kw.items(): setattr(x, k, val)
    return items

def srd(dst, lo, hi, size):
    I("s_mov_b32", dst[0], lo); I("s_mov_b32", dst[1], hi)
    I("s_mov_b32", dst[2], size); I("s_mov_b32", dst[3], 0x20000)
def singles(items): return [[x] for x in items]
def emit_groups(groups):
    for g in groups: P.put(g)

def dma5(voffs, srdreg, soff, m0base, m0imm):
    def first():
        I("s_add_u32", "m0", m0base, m0imm)
        I("s_mov_b32", "exec_hi", 0)
        I("buffer_load_dwordx4", voffs[0], srdreg, soff, mods="offen lds")
        I("s_mov_b32", "exec_hi", -1)
    g = [cap(first)]
    for i in range(1, 5):
        g += singles(cap(lambda: I("buffer_load_dwordx4", voffs[i], srdreg, soff, mods="offen offset:%d lds" % (16 * Q0[i]))))
    return g

PERMS = {
    1: (3, [[7, 3, 6, 1, 8, 4, 2, 0, 5], [1, 3, 7, 2, 4, 8, 6, 0, 5], [3, 8, 1, 6, 2, 7, 0, 4, 5]]),
    2: (4, [[4, 0, 1, 5, 6, 2, 8, 7, 3], [4, 1, 5, 2, 7, 0, 6, 8, 3], [1, 4, 6, 7, 0, 2, 3, 5, 8], [4, 6, 1, 7, 3, 0, 5, 2, 8]]),
    3: (3, [[0, 1, 2, 3, 4, 5, 6, 7, 8], [1, 2, 0, 4, 5, 3, 7, 8, 6], [2, 0, 1, 5, 3, 4, 8, 6, 7]]),
    4: (8, [[3, 7, 5, 0, 8, 1, 4, 2, 6], [3, 5, 0, 4, 7, 6, 1, 8, 2], [5, 7, 4, 2, 0, 8, 3, 1, 6], [5, 3, 0, 8, 7, 2, 6, 1, 4], [3, 0, 4, 5, 8, 7, 6, 2, 1], [3, 5, 7, 0, 1, 2, 4, 8, 6], [7, 5, 2, 0, 4, 8, 6, 1, 3], [3, 4, 7, 0, 2, 1, 6, 8, 5]]),
    5: (3, [[0, 1, 2, 3, 4, 5, 6, 7, 8], [3, 4, 5, 6, 7, 8, 0, 1, 2], [6, 7, 8, 0, 1, 2, 3, 4, 5]]),
}
SBO = s(88, 4)
SBQ = s(12, 4)
SBX = s(76, 4)
sPM = s(22, 2)
sPQ = s(16, 2)
sXB0, sWB0, sXSH = s(84 + 1), s(84 + 2), s(84 + 3)
def stage_of(dst, src):
    I("s_and_b32", dst, src, 15)
    if OPT["xsh"]:
        I("s_add_u32", dst, dst, sXSH)
def stage_fix(dst):
    I("s_cmp_ge_u32", dst, 9)
    I("s_cselect_b32", sT1, 9, 0)
def perm_next():
    g = singles(cap(lambda: stage_of(sT0, sPM[0])))
    if OPT["xsh"]: g += [cap(lambda: stage_fix(sT0))] + singles(cap(lambda: I("s_sub_u32", sT0, sT0, sT1)))
    def f():
        I("s_lshr_b64", sPM, sPM, 4)
        I("s_lshl_b32", sOX, sT0, 7); I("s_add_u32", sOX, sOX, sXB0)
        I("s_mul_i32", sOW, sT0, WSTEP); I("s_add_u32", sOW, sOW, sWB0)
    return g + singles(cap(f))
def permq_next():
    g = singles(cap(lambda: stage_of(sT0, sPQ[0])))
    if OPT["xsh"]: g += [cap(lambda: stage_fix(sT0))] + singles(cap(lambda: I("s_sub_u32", sT0, sT0, sT1)))
    def f():
        I("s_lshr_b64", sPQ, sPQ, 8)
        I("s_mul_i32", sOQ, sT0, WSTEP); I("s_add_u32", sOQ, sOQ, sQE)
    return g + singles(cap(f))
def wraps_after(j):
    rots = {1: [0], 2: [0, 4], 3: [0, 3, 6], 4: [0, 2, 4, 6], 5: [0, 2, 5, 7], 8: list(range(8)), 6: list(range(9)), 7: list(range(9))}[OPT["nphase"]]
    return any(r + j == 8 for r in rots) and j < 8
def x_dma(j):
    g = singles(cap(lambda: I("s_add_u32", "m0", sMX, (j % 3) * XSLOT)))
    for i in range(4):
        g += singles(cap(lambda: I("buffer_load_dwordx4", vOX[i], SX, sOX, mods="offen offset:%d lds" % (1024 * i))))
    return tagged(g, "S%d" % j)
def w_dma(j):
    g = tagged(dma5(vOW, SW, sOW, sMW, (j % 3) * WSLOT), "S%d" % j)
    if j < 8 and OPT["perm"]:
        g += perm_next()
    elif j < 8:
        g += singles(cap(lambda: (I("s_add_u32", sOX, sOX, 128), I("s_add_u32", sOW, sOW, WSTEP))))
        if wraps_after(j):
            def wr():
                I("s_cmp_eq_u32", sROT, 8 - j)
                I("s_cselect_b32", sT0, 1152, 0); I("s_cselect_b32", sT1, 9 * WSTEP, 0)
            g.append(cap(wr))
            g += singles(cap(lambda: (I("s_sub_u32", sOX, sOX, sT0), I("s_sub_u32", sOW, sOW, sT1))))
    return g
def stage_dma(j): return x_dma(j) + w_dma(j)

def advance(reg, step, end, span):
    def a1():
        I("s_add_u32", reg, reg, step)
        I("s_cmp_ge_u32", reg, end)
        I("s_cselect_b32", sT0, span, 0)
    return [cap(a1)] + singles(cap(lambda: I("s_sub_u32", reg, reg, sT0)))
def wq_pair_dma(j):
    pos = (WQ0 + j * 9216) if j < 6 else (WQ6 + (j - 6) * 9216)
    if j == 8:
        return singles(cap(lambda: I("s_add_u32", sOQ, sOQ, sQ8))) + tagged(dma5(vOQ, SW, sOQ, sM8, pos), "WQ8")
    g = tagged(dma5(vOQ, SW, sOQ, sMQ, pos), "WQ%d" % j)
    g += permq_next() if OPT["perm"] else advance(sOQ, 2 * WSTEP, sQE, 9 * WSTEP)
    if j == 0 and OPT["perm"]: g = permq_next() + g
    return g
def wo_pair_dma(u):
    pos = (WO0 + u * 9216) if u < 6 else (WO6 + (u - 6) * 9216)
    g = tagged(dma5(vOO, SWO, sOO, sMQ, pos), "WO%d" % u)
    if OPT["nowa"] & 1: return [cap(lambda: I("s_nop", 0)) for _ in range(5)]
    if u < 6 and OPT["gord"]:
        def nx():
            I("s_add_u32", sT0, sOE, u + 1)
            I("s_cmp_ge_u32", sT0, sG)
            I("s_addc_u32", sT0, sT0, 0)
        g += [cap(nx)] + singles(cap(lambda: (I("s_mul_i32", sT0, sT0, 82944), I("s_add_u32", sOO, sT0, sO8))))
    elif u < 6: g += advance(sOO, 2 * 82944, sOE, 8 * 82944)
    return g
def only_waves01(groups, tag):
    def f():
        I("s_cmp_ge_u32", sWV, 2)
        I("s_cbranch_scc1", "L_skip_" + tag)
        for g in groups: P.put(mark(g, cond=True))
        P.label("L_skip_" + tag)
    return [cap(f)]

def tr(dst, addr, off):
    assert 0 <= off < 65536, off
    I("ds_read_b64_tr_b16", dst, addr, mods="offset:%d" % off)
def mfma(d, x, y, c): I("v_mfma_f32_16x16x32_bf16", d, x, y, c)
def tile_read(dstreg, T_, base_off):
    if T_ < 3: pat, o = 0, 8 * T_
    elif T_ == 3: pat, o = 1, 0
    elif T_ == 4: pat, o = 2, 0
    elif T_ < 9: pat, o = 3, 144 + 8 * [0, 5, 9, 14][T_ - 5]
    else: pat, o = 4, 144
    for e in range(2):
        tr(dstreg[2 * e:2 * e + 2], vTR[pat][e], base_off + o)

class Pipe:
    def __init__(self, dist=4, grp=2):
        self.units = []; self.dist = dist; self.grp = grp; self.hooks = {}
    def add(self, rd, work, pre=None, rt=None):
        k = len(self.units)
        wk = cap(work)
        if OPT["snake"] and k & 1 and self.grp == 2: wk = wk[::-1]
        self.units.append((cap(rd), wk, cap(pre) if pre else None, k - self.dist if rt is None else rt))
    def emit(self, fill=(), bulk=(), lead=()):
        fill = list(fill); bulk = list(bulk)
        U = self.units; n = len(U)
        seq = []
        state = dict(done=0)
        def put(items, owner=-1):
            for x in items:
                if isinstance(x, Ins) and x.kind == "ds": seq.append(owner)
                if isinstance(x, Ins) and x.op == "s_waitcnt" and ("lgkmcnt(0)" in x.args[0] or getattr(x, "lgkm", None) == 0): state["done"] = len(seq)
            P.put(items)
        def need_wait(k):
            last = max([i for i, o in enumerate(seq) if o == k] + [-1])
            return last >= state["done"]
        byt = {}
        for k, u in enumerate(U): byt.setdefault(max(u[3], -1), []).append(k)
        for k in byt.get(-1, []): put(U[k][0], k)
        put(list(lead))
        while bulk and bulk[0][0] < 0: put(bulk.pop(0)[1])
        def take(k):
            if fill and fill[0][0] <= k: put(fill.pop(0)[1]); return True
            if bulk and bulk[0][0] <= k + 6: put(bulk.pop(0)[1]); return True
            return False
        for k in range(n):
            if k in self.hooks: put(self.hooks[k])
            if U[k][2]: put(U[k][2])
            if need_wait(k):
                want = [q for q in range(k, min(n, k + self.grp)) if U[q][3] < k - 1 or q == k]
                last = max(i for i, o in enumerate(seq) if o in want)
                later = len(seq) - 1 - last
                assert later <= 15, later
                wait(lgkm=later); state["done"] = last + 1
            nxt = [(x, q) for q in byt.get(k, []) for x in U[q][0]]
            half = (len(nxt) + 1) // 2
            w = U[k][1]
            P.put([w[0]])
            for x, q in nxt[:half]: put([x], q)
            for _ in range(max(0, 2 - half)): take(k)
            P.put(w[1:])
            for x, q in nxt[half:]: put([x], q)
            rest = len(nxt) - half + (1 if (k + 1 < n and need_wait(k + 1)) else 0) + (2 if k + 1 in self.hooks else 0)
            for _ in range(max(0, 2 - rest)): take(k)
            while fill and fill[0][0] <= k - 3: put(fill.pop(0)[1])
            while bulk and bulk[0][0] <= k: put(bulk.pop(0)[1])
        for _, g in fill + bulk: put(g)

def vm_only(groups):
    if groups[0][0].op == "s_nop": return groups
    out = []
    for g in groups:
        if any(x.kind == "vmem" for x in g) or not out: out.append(list(g))
        else: out[-1] += g
    return out
def weave(a_, b_):
    out = []; na, nb = len(a_), len(b_); i = j = 0
    while i < na or j < nb:
        if j >= nb or (i < na and i * nb <= j * na): out.append(a_[i]); i += 1
        else: out.append(b_[j]); j += 1
    return out
def at(unit, groups): return [(unit + i * 2 // 3, g) for i, g in enumerate(groups)]
def spread(groups, first, last):
    n = len(groups)
    return [(first + (last - first) * i // max(1, n), g) for i, g in enumerate(groups)]
def merge(main, extra, start=0, step=2):
    out = []; extra = list(extra)
    for i, x in enumerate(main):
        out.append(x)
        if extra and i >= start and (i - start) % step == step - 1: out += extra.pop(0)
    for g in extra: out += g
    return out

def sm_head(src18, tmp):
    mx, mn = tmp[18], tmp[19]
    I("v_max3_f32", mx, src18[0], src18[1], src18[2]); I("v_min3_f32", mn, src18[0], src18[1], src18[2])
    for i in range(3, 17, 2):
        I("v_max3_f32", mx, mx, src18[i], src18[i + 1]); I("v_min3_f32", mn, mn, src18[i], src18[i + 1])
    I("v_max_f32", mx, mx, src18[17]); I("v_min_f32", mn, mn, src18[17])
    I("v_mul_f32", tmp[20], sC[0], mx); I("v_mul_f32", tmp[21], sC[0], mn)
def sm_tail(src18, out18, tmp):
    ab = tmp[20:22]
    for i in range(0, 18, 2):
        I("v_pk_fma_f32", tmp[i:i + 2], src18[i:i + 2], sC, ab, mods="op_sel:[0,0,1] op_sel_hi:[1,1,1] neg_lo:[1,0,0] neg_hi:[1,0,0]")
        I("v_pk_fma_f32", src18[i:i + 2], src18[i:i + 2], sC, ab, mods="op_sel:[0,0,0] op_sel_hi:[1,1,0] neg_lo:[0,0,1] neg_hi:[0,0,1]")
    sp, sn = tmp[18:20], tmp[20:22]
    for i in range(0, 18, 2):
        for h in range(2):
            I("v_exp_f32", src18[i + h], src18[i + h]); I("v_exp_f32", tmp[i + h], tmp[i + h])
        if i == 4:
            I("v_pk_add_f32", sp, src18[0:2], src18[2:4]); I("v_pk_add_f32", sn, tmp[0:2], tmp[2:4])
        elif i > 4:
            I("v_pk_add_f32", sp, sp, src18[i - 2:i]); I("v_pk_add_f32", sn, sn, tmp[i - 2:i])
    I("v_pk_add_f32", sp, sp, src18[16:18]); I("v_pk_add_f32", sn, sn, tmp[16:18])
    rr = tmp[22:24]
    I("v_add_f32", rr[0], sp[0], sp[1]); I("v_add_f32", rr[1], sn[0], sn[1])
    I("v_rcp_f32", rr[0], rr[0]); I("v_rcp_f32", rr[1], rr[1])
    def el(d): return (src18[2 * d:2 * d + 2], "op_sel:[0,0] op_sel_hi:[1,0]") if d < 9 else (tmp[2 * (d - 9):2 * (d - 9) + 2], "op_sel:[0,1] op_sel_hi:[1,1]")
    for d in range(0, 18, 2):
        for h in range(2): I("v_pk_mul_f32", el(d + h)[0], el(d + h)[0], rr, mods=el(d + h)[1])
        for h in range(2): I("v_cvt_pk_bf16_f32", out18[d + h], el(d + h)[0][0], el(d + h)[0][1])

ACC = [v(64 + 20 * p, 20) for p in range(2)]
def cv(p):
    I("v_cndmask_b32", ACC[p][16], ACC[p][16], ACC[p][18], sODD)
    I("v_cndmask_b32", ACC[p][17], ACC[p][17], ACC[p][19], sODD)
    for i in range(9): I("v_cvt_pk_bf16_f32", KB[p][i], ACC[p][2 * i], ACC[p][2 * i + 1])

def chase(body, groups):
    out = []; groups = list(groups)
    lastdef = {}
    for i, x in enumerate(body):
        if isinstance(x, Ins):
            for r in x.defs: lastdef[r] = i
    pos = {}
    for g in groups:
        p_ = max([lastdef.get(r, -1) for x in g for r in x.uses] + [-1])
        pos.setdefault(p_, []).append(g)
    for g in pos.get(-1, []): out += g
    for i, x in enumerate(body):
        out.append(x)
        for g in pos.get(i, []): out += g
    return out

def evenly(lst, groups, lo=0, hi=100):
    out = []; groups = list(groups); n = len(lst); m = len(groups)
    pos = [n * lo // 100 + (n * (hi - lo) // 100) * i // max(1, m) for i in range(m)]
    for i, x in enumerate(lst):
        out.append(x)
        while groups and pos[0] <= i:
            out += groups.pop(0); pos.pop(0)
    for g in groups: out += g
    return out

def feature_map(path, tag, cv_done, shadow, mid0, mid1, after_p):
    if path == "B":
        def mm(p):
            for j in range(3):
                for t in range(5):
                    mfma(ACK[p][t], PHIF(t, j), KB[p][4 * j:4 * j + 4], 0 if j == 0 else ACK[p][t])
        body = [] if cv_done else cap(lambda: cv(0))
        sh = ([] if cv_done else singles(cap(lambda: cv(1)))) + list(shadow)
        head0 = singles(cap(lambda: sm_head(ACC[0][0:18], TMP)))
        ms = cap(lambda: (mm(0), mm(1)))
        for i, x in enumerate(ms):
            body.append(x)
            if i == 19: sh = head0 + sh
            k = 0
            while sh and k < 2:
                g = sh.pop(0); body += g; k += len(g)
        for g in sh: body += g
        body += cap(lambda: fst(tag + "mm"))
        body += evenly(cap(lambda: sm_tail(ACC[0][0:18], PH[0][0:18], TMP)), *mid0)
        body += cap(lambda: fst(tag + "t0"))
        t1 = cap(lambda: (sm_head(ACC[1][0:18], TMP), sm_tail(ACC[1][0:18], PH[1][0:18], TMP)))
        t1 = evenly(t1, after_p(0), 2, 66)
        t1 = evenly(t1, *mid1)
        body += chase(t1, after_p(1))
    else:
        def pa(p):
            x = ACC[p]
            if not cv_done:
                I("v_cndmask_b32", x[16], x[16], x[18], sODD); I("v_cndmask_b32", x[17], x[17], x[19], sODD)
            for i in range(0, 18, 2): I("v_pk_mul_f32", TMP[i:i + 2], x[i:i + 2], sC)
            for d in range(9):
                for i in (2 * d, 2 * d + 1):
                    I("v_exp_f32", TMP[i], TMP[i], mods="clamp")
                    I("v_max_f32", x[i], 0, x[i])
                I("v_pk_add_f32", x[2 * d:2 * d + 2], x[2 * d:2 * d + 2], sEPS)
                I("v_pk_add_f32", x[2 * d:2 * d + 2], x[2 * d:2 * d + 2], TMP[2 * d:2 * d + 2])
                I("v_cvt_pk_bf16_f32", KB[p][d], x[2 * d], x[2 * d + 1])
        body = []
        for g in shadow: body += g
        body += cap(lambda: fst(tag + "mm"))
        body += chase(evenly(cap(lambda: pa(0)), *mid0), after_p(0))
        body += cap(lambda: fst(tag + "t0"))
        t1 = cap(lambda: pa(1))
        t1 = evenly(t1, *mid1)
        body += chase(t1, after_p(1))
    return body + cap(lambda: fst(tag + "t1"))

def umax(dst, regs):
    regs = list(regs)
    I("v_max3_u32", dst, regs[0], regs[1], regs[2]); regs = regs[3:]
    while len(regs) >= 2:
        I("v_max3_u32", dst, dst, regs[0], regs[1]); regs = regs[2:]
    if regs: I("v_max_u32", dst, dst, regs[0])

SLOW = []
def check_or_retry(tag, fold, cmp_bad, loads):
    g = singles(cap(fold))
    def test():
        cmp_bad()
        I("s_cbranch_vccnz", "L_slow_" + tag)
        P.label("L_back_" + tag)
    g.append(cap(test))
    def slow():
        P.label("L_slow_" + tag)
        I("s_mov_b32", sCNT, 0)
        P.label("L_sp_" + tag)
        if OPT["stamps"] and not OPT["lite"]: I("s_add_u32", s(3), s(3), {"r": 1, "a": 0x100, "o": 0x10000}[tag[0]] if not tag.startswith("rf") else 0x1000000)
        loads()
        wait(vm=0)
        fold()
        cmp_bad()
        I("s_add_u32", sCNT, sCNT, 1)
        I("s_cmp_gt_u32", sCNT, SPIN)
        I("s_cbranch_scc1", "L_back_" + tag)
        I("s_cbranch_vccnz", "L_sp_" + tag)
        I("s_branch", "L_back_" + tag)
    SLOW.append(cap(slow))
    return g
def check_sent(tag, chk, regs, loads):
    return check_or_retry(tag, lambda: umax(chk, regs), lambda: I("v_cmp_eq_u32", "vcc", -1, chk), loads)
def check_tag(tag, chk, regs, loads):
    def fold():
        for r in regs: I("v_xor_b32", r, sTAG, r)
        I("v_or3_b32", chk, regs[0], regs[1], regs[2])
        for i in range(3, len(regs) - 1, 2): I("v_or3_b32", chk, chk, regs[i], regs[i + 1])
        I("v_or_b32", chk, chk, regs[-1])
        I("v_and_b32", chk, 0xff, chk)
    return check_or_retry(tag, fold, lambda: I("v_cmp_ne_u32", "vcc", 0, chk), loads)

def build():
    I("s_cmp_ge_u32", s(2), 256)
    I("s_cbranch_scc1", "L_end")
    if OPT["swap07"]:
        I("s_add_u32", sT0, s(2), 1); I("s_and_b32", sT0, sT0, 6)
        I("s_cselect_b32", sT0, 0, 7)
        I("s_xor_b32", s(2), s(2), sT0)
    I("s_bfe_u32", sA, s(2), 0x10002)
    I("s_cmp_lg_u32", sA, 0)
    I("s_cselect_b32", sT0, 0, 24)
    I("s_cselect_b32", sT1, 8, 32)
    I("s_cselect_b32", sT2, 16, 48)
    I("s_load_dwordx2", SX[0:2], s(0, 2), sT0)
    I("s_load_dwordx2", SW[0:2], s(0, 2), sT1)
    I("s_load_dwordx2", SWO[0:2], s(0, 2), sT2)
    I("s_load_dwordx2", SPHI[0:2], s(0, 2), 40)
    I("s_load_dwordx2", SOUT[0:2], s(0, 2), 56)
    I("s_load_dwordx2", SWS[0:2], s(0, 2), 72)
    if OPT["apo"]: I("s_load_dwordx2", SBO[0:2], s(0, 2), 48)
    if OPT["apq"]: I("s_load_dwordx2", SBQ[0:2], s(0, 2), 32)
    if OPT["apx"]: I("s_load_dwordx2", SBX[0:2], s(0, 2), 24)
    I("s_getpc_b64", sPC)
    I("s_and_b32", sT0, s(2), 0xf8)
    I("v_lshrrev_b32", T[0], 5, v(0))
    I("v_add_lshl_u32", T[1], T[0], sT0, 7)
    I("s_cmp_ge_u32", sT0, "HEAD_LINES")
    I("s_cselect_b32", sT1, sA, 0)
    I("s_mul_i32", sT1, sT1, "A_SHIFT")
    I("v_add_u32", T[1], sT1, T[1])
    I("v_min_u32", T[1], "CODE_SPAN", T[1])
    I("global_load_dword", v(255), T[1], sPC)
    if OPT["stamps"]:
        I("s_memtime", s(98, 2)); I("s_memrealtime", s(96, 2))
        if OPT["fine"]: I("s_mov_b32", s(3), 0)
    I("v_readfirstlane_b32", sWV, T[0])
    I("v_and_b32", vL, 63, v(0))
    I("s_and_b32", sT0, s(2), 3)
    I("s_lshr_b32", sT1, s(2), 6)
    I("s_lshr_b32", sWV, sWV, 1)
    I("s_lshl2_add_u32", sRT, sT0, sT1)
    I("s_bfe_u32", sG, s(2), 0x30003)
    if OPT["perm"]:
        K, tab = PERMS[OPT["perm"]]
        if OPT["xsh"]: I("s_mul_i32", sXSH, sT0, OPT["xsh"])
        if K == 8:
            I("s_lshl1_add_u32", sT0, sT1, sG); I("s_and_b32", sT0, sT0, 7)
        elif K == 4:
            I("s_add_u32", sT0, sG, sT1); I("s_and_b32", sT0, sT0, 3)
        else:
            I("s_add_u32", sT0, sG, sT1); I("s_mul_i32", sT1, sT0, 86); I("s_lshr_b32", sT1, sT1, 8)
            I("s_mul_i32", sT1, sT1, 3); I("s_sub_u32", sT0, sT0, sT1)
        lo = [sum(p[i] << (4 * i) for i in range(8)) for p in tab]
        I("s_mov_b32", sPM[0], lo[0])
        for k_ in range(1, K):
            I("s_cmp_eq_u32", sT0, k_); I("s_cselect_b32", sPM[0], lo[k_], sPM[0])
        I("s_lshl_b32", sT0, sT0, 2)
        I("s_lshr_b32", sPM[1], sum(p[8] << (4 * k_) for k_, p in enumerate(tab)), sT0)
        I("s_and_b32", sPM[1], sPM[1], 15)
        I("s_lshl_b32", sT0, sWV, 1); I("s_and_b32", sT0, sT0, 4)
        I("s_lshr_b64", sPQ, sPM, sT0)
        I("s_mov_b32", sROT, 0)
    elif OPT["nphase"] == 7:
        I("s_add_u32", sT1, sG, sT1)
        I("s_and_b32", sT1, sT1, 1)
        I("s_lshl2_add_u32", sROT, sT1, sT0)
        I("s_add_u32", sROT, sROT, sT1)
    elif OPT["nphase"] in (3, 6):
        if OPT["nphase"] == 6:
            I("s_cmp_eq_u32", sT0, 3); I("s_cselect_b32", sT2, 1, sT0)
        I("s_add_u32", sT0, sG, sT1)
        I("s_mul_i32", sT1, sT0, 86)
        I("s_lshr_b32", sT1, sT1, 8)
        I("s_mul_i32", sT1, sT1, 3)
        I("s_sub_u32", sT0, sT0, sT1)
        I("s_mul_i32", sROT, sT0, 3)
        if OPT["nphase"] == 6: I("s_add_u32", sROT, sROT, sT2)
    elif OPT["nphase"] == 4:
        I("s_add_u32", sT0, sG, sT1)
        I("s_and_b32", sT0, sT0, 3)
        I("s_lshl_b32", sROT, sT0, 1)
    elif OPT["nphase"] == 5:
        I("s_add_u32", sT0, sG, sT1)
        I("s_and_b32", sT0, sT0, 3)
        I("s_mul_i32", sT0, sT0, 5)
        I("s_lshr_b32", sROT, sT0, 1)
    elif OPT["nphase"] == 8:
        I("s_lshl1_add_u32", sT0, sT1, sG)
        I("s_and_b32", sROT, sT0, 7)
    elif OPT["nphase"] == 2:
        I("s_add_u32", sT0, sG, sT1)
        I("s_and_b32", sT0, sT0, 1)
        I("s_lshl_b32", sROT, sT0, 2)
    else:
        I("s_mov_b32", sROT, 0)
    I("s_lshl2_add_u32", sSL, sRT, sWV)
    I("s_mul_i32", sOX, sSL, 32 * 1152)
    I("s_lshl_b32", sT0, sROT, 7)
    I("s_add_u32", sOX, sOX, sT0)
    I("s_lshl_b32", sMX, sWV, 12)
    I("s_mul_i32", sMQ, sWV, 4608)
    I("s_add_u32", sMW, sMQ, WSL)
    I("s_movk_i32", s1152, 1152)
    I("v_lshrrev_b32", T[0], 3, vL)
    I("v_mul_u32_u24", T[0], s1152, T[0])
    I("v_lshrrev_b32", vGL, 4, vL)
    I("v_and_b32", T[1], 7, vL)
    I("v_xor_b32", T[1], T[1], vGL)
    I("v_lshl_add_u32", vOX[0], T[1], 4, T[0])
    I("v_xor_b32", vOX[1], 64, vOX[0])
    I("v_add_u32", vOX[2], 16 * 1152 - 2048, vOX[0])
    I("v_add_u32", vOX[3], 24 * 1152 - 3072, vOX[1])
    I("v_add_u32", vOX[1], 8 * 1152 - 1024, vOX[1])
    I("s_mov_b32", SX[2], 2048 * 1152); I("s_mov_b32", SX[3], 0x20000)
    I("s_mov_b32", SW[2], 576 * 3456); I("s_mov_b32", SW[3], 0x20000)
    I("s_mul_i32", sL3, sG, 144)
    I("s_lshl2_add_u32", sT0, sROT, sWV)
    I("s_mul_i32", sOW, sT0, 16 * 3456)
    I("s_add_u32", sOW, sOW, sL3)
    I("s_add_u32", sOW, sOW, s1152)
    if OPT["perm"]:
        I("s_mov_b32", sXB0, sOX); I("s_mov_b32", sWB0, sOW)
        emit_groups(perm_next())
    I("s_movk_i32", sL0, 3456); I("s_movk_i32", sL1, -144)
    I("v_lshlrev_b32", vL16, 4, vL)
    I("v_mul_u32_u24", vM, 7282, vL)
    DR = [v(64 + i) for i in range(5)]; DP = [v(70 + i) for i in range(5)]; DC = [v(76 + i) for i in range(5)]
    for i in range(5):
        t = vM
        if i:
            I("v_add_u32", T[0], Q0[i] * 7282, vM); t = T[0]
        I("v_lshrrev_b32", T[1], 16, t)
        I("v_lshrrev_b32", DR[i], 17, t)
        I("v_and_b32", DP[i], 1, T[1])
        I("v_mad_i32_i24", DC[i], T[1], sL1, vL16)
        if i == 2:
            I("v_lshrrev_b32", T[2], 1, DR[i]); I("v_and_b32", T[2], 4, T[2]); I("v_xor_b32", DR[i], DR[i], T[2])
        elif i > 2:
            I("v_xor_b32", DR[i], 4, DR[i])
        I("v_mad_u32_u24", T[2], DR[i], sL0, DC[i])
        I("v_mad_u32_u24", vOW[i], DP[i], s1152, T[2])
    for r_, z_ in ((SWO, 576 * 1152), (SPHI, 32 * 648), (SOUT, 2048 * 2304), (SWS, WS_BYTES)):
        I("s_mov_b32", r_[2], z_); I("s_mov_b32", r_[3], 0x20000)
    I("v_lshlrev_b32", vL4, 2, vL)
    I("s_lshl2_add_u32", sT2, sG, sWV); I("s_mul_i32", sT2, sT2, 648)
    I("s_lshl3_add_u32", sL2, sA, sG)
    I("s_lshl_b32", sAG, sL2, 14); I("s_add_u32", sAG, sAG, WS_F)
    I("s_sub_u32", sT0, 2, sA)
    I("s_min_u32", sT1, sWV, sT0); I("s_mul_i32", sT3, sRT, sT0); I("s_add_u32", sT3, sT3, sRT); I("s_add_u32", sRSB, sT1, sT3)
    I("s_lshl_b32", sT1, sRSB, 8); I("s_add_u32", sFSL, sAG, sT1)
    I("s_cmp_gt_u32", sWV, sT0)
    I("s_cselect_b32", sFSL, OOB, sFSL)
    I("s_lshl3_add_u32", sT0, sA, 0); I("s_and_b32", sT1, sRSB, 7); I("s_or_b32", sT0, sT0, sT1)
    I("s_cmp_eq_u32", sT0, 15)
    I("s_cselect_b32", sFSL, OOB, sFSL)
    I("s_subb_u32", sRSB, sRSB, 0)
    I("v_and_b32", vN, 15, vL)
    I("v_and_b32", T[7], 1, vGL)
    I("v_lshlrev_b32", T[0], 2, vGL); I("v_lshl_add_u32", T[0], vN, 4, T[0])
    I("v_lshl_or_b32", vFS, T[7], 30, T[0])
    I("s_mul_i32", sT0, sSL, 32 * 2304)
    I("s_add_u32", sT0, sT0, sL3)
    I("s_xor_b32", sT1, sA, 1); I("s_mul_i32", sT1, sT1, 1152); I("s_add_u32", sOUTB, sT0, sT1)
    I("s_lshl_b32", sT0, sA, 6); I("s_add_u32", sT0, sT0, sSL)
    I("s_lshl_b32", sRF, sT0, 7); I("s_add_u32", sRF, sRF, WS_R)
    if OPT["pois0"]:
        I("s_mul_i32", sOB, sT0, 8 * 4608); I("s_add_u32", sOB, sOB, WS_O)
        I("s_lshl_b32", sT0, sL3, 5); I("s_add_u32", sOU[0], sT0, sOB)
        for i in range(4): I("v_mov_b32", M1[i], -1)
        I("v_lshlrev_b32", v(92), 3, vL); I("v_add_u32", v(92), 4096, v(92))
    if OPT["apx"]:
        I("s_mul_i32", SBX[2], sA, 2048 * 1152); I("s_mov_b32", SBX[3], 0x20000)
        I("s_lshl3_add_u32", sCNT, sSL, sG); I("s_mul_i32", sCNT, sCNT, 4 * 1152)
        I("v_min_u32", v(93), 35, vL); I("v_lshlrev_b32", v(93), 7, v(93))
    I("v_lshlrev_b32", v(90), 20, vL)
    I("v_mov_b32", v(91), 0)
    I("s_mov_b32", sT0, WS_E)
    wait(lgkm=0)
    fst("karg")
    def extras():
        for i in range(3):
            I("buffer_load_dword", PW[i], vL4, SPHI, sT2, mods="offen offset:%d" % (256 * i))
        I("buffer_load_dword", v(255), v(91), SWS, sRF, mods="offen sc1")
        if OPT["touch"]:
            I("buffer_load_dword", v(255), v(90), SWS, 0, mods="offen")
            I("buffer_load_dword", v(255), v(91), SOUT, sOUTB, mods="offen")
            I("buffer_load_dword", v(255), v(91), SWO, sL3, mods="offen")
    def pois0():
        for i in range(4):
            I("buffer_store_dwordx4", M1, vL16, SWS, sOU[0], mods="offen offset:%d sc1" % (1024 * i))
        I("buffer_store_dwordx2", M1[0:2], v(92), SWS, sOU[0], mods="offen sc1")
    if OPT["pois0"] == 1: pois0()
    apx = lambda: I("buffer_load_dword", v(255), v(93), SBX, sCNT, mods="offen")
    if OPT["apx"] == 1: apx()
    emit_groups(x_dma(0))
    I("s_load_dword", sE, SWS[0:2], sT0)
    if OPT["xo"] == 0: extras()
    emit_groups(w_dma(0))
    if OPT["xo"] == 1: extras()
    if OPT["apx"] == 2: apx()
    def xpf():
        I("s_lshl3_add_u32", sT0, sRT, sG); I("s_lshl2_add_u32", sT0, sT0, sWV); I("s_mul_i32", sT0, sT0, 4 * 1152)
        I("v_min_u32", T[1], 35, vL); I("v_lshlrev_b32", T[1], 7, T[1])
        I("buffer_load_dword", v(255), T[1], SX, sT0, mods="offen")
    if OPT["pfx"] == 1: xpf()
    stamp("S0iss")
    I("v_lshrrev_b32", T[0], 1, vN)
    I("v_xor_b32", T[0], T[0], vGL)
    I("v_lshl_add_u32", T[1], vN, 7, sMX)
    I("v_lshl_add_u32", vXR[0], T[0], 4, T[1])
    I("v_xor_b32", vXR[1], 64, vXR[0])
    I("v_bfe_u32", vR, vL, 2, 2)
    I("v_and_b32", vC, 3, vL)
    I("v_lshl_add_u32", T[1], vGL, 3, vR)
    I("v_lshl_add_u32", T[2], T[7], 2, T[1])
    I("v_xor_b32", T[3], 4, T[2])
    I("s_movk_i32", sT0, 288); I("v_mov_b32", T[4], WSL)
    I("v_mad_u32_u24", T[2], T[2], sT0, T[4]); I("v_mad_u32_u24", T[3], T[3], sT0, T[4])
    I("v_mul_u32_u24", T[0], 40, vC)
    I("v_lshrrev_b32", T[1], 1, vC)
    I("v_add_u32", vTR[0][0], T[2], T[0]); I("v_add_u32", vTR[0][1], T[3], T[0])
    I("v_lshlrev_b32", T[6], 5, T[1]); I("v_sub_u32", T[6], T[0], T[6])
    I("v_add3_u32", vTR[1][0], T[2], T[6], 24); I("v_add3_u32", vTR[1][1], T[3], T[6], 24)
    I("v_mul_u32_u24", T[6], 72, T[1])
    I("v_add3_u32", vTR[2][0], T[2], T[6], 32); I("v_add3_u32", vTR[2][1], T[3], T[6], 32)
    I("v_lshl_add_u32", vTR[3][0], vC, 3, T[2]); I("v_lshl_add_u32", vTR[3][1], vC, 3, T[3])
    I("v_and_b32", T[6], 1, vC); I("v_mul_u32_u24", T[6], 72, T[6])
    if OPT["zv"]: I("v_lshl_add_u32", T[6], T[1], 17, T[6])
    I("v_add3_u32", vTR[4][0], T[2], T[6], 32); I("v_add3_u32", vTR[4][1], T[3], T[6], 32)
    I("s_mov_b32", sT0, 32 * 3456 - 1152); I("s_movk_i32", sT1, 72)
    for i in range(5):
        I("v_mad_u32_u24", vOQ[i], DP[i], sT0, vOW[i])
        I("v_lshl_add_u32", T[0], DP[i], 3, DR[i])
        I("v_and_b32", T[3], 1, DR[i])
        if i == 2:
            I("v_lshrrev_b32", T[1], 3, DR[i])
            I("v_mad_u32_u24", T[0], T[1], 12, T[0])
            I("v_lshl_add_u32", T[3], T[1], 1, T[3])
        elif i > 2:
            I("v_add_u32", T[0], 12, T[0])
        I("v_mad_u32_u24", vOO[i], T[0], s1152, DC[i])
        I("v_bfe_u32", T[2], DR[i], 1, 2)
        I("v_lshl_add_u32", T[2], DP[i], 2, T[2])
        if OPT["gord"]:
            I("v_cmp_ge_u32", "vcc", sG, T[2])
            I("v_subb_co_u32", T[2], "vcc", T[2], 0, "vcc")
            I("v_min_u32", T[5], sG, T[2]); I("v_cmp_gt_i32", "vcc", 0, T[2])
            I("v_cndmask_b32", T[2], T[2], T[5], "vcc")
        else:
            I("v_add_u32", T[2], sG, T[2]); I("v_and_b32", T[2], 7, T[2])
        I("v_add_u32", T[3], 18 if i > 2 else 16, T[3])
        I("v_mad_u32_u24", T[2], T[2], sT1, T[3])
        I("v_mad_u32_u24", vO8[i], T[2], s1152, DC[i])
    if OPT["s1m"]: emit_groups(x_dma(1))
    for i in range(4): I("v_mov_b32", v(84 + i), 0)
    I("s_mul_i32", sT1, sWV, 384); I("s_add_u32", sT1, sT1, ZERO)
    I("v_min_u32", T[0], 23 * 16, vL16); I("v_add_u32", T[0], sT1, T[0])
    I("ds_write_b128", T[0], v(84, 4))
    I("s_mul_i32", sT0, sWV, 960); I("s_add_u32", sT0, sT0, PHI)
    for i in range(3):
        t = vM
        if i:
            I("v_add_u32", T[0], 64 * i * 7282, vM); t = T[0]
        I("v_lshrrev_b32", T[0], 16, t); I("v_add_u32", T[0], T[0], vL)
        I("v_lshl_add_u32", PA[i], T[0], 2, sT0)
    I("v_cmp_eq_u32", "vcc", vC, vGL)
    I("v_mul_u32_u24", T[0], 40, vR)
    I("v_mul_u32_u24", T[1], 1040, vGL)
    I("v_mov_b32", T[3], ZERO)
    I("v_add3_u32", T[1], T[1], T[0], T[3])
    I("v_add_u32", T[2], (PHI - ZERO) & 0xffffffff, T[1])
    I("v_cndmask_b32", vPH[0], T[3], T[2], "vcc")
    I("v_lshrrev_b32", T[4], 1, vGL); I("v_mul_u32_u24", T[4], 640, T[4])
    I("v_sub_u32", T[2], T[2], T[4]); I("v_add_u32", T[2], 480, T[2])
    I("v_cndmask_b32", vPH[1], T[3], T[2], "vcc")
    I("v_mul_u32_u24", T[1], 1920, vGL); I("v_add_u32", T[1], T[1], T[0]); I("v_add_u32", T[2], KVI, T[1])
    I("v_cndmask_b32", vPSA, T[3], T[2], "vcc")
    I("v_mul_u32_u24", T[1], 960, vGL); I("v_mul_u32_u24", T[4], 640, T[7])
    I("v_sub_u32", T[1], T[1], T[4]); I("v_add_u32", T[1], T[1], T[0]); I("v_add_u32", T[1], PHI + 640, T[1])
    I("v_cndmask_b32", T[1], T[3], T[1], "vcc")
    I("v_cmp_gt_u32", "vcc", 2, vR)
    I("s_mul_i32", sPME, sL2, PGRP)
    I("s_lshl_b32", sRSB, sRSB, 12)
    I("v_cndmask_b32", vPH[2], T[3], T[1], "vcc")
    I("s_add_u32", sRSB, sRSB, sPME)
    stamp("P1")
    if OPT["pfx"] == 2: xpf()
    if OPT["xo"] == 2: extras()
    if OPT["pois0"] == 2: pois0()
    if OPT["apx"] == 3: apx()
    I("s_mov_b32", sG144, sL3)
    emit_groups(w_dma(1) if OPT["s1m"] else stage_dma(1))
    if OPT["pois0"] == 3: pois0()
    stamp("S1iss")
    def touch_round(r):
        I("s_lshl2_add_u32", sCNT, sA, sWV)
        I("s_mov_b64", "exec", 0)
        for k_ in range(7):
            I("s_cmp_eq_u32", sCNT, k_)
            I("s_cbranch_scc1", "L_th%s%d%d" % ("BA"[k_ // 4], r, k_ % 4))
        I("s_branch", "L_thA%d3" % r)
        P.label("L_tret%d" % r)
        I("s_mov_b64", "exec", -1)
    if OPT["itouch"]:
        P.touch = {"L_tailA"}; P.rounds = 2

    def late():
        I("s_and_b32", sL0, sWV, 1); I("s_lshr_b32", sL1, sWV, 1)
        I("s_mul_i32", sL2, sL0, 16 * 3456); I("s_add_u32", sL2, sL2, sG144)
        I("s_add_u32", sQE, sL2, 0 if OPT["perm"] else 9 * WSTEP)
        I("s_add_u32", sL3, sL1, sROT)
        if OPT["nphase"] in (6, 7):
            I("s_add_u32", sOQ, sL3, 7); I("s_lshr_b32", sOQ, sOQ, 4); I("s_mul_i32", sOQ, sOQ, 9); I("s_sub_u32", sL3, sL3, sOQ)
        I("s_mul_i32", sL3, sL3, WSTEP); I("s_add_u32", sOQ, sL3, sL2)
        I("s_mul_i32", sO8, sL0, 36 * 1152); I("s_add_u32", sO8, sO8, sG144)
        if OPT["gord"]:
            I("s_mov_b32", sOE, sL1)
            I("s_min_u32", sL3, sG, 1); I("s_xor_b32", sL3, sL3, 1); I("s_mul_i32", sL3, sL3, sL1)
            I("s_xor_b32", sL2, sL1, 1); I("s_mul_i32", sL2, sL2, sG); I("s_add_u32", sL3, sL3, sL2)
            I("s_mul_i32", sL3, sL3, 82944); I("s_add_u32", sOO, sL3, sO8)
        else:
            I("s_add_u32", sOE, sO8, 8 * 82944)
            I("s_add_u32", sL3, sL1, sG); I("s_and_b32", sL3, sL3, 7); I("s_mul_i32", sL3, sL3, 82944); I("s_add_u32", sOO, sL3, sO8)
        I("s_mov_b32", sC[0], f2u(LOG2E)); I("s_mov_b32", sC[1], f2u(LOG2E))
        I("s_mov_b32", sEPS[0], f2u(1e-6)); I("s_mov_b32", sEPS[1], f2u(1e-6))
        I("s_mov_b32", sODD[0], 0xffff0000); I("s_mov_b32", sODD[1], 0xffff0000)
        I("s_add_u32", sE, sE, 1); I("s_and_b32", sTAG, sE, 0xff); I("s_mov_b32", sMSK, 0xffffff00)
        I("s_getreg_b32", sL0, "hwreg(HW_REG_XCC_ID, 0, 4)")
        I("s_lshl4_add_u32", sRV, sE, sL0)
        for i in range(4): I("v_mov_b32", M1[i], -1)
        I("s_sub_u32", sL2, 3, sA); I("s_mul_i32", sL2, sL2, sWV)
        I("s_lshl_b32", sL1, sL2, 14); I("s_add_u32", sPME, sPME, sL1)
        I("s_lshl_b32", sL1, sRT, 8); I("s_add_u32", sPME, sPME, sL1)
        I("s_lshl_b32", sL1, sL2, 10); I("s_add_u32", sAG, sAG, sL1)
        I("s_lshr_b32", sL1, sWV, 1)
        I("s_mul_i32", sQ8, sL1, 0x40000000); I("s_mul_i32", sM8, sL1, 100000); I("s_add_u32", sM8, sM8, sMQ)
        I("s_lshl_b32", sL0, sA, 6); I("s_add_u32", sL0, sL0, sSL)
        I("s_mul_i32", sOB, sL0, 8 * 4608); I("s_add_u32", sOB, sOB, WS_O)
        I("s_lshl_b32", sL0, sG144, 5); I("s_add_u32", sOU[0], sL0, sOB)
        I("v_add_u32", vL4, 4096, vL4)
        I("v_lshl_add_u32", T[0], vGL, 2, vR)
        I("v_mul_u32_u24", T[0], IR, T[0])
        I("s_mul_i32", sL0, sWV, 128 * IR)
        I("v_add_u32", vKB2, sL0, T[0])
        I("v_lshl_add_u32", vKB0, vC, 3, vKB2)
        for p in range(2):
            for i in (9, 10, 11): I("v_mov_b32", KB[p][i], 0)
            for i in (18, 19): I("v_mov_b32", PH[p][i], 0)
        I("v_mul_u32_u24", T[0], 128 * IR, vGL)
        I("v_mul_u32_u24", T[1], IR, vN)
        I("s_mul_i32", sL0, sWV, 32 * IR)
        I("v_add3_u32", vIW, T[0], T[1], sL0)
        I("s_mul_i32", sL0, sWV, 5120); I("s_add_u32", sL0, sL0, VF)
        I("v_add_u32", vVW, sL0, vL16)
        I("s_lshl_b32", sL0, sWV, 10); I("s_add_u32", sL0, sL0, VF)
        I("v_add_u32", vAM, sL0, vL16)
        I("s_lshl_b32", sL0, sWV, 1)
        I("v_cmp_gt_u32", "vcc", 2, vN)
        I("v_add_u32", T[3], sL0, vN)
        I("v_lshlrev_b32", T[0], 4, vN); I("v_lshl_add_u32", vP1, vGL, 12, T[0])
        I("v_cndmask_b32", T[3], 8, T[3], "vcc")
        I("v_lshl_add_u32", T[3], vGL, 4, T[3])
        I("v_lshlrev_b32", T[3], 4, T[3]); I("v_add_u32", vAL, VF + 4096, T[3])
        I("v_cmp_gt_u32", "vcc", 4, vN)
        I("v_mov_b32", T[4], OOB)
        I("v_lshl_add_u32", T[0], vGL, 2, vN); I("v_lshlrev_b32", T[0], 4, T[0])
        I("v_cndmask_b32", vP2, T[4], T[0], "vcc")
        I("v_cmp_gt_u32", "vcc", 16, vL)
        I("s_mul_i32", sL1, sWV, 1920); I("s_add_u32", sL1, sL1, KVI)
        I("v_cndmask_b32", vP3, T[4], vL16, "vcc")
        I("v_mul_u32_u24", T[1], 40, vN); I("v_lshl_add_u32", T[1], vGL, 3, T[1])
        I("v_add_u32", vAG1, sL1, T[1])
        I("v_mul_u32_u24", T[2], 40, vC); I("v_lshrrev_b32", T[3], 2, vL)
        I("s_lshr_b32", sL0, 32 * 40, sA)
        I("v_lshl_add_u32", T[2], T[3], 3, T[2]); I("v_add_u32", T[2], sL0, T[2])
        I("v_mul_u32_u24", T[3], 40, vL); I("v_add_u32", T[3], (32 - 16 * 40) & 0xffffffff, T[3])
        I("v_cndmask_b32", T[2], T[3], T[2], "vcc"); I("v_add_u32", vAG2, sL1, T[2])
        for t in range(5):
            I("v_accvgpr_write_b32", PHIF(t, 2)[2], 0); I("v_accvgpr_write_b32", PHIF(t, 2)[3], 0)
    lt = singles(cap(late))

    wait_vm("S0", lgkm=0)
    I("s_barrier")
    stamp("S0land")
    pipe = Pipe(dist=4)
    RT = list(range(-4, 10)) + [10, 10, 11, 11, 12, 12]
    fill = []
    for j in range(9):
        slot = j % 3
        order = [(kap, T_) for kap in range(2) for T_ in range(10)]
        if j == 8: order = [(kap, T_) for T0 in (0, 5) for kap in range(2) for T_ in range(T0, T0 + 5)]
        seen = set()
        for m, (kap, T_) in enumerate(order):
            ks = 2 * j + kap
            ring = RING[(20 * j + m) % 8]
            def rd():
                if kap not in seen:
                    seen.add(kap)
                    for p in range(2):
                        I("ds_read_b128", XF(ks, p), vXR[kap], mods="offset:%d" % (slot * XSLOT + p * 2048))
                if OPT["ex"] & 2 and (j > 0 or m >= 8): return
                if OPT["ex"] & 4 and T_ >= 5: return
                tile_read(ring, T_, slot * WSLOT + kap * 9216)
            def work():
                if OPT["ex"] & 1:
                    I("s_nop", 1); I("s_nop", 1); return
                for p in range(2):
                    if T_ < 5: mfma(ACK[p][T_], ring, XF(ks, p), 0 if ks == 0 else ACK[p][T_])
                    else: mfma(ACV[p][T_ - 5], XF(ks, p), ring, 0 if ks == 0 else ACV[p][T_ - 5])
            pipe.add(rd, work, rt=20 * j + RT[m])
        def hook():
            if OPT["itouch"] and 20 * j + 16 == OPT["t0"]: touch_round(0)
            if OPT["itouch"] and 20 * j + 16 == OPT["t1"]: touch_round(1)
            if j < 8: wait_vm("S%d" % (j + 1), lgkm=0)
            else: wait(lgkm=0)
            I("s_barrier")
            if OPT["p1st"]: stamp("b%d" % (j + 1))
        pipe.hooks[20 * j + 16] = cap(hook)
        t0 = max(0, 20 * j - 4)
        if j + 2 < 9: fill += spread(stage_dma(j + 2), t0, 20 * j + 13)
        elif j == 7: fill += spread(wq_pair_dma(0) + wq_pair_dma(2), t0 + 2, 20 * j + 36)
    def apre(kind):
        tag = "ap" + kind
        def pre():
            I("s_lshl3_add_u32", sT2, sSL, sG); I("s_mul_i32", sT2, sT2, 81); I("s_lshr_b32", sT2, sT2, 3)
            I("v_min_u32", T[5], 10, vL); I("v_add_u32", T[5], sT2, T[5])
            if kind == "o":
                I("v_lshlrev_b32", T[5], 7, T[5])
                I("s_mov_b32", SBO[2], 576 * 1152); I("s_mov_b32", SBO[3], 0x20000)
            else:
                I("v_mul_u32_u24", T[6], 7282, T[5]); I("v_lshrrev_b32", T[6], 16, T[6])
                I("v_mul_u32_u24", T[6], 18, T[6]); I("v_add_lshl_u32", T[5], T[5], T[6], 7)
                I("s_mov_b32", SBQ[2], 576 * 3456); I("s_mov_b32", SBQ[3], 0x20000)
        def go():
            I("s_cmp_eq_u32", sA, 0)
            I("s_cbranch_scc1", "L_skip_" + tag)
            for r_ in ((SBO, SWO) if kind == "o" else (SBQ, SW)):
                x = I("buffer_load_dword", v(255), T[5], r_, 0, mods="offen"); x.cond = True
            P.label("L_skip_" + tag)
        return singles(cap(pre)) + [cap(go)]
    if OPT["apo"]: fill += at(OPT["apo"], apre("o"))
    if OPT["apq"]: fill += at(OPT["apq"], apre("q"))
    if OPT["pfq"]:
        fill += at(OPT["pfq"], singles(cap(lambda: prefetch("wq"))))
    if OPT["pfo"] > 1:
        fill += at(OPT["pfo"], singles(cap(lambda: prefetch("wo"))))
    fill.sort(key=lambda t: t[0])
    phw = singles(cap(lambda: [I("ds_write_b32", PA[i], PW[i], mods="offset:%d" % (256 * i)) for i in range(3)]))
    def phir():
        for t in range(5):
            for tp in range(5):
                ad, o = (vPH[0], 160 * tp) if tp < 3 else (vPH[tp - 2], 0)
                tr(PHIF(t, tp // 2)[2 * (tp & 1):2 * (tp & 1) + 2], ad, 8 * t + o)
    phr = singles(cap(phir))
    nl = len(lt)
    bulk = spread(lt[:8], -1, -1) + spread(lt[8:30], 0, 24) + spread(phw, 24, 30) + spread(lt[30:40], 30, 42)
    bulk += spread(phr, 42, 80) + spread(lt[40:], 80, 150)
    bulk += spread(singles(cap(lambda: (cv(0), cv(1)))), 178, 180)
    pipe.emit(fill, bulk)
    stamp("pass1")

    I("s_cmp_lg_u32", sA, 0)
    I("s_cbranch_scc1", "L_tailA")
    P.label("L_tailB")
    names0 = list(stamp_names); mute0 = OPT.get("mute")
    P.put(mark(cap(lambda: tail("B")), path="B"))
    P.label("L_end")
    P.label("L_notouchB")
    I("s_endpgm")
    for sl in SLOW: P.put(mark(sl, path="B"))
    del SLOW[:]
    stamp_names[:] = names0; OPT["mute"] = mute0
    P.raw(".p2align 7")
    P.label("L_dotouch")
    P.label("L_tailA")
    P.put(mark(cap(lambda: (I("s_nop", 7), tail("A"))), path="A"))
    P.label("L_notouchA")
    I("s_endpgm")
    for sl in SLOW: P.put(mark(sl, path="A"))
    P.label("L_last")

def prefetch(kind):
    I("s_lshr_b32", sT2, s(2), 3); I("s_lshl2_add_u32", sT2, sT2, sWV); I("s_mul_i32", sT2, sT2, 81); I("s_lshr_b32", sT2, sT2, 1)
    I("v_min_u32", T[5], 40, vL); I("v_add_u32", T[5], sT2, T[5])
    if kind == "wo":
        I("v_lshlrev_b32", T[5], 7, T[5])
        I("buffer_load_dword", v(255), T[5], SWO, 0, mods="offen")
    else:
        I("v_mul_u32_u24", T[6], 7282, T[5]); I("v_lshrrev_b32", T[6], 16, T[6])
        I("v_mul_u32_u24", T[6], 18, T[6]); I("v_add_lshl_u32", T[5], T[5], T[6], 7)
        I("buffer_load_dword", v(255), T[5], SW, 0, mods="offen")

def rebase(delta):
    for pat in range(3):
        for e in range(2):
            I("v_add_u32", vTR[pat][e], delta & 0xffffffff, vTR[pat][e])

def tail(path):
    B = path == "B"
    FT = [0, 1, 2] if B else [0, 2]
    PHI_ = PH if B else KB
    NJ = 5 if B else 3
    def poison():
        for i in range(4):
            I("buffer_store_dwordx4", M1, vL16, SWS, sOU[0], mods="offen offset:%d sc1" % (1024 * i))
        for i in range(2):
            I("buffer_store_dword", M1[0], vL4, SWS, sOU[0], mods="offen offset:%d sc1" % (256 * i))
    def vpack():
        I("v_cmp_eq_u32", "vcc", 8, vN)
        I("v_mov_b32", T[0], 0x3f803f80)
        for t in range(5):
            d = ACV[0][t]
            for p in range(2):
                for h in range(2):
                    I("v_cvt_pk_bf16_f32", d[2 * p + h], ACV[p][t][2 * h], ACV[p][t][2 * h + 1])
        for i in range(4): I("v_cndmask_b32", ACV[0][4][i], ACV[0][4][i], T[0], "vcc")
        I("v_mov_b32", T[0], sTAG)
        rebase(WQ0 - WSL)
    def prewarm():
        I("v_min_u32", T[1], 35, vL); I("v_lshlrev_b32", T[1], 7, T[1])
        I("buffer_load_dword", v(255), T[1], SWS, sOU[0], mods="offen sc1")
    vp = singles(cap(vpack))
    w = singles(cap(lambda: [I("ds_write_b128", vVW, ACV[0][t], mods="offset:%d" % (1024 * t)) for t in range(5)]))
    q = tagged(singles(cap(poison)), "POIS") if not OPT["pois0"] else []
    pwm = [cap(prewarm)] if OPT["pw"] else []
    pfo = [cap(lambda: prefetch("wo"))] if OPT["pfo"] == 1 else []
    q4, q6, q8 = vm_only(wq_pair_dma(4)), vm_only(wq_pair_dma(6)), vm_only(wq_pair_dma(8))
    if B:
        ksh = weave(q4[:4], vp); km0 = weave(q4[4:] + q6, w); km1 = q8 + pfo + q
        late_q = []
    else:
        ksh = weave(q4[:2], vp); km0 = weave(q4[2:] + q6[:3], w); km1 = q6[3:] + q8 + pfo + q
        late_q = []
    kvq = []
    if OPT["pf2"]:
        pf = [cap(lambda: prefetch("wo"))]
        if B:
            ksh = weave(q4, vp); km0 = weave(q6 + q8, w) + pf; km1 = []
        else:
            ksh = weave(q4[:2], vp); km0 = weave(q4[2:] + q6[:3], w); km1 = q6[3:] + q8 + pf
        kvq = q
    def kwrites(p):
        def f():
            n4 = 4 if B else 2
            for i in range(n4): I("ds_write_b128", vIW, PHI_[p][4 * i:4 * i + 4], mods="offset:%d" % (IMG + p * 16 * IR + 16 * i))
            I("ds_write_b64", vIW, PHI_[p][4 * n4:4 * n4 + 2], mods="offset:%d" % (IMG + p * 16 * IR + 16 * n4))
        return singles(cap(f))
    P.put(feature_map(path, "k", True, ksh, (km0, 2, 98), (km1, 0, 70 if B else 95), kwrites))
    wait_vm("WQ4", lgkm=0)
    I("s_barrier")
    stamp("kpost")
    DM = [v(104 + 4 * j, 4) for j in range(3)]; DL = [v(116 + 4 * j, 4) for j in range(3)]
    pipe = Pipe(dist=3, grp=1) if not OPT["j4"] else Pipe(dist=4)
    n = 0
    for j in FT:
        for src in range(4):
            AM, AL = a(204 + 8 * src, 4), a(208 + 8 * src, 4)
            BF = RING[n % 8]; n += 1
            def rd():
                if j == 0: I("ds_read_b128", AM, vAM, mods="offset:%d" % (src * 5120))
                for e in range(2):
                    tr(BF[2 * e:2 * e + 2], vKB0 if j < 2 else vKB2, IMG + src * 32 * IR + e * 16 * IR + (32 * j if (B or j < 2) else 32))
                if j == 0: I("ds_read_b128", AL, vAL, mods="offset:%d" % (src * 5120))
            def work():
                mfma(DM[j], AM, BF, 0 if src == 0 else DM[j])
                mfma(DL[j], AL, BF, 0 if src == 0 else DL[j])
            pipe.add(rd, work, rt=(0 if (OPT["j4"] and n == 4) else None))
    SLM = {0: 0, 1: 4, 2: 8} if B else {0: 0, 2: 4}
    SLL = {0: 9, 1: 10, 2: 11} if B else {0: 5, 2: 6}
    def pstore(j):
        for D, ad, sl in ((DM[j], vP1 if j < 2 else vP2, SLM[j]), (DL[j], vP3, SLL[j])):
            if sl: I("s_add_u32", sT1, sPME, sl * 4096)
            for i in range(4): I("v_and_or_b32", D[i], D[i], sMSK, T[0])
            I("buffer_store_dwordx4", D, ad, SWS, sT1 if sl else sPME, mods="offen sc1")
    fill = []
    kvpipe = None; KO = 0; pfill = []
    if OPT["j4"]:
        kvpipe = pipe; KO = 4 * len(FT); qlead = []
        t_ = 6
        for k_, j in enumerate(FT):
            t_ = max(t_, 4 * k_ + 6)
            pfill += spread(singles(cap(lambda: (pstore(j), fst("pubP") if j == 2 else None))), t_, t_ + 2 * OPT["psp"]); t_ += 2 * OPT["psp"]
    else:
        for k_, j in enumerate(FT[:-1]): fill += spread(tagged(singles(cap(lambda: pstore(j))), "P"), 4 * k_ + 5, 4 * k_ + 8)
        pipe.emit(fill)
        fst("kvmm")
        qlead = cap(lambda: (pstore(FT[-1]), stamp("pubP")))
        if not OPT["j1"]:
            P.put(qlead); qlead = []
            I("s_barrier")
        stamp("wqland")

    def gemm2(bfrag, offs, rebases, fill, nm, hooks={}, lead=(), n=0, nks=18, extra=None, pipe=None):
        pipe = pipe or Pipe(dist=OPT["qd"])
        pipe.dist = OPT["qd"]
        pipe.hooks = hooks
        for ks in range(nks):
            for T_ in range(5):
                ring = RING[n % 8]; n += 1
                def rd():
                    if T_ == 0 and ks in rebases: rebase(rebases[ks])
                    tile_read(ring, T_, offs(ks))
                def work():
                    for p in range(2):
                        mfma(ACK[p][T_], ring, bfrag(ks, p), 0 if ks == 0 else ACK[p][T_])
                pipe.add(rd, work, (lambda: fst("%s%d" % (nm, ks))) if T_ == 0 else None)
        if extra: extra(pipe)
        pipe.emit(fill, lead=lead)
    RS = v(128, 16)
    vCK = T[6]
    RS2 = v(200, 16); sRS2, sFS2 = s(22), s(23)
    def rs_loads(RS=RS, so=sRSB):
        for i in range(4):
            I("buffer_load_dwordx4", RS[4 * i:4 * i + 4], vL16, SWS, so, mods="offen offset:%d sc1" % (1024 * i))
    def rs_reduce(RS=RS, sFSL=sFSL):
        for st in (8, 4):
            for i in range(st): I("v_add_f32", RS[i], RS[i], RS[i + st])
        I("v_permlane32_swap_b32", RS[0], RS[2]); I("v_permlane32_swap_b32", RS[1], RS[3])
        I("v_add_f32", RS[0], RS[0], RS[2]); I("v_add_f32", RS[1], RS[1], RS[3])
        I("v_mov_b32", RS[2], RS[0]); I("v_mov_b32", RS[3], RS[1])
        I("v_permlane16_swap_b32", RS[0], RS[2]); I("v_permlane16_swap_b32", RS[1], RS[3])
        I("v_add_f32", RS[0], RS[0], RS[2]); I("v_add_f32", RS[1], RS[1], RS[3])
        I("v_cvt_pk_bf16_f32", RS[0], RS[0], RS[1])
        I("v_mov_b32", RS[1], sE)
        I("buffer_store_dwordx2", RS[0:2], vFS, SWS, sFSL, mods="offen sc1")
        fst("pubF")
    vRV, vRA = T[7], T[8]
    def rflag():
        I("v_mov_b32", vRV, sRV); I("s_lshl_b32", sT1, sG, 2); I("v_mov_b32", vRA, sT1)
        I("buffer_store_dword", vRV, vRA, SWS, sRF, mods="offen sc1")
    ra, rc = OPT["rs_at"], OPT["rs_chk"]
    if not B: ra -= OPT["dA"]; rc -= OPT["dA"]
    wo = [vm_only(wo_pair_dma(u)) for u in (0, 2, 4, 6)]
    wo.append(vm_only(singles(cap(lambda: I("s_add_u32", sO8, sO8, sQ8))) + tagged(dma5(vO8, SWO, sO8, sM8, WO6 + 2 * 9216), "WO8")))
    def ou():
        for u in range(1, 8):
            if OPT["gord"]:
                I("s_sub_u32", sL0, sG, u); I("s_lshr_b32", sL0, sL0, 31)
                I("s_add_u32", sL0, sL0, u - 1)
            else:
                I("s_add_u32", sL0, sG, u); I("s_and_b32", sL0, sL0, 7)
            I("s_mul_i32", sL0, sL0, 4608); I("s_add_u32", sOU[u], sL0, sOB)
    qsh2 = []
    if B:
        rf = [cap(lambda: wait_vm("POIS"))] + singles(cap(rflag))
        fill = spread(singles(cap(ou)), 14, 50) + at(OPT["rf_at"], rf)
        allw = sum(wo, []); nq = OPT["nq"]
        sp = spread(allw[:nq], OPT["w0"], 89)
        assert all(t_ >= 55 for t_, g in sp[15:]) or nq > 22
        if nq > 22: sp = spread(allw[:15], OPT["w0"], 55) + spread(allw[15:nq], 56, 89)
        fill += sp
        fill.sort(key=lambda t: t[0])
        wrest = allw[nq:]
        wo = [[], []]
    else:
        def b_addr():
            I("s_min_u32", sL1, sWV, 2); I("s_mul_i32", sL2, sRT, 3); I("s_add_u32", sL1, sL1, sL2)
            I("s_mul_i32", sL2, sG, PGRP); I("s_lshl_b32", sRS2, sL1, 12); I("s_add_u32", sRS2, sRS2, sL2)
            I("s_lshl_b32", sL2, sG, 14); I("s_lshl_b32", sL1, sL1, 8); I("s_add_u32", sL1, sL1, sL2); I("s_add_u32", sFS2, sL1, WS_F)
            I("s_add_u32", sL1, sWV, 1); I("s_lshr_b32", sL1, sL1, 2); I("s_lshl_b32", sL1, sL1, 30); I("s_add_u32", sFS2, sFS2, sL1)
        fill = sorted(spread(wo.pop(0), 3, 26) + spread(singles(cap(ou)) + singles(cap(b_addr)), 1, 33), key=lambda t: t[0])
        l2 = lambda: rs_loads(RS2, sRS2)
        chk = [cap(lambda: (fst("rsb"), wait_vm("RS"), fst("rsw")))] + check_tag("rs" + path, vCK, [RS[i] for i in range(16)], rs_loads) + singles(cap(rs_reduce)) + singles(cap(rflag))
        chk2 = [cap(lambda: wait_vm("RB"))] + check_tag("rb" + path, T[5], [RS2[i] for i in range(16)], l2) + singles(cap(lambda: rs_reduce(RS2, sFS2)))
        f2 = spread(tagged(singles(cap(rs_loads)), "RS"), ra, ra + 4) + spread(tagged(singles(cap(l2)), "RB"), OPT["rb_at"], OPT["rb_at"] + 5)
        if OPT["bfirst"]:
            rb = OPT["rb_chk"]
            nchk = 28
            f2 += spread(chk[:nchk], rc, rb) + spread(chk2, rb, rb + OPT["rb_len"]) + spread(chk[nchk:], rb + OPT["rb_len"], rb + OPT["rb_len"] + 10)
            f2 += spread(wo.pop(0), OPT["rb_at"] + 6, rb + 4)
        else:
            f2 += spread(wo.pop(0), ra + 4, ra + 20)
            f2 += spread(chk, rc, rc + OPT["rs_len"]) + spread(chk2, max(OPT["rb_chk"], rc + OPT["rs_len"]), 110)
        fill += sorted(f2, key=lambda t: t[0])
    if OPT["j4"]:
        tmin = pfill[-1][0] + 1
        fill = pfill + [(max(t_ + KO, tmin), g) for t_, g in fill]
    gemm2(XF, lambda ks: ((ks // 2) % 6) * 9216 + (ks & 1) * 144, {12: WQ6 - WQ0}, fill, "q",
          dict([(53 + KO, cap(lambda: (wait_vm("WQ8"), I("s_barrier"))))] + ([(1 + KO, cap(lambda: I("s_barrier")))] if OPT["j1"] else [])), lead=qlead, n=4 * len(FT), pipe=kvpipe)
    stamp("qgemm")

    NAG = 3 if B else 2
    AG = v(104, 4 * NAG); RF = v(116)
    def ag_loads():
        for i in range(NAG):
            I("buffer_load_dwordx4", AG[4 * i:4 * i + 4], vL16 if (B or i == 0) else T[3], SWS, sAG, mods="offen offset:%d sc1" % (1024 * i))
    def ag_fold():
        I("v_xor_b32", vCK, sE, AG[1])
        for i in range(3, 4 * NAG, 2): I("v_bitop3_b32", vCK, vCK, sE, AG[i], mods="bitop3:0xf6")
    def rf_load(): I("buffer_load_dword", RF, T[4], SWS, sRF, mods="offen sc1")
    def qsh():
        if not B: I("v_min_u32", T[3], 47 * 16, vL16)
        I("v_and_b32", T[4], 7, vL); I("v_lshlrev_b32", T[4], 2, T[4])
        rebase(WO0 - WQ6)
        for t in range(5):
            I("v_accvgpr_write_b32", PSIF(t, NJ - 1)[2], 0); I("v_accvgpr_write_b32", PSIF(t, NJ - 1)[3], 0)
    fr = OPT["ag_frac"] if B else OPT["ag_fracA"]
    g = singles(cap(rf_load)) + singles(cap(lambda: fst("agi"))) + tagged(singles(cap(ag_loads)), "AG") + (pwm if OPT["pw"] == 2 else [])
    lo = (fr - 50) * 2
    wc = wo.pop(0)
    if OPT["pw"] == 3: wc = pwm + wc
    wd = sum(wo, [])
    def agw():
        I("ds_write2_b32", vAG1, AG[0], AG[2], mods="offset0:0 offset1:1")
        if B: I("ds_write2_b32", vAG1, AG[4], AG[6], mods="offset0:160 offset1:161")
        I("ds_write2_b32", vAG2, AG[4 * NAG - 4], AG[4 * NAG - 2], mods="offset0:0 offset1:1")
    agc = cap(lambda: (fst("agb"), wait_vm("AG"), fst("agw"))) + sum(check_or_retry("ag" + path, ag_fold, lambda: I("v_cmp_ne_u32", "vcc", 0, vCK), ag_loads), []) + cap(agw)
    agb = cap(lambda: (wait(lgkm=0), I("s_barrier"), stamp("gotkv")))
    olead = []
    if B:
        mids = [([], 0, 100), ([], 0, 100)]
        mids[1 if fr >= 50 else 0] = (g, (fr % 50) * 2, min(100, (fr % 50) * 2 + 12))
        if wrest[4:]:
            assert fr >= 50
            mids[0] = (wrest[4:], 5, 95)
        body = feature_map(path, "q", False, weave(singles(cap(qsh)), wrest[:4]) if wrest else singles(cap(qsh)), mids[0], mids[1], lambda p: [])
        if OPT["j2"]:
            ok = lambda i: isinstance(body[i], Ins) and body[i].kind == "valu" and isinstance(body[i - 1], Ins) and body[i - 1].kind == "valu"
            c1 = len(body) * OPT["agc"] // 100; c2 = len(body) * OPT["agb"] // 100
            while not ok(c1): c1 += 1
            while not ok(c2): c2 += 1
            P.put(body[:c1] + agc + body[c1:c2] + agb); olead = body[c2:]
        else:
            P.put(body + agc + agb)
    else:
        P.put(feature_map(path, "q", False, singles(cap(qsh)), (wc[:3], 0, 100), (wc[3:] + g, 0, 100), lambda p: []))
        emit_groups(wd)
        P.put(agc + agb)

    pool = list(range(104, 144, 4)) + list(range(176, 256, 4)) + [12, 16, 28, 32, 36, 40]
    OF = {}
    keys = [(0, p, X) for X in range(2) for p in range(2)] + [("L", k, p) for k in range(2) for p in range(2)] + [(u, p, X) for u in range(1, 8) for p in range(2) for X in range(2)]
    for k_, r_ in zip(keys, pool): OF[k_] = v(r_, 4)
    o = ACC
    pipe = Pipe(dist=OPT["od"])
    for t in (4, 0, 1, 2, 3):
        for j in range(NJ):
            def rd():
                tr(PSIF(t, j)[0:2], vPSA, 8 * t + 8 * j * 40)
                if j < NJ - 1: tr(PSIF(t, j)[2:4], vPSA, 8 * t + (8 * j + 4) * 40)
            def work():
                for p in range(2):
                    mfma(ACK[p][t], PSIF(t, j), PHI_[p][4 * j:4 * j + 4], 0 if j == 0 else ACK[p][t])
            pipe.add(rd, work)
    def ostore(key, flag=None):
        if flag is None: flag = ["", " sc1", " nt"][OPT["oflag"]]
        if key[0] == "L": I("buffer_store_dword", OF[key][0], vL4, SWS, sOU[0], mods="offen offset:%d%s" % (key[2] * 256, flag))
        else: I("buffer_store_dwordx4", OF[key], vL16, SWS, sOU[0], mods="offen offset:%d%s" % (key[1] * 2048 + key[2] * 1024, flag))
    def fin_den():
        for p in range(2): I("v_add_f32", o[p][18], sEPS[0], o[p][18])
        for p in range(2): I("v_rcp_f32", o[p][18], o[p][18])
        for p in range(2):
            for i in (16, 17): I("v_mul_f32", o[p][i], o[p][i], o[p][18])
        for p in range(2):
            I("v_cvt_pk_bf16_f32", OF[("L", 0, p)][0], o[p][16], o[p][17])
            ostore(("L", 0, p))
    def fin_tile(t, packed):
        for p in range(2):
            if packed:
                for i in (4 * t, 4 * t + 2): I("v_pk_mul_f32", o[p][i:i + 2], o[p][i:i + 2], o[p][18:20], mods="op_sel:[0,0] op_sel_hi:[1,0]")
            else:
                for i in range(4 * t, 4 * t + 4): I("v_mul_f32", o[p][i], o[p][i], o[p][18])
            for h in range(2):
                I("v_cvt_pk_bf16_f32", OF[(0, p, t // 2)][2 * (t & 1) + h], o[p][4 * t + 2 * h], o[p][4 * t + 2 * h + 1])
            if t & 1: ostore((0, p, t // 2))
    rfchk = check_or_retry("rf" + path, lambda: I("v_xor_b32", vCK, sRV, RF), lambda: I("v_cmp_lt_u32", "vcc", 15, vCK), rf_load)
    rfchk += [cap(lambda: I("v_cmp_ne_u32", s(50, 2), 0, vCK))]
    fill = at(0, rfchk)
    fill += spread(singles(cap(fin_den)), NJ + 2, 2 * NJ + 1)
    for t in range(3): fill += spread(singles(cap(lambda: fin_tile(t, False))), (2 + t) * NJ + 1 + (1 if B else 0), (3 + t) * NJ + 1)
    pipe.emit(fill, lead=olead)
    fst("omm")
    fin_tile(3, True)
    I("s_cmp_lg_u64", s(50, 2), 0)
    I("s_cbranch_scc1", "L_far" + path)
    P.label("L_near" + path)
    def far():
        P.label("L_far" + path)
        for key in keys[:4] + [("L", 0, 0), ("L", 0, 1)]: ostore(key, " sc1")
        wait(vm=0)
        I("buffer_store_dword", vRV, vRA, SWS, sRF, mods="offen offset:32 sc1")
        I("s_mov_b32", sCNT, 0)
        P.label("L_farp" + path)
        I("buffer_load_dword", vCK, T[4], SWS, sRF, mods="offen offset:32 sc1")
        wait(vm=0)
        I("v_xor_b32", vCK, sRV, vCK)
        I("v_cmp_lt_u32", "vcc", 15, vCK)
        I("s_add_u32", sCNT, sCNT, 1)
        I("s_cmp_gt_u32", sCNT, SPIN)
        I("s_cbranch_scc1", "L_near" + path)
        I("s_cbranch_vccnz", "L_farp" + path)
        I("s_branch", "L_near" + path)
    SLOW.append(cap(far))
    stamp("pubO")

    def oload(u):
        for X in (1, 0):
            for p in (1, 0):
                I("buffer_load_dwordx4", OF[(u, p, X)], vL16, SWS, sOU[u], mods="offen offset:%d sc1" % (p * 2048 + X * 1024))
        for p in range(2):
            I("buffer_load_dword", OF[("L", u // 4, p)][u % 4], vL4, SWS, sOU[u], mods="offen offset:%d sc1" % (p * 256))
    def bf(ks, p):
        if ks < 16: return OF[(ks // 2, p, ks & 1)]
        return OF[("L", ks - 16, p)]
    offs = lambda ks: ((ks // 2) % 6) * 9216 + (ks & 1) * 144
    vW1, vW2, vW3, vRD = vIW, vVW, vAM, vAL
    vST = [vP2, vPSA, vKB0, vKB2, vP1]
    def out_addr():
        I("s_add_u32", sT0, sMQ, OUTB)
        I("v_mul_u32_u24", T[0], 144, vN); I("v_add_u32", T[0], sT0, T[0])
        I("v_mul_u32_u24", T[1], 40, vGL); I("v_add_u32", vW1, T[0], T[1])
        I("v_lshrrev_b32", T[4], 1, vGL)
        I("v_lshlrev_b32", T[2], 5, T[4]); I("v_sub_u32", vW2, vW1, T[2])
        I("v_mul_u32_u24", T[3], 72, T[4]); I("v_add_u32", vW3, T[0], T[3])
        I("v_add_u32", vRD, sT0, vL16)
        I("s_movk_i32", sT1, 2304 - 144)
        for i in range(5):
            t = vM
            if i:
                I("v_add_u32", T[3], Q0[i] * 7282, vM); t = T[3]
            I("v_lshrrev_b32", T[0], 16, t)
            I("v_mad_u32_u24", vST[i], T[0], sT1, vL16)
    NPRE = OPT["npre"]
    wait_vm("WO8")
    I("s_barrier")
    stamp("ackO")
    I("s_mov_b32", sT2, 0)
    P.label("L_redo" + path)
    g = []
    for u in range(1, NPRE + 1): g += tagged(singles(cap(lambda: oload(u))), "O%d" % u)
    if OPT["j3"]:
        def preread():
            rebase(WO6 - WO0)
            for ks in range(18 - OPT["npf"], 18):
                for t in range(5): tile_read(a(100 + ((ks - (18 - OPT["npf"])) * 5 + t) * 4, 4), t, offs(ks))
            rebase(WO0 - WO6)
        emit_groups(weave(singles(cap(preread)), g))
        fill = []
    else:
        fill = spread(g, 0, 7)
    def ochk(u):
        regs = [OF[(u, 0, 1)][3], OF[(u, 1, 1)][3], OF[(u, 1, 0)][3]]
        return [cap(lambda: wait_vm("O%d" % u))] + check_sent("o%d%s" % (u, path), vCK, regs, lambda: oload(u))
    for u in range(0, 7):
        b0 = u * 10
        blk = spread(ochk(u + 1), b0 + 6, b0 + 6)
        if u and u + NPRE <= 7: blk += spread(tagged(singles(cap(lambda: oload(u + NPRE))), "O%d" % (u + NPRE)), b0, b0 + 10)
        fill += sorted(blk, key=lambda t: t[0])
    NPF = OPT["npf"] if OPT["j3"] else 0
    assert NPF in (0, 2, 4, 6)
    WF = lambda ks, t: a(100 + ((ks - (18 - NPF)) * 5 + t) * 4, 4)
    OUTR = [OF[(1 + t // 2, p, 0)][2 * (t & 1):2 * (t & 1) + 2] for p in range(2) for t in range(5)]
    OB = [OF[(1, 0, 1)], OF[(1, 1, 1)], OF[(2, 0, 1)], OF[(2, 1, 1)], OF[(3, 0, 1)]]
    fl = ["", " sc1", " nt", " sc0 sc1"][OPT["outflag"]]
    def ocvt(p):
        for t in range(5):
            r_ = OUTR[5 * p + t]
            for h in range(2): I("v_cvt_pk_bf16_f32", r_[h], ACK[p][t][2 * h], ACK[p][t][2 * h + 1])
            ad, off = (vW1, 8 * t) if t < 3 else ((vW2, 24) if t == 3 else (vW3, 32))
            I("ds_write_b64", ad, r_, mods="offset:%d" % (off + p * 2304))
    def ord_(i): I("ds_read_b128", OB[i], vRD, mods="offset:%d" % (16 * Q0[i]))
    def ost(i):
        if i == 0: I("s_mov_b32", "exec_hi", 0)
        I("buffer_store_dwordx4", OB[i], vST[i], SOUT, sOUTB, mods="offen offset:%d%s" % (16 * Q0[i], fl))
        if i == 0: I("s_mov_b32", "exec_hi", -1)
    def nanchk(regs, back):
        I("v_cmp_u_f32", "vcc", regs[0], regs[1])
        I("s_cbranch_vccnz", "L_again%s" % back + path)
        P.label("L_done%s" % back + path)
        def again():
            P.label("L_again%s" % back + path)
            I("s_add_u32", sT2, sT2, 1)
            I("s_cmp_gt_u32", sT2, 200)
            I("s_cbranch_scc1", "L_done%s" % back + path)
            wait(vm=0, lgkm=0)
            if NPF < 6: rebase(WO0 - WO6)
            I("s_nop", 7)
            I("s_branch", "L_redo" + path)
        SLOW.append(cap(again))
    if NPF:
        nb = (18 - NPF) * 5
        half = NPF * 5 // 2
        def extra(pipe):
            for p in range(2):
                ms = [(ks, t) for ks in range(18 - NPF, 18) for t in range(5)]
                for i in range(0, len(ms), 2):
                    pipe.add(lambda: None, lambda: [mfma(ACK[p][t], WF(ks, t), bf(ks, p), ACK[p][t]) for ks, t in ms[i:i + 2]])
        fill = [((nb + (t_ - nb) // 2 - 2) if t_ > nb else t_, g) for t_, g in fill]
        fill += spread(singles(cap(out_addr)), 42, 56)
        tail0 = [cap(lambda: nanchk((ACK[0][0][0], ACK[0][1][0]), "0"))] + singles(cap(lambda: ocvt(0))) + singles(cap(lambda: (ord_(0), ord_(1))))
        fill += spread(tail0, nb + half + 2, nb + half + 8)
        fill += [(nb + half + 11, cap(lambda: (wait(lgkm=0), ost(0)))), (min(89, nb + half + 13), cap(lambda: ost(1)))]
        fill.sort(key=lambda t: t[0])
        gemm2(bf, offs, {12: WO6 - WO0}, fill, "o", nks=18 - NPF, extra=extra)
        stamp("ogemm")
        nanchk((ACK[1][0][0], ACK[1][1][0]), "1")
        ocvt(1)
        for i in (2, 3, 4): ord_(i)
        for i in (2, 3, 4):
            wait(lgkm=4 - i); ost(i)
    else:
        fill += spread(singles(cap(out_addr)), 70, 88)
        gemm2(bf, offs, {12: WO6 - WO0}, fill, "o")
        stamp("ogemm")
        nanchk((ACK[0][0][0], ACK[1][0][0]), "1")
        ocvt(0); ocvt(1)
        for i in range(5): ord_(i)
        for i in range(5):
            wait(lgkm=4 - i); ost(i)
    if B:
        I("s_or_b32", sT0, sSL, sG)
        I("s_cmp_lg_u32", sT0, 0)
        I("s_cbranch_scc1", "L_noep" + path)
        I("v_mov_b32", T[0], WS_E); I("v_mov_b32", T[1], sE)
        I("buffer_store_dword", T[1], T[0], SWS, 0, mods="offen")
        P.label("L_noep" + path)
    if OPT["stamps"]:
        stamp("stiss")
        if B: P.label("L_fin")
        OPT["mute"] = 0
        wait(vm=0)
        stamp("end")
        I("s_memrealtime", s(100, 2))
        wait(lgkm=0)
        if OPT["fine"]:
            for k, nm in enumerate(OPT["fine"].split(",")):
                stamp_names.append(nm); STAMPS[k] = s(4 + 2 * k)
        n = len(stamp_names)
        for k in range(n):
            if OPT["lite"] and k != OPT["amp"] and k != n - 1: continue
            assert OPT["lite"] or n <= 17
            I("s_sub_u32", STAMPS[k], STAMPS[k], s(96 if (OPT["lite"] == 2 or OPT["rt"]) else 98))
            I("v_mov_b32", v(64 + k), STAMPS[k])
        I("v_mov_b32", v(64 + 28), sT2); I("v_mov_b32", v(64 + 29), s(3))
        I("v_mov_b32", v(64 + 30), s(96)); I("v_mov_b32", v(64 + 31), s(100))
        I("s_lshl_b32", sT0, s(2), 2); I("s_add_u32", sT0, sT0, sWV); I("s_lshl_b32", sT0, sT0, 7); I("s_add_u32", sT0, sT0, WS_ST)
        I("v_mov_b32", T[0], 0)
        I("s_mov_b64", "exec", 1)
        for q in range(8):
            I("buffer_store_dwordx4", v(64 + 4 * q, 4), T[0], SWS, sT0, mods="offen offset:%d" % (16 * q))
        if OPT["amp"] >= 0 and OPT["ampsel"] in (0, 2 if B else 1):
            I("s_lshl_b32", sT2, STAMPS[OPT["amp"]], 3)
            I("s_add_u32", sT2, sT2, STAMPS[n - 1])
            P.label("L_amp" + path)
            I("s_memrealtime" if OPT["lite"] == 2 else "s_memtime", s(100, 2)); wait(lgkm=0)
            I("s_sub_u32", sT1, s(100), s(96 if OPT["lite"] == 2 else 98))
            I("s_cmp_lt_u32", sT1, sT2)
            I("s_cbranch_scc1", "L_amp" + path)

HEADER = open("cdna_kernels/%s.s.ref" % NAME).read().split("; Override launch")[0]

def wrap(body):
    txt = HEADER + "; @launch grid=(256,1,1) block=(256,1,1) lds=%d\n" % LDS_BYTES
    txt += "; stamps: %s\n" % ",".join(stamp_names) if stamp_names else ""
    txt += '.amdgcn_target "amdgcn-amd-amdhsa--gfx950"\n.text\n.globl %s_kernel\n.p2align 12\n.type %s_kernel,@function\n' % (NAME, NAME)
    txt += ".set CODE_SPAN, (L_last - %s_kernel - 128) & 0xffffff80\n" % NAME
    txt += ".set HEAD_LINES, ((L_tailB - %s_kernel) >> 7) + 8\n.set A_SHIFT, (L_tailA - L_tailB - 2048) & 0xffffff80\n" % NAME
    txt += "%s_kernel:\n%s\n" % (NAME, body)
    txt += """.section .rodata,"a"
.p2align 6
.amdhsa_kernel %s_kernel
  .amdhsa_next_free_vgpr 512
  .amdhsa_next_free_sgpr 102
  .amdhsa_accum_offset 256
  .amdhsa_group_segment_fixed_size 0
  .amdhsa_kernarg_size 80
  .amdhsa_user_sgpr_count 2
  .amdhsa_user_sgpr_kernarg_segment_ptr 1
  .amdhsa_system_sgpr_workgroup_id_x 1
.end_amdhsa_kernel
""" % NAME
    return txt

def main(out):
    build()
    txt = P.finalize2(wrap)
    open(out, "w").write(txt)
    print("wrote", out, "hazard nops:", P.nops, "align fixes:", P.fixes, "bytes:", P.bytes, "touch points:", P.points)

if __name__ == "__main__":
    out = sys.argv[1]
    for kv in sys.argv[2:]:
        k, val = kv.split("=")
        assert k in OPT, k
        OPT[k] = val if k in ("stop", "fine") else int(val)
    main(out)
```

```python
import sys, struct
from asmdsl import *

NAME = "concat_heads__linear_attn_block__linear_kernel_hedgehog__prompt"
OPT = dict(stamps=0, nphase=6, amp=-1, ampsel=0, lite=0, outflag=2, oflag=0, wb=0, rs_at=40, rs_chk=62, rs_len=27, ag_frac=56, ag_fracA=90, dA=4, npre=3, t0=16, t1=36, pw=0, pfo=0, pfq=0, wdn=8, pfx=0, perm=0, gord=1, xo=2, zv=1, s1m=0, ex=0, snake=0, pois0=0, j1=1, j2=0, j3=1, j4=0, psp=3, w0=3, qd=4, od=4, nq=26, rec=0, forcefb=0, pf2=0, nowa=0, apo=150, apq=0, apx=0, ars=1, rb_at=62, rb_chk=84, rf_at=48, bfirst=0, rb_len=16, npf=6, agc=86, agb=93, xsh=0, swap07=1,
           stop="", p1st=0, touch=1, fine="", itouch=1, rt=0)

def f2u(x): return struct.unpack("<I", struct.pack("<f", x))[0]
LOG2E = 1.4426950408889634

XSLOT = 16384
WSL = 49152; WSLOT = 18432
WQ0 = 104448
WQ6 = 76800
PHI = 104448
ZERO = 159744
IMG = 0
IR = 80
VF = 40960
KVI = 61440
WO0 = 0
WO6 = 104448
OUTB = 76800
LDS_BYTES = 163840
PGRP = 48 * 4096
WS_F = 0x300000; WS_E = 0x380000; WS_R = 0x390000; WS_O = 0x400000; WS_ST = 0x900000; WS_BYTES = 0xA00000
OOB = 0x7ffffff0
SPIN = 30000
Q0 = [0, 32, 96, 160, 224]
WSTEP = 64 * 3456

SX, SW, SWO, SWS, SOUT, SPHI = s(24, 4), s(28, 4), s(32, 4), s(36, 4), s(40, 4), s(48, 4)
sL0, sL1, sL2, sL3 = s(44), s(45), s(46), s(47)
sA, sRT, sG, sWV = s(52), s(53), s(54), s(55)
sOQ, sOX, sOW = s(56), s(57), s(58)
s1152 = s(59)
sMX, sMW = s(60), s(61)
sT0, sT1, sT2, sT3 = s(62), s(63), s(64), s(65)
sSL = s(66)
sROT = s(67)
sPME, sRSB, sRF, sOB = s(68), s(69), s(70), s(71)
sCNT = s(72)
sFSL = s(73)
sC = s(74, 2)
sEPS = s(76, 2)
sODD = s(78, 2)
sMQ = s(80)
sOO = s(81)
sPC = s(82, 2)
sTAG, sMSK = s(82), s(83)
sOU = [s(84 + u) for u in range(8)]
sAG = s(92)
sO8 = s(93)
sOUTB = s(94)
sE = s(95)
sM8 = s(20); sQ8 = s(21); sPM2 = s(22); sPM3 = s(23)
sG144 = s(48); sRV = s(49); sQE = s(50); sOE = s(51)
STAMPS = [s(3 + i % 17) for i in range(28)]

vL = v(0)
T = [v(i) for i in range(1, 10)]
vOX = [v(10 + i) for i in range(4)]
vOW = [v(14 + i) for i in range(5)]
vXR = [v(19), v(20)]
vTR = [[v(21 + 2 * p + e) for e in range(2)] for p in range(5)]
vOQ = [v(31 + i) for i in range(5)]
vOO = [v(36 + i) for i in range(5)]
vO8 = [v(41 + i) for i in range(5)]
vL16 = v(46)
vGL, vN = v(47), v(48)
vM, vPSA, vKB0, vKB2, vFS, vL4, vIW, vVW, vAM, vAL, vP1 = [v(49 + i) for i in range(11)]
vP2, vP3, vAG1, vAG2 = v(60), v(61), v(62), v(63)
ACK = [[v(64 + 20 * p + 4 * t, 4) for t in range(5)] for p in range(2)]
ACV = [[v(104 + 20 * p + 4 * t, 4) for t in range(5)] for p in range(2)]
RING = [v(144 + 4 * i, 4) for i in range(8)]
KB = [v(176 + 12 * p, 12) for p in range(2)]
PH = [v(200 + 20 * p, 20) for p in range(2)]
TMP = v(144, 24)
PW = v(240, 3); M1 = v(244, 4); PA = v(248, 3); vR, vC = v(251), v(252)
vPH = [v(243), v(253), v(254)]
def XF(ks, p): return a(ks * 8 + p * 4, 4)
def PHIF(t, j): return a(144 + (t * 3 + j) * 4, 4)
def PSIF(t, j): return a((t * 5 + j) * 4, 4)

P = Prog()
I = P.I
cap = P.capture
stamp_names = []
def fst(name):
    names = OPT["fine"].split(",")
    if name in names:
        k = names.index(name)
        I("s_memrealtime" if OPT["rt"] else "s_memtime", s(4 + 2 * k, 2), c="fine " + name)
def stamp(name):
    if OPT["fine"]:
        fst(name)
    elif OPT["stamps"] and not OPT.get("mute"):
        k = len(stamp_names); stamp_names.append(name)
        real = True
        if OPT["lite"]:
            real = (k == OPT["amp"] or name == "end")
            if real: STAMPS[k] = s(5) if name == "end" else (s(4) if k else s(3))
        if real:
            I("s_memrealtime" if OPT["lite"] == 2 else "s_memtime", s(100, 2), c="stamp " + name)
            I("s_waitcnt", "lgkmcnt(0)")
            I("s_mov_b32", STAMPS[k], s(100))
    if OPT["stop"] == name:
        I("s_branch", "L_fin"); OPT["mute"] = 1

def wait(vm=None, lgkm=None):
    t = []
    if vm is not None: t.append("vmcnt(%d)" % vm)
    if lgkm is not None: t.append("lgkmcnt(%d)" % lgkm)
    I("s_waitcnt", " ".join(t))
def wait_vm(tag, lgkm=None): P.items.append(VmWait(tag, lgkm))
def tagged(groups, tag):
    for g in groups:
        for x in g:
            if isinstance(x, Ins) and x.kind == "vmem": x.tag = tag
    return groups
def mark(items, **kw):
    for x in items:
        if isinstance(x, Ins):
            for k, val in kw.items(): setattr(x, k, val)
    return items

def srd(dst, lo, hi, size):
    I("s_mov_b32", dst[0], lo); I("s_mov_b32", dst[1], hi)
    I("s_mov_b32", dst[2], size); I("s_mov_b32", dst[3], 0x20000)
def singles(items): return [[x] for x in items]
def emit_groups(groups):
    for g in groups: P.put(g)

def dma5(voffs, srdreg, soff, m0base, m0imm):
    def first():
        I("s_add_u32", "m0", m0base, m0imm)
        I("s_mov_b32", "exec_hi", 0)
        I("buffer_load_dwordx4", voffs[0], srdreg, soff, mods="offen lds")
        I("s_mov_b32", "exec_hi", -1)
    g = [cap(first)]
    for i in range(1, 5):
        g += singles(cap(lambda: I("buffer_load_dwordx4", voffs[i], srdreg, soff, mods="offen offset:%d lds" % (16 * Q0[i]))))
    return g

PERMS = {
    1: (3, [[7, 3, 6, 1, 8, 4, 2, 0, 5], [1, 3, 7, 2, 4, 8, 6, 0, 5], [3, 8, 1, 6, 2, 7, 0, 4, 5]]),
    2: (4, [[4, 0, 1, 5, 6, 2, 8, 7, 3], [4, 1, 5, 2, 7, 0, 6, 8, 3], [1, 4, 6, 7, 0, 2, 3, 5, 8], [4, 6, 1, 7, 3, 0, 5, 2, 8]]),
    3: (3, [[0, 1, 2, 3, 4, 5, 6, 7, 8], [1, 2, 0, 4, 5, 3, 7, 8, 6], [2, 0, 1, 5, 3, 4, 8, 6, 7]]),
    4: (8, [[3, 7, 5, 0, 8, 1, 4, 2, 6], [3, 5, 0, 4, 7, 6, 1, 8, 2], [5, 7, 4, 2, 0, 8, 3, 1, 6], [5, 3, 0, 8, 7, 2, 6, 1, 4], [3, 0, 4, 5, 8, 7, 6, 2, 1], [3, 5, 7, 0, 1, 2, 4, 8, 6], [7, 5, 2, 0, 4, 8, 6, 1, 3], [3, 4, 7, 0, 2, 1, 6, 8, 5]]),
    5: (3, [[0, 1, 2, 3, 4, 5, 6, 7, 8], [3, 4, 5, 6, 7, 8, 0, 1, 2], [6, 7, 8, 0, 1, 2, 3, 4, 5]]),
}
SBO = s(88, 4)
SBQ = s(12, 4)
SBX = s(76, 4)
sPM = s(22, 2)
sPQ = s(16, 2)
sXB0, sWB0, sXSH = s(84 + 1), s(84 + 2), s(84 + 3)
def stage_of(dst, src):
    I("s_and_b32", dst, src, 15)
    if OPT["xsh"]:
        I("s_add_u32", dst, dst, sXSH)
def stage_fix(dst):
    I("s_cmp_ge_u32", dst, 9)
    I("s_cselect_b32", sT1, 9, 0)
def perm_next():
    g = singles(cap(lambda: stage_of(sT0, sPM[0])))
    if OPT["xsh"]: g += [cap(lambda: stage_fix(sT0))] + singles(cap(lambda: I("s_sub_u32", sT0, sT0, sT1)))
    def f():
        I("s_lshr_b64", sPM, sPM, 4)
        I("s_lshl_b32", sOX, sT0, 7); I("s_add_u32", sOX, sOX, sXB0)
        I("s_mul_i32", sOW, sT0, WSTEP); I("s_add_u32", sOW, sOW, sWB0)
    return g + singles(cap(f))
def permq_next():
    g = singles(cap(lambda: stage_of(sT0, sPQ[0])))
    if OPT["xsh"]: g += [cap(lambda: stage_fix(sT0))] + singles(cap(lambda: I("s_sub_u32", sT0, sT0, sT1)))
    def f():
        I("s_lshr_b64", sPQ, sPQ, 8)
        I("s_mul_i32", sOQ, sT0, WSTEP); I("s_add_u32", sOQ, sOQ, sQE)
    return g + singles(cap(f))
def wraps_after(j):
    rots = {1: [0], 2: [0, 4], 3: [0, 3, 6], 4: [0, 2, 4, 6], 5: [0, 2, 5, 7], 8: list(range(8)), 6: list(range(9)), 7: list(range(9))}[OPT["nphase"]]
    return any(r + j == 8 for r in rots) and j < 8
def x_dma(j):
    g = singles(cap(lambda: I("s_add_u32", "m0", sMX, (j % 3) * XSLOT)))
    for i in range(4):
        g += singles(cap(lambda: I("buffer_load_dwordx4", vOX[i], SX, sOX, mods="offen offset:%d lds" % (1024 * i))))
    return tagged(g, "S%d" % j)
def w_dma(j):
    g = tagged(dma5(vOW, SW, sOW, sMW, (j % 3) * WSLOT), "S%d" % j)
    if j < 8 and OPT["perm"]:
        g += perm_next()
    elif j < 8:
        g += singles(cap(lambda: (I("s_add_u32", sOX, sOX, 128), I("s_add_u32", sOW, sOW, WSTEP))))
        if wraps_after(j):
            def wr():
                I("s_cmp_eq_u32", sROT, 8 - j)
                I("s_cselect_b32", sT0, 1152, 0); I("s_cselect_b32", sT1, 9 * WSTEP, 0)
            g.append(cap(wr))
            g += singles(cap(lambda: (I("s_sub_u32", sOX, sOX, sT0), I("s_sub_u32", sOW, sOW, sT1))))
    return g
def stage_dma(j): return x_dma(j) + w_dma(j)

def advance(reg, step, end, span):
    def a1():
        I("s_add_u32", reg, reg, step)
        I("s_cmp_ge_u32", reg, end)
        I("s_cselect_b32", sT0, span, 0)
    return [cap(a1)] + singles(cap(lambda: I("s_sub_u32", reg, reg, sT0)))
def wq_pair_dma(j):
    pos = (WQ0 + j * 9216) if j < 6 else (WQ6 + (j - 6) * 9216)
    if j == 8:
        return singles(cap(lambda: I("s_add_u32", sOQ, sOQ, sQ8))) + tagged(dma5(vOQ, SW, sOQ, sM8, pos), "WQ8")
    g = tagged(dma5(vOQ, SW, sOQ, sMQ, pos), "WQ%d" % j)
    g += permq_next() if OPT["perm"] else advance(sOQ, 2 * WSTEP, sQE, 9 * WSTEP)
    if j == 0 and OPT["perm"]: g = permq_next() + g
    return g
def wo_pair_dma(u):
    pos = (WO0 + u * 9216) if u < 6 else (WO6 + (u - 6) * 9216)
    g = tagged(dma5(vOO, SWO, sOO, sMQ, pos), "WO%d" % u)
    if OPT["nowa"] & 1: return [cap(lambda: I("s_nop", 0)) for _ in range(5)]
    if u < 6 and OPT["gord"]:
        def nx():
            I("s_add_u32", sT0, sOE, u + 1)
            I("s_cmp_ge_u32", sT0, sG)
            I("s_addc_u32", sT0, sT0, 0)
        g += [cap(nx)] + singles(cap(lambda: (I("s_mul_i32", sT0, sT0, 82944), I("s_add_u32", sOO, sT0, sO8))))
    elif u < 6: g += advance(sOO, 2 * 82944, sOE, 8 * 82944)
    return g
def only_waves01(groups, tag):
    def f():
        I("s_cmp_ge_u32", sWV, 2)
        I("s_cbranch_scc1", "L_skip_" + tag)
        for g in groups: P.put(mark(g, cond=True))
        P.label("L_skip_" + tag)
    return [cap(f)]

def tr(dst, addr, off):
    assert 0 <= off < 65536, off
    I("ds_read_b64_tr_b16", dst, addr, mods="offset:%d" % off)
def mfma(d, x, y, c): I("v_mfma_f32_16x16x32_bf16", d, x, y, c)
def tile_read(dstreg, T_, base_off):
    if T_ < 3: pat, o = 0, 8 * T_
    elif T_ == 3: pat, o = 1, 0
    elif T_ == 4: pat, o = 2, 0
    elif T_ < 9: pat, o = 3, 144 + 8 * [0, 5, 9, 14][T_ - 5]
    else: pat, o = 4, 144
    for e in range(2):
        tr(dstreg[2 * e:2 * e + 2], vTR[pat][e], base_off + o)

class Pipe:
    def __init__(self, dist=4, grp=2):
        self.units = []; self.dist = dist; self.grp = grp; self.hooks = {}
    def add(self, rd, work, pre=None, rt=None):
        k = len(self.units)
        wk = cap(work)
        if OPT["snake"] and k & 1 and self.grp == 2: wk = wk[::-1]
        self.units.append((cap(rd), wk, cap(pre) if pre else None, k - self.dist if rt is None else rt))
    def emit(self, fill=(), bulk=(), lead=()):
        fill = list(fill); bulk = list(bulk)
        U = self.units; n = len(U)
        seq = []
        state = dict(done=0)
        def put(items, owner=-1):
            for x in items:
                if isinstance(x, Ins) and x.kind == "ds": seq.append(owner)
                if isinstance(x, Ins) and x.op == "s_waitcnt" and ("lgkmcnt(0)" in x.args[0] or getattr(x, "lgkm", None) == 0): state["done"] = len(seq)
            P.put(items)
        def need_wait(k):
            last = max([i for i, o in enumerate(seq) if o == k] + [-1])
            return last >= state["done"]
        byt = {}
        for k, u in enumerate(U): byt.setdefault(max(u[3], -1), []).append(k)
        for k in byt.get(-1, []): put(U[k][0], k)
        put(list(lead))
        while bulk and bulk[0][0] < 0: put(bulk.pop(0)[1])
        def take(k):
            if fill and fill[0][0] <= k: put(fill.pop(0)[1]); return True
            if bulk and bulk[0][0] <= k + 6: put(bulk.pop(0)[1]); return True
            return False
        for k in range(n):
            if k in self.hooks: put(self.hooks[k])
            if U[k][2]: put(U[k][2])
            if need_wait(k):
                want = [q for q in range(k, min(n, k + self.grp)) if U[q][3] < k - 1 or q == k]
                last = max(i for i, o in enumerate(seq) if o in want)
                later = len(seq) - 1 - last
                assert later <= 15, later
                wait(lgkm=later); state["done"] = last + 1
            nxt = [(x, q) for q in byt.get(k, []) for x in U[q][0]]
            half = (len(nxt) + 1) // 2
            w = U[k][1]
            P.put([w[0]])
            for x, q in nxt[:half]: put([x], q)
            for _ in range(max(0, 2 - half)): take(k)
            P.put(w[1:])
            for x, q in nxt[half:]: put([x], q)
            rest = len(nxt) - half + (1 if (k + 1 < n and need_wait(k + 1)) else 0) + (2 if k + 1 in self.hooks else 0)
            for _ in range(max(0, 2 - rest)): take(k)
            while fill and fill[0][0] <= k - 3: put(fill.pop(0)[1])
            while bulk and bulk[0][0] <= k: put(bulk.pop(0)[1])
        for _, g in fill + bulk: put(g)

def vm_only(groups):
    if groups[0][0].op == "s_nop": return groups
    out = []
    for g in groups:
        if any(x.kind == "vmem" for x in g) or not out: out.append(list(g))
        else: out[-1] += g
    return out
def weave(a_, b_):
    out = []; na, nb = len(a_), len(b_); i = j = 0
    while i < na or j < nb:
        if j >= nb or (i < na and i * nb <= j * na): out.append(a_[i]); i += 1
        else: out.append(b_[j]); j += 1
    return out
def at(unit, groups): return [(unit + i * 2 // 3, g) for i, g in enumerate(groups)]
def spread(groups, first, last):
    n = len(groups)
    return [(first + (last - first) * i // max(1, n), g) for i, g in enumerate(groups)]
def merge(main, extra, start=0, step=2):
    out = []; extra = list(extra)
    for i, x in enumerate(main):
        out.append(x)
        if extra and i >= start and (i - start) % step == step - 1: out += extra.pop(0)
    for g in extra: out += g
    return out

def sm_head(src18, tmp, both=None):
    if both is None: both = not OPT["rec"]
    mx, mn = tmp[18], tmp[19]
    if both:
        I("v_max3_f32", mx, src18[0], src18[1], src18[2]); I("v_min3_f32", mn, src18[0], src18[1], src18[2])
        for i in range(3, 17, 2):
            I("v_max3_f32", mx, mx, src18[i], src18[i + 1]); I("v_min3_f32", mn, mn, src18[i], src18[i + 1])
        I("v_max_f32", mx, mx, src18[17]); I("v_min_f32", mn, mn, src18[17])
        I("v_mul_f32", tmp[20], sC[0], mx); I("v_mul_f32", tmp[21], sC[0], mn)
    else:
        I("v_max3_f32", mx, src18[0], src18[1], src18[2])
        for i in range(3, 17, 2): I("v_max3_f32", mx, mx, src18[i], src18[i + 1])
        I("v_max_f32", mx, mx, src18[17])
        I("v_mul_f32", tmp[20], sC[0], mx)
def sm_mid(src18, tmp, both):
    ab = tmp[20:22]
    for i in range(0, 18, 2):
        if both: I("v_pk_fma_f32", tmp[i:i + 2], src18[i:i + 2], sC, ab, mods="op_sel:[0,0,1] op_sel_hi:[1,1,1] neg_lo:[1,0,0] neg_hi:[1,0,0]")
        I("v_pk_fma_f32", src18[i:i + 2], src18[i:i + 2], sC, ab, mods="op_sel:[0,0,0] op_sel_hi:[1,1,0] neg_lo:[0,0,1] neg_hi:[0,0,1]")
    sp, sn = tmp[18:20], tmp[20:22]
    for i in range(0, 18, 2):
        if both:
            for h in range(2):
                I("v_exp_f32", src18[i + h], src18[i + h]); I("v_exp_f32", tmp[i + h], tmp[i + h])
        else:
            for h in range(2): I("v_exp_f32", src18[i + h], src18[i + h])
            for h in range(2): I("v_rcp_f32", tmp[i + h], src18[i + h])
        if i == 4:
            I("v_pk_add_f32", sp, src18[0:2], src18[2:4]); I("v_pk_add_f32", sn, tmp[0:2], tmp[2:4])
        elif i > 4:
            I("v_pk_add_f32", sp, sp, src18[i - 2:i]); I("v_pk_add_f32", sn, sn, tmp[i - 2:i])
    I("v_pk_add_f32", sp, sp, src18[16:18]); I("v_pk_add_f32", sn, sn, tmp[16:18])
    rr = tmp[22:24]
    I("v_add_f32", rr[0], sp[0], sp[1]); I("v_add_f32", rr[1], sn[0], sn[1])
def sm_tail(src18, out18, tmp, p=0, tag=""):
    sm_mid(src18, tmp, not OPT["rec"])
    rr = tmp[22:24]
    if OPT["rec"]:
        lab = "%s%d" % (tag, p)
        I("v_cmp_ngt_f32", "vcc", f2u(2.0 ** 60) if not OPT["forcefb"] else f2u(64.0), rr[1])
        I("s_cbranch_vccnz", "L_smx" + lab)
        P.label("L_smb" + lab)
        def fb():
            P.label("L_smx" + lab)
            I("s_nop", 1)
            for j in range(3):
                for t in range(5):
                    mfma(ACK[p][t], PHIF(t, j), KB[p][4 * j:4 * j + 4], 0 if j == 0 else ACK[p][t])
            sm_head(src18, tmp, True); sm_mid(src18, tmp, True)
            I("s_branch", "L_smb" + lab)
        RARE.append(cap(fb))
    I("v_rcp_f32", rr[0], rr[0]); I("v_rcp_f32", rr[1], rr[1])
    def el(d): return (src18[2 * d:2 * d + 2], "op_sel:[0,0] op_sel_hi:[1,0]") if d < 9 else (tmp[2 * (d - 9):2 * (d - 9) + 2], "op_sel:[0,1] op_sel_hi:[1,1]")
    for d in range(0, 18, 2):
        for h in range(2): I("v_pk_mul_f32", el(d + h)[0], el(d + h)[0], rr, mods=el(d + h)[1])
        for h in range(2): I("v_cvt_pk_bf16_f32", out18[d + h], el(d + h)[0][0], el(d + h)[0][1])

SLOW = []
RARE = []
ACC = [v(64 + 20 * p, 20) for p in range(2)]
def cv(p):
    I("v_cndmask_b32", ACC[p][16], ACC[p][16], ACC[p][18], sODD)
    I("v_cndmask_b32", ACC[p][17], ACC[p][17], ACC[p][19], sODD)
    for i in range(9): I("v_cvt_pk_bf16_f32", KB[p][i], ACC[p][2 * i], ACC[p][2 * i + 1])

def chase(body, groups):
    out = []; groups = list(groups)
    lastdef = {}
    for i, x in enumerate(body):
        if isinstance(x, Ins):
            for r in x.defs: lastdef[r] = i
    pos = {}
    for g in groups:
        p_ = max([lastdef.get(r, -1) for x in g for r in x.uses] + [-1])
        pos.setdefault(p_, []).append(g)
    for g in pos.get(-1, []): out += g
    for i, x in enumerate(body):
        out.append(x)
        for g in pos.get(i, []): out += g
    return out

def evenly(lst, groups, lo=0, hi=100):
    out = []; groups = list(groups); n = len(lst); m = len(groups)
    pos = [n * lo // 100 + (n * (hi - lo) // 100) * i // max(1, m) for i in range(m)]
    for i, x in enumerate(lst):
        out.append(x)
        if i + 1 < n and (isinstance(lst[i + 1], Label) or lst[i + 1].op.startswith("s_cbranch")): continue
        while groups and pos[0] <= i:
            out += groups.pop(0); pos.pop(0)
    for g in groups: out += g
    return out

def feature_map(path, tag, cv_done, shadow, mid0, mid1, after_p):
    if path == "B":
        def mm(p):
            for j in range(3):
                for t in range(5):
                    mfma(ACK[p][t], PHIF(t, j), KB[p][4 * j:4 * j + 4], 0 if j == 0 else ACK[p][t])
        body = [] if cv_done else cap(lambda: cv(0))
        sh = ([] if cv_done else singles(cap(lambda: cv(1)))) + list(shadow)
        head0 = singles(cap(lambda: sm_head(ACC[0][0:18], TMP)))
        ms = cap(lambda: (mm(0), mm(1)))
        for i, x in enumerate(ms):
            body.append(x)
            if i == (24 if OPT["rec"] else 19): sh = head0 + sh
            k = 0
            while sh and k < 2:
                g = sh.pop(0); body += g; k += len(g)
        for g in sh: body += g
        body += cap(lambda: fst(tag + "mm"))
        body += evenly(cap(lambda: sm_tail(ACC[0][0:18], PH[0][0:18], TMP, 0, tag)), *mid0)
        body += cap(lambda: fst(tag + "t0"))
        t1 = cap(lambda: (sm_head(ACC[1][0:18], TMP), sm_tail(ACC[1][0:18], PH[1][0:18], TMP, 1, tag)))
        t1 = evenly(t1, after_p(0), 2, 66)
        t1 = evenly(t1, *mid1)
        body += chase(t1, after_p(1))
    else:
        def pa(p):
            x = ACC[p]
            if not cv_done:
                I("v_cndmask_b32", x[16], x[16], x[18], sODD); I("v_cndmask_b32", x[17], x[17], x[19], sODD)
            for i in range(0, 18, 2): I("v_pk_mul_f32", TMP[i:i + 2], x[i:i + 2], sC)
            for d in range(9):
                for i in (2 * d, 2 * d + 1):
                    I("v_exp_f32", TMP[i], TMP[i], mods="clamp")
                    I("v_max_f32", x[i], 0, x[i])
                I("v_pk_add_f32", x[2 * d:2 * d + 2], x[2 * d:2 * d + 2], sEPS)
                I("v_pk_add_f32", x[2 * d:2 * d + 2], x[2 * d:2 * d + 2], TMP[2 * d:2 * d + 2])
                I("v_cvt_pk_bf16_f32", KB[p][d], x[2 * d], x[2 * d + 1])
        body = []
        for g in shadow: body += g
        body += cap(lambda: fst(tag + "mm"))
        body += chase(evenly(cap(lambda: pa(0)), *mid0), after_p(0))
        body += cap(lambda: fst(tag + "t0"))
        t1 = cap(lambda: pa(1))
        t1 = evenly(t1, *mid1)
        body += chase(t1, after_p(1))
    return body + cap(lambda: fst(tag + "t1"))

def umax(dst, regs):
    regs = list(regs)
    I("v_max3_u32", dst, regs[0], regs[1], regs[2]); regs = regs[3:]
    while len(regs) >= 2:
        I("v_max3_u32", dst, dst, regs[0], regs[1]); regs = regs[2:]
    if regs: I("v_max_u32", dst, dst, regs[0])

def check_or_retry(tag, fold, cmp_bad, loads):
    g = singles(cap(fold))
    def test():
        cmp_bad()
        I("s_cbranch_vccnz", "L_slow_" + tag)
        P.label("L_back_" + tag)
    g.append(cap(test))
    def slow():
        P.label("L_slow_" + tag)
        I("s_mov_b32", sCNT, 0)
        P.label("L_sp_" + tag)
        if OPT["stamps"] and not OPT["lite"]: I("s_add_u32", s(3), s(3), {"r": 1, "a": 0x100, "o": 0x10000}[tag[0]] if not tag.startswith("rf") else 0x1000000)
        loads()
        wait(vm=0)
        fold()
        cmp_bad()
        I("s_add_u32", sCNT, sCNT, 1)
        I("s_cmp_gt_u32", sCNT, SPIN)
        I("s_cbranch_scc1", "L_back_" + tag)
        I("s_cbranch_vccnz", "L_sp_" + tag)
        I("s_branch", "L_back_" + tag)
    SLOW.append(cap(slow))
    return g
def check_sent(tag, chk, regs, loads):
    return check_or_retry(tag, lambda: umax(chk, regs), lambda: I("v_cmp_eq_u32", "vcc", -1, chk), loads)
def check_tag(tag, chk, regs, loads):
    def fold():
        for r in regs: I("v_xor_b32", r, sTAG, r)
        I("v_or3_b32", chk, regs[0], regs[1], regs[2])
        for i in range(3, len(regs) - 1, 2): I("v_or3_b32", chk, chk, regs[i], regs[i + 1])
        I("v_or_b32", chk, chk, regs[-1])
        I("v_and_b32", chk, 0xff, chk)
    return check_or_retry(tag, fold, lambda: I("v_cmp_ne_u32", "vcc", 0, chk), loads)

def build():
    I("s_cmp_ge_u32", s(2), 256)
    I("s_cbranch_scc1", "L_end")
    if OPT["swap07"]:
        I("s_add_u32", sT0, s(2), 1); I("s_and_b32", sT0, sT0, 6)
        I("s_cselect_b32", sT0, 0, 7)
        I("s_xor_b32", s(2), s(2), sT0)
    I("s_bfe_u32", sA, s(2), 0x10002)
    I("s_cmp_lg_u32", sA, 0)
    I("s_cselect_b32", sT0, 0, 24)
    I("s_cselect_b32", sT1, 8, 32)
    I("s_cselect_b32", sT2, 16, 48)
    I("s_load_dwordx2", SX[0:2], s(0, 2), sT0)
    I("s_load_dwordx2", SW[0:2], s(0, 2), sT1)
    I("s_load_dwordx2", SWO[0:2], s(0, 2), sT2)
    I("s_load_dwordx2", SPHI[0:2], s(0, 2), 40)
    I("s_load_dwordx2", SOUT[0:2], s(0, 2), 56)
    I("s_load_dwordx2", SWS[0:2], s(0, 2), 72)
    if OPT["apo"]: I("s_load_dwordx2", SBO[0:2], s(0, 2), 48)
    if OPT["apq"]: I("s_load_dwordx2", SBQ[0:2], s(0, 2), 32)
    if OPT["apx"]: I("s_load_dwordx2", SBX[0:2], s(0, 2), 24)
    I("s_getpc_b64", sPC)
    I("s_and_b32", sT0, s(2), 0xf8)
    I("v_lshrrev_b32", T[0], 5, v(0))
    I("v_add_lshl_u32", T[1], T[0], sT0, 7)
    I("s_cmp_ge_u32", sT0, "HEAD_LINES")
    I("s_cselect_b32", sT1, sA, 0)
    I("s_mul_i32", sT1, sT1, "A_SHIFT")
    I("v_add_u32", T[1], sT1, T[1])
    I("v_min_u32", T[1], "CODE_SPAN", T[1])
    I("global_load_dword", v(255), T[1], sPC)
    if OPT["stamps"]:
        I("s_memtime", s(98, 2)); I("s_memrealtime", s(96, 2))
        if OPT["fine"]: I("s_mov_b32", s(3), 0)
    I("v_readfirstlane_b32", sWV, T[0])
    I("v_and_b32", vL, 63, v(0))
    I("s_and_b32", sT0, s(2), 3)
    I("s_lshr_b32", sT1, s(2), 6)
    I("s_lshr_b32", sWV, sWV, 1)
    I("s_lshl2_add_u32", sRT, sT0, sT1)
    I("s_bfe_u32", sG, s(2), 0x30003)
    if OPT["perm"]:
        K, tab = PERMS[OPT["perm"]]
        if OPT["xsh"]: I("s_mul_i32", sXSH, sT0, OPT["xsh"])
        if K == 8:
            I("s_lshl1_add_u32", sT0, sT1, sG); I("s_and_b32", sT0, sT0, 7)
        elif K == 4:
            I("s_add_u32", sT0, sG, sT1); I("s_and_b32", sT0, sT0, 3)
        else:
            I("s_add_u32", sT0, sG, sT1); I("s_mul_i32", sT1, sT0, 86); I("s_lshr_b32", sT1, sT1, 8)
            I("s_mul_i32", sT1, sT1, 3); I("s_sub_u32", sT0, sT0, sT1)
        lo = [sum(p[i] << (4 * i) for i in range(8)) for p in tab]
        I("s_mov_b32", sPM[0], lo[0])
        for k_ in range(1, K):
            I("s_cmp_eq_u32", sT0, k_); I("s_cselect_b32", sPM[0], lo[k_], sPM[0])
        I("s_lshl_b32", sT0, sT0, 2)
        I("s_lshr_b32", sPM[1], sum(p[8] << (4 * k_) for k_, p in enumerate(tab)), sT0)
        I("s_and_b32", sPM[1], sPM[1], 15)
        I("s_lshl_b32", sT0, sWV, 1); I("s_and_b32", sT0, sT0, 4)
        I("s_lshr_b64", sPQ, sPM, sT0)
        I("s_mov_b32", sROT, 0)
    elif OPT["nphase"] == 7:
        I("s_add_u32", sT1, sG, sT1)
        I("s_and_b32", sT1, sT1, 1)
        I("s_lshl2_add_u32", sROT, sT1, sT0)
        I("s_add_u32", sROT, sROT, sT1)
    elif OPT["nphase"] in (3, 6):
        if OPT["nphase"] == 6:
            I("s_cmp_eq_u32", sT0, 3); I("s_cselect_b32", sT2, 1, sT0)
        I("s_add_u32", sT0, sG, sT1)
        I("s_mul_i32", sT1, sT0, 86)
        I("s_lshr_b32", sT1, sT1, 8)
        I("s_mul_i32", sT1, sT1, 3)
        I("s_sub_u32", sT0, sT0, sT1)
        I("s_mul_i32", sROT, sT0, 3)
        if OPT["nphase"] == 6: I("s_add_u32", sROT, sROT, sT2)
    elif OPT["nphase"] == 4:
        I("s_add_u32", sT0, sG, sT1)
        I("s_and_b32", sT0, sT0, 3)
        I("s_lshl_b32", sROT, sT0, 1)
    elif OPT["nphase"] == 5:
        I("s_add_u32", sT0, sG, sT1)
        I("s_and_b32", sT0, sT0, 3)
        I("s_mul_i32", sT0, sT0, 5)
        I("s_lshr_b32", sROT, sT0, 1)
    elif OPT["nphase"] == 8:
        I("s_lshl1_add_u32", sT0, sT1, sG)
        I("s_and_b32", sROT, sT0, 7)
    elif OPT["nphase"] == 2:
        I("s_add_u32", sT0, sG, sT1)
        I("s_and_b32", sT0, sT0, 1)
        I("s_lshl_b32", sROT, sT0, 2)
    else:
        I("s_mov_b32", sROT, 0)
    I("s_lshl2_add_u32", sSL, sRT, sWV)
    I("s_mul_i32", sOX, sSL, 32 * 1152)
    I("s_lshl_b32", sT0, sROT, 7)
    I("s_add_u32", sOX, sOX, sT0)
    I("s_lshl_b32", sMX, sWV, 12)
    I("s_mul_i32", sMQ, sWV, 4608)
    I("s_add_u32", sMW, sMQ, WSL)
    I("s_movk_i32", s1152, 1152)
    I("v_lshrrev_b32", T[0], 3, vL)
    I("v_mul_u32_u24", T[0], s1152, T[0])
    I("v_lshrrev_b32", vGL, 4, vL)
    I("v_and_b32", T[1], 7, vL)
    I("v_xor_b32", T[1], T[1], vGL)
    I("v_lshl_add_u32", vOX[0], T[1], 4, T[0])
    I("v_xor_b32", vOX[1], 64, vOX[0])
    I("v_add_u32", vOX[2], 16 * 1152 - 2048, vOX[0])
    I("v_add_u32", vOX[3], 24 * 1152 - 3072, vOX[1])
    I("v_add_u32", vOX[1], 8 * 1152 - 1024, vOX[1])
    I("s_mov_b32", SX[2], 2048 * 1152); I("s_mov_b32", SX[3], 0x20000)
    I("s_mov_b32", SW[2], 576 * 3456); I("s_mov_b32", SW[3], 0x20000)
    I("s_mul_i32", sL3, sG, 144)
    I("s_lshl2_add_u32", sT0, sROT, sWV)
    I("s_mul_i32", sOW, sT0, 16 * 3456)
    I("s_add_u32", sOW, sOW, sL3)
    I("s_add_u32", sOW, sOW, s1152)
    if OPT["perm"]:
        I("s_mov_b32", sXB0, sOX); I("s_mov_b32", sWB0, sOW)
        emit_groups(perm_next())
    I("s_movk_i32", sL0, 3456); I("s_movk_i32", sL1, -144)
    I("v_lshlrev_b32", vL16, 4, vL)
    I("v_mul_u32_u24", vM, 7282, vL)
    DR = [v(64 + i) for i in range(5)]; DP = [v(70 + i) for i in range(5)]; DC = [v(76 + i) for i in range(5)]
    for i in range(5):
        t = vM
        if i:
            I("v_add_u32", T[0], Q0[i] * 7282, vM); t = T[0]
        I("v_lshrrev_b32", T[1], 16, t)
        I("v_lshrrev_b32", DR[i], 17, t)
        I("v_and_b32", DP[i], 1, T[1])
        I("v_mad_i32_i24", DC[i], T[1], sL1, vL16)
        if i == 2:
            I("v_lshrrev_b32", T[2], 1, DR[i]); I("v_and_b32", T[2], 4, T[2]); I("v_xor_b32", DR[i], DR[i], T[2])
        elif i > 2:
            I("v_xor_b32", DR[i], 4, DR[i])
        I("v_mad_u32_u24", T[2], DR[i], sL0, DC[i])
        I("v_mad_u32_u24", vOW[i], DP[i], s1152, T[2])
    for r_, z_ in ((SWO, 576 * 1152), (SPHI, 32 * 648), (SOUT, 2048 * 2304), (SWS, WS_BYTES)):
        I("s_mov_b32", r_[2], z_); I("s_mov_b32", r_[3], 0x20000)
    I("v_lshlrev_b32", vL4, 2, vL)
    I("s_lshl2_add_u32", sT2, sG, sWV); I("s_mul_i32", sT2, sT2, 648)
    I("s_lshl3_add_u32", sL2, sA, sG)
    I("s_lshl_b32", sAG, sL2, 14); I("s_add_u32", sAG, sAG, WS_F)
    I("s_sub_u32", sT0, 2, sA)
    I("s_min_u32", sT1, sWV, sT0); I("s_mul_i32", sT3, sRT, sT0); I("s_add_u32", sT3, sT3, sRT); I("s_add_u32", sRSB, sT1, sT3)
    I("s_lshl_b32", sT1, sRSB, 8); I("s_add_u32", sFSL, sAG, sT1)
    I("s_cmp_gt_u32", sWV, sT0)
    I("s_cselect_b32", sFSL, OOB, sFSL)
    I("s_lshl3_add_u32", sT0, sA, 0); I("s_and_b32", sT1, sRSB, 7); I("s_or_b32", sT0, sT0, sT1)
    I("s_cmp_eq_u32", sT0, 15)
    I("s_cselect_b32", sFSL, OOB, sFSL)
    I("s_subb_u32", sRSB, sRSB, 0)
    I("v_and_b32", vN, 15, vL)
    I("v_and_b32", T[7], 1, vGL)
    I("v_lshlrev_b32", T[0], 2, vGL); I("v_lshl_add_u32", T[0], vN, 4, T[0])
    I("v_lshl_or_b32", vFS, T[7], 30, T[0])
    I("s_mul_i32", sT0, sSL, 32 * 2304)
    I("s_add_u32", sT0, sT0, sL3)
    I("s_xor_b32", sT1, sA, 1); I("s_mul_i32", sT1, sT1, 1152); I("s_add_u32", sOUTB, sT0, sT1)
    I("s_lshl_b32", sT0, sA, 6); I("s_add_u32", sT0, sT0, sSL)
    I("s_lshl_b32", sRF, sT0, 7); I("s_add_u32", sRF, sRF, WS_R)
    if OPT["pois0"]:
        I("s_mul_i32", sOB, sT0, 8 * 4608); I("s_add_u32", sOB, sOB, WS_O)
        I("s_lshl_b32", sT0, sL3, 5); I("s_add_u32", sOU[0], sT0, sOB)
        for i in range(4): I("v_mov_b32", M1[i], -1)
        I("v_lshlrev_b32", v(92), 3, vL); I("v_add_u32", v(92), 4096, v(92))
    if OPT["apx"]:
        I("s_mul_i32", SBX[2], sA, 2048 * 1152); I("s_mov_b32", SBX[3], 0x20000)
        I("s_lshl3_add_u32", sCNT, sSL, sG); I("s_mul_i32", sCNT, sCNT, 4 * 1152)
        I("v_min_u32", v(93), 35, vL); I("v_lshlrev_b32", v(93), 7, v(93))
    I("v_lshlrev_b32", v(90), 20, vL)
    I("v_mov_b32", v(91), 0)
    I("s_mov_b32", sT0, WS_E)
    wait(lgkm=0)
    fst("karg")
    def extras():
        for i in range(3):
            I("buffer_load_dword", PW[i], vL4, SPHI, sT2, mods="offen offset:%d" % (256 * i))
        I("buffer_load_dword", v(255), v(91), SWS, sRF, mods="offen sc1")
        if OPT["touch"]:
            I("buffer_load_dword", v(255), v(90), SWS, 0, mods="offen")
            I("buffer_load_dword", v(255), v(91), SOUT, sOUTB, mods="offen")
            I("buffer_load_dword", v(255), v(91), SWO, sL3, mods="offen")
    def pois0():
        for i in range(4):
            I("buffer_store_dwordx4", M1, vL16, SWS, sOU[0], mods="offen offset:%d sc1" % (1024 * i))
        I("buffer_store_dwordx2", M1[0:2], v(92), SWS, sOU[0], mods="offen sc1")
    if OPT["pois0"] == 1: pois0()
    apx = lambda: I("buffer_load_dword", v(255), v(93), SBX, sCNT, mods="offen")
    if OPT["apx"] == 1: apx()
    emit_groups(x_dma(0))
    I("s_load_dword", sE, SWS[0:2], sT0)
    if OPT["xo"] == 0: extras()
    emit_groups(w_dma(0))
    if OPT["xo"] == 1: extras()
    if OPT["apx"] == 2: apx()
    def xpf():
        I("s_lshl3_add_u32", sT0, sRT, sG); I("s_lshl2_add_u32", sT0, sT0, sWV); I("s_mul_i32", sT0, sT0, 4 * 1152)
        I("v_min_u32", T[1], 35, vL); I("v_lshlrev_b32", T[1], 7, T[1])
        I("buffer_load_dword", v(255), T[1], SX, sT0, mods="offen")
    if OPT["pfx"] == 1: xpf()
    stamp("S0iss")
    I("v_lshrrev_b32", T[0], 1, vN)
    I("v_xor_b32", T[0], T[0], vGL)
    I("v_lshl_add_u32", T[1], vN, 7, sMX)
    I("v_lshl_add_u32", vXR[0], T[0], 4, T[1])
    I("v_xor_b32", vXR[1], 64, vXR[0])
    I("v_bfe_u32", vR, vL, 2, 2)
    I("v_and_b32", vC, 3, vL)
    I("v_lshl_add_u32", T[1], vGL, 3, vR)
    I("v_lshl_add_u32", T[2], T[7], 2, T[1])
    I("v_xor_b32", T[3], 4, T[2])
    I("s_movk_i32", sT0, 288); I("v_mov_b32", T[4], WSL)
    I("v_mad_u32_u24", T[2], T[2], sT0, T[4]); I("v_mad_u32_u24", T[3], T[3], sT0, T[4])
    I("v_mul_u32_u24", T[0], 40, vC)
    I("v_lshrrev_b32", T[1], 1, vC)
    I("v_add_u32", vTR[0][0], T[2], T[0]); I("v_add_u32", vTR[0][1], T[3], T[0])
    I("v_lshlrev_b32", T[6], 5, T[1]); I("v_sub_u32", T[6], T[0], T[6])
    I("v_add3_u32", vTR[1][0], T[2], T[6], 24); I("v_add3_u32", vTR[1][1], T[3], T[6], 24)
    I("v_mul_u32_u24", T[6], 72, T[1])
    I("v_add3_u32", vTR[2][0], T[2], T[6], 32); I("v_add3_u32", vTR[2][1], T[3], T[6], 32)
    I("v_lshl_add_u32", vTR[3][0], vC, 3, T[2]); I("v_lshl_add_u32", vTR[3][1], vC, 3, T[3])
    I("v_and_b32", T[6], 1, vC); I("v_mul_u32_u24", T[6], 72, T[6])
    if OPT["zv"]: I("v_lshl_add_u32", T[6], T[1], 17, T[6])
    I("v_add3_u32", vTR[4][0], T[2], T[6], 32); I("v_add3_u32", vTR[4][1], T[3], T[6], 32)
    I("s_mov_b32", sT0, 32 * 3456 - 1152); I("s_movk_i32", sT1, 72)
    for i in range(5):
        I("v_mad_u32_u24", vOQ[i], DP[i], sT0, vOW[i])
        I("v_lshl_add_u32", T[0], DP[i], 3, DR[i])
        I("v_and_b32", T[3], 1, DR[i])
        if i == 2:
            I("v_lshrrev_b32", T[1], 3, DR[i])
            I("v_mad_u32_u24", T[0], T[1], 12, T[0])
            I("v_lshl_add_u32", T[3], T[1], 1, T[3])
        elif i > 2:
            I("v_add_u32", T[0], 12, T[0])
        I("v_mad_u32_u24", vOO[i], T[0], s1152, DC[i])
        I("v_bfe_u32", T[2], DR[i], 1, 2)
        I("v_lshl_add_u32", T[2], DP[i], 2, T[2])
        if OPT["gord"]:
            I("v_cmp_ge_u32", "vcc", sG, T[2])
            I("v_subb_co_u32", T[2], "vcc", T[2], 0, "vcc")
            I("v_min_u32", T[5], sG, T[2]); I("v_cmp_gt_i32", "vcc", 0, T[2])
            I("v_cndmask_b32", T[2], T[2], T[5], "vcc")
        else:
            I("v_add_u32", T[2], sG, T[2]); I("v_and_b32", T[2], 7, T[2])
        I("v_add_u32", T[3], 18 if i > 2 else 16, T[3])
        I("v_mad_u32_u24", T[2], T[2], sT1, T[3])
        I("v_mad_u32_u24", vO8[i], T[2], s1152, DC[i])
    if OPT["s1m"]: emit_groups(x_dma(1))
    for i in range(4): I("v_mov_b32", v(84 + i), 0)
    I("s_mul_i32", sT1, sWV, 384); I("s_add_u32", sT1, sT1, ZERO)
    I("v_min_u32", T[0], 23 * 16, vL16); I("v_add_u32", T[0], sT1, T[0])
    I("ds_write_b128", T[0], v(84, 4))
    I("s_mul_i32", sT0, sWV, 960); I("s_add_u32", sT0, sT0, PHI)
    for i in range(3):
        t = vM
        if i:
            I("v_add_u32", T[0], 64 * i * 7282, vM); t = T[0]
        I("v_lshrrev_b32", T[0], 16, t); I("v_add_u32", T[0], T[0], vL)
        I("v_lshl_add_u32", PA[i], T[0], 2, sT0)
    I("v_cmp_eq_u32", "vcc", vC, vGL)
    I("v_mul_u32_u24", T[0], 40, vR)
    I("v_mul_u32_u24", T[1], 1040, vGL)
    I("v_mov_b32", T[3], ZERO)
    I("v_add3_u32", T[1], T[1], T[0], T[3])
    I("v_add_u32", T[2], (PHI - ZERO) & 0xffffffff, T[1])
    I("v_cndmask_b32", vPH[0], T[3], T[2], "vcc")
    I("v_lshrrev_b32", T[4], 1, vGL); I("v_mul_u32_u24", T[4], 640, T[4])
    I("v_sub_u32", T[2], T[2], T[4]); I("v_add_u32", T[2], 480, T[2])
    I("v_cndmask_b32", vPH[1], T[3], T[2], "vcc")
    I("v_mul_u32_u24", T[1], 1920, vGL); I("v_add_u32", T[1], T[1], T[0]); I("v_add_u32", T[2], KVI, T[1])
    I("v_cndmask_b32", vPSA, T[3], T[2], "vcc")
    I("v_mul_u32_u24", T[1], 960, vGL); I("v_mul_u32_u24", T[4], 640, T[7])
    I("v_sub_u32", T[1], T[1], T[4]); I("v_add_u32", T[1], T[1], T[0]); I("v_add_u32", T[1], PHI + 640, T[1])
    I("v_cndmask_b32", T[1], T[3], T[1], "vcc")
    I("v_cmp_gt_u32", "vcc", 2, vR)
    I("s_mul_i32", sPME, sL2, PGRP)
    I("s_lshl_b32", sRSB, sRSB, 12)
    I("v_cndmask_b32", vPH[2], T[3], T[1], "vcc")
    I("s_add_u32", sRSB, sRSB, sPME)
    stamp("P1")
    if OPT["pfx"] == 2: xpf()
    if OPT["xo"] == 2: extras()
    if OPT["pois0"] == 2: pois0()
    if OPT["apx"] == 3: apx()
    I("s_mov_b32", sG144, sL3)
    emit_groups(w_dma(1) if OPT["s1m"] else stage_dma(1))
    if OPT["pois0"] == 3: pois0()
    stamp("S1iss")
    def touch_round(r):
        I("s_lshl2_add_u32", sCNT, sA, sWV)
        I("s_mov_b64", "exec", 0)
        for k_ in range(7):
            I("s_cmp_eq_u32", sCNT, k_)
            I("s_cbranch_scc1", "L_th%s%d%d" % ("BA"[k_ // 4], r, k_ % 4))
        I("s_branch", "L_thA%d3" % r)
        P.label("L_tret%d" % r)
        I("s_mov_b64", "exec", -1)
    if OPT["itouch"]:
        P.touch = {"L_tailA"}; P.rounds = 2

    def late():
        I("s_and_b32", sL0, sWV, 1); I("s_lshr_b32", sL1, sWV, 1)
        I("s_mul_i32", sL2, sL0, 16 * 3456); I("s_add_u32", sL2, sL2, sG144)
        I("s_add_u32", sQE, sL2, 0 if OPT["perm"] else 9 * WSTEP)
        I("s_add_u32", sL3, sL1, sROT)
        if OPT["nphase"] in (6, 7):
            I("s_add_u32", sOQ, sL3, 7); I("s_lshr_b32", sOQ, sOQ, 4); I("s_mul_i32", sOQ, sOQ, 9); I("s_sub_u32", sL3, sL3, sOQ)
        I("s_mul_i32", sL3, sL3, WSTEP); I("s_add_u32", sOQ, sL3, sL2)
        I("s_mul_i32", sO8, sL0, 36 * 1152); I("s_add_u32", sO8, sO8, sG144)
        if OPT["gord"]:
            I("s_mov_b32", sOE, sL1)
            I("s_min_u32", sL3, sG, 1); I("s_xor_b32", sL3, sL3, 1); I("s_mul_i32", sL3, sL3, sL1)
            I("s_xor_b32", sL2, sL1, 1); I("s_mul_i32", sL2, sL2, sG); I("s_add_u32", sL3, sL3, sL2)
            I("s_mul_i32", sL3, sL3, 82944); I("s_add_u32", sOO, sL3, sO8)
        else:
            I("s_add_u32", sOE, sO8, 8 * 82944)
            I("s_add_u32", sL3, sL1, sG); I("s_and_b32", sL3, sL3, 7); I("s_mul_i32", sL3, sL3, 82944); I("s_add_u32", sOO, sL3, sO8)
        I("s_mov_b32", sC[0], f2u(LOG2E)); I("s_mov_b32", sC[1], f2u(LOG2E))
        I("s_mov_b32", sEPS[0], f2u(1e-6)); I("s_mov_b32", sEPS[1], f2u(1e-6))
        I("s_mov_b32", sODD[0], 0xffff0000); I("s_mov_b32", sODD[1], 0xffff0000)
        I("s_add_u32", sE, sE, 1); I("s_and_b32", sTAG, sE, 0xff); I("s_mov_b32", sMSK, 0xffffff00)
        I("s_getreg_b32", sL0, "hwreg(HW_REG_XCC_ID, 0, 4)")
        I("s_lshl4_add_u32", sRV, sE, sL0)
        for i in range(4): I("v_mov_b32", M1[i], -1)
        I("s_sub_u32", sL2, 3, sA); I("s_mul_i32", sL2, sL2, sWV)
        I("s_lshl_b32", sL1, sL2, 14); I("s_add_u32", sPME, sPME, sL1)
        I("s_lshl_b32", sL1, sRT, 8); I("s_add_u32", sPME, sPME, sL1)
        I("s_lshl_b32", sL1, sL2, 10); I("s_add_u32", sAG, sAG, sL1)
        I("s_lshr_b32", sL1, sWV, 1)
        I("s_mul_i32", sQ8, sL1, 0x40000000); I("s_mul_i32", sM8, sL1, 100000); I("s_add_u32", sM8, sM8, sMQ)
        I("s_lshl_b32", sL0, sA, 6); I("s_add_u32", sL0, sL0, sSL)
        I("s_mul_i32", sOB, sL0, 8 * 4608); I("s_add_u32", sOB, sOB, WS_O)
        I("s_lshl_b32", sL0, sG144, 5); I("s_add_u32", sOU[0], sL0, sOB)
        I("v_add_u32", vL4, 4096, vL4)
        I("v_lshl_add_u32", T[0], vGL, 2, vR)
        I("v_mul_u32_u24", T[0], IR, T[0])
        I("s_mul_i32", sL0, sWV, 128 * IR)
        I("v_add_u32", vKB2, sL0, T[0])
        I("v_lshl_add_u32", vKB0, vC, 3, vKB2)
        for p in range(2):
            for i in (9, 10, 11): I("v_mov_b32", KB[p][i], 0)
            for i in (18, 19): I("v_mov_b32", PH[p][i], 0)
        I("v_mul_u32_u24", T[0], 128 * IR, vGL)
        I("v_mul_u32_u24", T[1], IR, vN)
        I("s_mul_i32", sL0, sWV, 32 * IR)
        I("v_add3_u32", vIW, T[0], T[1], sL0)
        I("s_mul_i32", sL0, sWV, 5120); I("s_add_u32", sL0, sL0, VF)
        I("v_add_u32", vVW, sL0, vL16)
        I("s_lshl_b32", sL0, sWV, 10); I("s_add_u32", sL0, sL0, VF)
        I("v_add_u32", vAM, sL0, vL16)
        I("s_lshl_b32", sL0, sWV, 1)
        I("v_cmp_gt_u32", "vcc", 2, vN)
        I("v_add_u32", T[3], sL0, vN)
        I("v_lshlrev_b32", T[0], 4, vN); I("v_lshl_add_u32", vP1, vGL, 12, T[0])
        I("v_cndmask_b32", T[3], 8, T[3], "vcc")
        I("v_lshl_add_u32", T[3], vGL, 4, T[3])
        I("v_lshlrev_b32", T[3], 4, T[3]); I("v_add_u32", vAL, VF + 4096, T[3])
        I("v_cmp_gt_u32", "vcc", 4, vN)
        I("v_mov_b32", T[4], OOB)
        I("v_lshl_add_u32", T[0], vGL, 2, vN); I("v_lshlrev_b32", T[0], 4, T[0])
        I("v_cndmask_b32", vP2, T[4], T[0], "vcc")
        I("v_cmp_gt_u32", "vcc", 16, vL)
        I("s_mul_i32", sL1, sWV, 1920); I("s_add_u32", sL1, sL1, KVI)
        I("v_cndmask_b32", vP3, T[4], vL16, "vcc")
        I("v_mul_u32_u24", T[1], 40, vN); I("v_lshl_add_u32", T[1], vGL, 3, T[1])
        I("v_add_u32", vAG1, sL1, T[1])
        I("v_mul_u32_u24", T[2], 40, vC); I("v_lshrrev_b32", T[3], 2, vL)
        I("s_lshr_b32", sL0, 32 * 40, sA)
        I("v_lshl_add_u32", T[2], T[3], 3, T[2]); I("v_add_u32", T[2], sL0, T[2])
        I("v_mul_u32_u24", T[3], 40, vL); I("v_add_u32", T[3], (32 - 16 * 40) & 0xffffffff, T[3])
        I("v_cndmask_b32", T[2], T[3], T[2], "vcc"); I("v_add_u32", vAG2, sL1, T[2])
        for t in range(5):
            I("v_accvgpr_write_b32", PHIF(t, 2)[2], 0); I("v_accvgpr_write_b32", PHIF(t, 2)[3], 0)
    lt = singles(cap(late))

    wait_vm("S0", lgkm=0)
    I("s_barrier")
    stamp("S0land")
    pipe = Pipe(dist=4)
    RT = list(range(-4, 10)) + [10, 10, 11, 11, 12, 12]
    fill = []
    for j in range(9):
        slot = j % 3
        order = [(kap, T_) for kap in range(2) for T_ in range(10)]
        if j == 8: order = [(kap, T_) for T0 in (0, 5) for kap in range(2) for T_ in range(T0, T0 + 5)]
        seen = set()
        for m, (kap, T_) in enumerate(order):
            ks = 2 * j + kap
            ring = RING[(20 * j + m) % 8]
            def rd():
                if kap not in seen:
                    seen.add(kap)
                    for p in range(2):
                        I("ds_read_b128", XF(ks, p), vXR[kap], mods="offset:%d" % (slot * XSLOT + p * 2048))
                if OPT["ex"] & 2 and (j > 0 or m >= 8): return
                if OPT["ex"] & 4 and T_ >= 5: return
                tile_read(ring, T_, slot * WSLOT + kap * 9216)
            def work():
                if OPT["ex"] & 1:
                    I("s_nop", 1); I("s_nop", 1); return
                for p in range(2):
                    if T_ < 5: mfma(ACK[p][T_], ring, XF(ks, p), 0 if ks == 0 else ACK[p][T_])
                    else: mfma(ACV[p][T_ - 5], XF(ks, p), ring, 0 if ks == 0 else ACV[p][T_ - 5])
            pipe.add(rd, work, rt=20 * j + RT[m])
        def hook():
            if OPT["itouch"] and 20 * j + 16 == OPT["t0"]: touch_round(0)
            if OPT["itouch"] and 20 * j + 16 == OPT["t1"]: touch_round(1)
            if j < 8: wait_vm("S%d" % (j + 1), lgkm=0)
            else: wait(lgkm=0)
            I("s_barrier")
            if OPT["p1st"]: stamp("b%d" % (j + 1))
        pipe.hooks[20 * j + 16] = cap(hook)
        t0 = max(0, 20 * j - 4)
        if j + 2 < 9: fill += spread(stage_dma(j + 2), t0, 20 * j + 13)
        elif j == 7: fill += spread(wq_pair_dma(0) + wq_pair_dma(2), t0 + 2, 20 * j + 36)
    def apre(kind):
        tag = "ap" + kind
        def pre():
            I("s_lshl3_add_u32", sT2, sSL, sG); I("s_mul_i32", sT2, sT2, 81); I("s_lshr_b32", sT2, sT2, 3)
            I("v_min_u32", T[5], 10, vL); I("v_add_u32", T[5], sT2, T[5])
            if kind == "o":
                I("v_lshlrev_b32", T[5], 7, T[5])
                I("s_mov_b32", SBO[2], 576 * 1152); I("s_mov_b32", SBO[3], 0x20000)
            else:
                I("v_mul_u32_u24", T[6], 7282, T[5]); I("v_lshrrev_b32", T[6], 16, T[6])
                I("v_mul_u32_u24", T[6], 18, T[6]); I("v_add_lshl_u32", T[5], T[5], T[6], 7)
                I("s_mov_b32", SBQ[2], 576 * 3456); I("s_mov_b32", SBQ[3], 0x20000)
        def go():
            I("s_cmp_eq_u32", sA, 0)
            I("s_cbranch_scc1", "L_skip_" + tag)
            for r_ in ((SBO, SWO) if kind == "o" else (SBQ, SW)):
                x = I("buffer_load_dword", v(255), T[5], r_, 0, mods="offen"); x.cond = True
            P.label("L_skip_" + tag)
        return singles(cap(pre)) + [cap(go)]
    if OPT["apo"]: fill += at(OPT["apo"], apre("o"))
    if OPT["apq"]: fill += at(OPT["apq"], apre("q"))
    if OPT["pfq"]:
        fill += at(OPT["pfq"], singles(cap(lambda: prefetch("wq"))))
    if OPT["pfo"] > 1:
        fill += at(OPT["pfo"], singles(cap(lambda: prefetch("wo"))))
    fill.sort(key=lambda t: t[0])
    phw = singles(cap(lambda: [I("ds_write_b32", PA[i], PW[i], mods="offset:%d" % (256 * i)) for i in range(3)]))
    def phir():
        for t in range(5):
            for tp in range(5):
                ad, o = (vPH[0], 160 * tp) if tp < 3 else (vPH[tp - 2], 0)
                tr(PHIF(t, tp // 2)[2 * (tp & 1):2 * (tp & 1) + 2], ad, 8 * t + o)
    phr = singles(cap(phir))
    nl = len(lt)
    bulk = spread(lt[:8], -1, -1) + spread(lt[8:30], 0, 24) + spread(phw, 24, 30) + spread(lt[30:40], 30, 42)
    bulk += spread(phr, 42, 80) + spread(lt[40:], 80, 150)
    bulk += spread(singles(cap(lambda: (cv(0), cv(1)))), 178, 180)
    pipe.emit(fill, bulk)
    stamp("pass1")

    I("s_cmp_lg_u32", sA, 0)
    I("s_cbranch_scc1", "L_tailA")
    P.label("L_tailB")
    names0 = list(stamp_names); mute0 = OPT.get("mute")
    P.put(mark(cap(lambda: tail("B")), path="B"))
    P.label("L_end")
    P.label("L_notouchB")
    I("s_endpgm")
    for sl in SLOW: P.put(mark(sl, path="B"))
    del SLOW[:]
    stamp_names[:] = names0; OPT["mute"] = mute0
    P.raw(".p2align 7")
    P.label("L_dotouch")
    P.label("L_tailA")
    P.put(mark(cap(lambda: (I("s_nop", 7), tail("A"))), path="A"))
    P.label("L_notouchA")
    I("s_endpgm")
    for sl in SLOW: P.put(mark(sl, path="A"))
    P.label("L_last")
    for sl in RARE: P.put(mark(sl, path="B"))

def prefetch(kind):
    I("s_lshr_b32", sT2, s(2), 3); I("s_lshl2_add_u32", sT2, sT2, sWV); I("s_mul_i32", sT2, sT2, 81); I("s_lshr_b32", sT2, sT2, 1)
    I("v_min_u32", T[5], 40, vL); I("v_add_u32", T[5], sT2, T[5])
    if kind == "wo":
        I("v_lshlrev_b32", T[5], 7, T[5])
        I("buffer_load_dword", v(255), T[5], SWO, 0, mods="offen")
    else:
        I("v_mul_u32_u24", T[6], 7282, T[5]); I("v_lshrrev_b32", T[6], 16, T[6])
        I("v_mul_u32_u24", T[6], 18, T[6]); I("v_add_lshl_u32", T[5], T[5], T[6], 7)
        I("buffer_load_dword", v(255), T[5], SW, 0, mods="offen")

def rebase(delta):
    for pat in range(3):
        for e in range(2):
            I("v_add_u32", vTR[pat][e], delta & 0xffffffff, vTR[pat][e])

def tail(path):
    B = path == "B"
    FT = [0, 1, 2] if B else [0, 2]
    PHI_ = PH if B else KB
    NJ = 5 if B else 3
    def poison():
        for i in range(4):
            I("buffer_store_dwordx4", M1, vL16, SWS, sOU[0], mods="offen offset:%d sc1" % (1024 * i))
        for i in range(2):
            I("buffer_store_dword", M1[0], vL4, SWS, sOU[0], mods="offen offset:%d sc1" % (256 * i))
    def vpack():
        I("v_cmp_eq_u32", "vcc", 8, vN)
        I("v_mov_b32", T[0], 0x3f803f80)
        for t in range(5):
            d = ACV[0][t]
            for p in range(2):
                for h in range(2):
                    I("v_cvt_pk_bf16_f32", d[2 * p + h], ACV[p][t][2 * h], ACV[p][t][2 * h + 1])
        for i in range(4): I("v_cndmask_b32", ACV[0][4][i], ACV[0][4][i], T[0], "vcc")
        I("v_mov_b32", T[0], sTAG)
        rebase(WQ0 - WSL)
    def prewarm():
        I("v_min_u32", T[1], 35, vL); I("v_lshlrev_b32", T[1], 7, T[1])
        I("buffer_load_dword", v(255), T[1], SWS, sOU[0], mods="offen sc1")
    vp = singles(cap(vpack))
    w = singles(cap(lambda: [I("ds_write_b128", vVW, ACV[0][t], mods="offset:%d" % (1024 * t)) for t in range(5)]))
    q = tagged(singles(cap(poison)), "POIS") if not OPT["pois0"] else []
    pwm = [cap(prewarm)] if OPT["pw"] else []
    pfo = [cap(lambda: prefetch("wo"))] if OPT["pfo"] == 1 else []
    q4, q6, q8 = vm_only(wq_pair_dma(4)), vm_only(wq_pair_dma(6)), vm_only(wq_pair_dma(8))
    if B:
        ksh = weave(q4[:4], vp); km0 = weave(q4[4:] + q6, w); km1 = q8 + pfo + q
        late_q = []
    else:
        ksh = weave(q4[:2], vp); km0 = weave(q4[2:] + q6[:3], w); km1 = q6[3:] + q8 + pfo + q
        late_q = []
    kvq = []
    if OPT["pf2"]:
        pf = [cap(lambda: prefetch("wo"))]
        if B:
            ksh = weave(q4, vp); km0 = weave(q6 + q8, w) + pf; km1 = []
        else:
            ksh = weave(q4[:2], vp); km0 = weave(q4[2:] + q6[:3], w); km1 = q6[3:] + q8 + pf
        kvq = q
    def kwrites(p):
        def f():
            n4 = 4 if B else 2
            for i in range(n4): I("ds_write_b128", vIW, PHI_[p][4 * i:4 * i + 4], mods="offset:%d" % (IMG + p * 16 * IR + 16 * i))
            I("ds_write_b64", vIW, PHI_[p][4 * n4:4 * n4 + 2], mods="offset:%d" % (IMG + p * 16 * IR + 16 * n4))
        return singles(cap(f))
    P.put(feature_map(path, "k", True, ksh, (km0, 2, 98), (km1, 0, 70 if B else 95), kwrites))
    wait_vm("WQ4", lgkm=0)
    I("s_barrier")
    stamp("kpost")
    DM = [v(104 + 4 * j, 4) for j in range(3)]; DL = [v(116 + 4 * j, 4) for j in range(3)]
    pipe = Pipe(dist=3, grp=1) if not OPT["j4"] else Pipe(dist=4)
    n = 0
    for j in FT:
        for src in range(4):
            AM, AL = a(204 + 8 * src, 4), a(208 + 8 * src, 4)
            BF = RING[n % 8]; n += 1
            def rd():
                if j == 0: I("ds_read_b128", AM, vAM, mods="offset:%d" % (src * 5120))
                for e in range(2):
                    tr(BF[2 * e:2 * e + 2], vKB0 if j < 2 else vKB2, IMG + src * 32 * IR + e * 16 * IR + (32 * j if (B or j < 2) else 32))
                if j == 0: I("ds_read_b128", AL, vAL, mods="offset:%d" % (src * 5120))
            def work():
                mfma(DM[j], AM, BF, 0 if src == 0 else DM[j])
                mfma(DL[j], AL, BF, 0 if src == 0 else DL[j])
            pipe.add(rd, work, rt=(0 if (OPT["j4"] and n == 4) else None))
    SLM = {0: 0, 1: 4, 2: 8} if B else {0: 0, 2: 4}
    SLL = {0: 9, 1: 10, 2: 11} if B else {0: 5, 2: 6}
    def pstore(j):
        for D, ad, sl in ((DM[j], vP1 if j < 2 else vP2, SLM[j]), (DL[j], vP3, SLL[j])):
            if sl: I("s_add_u32", sT1, sPME, sl * 4096)
            for i in range(4): I("v_and_or_b32", D[i], D[i], sMSK, T[0])
            I("buffer_store_dwordx4", D, ad, SWS, sT1 if sl else sPME, mods="offen sc1")
    fill = []
    kvpipe = None; KO = 0; pfill = []
    if OPT["j4"]:
        kvpipe = pipe; KO = 4 * len(FT); qlead = []
        t_ = 6
        for k_, j in enumerate(FT):
            t_ = max(t_, 4 * k_ + 6)
            pfill += spread(singles(cap(lambda: (pstore(j), fst("pubP") if j == 2 else None))), t_, t_ + 2 * OPT["psp"]); t_ += 2 * OPT["psp"]
    else:
        for k_, j in enumerate(FT[:-1]): fill += spread(tagged(singles(cap(lambda: pstore(j))), "P"), 4 * k_ + 5, 4 * k_ + 8)
        pipe.emit(fill)
        fst("kvmm")
        qlead = cap(lambda: (pstore(FT[-1]), stamp("pubP")))
        if not OPT["j1"]:
            P.put(qlead); qlead = []
            I("s_barrier")
        stamp("wqland")

    def gemm2(bfrag, offs, rebases, fill, nm, hooks={}, lead=(), n=0, nks=18, extra=None, pipe=None):
        pipe = pipe or Pipe(dist=OPT["qd"])
        pipe.dist = OPT["qd"]
        pipe.hooks = hooks
        for ks in range(nks):
            for T_ in range(5):
                ring = RING[n % 8]; n += 1
                def rd():
                    if T_ == 0 and ks in rebases: rebase(rebases[ks])
                    tile_read(ring, T_, offs(ks))
                def work():
                    for p in range(2):
                        mfma(ACK[p][T_], ring, bfrag(ks, p), 0 if ks == 0 else ACK[p][T_])
                pipe.add(rd, work, (lambda: fst("%s%d" % (nm, ks))) if T_ == 0 else None)
        if extra: extra(pipe)
        pipe.emit(fill, lead=lead)
    RS = v(128, 16)
    vCK = T[6]
    RS2 = v(200, 16); sRS2, sFS2 = s(22), s(23)
    def rs_loads(RS=RS, so=sRSB):
        for i in range(4):
            I("buffer_load_dwordx4", RS[4 * i:4 * i + 4], vL16, SWS, so, mods="offen offset:%d sc1" % (1024 * i))
    def rs_reduce(RS=RS, sFSL=sFSL):
        for st in (8, 4):
            for i in range(st): I("v_add_f32", RS[i], RS[i], RS[i + st])
        I("v_permlane32_swap_b32", RS[0], RS[2]); I("v_permlane32_swap_b32", RS[1], RS[3])
        I("v_add_f32", RS[0], RS[0], RS[2]); I("v_add_f32", RS[1], RS[1], RS[3])
        I("v_mov_b32", RS[2], RS[0]); I("v_mov_b32", RS[3], RS[1])
        I("v_permlane16_swap_b32", RS[0], RS[2]); I("v_permlane16_swap_b32", RS[1], RS[3])
        I("v_add_f32", RS[0], RS[0], RS[2]); I("v_add_f32", RS[1], RS[1], RS[3])
        I("v_cvt_pk_bf16_f32", RS[0], RS[0], RS[1])
        I("v_mov_b32", RS[1], sE)
        I("buffer_store_dwordx2", RS[0:2], vFS, SWS, sFSL, mods="offen sc1")
        fst("pubF")
    vRV, vRA = T[7], T[8]
    def rflag():
        I("v_mov_b32", vRV, sRV); I("s_lshl_b32", sT1, sG, 2); I("v_mov_b32", vRA, sT1)
        I("buffer_store_dword", vRV, vRA, SWS, sRF, mods="offen sc1")
    ra, rc = OPT["rs_at"], OPT["rs_chk"]
    if not B: ra -= OPT["dA"]; rc -= OPT["dA"]
    wo = [vm_only(wo_pair_dma(u)) for u in (0, 2, 4, 6)]
    wo.append(vm_only(singles(cap(lambda: I("s_add_u32", sO8, sO8, sQ8))) + tagged(dma5(vO8, SWO, sO8, sM8, WO6 + 2 * 9216), "WO8")))
    def ou():
        for u in range(1, 8):
            if OPT["gord"]:
                I("s_sub_u32", sL0, sG, u); I("s_lshr_b32", sL0, sL0, 31)
                I("s_add_u32", sL0, sL0, u - 1)
            else:
                I("s_add_u32", sL0, sG, u); I("s_and_b32", sL0, sL0, 7)
            I("s_mul_i32", sL0, sL0, 4608); I("s_add_u32", sOU[u], sL0, sOB)
    qsh2 = []
    if B:
        rf = [cap(lambda: wait_vm("POIS"))] + singles(cap(rflag))
        fill = spread(singles(cap(ou)), 14, 50) + at(OPT["rf_at"], rf)
        allw = sum(wo, []); nq = OPT["nq"]
        sp = spread(allw[:nq], OPT["w0"], 89)
        assert all(t_ >= 55 for t_, g in sp[15:]) or nq > 22
        if nq > 22: sp = spread(allw[:15], OPT["w0"], 55) + spread(allw[15:nq], 56, 89)
        fill += sp
        fill.sort(key=lambda t: t[0])
        wrest = allw[nq:]
        wo = [[], []]
    else:
        def b_addr():
            I("s_min_u32", sL1, sWV, 2); I("s_mul_i32", sL2, sRT, 3); I("s_add_u32", sL1, sL1, sL2)
            I("s_mul_i32", sL2, sG, PGRP); I("s_lshl_b32", sRS2, sL1, 12); I("s_add_u32", sRS2, sRS2, sL2)
            I("s_lshl_b32", sL2, sG, 14); I("s_lshl_b32", sL1, sL1, 8); I("s_add_u32", sL1, sL1, sL2); I("s_add_u32", sFS2, sL1, WS_F)
            I("s_add_u32", sL1, sWV, 1); I("s_lshr_b32", sL1, sL1, 2); I("s_lshl_b32", sL1, sL1, 30); I("s_add_u32", sFS2, sFS2, sL1)
        fill = sorted(spread(wo.pop(0), 3, 26) + spread(singles(cap(ou)) + singles(cap(b_addr)), 1, 33), key=lambda t: t[0])
        l2 = lambda: rs_loads(RS2, sRS2)
        chk = [cap(lambda: (fst("rsb"), wait_vm("RS"), fst("rsw")))] + check_tag("rs" + path, vCK, [RS[i] for i in range(16)], rs_loads) + singles(cap(rs_reduce)) + singles(cap(rflag))
        chk2 = [cap(lambda: wait_vm("RB"))] + check_tag("rb" + path, T[5], [RS2[i] for i in range(16)], l2) + singles(cap(lambda: rs_reduce(RS2, sFS2)))
        f2 = spread(tagged(singles(cap(rs_loads)), "RS"), ra, ra + 4) + spread(tagged(singles(cap(l2)), "RB"), OPT["rb_at"], OPT["rb_at"] + 5)
        if OPT["bfirst"]:
            rb = OPT["rb_chk"]
            nchk = 28
            f2 += spread(chk[:nchk], rc, rb) + spread(chk2, rb, rb + OPT["rb_len"]) + spread(chk[nchk:], rb + OPT["rb_len"], rb + OPT["rb_len"] + 10)
            f2 += spread(wo.pop(0), OPT["rb_at"] + 6, rb + 4)
        else:
            f2 += spread(wo.pop(0), ra + 4, ra + 20)
            f2 += spread(chk, rc, rc + OPT["rs_len"]) + spread(chk2, max(OPT["rb_chk"], rc + OPT["rs_len"]), 110)
        fill += sorted(f2, key=lambda t: t[0])
    if OPT["j4"]:
        tmin = pfill[-1][0] + 1
        fill = pfill + [(max(t_ + KO, tmin), g) for t_, g in fill]
    gemm2(XF, lambda ks: ((ks // 2) % 6) * 9216 + (ks & 1) * 144, {12: WQ6 - WQ0}, fill, "q",
          dict([(53 + KO, cap(lambda: (wait_vm("WQ8"), I("s_barrier"))))] + ([(1 + KO, cap(lambda: I("s_barrier")))] if OPT["j1"] else [])), lead=qlead, n=4 * len(FT), pipe=kvpipe)
    stamp("qgemm")

    NAG = 3 if B else 2
    AG = v(104, 4 * NAG); RF = v(116)
    def ag_loads():
        for i in range(NAG):
            I("buffer_load_dwordx4", AG[4 * i:4 * i + 4], vL16 if (B or i == 0) else T[3], SWS, sAG, mods="offen offset:%d sc1" % (1024 * i))
    def ag_fold():
        I("v_xor_b32", vCK, sE, AG[1])
        for i in range(3, 4 * NAG, 2): I("v_bitop3_b32", vCK, vCK, sE, AG[i], mods="bitop3:0xf6")
    def rf_load(): I("buffer_load_dword", RF, T[4], SWS, sRF, mods="offen sc1")
    def qsh():
        if not B: I("v_min_u32", T[3], 47 * 16, vL16)
        I("v_and_b32", T[4], 7, vL); I("v_lshlrev_b32", T[4], 2, T[4])
        rebase(WO0 - WQ6)
        for t in range(5):
            I("v_accvgpr_write_b32", PSIF(t, NJ - 1)[2], 0); I("v_accvgpr_write_b32", PSIF(t, NJ - 1)[3], 0)
    fr = OPT["ag_frac"] if B else OPT["ag_fracA"]
    g = singles(cap(rf_load)) + singles(cap(lambda: fst("agi"))) + tagged(singles(cap(ag_loads)), "AG") + (pwm if OPT["pw"] == 2 else [])
    lo = (fr - 50) * 2
    wc = wo.pop(0)
    if OPT["pw"] == 3: wc = pwm + wc
    wd = sum(wo, [])
    def agw():
        I("ds_write2_b32", vAG1, AG[0], AG[2], mods="offset0:0 offset1:1")
        if B: I("ds_write2_b32", vAG1, AG[4], AG[6], mods="offset0:160 offset1:161")
        I("ds_write2_b32", vAG2, AG[4 * NAG - 4], AG[4 * NAG - 2], mods="offset0:0 offset1:1")
    agc = cap(lambda: (fst("agb"), wait_vm("AG"), fst("agw"))) + sum(check_or_retry("ag" + path, ag_fold, lambda: I("v_cmp_ne_u32", "vcc", 0, vCK), ag_loads), []) + cap(agw)
    agb = cap(lambda: (wait(lgkm=0), I("s_barrier"), stamp("gotkv")))
    olead = []
    if B:
        mids = [([], 0, 100), ([], 0, 100)]
        mids[1 if fr >= 50 else 0] = (g, (fr % 50) * 2, min(100, (fr % 50) * 2 + 12))
        if wrest[4:]:
            assert fr >= 50
            mids[0] = (wrest[4:], 5, 95)
        body = feature_map(path, "q", False, weave(singles(cap(qsh)), wrest[:4]) if wrest else singles(cap(qsh)), mids[0], mids[1], lambda p: [])
        if OPT["j2"]:
            ok = lambda i: isinstance(body[i], Ins) and body[i].kind == "valu" and isinstance(body[i - 1], Ins) and body[i - 1].kind == "valu"
            c1 = len(body) * OPT["agc"] // 100; c2 = len(body) * OPT["agb"] // 100
            while not ok(c1): c1 += 1
            while not ok(c2): c2 += 1
            P.put(body[:c1] + agc + body[c1:c2] + agb); olead = body[c2:]
        else:
            P.put(body + agc + agb)
    else:
        P.put(feature_map(path, "q", False, singles(cap(qsh)), (wc[:3], 0, 100), (wc[3:] + g, 0, 100), lambda p: []))
        emit_groups(wd)
        P.put(agc + agb)

    pool = list(range(104, 144, 4)) + list(range(176, 256, 4)) + [12, 16, 28, 32, 36, 40]
    OF = {}
    keys = [(0, p, X) for X in range(2) for p in range(2)] + [("L", k, p) for k in range(2) for p in range(2)] + [(u, p, X) for u in range(1, 8) for p in range(2) for X in range(2)]
    for k_, r_ in zip(keys, pool): OF[k_] = v(r_, 4)
    o = ACC
    pipe = Pipe(dist=OPT["od"])
    for t in (4, 0, 1, 2, 3):
        for j in range(NJ):
            def rd():
                tr(PSIF(t, j)[0:2], vPSA, 8 * t + 8 * j * 40)
                if j < NJ - 1: tr(PSIF(t, j)[2:4], vPSA, 8 * t + (8 * j + 4) * 40)
            def work():
                for p in range(2):
                    mfma(ACK[p][t], PSIF(t, j), PHI_[p][4 * j:4 * j + 4], 0 if j == 0 else ACK[p][t])
            pipe.add(rd, work)
    def ostore(key, flag=None):
        if flag is None: flag = ["", " sc1", " nt"][OPT["oflag"]]
        if key[0] == "L": I("buffer_store_dword", OF[key][0], vL4, SWS, sOU[0], mods="offen offset:%d%s" % (key[2] * 256, flag))
        else: I("buffer_store_dwordx4", OF[key], vL16, SWS, sOU[0], mods="offen offset:%d%s" % (key[1] * 2048 + key[2] * 1024, flag))
    def fin_den():
        for p in range(2): I("v_add_f32", o[p][18], sEPS[0], o[p][18])
        for p in range(2): I("v_rcp_f32", o[p][18], o[p][18])
        for p in range(2):
            for i in (16, 17): I("v_mul_f32", o[p][i], o[p][i], o[p][18])
        for p in range(2):
            I("v_cvt_pk_bf16_f32", OF[("L", 0, p)][0], o[p][16], o[p][17])
            ostore(("L", 0, p))
    def fin_tile(t, packed):
        for p in range(2):
            if packed:
                for i in (4 * t, 4 * t + 2): I("v_pk_mul_f32", o[p][i:i + 2], o[p][i:i + 2], o[p][18:20], mods="op_sel:[0,0] op_sel_hi:[1,0]")
            else:
                for i in range(4 * t, 4 * t + 4): I("v_mul_f32", o[p][i], o[p][i], o[p][18])
            for h in range(2):
                I("v_cvt_pk_bf16_f32", OF[(0, p, t // 2)][2 * (t & 1) + h], o[p][4 * t + 2 * h], o[p][4 * t + 2 * h + 1])
            if t & 1: ostore((0, p, t // 2))
    rfchk = check_or_retry("rf" + path, lambda: I("v_xor_b32", vCK, sRV, RF), lambda: I("v_cmp_lt_u32", "vcc", 15, vCK), rf_load)
    rfchk += [cap(lambda: I("v_cmp_ne_u32", s(50, 2), 0, vCK))]
    fill = at(0, rfchk)
    fill += spread(singles(cap(fin_den)), NJ + 2, 2 * NJ + 1)
    for t in range(3): fill += spread(singles(cap(lambda: fin_tile(t, False))), (2 + t) * NJ + 1 + (1 if B else 0), (3 + t) * NJ + 1)
    pipe.emit(fill, lead=olead)
    fst("omm")
    fin_tile(3, True)
    I("s_cmp_lg_u64", s(50, 2), 0)
    I("s_cbranch_scc1", "L_far" + path)
    P.label("L_near" + path)
    def far():
        P.label("L_far" + path)
        for key in keys[:4] + [("L", 0, 0), ("L", 0, 1)]: ostore(key, " sc1")
        wait(vm=0)
        I("buffer_store_dword", vRV, vRA, SWS, sRF, mods="offen offset:32 sc1")
        I("s_mov_b32", sCNT, 0)
        P.label("L_farp" + path)
        I("buffer_load_dword", vCK, T[4], SWS, sRF, mods="offen offset:32 sc1")
        wait(vm=0)
        I("v_xor_b32", vCK, sRV, vCK)
        I("v_cmp_lt_u32", "vcc", 15, vCK)
        I("s_add_u32", sCNT, sCNT, 1)
        I("s_cmp_gt_u32", sCNT, SPIN)
        I("s_cbranch_scc1", "L_near" + path)
        I("s_cbranch_vccnz", "L_farp" + path)
        I("s_branch", "L_near" + path)
    SLOW.append(cap(far))
    stamp("pubO")

    def oload(u):
        for X in (1, 0):
            for p in (1, 0):
                I("buffer_load_dwordx4", OF[(u, p, X)], vL16, SWS, sOU[u], mods="offen offset:%d sc1" % (p * 2048 + X * 1024))
        for p in range(2):
            I("buffer_load_dword", OF[("L", u // 4, p)][u % 4], vL4, SWS, sOU[u], mods="offen offset:%d sc1" % (p * 256))
    def bf(ks, p):
        if ks < 16: return OF[(ks // 2, p, ks & 1)]
        return OF[("L", ks - 16, p)]
    offs = lambda ks: ((ks // 2) % 6) * 9216 + (ks & 1) * 144
    vW1, vW2, vW3, vRD = vIW, vVW, vAM, vAL
    vST = [vP2, vPSA, vKB0, vKB2, vP1]
    def out_addr():
        I("s_add_u32", sT0, sMQ, OUTB)
        I("v_mul_u32_u24", T[0], 144, vN); I("v_add_u32", T[0], sT0, T[0])
        I("v_mul_u32_u24", T[1], 40, vGL); I("v_add_u32", vW1, T[0], T[1])
        I("v_lshrrev_b32", T[4], 1, vGL)
        I("v_lshlrev_b32", T[2], 5, T[4]); I("v_sub_u32", vW2, vW1, T[2])
        I("v_mul_u32_u24", T[3], 72, T[4]); I("v_add_u32", vW3, T[0], T[3])
        I("v_add_u32", vRD, sT0, vL16)
        I("s_movk_i32", sT1, 2304 - 144)
        for i in range(5):
            t = vM
            if i:
                I("v_add_u32", T[3], Q0[i] * 7282, vM); t = T[3]
            I("v_lshrrev_b32", T[0], 16, t)
            I("v_mad_u32_u24", vST[i], T[0], sT1, vL16)
    NPRE = OPT["npre"]
    wait_vm("WO8")
    I("s_barrier")
    stamp("ackO")
    I("s_mov_b32", sT2, 0)
    P.label("L_redo" + path)
    g = []
    for u in range(1, NPRE + 1): g += tagged(singles(cap(lambda: oload(u))), "O%d" % u)
    if OPT["j3"]:
        def preread():
            rebase(WO6 - WO0)
            for ks in range(18 - OPT["npf"], 18):
                for t in range(5): tile_read(a(100 + ((ks - (18 - OPT["npf"])) * 5 + t) * 4, 4), t, offs(ks))
            rebase(WO0 - WO6)
        emit_groups(weave(singles(cap(preread)), g))
        fill = []
    else:
        fill = spread(g, 0, 7)
    def ochk(u):
        regs = [OF[(u, 0, 1)][3], OF[(u, 1, 1)][3], OF[(u, 1, 0)][3]]
        return [cap(lambda: wait_vm("O%d" % u))] + check_sent("o%d%s" % (u, path), vCK, regs, lambda: oload(u))
    for u in range(0, 7):
        b0 = u * 10
        blk = spread(ochk(u + 1), b0 + 6, b0 + 6)
        if u and u + NPRE <= 7: blk += spread(tagged(singles(cap(lambda: oload(u + NPRE))), "O%d" % (u + NPRE)), b0, b0 + 10)
        fill += sorted(blk, key=lambda t: t[0])
    NPF = OPT["npf"] if OPT["j3"] else 0
    assert NPF in (0, 2, 4, 6)
    WF = lambda ks, t: a(100 + ((ks - (18 - NPF)) * 5 + t) * 4, 4)
    OUTR = [OF[(1 + t // 2, p, 0)][2 * (t & 1):2 * (t & 1) + 2] for p in range(2) for t in range(5)]
    OB = [OF[(1, 0, 1)], OF[(1, 1, 1)], OF[(2, 0, 1)], OF[(2, 1, 1)], OF[(3, 0, 1)]]
    fl = ["", " sc1", " nt", " sc0 sc1"][OPT["outflag"]]
    def ocvt(p):
        for t in range(5):
            r_ = OUTR[5 * p + t]
            for h in range(2): I("v_cvt_pk_bf16_f32", r_[h], ACK[p][t][2 * h], ACK[p][t][2 * h + 1])
            ad, off = (vW1, 8 * t) if t < 3 else ((vW2, 24) if t == 3 else (vW3, 32))
            I("ds_write_b64", ad, r_, mods="offset:%d" % (off + p * 2304))
    def ord_(i): I("ds_read_b128", OB[i], vRD, mods="offset:%d" % (16 * Q0[i]))
    def ost(i):
        if i == 0: I("s_mov_b32", "exec_hi", 0)
        I("buffer_store_dwordx4", OB[i], vST[i], SOUT, sOUTB, mods="offen offset:%d%s" % (16 * Q0[i], fl))
        if i == 0: I("s_mov_b32", "exec_hi", -1)
    def nanchk(regs, back):
        I("v_cmp_u_f32", "vcc", regs[0], regs[1])
        I("s_cbranch_vccnz", "L_again%s" % back + path)
        P.label("L_done%s" % back + path)
        def again():
            P.label("L_again%s" % back + path)
            I("s_add_u32", sT2, sT2, 1)
            I("s_cmp_gt_u32", sT2, 200)
            I("s_cbranch_scc1", "L_done%s" % back + path)
            wait(vm=0, lgkm=0)
            if NPF < 6: rebase(WO0 - WO6)
            I("s_nop", 7)
            I("s_branch", "L_redo" + path)
        SLOW.append(cap(again))
    if NPF:
        nb = (18 - NPF) * 5
        half = NPF * 5 // 2
        def extra(pipe):
            for p in range(2):
                ms = [(ks, t) for ks in range(18 - NPF, 18) for t in range(5)]
                for i in range(0, len(ms), 2):
                    pipe.add(lambda: None, lambda: [mfma(ACK[p][t], WF(ks, t), bf(ks, p), ACK[p][t]) for ks, t in ms[i:i + 2]])
        fill = [((nb + (t_ - nb) // 2 - 2) if t_ > nb else t_, g) for t_, g in fill]
        fill += spread(singles(cap(out_addr)), 42, 56)
        tail0 = [cap(lambda: nanchk((ACK[0][0][0], ACK[0][1][0]), "0"))] + singles(cap(lambda: ocvt(0))) + singles(cap(lambda: (ord_(0), ord_(1))))
        fill += spread(tail0, nb + half + 2, nb + half + 8)
        fill += [(nb + half + 11, cap(lambda: (wait(lgkm=0), ost(0)))), (min(89, nb + half + 13), cap(lambda: ost(1)))]
        fill.sort(key=lambda t: t[0])
        gemm2(bf, offs, {12: WO6 - WO0}, fill, "o", nks=18 - NPF, extra=extra)
        stamp("ogemm")
        nanchk((ACK[1][0][0], ACK[1][1][0]), "1")
        ocvt(1)
        for i in (2, 3, 4): ord_(i)
        for i in (2, 3, 4):
            wait(lgkm=4 - i); ost(i)
    else:
        fill += spread(singles(cap(out_addr)), 70, 88)
        gemm2(bf, offs, {12: WO6 - WO0}, fill, "o")
        stamp("ogemm")
        nanchk((ACK[0][0][0], ACK[1][0][0]), "1")
        ocvt(0); ocvt(1)
        for i in range(5): ord_(i)
        for i in range(5):
            wait(lgkm=4 - i); ost(i)
    if B:
        I("s_or_b32", sT0, sSL, sG)
        I("s_cmp_lg_u32", sT0, 0)
        I("s_cbranch_scc1", "L_noep" + path)
        I("v_mov_b32", T[0], WS_E); I("v_mov_b32", T[1], sE)
        I("buffer_store_dword", T[1], T[0], SWS, 0, mods="offen")
        P.label("L_noep" + path)
    if OPT["stamps"]:
        stamp("stiss")
        if B: P.label("L_fin")
        OPT["mute"] = 0
        wait(vm=0)
        stamp("end")
        I("s_memrealtime", s(100, 2))
        wait(lgkm=0)
        if OPT["fine"]:
            for k, nm in enumerate(OPT["fine"].split(",")):
                stamp_names.append(nm); STAMPS[k] = s(4 + 2 * k)
        n = len(stamp_names)
        for k in range(n):
            if OPT["lite"] and k != OPT["amp"] and k != n - 1: continue
            assert OPT["lite"] or n <= 17
            I("s_sub_u32", STAMPS[k], STAMPS[k], s(96 if (OPT["lite"] == 2 or OPT["rt"]) else 98))
            I("v_mov_b32", v(64 + k), STAMPS[k])
        I("v_mov_b32", v(64 + 28), sT2); I("v_mov_b32", v(64 + 29), s(3))
        I("v_mov_b32", v(64 + 30), s(96)); I("v_mov_b32", v(64 + 31), s(100))
        I("s_lshl_b32", sT0, s(2), 2); I("s_add_u32", sT0, sT0, sWV); I("s_lshl_b32", sT0, sT0, 7); I("s_add_u32", sT0, sT0, WS_ST)
        I("v_mov_b32", T[0], 0)
        I("s_mov_b64", "exec", 1)
        for q in range(8):
            I("buffer_store_dwordx4", v(64 + 4 * q, 4), T[0], SWS, sT0, mods="offen offset:%d" % (16 * q))
        if OPT["amp"] >= 0 and OPT["ampsel"] in (0, 2 if B else 1):
            I("s_lshl_b32", sT2, STAMPS[OPT["amp"]], 3)
            I("s_add_u32", sT2, sT2, STAMPS[n - 1])
            P.label("L_amp" + path)
            I("s_memrealtime" if OPT["lite"] == 2 else "s_memtime", s(100, 2)); wait(lgkm=0)
            I("s_sub_u32", sT1, s(100), s(96 if OPT["lite"] == 2 else 98))
            I("s_cmp_lt_u32", sT1, sT2)
            I("s_cbranch_scc1", "L_amp" + path)

HEADER = open("cdna_kernels/%s.s.ref" % NAME).read().split("; Override launch")[0]

def wrap(body):
    txt = HEADER + "; @launch grid=(256,1,1) block=(256,1,1) lds=%d\n" % LDS_BYTES
    txt += "; stamps: %s\n" % ",".join(stamp_names) if stamp_names else ""
    txt += '.amdgcn_target "amdgcn-amd-amdhsa--gfx950"\n.text\n.globl %s_kernel\n.p2align 12\n.type %s_kernel,@function\n' % (NAME, NAME)
    txt += ".set CODE_SPAN, (L_last - %s_kernel - 128) & 0xffffff80\n" % NAME
    txt += ".set HEAD_LINES, ((L_tailB - %s_kernel) >> 7) + 8\n.set A_SHIFT, (L_tailA - L_tailB - 2048) & 0xffffff80\n" % NAME
    txt += "%s_kernel:\n%s\n" % (NAME, body)
    txt += """.section .rodata,"a"
.p2align 6
.amdhsa_kernel %s_kernel
  .amdhsa_next_free_vgpr 512
  .amdhsa_next_free_sgpr 102
  .amdhsa_accum_offset 256
  .amdhsa_group_segment_fixed_size 0
  .amdhsa_kernarg_size 80
  .amdhsa_user_sgpr_count 2
  .amdhsa_user_sgpr_kernarg_segment_ptr 1
  .amdhsa_system_sgpr_workgroup_id_x 1
.end_amdhsa_kernel
""" % NAME
    return txt

def main(out):
    build()
    txt = P.finalize2(wrap)
    open(out, "w").write(txt)
    print("wrote", out, "hazard nops:", P.nops, "align fixes:", P.fixes, "bytes:", P.bytes, "touch points:", P.points)

if __name__ == "__main__":
    out = sys.argv[1]
    for kv in sys.argv[2:]:
        k, val = kv.split("=")
        assert k in OPT, k
        OPT[k] = val if k in ("stop", "fine") else int(val)
    main(out)
```

```python
import sys, struct
from asmdsl import *

NAME = "concat_heads__linear_attn_block__linear_kernel_hedgehog__prompt"
OPT = dict(stamps=0, nphase=6, amp=-1, ampsel=0, lite=0, outflag=2, oflag=0, wb=0, rs_at=40, rs_chk=62, rs_len=27, ag_frac=56, ag_fracA=90, dA=4, npre=3, t0=16, t1=36, pw=0, pfo=0, pfq=0, wdn=8, pfx=0, perm=0, gord=1, xo=2, zv=1, s1m=0, ex=0, snake=0, pois0=0, j1=1, j2=0, j3=1, j4=0, psp=3, w0=3, qd=4, od=4, nq=26, rec=0, forcefb=0, pf2=0, nowa=0, apo=150, apq=0, apx=0, ars=1, rb_at=62, rb_chk=84, rf_at=48, bfirst=0, rb_len=16, npf=6, agc=86, agb=93, xsh=0, swap07=1,
           stop="", p1st=0, touch=1, fine="", itouch=1, rt=0)

def f2u(x): return struct.unpack("<I", struct.pack("<f", x))[0]
LOG2E = 1.4426950408889634

XSLOT = 16384
WSL = 49152; WSLOT = 18432
WQ0 = 104448
WQ6 = 76800
PHI = 104448
ZERO = 159744
IMG = 0
IR = 80
VF = 40960
KVI = 61440
WO0 = 0
WO6 = 104448
OUTB = 76800
LDS_BYTES = 163840
PGRP = 48 * 4096
WS_F = 0x300000; WS_E = 0x380000; WS_R = 0x390000; WS_O = 0x400000; WS_ST = 0x900000; WS_BYTES = 0xA00000
OOB = 0x7ffffff0
SPIN = 30000
Q0 = [0, 32, 96, 160, 224]
WSTEP = 64 * 3456

SX, SW, SWO, SWS, SOUT, SPHI = s(24, 4), s(28, 4), s(32, 4), s(36, 4), s(40, 4), s(48, 4)
sL0, sL1, sL2, sL3 = s(44), s(45), s(46), s(47)
sA, sRT, sG, sWV = s(52), s(53), s(54), s(55)
sOQ, sOX, sOW = s(56), s(57), s(58)
s1152 = s(59)
sMX, sMW = s(60), s(61)
sT0, sT1, sT2, sT3 = s(62), s(63), s(64), s(65)
sSL = s(66)
sROT = s(67)
sPME, sRSB, sRF, sOB = s(68), s(69), s(70), s(71)
sCNT = s(72)
sFSL = s(73)
sC = s(74, 2)
sEPS = s(76, 2)
sODD = s(78, 2)
sMQ = s(80)
sOO = s(81)
sPC = s(82, 2)
sTAG, sMSK = s(82), s(83)
sOU = [s(84 + u) for u in range(8)]
sAG = s(92)
sO8 = s(93)
sOUTB = s(94)
sE = s(95)
sM8 = s(20); sQ8 = s(21); sPM2 = s(22); sPM3 = s(23)
sG144 = s(48); sRV = s(49); sQE = s(50); sOE = s(51)
STAMPS = [s(3 + i % 17) for i in range(28)]

vL = v(0)
T = [v(i) for i in range(1, 10)]
vOX = [v(10 + i) for i in range(4)]
vOW = [v(14 + i) for i in range(5)]
vXR = [v(19), v(20)]
vTR = [[v(21 + 2 * p + e) for e in range(2)] for p in range(5)]
vOQ = [v(31 + i) for i in range(5)]
vOO = [v(36 + i) for i in range(5)]
vO8 = [v(41 + i) for i in range(5)]
vL16 = v(46)
vGL, vN = v(47), v(48)
vM, vPSA, vKB0, vKB2, vFS, vL4, vIW, vVW, vAM, vAL, vP1 = [v(49 + i) for i in range(11)]
vP2, vP3, vAG1, vAG2 = v(60), v(61), v(62), v(63)
ACK = [[v(64 + 20 * p + 4 * t, 4) for t in range(5)] for p in range(2)]
ACV = [[v(104 + 20 * p + 4 * t, 4) for t in range(5)] for p in range(2)]
RING = [v(144 + 4 * i, 4) for i in range(8)]
KB = [v(176 + 12 * p, 12) for p in range(2)]
PH = [v(200 + 20 * p, 20) for p in range(2)]
TMP = v(144, 24)
PW = v(240, 3); M1 = v(244, 4); PA = v(248, 3); vR, vC = v(251), v(252)
vPH = [v(243), v(253), v(254)]
def XF(ks, p): return a(ks * 8 + p * 4, 4)
def PHIF(t, j): return a(144 + (t * 3 + j) * 4, 4)
def PSIF(t, j): return a((t * 5 + j) * 4, 4)

P = Prog()
I = P.I
cap = P.capture
stamp_names = []
def fst(name):
    names = OPT["fine"].split(",")
    if name in names:
        k = names.index(name)
        I("s_memrealtime" if OPT["rt"] else "s_memtime", s(4 + 2 * k, 2), c="fine " + name)
def stamp(name):
    if OPT["fine"]:
        fst(name)
    elif OPT["stamps"] and not OPT.get("mute"):
        k = len(stamp_names); stamp_names.append(name)
        real = True
        if OPT["lite"]:
            real = (k == OPT["amp"] or name == "end")
            if real: STAMPS[k] = s(5) if name == "end" else (s(4) if k else s(3))
        if real:
            I("s_memrealtime" if OPT["lite"] == 2 else "s_memtime", s(100, 2), c="stamp " + name)
            I("s_waitcnt", "lgkmcnt(0)")
            I("s_mov_b32", STAMPS[k], s(100))
    if OPT["stop"] == name:
        I("s_branch", "L_fin"); OPT["mute"] = 1

def wait(vm=None, lgkm=None):
    t = []
    if vm is not None: t.append("vmcnt(%d)" % vm)
    if lgkm is not None: t.append("lgkmcnt(%d)" % lgkm)
    I("s_waitcnt", " ".join(t))
def wait_vm(tag, lgkm=None): P.items.append(VmWait(tag, lgkm))
def tagged(groups, tag):
    for g in groups:
        for x in g:
            if isinstance(x, Ins) and x.kind == "vmem": x.tag = tag
    return groups
def mark(items, **kw):
    for x in items:
        if isinstance(x, Ins):
            for k, val in kw.items(): setattr(x, k, val)
    return items

def srd(dst, lo, hi, size):
    I("s_mov_b32", dst[0], lo); I("s_mov_b32", dst[1], hi)
    I("s_mov_b32", dst[2], size); I("s_mov_b32", dst[3], 0x20000)
def singles(items): return [[x] for x in items]
def emit_groups(groups):
    for g in groups: P.put(g)

def dma5(voffs, srdreg, soff, m0base, m0imm):
    def first():
        I("s_add_u32", "m0", m0base, m0imm)
        I("s_mov_b32", "exec_hi", 0)
        I("buffer_load_dwordx4", voffs[0], srdreg, soff, mods="offen lds")
        I("s_mov_b32", "exec_hi", -1)
    g = [cap(first)]
    for i in range(1, 5):
        g += singles(cap(lambda: I("buffer_load_dwordx4", voffs[i], srdreg, soff, mods="offen offset:%d lds" % (16 * Q0[i]))))
    return g

PERMS = {
    1: (3, [[7, 3, 6, 1, 8, 4, 2, 0, 5], [1, 3, 7, 2, 4, 8, 6, 0, 5], [3, 8, 1, 6, 2, 7, 0, 4, 5]]),
    2: (4, [[4, 0, 1, 5, 6, 2, 8, 7, 3], [4, 1, 5, 2, 7, 0, 6, 8, 3], [1, 4, 6, 7, 0, 2, 3, 5, 8], [4, 6, 1, 7, 3, 0, 5, 2, 8]]),
    3: (3, [[0, 1, 2, 3, 4, 5, 6, 7, 8], [1, 2, 0, 4, 5, 3, 7, 8, 6], [2, 0, 1, 5, 3, 4, 8, 6, 7]]),
    4: (8, [[3, 7, 5, 0, 8, 1, 4, 2, 6], [3, 5, 0, 4, 7, 6, 1, 8, 2], [5, 7, 4, 2, 0, 8, 3, 1, 6], [5, 3, 0, 8, 7, 2, 6, 1, 4], [3, 0, 4, 5, 8, 7, 6, 2, 1], [3, 5, 7, 0, 1, 2, 4, 8, 6], [7, 5, 2, 0, 4, 8, 6, 1, 3], [3, 4, 7, 0, 2, 1, 6, 8, 5]]),
    5: (3, [[0, 1, 2, 3, 4, 5, 6, 7, 8], [3, 4, 5, 6, 7, 8, 0, 1, 2], [6, 7, 8, 0, 1, 2, 3, 4, 5]]),
}
SBO = s(88, 4)
SBQ = s(12, 4)
SBX = s(76, 4)
sPM = s(22, 2)
sPQ = s(16, 2)
sXB0, sWB0, sXSH = s(84 + 1), s(84 + 2), s(84 + 3)
def stage_of(dst, src):
    I("s_and_b32", dst, src, 15)
    if OPT["xsh"]:
        I("s_add_u32", dst, dst, sXSH)
def stage_fix(dst):
    I("s_cmp_ge_u32", dst, 9)
    I("s_cselect_b32", sT1, 9, 0)
def perm_next():
    g = singles(cap(lambda: stage_of(sT0, sPM[0])))
    if OPT["xsh"]: g += [cap(lambda: stage_fix(sT0))] + singles(cap(lambda: I("s_sub_u32", sT0, sT0, sT1)))
    def f():
        I("s_lshr_b64", sPM, sPM, 4)
        I("s_lshl_b32", sOX, sT0, 7); I("s_add_u32", sOX, sOX, sXB0)
        I("s_mul_i32", sOW, sT0, WSTEP); I("s_add_u32", sOW, sOW, sWB0)
    return g + singles(cap(f))
def permq_next():
    g = singles(cap(lambda: stage_of(sT0, sPQ[0])))
    if OPT["xsh"]: g += [cap(lambda: stage_fix(sT0))] + singles(cap(lambda: I("s_sub_u32", sT0, sT0, sT1)))
    def f():
        I("s_lshr_b64", sPQ, sPQ, 8)
        I("s_mul_i32", sOQ, sT0, WSTEP); I("s_add_u32", sOQ, sOQ, sQE)
    return g + singles(cap(f))
def wraps_after(j):
    rots = {1: [0], 2: [0, 4], 3: [0, 3, 6], 4: [0, 2, 4, 6], 5: [0, 2, 5, 7], 8: list(range(8)), 6: list(range(9)), 7: list(range(9))}[OPT["nphase"]]
    return any(r + j == 8 for r in rots) and j < 8
def x_dma(j):
    g = singles(cap(lambda: I("s_add_u32", "m0", sMX, (j % 3) * XSLOT)))
    for i in range(4):
        g += singles(cap(lambda: I("buffer_load_dwordx4", vOX[i], SX, sOX, mods="offen offset:%d lds" % (1024 * i))))
    return tagged(g, "S%d" % j)
def w_dma(j):
    g = tagged(dma5(vOW, SW, sOW, sMW, (j % 3) * WSLOT), "S%d" % j)
    if j < 8 and OPT["perm"]:
        g += perm_next()
    elif j < 8:
        g += singles(cap(lambda: (I("s_add_u32", sOX, sOX, 128), I("s_add_u32", sOW, sOW, WSTEP))))
        if wraps_after(j):
            def wr():
                I("s_cmp_eq_u32", sROT, 8 - j)
                I("s_cselect_b32", sT0, 1152, 0); I("s_cselect_b32", sT1, 9 * WSTEP, 0)
            g.append(cap(wr))
            g += singles(cap(lambda: (I("s_sub_u32", sOX, sOX, sT0), I("s_sub_u32", sOW, sOW, sT1))))
    return g
def stage_dma(j): return x_dma(j) + w_dma(j)

def advance(reg, step, end, span):
    def a1():
        I("s_add_u32", reg, reg, step)
        I("s_cmp_ge_u32", reg, end)
        I("s_cselect_b32", sT0, span, 0)
    return [cap(a1)] + singles(cap(lambda: I("s_sub_u32", reg, reg, sT0)))
def wq_pair_dma(j):
    pos = (WQ0 + j * 9216) if j < 6 else (WQ6 + (j - 6) * 9216)
    if j == 8:
        return singles(cap(lambda: I("s_add_u32", sOQ, sOQ, sQ8))) + tagged(dma5(vOQ, SW, sOQ, sM8, pos), "WQ8")
    g = tagged(dma5(vOQ, SW, sOQ, sMQ, pos), "WQ%d" % j)
    g += permq_next() if OPT["perm"] else advance(sOQ, 2 * WSTEP, sQE, 9 * WSTEP)
    if j == 0 and OPT["perm"]: g = permq_next() + g
    return g
def wo_pair_dma(u):
    pos = (WO0 + u * 9216) if u < 6 else (WO6 + (u - 6) * 9216)
    g = tagged(dma5(vOO, SWO, sOO, sMQ, pos), "WO%d" % u)
    if OPT["nowa"] & 1: return [cap(lambda: I("s_nop", 0)) for _ in range(5)]
    if u < 6 and OPT["gord"]:
        def nx():
            I("s_add_u32", sT0, sOE, u + 1)
            I("s_cmp_ge_u32", sT0, sG)
            I("s_addc_u32", sT0, sT0, 0)
        g += [cap(nx)] + singles(cap(lambda: (I("s_mul_i32", sT0, sT0, 82944), I("s_add_u32", sOO, sT0, sO8))))
    elif u < 6: g += advance(sOO, 2 * 82944, sOE, 8 * 82944)
    return g
def only_waves01(groups, tag):
    def f():
        I("s_cmp_ge_u32", sWV, 2)
        I("s_cbranch_scc1", "L_skip_" + tag)
        for g in groups: P.put(mark(g, cond=True))
        P.label("L_skip_" + tag)
    return [cap(f)]

def tr(dst, addr, off):
    assert 0 <= off < 65536, off
    I("ds_read_b64_tr_b16", dst, addr, mods="offset:%d" % off)
def mfma(d, x, y, c): I("v_mfma_f32_16x16x32_bf16", d, x, y, c)
def tile_read(dstreg, T_, base_off):
    if T_ < 3: pat, o = 0, 8 * T_
    elif T_ == 3: pat, o = 1, 0
    elif T_ == 4: pat, o = 2, 0
    elif T_ < 9: pat, o = 3, 144 + 8 * [0, 5, 9, 14][T_ - 5]
    else: pat, o = 4, 144
    for e in range(2):
        tr(dstreg[2 * e:2 * e + 2], vTR[pat][e], base_off + o)

class Pipe:
    def __init__(self, dist=4, grp=2):
        self.units = []; self.dist = dist; self.grp = grp; self.hooks = {}
    def add(self, rd, work, pre=None, rt=None):
        k = len(self.units)
        wk = cap(work)
        if OPT["snake"] and k & 1 and self.grp == 2: wk = wk[::-1]
        self.units.append((cap(rd), wk, cap(pre) if pre else None, k - self.dist if rt is None else rt))
    def emit(self, fill=(), bulk=(), lead=()):
        fill = list(fill); bulk = list(bulk)
        U = self.units; n = len(U)
        seq = []
        state = dict(done=0)
        def put(items, owner=-1):
            for x in items:
                if isinstance(x, Ins) and x.kind == "ds": seq.append(owner)
                if isinstance(x, Ins) and x.op == "s_waitcnt" and ("lgkmcnt(0)" in x.args[0] or getattr(x, "lgkm", None) == 0): state["done"] = len(seq)
            P.put(items)
        def need_wait(k):
            last = max([i for i, o in enumerate(seq) if o == k] + [-1])
            return last >= state["done"]
        byt = {}
        for k, u in enumerate(U): byt.setdefault(max(u[3], -1), []).append(k)
        for k in byt.get(-1, []): put(U[k][0], k)
        put(list(lead))
        while bulk and bulk[0][0] < 0: put(bulk.pop(0)[1])
        def take(k):
            if fill and fill[0][0] <= k: put(fill.pop(0)[1]); return True
            if bulk and bulk[0][0] <= k + 6: put(bulk.pop(0)[1]); return True
            return False
        for k in range(n):
            if k in self.hooks: put(self.hooks[k])
            if U[k][2]: put(U[k][2])
            if need_wait(k):
                want = [q for q in range(k, min(n, k + self.grp)) if U[q][3] < k - 1 or q == k]
                last = max(i for i, o in enumerate(seq) if o in want)
                later = len(seq) - 1 - last
                assert later <= 15, later
                wait(lgkm=later); state["done"] = last + 1
            nxt = [(x, q) for q in byt.get(k, []) for x in U[q][0]]
            half = (len(nxt) + 1) // 2
            w = U[k][1]
            P.put([w[0]])
            for x, q in nxt[:half]: put([x], q)
            for _ in range(max(0, 2 - half)): take(k)
            P.put(w[1:])
            for x, q in nxt[half:]: put([x], q)
            rest = len(nxt) - half + (1 if (k + 1 < n and need_wait(k + 1)) else 0) + (2 if k + 1 in self.hooks else 0)
            for _ in range(max(0, 2 - rest)): take(k)
            while fill and fill[0][0] <= k - 3: put(fill.pop(0)[1])
            while bulk and bulk[0][0] <= k: put(bulk.pop(0)[1])
        for _, g in fill + bulk: put(g)

def vm_only(groups):
    if groups[0][0].op == "s_nop": return groups
    out = []
    for g in groups:
        if any(x.kind == "vmem" for x in g) or not out: out.append(list(g))
        else: out[-1] += g
    return out
def weave(a_, b_):
    out = []; na, nb = len(a_), len(b_); i = j = 0
    while i < na or j < nb:
        if j >= nb or (i < na and i * nb <= j * na): out.append(a_[i]); i += 1
        else: out.append(b_[j]); j += 1
    return out
def at(unit, groups): return [(unit + i * 2 // 3, g) for i, g in enumerate(groups)]
def spread(groups, first, last):
    n = len(groups)
    return [(first + (last - first) * i // max(1, n), g) for i, g in enumerate(groups)]
def merge(main, extra, start=0, step=2):
    out = []; extra = list(extra)
    for i, x in enumerate(main):
        out.append(x)
        if extra and i >= start and (i - start) % step == step - 1: out += extra.pop(0)
    for g in extra: out += g
    return out

def sm_head(src18, tmp, both=None):
    if both is None: both = not OPT["rec"]
    mx, mn = tmp[18], tmp[19]
    if both:
        I("v_max3_f32", mx, src18[0], src18[1], src18[2]); I("v_min3_f32", mn, src18[0], src18[1], src18[2])
        for i in range(3, 17, 2):
            I("v_max3_f32", mx, mx, src18[i], src18[i + 1]); I("v_min3_f32", mn, mn, src18[i], src18[i + 1])
        I("v_max_f32", mx, mx, src18[17]); I("v_min_f32", mn, mn, src18[17])
        I("v_mul_f32", tmp[20], sC[0], mx); I("v_mul_f32", tmp[21], sC[0], mn)
    else:
        I("v_max3_f32", mx, src18[0], src18[1], src18[2])
        for i in range(3, 17, 2): I("v_max3_f32", mx, mx, src18[i], src18[i + 1])
        I("v_max_f32", mx, mx, src18[17])
        I("v_mul_f32", tmp[20], sC[0], mx)
def sm_mid(src18, tmp, both):
    ab = tmp[20:22]
    for i in range(0, 18, 2):
        if both: I("v_pk_fma_f32", tmp[i:i + 2], src18[i:i + 2], sC, ab, mods="op_sel:[0,0,1] op_sel_hi:[1,1,1] neg_lo:[1,0,0] neg_hi:[1,0,0]")
        I("v_pk_fma_f32", src18[i:i + 2], src18[i:i + 2], sC, ab, mods="op_sel:[0,0,0] op_sel_hi:[1,1,0] neg_lo:[0,0,1] neg_hi:[0,0,1]")
    sp, sn = tmp[18:20], tmp[20:22]
    for i in range(0, 18, 2):
        if both:
            for h in range(2):
                I("v_exp_f32", src18[i + h], src18[i + h]); I("v_exp_f32", tmp[i + h], tmp[i + h])
        else:
            for h in range(2): I("v_exp_f32", src18[i + h], src18[i + h])
            for h in range(2): I("v_rcp_f32", tmp[i + h], src18[i + h])
        if i == 4:
            I("v_pk_add_f32", sp, src18[0:2], src18[2:4]); I("v_pk_add_f32", sn, tmp[0:2], tmp[2:4])
        elif i > 4:
            I("v_pk_add_f32", sp, sp, src18[i - 2:i]); I("v_pk_add_f32", sn, sn, tmp[i - 2:i])
    I("v_pk_add_f32", sp, sp, src18[16:18]); I("v_pk_add_f32", sn, sn, tmp[16:18])
    rr = tmp[22:24]
    I("v_add_f32", rr[0], sp[0], sp[1]); I("v_add_f32", rr[1], sn[0], sn[1])
def sm_tail(src18, out18, tmp, p=0, tag=""):
    sm_mid(src18, tmp, not OPT["rec"])
    rr = tmp[22:24]
    if OPT["rec"]:
        lab = "%s%d" % (tag, p)
        I("v_cmp_ngt_f32", "vcc", f2u(2.0 ** 60) if not OPT["forcefb"] else f2u(64.0), rr[1])
        I("s_cbranch_vccnz", "L_smx" + lab)
        P.label("L_smb" + lab)
        def fb():
            P.label("L_smx" + lab)
            I("s_nop", 1)
            for j in range(3):
                for t in range(5):
                    mfma(ACK[p][t], PHIF(t, j), KB[p][4 * j:4 * j + 4], 0 if j == 0 else ACK[p][t])
            sm_head(src18, tmp, True); sm_mid(src18, tmp, True)
            I("s_branch", "L_smb" + lab)
        RARE.append(cap(fb))
    I("v_rcp_f32", rr[0], rr[0]); I("v_rcp_f32", rr[1], rr[1])
    def el(d): return (src18[2 * d:2 * d + 2], "op_sel:[0,0] op_sel_hi:[1,0]") if d < 9 else (tmp[2 * (d - 9):2 * (d - 9) + 2], "op_sel:[0,1] op_sel_hi:[1,1]")
    for d in range(0, 18, 2):
        for h in range(2): I("v_pk_mul_f32", el(d + h)[0], el(d + h)[0], rr, mods=el(d + h)[1])
        for h in range(2): I("v_cvt_pk_bf16_f32", out18[d + h], el(d + h)[0][0], el(d + h)[0][1])

SLOW = []
RARE = []
ACC = [v(64 + 20 * p, 20) for p in range(2)]
def cv(p):
    I("v_cndmask_b32", ACC[p][16], ACC[p][16], ACC[p][18], sODD)
    I("v_cndmask_b32", ACC[p][17], ACC[p][17], ACC[p][19], sODD)
    for i in range(9): I("v_cvt_pk_bf16_f32", KB[p][i], ACC[p][2 * i], ACC[p][2 * i + 1])

def chase(body, groups):
    out = []; groups = list(groups)
    lastdef = {}
    for i, x in enumerate(body):
        if isinstance(x, Ins):
            for r in x.defs: lastdef[r] = i
    pos = {}
    for g in groups:
        p_ = max([lastdef.get(r, -1) for x in g for r in x.uses] + [-1])
        pos.setdefault(p_, []).append(g)
    for g in pos.get(-1, []): out += g
    for i, x in enumerate(body):
        out.append(x)
        for g in pos.get(i, []): out += g
    return out

def evenly(lst, groups, lo=0, hi=100):
    out = []; groups = list(groups); n = len(lst); m = len(groups)
    pos = [n * lo // 100 + (n * (hi - lo) // 100) * i // max(1, m) for i in range(m)]
    for i, x in enumerate(lst):
        out.append(x)
        if i + 1 < n and (isinstance(lst[i + 1], Label) or lst[i + 1].op.startswith("s_cbranch")): continue
        while groups and pos[0] <= i:
            out += groups.pop(0); pos.pop(0)
    for g in groups: out += g
    return out

def feature_map(path, tag, cv_done, shadow, mid0, mid1, after_p):
    if path == "B":
        def mm(p):
            for j in range(3):
                for t in range(5):
                    mfma(ACK[p][t], PHIF(t, j), KB[p][4 * j:4 * j + 4], 0 if j == 0 else ACK[p][t])
        body = [] if cv_done else cap(lambda: cv(0))
        sh = ([] if cv_done else singles(cap(lambda: cv(1)))) + list(shadow)
        head0 = singles(cap(lambda: sm_head(ACC[0][0:18], TMP)))
        ms = cap(lambda: (mm(0), mm(1)))
        for i, x in enumerate(ms):
            body.append(x)
            if i == (24 if OPT["rec"] else 19): sh = head0 + sh
            k = 0
            while sh and k < 2:
                g = sh.pop(0); body += g; k += len(g)
        for g in sh: body += g
        body += cap(lambda: fst(tag + "mm"))
        body += evenly(cap(lambda: sm_tail(ACC[0][0:18], PH[0][0:18], TMP, 0, tag)), *mid0)
        body += cap(lambda: fst(tag + "t0"))
        t1 = cap(lambda: (sm_head(ACC[1][0:18], TMP), sm_tail(ACC[1][0:18], PH[1][0:18], TMP, 1, tag)))
        t1 = evenly(t1, after_p(0), 2, 66)
        t1 = evenly(t1, *mid1)
        body += chase(t1, after_p(1))
    else:
        def pa(p):
            x = ACC[p]
            if not cv_done:
                I("v_cndmask_b32", x[16], x[16], x[18], sODD); I("v_cndmask_b32", x[17], x[17], x[19], sODD)
            for i in range(0, 18, 2): I("v_pk_mul_f32", TMP[i:i + 2], x[i:i + 2], sC)
            for d in range(9):
                for i in (2 * d, 2 * d + 1):
                    I("v_exp_f32", TMP[i], TMP[i], mods="clamp")
                    I("v_max_f32", x[i], 0, x[i])
                I("v_pk_add_f32", x[2 * d:2 * d + 2], x[2 * d:2 * d + 2], sEPS)
                I("v_pk_add_f32", x[2 * d:2 * d + 2], x[2 * d:2 * d + 2], TMP[2 * d:2 * d + 2])
                I("v_cvt_pk_bf16_f32", KB[p][d], x[2 * d], x[2 * d + 1])
        body = []
        for g in shadow: body += g
        body += cap(lambda: fst(tag + "mm"))
        body += chase(evenly(cap(lambda: pa(0)), *mid0), after_p(0))
        body += cap(lambda: fst(tag + "t0"))
        t1 = cap(lambda: pa(1))
        t1 = evenly(t1, *mid1)
        body += chase(t1, after_p(1))
    return body + cap(lambda: fst(tag + "t1"))

def umax(dst, regs):
    regs = list(regs)
    I("v_max3_u32", dst, regs[0], regs[1], regs[2]); regs = regs[3:]
    while len(regs) >= 2:
        I("v_max3_u32", dst, dst, regs[0], regs[1]); regs = regs[2:]
    if regs: I("v_max_u32", dst, dst, regs[0])

def check_or_retry(tag, fold, cmp_bad, loads):
    g = singles(cap(fold))
    def test():
        cmp_bad()
        I("s_cbranch_vccnz", "L_slow_" + tag)
        P.label("L_back_" + tag)
    g.append(cap(test))
    def slow():
        P.label("L_slow_" + tag)
        I("s_mov_b32", sCNT, 0)
        P.label("L_sp_" + tag)
        if OPT["stamps"] and not OPT["lite"]: I("s_add_u32", s(3), s(3), {"r": 1, "a": 0x100, "o": 0x10000}[tag[0]] if not tag.startswith("rf") else 0x1000000)
        loads()
        wait(vm=0)
        fold()
        cmp_bad()
        I("s_add_u32", sCNT, sCNT, 1)
        I("s_cmp_gt_u32", sCNT, SPIN)
        I("s_cbranch_scc1", "L_back_" + tag)
        I("s_cbranch_vccnz", "L_sp_" + tag)
        I("s_branch", "L_back_" + tag)
    SLOW.append(cap(slow))
    return g
def check_sent(tag, chk, regs, loads):
    return check_or_retry(tag, lambda: umax(chk, regs), lambda: I("v_cmp_eq_u32", "vcc", -1, chk), loads)
def check_tag(tag, chk, regs, loads):
    def fold():
        for r in regs: I("v_xor_b32", r, sTAG, r)
        I("v_or3_b32", chk, regs[0], regs[1], regs[2])
        for i in range(3, len(regs) - 1, 2): I("v_or3_b32", chk, chk, regs[i], regs[i + 1])
        I("v_or_b32", chk, chk, regs[-1])
        I("v_and_b32", chk, 0xff, chk)
    return check_or_retry(tag, fold, lambda: I("v_cmp_ne_u32", "vcc", 0, chk), loads)

def build():
    I("s_cmp_ge_u32", s(2), 256)
    I("s_cbranch_scc1", "L_end")
    if OPT["swap07"]:
        I("s_add_u32", sT0, s(2), 1); I("s_and_b32", sT0, sT0, 6)
        I("s_cselect_b32", sT0, 0, 7)
        I("s_xor_b32", s(2), s(2), sT0)
    I("s_bfe_u32", sA, s(2), 0x10002)
    I("s_cmp_lg_u32", sA, 0)
    I("s_cselect_b32", sT0, 0, 24)
    I("s_cselect_b32", sT1, 8, 32)
    I("s_cselect_b32", sT2, 16, 48)
    I("s_load_dwordx2", SX[0:2], s(0, 2), sT0)
    I("s_load_dwordx2", SW[0:2], s(0, 2), sT1)
    I("s_load_dwordx2", SWO[0:2], s(0, 2), sT2)
    I("s_load_dwordx2", SPHI[0:2], s(0, 2), 40)
    I("s_load_dwordx2", SOUT[0:2], s(0, 2), 56)
    I("s_load_dwordx2", SWS[0:2], s(0, 2), 72)
    if OPT["apo"]: I("s_load_dwordx2", SBO[0:2], s(0, 2), 48)
    if OPT["apq"]: I("s_load_dwordx2", SBQ[0:2], s(0, 2), 32)
    if OPT["apx"]: I("s_load_dwordx2", SBX[0:2], s(0, 2), 24)
    I("s_getpc_b64", sPC)
    I("s_and_b32", sT0, s(2), 0xf8)
    I("v_lshrrev_b32", T[0], 5, v(0))
    I("v_add_lshl_u32", T[1], T[0], sT0, 7)
    I("s_cmp_ge_u32", sT0, "HEAD_LINES")
    I("s_cselect_b32", sT1, sA, 0)
    I("s_mul_i32", sT1, sT1, "A_SHIFT")
    I("v_add_u32", T[1], sT1, T[1])
    I("v_min_u32", T[1], "CODE_SPAN", T[1])
    I("global_load_dword", v(255), T[1], sPC)
    if OPT["stamps"]:
        I("s_memtime", s(98, 2)); I("s_memrealtime", s(96, 2))
        if OPT["fine"]: I("s_mov_b32", s(3), 0)
    I("v_readfirstlane_b32", sWV, T[0])
    I("v_and_b32", vL, 63, v(0))
    I("s_and_b32", sT0, s(2), 3)
    I("s_lshr_b32", sT1, s(2), 6)
    I("s_lshr_b32", sWV, sWV, 1)
    I("s_lshl2_add_u32", sRT, sT0, sT1)
    I("s_bfe_u32", sG, s(2), 0x30003)
    if OPT["perm"]:
        K, tab = PERMS[OPT["perm"]]
        if OPT["xsh"]: I("s_mul_i32", sXSH, sT0, OPT["xsh"])
        if K == 8:
            I("s_lshl1_add_u32", sT0, sT1, sG); I("s_and_b32", sT0, sT0, 7)
        elif K == 4:
            I("s_add_u32", sT0, sG, sT1); I("s_and_b32", sT0, sT0, 3)
        else:
            I("s_add_u32", sT0, sG, sT1); I("s_mul_i32", sT1, sT0, 86); I("s_lshr_b32", sT1, sT1, 8)
            I("s_mul_i32", sT1, sT1, 3); I("s_sub_u32", sT0, sT0, sT1)
        lo = [sum(p[i] << (4 * i) for i in range(8)) for p in tab]
        I("s_mov_b32", sPM[0], lo[0])
        for k_ in range(1, K):
            I("s_cmp_eq_u32", sT0, k_); I("s_cselect_b32", sPM[0], lo[k_], sPM[0])
        I("s_lshl_b32", sT0, sT0, 2)
        I("s_lshr_b32", sPM[1], sum(p[8] << (4 * k_) for k_, p in enumerate(tab)), sT0)
        I("s_and_b32", sPM[1], sPM[1], 15)
        I("s_lshl_b32", sT0, sWV, 1); I("s_and_b32", sT0, sT0, 4)
        I("s_lshr_b64", sPQ, sPM, sT0)
        I("s_mov_b32", sROT, 0)
    elif OPT["nphase"] == 7:
        I("s_add_u32", sT1, sG, sT1)
        I("s_and_b32", sT1, sT1, 1)
        I("s_lshl2_add_u32", sROT, sT1, sT0)
        I("s_add_u32", sROT, sROT, sT1)
    elif OPT["nphase"] in (3, 6):
        if OPT["nphase"] == 6:
            I("s_cmp_eq_u32", sT0, 3); I("s_cselect_b32", sT2, 1, sT0)
        I("s_add_u32", sT0, sG, sT1)
        I("s_mul_i32", sT1, sT0, 86)
        I("s_lshr_b32", sT1, sT1, 8)
        I("s_mul_i32", sT1, sT1, 3)
        I("s_sub_u32", sT0, sT0, sT1)
        I("s_mul_i32", sROT, sT0, 3)
        if OPT["nphase"] == 6: I("s_add_u32", sROT, sROT, sT2)
    elif OPT["nphase"] == 4:
        I("s_add_u32", sT0, sG, sT1)
        I("s_and_b32", sT0, sT0, 3)
        I("s_lshl_b32", sROT, sT0, 1)
    elif OPT["nphase"] == 5:
        I("s_add_u32", sT0, sG, sT1)
        I("s_and_b32", sT0, sT0, 3)
        I("s_mul_i32", sT0, sT0, 5)
        I("s_lshr_b32", sROT, sT0, 1)
    elif OPT["nphase"] == 8:
        I("s_lshl1_add_u32", sT0, sT1, sG)
        I("s_and_b32", sROT, sT0, 7)
    elif OPT["nphase"] == 2:
        I("s_add_u32", sT0, sG, sT1)
        I("s_and_b32", sT0, sT0, 1)
        I("s_lshl_b32", sROT, sT0, 2)
    else:
        I("s_mov_b32", sROT, 0)
    I("s_lshl2_add_u32", sSL, sRT, sWV)
    I("s_mul_i32", sOX, sSL, 32 * 1152)
    I("s_lshl_b32", sT0, sROT, 7)
    I("s_add_u32", sOX, sOX, sT0)
    I("s_lshl_b32", sMX, sWV, 12)
    I("s_mul_i32", sMQ, sWV, 4608)
    I("s_add_u32", sMW, sMQ, WSL)
    I("s_movk_i32", s1152, 1152)
    I("v_lshrrev_b32", T[0], 3, vL)
    I("v_mul_u32_u24", T[0], s1152, T[0])
    I("v_lshrrev_b32", vGL, 4, vL)
    I("v_and_b32", T[1], 7, vL)
    I("v_xor_b32", T[1], T[1], vGL)
    I("v_lshl_add_u32", vOX[0], T[1], 4, T[0])
    I("v_xor_b32", vOX[1], 64, vOX[0])
    I("v_add_u32", vOX[2], 16 * 1152 - 2048, vOX[0])
    I("v_add_u32", vOX[3], 24 * 1152 - 3072, vOX[1])
    I("v_add_u32", vOX[1], 8 * 1152 - 1024, vOX[1])
    I("s_mov_b32", SX[2], 2048 * 1152); I("s_mov_b32", SX[3], 0x20000)
    I("s_mov_b32", SW[2], 576 * 3456); I("s_mov_b32", SW[3], 0x20000)
    I("s_mul_i32", sL3, sG, 144)
    I("s_lshl2_add_u32", sT0, sROT, sWV)
    I("s_mul_i32", sOW, sT0, 16 * 3456)
    I("s_add_u32", sOW, sOW, sL3)
    I("s_add_u32", sOW, sOW, s1152)
    if OPT["perm"]:
        I("s_mov_b32", sXB0, sOX); I("s_mov_b32", sWB0, sOW)
        emit_groups(perm_next())
    I("s_movk_i32", sL0, 3456); I("s_movk_i32", sL1, -144)
    I("v_lshlrev_b32", vL16, 4, vL)
    I("v_mul_u32_u24", vM, 7282, vL)
    DR = [v(64 + i) for i in range(5)]; DP = [v(70 + i) for i in range(5)]; DC = [v(76 + i) for i in range(5)]
    for i in range(5):
        t = vM
        if i:
            I("v_add_u32", T[0], Q0[i] * 7282, vM); t = T[0]
        I("v_lshrrev_b32", T[1], 16, t)
        I("v_lshrrev_b32", DR[i], 17, t)
        I("v_and_b32", DP[i], 1, T[1])
        I("v_mad_i32_i24", DC[i], T[1], sL1, vL16)
        if i == 2:
            I("v_lshrrev_b32", T[2], 1, DR[i]); I("v_and_b32", T[2], 4, T[2]); I("v_xor_b32", DR[i], DR[i], T[2])
        elif i > 2:
            I("v_xor_b32", DR[i], 4, DR[i])
        I("v_mad_u32_u24", T[2], DR[i], sL0, DC[i])
        I("v_mad_u32_u24", vOW[i], DP[i], s1152, T[2])
    for r_, z_ in ((SWO, 576 * 1152), (SPHI, 32 * 648), (SOUT, 2048 * 2304), (SWS, WS_BYTES)):
        I("s_mov_b32", r_[2], z_); I("s_mov_b32", r_[3], 0x20000)
    I("v_lshlrev_b32", vL4, 2, vL)
    I("s_lshl2_add_u32", sT2, sG, sWV); I("s_mul_i32", sT2, sT2, 648)
    I("s_lshl3_add_u32", sL2, sA, sG)
    I("s_lshl_b32", sAG, sL2, 14); I("s_add_u32", sAG, sAG, WS_F)
    I("s_sub_u32", sT0, 2, sA)
    I("s_min_u32", sT1, sWV, sT0); I("s_mul_i32", sT3, sRT, sT0); I("s_add_u32", sT3, sT3, sRT); I("s_add_u32", sRSB, sT1, sT3)
    I("s_lshl_b32", sT1, sRSB, 8); I("s_add_u32", sFSL, sAG, sT1)
    I("s_cmp_gt_u32", sWV, sT0)
    I("s_cselect_b32", sFSL, OOB, sFSL)
    I("s_lshl3_add_u32", sT0, sA, 0); I("s_and_b32", sT1, sRSB, 7); I("s_or_b32", sT0, sT0, sT1)
    I("s_cmp_eq_u32", sT0, 15)
    I("s_cselect_b32", sFSL, OOB, sFSL)
    I("s_subb_u32", sRSB, sRSB, 0)
    I("v_and_b32", vN, 15, vL)
    I("v_and_b32", T[7], 1, vGL)
    I("v_lshlrev_b32", T[0], 2, vGL); I("v_lshl_add_u32", T[0], vN, 4, T[0])
    I("v_lshl_or_b32", vFS, T[7], 30, T[0])
    I("s_mul_i32", sT0, sSL, 32 * 2304)
    I("s_add_u32", sT0, sT0, sL3)
    I("s_xor_b32", sT1, sA, 1); I("s_mul_i32", sT1, sT1, 1152); I("s_add_u32", sOUTB, sT0, sT1)
    I("s_lshl_b32", sT0, sA, 6); I("s_add_u32", sT0, sT0, sSL)
    I("s_lshl_b32", sRF, sT0, 7); I("s_add_u32", sRF, sRF, WS_R)
    if OPT["pois0"]:
        I("s_mul_i32", sOB, sT0, 8 * 4608); I("s_add_u32", sOB, sOB, WS_O)
        I("s_lshl_b32", sT0, sL3, 5); I("s_add_u32", sOU[0], sT0, sOB)
        for i in range(4): I("v_mov_b32", M1[i], -1)
        I("v_lshlrev_b32", v(92), 3, vL); I("v_add_u32", v(92), 4096, v(92))
    if OPT["apx"]:
        I("s_mul_i32", SBX[2], sA, 2048 * 1152); I("s_mov_b32", SBX[3], 0x20000)
        I("s_lshl3_add_u32", sCNT, sSL, sG); I("s_mul_i32", sCNT, sCNT, 4 * 1152)
        I("v_min_u32", v(93), 35, vL); I("v_lshlrev_b32", v(93), 7, v(93))
    I("v_lshlrev_b32", v(90), 20, vL)
    I("v_mov_b32", v(91), 0)
    I("s_mov_b32", sT0, WS_E)
    wait(lgkm=0)
    fst("karg")
    def extras():
        for i in range(3):
            I("buffer_load_dword", PW[i], vL4, SPHI, sT2, mods="offen offset:%d" % (256 * i))
        I("buffer_load_dword", v(255), v(91), SWS, sRF, mods="offen sc1")
        if OPT["touch"]:
            I("buffer_load_dword", v(255), v(90), SWS, 0, mods="offen")
            I("buffer_load_dword", v(255), v(91), SOUT, sOUTB, mods="offen")
            I("buffer_load_dword", v(255), v(91), SWO, sL3, mods="offen")
    def pois0():
        for i in range(4):
            I("buffer_store_dwordx4", M1, vL16, SWS, sOU[0], mods="offen offset:%d sc1" % (1024 * i))
        I("buffer_store_dwordx2", M1[0:2], v(92), SWS, sOU[0], mods="offen sc1")
    if OPT["pois0"] == 1: pois0()
    apx = lambda: I("buffer_load_dword", v(255), v(93), SBX, sCNT, mods="offen")
    if OPT["apx"] == 1: apx()
    emit_groups(x_dma(0))
    I("s_load_dword", sE, SWS[0:2], sT0)
    if OPT["xo"] == 0: extras()
    emit_groups(w_dma(0))
    if OPT["xo"] == 1: extras()
    if OPT["apx"] == 2: apx()
    def xpf():
        I("s_lshl3_add_u32", sT0, sRT, sG); I("s_lshl2_add_u32", sT0, sT0, sWV); I("s_mul_i32", sT0, sT0, 4 * 1152)
        I("v_min_u32", T[1], 35, vL); I("v_lshlrev_b32", T[1], 7, T[1])
        I("buffer_load_dword", v(255), T[1], SX, sT0, mods="offen")
    if OPT["pfx"] == 1: xpf()
    stamp("S0iss")
    I("v_lshrrev_b32", T[0], 1, vN)
    I("v_xor_b32", T[0], T[0], vGL)
    I("v_lshl_add_u32", T[1], vN, 7, sMX)
    I("v_lshl_add_u32", vXR[0], T[0], 4, T[1])
    I("v_xor_b32", vXR[1], 64, vXR[0])
    I("v_bfe_u32", vR, vL, 2, 2)
    I("v_and_b32", vC, 3, vL)
    I("v_lshl_add_u32", T[1], vGL, 3, vR)
    I("v_lshl_add_u32", T[2], T[7], 2, T[1])
    I("v_xor_b32", T[3], 4, T[2])
    I("s_movk_i32", sT0, 288); I("v_mov_b32", T[4], WSL)
    I("v_mad_u32_u24", T[2], T[2], sT0, T[4]); I("v_mad_u32_u24", T[3], T[3], sT0, T[4])
    I("v_mul_u32_u24", T[0], 40, vC)
    I("v_lshrrev_b32", T[1], 1, vC)
    I("v_add_u32", vTR[0][0], T[2], T[0]); I("v_add_u32", vTR[0][1], T[3], T[0])
    I("v_lshlrev_b32", T[6], 5, T[1]); I("v_sub_u32", T[6], T[0], T[6])
    I("v_add3_u32", vTR[1][0], T[2], T[6], 24); I("v_add3_u32", vTR[1][1], T[3], T[6], 24)
    I("v_mul_u32_u24", T[6], 72, T[1])
    I("v_add3_u32", vTR[2][0], T[2], T[6], 32); I("v_add3_u32", vTR[2][1], T[3], T[6], 32)
    I("v_lshl_add_u32", vTR[3][0], vC, 3, T[2]); I("v_lshl_add_u32", vTR[3][1], vC, 3, T[3])
    I("v_and_b32", T[6], 1, vC); I("v_mul_u32_u24", T[6], 72, T[6])
    if OPT["zv"]: I("v_lshl_add_u32", T[6], T[1], 17, T[6])
    I("v_add3_u32", vTR[4][0], T[2], T[6], 32); I("v_add3_u32", vTR[4][1], T[3], T[6], 32)
    I("s_mov_b32", sT0, 32 * 3456 - 1152); I("s_movk_i32", sT1, 72)
    for i in range(5):
        I("v_mad_u32_u24", vOQ[i], DP[i], sT0, vOW[i])
        I("v_lshl_add_u32", T[0], DP[i], 3, DR[i])
        I("v_and_b32", T[3], 1, DR[i])
        if i == 2:
            I("v_lshrrev_b32", T[1], 3, DR[i])
            I("v_mad_u32_u24", T[0], T[1], 12, T[0])
            I("v_lshl_add_u32", T[3], T[1], 1, T[3])
        elif i > 2:
            I("v_add_u32", T[0], 12, T[0])
        I("v_mad_u32_u24", vOO[i], T[0], s1152, DC[i])
        I("v_bfe_u32", T[2], DR[i], 1, 2)
        I("v_lshl_add_u32", T[2], DP[i], 2, T[2])
        if OPT["gord"]:
            I("v_cmp_ge_u32", "vcc", sG, T[2])
            I("v_subb_co_u32", T[2], "vcc", T[2], 0, "vcc")
            I("v_min_u32", T[5], sG, T[2]); I("v_cmp_gt_i32", "vcc", 0, T[2])
            I("v_cndmask_b32", T[2], T[2], T[5], "vcc")
        else:
            I("v_add_u32", T[2], sG, T[2]); I("v_and_b32", T[2], 7, T[2])
        I("v_add_u32", T[3], 18 if i > 2 else 16, T[3])
        I("v_mad_u32_u24", T[2], T[2], sT1, T[3])
        I("v_mad_u32_u24", vO8[i], T[2], s1152, DC[i])
    if OPT["s1m"]: emit_groups(x_dma(1))
    for i in range(4): I("v_mov_b32", v(84 + i), 0)
    I("s_mul_i32", sT1, sWV, 384); I("s_add_u32", sT1, sT1, ZERO)
    I("v_min_u32", T[0], 23 * 16, vL16); I("v_add_u32", T[0], sT1, T[0])
    I("ds_write_b128", T[0], v(84, 4))
    I("s_mul_i32", sT0, sWV, 960); I("s_add_u32", sT0, sT0, PHI)
    for i in range(3):
        t = vM
        if i:
            I("v_add_u32", T[0], 64 * i * 7282, vM); t = T[0]
        I("v_lshrrev_b32", T[0], 16, t); I("v_add_u32", T[0], T[0], vL)
        I("v_lshl_add_u32", PA[i], T[0], 2, sT0)
    I("v_cmp_eq_u32", "vcc", vC, vGL)
    I("v_mul_u32_u24", T[0], 40, vR)
    I("v_mul_u32_u24", T[1], 1040, vGL)
    I("v_mov_b32", T[3], ZERO)
    I("v_add3_u32", T[1], T[1], T[0], T[3])
    I("v_add_u32", T[2], (PHI - ZERO) & 0xffffffff, T[1])
    I("v_cndmask_b32", vPH[0], T[3], T[2], "vcc")
    I("v_lshrrev_b32", T[4], 1, vGL); I("v_mul_u32_u24", T[4], 640, T[4])
    I("v_sub_u32", T[2], T[2], T[4]); I("v_add_u32", T[2], 480, T[2])
    I("v_cndmask_b32", vPH[1], T[3], T[2], "vcc")
    I("v_mul_u32_u24", T[1], 1920, vGL); I("v_add_u32", T[1], T[1], T[0]); I("v_add_u32", T[2], KVI, T[1])
    I("v_cndmask_b32", vPSA, T[3], T[2], "vcc")
    I("v_mul_u32_u24", T[1], 960, vGL); I("v_mul_u32_u24", T[4], 640, T[7])
    I("v_sub_u32", T[1], T[1], T[4]); I("v_add_u32", T[1], T[1], T[0]); I("v_add_u32", T[1], PHI + 640, T[1])
    I("v_cndmask_b32", T[1], T[3], T[1], "vcc")
    I("v_cmp_gt_u32", "vcc", 2, vR)
    I("s_mul_i32", sPME, sL2, PGRP)
    I("s_lshl_b32", sRSB, sRSB, 12)
    I("v_cndmask_b32", vPH[2], T[3], T[1], "vcc")
    I("s_add_u32", sRSB, sRSB, sPME)
    stamp("P1")
    if OPT["pfx"] == 2: xpf()
    if OPT["xo"] == 2: extras()
    if OPT["pois0"] == 2: pois0()
    if OPT["apx"] == 3: apx()
    I("s_mov_b32", sG144, sL3)
    emit_groups(w_dma(1) if OPT["s1m"] else stage_dma(1))
    if OPT["pois0"] == 3: pois0()
    stamp("S1iss")
    def touch_round(r):
        I("s_lshl2_add_u32", sCNT, sA, sWV)
        I("s_mov_b64", "exec", 0)
        for k_ in range(7):
            I("s_cmp_eq_u32", sCNT, k_)
            I("s_cbranch_scc1", "L_th%s%d%d" % ("BA"[k_ // 4], r, k_ % 4))
        I("s_branch", "L_thA%d3" % r)
        P.label("L_tret%d" % r)
        I("s_mov_b64", "exec", -1)
    if OPT["itouch"]:
        P.touch = {"L_tailA"}; P.rounds = 2

    def late():
        I("s_and_b32", sL0, sWV, 1); I("s_lshr_b32", sL1, sWV, 1)
        I("s_mul_i32", sL2, sL0, 16 * 3456); I("s_add_u32", sL2, sL2, sG144)
        I("s_add_u32", sQE, sL2, 0 if OPT["perm"] else 9 * WSTEP)
        I("s_add_u32", sL3, sL1, sROT)
        if OPT["nphase"] in (6, 7):
            I("s_add_u32", sOQ, sL3, 7); I("s_lshr_b32", sOQ, sOQ, 4); I("s_mul_i32", sOQ, sOQ, 9); I("s_sub_u32", sL3, sL3, sOQ)
        I("s_mul_i32", sL3, sL3, WSTEP); I("s_add_u32", sOQ, sL3, sL2)
        I("s_mul_i32", sO8, sL0, 36 * 1152); I("s_add_u32", sO8, sO8, sG144)
        if OPT["gord"]:
            I("s_mov_b32", sOE, sL1)
            I("s_min_u32", sL3, sG, 1); I("s_xor_b32", sL3, sL3, 1); I("s_mul_i32", sL3, sL3, sL1)
            I("s_xor_b32", sL2, sL1, 1); I("s_mul_i32", sL2, sL2, sG); I("s_add_u32", sL3, sL3, sL2)
            I("s_mul_i32", sL3, sL3, 82944); I("s_add_u32", sOO, sL3, sO8)
        else:
            I("s_add_u32", sOE, sO8, 8 * 82944)
            I("s_add_u32", sL3, sL1, sG); I("s_and_b32", sL3, sL3, 7); I("s_mul_i32", sL3, sL3, 82944); I("s_add_u32", sOO, sL3, sO8)
        I("s_mov_b32", sC[0], f2u(LOG2E)); I("s_mov_b32", sC[1], f2u(LOG2E))
        I("s_mov_b32", sEPS[0], f2u(1e-6)); I("s_mov_b32", sEPS[1], f2u(1e-6))
        I("s_mov_b32", sODD[0], 0xffff0000); I("s_mov_b32", sODD[1], 0xffff0000)
        I("s_add_u32", sE, sE, 1); I("s_and_b32", sTAG, sE, 0xff); I("s_mov_b32", sMSK, 0xffffff00)
        I("s_getreg_b32", sL0, "hwreg(HW_REG_XCC_ID, 0, 4)")
        I("s_lshl4_add_u32", sRV, sE, sL0)
        for i in range(4): I("v_mov_b32", M1[i], -1)
        I("s_sub_u32", sL2, 3, sA); I("s_mul_i32", sL2, sL2, sWV)
        I("s_lshl_b32", sL1, sL2, 14); I("s_add_u32", sPME, sPME, sL1)
        I("s_lshl_b32", sL1, sRT, 8); I("s_add_u32", sPME, sPME, sL1)
        I("s_lshl_b32", sL1, sL2, 10); I("s_add_u32", sAG, sAG, sL1)
        I("s_lshr_b32", sL1, sWV, 1)
        I("s_mul_i32", sQ8, sL1, 0x40000000); I("s_mul_i32", sM8, sL1, 100000); I("s_add_u32", sM8, sM8, sMQ)
        I("s_lshl_b32", sL0, sA, 6); I("s_add_u32", sL0, sL0, sSL)
        I("s_mul_i32", sOB, sL0, 8 * 4608); I("s_add_u32", sOB, sOB, WS_O)
        I("s_lshl_b32", sL0, sG144, 5); I("s_add_u32", sOU[0], sL0, sOB)
        I("v_add_u32", vL4, 4096, vL4)
        I("v_lshl_add_u32", T[0], vGL, 2, vR)
        I("v_mul_u32_u24", T[0], IR, T[0])
        I("s_mul_i32", sL0, sWV, 128 * IR)
        I("v_add_u32", vKB2, sL0, T[0])
        I("v_lshl_add_u32", vKB0, vC, 3, vKB2)
        for p in range(2):
            for i in (9, 10, 11): I("v_mov_b32", KB[p][i], 0)
            for i in (18, 19): I("v_mov_b32", PH[p][i], 0)
        I("v_mul_u32_u24", T[0], 128 * IR, vGL)
        I("v_mul_u32_u24", T[1], IR, vN)
        I("s_mul_i32", sL0, sWV, 32 * IR)
        I("v_add3_u32", vIW, T[0], T[1], sL0)
        I("s_mul_i32", sL0, sWV, 5120); I("s_add_u32", sL0, sL0, VF)
        I("v_add_u32", vVW, sL0, vL16)
        I("s_lshl_b32", sL0, sWV, 10); I("s_add_u32", sL0, sL0, VF)
        I("v_add_u32", vAM, sL0, vL16)
        I("s_lshl_b32", sL0, sWV, 1)
        I("v_cmp_gt_u32", "vcc", 2, vN)
        I("v_add_u32", T[3], sL0, vN)
        I("v_lshlrev_b32", T[0], 4, vN); I("v_lshl_add_u32", vP1, vGL, 12, T[0])
        I("v_cndmask_b32", T[3], 8, T[3], "vcc")
        I("v_lshl_add_u32", T[3], vGL, 4, T[3])
        I("v_lshlrev_b32", T[3], 4, T[3]); I("v_add_u32", vAL, VF + 4096, T[3])
        I("v_cmp_gt_u32", "vcc", 4, vN)
        I("v_mov_b32", T[4], OOB)
        I("v_lshl_add_u32", T[0], vGL, 2, vN); I("v_lshlrev_b32", T[0], 4, T[0])
        I("v_cndmask_b32", vP2, T[4], T[0], "vcc")
        I("v_cmp_gt_u32", "vcc", 16, vL)
        I("s_mul_i32", sL1, sWV, 1920); I("s_add_u32", sL1, sL1, KVI)
        I("v_cndmask_b32", vP3, T[4], vL16, "vcc")
        I("v_mul_u32_u24", T[1], 40, vN); I("v_lshl_add_u32", T[1], vGL, 3, T[1])
        I("v_add_u32", vAG1, sL1, T[1])
        I("v_mul_u32_u24", T[2], 40, vC); I("v_lshrrev_b32", T[3], 2, vL)
        I("s_lshr_b32", sL0, 32 * 40, sA)
        I("v_lshl_add_u32", T[2], T[3], 3, T[2]); I("v_add_u32", T[2], sL0, T[2])
        I("v_mul_u32_u24", T[3], 40, vL); I("v_add_u32", T[3], (32 - 16 * 40) & 0xffffffff, T[3])
        I("v_cndmask_b32", T[2], T[3], T[2], "vcc"); I("v_add_u32", vAG2, sL1, T[2])
        for t in range(5):
            I("v_accvgpr_write_b32", PHIF(t, 2)[2], 0); I("v_accvgpr_write_b32", PHIF(t, 2)[3], 0)
    lt = singles(cap(late))

    wait_vm("S0", lgkm=0)
    I("s_barrier")
    stamp("S0land")
    pipe = Pipe(dist=4)
    RT = list(range(-4, 10)) + [10, 10, 11, 11, 12, 12]
    fill = []
    for j in range(9):
        slot = j % 3
        order = [(kap, T_) for kap in range(2) for T_ in range(10)]
        if j == 8: order = [(kap, T_) for T0 in (0, 5) for kap in range(2) for T_ in range(T0, T0 + 5)]
        seen = set()
        for m, (kap, T_) in enumerate(order):
            ks = 2 * j + kap
            ring = RING[(20 * j + m) % 8]
            def rd():
                if kap not in seen:
                    seen.add(kap)
                    for p in range(2):
                        I("ds_read_b128", XF(ks, p), vXR[kap], mods="offset:%d" % (slot * XSLOT + p * 2048))
                if OPT["ex"] & 2 and (j > 0 or m >= 8): return
                if OPT["ex"] & 4 and T_ >= 5: return
                tile_read(ring, T_, slot * WSLOT + kap * 9216)
            def work():
                if OPT["ex"] & 1:
                    I("s_nop", 1); I("s_nop", 1); return
                for p in range(2):
                    if T_ < 5: mfma(ACK[p][T_], ring, XF(ks, p), 0 if ks == 0 else ACK[p][T_])
                    else: mfma(ACV[p][T_ - 5], XF(ks, p), ring, 0 if ks == 0 else ACV[p][T_ - 5])
            pipe.add(rd, work, rt=20 * j + RT[m])
        def hook():
            if OPT["itouch"] and 20 * j + 16 == OPT["t0"]: touch_round(0)
            if OPT["itouch"] and 20 * j + 16 == OPT["t1"]: touch_round(1)
            if j < 8: wait_vm("S%d" % (j + 1), lgkm=0)
            else: wait(lgkm=0)
            I("s_barrier")
            if OPT["p1st"]: stamp("b%d" % (j + 1))
        pipe.hooks[20 * j + 16] = cap(hook)
        t0 = max(0, 20 * j - 4)
        if j + 2 < 9: fill += spread(stage_dma(j + 2), t0, 20 * j + 13)
        elif j == 7: fill += spread(wq_pair_dma(0) + wq_pair_dma(2), t0 + 2, 20 * j + 36)
    def apre(kind):
        tag = "ap" + kind
        def pre():
            I("s_lshl3_add_u32", sT2, sSL, sG); I("s_mul_i32", sT2, sT2, 81); I("s_lshr_b32", sT2, sT2, 3)
            I("v_min_u32", T[5], 10, vL); I("v_add_u32", T[5], sT2, T[5])
            if kind == "o":
                I("v_lshlrev_b32", T[5], 7, T[5])
                I("s_mov_b32", SBO[2], 576 * 1152); I("s_mov_b32", SBO[3], 0x20000)
            else:
                I("v_mul_u32_u24", T[6], 7282, T[5]); I("v_lshrrev_b32", T[6], 16, T[6])
                I("v_mul_u32_u24", T[6], 18, T[6]); I("v_add_lshl_u32", T[5], T[5], T[6], 7)
                I("s_mov_b32", SBQ[2], 576 * 3456); I("s_mov_b32", SBQ[3], 0x20000)
        def go():
            I("s_cmp_eq_u32", sA, 0)
            I("s_cbranch_scc1", "L_skip_" + tag)
            for r_ in ((SBO, SWO) if kind == "o" else (SBQ, SW)):
                x = I("buffer_load_dword", v(255), T[5], r_, 0, mods="offen"); x.cond = True
            P.label("L_skip_" + tag)
        return singles(cap(pre)) + [cap(go)]
    if OPT["apo"]: fill += at(OPT["apo"], apre("o"))
    if OPT["apq"]: fill += at(OPT["apq"], apre("q"))
    if OPT["pfq"]:
        fill += at(OPT["pfq"], singles(cap(lambda: prefetch("wq"))))
    if OPT["pfo"] > 1:
        fill += at(OPT["pfo"], singles(cap(lambda: prefetch("wo"))))
    fill.sort(key=lambda t: t[0])
    phw = singles(cap(lambda: [I("ds_write_b32", PA[i], PW[i], mods="offset:%d" % (256 * i)) for i in range(3)]))
    def phir():
        for t in range(5):
            for tp in range(5):
                ad, o = (vPH[0], 160 * tp) if tp < 3 else (vPH[tp - 2], 0)
                tr(PHIF(t, tp // 2)[2 * (tp & 1):2 * (tp & 1) + 2], ad, 8 * t + o)
    phr = singles(cap(phir))
    nl = len(lt)
    bulk = spread(lt[:8], -1, -1) + spread(lt[8:30], 0, 24) + spread(phw, 24, 30) + spread(lt[30:40], 30, 42)
    bulk += spread(phr, 42, 80) + spread(lt[40:], 80, 150)
    bulk += spread(singles(cap(lambda: (cv(0), cv(1)))), 178, 180)
    pipe.emit(fill, bulk)
    stamp("pass1")

    I("s_cmp_lg_u32", sA, 0)
    I("s_cbranch_scc1", "L_tailA")
    P.label("L_tailB")
    names0 = list(stamp_names); mute0 = OPT.get("mute")
    P.put(mark(cap(lambda: tail("B")), path="B"))
    P.label("L_end")
    P.label("L_notouchB")
    I("s_endpgm")
    for sl in SLOW: P.put(mark(sl, path="B"))
    del SLOW[:]
    stamp_names[:] = names0; OPT["mute"] = mute0
    P.raw(".p2align 7")
    P.label("L_dotouch")
    P.label("L_tailA")
    P.put(mark(cap(lambda: (I("s_nop", 7), tail("A"))), path="A"))
    P.label("L_notouchA")
    I("s_endpgm")
    for sl in SLOW: P.put(mark(sl, path="A"))
    P.label("L_last")
    for sl in RARE: P.put(mark(sl, path="B"))

def prefetch(kind):
    I("s_lshr_b32", sT2, s(2), 3); I("s_lshl2_add_u32", sT2, sT2, sWV); I("s_mul_i32", sT2, sT2, 81); I("s_lshr_b32", sT2, sT2, 1)
    I("v_min_u32", T[5], 40, vL); I("v_add_u32", T[5], sT2, T[5])
    if kind == "wo":
        I("v_lshlrev_b32", T[5], 7, T[5])
        I("buffer_load_dword", v(255), T[5], SWO, 0, mods="offen")
    else:
        I("v_mul_u32_u24", T[6], 7282, T[5]); I("v_lshrrev_b32", T[6], 16, T[6])
        I("v_mul_u32_u24", T[6], 18, T[6]); I("v_add_lshl_u32", T[5], T[5], T[6], 7)
        I("buffer_load_dword", v(255), T[5], SW, 0, mods="offen")

def rebase(delta):
    for pat in range(3):
        for e in range(2):
            I("v_add_u32", vTR[pat][e], delta & 0xffffffff, vTR[pat][e])

def tail(path):
    B = path == "B"
    FT = [0, 1, 2] if B else [0, 2]
    PHI_ = PH if B else KB
    NJ = 5 if B else 3
    def poison():
        for i in range(4):
            I("buffer_store_dwordx4", M1, vL16, SWS, sOU[0], mods="offen offset:%d sc1" % (1024 * i))
        for i in range(2):
            I("buffer_store_dword", M1[0], vL4, SWS, sOU[0], mods="offen offset:%d sc1" % (256 * i))
    def vpack():
        I("v_cmp_eq_u32", "vcc", 8, vN)
        I("v_mov_b32", T[0], 0x3f803f80)
        for t in range(5):
            d = ACV[0][t]
            for p in range(2):
                for h in range(2):
                    I("v_cvt_pk_bf16_f32", d[2 * p + h], ACV[p][t][2 * h], ACV[p][t][2 * h + 1])
        for i in range(4): I("v_cndmask_b32", ACV[0][4][i], ACV[0][4][i], T[0], "vcc")
        I("v_mov_b32", T[0], sTAG)
        rebase(WQ0 - WSL)
    def prewarm():
        I("v_min_u32", T[1], 35, vL); I("v_lshlrev_b32", T[1], 7, T[1])
        I("buffer_load_dword", v(255), T[1], SWS, sOU[0], mods="offen sc1")
    vp = singles(cap(vpack))
    w = singles(cap(lambda: [I("ds_write_b128", vVW, ACV[0][t], mods="offset:%d" % (1024 * t)) for t in range(5)]))
    q = tagged(singles(cap(poison)), "POIS") if not OPT["pois0"] else []
    pwm = [cap(prewarm)] if OPT["pw"] else []
    pfo = [cap(lambda: prefetch("wo"))] if OPT["pfo"] == 1 else []
    q4, q6, q8 = vm_only(wq_pair_dma(4)), vm_only(wq_pair_dma(6)), vm_only(wq_pair_dma(8))
    if B:
        ksh = weave(q4[:4], vp); km0 = weave(q4[4:] + q6, w); km1 = q8 + pfo + q
        late_q = []
    else:
        ksh = weave(q4[:2], vp); km0 = weave(q4[2:] + q6[:3], w); km1 = q6[3:] + q8 + pfo + q
        late_q = []
    kvq = []
    if OPT["pf2"]:
        pf = [cap(lambda: prefetch("wo"))]
        if B:
            ksh = weave(q4, vp); km0 = weave(q6 + q8, w) + pf; km1 = []
        else:
            ksh = weave(q4[:2], vp); km0 = weave(q4[2:] + q6[:3], w); km1 = q6[3:] + q8 + pf
        kvq = q
    def kwrites(p):
        def f():
            n4 = 4 if B else 2
            for i in range(n4): I("ds_write_b128", vIW, PHI_[p][4 * i:4 * i + 4], mods="offset:%d" % (IMG + p * 16 * IR + 16 * i))
            I("ds_write_b64", vIW, PHI_[p][4 * n4:4 * n4 + 2], mods="offset:%d" % (IMG + p * 16 * IR + 16 * n4))
        return singles(cap(f))
    P.put(feature_map(path, "k", True, ksh, (km0, 2, 98), (km1, 0, 70 if B else 95), kwrites))
    wait_vm("WQ4", lgkm=0)
    I("s_barrier")
    stamp("kpost")
    DM = [v(104 + 4 * j, 4) for j in range(3)]; DL = [v(116 + 4 * j, 4) for j in range(3)]
    pipe = Pipe(dist=3, grp=1) if not OPT["j4"] else Pipe(dist=4)
    n = 0
    for j in FT:
        for src in range(4):
            AM, AL = a(204 + 8 * src, 4), a(208 + 8 * src, 4)
            BF = RING[n % 8]; n += 1
            def rd():
                if j == 0: I("ds_read_b128", AM, vAM, mods="offset:%d" % (src * 5120))
                for e in range(2):
                    tr(BF[2 * e:2 * e + 2], vKB0 if j < 2 else vKB2, IMG + src * 32 * IR + e * 16 * IR + (32 * j if (B or j < 2) else 32))
                if j == 0: I("ds_read_b128", AL, vAL, mods="offset:%d" % (src * 5120))
            def work():
                mfma(DM[j], AM, BF, 0 if src == 0 else DM[j])
                mfma(DL[j], AL, BF, 0 if src == 0 else DL[j])
            pipe.add(rd, work, rt=(0 if (OPT["j4"] and n == 4) else None))
    SLM = {0: 0, 1: 4, 2: 8} if B else {0: 0, 2: 4}
    SLL = {0: 9, 1: 10, 2: 11} if B else {0: 5, 2: 6}
    def pstore(j):
        for D, ad, sl in ((DM[j], vP1 if j < 2 else vP2, SLM[j]), (DL[j], vP3, SLL[j])):
            if sl: I("s_add_u32", sT1, sPME, sl * 4096)
            for i in range(4): I("v_and_or_b32", D[i], D[i], sMSK, T[0])
            I("buffer_store_dwordx4", D, ad, SWS, sT1 if sl else sPME, mods="offen sc1")
    fill = []
    kvpipe = None; KO = 0; pfill = []
    if OPT["j4"]:
        kvpipe = pipe; KO = 4 * len(FT); qlead = []
        t_ = 6
        for k_, j in enumerate(FT):
            t_ = max(t_, 4 * k_ + 6)
            pfill += spread(singles(cap(lambda: (pstore(j), fst("pubP") if j == 2 else None))), t_, t_ + 2 * OPT["psp"]); t_ += 2 * OPT["psp"]
    else:
        for k_, j in enumerate(FT[:-1]): fill += spread(tagged(singles(cap(lambda: pstore(j))), "P"), 4 * k_ + 5, 4 * k_ + 8)
        pipe.emit(fill)
        fst("kvmm")
        qlead = cap(lambda: (pstore(FT[-1]), stamp("pubP")))
        if not OPT["j1"]:
            P.put(qlead); qlead = []
            I("s_barrier")
        stamp("wqland")

    def gemm2(bfrag, offs, rebases, fill, nm, hooks={}, lead=(), n=0, nks=18, extra=None, pipe=None):
        pipe = pipe or Pipe(dist=OPT["qd"])
        pipe.dist = OPT["qd"]
        pipe.hooks = hooks
        for ks in range(nks):
            for T_ in range(5):
                ring = RING[n % 8]; n += 1
                def rd():
                    if T_ == 0 and ks in rebases: rebase(rebases[ks])
                    tile_read(ring, T_, offs(ks))
                def work():
                    for p in range(2):
                        mfma(ACK[p][T_], ring, bfrag(ks, p), 0 if ks == 0 else ACK[p][T_])
                pipe.add(rd, work, (lambda: fst("%s%d" % (nm, ks))) if T_ == 0 else None)
        if extra: extra(pipe)
        pipe.emit(fill, lead=lead)
    RS = v(128, 16)
    vCK = T[6]
    RS2 = v(200, 16); sRS2, sFS2 = s(22), s(23)
    def rs_loads(RS=RS, so=sRSB):
        for i in range(4):
            I("buffer_load_dwordx4", RS[4 * i:4 * i + 4], vL16, SWS, so, mods="offen offset:%d sc1" % (1024 * i))
    def rs_reduce(RS=RS, sFSL=sFSL):
        for st in (8, 4):
            for i in range(st): I("v_add_f32", RS[i], RS[i], RS[i + st])
        I("v_permlane32_swap_b32", RS[0], RS[2]); I("v_permlane32_swap_b32", RS[1], RS[3])
        I("v_add_f32", RS[0], RS[0], RS[2]); I("v_add_f32", RS[1], RS[1], RS[3])
        I("v_mov_b32", RS[2], RS[0]); I("v_mov_b32", RS[3], RS[1])
        I("v_permlane16_swap_b32", RS[0], RS[2]); I("v_permlane16_swap_b32", RS[1], RS[3])
        I("v_add_f32", RS[0], RS[0], RS[2]); I("v_add_f32", RS[1], RS[1], RS[3])
        I("v_cvt_pk_bf16_f32", RS[0], RS[0], RS[1])
        I("v_mov_b32", RS[1], sE)
        I("buffer_store_dwordx2", RS[0:2], vFS, SWS, sFSL, mods="offen sc1")
        fst("pubF")
    vRV, vRA = T[7], T[8]
    def rflag():
        I("v_mov_b32", vRV, sRV); I("s_lshl_b32", sT1, sG, 2); I("v_mov_b32", vRA, sT1)
        I("buffer_store_dword", vRV, vRA, SWS, sRF, mods="offen sc1")
    ra, rc = OPT["rs_at"], OPT["rs_chk"]
    if not B: ra -= OPT["dA"]; rc -= OPT["dA"]
    wo = [vm_only(wo_pair_dma(u)) for u in (0, 2, 4, 6)]
    wo.append(vm_only(singles(cap(lambda: I("s_add_u32", sO8, sO8, sQ8))) + tagged(dma5(vO8, SWO, sO8, sM8, WO6 + 2 * 9216), "WO8")))
    def ou():
        for u in range(1, 8):
            if OPT["gord"]:
                I("s_sub_u32", sL0, sG, u); I("s_lshr_b32", sL0, sL0, 31)
                I("s_add_u32", sL0, sL0, u - 1)
            else:
                I("s_add_u32", sL0, sG, u); I("s_and_b32", sL0, sL0, 7)
            I("s_mul_i32", sL0, sL0, 4608); I("s_add_u32", sOU[u], sL0, sOB)
    qsh2 = []
    if B:
        rf = [cap(lambda: wait_vm("POIS"))] + singles(cap(rflag))
        fill = spread(singles(cap(ou)), 14, 50) + at(OPT["rf_at"], rf)
        allw = sum(wo, []); nq = OPT["nq"]
        sp = spread(allw[:nq], OPT["w0"], 89)
        assert all(t_ >= 55 for t_, g in sp[15:]) or nq > 22
        if nq > 22: sp = spread(allw[:15], OPT["w0"], 55) + spread(allw[15:nq], 56, 89)
        fill += sp
        if OPT["pw"] > 5: fill += at(OPT["pw"], singles(sum(pwm, [])))
        fill.sort(key=lambda t: t[0])
        wrest = allw[nq:]
        wo = [[], []]
    else:
        def b_addr():
            I("s_min_u32", sL1, sWV, 2); I("s_mul_i32", sL2, sRT, 3); I("s_add_u32", sL1, sL1, sL2)
            I("s_mul_i32", sL2, sG, PGRP); I("s_lshl_b32", sRS2, sL1, 12); I("s_add_u32", sRS2, sRS2, sL2)
            I("s_lshl_b32", sL2, sG, 14); I("s_lshl_b32", sL1, sL1, 8); I("s_add_u32", sL1, sL1, sL2); I("s_add_u32", sFS2, sL1, WS_F)
            I("s_add_u32", sL1, sWV, 1); I("s_lshr_b32", sL1, sL1, 2); I("s_lshl_b32", sL1, sL1, 30); I("s_add_u32", sFS2, sFS2, sL1)
        fill = sorted(spread(wo.pop(0), 3, 26) + spread(singles(cap(ou)) + singles(cap(b_addr)), 1, 33), key=lambda t: t[0])
        l2 = lambda: rs_loads(RS2, sRS2)
        chk = [cap(lambda: (fst("rsb"), wait_vm("RS"), fst("rsw")))] + check_tag("rs" + path, vCK, [RS[i] for i in range(16)], rs_loads) + singles(cap(rs_reduce)) + singles(cap(rflag))
        chk2 = [cap(lambda: wait_vm("RB"))] + check_tag("rb" + path, T[5], [RS2[i] for i in range(16)], l2) + singles(cap(lambda: rs_reduce(RS2, sFS2)))
        f2 = spread(tagged(singles(cap(rs_loads)), "RS"), ra, ra + 4) + spread(tagged(singles(cap(l2)), "RB"), OPT["rb_at"], OPT["rb_at"] + 5)
        if OPT["bfirst"]:
            rb = OPT["rb_chk"]
            nchk = 28
            f2 += spread(chk[:nchk], rc, rb) + spread(chk2, rb, rb + OPT["rb_len"]) + spread(chk[nchk:], rb + OPT["rb_len"], rb + OPT["rb_len"] + 10)
            f2 += spread(wo.pop(0), OPT["rb_at"] + 6, rb + 4)
        else:
            f2 += spread(wo.pop(0), ra + 4, ra + 20)
            f2 += spread(chk, rc, rc + OPT["rs_len"]) + spread(chk2, max(OPT["rb_chk"], rc + OPT["rs_len"]), 110)
        fill += sorted(f2, key=lambda t: t[0])
    if OPT["j4"]:
        tmin = pfill[-1][0] + 1
        fill = pfill + [(max(t_ + KO, tmin), g) for t_, g in fill]
    gemm2(XF, lambda ks: ((ks // 2) % 6) * 9216 + (ks & 1) * 144, {12: WQ6 - WQ0}, fill, "q",
          dict([(53 + KO, cap(lambda: (wait_vm("WQ8"), I("s_barrier"))))] + ([(1 + KO, cap(lambda: I("s_barrier")))] if OPT["j1"] else [])), lead=qlead, n=4 * len(FT), pipe=kvpipe)
    stamp("qgemm")

    NAG = 3 if B else 2
    AG = v(104, 4 * NAG); RF = v(116)
    def ag_loads():
        for i in range(NAG):
            I("buffer_load_dwordx4", AG[4 * i:4 * i + 4], vL16 if (B or i == 0) else T[3], SWS, sAG, mods="offen offset:%d sc1" % (1024 * i))
    def ag_fold():
        I("v_xor_b32", vCK, sE, AG[1])
        for i in range(3, 4 * NAG, 2): I("v_bitop3_b32", vCK, vCK, sE, AG[i], mods="bitop3:0xf6")
    def rf_load(): I("buffer_load_dword", RF, T[4], SWS, sRF, mods="offen sc1")
    def qsh():
        if not B: I("v_min_u32", T[3], 47 * 16, vL16)
        I("v_and_b32", T[4], 7, vL); I("v_lshlrev_b32", T[4], 2, T[4])
        rebase(WO0 - WQ6)
        for t in range(5):
            I("v_accvgpr_write_b32", PSIF(t, NJ - 1)[2], 0); I("v_accvgpr_write_b32", PSIF(t, NJ - 1)[3], 0)
    fr = OPT["ag_frac"] if B else OPT["ag_fracA"]
    g = singles(cap(rf_load)) + singles(cap(lambda: fst("agi"))) + tagged(singles(cap(ag_loads)), "AG") + (pwm if OPT["pw"] == 2 else [])
    lo = (fr - 50) * 2
    wc = wo.pop(0)
    if OPT["pw"] == 3: wc = pwm + wc
    wd = sum(wo, [])
    def agw():
        I("ds_write2_b32", vAG1, AG[0], AG[2], mods="offset0:0 offset1:1")
        if B: I("ds_write2_b32", vAG1, AG[4], AG[6], mods="offset0:160 offset1:161")
        I("ds_write2_b32", vAG2, AG[4 * NAG - 4], AG[4 * NAG - 2], mods="offset0:0 offset1:1")
    agc = cap(lambda: (fst("agb"), wait_vm("AG"), fst("agw"))) + sum(check_or_retry("ag" + path, ag_fold, lambda: I("v_cmp_ne_u32", "vcc", 0, vCK), ag_loads), []) + cap(agw)
    agb = cap(lambda: (wait(lgkm=0), I("s_barrier"), stamp("gotkv")))
    olead = []
    if B:
        mids = [([], 0, 100), ([], 0, 100)]
        mids[1 if fr >= 50 else 0] = (g, (fr % 50) * 2, min(100, (fr % 50) * 2 + 12))
        if wrest[4:]:
            assert fr >= 50
            mids[0] = (wrest[4:], 5, 95)
        qs = weave(singles(cap(qsh)), wrest[:4]) if wrest else singles(cap(qsh))
        if OPT["pw"] == 5: qs = singles(sum(pwm, [])) + qs
        body = feature_map(path, "q", False, qs, mids[0], mids[1], lambda p: [])
        if OPT["j2"]:
            ok = lambda i: isinstance(body[i], Ins) and body[i].kind == "valu" and isinstance(body[i - 1], Ins) and body[i - 1].kind == "valu"
            c1 = len(body) * OPT["agc"] // 100; c2 = len(body) * OPT["agb"] // 100
            while not ok(c1): c1 += 1
            while not ok(c2): c2 += 1
            P.put(body[:c1] + agc + body[c1:c2] + agb); olead = body[c2:]
        else:
            P.put(body + agc + agb)
    else:
        P.put(feature_map(path, "q", False, singles(cap(qsh)), (wc[:3], 0, 100), (wc[3:] + g, 0, 100), lambda p: []))
        emit_groups(wd)
        P.put(agc + agb)

    pool = list(range(104, 144, 4)) + list(range(176, 256, 4)) + [12, 16, 28, 32, 36, 40]
    OF = {}
    keys = [(0, p, X) for X in range(2) for p in range(2)] + [("L", k, p) for k in range(2) for p in range(2)] + [(u, p, X) for u in range(1, 8) for p in range(2) for X in range(2)]
    for k_, r_ in zip(keys, pool): OF[k_] = v(r_, 4)
    o = ACC
    pipe = Pipe(dist=OPT["od"])
    for t in (4, 0, 1, 2, 3):
        for j in range(NJ):
            def rd():
                tr(PSIF(t, j)[0:2], vPSA, 8 * t + 8 * j * 40)
                if j < NJ - 1: tr(PSIF(t, j)[2:4], vPSA, 8 * t + (8 * j + 4) * 40)
            def work():
                for p in range(2):
                    mfma(ACK[p][t], PSIF(t, j), PHI_[p][4 * j:4 * j + 4], 0 if j == 0 else ACK[p][t])
            pipe.add(rd, work)
    def ostore(key, flag=None):
        if flag is None: flag = ["", " sc1", " nt"][OPT["oflag"]]
        if key[0] == "L": I("buffer_store_dword", OF[key][0], vL4, SWS, sOU[0], mods="offen offset:%d%s" % (key[2] * 256, flag))
        else: I("buffer_store_dwordx4", OF[key], vL16, SWS, sOU[0], mods="offen offset:%d%s" % (key[1] * 2048 + key[2] * 1024, flag))
    def fin_den():
        for p in range(2): I("v_add_f32", o[p][18], sEPS[0], o[p][18])
        for p in range(2): I("v_rcp_f32", o[p][18], o[p][18])
        for p in range(2):
            for i in (16, 17): I("v_mul_f32", o[p][i], o[p][i], o[p][18])
        for p in range(2):
            I("v_cvt_pk_bf16_f32", OF[("L", 0, p)][0], o[p][16], o[p][17])
            ostore(("L", 0, p))
    def fin_tile(t, packed):
        for p in range(2):
            if packed:
                for i in (4 * t, 4 * t + 2): I("v_pk_mul_f32", o[p][i:i + 2], o[p][i:i + 2], o[p][18:20], mods="op_sel:[0,0] op_sel_hi:[1,0]")
            else:
                for i in range(4 * t, 4 * t + 4): I("v_mul_f32", o[p][i], o[p][i], o[p][18])
            for h in range(2):
                I("v_cvt_pk_bf16_f32", OF[(0, p, t // 2)][2 * (t & 1) + h], o[p][4 * t + 2 * h], o[p][4 * t + 2 * h + 1])
            if t & 1: ostore((0, p, t // 2))
    rfchk = check_or_retry("rf" + path, lambda: I("v_xor_b32", vCK, sRV, RF), lambda: I("v_cmp_lt_u32", "vcc", 15, vCK), rf_load)
    rfchk += [cap(lambda: I("v_cmp_ne_u32", s(50, 2), 0, vCK))]
    fill = at(0, rfchk)
    fill += spread(singles(cap(fin_den)), NJ + 2, 2 * NJ + 1)
    for t in range(3): fill += spread(singles(cap(lambda: fin_tile(t, False))), (2 + t) * NJ + 1 + (1 if B else 0), (3 + t) * NJ + 1)
    pipe.emit(fill, lead=olead)
    fst("omm")
    fin_tile(3, True)
    I("s_cmp_lg_u64", s(50, 2), 0)
    I("s_cbranch_scc1", "L_far" + path)
    P.label("L_near" + path)
    def far():
        P.label("L_far" + path)
        for key in keys[:4] + [("L", 0, 0), ("L", 0, 1)]: ostore(key, " sc1")
        wait(vm=0)
        I("buffer_store_dword", vRV, vRA, SWS, sRF, mods="offen offset:32 sc1")
        I("s_mov_b32", sCNT, 0)
        P.label("L_farp" + path)
        I("buffer_load_dword", vCK, T[4], SWS, sRF, mods="offen offset:32 sc1")
        wait(vm=0)
        I("v_xor_b32", vCK, sRV, vCK)
        I("v_cmp_lt_u32", "vcc", 15, vCK)
        I("s_add_u32", sCNT, sCNT, 1)
        I("s_cmp_gt_u32", sCNT, SPIN)
        I("s_cbranch_scc1", "L_near" + path)
        I("s_cbranch_vccnz", "L_farp" + path)
        I("s_branch", "L_near" + path)
    SLOW.append(cap(far))
    stamp("pubO")

    def oload(u):
        for X in (1, 0):
            for p in (1, 0):
                I("buffer_load_dwordx4", OF[(u, p, X)], vL16, SWS, sOU[u], mods="offen offset:%d sc1" % (p * 2048 + X * 1024))
        for p in range(2):
            I("buffer_load_dword", OF[("L", u // 4, p)][u % 4], vL4, SWS, sOU[u], mods="offen offset:%d sc1" % (p * 256))
    def bf(ks, p):
        if ks < 16: return OF[(ks // 2, p, ks & 1)]
        return OF[("L", ks - 16, p)]
    offs = lambda ks: ((ks // 2) % 6) * 9216 + (ks & 1) * 144
    vW1, vW2, vW3, vRD = vIW, vVW, vAM, vAL
    vST = [vP2, vPSA, vKB0, vKB2, vP1]
    def out_addr():
        I("s_add_u32", sT0, sMQ, OUTB)
        I("v_mul_u32_u24", T[0], 144, vN); I("v_add_u32", T[0], sT0, T[0])
        I("v_mul_u32_u24", T[1], 40, vGL); I("v_add_u32", vW1, T[0], T[1])
        I("v_lshrrev_b32", T[4], 1, vGL)
        I("v_lshlrev_b32", T[2], 5, T[4]); I("v_sub_u32", vW2, vW1, T[2])
        I("v_mul_u32_u24", T[3], 72, T[4]); I("v_add_u32", vW3, T[0], T[3])
        I("v_add_u32", vRD, sT0, vL16)
        I("s_movk_i32", sT1, 2304 - 144)
        for i in range(5):
            t = vM
            if i:
                I("v_add_u32", T[3], Q0[i] * 7282, vM); t = T[3]
            I("v_lshrrev_b32", T[0], 16, t)
            I("v_mad_u32_u24", vST[i], T[0], sT1, vL16)
    NPRE = OPT["npre"]
    wait_vm("WO8")
    I("s_barrier")
    stamp("ackO")
    I("s_mov_b32", sT2, 0)
    P.label("L_redo" + path)
    g = []
    for u in range(1, NPRE + 1): g += tagged(singles(cap(lambda: oload(u))), "O%d" % u)
    if OPT["j3"]:
        def preread():
            rebase(WO6 - WO0)
            for ks in range(18 - OPT["npf"], 18):
                for t in range(5): tile_read(a(100 + ((ks - (18 - OPT["npf"])) * 5 + t) * 4, 4), t, offs(ks))
            rebase(WO0 - WO6)
        emit_groups(weave(singles(cap(preread)), g))
        fill = []
    else:
        fill = spread(g, 0, 7)
    def ochk(u):
        regs = [OF[(u, 0, 1)][3], OF[(u, 1, 1)][3], OF[(u, 1, 0)][3]]
        return [cap(lambda: wait_vm("O%d" % u))] + check_sent("o%d%s" % (u, path), vCK, regs, lambda: oload(u))
    for u in range(0, 7):
        b0 = u * 10
        blk = spread(ochk(u + 1), b0 + 6, b0 + 6)
        if u and u + NPRE <= 7: blk += spread(tagged(singles(cap(lambda: oload(u + NPRE))), "O%d" % (u + NPRE)), b0, b0 + 10)
        fill += sorted(blk, key=lambda t: t[0])
    NPF = OPT["npf"] if OPT["j3"] else 0
    assert NPF in (0, 2, 4, 6)
    WF = lambda ks, t: a(100 + ((ks - (18 - NPF)) * 5 + t) * 4, 4)
    OUTR = [OF[(1 + t // 2, p, 0)][2 * (t & 1):2 * (t & 1) + 2] for p in range(2) for t in range(5)]
    OB = [OF[(1, 0, 1)], OF[(1, 1, 1)], OF[(2, 0, 1)], OF[(2, 1, 1)], OF[(3, 0, 1)]]
    fl = ["", " sc1", " nt", " sc0 sc1"][OPT["outflag"]]
    def ocvt(p):
        for t in range(5):
            r_ = OUTR[5 * p + t]
            for h in range(2): I("v_cvt_pk_bf16_f32", r_[h], ACK[p][t][2 * h], ACK[p][t][2 * h + 1])
            ad, off = (vW1, 8 * t) if t < 3 else ((vW2, 24) if t == 3 else (vW3, 32))
            I("ds_write_b64", ad, r_, mods="offset:%d" % (off + p * 2304))
    def ord_(i): I("ds_read_b128", OB[i], vRD, mods="offset:%d" % (16 * Q0[i]))
    def ost(i):
        if i == 0: I("s_mov_b32", "exec_hi", 0)
        I("buffer_store_dwordx4", OB[i], vST[i], SOUT, sOUTB, mods="offen offset:%d%s" % (16 * Q0[i], fl))
        if i == 0: I("s_mov_b32", "exec_hi", -1)
    def nanchk(regs, back):
        I("v_cmp_u_f32", "vcc", regs[0], regs[1])
        I("s_cbranch_vccnz", "L_again%s" % back + path)
        P.label("L_done%s" % back + path)
        def again():
            P.label("L_again%s" % back + path)
            I("s_add_u32", sT2, sT2, 1)
            I("s_cmp_gt_u32", sT2, 200)
            I("s_cbranch_scc1", "L_done%s" % back + path)
            wait(vm=0, lgkm=0)
            if NPF < 6: rebase(WO0 - WO6)
            I("s_nop", 7)
            I("s_branch", "L_redo" + path)
        SLOW.append(cap(again))
    if NPF:
        nb = (18 - NPF) * 5
        half = NPF * 5 // 2
        def extra(pipe):
            for p in range(2):
                ms = [(ks, t) for ks in range(18 - NPF, 18) for t in range(5)]
                for i in range(0, len(ms), 2):
                    pipe.add(lambda: None, lambda: [mfma(ACK[p][t], WF(ks, t), bf(ks, p), ACK[p][t]) for ks, t in ms[i:i + 2]])
        fill = [((nb + (t_ - nb) // 2 - 2) if t_ > nb else t_, g) for t_, g in fill]
        fill += spread(singles(cap(out_addr)), 42, 56)
        tail0 = [cap(lambda: nanchk((ACK[0][0][0], ACK[0][1][0]), "0"))] + singles(cap(lambda: ocvt(0))) + singles(cap(lambda: (ord_(0), ord_(1))))
        fill += spread(tail0, nb + half + 2, nb + half + 8)
        fill += [(nb + half + 11, cap(lambda: (wait(lgkm=0), ost(0)))), (min(89, nb + half + 13), cap(lambda: ost(1)))]
        fill.sort(key=lambda t: t[0])
        gemm2(bf, offs, {12: WO6 - WO0}, fill, "o", nks=18 - NPF, extra=extra)
        stamp("ogemm")
        nanchk((ACK[1][0][0], ACK[1][1][0]), "1")
        ocvt(1)
        for i in (2, 3, 4): ord_(i)
        for i in (2, 3, 4):
            wait(lgkm=4 - i); ost(i)
    else:
        fill += spread(singles(cap(out_addr)), 70, 88)
        gemm2(bf, offs, {12: WO6 - WO0}, fill, "o")
        stamp("ogemm")
        nanchk((ACK[0][0][0], ACK[1][0][0]), "1")
        ocvt(0); ocvt(1)
        for i in range(5): ord_(i)
        for i in range(5):
            wait(lgkm=4 - i); ost(i)
    if B:
        I("s_or_b32", sT0, sSL, sG)
        I("s_cmp_lg_u32", sT0, 0)
        I("s_cbranch_scc1", "L_noep" + path)
        I("v_mov_b32", T[0], WS_E); I("v_mov_b32", T[1], sE)
        I("buffer_store_dword", T[1], T[0], SWS, 0, mods="offen")
        P.label("L_noep" + path)
    if OPT["stamps"]:
        stamp("stiss")
        if B: P.label("L_fin")
        OPT["mute"] = 0
        wait(vm=0)
        stamp("end")
        I("s_memrealtime", s(100, 2))
        wait(lgkm=0)
        if OPT["fine"]:
            for k, nm in enumerate(OPT["fine"].split(",")):
                stamp_names.append(nm); STAMPS[k] = s(4 + 2 * k)
        n = len(stamp_names)
        for k in range(n):
            if OPT["lite"] and k != OPT["amp"] and k != n - 1: continue
            assert OPT["lite"] or n <= 17
            I("s_sub_u32", STAMPS[k], STAMPS[k], s(96 if (OPT["lite"] == 2 or OPT["rt"]) else 98))
            I("v_mov_b32", v(64 + k), STAMPS[k])
        I("v_mov_b32", v(64 + 28), sT2); I("v_mov_b32", v(64 + 29), s(3))
        I("v_mov_b32", v(64 + 30), s(96)); I("v_mov_b32", v(64 + 31), s(100))
        I("s_lshl_b32", sT0, s(2), 2); I("s_add_u32", sT0, sT0, sWV); I("s_lshl_b32", sT0, sT0, 7); I("s_add_u32", sT0, sT0, WS_ST)
        I("v_mov_b32", T[0], 0)
        I("s_mov_b64", "exec", 1)
        for q in range(8):
            I("buffer_store_dwordx4", v(64 + 4 * q, 4), T[0], SWS, sT0, mods="offen offset:%d" % (16 * q))
        if OPT["amp"] >= 0 and OPT["ampsel"] in (0, 2 if B else 1):
            I("s_lshl_b32", sT2, STAMPS[OPT["amp"]], 3)
            I("s_add_u32", sT2, sT2, STAMPS[n - 1])
            P.label("L_amp" + path)
            I("s_memrealtime" if OPT["lite"] == 2 else "s_memtime", s(100, 2)); wait(lgkm=0)
            I("s_sub_u32", sT1, s(100), s(96 if OPT["lite"] == 2 else 98))
            I("s_cmp_lt_u32", sT1, sT2)
            I("s_cbranch_scc1", "L_amp" + path)

HEADER = open("cdna_kernels/%s.s.ref" % NAME).read().split("; Override launch")[0]

def wrap(body):
    txt = HEADER + "; @launch grid=(256,1,1) block=(256,1,1) lds=%d\n" % LDS_BYTES
    txt += "; stamps: %s\n" % ",".join(stamp_names) if stamp_names else ""
    txt += '.amdgcn_target "amdgcn-amd-amdhsa--gfx950"\n.text\n.globl %s_kernel\n.p2align 12\n.type %s_kernel,@function\n' % (NAME, NAME)
    txt += ".set CODE_SPAN, (L_last - %s_kernel - 128) & 0xffffff80\n" % NAME
    txt += ".set HEAD_LINES, ((L_tailB - %s_kernel) >> 7) + 8\n.set A_SHIFT, (L_tailA - L_tailB - 2048) & 0xffffff80\n" % NAME
    txt += "%s_kernel:\n%s\n" % (NAME, body)
    txt += """.section .rodata,"a"
.p2align 6
.amdhsa_kernel %s_kernel
  .amdhsa_next_free_vgpr 512
  .amdhsa_next_free_sgpr 102
  .amdhsa_accum_offset 256
  .amdhsa_group_segment_fixed_size 0
  .amdhsa_kernarg_size 80
  .amdhsa_user_sgpr_count 2
  .amdhsa_user_sgpr_kernarg_segment_ptr 1
  .amdhsa_system_sgpr_workgroup_id_x 1
.end_amdhsa_kernel
""" % NAME
    return txt

def main(out):
    build()
    txt = P.finalize2(wrap)
    open(out, "w").write(txt)
    print("wrote", out, "hazard nops:", P.nops, "align fixes:", P.fixes, "bytes:", P.bytes, "touch points:", P.points)

if __name__ == "__main__":
    out = sys.argv[1]
    for kv in sys.argv[2:]:
        k, val = kv.split("=")
        assert k in OPT, k
        OPT[k] = val if k in ("stop", "fine") else int(val)
    main(out)
```

```python
import sys, struct
from asmdsl import *

NAME = "concat_heads__linear_attn_block__linear_kernel_hedgehog__prompt"
OPT = dict(stamps=0, nphase=6, amp=-1, ampsel=0, lite=0, outflag=2, oflag=0, wb=0, rs_at=36, rs_chk=54, rs_len=18, ag_frac=64, ag_fracA=90, dA=4, npre=3, t0=16, t1=36, pw=0, pfo=0, pfq=0, wdn=8, pfx=0, perm=0, gord=1, xo=2, zv=1, s1m=0, ex=0, snake=0, pois0=0, j1=1, j2=0, j3=1, j4=0, psp=3, w0=3, qd=4, od=4, nq=26, rec=0, forcefb=0, peB=0, peA=0, pf2=0, nowa=0, apo=150, apq=0, apx=0, ars=1, rb_at=50, rb_chk=68, rf_at=48, bfirst=0, rb_len=14, npf=6, agc=86, agb=93, xsh=0, swap07=1,
           stop="", p1st=0, touch=1, fine="", itouch=1, rt=0)

def f2u(x): return struct.unpack("<I", struct.pack("<f", x))[0]
LOG2E = 1.4426950408889634

XSLOT = 16384
WSL = 49152; WSLOT = 18432
WQ0 = 104448
WQ6 = 76800
PHI = 104448
ZERO = 159744
IMG = 0
IR = 80
VF = 40960
KVI = 61440
WO0 = 0
WO6 = 104448
OUTB = 76800
LDS_BYTES = 163840
PGRP = 48 * 4096
WS_F = 0x300000; WS_E = 0x380000; WS_R = 0x390000; WS_O = 0x400000; WS_ST = 0x900000; WS_BYTES = 0xA00000
OOB = 0x7ffffff0
SPIN = 30000
Q0 = [0, 32, 96, 160, 224]
WSTEP = 64 * 3456

SX, SW, SWO, SWS, SOUT, SPHI = s(24, 4), s(28, 4), s(32, 4), s(36, 4), s(40, 4), s(48, 4)
sL0, sL1, sL2, sL3 = s(44), s(45), s(46), s(47)
sA, sRT, sG, sWV = s(52), s(53), s(54), s(55)
sOQ, sOX, sOW = s(56), s(57), s(58)
s1152 = s(59)
sMX, sMW = s(60), s(61)
sT0, sT1, sT2, sT3 = s(62), s(63), s(64), s(65)
sSL = s(66)
sROT = s(67)
sPME, sRSB, sRF, sOB = s(68), s(69), s(70), s(71)
sCNT = s(72)
sFSL = s(73)
sC = s(74, 2)
sEPS = s(76, 2)
sODD = s(78, 2)
sMQ = s(80)
sOO = s(81)
sPC = s(82, 2)
sTAG, sMSK = s(82), s(83)
sOU = [s(84 + u) for u in range(8)]
sAG = s(92)
sO8 = s(93)
sOUTB = s(94)
sE = s(95)
sM8 = s(20); sQ8 = s(21); sPM2 = s(22); sPM3 = s(23)
sG144 = s(48); sRV = s(49); sQE = s(50); sOE = s(51)
STAMPS = [s(3 + i % 17) for i in range(28)]

vL = v(0)
T = [v(i) for i in range(1, 10)]
vOX = [v(10 + i) for i in range(4)]
vOW = [v(14 + i) for i in range(5)]
vXR = [v(19), v(20)]
vTR = [[v(21 + 2 * p + e) for e in range(2)] for p in range(5)]
vOQ = [v(31 + i) for i in range(5)]
vOO = [v(36 + i) for i in range(5)]
vO8 = [v(41 + i) for i in range(5)]
vL16 = v(46)
vGL, vN = v(47), v(48)
vM, vPSA, vKB0, vKB2, vFS, vL4, vIW, vVW, vAM, vAL, vP1 = [v(49 + i) for i in range(11)]
vP2, vP3, vAG1, vAG2 = v(60), v(61), v(62), v(63)
ACK = [[v(64 + 20 * p + 4 * t, 4) for t in range(5)] for p in range(2)]
ACV = [[v(104 + 20 * p + 4 * t, 4) for t in range(5)] for p in range(2)]
RING = [v(144 + 4 * i, 4) for i in range(8)]
KB = [v(176 + 12 * p, 12) for p in range(2)]
PH = [v(200 + 20 * p, 20) for p in range(2)]
TMP = v(144, 24)
PW = v(240, 3); M1 = v(244, 4); PA = v(248, 3); vR, vC = v(251), v(252)
vPH = [v(243), v(253), v(254)]
def XF(ks, p): return a(ks * 8 + p * 4, 4)
def PHIF(t, j): return a(144 + (t * 3 + j) * 4, 4)
def PSIF(t, j): return a((t * 5 + j) * 4, 4)

P = Prog()
I = P.I
cap = P.capture
stamp_names = []
def fst(name):
    names = OPT["fine"].split(",")
    if name in names:
        k = names.index(name)
        I("s_memrealtime" if OPT["rt"] else "s_memtime", s(4 + 2 * k, 2), c="fine " + name)
def stamp(name):
    if OPT["fine"]:
        fst(name)
    elif OPT["stamps"] and not OPT.get("mute"):
        k = len(stamp_names); stamp_names.append(name)
        real = True
        if OPT["lite"]:
            real = (k == OPT["amp"] or name == "end")
            if real: STAMPS[k] = s(5) if name == "end" else (s(4) if k else s(3))
        if real:
            I("s_memrealtime" if OPT["lite"] == 2 else "s_memtime", s(100, 2), c="stamp " + name)
            I("s_waitcnt", "lgkmcnt(0)")
            I("s_mov_b32", STAMPS[k], s(100))
    if OPT["stop"] == name:
        I("s_branch", "L_fin"); OPT["mute"] = 1

def wait(vm=None, lgkm=None):
    t = []
    if vm is not None: t.append("vmcnt(%d)" % vm)
    if lgkm is not None: t.append("lgkmcnt(%d)" % lgkm)
    I("s_waitcnt", " ".join(t))
def wait_vm(tag, lgkm=None): P.items.append(VmWait(tag, lgkm))
def tagged(groups, tag):
    for g in groups:
        for x in g:
            if isinstance(x, Ins) and x.kind == "vmem": x.tag = tag
    return groups
def mark(items, **kw):
    for x in items:
        if isinstance(x, Ins):
            for k, val in kw.items(): setattr(x, k, val)
    return items

def srd(dst, lo, hi, size):
    I("s_mov_b32", dst[0], lo); I("s_mov_b32", dst[1], hi)
    I("s_mov_b32", dst[2], size); I("s_mov_b32", dst[3], 0x20000)
def singles(items): return [[x] for x in items]
def emit_groups(groups):
    for g in groups: P.put(g)

def dma5(voffs, srdreg, soff, m0base, m0imm):
    def first():
        I("s_add_u32", "m0", m0base, m0imm)
        I("s_mov_b32", "exec_hi", 0)
        I("buffer_load_dwordx4", voffs[0], srdreg, soff, mods="offen lds")
        I("s_mov_b32", "exec_hi", -1)
    g = [cap(first)]
    for i in range(1, 5):
        g += singles(cap(lambda: I("buffer_load_dwordx4", voffs[i], srdreg, soff, mods="offen offset:%d lds" % (16 * Q0[i]))))
    return g

PERMS = {
    1: (3, [[7, 3, 6, 1, 8, 4, 2, 0, 5], [1, 3, 7, 2, 4, 8, 6, 0, 5], [3, 8, 1, 6, 2, 7, 0, 4, 5]]),
    2: (4, [[4, 0, 1, 5, 6, 2, 8, 7, 3], [4, 1, 5, 2, 7, 0, 6, 8, 3], [1, 4, 6, 7, 0, 2, 3, 5, 8], [4, 6, 1, 7, 3, 0, 5, 2, 8]]),
    3: (3, [[0, 1, 2, 3, 4, 5, 6, 7, 8], [1, 2, 0, 4, 5, 3, 7, 8, 6], [2, 0, 1, 5, 3, 4, 8, 6, 7]]),
    4: (8, [[3, 7, 5, 0, 8, 1, 4, 2, 6], [3, 5, 0, 4, 7, 6, 1, 8, 2], [5, 7, 4, 2, 0, 8, 3, 1, 6], [5, 3, 0, 8, 7, 2, 6, 1, 4], [3, 0, 4, 5, 8, 7, 6, 2, 1], [3, 5, 7, 0, 1, 2, 4, 8, 6], [7, 5, 2, 0, 4, 8, 6, 1, 3], [3, 4, 7, 0, 2, 1, 6, 8, 5]]),
    5: (3, [[0, 1, 2, 3, 4, 5, 6, 7, 8], [3, 4, 5, 6, 7, 8, 0, 1, 2], [6, 7, 8, 0, 1, 2, 3, 4, 5]]),
}
SBO = s(88, 4)
SBQ = s(12, 4)
SBX = s(76, 4)
sPM = s(22, 2)
sPQ = s(16, 2)
sXB0, sWB0, sXSH = s(84 + 1), s(84 + 2), s(84 + 3)
def stage_of(dst, src):
    I("s_and_b32", dst, src, 15)
    if OPT["xsh"]:
        I("s_add_u32", dst, dst, sXSH)
def stage_fix(dst):
    I("s_cmp_ge_u32", dst, 9)
    I("s_cselect_b32", sT1, 9, 0)
def perm_next():
    g = singles(cap(lambda: stage_of(sT0, sPM[0])))
    if OPT["xsh"]: g += [cap(lambda: stage_fix(sT0))] + singles(cap(lambda: I("s_sub_u32", sT0, sT0, sT1)))
    def f():
        I("s_lshr_b64", sPM, sPM, 4)
        I("s_lshl_b32", sOX, sT0, 7); I("s_add_u32", sOX, sOX, sXB0)
        I("s_mul_i32", sOW, sT0, WSTEP); I("s_add_u32", sOW, sOW, sWB0)
    return g + singles(cap(f))
def permq_next():
    g = singles(cap(lambda: stage_of(sT0, sPQ[0])))
    if OPT["xsh"]: g += [cap(lambda: stage_fix(sT0))] + singles(cap(lambda: I("s_sub_u32", sT0, sT0, sT1)))
    def f():
        I("s_lshr_b64", sPQ, sPQ, 8)
        I("s_mul_i32", sOQ, sT0, WSTEP); I("s_add_u32", sOQ, sOQ, sQE)
    return g + singles(cap(f))
def wraps_after(j):
    rots = {1: [0], 2: [0, 4], 3: [0, 3, 6], 4: [0, 2, 4, 6], 5: [0, 2, 5, 7], 8: list(range(8)), 6: list(range(9)), 7: list(range(9))}[OPT["nphase"]]
    return any(r + j == 8 for r in rots) and j < 8
def x_dma(j):
    g = singles(cap(lambda: I("s_add_u32", "m0", sMX, (j % 3) * XSLOT)))
    for i in range(4):
        g += singles(cap(lambda: I("buffer_load_dwordx4", vOX[i], SX, sOX, mods="offen offset:%d lds" % (1024 * i))))
    return tagged(g, "S%d" % j)
def w_dma(j):
    g = tagged(dma5(vOW, SW, sOW, sMW, (j % 3) * WSLOT), "S%d" % j)
    if j < 8 and OPT["perm"]:
        g += perm_next()
    elif j < 8:
        g += singles(cap(lambda: (I("s_add_u32", sOX, sOX, 128), I("s_add_u32", sOW, sOW, WSTEP))))
        if wraps_after(j):
            def wr():
                I("s_cmp_eq_u32", sROT, 8 - j)
                I("s_cselect_b32", sT0, 1152, 0); I("s_cselect_b32", sT1, 9 * WSTEP, 0)
            g.append(cap(wr))
            g += singles(cap(lambda: (I("s_sub_u32", sOX, sOX, sT0), I("s_sub_u32", sOW, sOW, sT1))))
    return g
def stage_dma(j): return x_dma(j) + w_dma(j)

def advance(reg, step, end, span):
    def a1():
        I("s_add_u32", reg, reg, step)
        I("s_cmp_ge_u32", reg, end)
        I("s_cselect_b32", sT0, span, 0)
    return [cap(a1)] + singles(cap(lambda: I("s_sub_u32", reg, reg, sT0)))
def wq_pair_dma(j):
    pos = (WQ0 + j * 9216) if j < 6 else (WQ6 + (j - 6) * 9216)
    if j == 8:
        return singles(cap(lambda: I("s_add_u32", sOQ, sOQ, sQ8))) + tagged(dma5(vOQ, SW, sOQ, sM8, pos), "WQ8")
    g = tagged(dma5(vOQ, SW, sOQ, sMQ, pos), "WQ%d" % j)
    g += permq_next() if OPT["perm"] else advance(sOQ, 2 * WSTEP, sQE, 9 * WSTEP)
    if j == 0 and OPT["perm"]: g = permq_next() + g
    return g
def wo_pair_dma(u):
    pos = (WO0 + u * 9216) if u < 6 else (WO6 + (u - 6) * 9216)
    g = tagged(dma5(vOO, SWO, sOO, sMQ, pos), "WO%d" % u)
    if OPT["nowa"] & 1: return [cap(lambda: I("s_nop", 0)) for _ in range(5)]
    if u < 6 and OPT["gord"]:
        def nx():
            I("s_add_u32", sT0, sOE, u + 1)
            I("s_cmp_ge_u32", sT0, sG)
            I("s_addc_u32", sT0, sT0, 0)
        g += [cap(nx)] + singles(cap(lambda: (I("s_mul_i32", sT0, sT0, 82944), I("s_add_u32", sOO, sT0, sO8))))
    elif u < 6: g += advance(sOO, 2 * 82944, sOE, 8 * 82944)
    return g
def only_waves01(groups, tag):
    def f():
        I("s_cmp_ge_u32", sWV, 2)
        I("s_cbranch_scc1", "L_skip_" + tag)
        for g in groups: P.put(mark(g, cond=True))
        P.label("L_skip_" + tag)
    return [cap(f)]

def tr(dst, addr, off):
    assert 0 <= off < 65536, off
    I("ds_read_b64_tr_b16", dst, addr, mods="offset:%d" % off)
def mfma(d, x, y, c): I("v_mfma_f32_16x16x32_bf16", d, x, y, c)
def tile_read(dstreg, T_, base_off):
    if T_ < 3: pat, o = 0, 8 * T_
    elif T_ == 3: pat, o = 1, 0
    elif T_ == 4: pat, o = 2, 0
    elif T_ < 9: pat, o = 3, 144 + 8 * [0, 5, 9, 14][T_ - 5]
    else: pat, o = 4, 144
    for e in range(2):
        tr(dstreg[2 * e:2 * e + 2], vTR[pat][e], base_off + o)

class Pipe:
    def __init__(self, dist=4, grp=2):
        self.units = []; self.dist = dist; self.grp = grp; self.hooks = {}
    def add(self, rd, work, pre=None, rt=None):
        k = len(self.units)
        wk = cap(work)
        if OPT["snake"] and k & 1 and self.grp == 2: wk = wk[::-1]
        self.units.append((cap(rd), wk, cap(pre) if pre else None, k - self.dist if rt is None else rt))
    def emit(self, fill=(), bulk=(), lead=()):
        fill = list(fill); bulk = list(bulk)
        U = self.units; n = len(U)
        seq = []
        state = dict(done=0)
        def put(items, owner=-1):
            for x in items:
                if isinstance(x, Ins) and x.kind == "ds": seq.append(owner)
                if isinstance(x, Ins) and x.op == "s_waitcnt" and ("lgkmcnt(0)" in x.args[0] or getattr(x, "lgkm", None) == 0): state["done"] = len(seq)
            P.put(items)
        def need_wait(k):
            last = max([i for i, o in enumerate(seq) if o == k] + [-1])
            return last >= state["done"]
        byt = {}
        for k, u in enumerate(U): byt.setdefault(max(u[3], -1), []).append(k)
        for k in byt.get(-1, []): put(U[k][0], k)
        put(list(lead))
        while bulk and bulk[0][0] < 0: put(bulk.pop(0)[1])
        def take(k):
            if fill and fill[0][0] <= k: put(fill.pop(0)[1]); return True
            if bulk and bulk[0][0] <= k + 6: put(bulk.pop(0)[1]); return True
            return False
        for k in range(n):
            if k in self.hooks: put(self.hooks[k])
            if U[k][2]: put(U[k][2])
            if need_wait(k):
                want = [q for q in range(k, min(n, k + self.grp)) if U[q][3] < k - 1 or q == k]
                last = max(i for i, o in enumerate(seq) if o in want)
                later = len(seq) - 1 - last
                assert later <= 15, later
                wait(lgkm=later); state["done"] = last + 1
            nxt = [(x, q) for q in byt.get(k, []) for x in U[q][0]]
            half = (len(nxt) + 1) // 2
            w = U[k][1]
            P.put([w[0]])
            for x, q in nxt[:half]: put([x], q)
            for _ in range(max(0, 2 - half)): take(k)
            P.put(w[1:])
            for x, q in nxt[half:]: put([x], q)
            rest = len(nxt) - half + (1 if (k + 1 < n and need_wait(k + 1)) else 0) + (2 if k + 1 in self.hooks else 0)
            for _ in range(max(0, 2 - rest)): take(k)
            while fill and fill[0][0] <= k - 3: put(fill.pop(0)[1])
            while bulk and bulk[0][0] <= k: put(bulk.pop(0)[1])
        for _, g in fill + bulk: put(g)

def vm_only(groups):
    if groups[0][0].op == "s_nop": return groups
    out = []
    for g in groups:
        if any(x.kind == "vmem" for x in g) or not out: out.append(list(g))
        else: out[-1] += g
    return out
def weave(a_, b_):
    out = []; na, nb = len(a_), len(b_); i = j = 0
    while i < na or j < nb:
        if j >= nb or (i < na and i * nb <= j * na): out.append(a_[i]); i += 1
        else: out.append(b_[j]); j += 1
    return out
def at(unit, groups): return [(unit + i * 2 // 3, g) for i, g in enumerate(groups)]
def spread(groups, first, last):
    n = len(groups)
    return [(first + (last - first) * i // max(1, n), g) for i, g in enumerate(groups)]
def merge(main, extra, start=0, step=2):
    out = []; extra = list(extra)
    for i, x in enumerate(main):
        out.append(x)
        if extra and i >= start and (i - start) % step == step - 1: out += extra.pop(0)
    for g in extra: out += g
    return out

def sm_head(src18, tmp, both=None):
    if both is None: both = not OPT["rec"]
    mx, mn = tmp[18], tmp[19]
    if both:
        I("v_max3_f32", mx, src18[0], src18[1], src18[2]); I("v_min3_f32", mn, src18[0], src18[1], src18[2])
        for i in range(3, 17, 2):
            I("v_max3_f32", mx, mx, src18[i], src18[i + 1]); I("v_min3_f32", mn, mn, src18[i], src18[i + 1])
        I("v_max_f32", mx, mx, src18[17]); I("v_min_f32", mn, mn, src18[17])
        I("v_mul_f32", tmp[20], sC[0], mx); I("v_mul_f32", tmp[21], sC[0], mn)
    else:
        I("v_max3_f32", mx, src18[0], src18[1], src18[2])
        for i in range(3, 17, 2): I("v_max3_f32", mx, mx, src18[i], src18[i + 1])
        I("v_max_f32", mx, mx, src18[17])
        I("v_mul_f32", tmp[20], sC[0], mx)
def sm_mid(src18, tmp, both):
    ab = tmp[20:22]
    for i in range(0, 18, 2):
        if both: I("v_pk_fma_f32", tmp[i:i + 2], src18[i:i + 2], sC, ab, mods="op_sel:[0,0,1] op_sel_hi:[1,1,1] neg_lo:[1,0,0] neg_hi:[1,0,0]")
        I("v_pk_fma_f32", src18[i:i + 2], src18[i:i + 2], sC, ab, mods="op_sel:[0,0,0] op_sel_hi:[1,1,0] neg_lo:[0,0,1] neg_hi:[0,0,1]")
    sp, sn = tmp[18:20], tmp[20:22]
    for i in range(0, 18, 2):
        if both:
            for h in range(2):
                I("v_exp_f32", src18[i + h], src18[i + h]); I("v_exp_f32", tmp[i + h], tmp[i + h])
        else:
            for h in range(2): I("v_exp_f32", src18[i + h], src18[i + h])
            for h in range(2): I("v_rcp_f32", tmp[i + h], src18[i + h])
        if i == 4:
            I("v_pk_add_f32", sp, src18[0:2], src18[2:4]); I("v_pk_add_f32", sn, tmp[0:2], tmp[2:4])
        elif i > 4:
            I("v_pk_add_f32", sp, sp, src18[i - 2:i]); I("v_pk_add_f32", sn, sn, tmp[i - 2:i])
    I("v_pk_add_f32", sp, sp, src18[16:18]); I("v_pk_add_f32", sn, sn, tmp[16:18])
    rr = tmp[22:24]
    I("v_add_f32", rr[0], sp[0], sp[1]); I("v_add_f32", rr[1], sn[0], sn[1])
def sm_tail(src18, out18, tmp, p=0, tag=""):
    sm_mid(src18, tmp, not OPT["rec"])
    rr = tmp[22:24]
    if OPT["rec"]:
        lab = "%s%d" % (tag, p)
        I("v_cmp_ngt_f32", "vcc", f2u(2.0 ** 60) if not OPT["forcefb"] else f2u(64.0), rr[1])
        I("s_cbranch_vccnz", "L_smx" + lab)
        P.label("L_smb" + lab)
        def fb():
            P.label("L_smx" + lab)
            I("s_nop", 1)
            for j in range(3):
                for t in range(5):
                    mfma(ACK[p][t], PHIF(t, j), KB[p][4 * j:4 * j + 4], 0 if j == 0 else ACK[p][t])
            sm_head(src18, tmp, True); sm_mid(src18, tmp, True)
            I("s_branch", "L_smb" + lab)
        RARE.append(cap(fb))
    I("v_rcp_f32", rr[0], rr[0]); I("v_rcp_f32", rr[1], rr[1])
    def el(d): return (src18[2 * d:2 * d + 2], "op_sel:[0,0] op_sel_hi:[1,0]") if d < 9 else (tmp[2 * (d - 9):2 * (d - 9) + 2], "op_sel:[0,1] op_sel_hi:[1,1]")
    for d in range(0, 18, 2):
        for h in range(2): I("v_pk_mul_f32", el(d + h)[0], el(d + h)[0], rr, mods=el(d + h)[1])
        for h in range(2): I("v_cvt_pk_bf16_f32", out18[d + h], el(d + h)[0][0], el(d + h)[0][1])

SLOW = []
RARE = []
ACC = [v(64 + 20 * p, 20) for p in range(2)]
def cv(p):
    I("v_cndmask_b32", ACC[p][16], ACC[p][16], ACC[p][18], sODD)
    I("v_cndmask_b32", ACC[p][17], ACC[p][17], ACC[p][19], sODD)
    for i in range(9): I("v_cvt_pk_bf16_f32", KB[p][i], ACC[p][2 * i], ACC[p][2 * i + 1])

def chase(body, groups):
    out = []; groups = list(groups)
    lastdef = {}
    for i, x in enumerate(body):
        if isinstance(x, Ins):
            for r in x.defs: lastdef[r] = i
    pos = {}
    for g in groups:
        p_ = max([lastdef.get(r, -1) for x in g for r in x.uses] + [-1])
        pos.setdefault(p_, []).append(g)
    for g in pos.get(-1, []): out += g
    for i, x in enumerate(body):
        out.append(x)
        for g in pos.get(i, []): out += g
    return out

def evenly(lst, groups, lo=0, hi=100):
    out = []; groups = list(groups); n = len(lst); m = len(groups)
    pos = [n * lo // 100 + (n * (hi - lo) // 100) * i // max(1, m) for i in range(m)]
    for i, x in enumerate(lst):
        out.append(x)
        if i + 1 < n and (isinstance(lst[i + 1], Label) or lst[i + 1].op.startswith("s_cbranch")): continue
        while groups and pos[0] <= i:
            out += groups.pop(0); pos.pop(0)
    for g in groups: out += g
    return out

def feature_map(path, tag, cv_done, shadow, mid0, mid1, after_p):
    if path == "B":
        def mm(p):
            for j in range(3):
                for t in range(5):
                    mfma(ACK[p][t], PHIF(t, j), KB[p][4 * j:4 * j + 4], 0 if j == 0 else ACK[p][t])
        body = [] if cv_done else cap(lambda: cv(0))
        sh = ([] if cv_done else singles(cap(lambda: cv(1)))) + list(shadow)
        head0 = singles(cap(lambda: sm_head(ACC[0][0:18], TMP)))
        ms = cap(lambda: (mm(0), mm(1)))
        for i, x in enumerate(ms):
            body.append(x)
            if i == (24 if OPT["rec"] else 19): sh = head0 + sh
            k = 0
            while sh and k < 2:
                g = sh.pop(0); body += g; k += len(g)
        for g in sh: body += g
        body += cap(lambda: fst(tag + "mm"))
        body += evenly(cap(lambda: sm_tail(ACC[0][0:18], PH[0][0:18], TMP, 0, tag)), *mid0)
        body += cap(lambda: fst(tag + "t0"))
        t1 = cap(lambda: (sm_head(ACC[1][0:18], TMP), sm_tail(ACC[1][0:18], PH[1][0:18], TMP, 1, tag)))
        t1 = evenly(t1, after_p(0), 2, 66)
        t1 = evenly(t1, *mid1)
        body += chase(t1, after_p(1))
    else:
        def pa(p):
            x = ACC[p]
            if not cv_done:
                I("v_cndmask_b32", x[16], x[16], x[18], sODD); I("v_cndmask_b32", x[17], x[17], x[19], sODD)
            for i in range(0, 18, 2): I("v_pk_mul_f32", TMP[i:i + 2], x[i:i + 2], sC)
            for d in range(9):
                for i in (2 * d, 2 * d + 1):
                    I("v_exp_f32", TMP[i], TMP[i], mods="clamp")
                    I("v_max_f32", x[i], 0, x[i])
                I("v_pk_add_f32", x[2 * d:2 * d + 2], x[2 * d:2 * d + 2], sEPS)
                I("v_pk_add_f32", x[2 * d:2 * d + 2], x[2 * d:2 * d + 2], TMP[2 * d:2 * d + 2])
                I("v_cvt_pk_bf16_f32", KB[p][d], x[2 * d], x[2 * d + 1])
        body = []
        for g in shadow: body += g
        body += cap(lambda: fst(tag + "mm"))
        body += chase(evenly(cap(lambda: pa(0)), *mid0), after_p(0))
        body += cap(lambda: fst(tag + "t0"))
        t1 = cap(lambda: pa(1))
        t1 = evenly(t1, *mid1)
        body += chase(t1, after_p(1))
    return body + cap(lambda: fst(tag + "t1"))

def umax(dst, regs):
    regs = list(regs)
    I("v_max3_u32", dst, regs[0], regs[1], regs[2]); regs = regs[3:]
    while len(regs) >= 2:
        I("v_max3_u32", dst, dst, regs[0], regs[1]); regs = regs[2:]
    if regs: I("v_max_u32", dst, dst, regs[0])

def check_or_retry(tag, fold, cmp_bad, loads):
    g = singles(cap(fold))
    def test():
        cmp_bad()
        I("s_cbranch_vccnz", "L_slow_" + tag)
        P.label("L_back_" + tag)
    g.append(cap(test))
    def slow():
        P.label("L_slow_" + tag)
        P.label("L_sp_" + tag)
        if OPT["stamps"] and not OPT["lite"]: I("s_add_u32", s(3), s(3), {"r": 1, "a": 0x100, "o": 0x10000}[tag[0]] if not tag.startswith("rf") else 0x1000000)
        loads()
        wait(vm=0)
        fold()
        cmp_bad()
        I("s_add_u32", sCNT, sCNT, 1)
        I("s_cmp_gt_u32", sCNT, SPIN)
        I("s_cbranch_scc1", "L_back_" + tag)
        I("s_cbranch_vccnz", "L_sp_" + tag)
        I("s_branch", "L_back_" + tag)
    SLOW.append(cap(slow))
    return g
def check_sent(tag, chk, regs, loads):
    return check_or_retry(tag, lambda: umax(chk, regs), lambda: I("v_cmp_eq_u32", "vcc", -1, chk), loads)
def check_tag(tag, chk, regs, loads):
    def fold():
        for r in regs: I("v_xor_b32", r, sTAG, r)
        I("v_or3_b32", chk, regs[0], regs[1], regs[2])
        for i in range(3, len(regs) - 1, 2): I("v_or3_b32", chk, chk, regs[i], regs[i + 1])
        I("v_or_b32", chk, chk, regs[-1])
        I("v_and_b32", chk, 0xff, chk)
    return check_or_retry(tag, fold, lambda: I("v_cmp_ne_u32", "vcc", 0, chk), loads)

def build():
    I("s_cmp_ge_u32", s(2), 256)
    I("s_cbranch_scc1", "L_end")
    if OPT["swap07"]:
        I("s_add_u32", sT0, s(2), 1); I("s_and_b32", sT0, sT0, 6)
        I("s_cselect_b32", sT0, 0, 7)
        I("s_xor_b32", s(2), s(2), sT0)
    I("s_bfe_u32", sA, s(2), 0x10002)
    I("s_cmp_lg_u32", sA, 0)
    I("s_cselect_b32", sT0, 0, 24)
    I("s_cselect_b32", sT1, 8, 32)
    I("s_cselect_b32", sT2, 16, 48)
    I("s_load_dwordx2", SX[0:2], s(0, 2), sT0)
    I("s_load_dwordx2", SW[0:2], s(0, 2), sT1)
    I("s_load_dwordx2", SWO[0:2], s(0, 2), sT2)
    I("s_load_dwordx2", SPHI[0:2], s(0, 2), 40)
    I("s_load_dwordx2", SOUT[0:2], s(0, 2), 56)
    I("s_load_dwordx2", SWS[0:2], s(0, 2), 72)
    if OPT["apo"]: I("s_load_dwordx2", SBO[0:2], s(0, 2), 48)
    if OPT["apq"]: I("s_load_dwordx2", SBQ[0:2], s(0, 2), 32)
    if OPT["apx"]: I("s_load_dwordx2", SBX[0:2], s(0, 2), 24)
    I("s_getpc_b64", sPC)
    I("s_and_b32", sT0, s(2), 0xf8)
    I("v_lshrrev_b32", T[0], 5, v(0))
    I("v_add_lshl_u32", T[1], T[0], sT0, 7)
    I("s_cmp_ge_u32", sT0, "HEAD_LINES")
    I("s_cselect_b32", sT1, sA, 0)
    I("s_mul_i32", sT1, sT1, "A_SHIFT")
    I("v_add_u32", T[1], sT1, T[1])
    I("v_min_u32", T[1], "CODE_SPAN", T[1])
    I("global_load_dword", v(255), T[1], sPC)
    if OPT["stamps"]:
        I("s_memtime", s(98, 2)); I("s_memrealtime", s(96, 2))
        if OPT["fine"]: I("s_mov_b32", s(3), 0)
    I("v_readfirstlane_b32", sWV, T[0])
    I("v_and_b32", vL, 63, v(0))
    I("s_and_b32", sT0, s(2), 3)
    I("s_lshr_b32", sT1, s(2), 6)
    I("s_lshr_b32", sWV, sWV, 1)
    I("s_lshl2_add_u32", sRT, sT0, sT1)
    I("s_bfe_u32", sG, s(2), 0x30003)
    if OPT["perm"]:
        K, tab = PERMS[OPT["perm"]]
        if OPT["xsh"]: I("s_mul_i32", sXSH, sT0, OPT["xsh"])
        if K == 8:
            I("s_lshl1_add_u32", sT0, sT1, sG); I("s_and_b32", sT0, sT0, 7)
        elif K == 4:
            I("s_add_u32", sT0, sG, sT1); I("s_and_b32", sT0, sT0, 3)
        else:
            I("s_add_u32", sT0, sG, sT1); I("s_mul_i32", sT1, sT0, 86); I("s_lshr_b32", sT1, sT1, 8)
            I("s_mul_i32", sT1, sT1, 3); I("s_sub_u32", sT0, sT0, sT1)
        lo = [sum(p[i] << (4 * i) for i in range(8)) for p in tab]
        I("s_mov_b32", sPM[0], lo[0])
        for k_ in range(1, K):
            I("s_cmp_eq_u32", sT0, k_); I("s_cselect_b32", sPM[0], lo[k_], sPM[0])
        I("s_lshl_b32", sT0, sT0, 2)
        I("s_lshr_b32", sPM[1], sum(p[8] << (4 * k_) for k_, p in enumerate(tab)), sT0)
        I("s_and_b32", sPM[1], sPM[1], 15)
        I("s_lshl_b32", sT0, sWV, 1); I("s_and_b32", sT0, sT0, 4)
        I("s_lshr_b64", sPQ, sPM, sT0)
        I("s_mov_b32", sROT, 0)
    elif OPT["nphase"] == 7:
        I("s_add_u32", sT1, sG, sT1)
        I("s_and_b32", sT1, sT1, 1)
        I("s_lshl2_add_u32", sROT, sT1, sT0)
        I("s_add_u32", sROT, sROT, sT1)
    elif OPT["nphase"] in (3, 6):
        if OPT["nphase"] == 6:
            I("s_cmp_eq_u32", sT0, 3); I("s_cselect_b32", sT2, 1, sT0)
        I("s_add_u32", sT0, sG, sT1)
        I("s_mul_i32", sT1, sT0, 86)
        I("s_lshr_b32", sT1, sT1, 8)
        I("s_mul_i32", sT1, sT1, 3)
        I("s_sub_u32", sT0, sT0, sT1)
        I("s_mul_i32", sROT, sT0, 3)
        if OPT["nphase"] == 6: I("s_add_u32", sROT, sROT, sT2)
    elif OPT["nphase"] == 4:
        I("s_add_u32", sT0, sG, sT1)
        I("s_and_b32", sT0, sT0, 3)
        I("s_lshl_b32", sROT, sT0, 1)
    elif OPT["nphase"] == 5:
        I("s_add_u32", sT0, sG, sT1)
        I("s_and_b32", sT0, sT0, 3)
        I("s_mul_i32", sT0, sT0, 5)
        I("s_lshr_b32", sROT, sT0, 1)
    elif OPT["nphase"] == 8:
        I("s_lshl1_add_u32", sT0, sT1, sG)
        I("s_and_b32", sROT, sT0, 7)
    elif OPT["nphase"] == 2:
        I("s_add_u32", sT0, sG, sT1)
        I("s_and_b32", sT0, sT0, 1)
        I("s_lshl_b32", sROT, sT0, 2)
    else:
        I("s_mov_b32", sROT, 0)
    I("s_lshl2_add_u32", sSL, sRT, sWV)
    I("s_mul_i32", sOX, sSL, 32 * 1152)
    I("s_lshl_b32", sT0, sROT, 7)
    I("s_add_u32", sOX, sOX, sT0)
    I("s_lshl_b32", sMX, sWV, 12)
    I("s_mul_i32", sMQ, sWV, 4608)
    I("s_add_u32", sMW, sMQ, WSL)
    I("s_movk_i32", s1152, 1152)
    I("v_lshrrev_b32", T[0], 3, vL)
    I("v_mul_u32_u24", T[0], s1152, T[0])
    I("v_lshrrev_b32", vGL, 4, vL)
    I("v_and_b32", T[1], 7, vL)
    I("v_xor_b32", T[1], T[1], vGL)
    I("v_lshl_add_u32", vOX[0], T[1], 4, T[0])
    I("v_xor_b32", vOX[1], 64, vOX[0])
    I("v_add_u32", vOX[2], 16 * 1152 - 2048, vOX[0])
    I("v_add_u32", vOX[3], 24 * 1152 - 3072, vOX[1])
    I("v_add_u32", vOX[1], 8 * 1152 - 1024, vOX[1])
    I("s_mov_b32", SX[2], 2048 * 1152); I("s_mov_b32", SX[3], 0x20000)
    I("s_mov_b32", SW[2], 576 * 3456); I("s_mov_b32", SW[3], 0x20000)
    I("s_mul_i32", sL3, sG, 144)
    I("s_lshl2_add_u32", sT0, sROT, sWV)
    I("s_mul_i32", sOW, sT0, 16 * 3456)
    I("s_add_u32", sOW, sOW, sL3)
    I("s_add_u32", sOW, sOW, s1152)
    if OPT["perm"]:
        I("s_mov_b32", sXB0, sOX); I("s_mov_b32", sWB0, sOW)
        emit_groups(perm_next())
    I("s_movk_i32", sL0, 3456); I("s_movk_i32", sL1, -144)
    I("v_lshlrev_b32", vL16, 4, vL)
    I("v_mul_u32_u24", vM, 7282, vL)
    DR = [v(64 + i) for i in range(5)]; DP = [v(70 + i) for i in range(5)]; DC = [v(76 + i) for i in range(5)]
    for i in range(5):
        t = vM
        if i:
            I("v_add_u32", T[0], Q0[i] * 7282, vM); t = T[0]
        I("v_lshrrev_b32", T[1], 16, t)
        I("v_lshrrev_b32", DR[i], 17, t)
        I("v_and_b32", DP[i], 1, T[1])
        I("v_mad_i32_i24", DC[i], T[1], sL1, vL16)
        if i == 2:
            I("v_lshrrev_b32", T[2], 1, DR[i]); I("v_and_b32", T[2], 4, T[2]); I("v_xor_b32", DR[i], DR[i], T[2])
        elif i > 2:
            I("v_xor_b32", DR[i], 4, DR[i])
        I("v_mad_u32_u24", T[2], DR[i], sL0, DC[i])
        I("v_mad_u32_u24", vOW[i], DP[i], s1152, T[2])
    for r_, z_ in ((SWO, 576 * 1152), (SPHI, 32 * 648), (SOUT, 2048 * 2304), (SWS, WS_BYTES)):
        I("s_mov_b32", r_[2], z_); I("s_mov_b32", r_[3], 0x20000)
    I("v_lshlrev_b32", vL4, 2, vL)
    I("s_lshl2_add_u32", sT2, sG, sWV); I("s_mul_i32", sT2, sT2, 648)
    I("s_lshl3_add_u32", sL2, sA, sG)
    I("s_lshl_b32", sAG, sL2, 14); I("s_add_u32", sAG, sAG, WS_F)
    I("s_sub_u32", sT0, 2, sA)
    I("s_min_u32", sT1, sWV, sT0); I("s_mul_i32", sT3, sRT, sT0); I("s_add_u32", sT3, sT3, sRT); I("s_add_u32", sRSB, sT1, sT3)
    I("s_lshl_b32", sT1, sRSB, 8); I("s_add_u32", sFSL, sAG, sT1)
    I("s_cmp_gt_u32", sWV, sT0)
    I("s_cselect_b32", sFSL, OOB, sFSL)
    I("s_lshl3_add_u32", sT0, sA, 0); I("s_and_b32", sT1, sRSB, 7); I("s_or_b32", sT0, sT0, sT1)
    I("s_cmp_eq_u32", sT0, 15)
    I("s_cselect_b32", sFSL, OOB, sFSL)
    I("s_subb_u32", sRSB, sRSB, 0)
    I("v_and_b32", vN, 15, vL)
    I("v_and_b32", T[7], 1, vGL)
    I("v_lshlrev_b32", T[0], 2, vGL); I("v_lshl_add_u32", T[0], vN, 4, T[0])
    I("v_lshl_or_b32", vFS, T[7], 30, T[0])
    I("s_mul_i32", sT0, sSL, 32 * 2304)
    I("s_add_u32", sT0, sT0, sL3)
    I("s_xor_b32", sT1, sA, 1); I("s_mul_i32", sT1, sT1, 1152); I("s_add_u32", sOUTB, sT0, sT1)
    I("s_lshl_b32", sT0, sA, 6); I("s_add_u32", sT0, sT0, sSL)
    I("s_lshl_b32", sRF, sT0, 7); I("s_add_u32", sRF, sRF, WS_R)
    if OPT["pois0"]:
        I("s_mul_i32", sOB, sT0, 8 * 4608); I("s_add_u32", sOB, sOB, WS_O)
        I("s_lshl_b32", sT0, sL3, 5); I("s_add_u32", sOU[0], sT0, sOB)
        for i in range(4): I("v_mov_b32", M1[i], -1)
        I("v_lshlrev_b32", v(92), 3, vL); I("v_add_u32", v(92), 4096, v(92))
    if OPT["apx"]:
        I("s_mul_i32", SBX[2], sA, 2048 * 1152); I("s_mov_b32", SBX[3], 0x20000)
        I("s_lshl3_add_u32", sCNT, sSL, sG); I("s_mul_i32", sCNT, sCNT, 4 * 1152)
        I("v_min_u32", v(93), 35, vL); I("v_lshlrev_b32", v(93), 7, v(93))
    I("v_lshlrev_b32", v(90), 20, vL)
    I("v_mov_b32", v(91), 0)
    I("s_mov_b32", sT0, WS_E)
    wait(lgkm=0)
    fst("karg")
    def extras():
        for i in range(3):
            I("buffer_load_dword", PW[i], vL4, SPHI, sT2, mods="offen offset:%d" % (256 * i))
        I("buffer_load_dword", v(255), v(91), SWS, sRF, mods="offen sc1")
        if OPT["touch"]:
            I("buffer_load_dword", v(255), v(90), SWS, 0, mods="offen")
            I("buffer_load_dword", v(255), v(91), SOUT, sOUTB, mods="offen")
            I("buffer_load_dword", v(255), v(91), SWO, sL3, mods="offen")
    def pois0():
        for i in range(4):
            I("buffer_store_dwordx4", M1, vL16, SWS, sOU[0], mods="offen offset:%d sc1" % (1024 * i))
        I("buffer_store_dwordx2", M1[0:2], v(92), SWS, sOU[0], mods="offen sc1")
    if OPT["pois0"] == 1: pois0()
    apx = lambda: I("buffer_load_dword", v(255), v(93), SBX, sCNT, mods="offen")
    if OPT["apx"] == 1: apx()
    emit_groups(x_dma(0))
    I("s_load_dword", sE, SWS[0:2], sT0)
    if OPT["xo"] == 0: extras()
    emit_groups(w_dma(0))
    if OPT["xo"] == 1: extras()
    if OPT["apx"] == 2: apx()
    def xpf():
        I("s_lshl3_add_u32", sT0, sRT, sG); I("s_lshl2_add_u32", sT0, sT0, sWV); I("s_mul_i32", sT0, sT0, 4 * 1152)
        I("v_min_u32", T[1], 35, vL); I("v_lshlrev_b32", T[1], 7, T[1])
        I("buffer_load_dword", v(255), T[1], SX, sT0, mods="offen")
    if OPT["pfx"] == 1: xpf()
    stamp("S0iss")
    I("v_lshrrev_b32", T[0], 1, vN)
    I("v_xor_b32", T[0], T[0], vGL)
    I("v_lshl_add_u32", T[1], vN, 7, sMX)
    I("v_lshl_add_u32", vXR[0], T[0], 4, T[1])
    I("v_xor_b32", vXR[1], 64, vXR[0])
    I("v_bfe_u32", vR, vL, 2, 2)
    I("v_and_b32", vC, 3, vL)
    I("v_lshl_add_u32", T[1], vGL, 3, vR)
    I("v_lshl_add_u32", T[2], T[7], 2, T[1])
    I("v_xor_b32", T[3], 4, T[2])
    I("s_movk_i32", sT0, 288); I("v_mov_b32", T[4], WSL)
    I("v_mad_u32_u24", T[2], T[2], sT0, T[4]); I("v_mad_u32_u24", T[3], T[3], sT0, T[4])
    I("v_mul_u32_u24", T[0], 40, vC)
    I("v_lshrrev_b32", T[1], 1, vC)
    I("v_add_u32", vTR[0][0], T[2], T[0]); I("v_add_u32", vTR[0][1], T[3], T[0])
    I("v_lshlrev_b32", T[6], 5, T[1]); I("v_sub_u32", T[6], T[0], T[6])
    I("v_add3_u32", vTR[1][0], T[2], T[6], 24); I("v_add3_u32", vTR[1][1], T[3], T[6], 24)
    I("v_mul_u32_u24", T[6], 72, T[1])
    I("v_add3_u32", vTR[2][0], T[2], T[6], 32); I("v_add3_u32", vTR[2][1], T[3], T[6], 32)
    I("v_lshl_add_u32", vTR[3][0], vC, 3, T[2]); I("v_lshl_add_u32", vTR[3][1], vC, 3, T[3])
    I("v_and_b32", T[6], 1, vC); I("v_mul_u32_u24", T[6], 72, T[6])
    if OPT["zv"]: I("v_lshl_add_u32", T[6], T[1], 17, T[6])
    I("v_add3_u32", vTR[4][0], T[2], T[6], 32); I("v_add3_u32", vTR[4][1], T[3], T[6], 32)
    I("s_mov_b32", sT0, 32 * 3456 - 1152); I("s_movk_i32", sT1, 72)
    for i in range(5):
        I("v_mad_u32_u24", vOQ[i], DP[i], sT0, vOW[i])
        I("v_lshl_add_u32", T[0], DP[i], 3, DR[i])
        I("v_and_b32", T[3], 1, DR[i])
        if i == 2:
            I("v_lshrrev_b32", T[1], 3, DR[i])
            I("v_mad_u32_u24", T[0], T[1], 12, T[0])
            I("v_lshl_add_u32", T[3], T[1], 1, T[3])
        elif i > 2:
            I("v_add_u32", T[0], 12, T[0])
        I("v_mad_u32_u24", vOO[i], T[0], s1152, DC[i])
        I("v_bfe_u32", T[2], DR[i], 1, 2)
        I("v_lshl_add_u32", T[2], DP[i], 2, T[2])
        if OPT["gord"]:
            I("v_cmp_ge_u32", "vcc", sG, T[2])
            I("v_subb_co_u32", T[2], "vcc", T[2], 0, "vcc")
            I("v_min_u32", T[5], sG, T[2]); I("v_cmp_gt_i32", "vcc", 0, T[2])
            I("v_cndmask_b32", T[2], T[2], T[5], "vcc")
        else:
            I("v_add_u32", T[2], sG, T[2]); I("v_and_b32", T[2], 7, T[2])
        I("v_add_u32", T[3], 18 if i > 2 else 16, T[3])
        I("v_mad_u32_u24", T[2], T[2], sT1, T[3])
        I("v_mad_u32_u24", vO8[i], T[2], s1152, DC[i])
    if OPT["s1m"]: emit_groups(x_dma(1))
    for i in range(4): I("v_mov_b32", v(84 + i), 0)
    I("s_mul_i32", sT1, sWV, 384); I("s_add_u32", sT1, sT1, ZERO)
    I("v_min_u32", T[0], 23 * 16, vL16); I("v_add_u32", T[0], sT1, T[0])
    I("ds_write_b128", T[0], v(84, 4))
    I("s_mul_i32", sT0, sWV, 960); I("s_add_u32", sT0, sT0, PHI)
    for i in range(3):
        t = vM
        if i:
            I("v_add_u32", T[0], 64 * i * 7282, vM); t = T[0]
        I("v_lshrrev_b32", T[0], 16, t); I("v_add_u32", T[0], T[0], vL)
        I("v_lshl_add_u32", PA[i], T[0], 2, sT0)
    I("v_cmp_eq_u32", "vcc", vC, vGL)
    I("v_mul_u32_u24", T[0], 40, vR)
    I("v_mul_u32_u24", T[1], 1040, vGL)
    I("v_mov_b32", T[3], ZERO)
    I("v_add3_u32", T[1], T[1], T[0], T[3])
    I("v_add_u32", T[2], (PHI - ZERO) & 0xffffffff, T[1])
    I("v_cndmask_b32", vPH[0], T[3], T[2], "vcc")
    I("v_lshrrev_b32", T[4], 1, vGL); I("v_mul_u32_u24", T[4], 640, T[4])
    I("v_sub_u32", T[2], T[2], T[4]); I("v_add_u32", T[2], 480, T[2])
    I("v_cndmask_b32", vPH[1], T[3], T[2], "vcc")
    I("v_mul_u32_u24", T[1], 1920, vGL); I("v_add_u32", T[1], T[1], T[0]); I("v_add_u32", T[2], KVI, T[1])
    I("v_cndmask_b32", vPSA, T[3], T[2], "vcc")
    I("v_mul_u32_u24", T[1], 960, vGL); I("v_mul_u32_u24", T[4], 640, T[7])
    I("v_sub_u32", T[1], T[1], T[4]); I("v_add_u32", T[1], T[1], T[0]); I("v_add_u32", T[1], PHI + 640, T[1])
    I("v_cndmask_b32", T[1], T[3], T[1], "vcc")
    I("v_cmp_gt_u32", "vcc", 2, vR)
    I("s_mul_i32", sPME, sL2, PGRP)
    I("s_lshl_b32", sRSB, sRSB, 12)
    I("v_cndmask_b32", vPH[2], T[3], T[1], "vcc")
    I("s_add_u32", sRSB, sRSB, sPME)
    stamp("P1")
    if OPT["pfx"] == 2: xpf()
    if OPT["xo"] == 2: extras()
    if OPT["pois0"] == 2: pois0()
    if OPT["apx"] == 3: apx()
    I("s_mov_b32", sG144, sL3)
    emit_groups(w_dma(1) if OPT["s1m"] else stage_dma(1))
    if OPT["pois0"] == 3: pois0()
    stamp("S1iss")
    def touch_round(r):
        I("s_lshl2_add_u32", sCNT, sA, sWV)
        I("s_mov_b64", "exec", 0)
        for k_ in range(7):
            I("s_cmp_eq_u32", sCNT, k_)
            I("s_cbranch_scc1", "L_th%s%d%d" % ("BA"[k_ // 4], r, k_ % 4))
        I("s_branch", "L_thA%d3" % r)
        P.label("L_tret%d" % r)
        I("s_mov_b64", "exec", -1)
    if OPT["itouch"]:
        P.touch = {"L_tailA"}; P.rounds = 2

    def late():
        I("s_and_b32", sL0, sWV, 1); I("s_lshr_b32", sL1, sWV, 1)
        I("s_mul_i32", sL2, sL0, 16 * 3456); I("s_add_u32", sL2, sL2, sG144)
        I("s_add_u32", sQE, sL2, 0 if OPT["perm"] else 9 * WSTEP)
        I("s_add_u32", sL3, sL1, sROT)
        if OPT["nphase"] in (6, 7):
            I("s_add_u32", sOQ, sL3, 7); I("s_lshr_b32", sOQ, sOQ, 4); I("s_mul_i32", sOQ, sOQ, 9); I("s_sub_u32", sL3, sL3, sOQ)
        I("s_mul_i32", sL3, sL3, WSTEP); I("s_add_u32", sOQ, sL3, sL2)
        I("s_mul_i32", sO8, sL0, 36 * 1152); I("s_add_u32", sO8, sO8, sG144)
        if OPT["gord"]:
            I("s_mov_b32", sOE, sL1)
            I("s_min_u32", sL3, sG, 1); I("s_xor_b32", sL3, sL3, 1); I("s_mul_i32", sL3, sL3, sL1)
            I("s_xor_b32", sL2, sL1, 1); I("s_mul_i32", sL2, sL2, sG); I("s_add_u32", sL3, sL3, sL2)
            I("s_mul_i32", sL3, sL3, 82944); I("s_add_u32", sOO, sL3, sO8)
        else:
            I("s_add_u32", sOE, sO8, 8 * 82944)
            I("s_add_u32", sL3, sL1, sG); I("s_and_b32", sL3, sL3, 7); I("s_mul_i32", sL3, sL3, 82944); I("s_add_u32", sOO, sL3, sO8)
        I("s_mov_b32", sC[0], f2u(LOG2E)); I("s_mov_b32", sC[1], f2u(LOG2E))
        I("s_mov_b32", sEPS[0], f2u(1e-6)); I("s_mov_b32", sEPS[1], f2u(1e-6))
        I("s_mov_b32", sODD[0], 0xffff0000); I("s_mov_b32", sODD[1], 0xffff0000)
        I("s_add_u32", sE, sE, 0x11); I("s_and_b32", sTAG, sE, 0xff); I("s_mov_b32", sMSK, 0xffffff00)
        I("s_getreg_b32", sL0, "hwreg(HW_REG_XCC_ID, 0, 4)")
        I("s_and_b32", sRV, sE, 0xfffffff0); I("s_or_b32", sRV, sRV, sL0)
        for i in range(4): I("v_mov_b32", M1[i], -1)
        I("s_sub_u32", sL2, 3, sA); I("s_mul_i32", sL2, sL2, sWV)
        I("s_lshl_b32", sL1, sL2, 14); I("s_add_u32", sPME, sPME, sL1)
        I("s_lshl_b32", sL1, sRT, 8); I("s_add_u32", sPME, sPME, sL1)
        I("s_lshl_b32", sL1, sL2, 10); I("s_add_u32", sAG, sAG, sL1)
        I("s_lshr_b32", sL1, sWV, 1)
        I("s_mul_i32", sQ8, sL1, 0x40000000); I("s_mul_i32", sM8, sL1, 100000); I("s_add_u32", sM8, sM8, sMQ)
        I("s_lshl_b32", sL0, sA, 6); I("s_add_u32", sL0, sL0, sSL)
        I("s_mul_i32", sOB, sL0, 8 * 4608); I("s_add_u32", sOB, sOB, WS_O)
        I("s_lshl_b32", sL0, sG144, 5); I("s_add_u32", sOU[0], sL0, sOB)
        I("v_add_u32", vL4, 4096, vL4)
        I("v_lshl_add_u32", T[0], vGL, 2, vR)
        I("v_mul_u32_u24", T[0], IR, T[0])
        I("s_mul_i32", sL0, sWV, 128 * IR)
        I("v_add_u32", vKB2, sL0, T[0])
        I("v_lshl_add_u32", vKB0, vC, 3, vKB2)
        for p in range(2):
            for i in (9, 10, 11): I("v_mov_b32", KB[p][i], 0)
            for i in (18, 19): I("v_mov_b32", PH[p][i], 0)
        I("v_mul_u32_u24", T[0], 128 * IR, vGL)
        I("v_mul_u32_u24", T[1], IR, vN)
        I("s_mul_i32", sL0, sWV, 32 * IR)
        I("v_add3_u32", vIW, T[0], T[1], sL0)
        I("s_mul_i32", sL0, sWV, 5120); I("s_add_u32", sL0, sL0, VF)
        I("v_add_u32", vVW, sL0, vL16)
        I("s_lshl_b32", sL0, sWV, 10); I("s_add_u32", sL0, sL0, VF)
        I("v_add_u32", vAM, sL0, vL16)
        I("s_lshl_b32", sL0, sWV, 1)
        I("v_cmp_gt_u32", "vcc", 2, vN)
        I("v_add_u32", T[3], sL0, vN)
        I("v_lshlrev_b32", T[0], 4, vN); I("v_lshl_add_u32", vP1, vGL, 12, T[0])
        I("v_cndmask_b32", T[3], 8, T[3], "vcc")
        I("v_lshl_add_u32", T[3], vGL, 4, T[3])
        I("v_lshlrev_b32", T[3], 4, T[3]); I("v_add_u32", vAL, VF + 4096, T[3])
        I("v_cmp_gt_u32", "vcc", 4, vN)
        I("v_mov_b32", T[4], OOB)
        I("v_lshl_add_u32", T[0], vGL, 2, vN); I("v_lshlrev_b32", T[0], 4, T[0])
        I("v_cndmask_b32", vP2, T[4], T[0], "vcc")
        I("v_cmp_gt_u32", "vcc", 16, vL)
        I("s_mul_i32", sL1, sWV, 1920); I("s_add_u32", sL1, sL1, KVI)
        I("v_cndmask_b32", vP3, T[4], vL16, "vcc")
        I("v_mul_u32_u24", T[1], 40, vN); I("v_lshl_add_u32", T[1], vGL, 3, T[1])
        I("v_add_u32", vAG1, sL1, T[1])
        I("v_mul_u32_u24", T[2], 40, vC); I("v_lshrrev_b32", T[3], 2, vL)
        I("s_lshr_b32", sL0, 32 * 40, sA)
        I("v_lshl_add_u32", T[2], T[3], 3, T[2]); I("v_add_u32", T[2], sL0, T[2])
        I("v_mul_u32_u24", T[3], 40, vL); I("v_add_u32", T[3], (32 - 16 * 40) & 0xffffffff, T[3])
        I("v_cndmask_b32", T[2], T[3], T[2], "vcc"); I("v_add_u32", vAG2, sL1, T[2])
        for t in range(5):
            I("v_accvgpr_write_b32", PHIF(t, 2)[2], 0); I("v_accvgpr_write_b32", PHIF(t, 2)[3], 0)
    lt = singles(cap(late))

    wait_vm("S0", lgkm=0)
    I("s_barrier")
    stamp("S0land")
    pipe = Pipe(dist=4)
    RT = list(range(-4, 10)) + [10, 10, 11, 11, 12, 12]
    fill = []
    for j in range(9):
        slot = j % 3
        order = [(kap, T_) for kap in range(2) for T_ in range(10)]
        if j == 8: order = [(kap, T_) for T0 in (0, 5) for kap in range(2) for T_ in range(T0, T0 + 5)]
        seen = set()
        for m, (kap, T_) in enumerate(order):
            ks = 2 * j + kap
            ring = RING[(20 * j + m) % 8]
            def rd():
                if kap not in seen:
                    seen.add(kap)
                    for p in range(2):
                        I("ds_read_b128", XF(ks, p), vXR[kap], mods="offset:%d" % (slot * XSLOT + p * 2048))
                if OPT["ex"] & 2 and (j > 0 or m >= 8): return
                if OPT["ex"] & 4 and T_ >= 5: return
                tile_read(ring, T_, slot * WSLOT + kap * 9216)
            def work():
                if OPT["ex"] & 1:
                    I("s_nop", 1); I("s_nop", 1); return
                for p in range(2):
                    if T_ < 5: mfma(ACK[p][T_], ring, XF(ks, p), 0 if ks == 0 else ACK[p][T_])
                    else: mfma(ACV[p][T_ - 5], XF(ks, p), ring, 0 if ks == 0 else ACV[p][T_ - 5])
            pipe.add(rd, work, rt=20 * j + RT[m])
        def hook():
            if OPT["itouch"] and 20 * j + 16 == OPT["t0"]: touch_round(0)
            if OPT["itouch"] and 20 * j + 16 == OPT["t1"]: touch_round(1)
            if j < 8: wait_vm("S%d" % (j + 1), lgkm=0)
            else: wait(lgkm=0)
            I("s_barrier")
            if OPT["p1st"]: stamp("b%d" % (j + 1))
        pipe.hooks[20 * j + 16] = cap(hook)
        t0 = max(0, 20 * j - 4)
        if j + 2 < 9: fill += spread(stage_dma(j + 2), t0, 20 * j + 13)
        elif j == 7: fill += spread(wq_pair_dma(0) + wq_pair_dma(2), t0 + 2, 20 * j + 36)
    def apre(kind):
        tag = "ap" + kind
        def pre():
            I("s_lshl3_add_u32", sT2, sSL, sG); I("s_mul_i32", sT2, sT2, 81); I("s_lshr_b32", sT2, sT2, 3)
            I("v_min_u32", T[5], 10, vL); I("v_add_u32", T[5], sT2, T[5])
            if kind == "o":
                I("v_lshlrev_b32", T[5], 7, T[5])
                I("s_mov_b32", SBO[2], 576 * 1152); I("s_mov_b32", SBO[3], 0x20000)
            else:
                I("v_mul_u32_u24", T[6], 7282, T[5]); I("v_lshrrev_b32", T[6], 16, T[6])
                I("v_mul_u32_u24", T[6], 18, T[6]); I("v_add_lshl_u32", T[5], T[5], T[6], 7)
                I("s_mov_b32", SBQ[2], 576 * 3456); I("s_mov_b32", SBQ[3], 0x20000)
        def go():
            I("s_cmp_eq_u32", sA, 0)
            I("s_cbranch_scc1", "L_skip_" + tag)
            for r_ in ((SBO, SWO) if kind == "o" else (SBQ, SW)):
                x = I("buffer_load_dword", v(255), T[5], r_, 0, mods="offen"); x.cond = True
            P.label("L_skip_" + tag)
        return singles(cap(pre)) + [cap(go)]
    if OPT["apo"]: fill += at(OPT["apo"], apre("o"))
    if OPT["apq"]: fill += at(OPT["apq"], apre("q"))
    if OPT["pfq"]:
        fill += at(OPT["pfq"], singles(cap(lambda: prefetch("wq"))))
    if OPT["pfo"] > 1:
        fill += at(OPT["pfo"], singles(cap(lambda: prefetch("wo"))))
    fill.sort(key=lambda t: t[0])
    phw = singles(cap(lambda: [I("ds_write_b32", PA[i], PW[i], mods="offset:%d" % (256 * i)) for i in range(3)]))
    def phir():
        for t in range(5):
            for tp in range(5):
                ad, o = (vPH[0], 160 * tp) if tp < 3 else (vPH[tp - 2], 0)
                tr(PHIF(t, tp // 2)[2 * (tp & 1):2 * (tp & 1) + 2], ad, 8 * t + o)
    phr = singles(cap(phir))
    nl = len(lt)
    bulk = spread(lt[:8], -1, -1) + spread(lt[8:30], 0, 24) + spread(phw, 24, 30) + spread(lt[30:40], 30, 42)
    bulk += spread(phr, 42, 80) + spread(lt[40:], 80, 150)
    bulk += spread(singles(cap(lambda: (cv(0), cv(1)))), 178, 180)
    pipe.emit(fill, bulk)
    stamp("pass1")

    I("s_cmp_lg_u32", sA, 0)
    I("s_cbranch_scc1", "L_tailA")
    P.label("L_tailB")
    names0 = list(stamp_names); mute0 = OPT.get("mute")
    P.put(mark(cap(lambda: tail("B")), path="B"))
    P.label("L_end")
    P.label("L_notouchB")
    I("s_endpgm")
    for sl in SLOW: P.put(mark(sl, path="B"))
    del SLOW[:]
    stamp_names[:] = names0; OPT["mute"] = mute0
    P.raw(".p2align 7")
    P.label("L_dotouch")
    P.label("L_tailA")
    P.put(mark(cap(lambda: (I("s_nop", 7), tail("A"))), path="A"))
    P.label("L_notouchA")
    I("s_endpgm")
    for sl in SLOW: P.put(mark(sl, path="A"))
    P.label("L_last")
    for sl in RARE: P.put(mark(sl, path="B"))

def prefetch(kind):
    I("s_lshr_b32", sT2, s(2), 3); I("s_lshl2_add_u32", sT2, sT2, sWV); I("s_mul_i32", sT2, sT2, 81); I("s_lshr_b32", sT2, sT2, 1)
    I("v_min_u32", T[5], 40, vL); I("v_add_u32", T[5], sT2, T[5])
    if kind == "wo":
        I("v_lshlrev_b32", T[5], 7, T[5])
        I("buffer_load_dword", v(255), T[5], SWO, 0, mods="offen")
    else:
        I("v_mul_u32_u24", T[6], 7282, T[5]); I("v_lshrrev_b32", T[6], 16, T[6])
        I("v_mul_u32_u24", T[6], 18, T[6]); I("v_add_lshl_u32", T[5], T[5], T[6], 7)
        I("buffer_load_dword", v(255), T[5], SW, 0, mods="offen")

def rebase(delta):
    for pat in range(3):
        for e in range(2):
            I("v_add_u32", vTR[pat][e], delta & 0xffffffff, vTR[pat][e])

def tail(path):
    B = path == "B"
    FT = [0, 1, 2] if B else [0, 2]
    PHI_ = PH if B else KB
    NJ = 5 if B else 3
    def poison():
        for i in range(4):
            I("buffer_store_dwordx4", M1, vL16, SWS, sOU[0], mods="offen offset:%d sc1" % (1024 * i))
        for i in range(2):
            I("buffer_store_dword", M1[0], vL4, SWS, sOU[0], mods="offen offset:%d sc1" % (256 * i))
    def vpack():
        I("v_cmp_eq_u32", "vcc", 8, vN)
        I("v_mov_b32", T[0], 0x3f803f80)
        for t in range(5):
            d = ACV[0][t]
            for p in range(2):
                for h in range(2):
                    I("v_cvt_pk_bf16_f32", d[2 * p + h], ACV[p][t][2 * h], ACV[p][t][2 * h + 1])
        for i in range(4): I("v_cndmask_b32", ACV[0][4][i], ACV[0][4][i], T[0], "vcc")
        I("v_mov_b32", T[0], sTAG)
        I("s_mov_b32", sCNT, 0)
        rebase(WQ0 - WSL)
    def prewarm():
        I("v_min_u32", T[1], 35, vL); I("v_lshlrev_b32", T[1], 7, T[1])
        I("buffer_load_dword", v(255), T[1], SWS, sOU[0], mods="offen sc1")
    vp = singles(cap(vpack))
    w = singles(cap(lambda: [I("ds_write_b128", vVW, ACV[0][t], mods="offset:%d" % (1024 * t)) for t in range(5)]))
    q = tagged(singles(cap(poison)), "POIS") if not OPT["pois0"] else []
    pwm = [cap(prewarm)] if OPT["pw"] else []
    pfo = [cap(lambda: prefetch("wo"))] if OPT["pfo"] == 1 else []
    q4, q6, q8 = vm_only(wq_pair_dma(4)), vm_only(wq_pair_dma(6)), vm_only(wq_pair_dma(8))
    if B:
        ksh = weave(q4[:4], vp); km0 = weave(q4[4:] + q6, w); km1 = q8 + pfo + q
        late_q = []
    else:
        ksh = weave(q4[:2], vp); km0 = weave(q4[2:] + q6[:3], w); km1 = q6[3:] + q8 + pfo + q
        late_q = []
    kvq = []
    if B and OPT["peB"] == 1:
        ksh = weave(q4, vp); km0 = weave(q, w); km1 = q6 + q8
    if B and OPT["peB"] == 2:
        ksh = weave(q4[:4], vp); km0 = weave(q4[4:] + q6, w); km1 = q + q8
    if not B and OPT["peA"] == 1:
        ksh = weave(q4[:2], vp); km0 = weave(q4[2:] + q, w); km1 = q6 + q8
    if not B and OPT["peA"] == 2:
        km1 = q6[3:] + q8; kvq = q
    if OPT["pf2"]:
        pf = [cap(lambda: prefetch("wo"))]
        if B:
            ksh = weave(q4, vp); km0 = weave(q6 + q8, w) + pf; km1 = []
        else:
            ksh = weave(q4[:2], vp); km0 = weave(q4[2:] + q6[:3], w); km1 = q6[3:] + q8 + pf
        kvq = q
    def kwrites(p):
        def f():
            n4 = 4 if B else 2
            for i in range(n4): I("ds_write_b128", vIW, PHI_[p][4 * i:4 * i + 4], mods="offset:%d" % (IMG + p * 16 * IR + 16 * i))
            I("ds_write_b64", vIW, PHI_[p][4 * n4:4 * n4 + 2], mods="offset:%d" % (IMG + p * 16 * IR + 16 * n4))
        return singles(cap(f))
    P.put(feature_map(path, "k", True, ksh, (km0, 2, 98), (km1, 0, 70 if B else 95), kwrites))
    wait_vm("WQ4", lgkm=0)
    I("s_barrier")
    stamp("kpost")
    DM = [v(104 + 4 * j, 4) for j in range(3)]; DL = [v(116 + 4 * j, 4) for j in range(3)]
    pipe = Pipe(dist=3, grp=1) if not OPT["j4"] else Pipe(dist=4)
    n = 0
    for j in FT:
        for src in range(4):
            AM, AL = a(204 + 8 * src, 4), a(208 + 8 * src, 4)
            BF = RING[n % 8]; n += 1
            def rd():
                if j == 0: I("ds_read_b128", AM, vAM, mods="offset:%d" % (src * 5120))
                for e in range(2):
                    tr(BF[2 * e:2 * e + 2], vKB0 if j < 2 else vKB2, IMG + src * 32 * IR + e * 16 * IR + (32 * j if (B or j < 2) else 32))
                if j == 0: I("ds_read_b128", AL, vAL, mods="offset:%d" % (src * 5120))
            def work():
                mfma(DM[j], AM, BF, 0 if src == 0 else DM[j])
                mfma(DL[j], AL, BF, 0 if src == 0 else DL[j])
            pipe.add(rd, work, rt=(0 if (OPT["j4"] and n == 4) else None))
    SLM = {0: 0, 1: 4, 2: 8} if B else {0: 0, 2: 4}
    SLL = {0: 9, 1: 10, 2: 11} if B else {0: 5, 2: 6}
    def pstore(j):
        for D, ad, sl in ((DM[j], vP1 if j < 2 else vP2, SLM[j]), (DL[j], vP3, SLL[j])):
            if sl: I("s_add_u32", sT1, sPME, sl * 4096)
            for i in range(4): I("v_and_or_b32", D[i], D[i], sMSK, T[0])
            I("buffer_store_dwordx4", D, ad, SWS, sT1 if sl else sPME, mods="offen sc1")
    fill = []
    kvpipe = None; KO = 0; pfill = []
    if OPT["j4"]:
        kvpipe = pipe; KO = 4 * len(FT); qlead = []
        t_ = 6
        for k_, j in enumerate(FT):
            t_ = max(t_, 4 * k_ + 6)
            pfill += spread(singles(cap(lambda: (pstore(j), fst("pubP") if j == 2 else None))), t_, t_ + 2 * OPT["psp"]); t_ += 2 * OPT["psp"]
    else:
        for k_, j in enumerate(FT[:-1]): fill += spread(tagged(singles(cap(lambda: pstore(j))), "P"), 4 * k_ + 5, 4 * k_ + 8)
        pipe.emit(fill)
        fst("kvmm")
        qlead = cap(lambda: (pstore(FT[-1]), stamp("pubP")))
        if not OPT["j1"]:
            P.put(qlead); qlead = []
            I("s_barrier")
        stamp("wqland")

    def gemm2(bfrag, offs, rebases, fill, nm, hooks={}, lead=(), n=0, nks=18, extra=None, pipe=None):
        pipe = pipe or Pipe(dist=OPT["qd"])
        pipe.dist = OPT["qd"]
        pipe.hooks = hooks
        for ks in range(nks):
            for T_ in range(5):
                ring = RING[n % 8]; n += 1
                def rd():
                    if T_ == 0 and ks in rebases: rebase(rebases[ks])
                    tile_read(ring, T_, offs(ks))
                def work():
                    for p in range(2):
                        mfma(ACK[p][T_], ring, bfrag(ks, p), 0 if ks == 0 else ACK[p][T_])
                pipe.add(rd, work, (lambda: fst("%s%d" % (nm, ks))) if T_ == 0 else None)
        if extra: extra(pipe)
        pipe.emit(fill, lead=lead)
    RS = v(128, 16)
    vCK = T[6]
    RS2 = v(200, 16); sRS2, sFS2 = s(22), s(23)
    def rs_loads(RS=RS, so=sRSB):
        for i in range(4):
            I("buffer_load_dwordx4", RS[4 * i:4 * i + 4], vL16, SWS, so, mods="offen offset:%d sc1" % (1024 * i))
    def rs_reduce(RS=RS, sFSL=sFSL):
        for st in (8, 4):
            for i in range(st): I("v_add_f32", RS[i], RS[i], RS[i + st])
        I("v_permlane32_swap_b32", RS[0], RS[2]); I("v_permlane32_swap_b32", RS[1], RS[3])
        I("v_add_f32", RS[0], RS[0], RS[2]); I("v_add_f32", RS[1], RS[1], RS[3])
        I("v_mov_b32", RS[2], RS[0]); I("v_mov_b32", RS[3], RS[1])
        I("v_permlane16_swap_b32", RS[0], RS[2]); I("v_permlane16_swap_b32", RS[1], RS[3])
        I("v_add_f32", RS[0], RS[0], RS[2]); I("v_add_f32", RS[1], RS[1], RS[3])
        I("v_cvt_pk_bf16_f32", RS[0], RS[0], RS[1])
        I("v_mov_b32", RS[1], sE)
        I("buffer_store_dwordx2", RS[0:2], vFS, SWS, sFSL, mods="offen sc1")
        fst("pubF")
    vRV, vRA = T[7], T[8]
    def rflag():
        I("v_mov_b32", vRV, sRV); I("s_lshl_b32", sT1, sG, 2); I("v_mov_b32", vRA, sT1)
        I("buffer_store_dword", vRV, vRA, SWS, sRF, mods="offen sc1")
    ra, rc = OPT["rs_at"], OPT["rs_chk"]
    if not B: ra -= OPT["dA"]; rc -= OPT["dA"]
    wo = [vm_only(wo_pair_dma(u)) for u in (0, 2, 4, 6)]
    wo.append(vm_only(singles(cap(lambda: I("s_add_u32", sO8, sO8, sQ8))) + tagged(dma5(vO8, SWO, sO8, sM8, WO6 + 2 * 9216), "WO8")))
    def ou():
        for u in range(1, 8):
            if OPT["gord"]:
                I("s_sub_u32", sL0, sG, u); I("s_lshr_b32", sL0, sL0, 31)
                I("s_add_u32", sL0, sL0, u - 1)
            else:
                I("s_add_u32", sL0, sG, u); I("s_and_b32", sL0, sL0, 7)
            I("s_mul_i32", sL0, sL0, 4608); I("s_add_u32", sOU[u], sL0, sOB)
    qsh2 = []
    if B:
        rf = [cap(lambda: wait_vm("POIS"))] + singles(cap(rflag))
        fill = spread(singles(cap(ou)), 14, 50) + at(OPT["rf_at"], rf)
        allw = sum(wo, []); nq = OPT["nq"]
        sp = spread(allw[:nq], OPT["w0"], 89)
        assert all(t_ >= 55 for t_, g in sp[15:]) or nq > 22
        if nq > 22: sp = spread(allw[:15], OPT["w0"], 55) + spread(allw[15:nq], 56, 89)
        fill += sp
        if OPT["pw"] > 5: fill += at(OPT["pw"], singles(sum(pwm, [])))
        fill.sort(key=lambda t: t[0])
        wrest = allw[nq:]
        wo = [[], []]
    else:
        def b_addr():
            I("s_min_u32", sL1, sWV, 2); I("s_mul_i32", sL2, sRT, 3); I("s_add_u32", sL1, sL1, sL2)
            I("s_mul_i32", sL2, sG, PGRP); I("s_lshl_b32", sRS2, sL1, 12); I("s_add_u32", sRS2, sRS2, sL2)
            I("s_lshl_b32", sL2, sG, 14); I("s_lshl_b32", sL1, sL1, 8); I("s_add_u32", sL1, sL1, sL2); I("s_add_u32", sFS2, sL1, WS_F)
            I("s_add_u32", sL1, sWV, 1); I("s_lshr_b32", sL1, sL1, 2); I("s_lshl_b32", sL1, sL1, 30); I("s_add_u32", sFS2, sFS2, sL1)
        fill = sorted(spread(kvq, 1, 14) + spread(wo.pop(0), 15 if kvq else 3, 31 if kvq else 26) + spread(singles(cap(ou)) + singles(cap(b_addr)), 1, 33), key=lambda t: t[0])
        l2 = lambda: rs_loads(RS2, sRS2)
        chk = [cap(lambda: (fst("rsb"), wait_vm("RS"), fst("rsw")))] + check_tag("rs" + path, vCK, [RS[i] for i in range(16)], rs_loads) + singles(cap(rs_reduce)) + singles(cap(rflag))
        chk2 = [cap(lambda: wait_vm("RB"))] + check_tag("rb" + path, T[5], [RS2[i] for i in range(16)], l2) + singles(cap(lambda: rs_reduce(RS2, sFS2)))
        f2 = spread(tagged(singles(cap(rs_loads)), "RS"), ra, ra + 4) + spread(tagged(singles(cap(l2)), "RB"), OPT["rb_at"], OPT["rb_at"] + 5)
        if OPT["bfirst"]:
            rb = OPT["rb_chk"]
            nchk = 28
            f2 += spread(chk[:nchk], rc, rb) + spread(chk2, rb, rb + OPT["rb_len"]) + spread(chk[nchk:], rb + OPT["rb_len"], rb + OPT["rb_len"] + 10)
            f2 += spread(wo.pop(0), OPT["rb_at"] + 6, rb + 4)
        else:
            f2 += spread(wo.pop(0), ra + 4, ra + 20)
            f2 += spread(chk, rc, rc + OPT["rs_len"]) + spread(chk2, max(OPT["rb_chk"], rc + OPT["rs_len"]), max(OPT["rb_chk"], rc + OPT["rs_len"]) + OPT["rb_len"])
        fill += sorted(f2, key=lambda t: t[0])
    if OPT["j4"]:
        tmin = pfill[-1][0] + 1
        fill = pfill + [(max(t_ + KO, tmin), g) for t_, g in fill]
    gemm2(XF, lambda ks: ((ks // 2) % 6) * 9216 + (ks & 1) * 144, {12: WQ6 - WQ0}, fill, "q",
          dict([(53 + KO, cap(lambda: (wait_vm("WQ8"), I("s_barrier"))))] + ([(1 + KO, cap(lambda: I("s_barrier")))] if OPT["j1"] else [])), lead=qlead, n=4 * len(FT), pipe=kvpipe)
    stamp("qgemm")

    NAG = 3 if B else 2
    AG = v(104, 4 * NAG); RF = v(116)
    def ag_loads():
        for i in range(NAG):
            I("buffer_load_dwordx4", AG[4 * i:4 * i + 4], vL16 if (B or i == 0) else T[3], SWS, sAG, mods="offen offset:%d sc1" % (1024 * i))
    def ag_fold():
        I("v_xor_b32", vCK, sE, AG[1])
        for i in range(3, 4 * NAG, 2): I("v_bitop3_b32", vCK, vCK, sE, AG[i], mods="bitop3:0xf6")
    def rf_load(): I("buffer_load_dword", RF, T[4], SWS, sRF, mods="offen sc1")
    def qsh():
        if not B: I("v_min_u32", T[3], 47 * 16, vL16)
        I("v_and_b32", T[4], 7, vL); I("v_lshlrev_b32", T[4], 2, T[4])
        rebase(WO0 - WQ6)
        for t in range(5):
            I("v_accvgpr_write_b32", PSIF(t, NJ - 1)[2], 0); I("v_accvgpr_write_b32", PSIF(t, NJ - 1)[3], 0)
    fr = OPT["ag_frac"] if B else OPT["ag_fracA"]
    g = singles(cap(rf_load)) + singles(cap(lambda: fst("agi"))) + tagged(singles(cap(ag_loads)), "AG") + (pwm if OPT["pw"] == 2 else [])
    lo = (fr - 50) * 2
    wc = wo.pop(0)
    if OPT["pw"] == 3: wc = pwm + wc
    wd = sum(wo, [])
    def agw():
        I("ds_write2_b32", vAG1, AG[0], AG[2], mods="offset0:0 offset1:1")
        if B: I("ds_write2_b32", vAG1, AG[4], AG[6], mods="offset0:160 offset1:161")
        I("ds_write2_b32", vAG2, AG[4 * NAG - 4], AG[4 * NAG - 2], mods="offset0:0 offset1:1")
    agc = cap(lambda: (fst("agb"), wait_vm("AG"), fst("agw"))) + sum(check_or_retry("ag" + path, ag_fold, lambda: I("v_cmp_ne_u32", "vcc", 0, vCK), ag_loads), []) + cap(agw)
    agb = cap(lambda: (wait(lgkm=0), I("s_barrier"), stamp("gotkv")))
    olead = []
    if B:
        mids = [([], 0, 100), ([], 0, 100)]
        mids[1 if fr >= 50 else 0] = (g, (fr % 50) * 2, min(100, (fr % 50) * 2 + 12))
        if wrest[4:]:
            assert fr >= 50
            mids[0] = (wrest[4:], 5, 95)
        qs = weave(singles(cap(qsh)), wrest[:4]) if wrest else singles(cap(qsh))
        if OPT["pw"] == 5: qs = singles(sum(pwm, [])) + qs
        body = feature_map(path, "q", False, qs, mids[0], mids[1], lambda p: [])
        if OPT["j2"]:
            ok = lambda i: isinstance(body[i], Ins) and body[i].kind == "valu" and isinstance(body[i - 1], Ins) and body[i - 1].kind == "valu"
            c1 = len(body) * OPT["agc"] // 100; c2 = len(body) * OPT["agb"] // 100
            while not ok(c1): c1 += 1
            while not ok(c2): c2 += 1
            P.put(body[:c1] + agc + body[c1:c2] + agb); olead = body[c2:]
        else:
            P.put(body + agc + agb)
    else:
        P.put(feature_map(path, "q", False, singles(cap(qsh)), (wc[:3], 0, 100), (wc[3:] + g, 0, 100), lambda p: []))
        emit_groups(wd)
        P.put(agc + agb)

    pool = list(range(104, 144, 4)) + list(range(176, 256, 4)) + [12, 16, 28, 32, 36, 40]
    OF = {}
    keys = [(0, p, X) for X in range(2) for p in range(2)] + [("L", k, p) for k in range(2) for p in range(2)] + [(u, p, X) for u in range(1, 8) for p in range(2) for X in range(2)]
    for k_, r_ in zip(keys, pool): OF[k_] = v(r_, 4)
    o = ACC
    pipe = Pipe(dist=OPT["od"])
    for t in (4, 0, 1, 2, 3):
        for j in range(NJ):
            def rd():
                tr(PSIF(t, j)[0:2], vPSA, 8 * t + 8 * j * 40)
                if j < NJ - 1: tr(PSIF(t, j)[2:4], vPSA, 8 * t + (8 * j + 4) * 40)
            def work():
                for p in range(2):
                    mfma(ACK[p][t], PSIF(t, j), PHI_[p][4 * j:4 * j + 4], 0 if j == 0 else ACK[p][t])
            pipe.add(rd, work)
    def ostore(key, flag=None):
        if flag is None: flag = ["", " sc1", " nt"][OPT["oflag"]]
        if key[0] == "L": I("buffer_store_dword", OF[key][0], vL4, SWS, sOU[0], mods="offen offset:%d%s" % (key[2] * 256, flag))
        else: I("buffer_store_dwordx4", OF[key], vL16, SWS, sOU[0], mods="offen offset:%d%s" % (key[1] * 2048 + key[2] * 1024, flag))
    def fin_den():
        for p in range(2): I("v_add_f32", o[p][18], sEPS[0], o[p][18])
        for p in range(2): I("v_rcp_f32", o[p][18], o[p][18])
        for p in range(2):
            for i in (16, 17): I("v_mul_f32", o[p][i], o[p][i], o[p][18])
        for p in range(2):
            I("v_cvt_pk_bf16_f32", OF[("L", 0, p)][0], o[p][16], o[p][17])
            ostore(("L", 0, p))
    def fin_tile(t, packed):
        for p in range(2):
            if packed:
                for i in (4 * t, 4 * t + 2): I("v_pk_mul_f32", o[p][i:i + 2], o[p][i:i + 2], o[p][18:20], mods="op_sel:[0,0] op_sel_hi:[1,0]")
            else:
                for i in range(4 * t, 4 * t + 4): I("v_mul_f32", o[p][i], o[p][i], o[p][18])
            for h in range(2):
                I("v_cvt_pk_bf16_f32", OF[(0, p, t // 2)][2 * (t & 1) + h], o[p][4 * t + 2 * h], o[p][4 * t + 2 * h + 1])
            if t & 1: ostore((0, p, t // 2))
    rfchk = check_or_retry("rf" + path, lambda: I("v_xor_b32", vCK, sRV, RF), lambda: I("v_cmp_lt_u32", "vcc", 15, vCK), rf_load)
    rfchk += [cap(lambda: I("v_cmp_ne_u32", s(50, 2), 0, vCK))]
    fill = at(0, rfchk)
    fill += spread(singles(cap(fin_den)), NJ + 2, 2 * NJ + 1)
    for t in range(3): fill += spread(singles(cap(lambda: fin_tile(t, False))), (2 + t) * NJ + 1 + (1 if B else 0), (3 + t) * NJ + 1)
    pipe.emit(fill, lead=olead)
    fst("omm")
    fin_tile(3, True)
    I("s_cmp_lg_u64", s(50, 2), 0)
    I("s_cbranch_scc1", "L_far" + path)
    P.label("L_near" + path)
    def far():
        P.label("L_far" + path)
        for key in keys[:4] + [("L", 0, 0), ("L", 0, 1)]: ostore(key, " sc1")
        wait(vm=0)
        I("buffer_store_dword", vRV, vRA, SWS, sRF, mods="offen offset:32 sc1")
        P.label("L_farp" + path)
        I("buffer_load_dword", vCK, T[4], SWS, sRF, mods="offen offset:32 sc1")
        wait(vm=0)
        I("v_xor_b32", vCK, sRV, vCK)
        I("v_cmp_lt_u32", "vcc", 15, vCK)
        I("s_add_u32", sCNT, sCNT, 1)
        I("s_cmp_gt_u32", sCNT, SPIN)
        I("s_cbranch_scc1", "L_near" + path)
        I("s_cbranch_vccnz", "L_farp" + path)
        I("s_branch", "L_near" + path)
    SLOW.append(cap(far))
    stamp("pubO")

    def oload(u):
        for X in (1, 0):
            for p in (1, 0):
                I("buffer_load_dwordx4", OF[(u, p, X)], vL16, SWS, sOU[u], mods="offen offset:%d sc1" % (p * 2048 + X * 1024))
        for p in range(2):
            I("buffer_load_dword", OF[("L", u // 4, p)][u % 4], vL4, SWS, sOU[u], mods="offen offset:%d sc1" % (p * 256))
    def bf(ks, p):
        if ks < 16: return OF[(ks // 2, p, ks & 1)]
        return OF[("L", ks - 16, p)]
    offs = lambda ks: ((ks // 2) % 6) * 9216 + (ks & 1) * 144
    vW1, vW2, vW3, vRD = vIW, vVW, vAM, vAL
    vST = [vP2, vPSA, vKB0, vKB2, vP1]
    def out_addr():
        I("s_add_u32", sT0, sMQ, OUTB)
        I("v_mul_u32_u24", T[0], 144, vN); I("v_add_u32", T[0], sT0, T[0])
        I("v_mul_u32_u24", T[1], 40, vGL); I("v_add_u32", vW1, T[0], T[1])
        I("v_lshrrev_b32", T[4], 1, vGL)
        I("v_lshlrev_b32", T[2], 5, T[4]); I("v_sub_u32", vW2, vW1, T[2])
        I("v_mul_u32_u24", T[3], 72, T[4]); I("v_add_u32", vW3, T[0], T[3])
        I("v_add_u32", vRD, sT0, vL16)
        I("s_movk_i32", sT1, 2304 - 144)
        for i in range(5):
            t = vM
            if i:
                I("v_add_u32", T[3], Q0[i] * 7282, vM); t = T[3]
            I("v_lshrrev_b32", T[0], 16, t)
            I("v_mad_u32_u24", vST[i], T[0], sT1, vL16)
    NPRE = OPT["npre"]
    wait_vm("WO8")
    I("s_barrier")
    stamp("ackO")
    I("s_mov_b32", sT2, 0)
    P.label("L_redo" + path)
    g = []
    for u in range(1, NPRE + 1): g += tagged(singles(cap(lambda: oload(u))), "O%d" % u)
    if OPT["j3"]:
        def preread():
            rebase(WO6 - WO0)
            for ks in range(18 - OPT["npf"], 18):
                for t in range(5): tile_read(a(100 + ((ks - (18 - OPT["npf"])) * 5 + t) * 4, 4), t, offs(ks))
            rebase(WO0 - WO6)
        emit_groups(weave(singles(cap(preread)), g))
        fill = []
    else:
        fill = spread(g, 0, 7)
    def ochk(u):
        regs = [OF[(u, 0, 1)][3], OF[(u, 1, 1)][3], OF[(u, 1, 0)][3]]
        return [cap(lambda: wait_vm("O%d" % u))] + check_sent("o%d%s" % (u, path), vCK, regs, lambda: oload(u))
    for u in range(0, 7):
        b0 = u * 10
        blk = spread(ochk(u + 1), b0 + 6, b0 + 6)
        if u and u + NPRE <= 7: blk += spread(tagged(singles(cap(lambda: oload(u + NPRE))), "O%d" % (u + NPRE)), b0, b0 + 10)
        fill += sorted(blk, key=lambda t: t[0])
    NPF = OPT["npf"] if OPT["j3"] else 0
    assert NPF in (0, 2, 4, 6)
    WF = lambda ks, t: a(100 + ((ks - (18 - NPF)) * 5 + t) * 4, 4)
    OUTR = [OF[(1 + t // 2, p, 0)][2 * (t & 1):2 * (t & 1) + 2] for p in range(2) for t in range(5)]
    OB = [OF[(1, 0, 1)], OF[(1, 1, 1)], OF[(2, 0, 1)], OF[(2, 1, 1)], OF[(3, 0, 1)]]
    fl = ["", " sc1", " nt", " sc0 sc1"][OPT["outflag"]]
    def ocvt(p):
        for t in range(5):
            r_ = OUTR[5 * p + t]
            for h in range(2): I("v_cvt_pk_bf16_f32", r_[h], ACK[p][t][2 * h], ACK[p][t][2 * h + 1])
            ad, off = (vW1, 8 * t) if t < 3 else ((vW2, 24) if t == 3 else (vW3, 32))
            I("ds_write_b64", ad, r_, mods="offset:%d" % (off + p * 2304))
    def ord_(i): I("ds_read_b128", OB[i], vRD, mods="offset:%d" % (16 * Q0[i]))
    def ost(i):
        if i == 0: I("s_mov_b32", "exec_hi", 0)
        I("buffer_store_dwordx4", OB[i], vST[i], SOUT, sOUTB, mods="offen offset:%d%s" % (16 * Q0[i], fl))
        if i == 0: I("s_mov_b32", "exec_hi", -1)
    def nanchk(regs, back):
        I("v_cmp_u_f32", "vcc", regs[0], regs[1])
        I("s_cbranch_vccnz", "L_again%s" % back + path)
        P.label("L_done%s" % back + path)
        def again():
            P.label("L_again%s" % back + path)
            I("s_add_u32", sT2, sT2, 1)
            I("s_cmp_gt_u32", sT2, 16)
            I("s_cbranch_scc1", "L_done%s" % back + path)
            wait(vm=0, lgkm=0)
            if NPF < 6: rebase(WO0 - WO6)
            I("s_nop", 7)
            I("s_branch", "L_redo" + path)
        SLOW.append(cap(again))
    if NPF:
        nb = (18 - NPF) * 5
        half = NPF * 5 // 2
        def extra(pipe):
            for p in range(2):
                ms = [(ks, t) for ks in range(18 - NPF, 18) for t in range(5)]
                for i in range(0, len(ms), 2):
                    pipe.add(lambda: None, lambda: [mfma(ACK[p][t], WF(ks, t), bf(ks, p), ACK[p][t]) for ks, t in ms[i:i + 2]])
        fill = [((nb + (t_ - nb) // 2 - 2) if t_ > nb else t_, g) for t_, g in fill]
        fill += spread(singles(cap(out_addr)), 42, 56)
        tail0 = [cap(lambda: nanchk((ACK[0][0][0], ACK[0][1][0]), "0"))] + singles(cap(lambda: ocvt(0))) + singles(cap(lambda: (ord_(0), ord_(1))))
        fill += spread(tail0, nb + half + 2, nb + half + 8)
        fill += [(nb + half + 11, cap(lambda: (wait(lgkm=0), ost(0)))), (min(89, nb + half + 13), cap(lambda: ost(1)))]
        fill.sort(key=lambda t: t[0])
        gemm2(bf, offs, {12: WO6 - WO0}, fill, "o", nks=18 - NPF, extra=extra)
        stamp("ogemm")
        nanchk((ACK[1][0][0], ACK[1][1][0]), "1")
        ocvt(1)
        for i in (2, 3, 4): ord_(i)
        for i in (2, 3, 4):
            wait(lgkm=4 - i); ost(i)
    else:
        fill += spread(singles(cap(out_addr)), 70, 88)
        gemm2(bf, offs, {12: WO6 - WO0}, fill, "o")
        stamp("ogemm")
        nanchk((ACK[0][0][0], ACK[1][0][0]), "1")
        ocvt(0); ocvt(1)
        for i in range(5): ord_(i)
        for i in range(5):
            wait(lgkm=4 - i); ost(i)
    if B:
        I("s_or_b32", sT0, sSL, sG)
        I("s_cmp_lg_u32", sT0, 0)
        I("s_cbranch_scc1", "L_noep" + path)
        I("v_mov_b32", T[0], WS_E); I("v_mov_b32", T[1], sE)
        I("buffer_store_dword", T[1], T[0], SWS, 0, mods="offen")
        P.label("L_noep" + path)
    if OPT["stamps"]:
        stamp("stiss")
        if B: P.label("L_fin")
        OPT["mute"] = 0
        wait(vm=0)
        stamp("end")
        I("s_memrealtime", s(100, 2))
        wait(lgkm=0)
        if OPT["fine"]:
            for k, nm in enumerate(OPT["fine"].split(",")):
                stamp_names.append(nm); STAMPS[k] = s(4 + 2 * k)
        n = len(stamp_names)
        for k in range(n):
            if OPT["lite"] and k != OPT["amp"] and k != n - 1: continue
            assert OPT["lite"] or n <= 17
            I("s_sub_u32", STAMPS[k], STAMPS[k], s(96 if (OPT["lite"] == 2 or OPT["rt"]) else 98))
            I("v_mov_b32", v(64 + k), STAMPS[k])
        I("v_mov_b32", v(64 + 28), sT2); I("v_mov_b32", v(64 + 29), s(3))
        I("v_mov_b32", v(64 + 30), s(96)); I("v_mov_b32", v(64 + 31), s(100))
        I("s_lshl_b32", sT0, s(2), 2); I("s_add_u32", sT0, sT0, sWV); I("s_lshl_b32", sT0, sT0, 7); I("s_add_u32", sT0, sT0, WS_ST)
        I("v_mov_b32", T[0], 0)
        I("s_mov_b64", "exec", 1)
        for q in range(8):
            I("buffer_store_dwordx4", v(64 + 4 * q, 4), T[0], SWS, sT0, mods="offen offset:%d" % (16 * q))
        if OPT["amp"] >= 0 and OPT["ampsel"] in (0, 2 if B else 1):
            I("s_lshl_b32", sT2, STAMPS[OPT["amp"]], 3)
            I("s_add_u32", sT2, sT2, STAMPS[n - 1])
            P.label("L_amp" + path)
            I("s_memrealtime" if OPT["lite"] == 2 else "s_memtime", s(100, 2)); wait(lgkm=0)
            I("s_sub_u32", sT1, s(100), s(96 if OPT["lite"] == 2 else 98))
            I("s_cmp_lt_u32", sT1, sT2)
            I("s_cbranch_scc1", "L_amp" + path)

HEADER = open("cdna_kernels/%s.s.ref" % NAME).read().split("; Override launch")[0]

def wrap(body):
    txt = HEADER + "; @launch grid=(256,1,1) block=(256,1,1) lds=%d\n" % LDS_BYTES
    txt += "; stamps: %s\n" % ",".join(stamp_names) if stamp_names else ""
    txt += '.amdgcn_target "amdgcn-amd-amdhsa--gfx950"\n.text\n.globl %s_kernel\n.p2align 12\n.type %s_kernel,@function\n' % (NAME, NAME)
    txt += ".set CODE_SPAN, (L_last - %s_kernel - 128) & 0xffffff80\n" % NAME
    txt += ".set HEAD_LINES, ((L_tailB - %s_kernel) >> 7) + 8\n.set A_SHIFT, (L_tailA - L_tailB - 2048) & 0xffffff80\n" % NAME
    txt += "%s_kernel:\n%s\n" % (NAME, body)
    txt += """.section .rodata,"a"
.p2align 6
.amdhsa_kernel %s_kernel
  .amdhsa_next_free_vgpr 512
  .amdhsa_next_free_sgpr 102
  .amdhsa_accum_offset 256
  .amdhsa_group_segment_fixed_size 0
  .amdhsa_kernarg_size 80
  .amdhsa_user_sgpr_count 2
  .amdhsa_user_sgpr_kernarg_segment_ptr 1
  .amdhsa_system_sgpr_workgroup_id_x 1
.end_amdhsa_kernel
""" % NAME
    return txt

def main(out):
    build()
    txt = P.finalize2(wrap)
    open(out, "w").write(txt)
    print("wrote", out, "hazard nops:", P.nops, "align fixes:", P.fixes, "bytes:", P.bytes, "touch points:", P.points)

if __name__ == "__main__":
    out = sys.argv[1]
    for kv in sys.argv[2:]:
        k, val = kv.split("=")
        assert k in OPT, k
        OPT[k] = val if k in ("stop", "fine") else int(val)
    main(out)
```

```python
import sys, struct
from asmdsl import *

NAME = "concat_heads__linear_attn_block__linear_kernel_hedgehog__prompt"
OPT = dict(stamps=0, nphase=6, amp=-1, ampsel=0, lite=0, outflag=2, oflag=0, wb=0, rs_at=36, rs_chk=54, rs_len=18, ag_frac=64, ag_fracA=90, dA=4, npre=3, t0=14, t1=32, pw=0, pfo=0, pfq=0, wdn=8, pfx=0, perm=0, gord=1, xo=2, zv=1, s1m=0, ex=0, snake=0, pois0=0, j1=1, j2=0, j3=1, j4=0, psp=3, w0=3, qd=4, od=4, nq=26, rec=0, forcefb=0, peB=2, peA=0, zq=0, prm=1, pf2=0, nowa=0, apo=22, apq=0, apx=0, ars=1, rb_at=50, rb_chk=68, rf_at=48, bfirst=0, rb_len=14, npf=6, agc=86, agb=93, xsh=0, swap07=1,
           stop="", p1st=0, touch=1, fine="", itouch=1, rt=0)

def f2u(x): return struct.unpack("<I", struct.pack("<f", x))[0]
LOG2E = 1.4426950408889634

XSLOT = 16384
WSL = 49152; WSLOT = 18432
WQ0 = 104448
WQ6 = 76800
PHI = 104448
ZERO = 159744
IMG = 0
IR = 80
VF = 40960
KVI = 61440
WO0 = 0
WO6 = 104448
OUTB = 76800
LDS_BYTES = 163840
PGRP = 48 * 4096
WS_F = 0x300000; WS_E = 0x380000; WS_R = 0x390000; WS_O = 0x400000; WS_ST = 0x900000; WS_BYTES = 0xA00000
OOB = 0x7ffffff0
SPIN = 30000
Q0 = [0, 32, 96, 160, 224]
WSTEP = 64 * 3456

SX, SW, SWO, SWS, SOUT, SPHI = s(24, 4), s(28, 4), s(32, 4), s(36, 4), s(40, 4), s(48, 4)
sL0, sL1, sL2, sL3 = s(44), s(45), s(46), s(47)
sA, sRT, sG, sWV = s(52), s(53), s(54), s(55)
sOQ, sOX, sOW = s(56), s(57), s(58)
s1152 = s(59)
sMX, sMW = s(60), s(61)
sT0, sT1, sT2, sT3 = s(62), s(63), s(64), s(65)
sSL = s(66)
sROT = s(67)
sPME, sRSB, sRF, sOB = s(68), s(69), s(70), s(71)
sCNT = s(72)
sFSL = s(73)
sC = s(74, 2)
sEPS = s(76, 2)
sODD = s(78, 2)
sMQ = s(80)
sOO = s(81)
sPC = s(82, 2)
sTAG, sMSK = s(82), s(83)
sOU = [s(84 + u) for u in range(8)]
sAG = s(92)
sO8 = s(93)
sOUTB = s(94)
sE = s(95)
sM8 = s(20); sQ8 = s(21); sPM2 = s(22); sPM3 = s(23)
sG144 = s(48); sRV = s(49); sQE = s(50); sOE = s(51)
STAMPS = [s(3 + i % 17) for i in range(28)]

vL = v(0)
T = [v(i) for i in range(1, 10)]
vOX = [v(10 + i) for i in range(4)]
vOW = [v(14 + i) for i in range(5)]
vXR = [v(19), v(20)]
vTR = [[v(21 + 2 * p + e) for e in range(2)] for p in range(5)]
vOQ = [v(31 + i) for i in range(5)]
vOO = [v(36 + i) for i in range(5)]
vO8 = [v(41 + i) for i in range(5)]
vL16 = v(46)
vGL, vN = v(47), v(48)
vM, vPSA, vKB0, vKB2, vFS, vL4, vIW, vVW, vAM, vAL, vP1 = [v(49 + i) for i in range(11)]
vP2, vP3, vAG1, vAG2 = v(60), v(61), v(62), v(63)
ACK = [[v(64 + 20 * p + 4 * t, 4) for t in range(5)] for p in range(2)]
ACV = [[v(104 + 20 * p + 4 * t, 4) for t in range(5)] for p in range(2)]
RING = [v(144 + 4 * i, 4) for i in range(8)]
KB = [v(176 + 12 * p, 12) for p in range(2)]
PH = [v(200 + 20 * p, 20) for p in range(2)]
TMP = v(144, 24)
PW = v(240, 3); M1 = v(244, 4); PA = v(248, 3); vR, vC = v(251), v(252)
vPH = [v(243), v(253), v(254)]
def XF(ks, p): return a(ks * 8 + p * 4, 4)
def PHIF(t, j): return a(144 + (t * 3 + j) * 4, 4)
def PSIF(t, j): return a((t * 5 + j) * 4, 4)

P = Prog()
I = P.I
cap = P.capture
stamp_names = []
def fst(name):
    names = OPT["fine"].split(",")
    if name in names:
        k = names.index(name)
        I("s_memrealtime" if OPT["rt"] else "s_memtime", s(4 + 2 * k, 2), c="fine " + name)
def stamp(name):
    if OPT["fine"]:
        fst(name)
    elif OPT["stamps"] and not OPT.get("mute"):
        k = len(stamp_names); stamp_names.append(name)
        real = True
        if OPT["lite"]:
            real = (k == OPT["amp"] or name == "end")
            if real: STAMPS[k] = s(5) if name == "end" else (s(4) if k else s(3))
        if real:
            I("s_memrealtime" if OPT["lite"] == 2 else "s_memtime", s(100, 2), c="stamp " + name)
            I("s_waitcnt", "lgkmcnt(0)")
            I("s_mov_b32", STAMPS[k], s(100))
    if OPT["stop"] == name:
        I("s_branch", "L_fin"); OPT["mute"] = 1

def wait(vm=None, lgkm=None):
    t = []
    if vm is not None: t.append("vmcnt(%d)" % vm)
    if lgkm is not None: t.append("lgkmcnt(%d)" % lgkm)
    I("s_waitcnt", " ".join(t))
def wait_vm(tag, lgkm=None): P.items.append(VmWait(tag, lgkm))
def tagged(groups, tag):
    for g in groups:
        for x in g:
            if isinstance(x, Ins) and x.kind == "vmem": x.tag = tag
    return groups
def mark(items, **kw):
    for x in items:
        if isinstance(x, Ins):
            for k, val in kw.items(): setattr(x, k, val)
    return items

def srd(dst, lo, hi, size):
    I("s_mov_b32", dst[0], lo); I("s_mov_b32", dst[1], hi)
    I("s_mov_b32", dst[2], size); I("s_mov_b32", dst[3], 0x20000)
def singles(items): return [[x] for x in items]
def emit_groups(groups):
    for g in groups: P.put(g)

def dma5(voffs, srdreg, soff, m0base, m0imm):
    def first():
        I("s_add_u32", "m0", m0base, m0imm)
        I("s_mov_b32", "exec_hi", 0)
        I("buffer_load_dwordx4", voffs[0], srdreg, soff, mods="offen lds")
        I("s_mov_b32", "exec_hi", -1)
    g = [cap(first)]
    for i in range(1, 5):
        g += singles(cap(lambda: I("buffer_load_dwordx4", voffs[i], srdreg, soff, mods="offen offset:%d lds" % (16 * Q0[i]))))
    return g

PERMS = {
    1: (3, [[7, 3, 6, 1, 8, 4, 2, 0, 5], [1, 3, 7, 2, 4, 8, 6, 0, 5], [3, 8, 1, 6, 2, 7, 0, 4, 5]]),
    2: (4, [[4, 0, 1, 5, 6, 2, 8, 7, 3], [4, 1, 5, 2, 7, 0, 6, 8, 3], [1, 4, 6, 7, 0, 2, 3, 5, 8], [4, 6, 1, 7, 3, 0, 5, 2, 8]]),
    3: (3, [[0, 1, 2, 3, 4, 5, 6, 7, 8], [1, 2, 0, 4, 5, 3, 7, 8, 6], [2, 0, 1, 5, 3, 4, 8, 6, 7]]),
    4: (8, [[3, 7, 5, 0, 8, 1, 4, 2, 6], [3, 5, 0, 4, 7, 6, 1, 8, 2], [5, 7, 4, 2, 0, 8, 3, 1, 6], [5, 3, 0, 8, 7, 2, 6, 1, 4], [3, 0, 4, 5, 8, 7, 6, 2, 1], [3, 5, 7, 0, 1, 2, 4, 8, 6], [7, 5, 2, 0, 4, 8, 6, 1, 3], [3, 4, 7, 0, 2, 1, 6, 8, 5]]),
    5: (3, [[0, 1, 2, 3, 4, 5, 6, 7, 8], [3, 4, 5, 6, 7, 8, 0, 1, 2], [6, 7, 8, 0, 1, 2, 3, 4, 5]]),
}
SBO = s(88, 4)
SBQ = s(12, 4)
SBX = s(76, 4)
sPM = s(22, 2)
sPQ = s(16, 2)
sXB0, sWB0, sXSH = s(84 + 1), s(84 + 2), s(84 + 3)
def stage_of(dst, src):
    I("s_and_b32", dst, src, 15)
    if OPT["xsh"]:
        I("s_add_u32", dst, dst, sXSH)
def stage_fix(dst):
    I("s_cmp_ge_u32", dst, 9)
    I("s_cselect_b32", sT1, 9, 0)
def perm_next():
    g = singles(cap(lambda: stage_of(sT0, sPM[0])))
    if OPT["xsh"]: g += [cap(lambda: stage_fix(sT0))] + singles(cap(lambda: I("s_sub_u32", sT0, sT0, sT1)))
    def f():
        I("s_lshr_b64", sPM, sPM, 4)
        I("s_lshl_b32", sOX, sT0, 7); I("s_add_u32", sOX, sOX, sXB0)
        I("s_mul_i32", sOW, sT0, WSTEP); I("s_add_u32", sOW, sOW, sWB0)
    return g + singles(cap(f))
def permq_next():
    g = singles(cap(lambda: stage_of(sT0, sPQ[0])))
    if OPT["xsh"]: g += [cap(lambda: stage_fix(sT0))] + singles(cap(lambda: I("s_sub_u32", sT0, sT0, sT1)))
    def f():
        I("s_lshr_b64", sPQ, sPQ, 8)
        I("s_mul_i32", sOQ, sT0, WSTEP); I("s_add_u32", sOQ, sOQ, sQE)
    return g + singles(cap(f))
def wraps_after(j):
    rots = {1: [0], 2: [0, 4], 3: [0, 3, 6], 4: [0, 2, 4, 6], 5: [0, 2, 5, 7], 8: list(range(8)), 6: list(range(9)), 7: list(range(9))}[OPT["nphase"]]
    return any(r + j == 8 for r in rots) and j < 8
def x_dma(j):
    g = singles(cap(lambda: I("s_add_u32", "m0", sMX, (j % 3) * XSLOT)))
    for i in range(4):
        g += singles(cap(lambda: I("buffer_load_dwordx4", vOX[i], SX, sOX, mods="offen offset:%d lds" % (1024 * i))))
    return tagged(g, "S%d" % j)
def w_dma(j):
    g = tagged(dma5(vOW, SW, sOW, sMW, (j % 3) * WSLOT), "S%d" % j)
    if j < 8 and OPT["perm"]:
        g += perm_next()
    elif j < 8:
        g += singles(cap(lambda: (I("s_add_u32", sOX, sOX, 128), I("s_add_u32", sOW, sOW, WSTEP))))
        if wraps_after(j):
            def wr():
                I("s_cmp_eq_u32", sROT, 8 - j)
                I("s_cselect_b32", sT0, 1152, 0); I("s_cselect_b32", sT1, 9 * WSTEP, 0)
            g.append(cap(wr))
            g += singles(cap(lambda: (I("s_sub_u32", sOX, sOX, sT0), I("s_sub_u32", sOW, sOW, sT1))))
    return g
def stage_dma(j): return x_dma(j) + w_dma(j)

def advance(reg, step, end, span):
    def a1():
        I("s_add_u32", reg, reg, step)
        I("s_cmp_ge_u32", reg, end)
        I("s_cselect_b32", sT0, span, 0)
    return [cap(a1)] + singles(cap(lambda: I("s_sub_u32", reg, reg, sT0)))
def wq_pair_dma(j):
    pos = (WQ0 + j * 9216) if j < 6 else (WQ6 + (j - 6) * 9216)
    if j == 8:
        return singles(cap(lambda: I("s_add_u32", sOQ, sOQ, sQ8))) + tagged(dma5(vOQ, SW, sOQ, sM8, pos), "WQ8")
    g = tagged(dma5(vOQ, SW, sOQ, sMQ, pos), "WQ%d" % j)
    g += permq_next() if OPT["perm"] else advance(sOQ, 2 * WSTEP, sQE, 9 * WSTEP)
    if j == 0 and OPT["perm"]: g = permq_next() + g
    return g
def wo_pair_dma(u):
    pos = (WO0 + u * 9216) if u < 6 else (WO6 + (u - 6) * 9216)
    g = tagged(dma5(vOO, SWO, sOO, sMQ, pos), "WO%d" % u)
    if OPT["nowa"] & 1: return [cap(lambda: I("s_nop", 0)) for _ in range(5)]
    if u < 6 and OPT["gord"]:
        def nx():
            I("s_add_u32", sT0, sOE, u + 1)
            I("s_cmp_ge_u32", sT0, sG)
            I("s_addc_u32", sT0, sT0, 0)
        g += [cap(nx)] + singles(cap(lambda: (I("s_mul_i32", sT0, sT0, 82944), I("s_add_u32", sOO, sT0, sO8))))
    elif u < 6: g += advance(sOO, 2 * 82944, sOE, 8 * 82944)
    return g
def only_waves01(groups, tag):
    def f():
        I("s_cmp_ge_u32", sWV, 2)
        I("s_cbranch_scc1", "L_skip_" + tag)
        for g in groups: P.put(mark(g, cond=True))
        P.label("L_skip_" + tag)
    return [cap(f)]

def tr(dst, addr, off):
    assert 0 <= off < 65536, off
    I("ds_read_b64_tr_b16", dst, addr, mods="offset:%d" % off)
def mfma(d, x, y, c): I("v_mfma_f32_16x16x32_bf16", d, x, y, c)
def tile_read(dstreg, T_, base_off, kv=False):
    if T_ < 3: pat, o = 0, 8 * T_
    elif T_ == 3: pat, o = 1, 0
    elif T_ == 4: pat, o = (4 if kv else 2), 0
    else: pat, o = 3, 144 + 8 * [0, 5, 9, 14][T_ - 5]
    for e in range(2):
        tr(dstreg[2 * e:2 * e + 2], vTR[pat][e], base_off + o)

class Pipe:
    def __init__(self, dist=4, grp=2):
        self.units = []; self.dist = dist; self.grp = grp; self.hooks = {}
    def add(self, rd, work, pre=None, rt=None):
        k = len(self.units)
        wk = cap(work)
        if OPT["snake"] and k & 1 and self.grp == 2: wk = wk[::-1]
        self.units.append((cap(rd), wk, cap(pre) if pre else None, k - self.dist if rt is None else rt))
    def emit(self, fill=(), bulk=(), lead=()):
        fill = list(fill); bulk = list(bulk)
        U = self.units; n = len(U)
        seq = []
        state = dict(done=0)
        def put(items, owner=-1):
            for x in items:
                if isinstance(x, Ins) and x.kind == "ds": seq.append(owner)
                if isinstance(x, Ins) and x.op == "s_waitcnt" and ("lgkmcnt(0)" in x.args[0] or getattr(x, "lgkm", None) == 0): state["done"] = len(seq)
            P.put(items)
        def need_wait(k):
            last = max([i for i, o in enumerate(seq) if o == k] + [-1])
            return last >= state["done"]
        byt = {}
        for k, u in enumerate(U): byt.setdefault(max(u[3], -1), []).append(k)
        for k in byt.get(-1, []): put(U[k][0], k)
        put(list(lead))
        while bulk and bulk[0][0] < 0: put(bulk.pop(0)[1])
        def take(k):
            if fill and fill[0][0] <= k: put(fill.pop(0)[1]); return True
            if bulk and bulk[0][0] <= k + 6: put(bulk.pop(0)[1]); return True
            return False
        for k in range(n):
            if k in self.hooks: put(self.hooks[k])
            if U[k][2]: put(U[k][2])
            if need_wait(k):
                want = [q for q in range(k, min(n, k + self.grp)) if U[q][3] < k - 1 or q == k]
                last = max(i for i, o in enumerate(seq) if o in want)
                later = len(seq) - 1 - last
                if later > 15: later = 15; last = len(seq) - 1 - later
                wait(lgkm=later); state["done"] = last + 1
            nxt = [(x, q) for q in byt.get(k, []) for x in U[q][0]]
            half = (len(nxt) + 1) // 2
            w = U[k][1]
            P.put([w[0]])
            for x, q in nxt[:half]: put([x], q)
            for _ in range(max(0, 2 - half)): take(k)
            P.put(w[1:])
            for x, q in nxt[half:]: put([x], q)
            rest = len(nxt) - half + (1 if (k + 1 < n and need_wait(k + 1)) else 0) + (2 if k + 1 in self.hooks else 0)
            for _ in range(max(0, 2 - rest)): take(k)
            while fill and fill[0][0] <= k - 3: put(fill.pop(0)[1])
            while bulk and bulk[0][0] <= k: put(bulk.pop(0)[1])
        for _, g in fill + bulk: put(g)

def vm_only(groups):
    if groups[0][0].op == "s_nop": return groups
    out = []
    for g in groups:
        if any(x.kind == "vmem" for x in g) or not out: out.append(list(g))
        else: out[-1] += g
    return out
def weave(a_, b_):
    out = []; na, nb = len(a_), len(b_); i = j = 0
    while i < na or j < nb:
        if j >= nb or (i < na and i * nb <= j * na): out.append(a_[i]); i += 1
        else: out.append(b_[j]); j += 1
    return out
def at(unit, groups): return [(unit + i * 2 // 3, g) for i, g in enumerate(groups)]
def spread(groups, first, last):
    n = len(groups)
    return [(first + (last - first) * i // max(1, n), g) for i, g in enumerate(groups)]
def merge(main, extra, start=0, step=2):
    out = []; extra = list(extra)
    for i, x in enumerate(main):
        out.append(x)
        if extra and i >= start and (i - start) % step == step - 1: out += extra.pop(0)
    for g in extra: out += g
    return out

def sm_head(src18, tmp, both=None):
    if both is None: both = not OPT["rec"]
    mx, mn = tmp[18], tmp[19]
    if both:
        I("v_max3_f32", mx, src18[0], src18[1], src18[2]); I("v_min3_f32", mn, src18[0], src18[1], src18[2])
        for i in range(3, 17, 2):
            I("v_max3_f32", mx, mx, src18[i], src18[i + 1]); I("v_min3_f32", mn, mn, src18[i], src18[i + 1])
        I("v_max_f32", mx, mx, src18[17]); I("v_min_f32", mn, mn, src18[17])
        I("v_mul_f32", tmp[20], sC[0], mx); I("v_mul_f32", tmp[21], sC[0], mn)
    else:
        I("v_max3_f32", mx, src18[0], src18[1], src18[2])
        for i in range(3, 17, 2): I("v_max3_f32", mx, mx, src18[i], src18[i + 1])
        I("v_max_f32", mx, mx, src18[17])
        I("v_mul_f32", tmp[20], sC[0], mx)
def sm_mid(src18, tmp, both):
    ab = tmp[20:22]
    for i in range(0, 18, 2):
        if both: I("v_pk_fma_f32", tmp[i:i + 2], src18[i:i + 2], sC, ab, mods="op_sel:[0,0,1] op_sel_hi:[1,1,1] neg_lo:[1,0,0] neg_hi:[1,0,0]")
        I("v_pk_fma_f32", src18[i:i + 2], src18[i:i + 2], sC, ab, mods="op_sel:[0,0,0] op_sel_hi:[1,1,0] neg_lo:[0,0,1] neg_hi:[0,0,1]")
    sp, sn = tmp[18:20], tmp[20:22]
    for i in range(0, 18, 2):
        if both:
            for h in range(2):
                I("v_exp_f32", src18[i + h], src18[i + h]); I("v_exp_f32", tmp[i + h], tmp[i + h])
        else:
            for h in range(2): I("v_exp_f32", src18[i + h], src18[i + h])
            for h in range(2): I("v_rcp_f32", tmp[i + h], src18[i + h])
        if i == 4:
            I("v_pk_add_f32", sp, src18[0:2], src18[2:4]); I("v_pk_add_f32", sn, tmp[0:2], tmp[2:4])
        elif i > 4:
            I("v_pk_add_f32", sp, sp, src18[i - 2:i]); I("v_pk_add_f32", sn, sn, tmp[i - 2:i])
    I("v_pk_add_f32", sp, sp, src18[16:18]); I("v_pk_add_f32", sn, sn, tmp[16:18])
    rr = tmp[22:24]
    I("v_add_f32", rr[0], sp[0], sp[1]); I("v_add_f32", rr[1], sn[0], sn[1])
def sm_tail(src18, out18, tmp, p=0, tag=""):
    sm_mid(src18, tmp, not OPT["rec"])
    rr = tmp[22:24]
    if OPT["rec"]:
        lab = "%s%d" % (tag, p)
        I("v_cmp_ngt_f32", "vcc", f2u(2.0 ** 60) if not OPT["forcefb"] else f2u(64.0), rr[1])
        I("s_cbranch_vccnz", "L_smx" + lab)
        P.label("L_smb" + lab)
        def fb():
            P.label("L_smx" + lab)
            I("s_nop", 1)
            for j in range(3):
                for t in range(5):
                    mfma(ACK[p][t], PHIF(t, j), KB[p][4 * j:4 * j + 4], 0 if j == 0 else ACK[p][t])
            sm_head(src18, tmp, True); sm_mid(src18, tmp, True)
            I("s_branch", "L_smb" + lab)
        RARE.append(cap(fb))
    I("v_rcp_f32", rr[0], rr[0]); I("v_rcp_f32", rr[1], rr[1])
    def el(d): return (src18[2 * d:2 * d + 2], "op_sel:[0,0] op_sel_hi:[1,0]") if d < 9 else (tmp[2 * (d - 9):2 * (d - 9) + 2], "op_sel:[0,1] op_sel_hi:[1,1]")
    for d in range(0, 18, 2):
        for h in range(2): I("v_pk_mul_f32", el(d + h)[0], el(d + h)[0], rr, mods=el(d + h)[1])
        for h in range(2): I("v_cvt_pk_bf16_f32", out18[d + h], el(d + h)[0][0], el(d + h)[0][1])

SLOW = []
RARE = []
ACC = [v(64 + 20 * p, 20) for p in range(2)]
def cv(p, kv=False):
    if kv:
        for i in range(8): I("v_cvt_pk_bf16_f32", KB[p][i], ACC[p][2 * i], ACC[p][2 * i + 1])
        I("v_permlane16_swap_b32", ACC[p][16], ACC[p][18]); I("v_permlane16_swap_b32", ACC[p][17], ACC[p][19])
        I("v_cvt_pk_bf16_f32", KB[p][8], ACC[p][16], ACC[p][17])
        I("v_cvt_pk_bf16_f32", KB[p][10], ACC[p][18], ACC[p][19])
        I("v_mov_b32", PH[p][18], KB[p][10])
        return
    for i in range(8): I("v_cvt_pk_bf16_f32", KB[p][i], ACC[p][2 * i], ACC[p][2 * i + 1])
    I("v_permlane16_swap_b32", ACC[p][16], ACC[p][18]); I("v_permlane16_swap_b32", ACC[p][17], ACC[p][19])
    I("v_cvt_pk_bf16_f32", KB[p][8], ACC[p][16], ACC[p][17])

def chase(body, groups):
    out = []; groups = list(groups)
    lastdef = {}
    for i, x in enumerate(body):
        if isinstance(x, Ins):
            for r in x.defs: lastdef[r] = i
    pos = {}
    for g in groups:
        p_ = max([lastdef.get(r, -1) for x in g for r in x.uses] + [-1])
        pos.setdefault(p_, []).append(g)
    for g in pos.get(-1, []): out += g
    for i, x in enumerate(body):
        out.append(x)
        for g in pos.get(i, []): out += g
    return out

def evenly(lst, groups, lo=0, hi=100):
    out = []; groups = list(groups); n = len(lst); m = len(groups)
    pos = [n * lo // 100 + (n * (hi - lo) // 100) * i // max(1, m) for i in range(m)]
    for i, x in enumerate(lst):
        out.append(x)
        if i + 1 < n and (isinstance(lst[i + 1], Label) or lst[i + 1].op.startswith("s_cbranch")): continue
        while groups and pos[0] <= i:
            out += groups.pop(0); pos.pop(0)
    for g in groups: out += g
    return out

def feature_map(path, tag, cv_done, shadow, mid0, mid1, after_p):
    if path == "B":
        def mm(p):
            for j in range(3):
                for t in range(5):
                    mfma(ACK[p][t], PHIF(t, j), KB[p][4 * j:4 * j + 4], 0 if j == 0 else ACK[p][t])
        body = [] if cv_done else cap(lambda: cv(0))
        sh = ([] if cv_done else singles(cap(lambda: cv(1)))) + list(shadow)
        head0 = singles(cap(lambda: sm_head(ACC[0][0:18], TMP)))
        ms = cap(lambda: (mm(0), mm(1)))
        for i, x in enumerate(ms):
            body.append(x)
            if i == (24 if OPT["rec"] else 19): sh = head0 + sh
            k = 0
            while sh and k < 2:
                g = sh.pop(0); body += g; k += len(g)
        for g in sh: body += g
        body += cap(lambda: fst(tag + "mm"))
        body += evenly(cap(lambda: sm_tail(ACC[0][0:18], PH[0][0:18], TMP, 0, tag)), *mid0)
        body += cap(lambda: fst(tag + "t0"))
        t1 = cap(lambda: (sm_head(ACC[1][0:18], TMP), sm_tail(ACC[1][0:18], PH[1][0:18], TMP, 1, tag)))
        t1 = evenly(t1, after_p(0), 2, 66)
        t1 = evenly(t1, *mid1)
        body += chase(t1, after_p(1))
    else:
        def pa(p):
            x = ACC[p]
            if not cv_done:
                I("v_permlane16_swap_b32", x[16], x[18]); I("v_permlane16_swap_b32", x[17], x[19])
            for i in range(0, 18, 2): I("v_pk_mul_f32", TMP[i:i + 2], x[i:i + 2], sC)
            for d in range(9):
                for i in (2 * d, 2 * d + 1):
                    I("v_exp_f32", TMP[i], TMP[i], mods="clamp")
                    I("v_max_f32", x[i], 0, x[i])
                I("v_pk_add_f32", x[2 * d:2 * d + 2], x[2 * d:2 * d + 2], sEPS)
                I("v_pk_add_f32", x[2 * d:2 * d + 2], x[2 * d:2 * d + 2], TMP[2 * d:2 * d + 2])
                I("v_cvt_pk_bf16_f32", KB[p][d], x[2 * d], x[2 * d + 1])
        body = []
        for g in shadow: body += g
        body += cap(lambda: fst(tag + "mm"))
        body += chase(evenly(cap(lambda: pa(0)), *mid0), after_p(0))
        body += cap(lambda: fst(tag + "t0"))
        t1 = cap(lambda: pa(1))
        t1 = evenly(t1, *mid1)
        body += chase(t1, after_p(1))
    return body + cap(lambda: fst(tag + "t1"))

def umax(dst, regs):
    regs = list(regs)
    I("v_max3_u32", dst, regs[0], regs[1], regs[2]); regs = regs[3:]
    while len(regs) >= 2:
        I("v_max3_u32", dst, dst, regs[0], regs[1]); regs = regs[2:]
    if regs: I("v_max_u32", dst, dst, regs[0])

def check_or_retry(tag, fold, cmp_bad, loads):
    g = singles(cap(fold))
    def test():
        cmp_bad()
        I("s_cbranch_vccnz", "L_slow_" + tag)
        P.label("L_back_" + tag)
    g.append(cap(test))
    def slow():
        P.label("L_slow_" + tag)
        P.label("L_sp_" + tag)
        if OPT["stamps"] and not OPT["lite"]: I("s_add_u32", s(3), s(3), {"r": 1, "a": 0x100, "o": 0x10000}[tag[0]] if not tag.startswith("rf") else 0x1000000)
        loads()
        wait(vm=0)
        fold()
        cmp_bad()
        I("s_add_u32", sCNT, sCNT, 1)
        I("s_cmp_gt_u32", sCNT, SPIN)
        I("s_cbranch_scc1", "L_back_" + tag)
        I("s_cbranch_vccnz", "L_sp_" + tag)
        I("s_branch", "L_back_" + tag)
    SLOW.append(cap(slow))
    return g
def check_sent(tag, chk, regs, loads):
    return check_or_retry(tag, lambda: umax(chk, regs), lambda: I("v_cmp_eq_u32", "vcc", -1, chk), loads)
def check_tag(tag, chk, regs, loads):
    def fold():
        for r in regs: I("v_xor_b32", r, sTAG, r)
        I("v_or3_b32", chk, regs[0], regs[1], regs[2])
        for i in range(3, len(regs) - 1, 2): I("v_or3_b32", chk, chk, regs[i], regs[i + 1])
        I("v_or_b32", chk, chk, regs[-1])
        I("v_and_b32", chk, 0xff, chk)
    return check_or_retry(tag, fold, lambda: I("v_cmp_ne_u32", "vcc", 0, chk), loads)

def build():
    I("s_cmp_ge_u32", s(2), 256)
    I("s_cbranch_scc1", "L_end")
    if OPT["swap07"]:
        I("s_add_u32", sT0, s(2), 1); I("s_and_b32", sT0, sT0, 6)
        I("s_cselect_b32", sT0, 0, 7)
        I("s_xor_b32", s(2), s(2), sT0)
    I("s_bfe_u32", sA, s(2), 0x10002)
    I("s_cmp_lg_u32", sA, 0)
    I("s_cselect_b32", sT0, 0, 24)
    I("s_cselect_b32", sT1, 8, 32)
    I("s_cselect_b32", sT2, 16, 48)
    I("s_load_dwordx2", SX[0:2], s(0, 2), sT0)
    I("s_load_dwordx2", SW[0:2], s(0, 2), sT1)
    I("s_load_dwordx2", SWO[0:2], s(0, 2), sT2)
    I("s_load_dwordx2", SPHI[0:2], s(0, 2), 40)
    I("s_load_dwordx2", SOUT[0:2], s(0, 2), 56)
    I("s_load_dwordx2", SWS[0:2], s(0, 2), 72)
    if OPT["apo"]: I("s_load_dwordx2", SBO[0:2], s(0, 2), 48)
    if OPT["apq"]: I("s_load_dwordx2", SBQ[0:2], s(0, 2), 32)
    if OPT["apx"]: I("s_load_dwordx2", SBX[0:2], s(0, 2), 24)
    I("s_getpc_b64", sPC)
    I("s_and_b32", sT0, s(2), 0xf8)
    I("v_lshrrev_b32", T[0], 5, v(0))
    I("v_add_lshl_u32", T[1], T[0], sT0, 7)
    I("s_cmp_ge_u32", sT0, "HEAD_LINES")
    I("s_cselect_b32", sT1, sA, 0)
    I("s_mul_i32", sT1, sT1, "A_SHIFT")
    I("v_add_u32", T[1], sT1, T[1])
    I("v_min_u32", T[1], "CODE_SPAN", T[1])
    I("global_load_dword", v(255), T[1], sPC)
    if OPT["stamps"]:
        I("s_memtime", s(98, 2)); I("s_memrealtime", s(96, 2))
        if OPT["fine"]: I("s_mov_b32", s(3), 0)
    I("v_readfirstlane_b32", sWV, T[0])
    I("v_and_b32", vL, 63, v(0))
    I("s_and_b32", sT0, s(2), 3)
    I("s_lshr_b32", sT1, s(2), 6)
    I("s_lshr_b32", sWV, sWV, 1)
    I("s_lshl2_add_u32", sRT, sT0, sT1)
    I("s_bfe_u32", sG, s(2), 0x30003)
    if OPT["perm"]:
        K, tab = PERMS[OPT["perm"]]
        if OPT["xsh"]: I("s_mul_i32", sXSH, sT0, OPT["xsh"])
        if K == 8:
            I("s_lshl1_add_u32", sT0, sT1, sG); I("s_and_b32", sT0, sT0, 7)
        elif K == 4:
            I("s_add_u32", sT0, sG, sT1); I("s_and_b32", sT0, sT0, 3)
        else:
            I("s_add_u32", sT0, sG, sT1); I("s_mul_i32", sT1, sT0, 86); I("s_lshr_b32", sT1, sT1, 8)
            I("s_mul_i32", sT1, sT1, 3); I("s_sub_u32", sT0, sT0, sT1)
        lo = [sum(p[i] << (4 * i) for i in range(8)) for p in tab]
        I("s_mov_b32", sPM[0], lo[0])
        for k_ in range(1, K):
            I("s_cmp_eq_u32", sT0, k_); I("s_cselect_b32", sPM[0], lo[k_], sPM[0])
        I("s_lshl_b32", sT0, sT0, 2)
        I("s_lshr_b32", sPM[1], sum(p[8] << (4 * k_) for k_, p in enumerate(tab)), sT0)
        I("s_and_b32", sPM[1], sPM[1], 15)
        I("s_lshl_b32", sT0, sWV, 1); I("s_and_b32", sT0, sT0, 4)
        I("s_lshr_b64", sPQ, sPM, sT0)
        I("s_mov_b32", sROT, 0)
    elif OPT["nphase"] == 7:
        I("s_add_u32", sT1, sG, sT1)
        I("s_and_b32", sT1, sT1, 1)
        I("s_lshl2_add_u32", sROT, sT1, sT0)
        I("s_add_u32", sROT, sROT, sT1)
    elif OPT["nphase"] in (3, 6):
        if OPT["nphase"] == 6:
            I("s_cmp_eq_u32", sT0, 3); I("s_cselect_b32", sT2, 1, sT0)
        I("s_add_u32", sT0, sG, sT1)
        I("s_mul_i32", sT1, sT0, 86)
        I("s_lshr_b32", sT1, sT1, 8)
        I("s_mul_i32", sT1, sT1, 3)
        I("s_sub_u32", sT0, sT0, sT1)
        I("s_mul_i32", sROT, sT0, 3)
        if OPT["nphase"] == 6: I("s_add_u32", sROT, sROT, sT2)
    elif OPT["nphase"] == 4:
        I("s_add_u32", sT0, sG, sT1)
        I("s_and_b32", sT0, sT0, 3)
        I("s_lshl_b32", sROT, sT0, 1)
    elif OPT["nphase"] == 5:
        I("s_add_u32", sT0, sG, sT1)
        I("s_and_b32", sT0, sT0, 3)
        I("s_mul_i32", sT0, sT0, 5)
        I("s_lshr_b32", sROT, sT0, 1)
    elif OPT["nphase"] == 8:
        I("s_lshl1_add_u32", sT0, sT1, sG)
        I("s_and_b32", sROT, sT0, 7)
    elif OPT["nphase"] == 2:
        I("s_add_u32", sT0, sG, sT1)
        I("s_and_b32", sT0, sT0, 1)
        I("s_lshl_b32", sROT, sT0, 2)
    else:
        I("s_mov_b32", sROT, 0)
    I("s_lshl2_add_u32", sSL, sRT, sWV)
    I("s_mul_i32", sOX, sSL, 32 * 1152)
    I("s_lshl_b32", sT0, sROT, 7)
    I("s_add_u32", sOX, sOX, sT0)
    I("s_lshl_b32", sMX, sWV, 12)
    I("s_mul_i32", sMQ, sWV, 4608)
    I("s_add_u32", sMW, sMQ, WSL)
    I("s_movk_i32", s1152, 1152)
    I("v_lshrrev_b32", T[0], 3, vL)
    I("v_mul_u32_u24", T[0], s1152, T[0])
    I("v_lshrrev_b32", vGL, 4, vL)
    I("v_and_b32", T[1], 7, vL)
    I("v_xor_b32", T[1], T[1], vGL)
    I("v_lshl_add_u32", vOX[0], T[1], 4, T[0])
    I("v_xor_b32", vOX[1], 64, vOX[0])
    I("v_add_u32", vOX[2], 16 * 1152 - 2048, vOX[0])
    I("v_add_u32", vOX[3], 24 * 1152 - 3072, vOX[1])
    I("v_add_u32", vOX[1], 8 * 1152 - 1024, vOX[1])
    I("s_mov_b32", SX[2], 2048 * 1152); I("s_mov_b32", SX[3], 0x20000)
    I("s_mov_b32", SW[2], 576 * 3456); I("s_mov_b32", SW[3], 0x20000)
    I("s_mul_i32", sL3, sG, 144)
    I("s_lshl2_add_u32", sT0, sROT, sWV)
    I("s_mul_i32", sOW, sT0, 16 * 3456)
    I("s_add_u32", sOW, sOW, sL3)
    I("s_add_u32", sOW, sOW, s1152)
    if OPT["perm"]:
        I("s_mov_b32", sXB0, sOX); I("s_mov_b32", sWB0, sOW)
        emit_groups(perm_next())
    I("s_movk_i32", sL0, 3456); I("s_movk_i32", sL1, -144)
    I("v_lshlrev_b32", vL16, 4, vL)
    I("v_mul_u32_u24", vM, 7282, vL)
    DR = [v(64 + i) for i in range(5)]; DP = [v(70 + i) for i in range(5)]; DC = [v(76 + i) for i in range(5)]
    for i in range(5):
        t = vM
        if i:
            I("v_add_u32", T[0], Q0[i] * 7282, vM); t = T[0]
        I("v_lshrrev_b32", T[1], 16, t)
        I("v_lshrrev_b32", DR[i], 17, t)
        I("v_and_b32", DP[i], 1, T[1])
        I("v_mad_i32_i24", DC[i], T[1], sL1, vL16)
        if i == 2:
            I("v_lshrrev_b32", T[2], 1, DR[i]); I("v_and_b32", T[2], 4, T[2]); I("v_xor_b32", DR[i], DR[i], T[2])
        elif i > 2:
            I("v_xor_b32", DR[i], 4, DR[i])
        I("v_mad_u32_u24", T[2], DR[i], sL0, DC[i])
        I("v_mad_u32_u24", vOW[i], DP[i], s1152, T[2])
    for r_, z_ in ((SWO, 576 * 1152), (SPHI, 32 * 648), (SOUT, 2048 * 2304), (SWS, WS_BYTES)):
        I("s_mov_b32", r_[2], z_); I("s_mov_b32", r_[3], 0x20000)
    I("v_lshlrev_b32", vL4, 2, vL)
    I("s_lshl2_add_u32", sT2, sG, sWV); I("s_mul_i32", sT2, sT2, 648)
    I("s_lshl3_add_u32", sL2, sA, sG)
    I("s_lshl_b32", sAG, sL2, 14); I("s_add_u32", sAG, sAG, WS_F)
    I("s_sub_u32", sT0, 2, sA)
    I("s_min_u32", sT1, sWV, sT0); I("s_mul_i32", sT3, sRT, sT0); I("s_add_u32", sT3, sT3, sRT); I("s_add_u32", sRSB, sT1, sT3)
    I("s_lshl_b32", sT1, sRSB, 8); I("s_add_u32", sFSL, sAG, sT1)
    I("s_cmp_gt_u32", sWV, sT0)
    I("s_cselect_b32", sFSL, OOB, sFSL)
    I("s_lshl3_add_u32", sT0, sA, 0); I("s_and_b32", sT1, sRSB, 7); I("s_or_b32", sT0, sT0, sT1)
    I("s_cmp_eq_u32", sT0, 15)
    I("s_cselect_b32", sFSL, OOB, sFSL)
    I("s_subb_u32", sRSB, sRSB, 0)
    I("v_and_b32", vN, 15, vL)
    I("v_and_b32", T[7], 1, vGL)
    I("v_lshlrev_b32", T[0], 2, vGL); I("v_lshl_add_u32", T[0], vN, 4, T[0])
    I("v_lshl_or_b32", vFS, T[7], 30, T[0])
    I("s_mul_i32", sT0, sSL, 32 * 2304)
    I("s_add_u32", sT0, sT0, sL3)
    I("s_xor_b32", sT1, sA, 1); I("s_mul_i32", sT1, sT1, 1152); I("s_add_u32", sOUTB, sT0, sT1)
    I("s_lshl_b32", sT0, sA, 6); I("s_add_u32", sT0, sT0, sSL)
    I("s_lshl_b32", sRF, sT0, 7); I("s_add_u32", sRF, sRF, WS_R)
    if OPT["pois0"]:
        I("s_mul_i32", sOB, sT0, 8 * 4608); I("s_add_u32", sOB, sOB, WS_O)
        I("s_lshl_b32", sT0, sL3, 5); I("s_add_u32", sOU[0], sT0, sOB)
        for i in range(4): I("v_mov_b32", M1[i], -1)
        I("v_lshlrev_b32", v(92), 3, vL); I("v_add_u32", v(92), 4096, v(92))
    if OPT["apx"]:
        I("s_mul_i32", SBX[2], sA, 2048 * 1152); I("s_mov_b32", SBX[3], 0x20000)
        I("s_lshl3_add_u32", sCNT, sSL, sG); I("s_mul_i32", sCNT, sCNT, 4 * 1152)
        I("v_min_u32", v(93), 35, vL); I("v_lshlrev_b32", v(93), 7, v(93))
    I("v_lshlrev_b32", v(90), 20, vL)
    I("v_mov_b32", v(91), 0)
    I("s_mov_b32", sT0, WS_E)
    wait(lgkm=0)
    fst("karg")
    def extras():
        for i in range(3):
            I("buffer_load_dword", PW[i], vL4, SPHI, sT2, mods="offen offset:%d" % (256 * i))
        I("buffer_load_dword", v(255), v(91), SWS, sRF, mods="offen sc1")
        if OPT["touch"]:
            I("buffer_load_dword", v(255), v(90), SWS, 0, mods="offen")
            I("buffer_load_dword", v(255), v(91), SOUT, sOUTB, mods="offen")
            I("buffer_load_dword", v(255), v(91), SWO, sL3, mods="offen")
    def pois0():
        for i in range(4):
            I("buffer_store_dwordx4", M1, vL16, SWS, sOU[0], mods="offen offset:%d sc1" % (1024 * i))
        I("buffer_store_dwordx2", M1[0:2], v(92), SWS, sOU[0], mods="offen sc1")
    if OPT["pois0"] == 1: pois0()
    apx = lambda: I("buffer_load_dword", v(255), v(93), SBX, sCNT, mods="offen")
    if OPT["apx"] == 1: apx()
    emit_groups(x_dma(0))
    I("s_load_dword", sE, SWS[0:2], sT0)
    if OPT["xo"] == 0: extras()
    emit_groups(w_dma(0))
    if OPT["xo"] == 1: extras()
    if OPT["apx"] == 2: apx()
    def xpf():
        I("s_lshl3_add_u32", sT0, sRT, sG); I("s_lshl2_add_u32", sT0, sT0, sWV); I("s_mul_i32", sT0, sT0, 4 * 1152)
        I("v_min_u32", T[1], 35, vL); I("v_lshlrev_b32", T[1], 7, T[1])
        I("buffer_load_dword", v(255), T[1], SX, sT0, mods="offen")
    if OPT["pfx"] == 1: xpf()
    stamp("S0iss")
    I("v_lshrrev_b32", T[0], 1, vN)
    I("v_xor_b32", T[0], T[0], vGL)
    I("v_lshl_add_u32", T[1], vN, 7, sMX)
    I("v_lshl_add_u32", vXR[0], T[0], 4, T[1])
    I("v_xor_b32", vXR[1], 64, vXR[0])
    I("v_bfe_u32", vR, vL, 2, 2)
    I("v_and_b32", vC, 3, vL)
    I("v_lshl_add_u32", T[1], vGL, 3, vR)
    I("v_lshl_add_u32", T[2], T[7], 2, T[1])
    I("v_xor_b32", T[3], 4, T[2])
    I("s_movk_i32", sT0, 288); I("v_mov_b32", T[4], WSL)
    I("v_mad_u32_u24", T[2], T[2], sT0, T[4]); I("v_mad_u32_u24", T[3], T[3], sT0, T[4])
    I("v_mul_u32_u24", T[0], 40, vC)
    I("v_lshrrev_b32", T[1], 1, vC)
    I("v_add_u32", vTR[0][0], T[2], T[0]); I("v_add_u32", vTR[0][1], T[3], T[0])
    I("v_lshlrev_b32", T[6], 5, T[1]); I("v_sub_u32", T[6], T[0], T[6])
    I("v_add3_u32", vTR[1][0], T[2], T[6], 24); I("v_add3_u32", vTR[1][1], T[3], T[6], 24)
    I("v_mul_u32_u24", T[6], 72, T[1])
    I("v_add3_u32", vTR[2][0], T[2], T[6], 32); I("v_add3_u32", vTR[2][1], T[3], T[6], 32)
    I("v_lshl_add_u32", vTR[3][0], vC, 3, T[2]); I("v_lshl_add_u32", vTR[3][1], vC, 3, T[3])
    I("v_and_b32", T[6], 1, vC); I("v_mul_u32_u24", T[6], 144, T[6])
    I("v_add_u32", vTR[4][0], vTR[2][0], T[6]); I("v_add_u32", vTR[4][1], vTR[2][1], T[6])
    if OPT["zq"]:
        I("v_lshl_add_u32", vTR[2][0], T[6], 11, vTR[2][0]); I("v_lshl_add_u32", vTR[2][1], T[6], 11, vTR[2][1])
    I("s_mov_b32", sT0, 32 * 3456 - 1152); I("s_movk_i32", sT1, 72)
    for i in range(5):
        I("v_mad_u32_u24", vOQ[i], DP[i], sT0, vOW[i])
        I("v_lshl_add_u32", T[0], DP[i], 3, DR[i])
        I("v_and_b32", T[3], 1, DR[i])
        if i == 2:
            I("v_lshrrev_b32", T[1], 3, DR[i])
            I("v_mad_u32_u24", T[0], T[1], 12, T[0])
            I("v_lshl_add_u32", T[3], T[1], 1, T[3])
        elif i > 2:
            I("v_add_u32", T[0], 12, T[0])
        I("v_mad_u32_u24", vOO[i], T[0], s1152, DC[i])
        I("v_bfe_u32", T[2], DR[i], 1, 2)
        I("v_lshl_add_u32", T[2], DP[i], 2, T[2])
        if OPT["gord"]:
            I("v_cmp_ge_u32", "vcc", sG, T[2])
            I("v_subb_co_u32", T[2], "vcc", T[2], 0, "vcc")
            I("v_min_u32", T[5], sG, T[2]); I("v_cmp_gt_i32", "vcc", 0, T[2])
            I("v_cndmask_b32", T[2], T[2], T[5], "vcc")
        else:
            I("v_add_u32", T[2], sG, T[2]); I("v_and_b32", T[2], 7, T[2])
        I("v_add_u32", T[3], 18 if i > 2 else 16, T[3])
        I("v_mad_u32_u24", T[2], T[2], sT1, T[3])
        I("v_mad_u32_u24", vO8[i], T[2], s1152, DC[i])
    if OPT["s1m"]: emit_groups(x_dma(1))
    for i in range(4): I("v_mov_b32", v(84 + i), 0)
    I("s_mul_i32", sT1, sWV, 384); I("s_add_u32", sT1, sT1, ZERO)
    I("v_min_u32", T[0], 23 * 16, vL16); I("v_add_u32", T[0], sT1, T[0])
    I("ds_write_b128", T[0], v(84, 4))
    I("s_mul_i32", sT0, sWV, 960); I("s_add_u32", sT0, sT0, PHI)
    for i in range(3):
        t = vM
        if i:
            I("v_add_u32", T[0], 64 * i * 7282, vM); t = T[0]
        I("v_lshrrev_b32", T[0], 16, t); I("v_add_u32", T[0], T[0], vL)
        I("v_lshl_add_u32", PA[i], T[0], 2, sT0)
    I("v_cmp_eq_u32", "vcc", vC, vGL)
    I("v_mul_u32_u24", T[0], 40, vR)
    I("v_mul_u32_u24", T[1], 1040, vGL)
    I("v_mov_b32", T[3], ZERO)
    I("v_add3_u32", T[1], T[1], T[0], T[3])
    I("v_add_u32", T[2], (PHI - ZERO) & 0xffffffff, T[1])
    I("v_cndmask_b32", vPH[0], T[3], T[2], "vcc")
    I("v_lshrrev_b32", T[4], 1, vGL); I("v_mul_u32_u24", T[4], 640, T[4])
    I("v_sub_u32", T[2], T[2], T[4]); I("v_add_u32", T[2], 480, T[2])
    I("v_cndmask_b32", vPH[1], T[3], T[2], "vcc")
    I("v_mul_u32_u24", T[1], 1920, vGL); I("v_add_u32", T[1], T[1], T[0]); I("v_add_u32", T[2], KVI, T[1])
    I("v_cndmask_b32", vPSA, T[3], T[2], "vcc")
    I("v_mul_u32_u24", T[1], 960, vGL); I("v_mul_u32_u24", T[4], 640, T[7])
    I("v_sub_u32", T[1], T[1], T[4]); I("v_add_u32", T[1], T[1], T[0]); I("v_add_u32", T[1], PHI + 640, T[1])
    I("v_cndmask_b32", T[1], T[3], T[1], "vcc")
    I("v_cmp_gt_u32", "vcc", 2, vR)
    I("s_mul_i32", sPME, sL2, PGRP)
    I("s_lshl_b32", sRSB, sRSB, 12)
    I("v_cndmask_b32", vPH[2], T[3], T[1], "vcc")
    I("s_add_u32", sRSB, sRSB, sPME)
    stamp("P1")
    if OPT["pfx"] == 2: xpf()
    if OPT["xo"] == 2: extras()
    if OPT["pois0"] == 2: pois0()
    if OPT["apx"] == 3: apx()
    I("s_mov_b32", sG144, sL3)
    emit_groups(w_dma(1) if OPT["s1m"] else stage_dma(1))
    if OPT["pois0"] == 3: pois0()
    stamp("S1iss")
    def touch_round(r):
        I("s_lshl2_add_u32", sCNT, sA, sWV)
        I("s_mov_b64", "exec", 0)
        for k_ in range(7):
            I("s_cmp_eq_u32", sCNT, k_)
            I("s_cbranch_scc1", "L_th%s%d%d" % ("BA"[k_ // 4], r, k_ % 4))
        I("s_branch", "L_thA%d3" % r)
        P.label("L_tret%d" % r)
        I("s_mov_b64", "exec", -1)
    if OPT["itouch"]:
        P.touch = {"L_tailA"}; P.rounds = 2

    def late():
        I("s_and_b32", sL0, sWV, 1); I("s_lshr_b32", sL1, sWV, 1)
        I("s_mul_i32", sL2, sL0, 16 * 3456); I("s_add_u32", sL2, sL2, sG144)
        I("s_add_u32", sQE, sL2, 0 if OPT["perm"] else 9 * WSTEP)
        I("s_add_u32", sL3, sL1, sROT)
        if OPT["nphase"] in (6, 7):
            I("s_add_u32", sOQ, sL3, 7); I("s_lshr_b32", sOQ, sOQ, 4); I("s_mul_i32", sOQ, sOQ, 9); I("s_sub_u32", sL3, sL3, sOQ)
        I("s_mul_i32", sL3, sL3, WSTEP); I("s_add_u32", sOQ, sL3, sL2)
        I("s_mul_i32", sO8, sL0, 36 * 1152); I("s_add_u32", sO8, sO8, sG144)
        if OPT["gord"]:
            I("s_mov_b32", sOE, sL1)
            I("s_min_u32", sL3, sG, 1); I("s_xor_b32", sL3, sL3, 1); I("s_mul_i32", sL3, sL3, sL1)
            I("s_xor_b32", sL2, sL1, 1); I("s_mul_i32", sL2, sL2, sG); I("s_add_u32", sL3, sL3, sL2)
            I("s_mul_i32", sL3, sL3, 82944); I("s_add_u32", sOO, sL3, sO8)
        else:
            I("s_add_u32", sOE, sO8, 8 * 82944)
            I("s_add_u32", sL3, sL1, sG); I("s_and_b32", sL3, sL3, 7); I("s_mul_i32", sL3, sL3, 82944); I("s_add_u32", sOO, sL3, sO8)
        I("s_mov_b32", sC[0], f2u(LOG2E)); I("s_mov_b32", sC[1], f2u(LOG2E))
        I("s_mov_b32", sEPS[0], f2u(1e-6)); I("s_mov_b32", sEPS[1], f2u(1e-6))
        I("s_add_u32", sE, sE, 0x11); I("s_and_b32", sTAG, sE, 0xff); I("s_mov_b32", sMSK, 0xffffff00)
        I("s_getreg_b32", sL0, "hwreg(HW_REG_XCC_ID, 0, 4)")
        I("s_and_b32", sRV, sE, 0xfffffff0); I("s_or_b32", sRV, sRV, sL0)
        for i in range(4): I("v_mov_b32", M1[i], -1)
        I("s_sub_u32", sL2, 3, sA); I("s_mul_i32", sL2, sL2, sWV)
        I("s_lshl_b32", sL1, sL2, 14); I("s_add_u32", sPME, sPME, sL1)
        I("s_lshl_b32", sL1, sRT, 8); I("s_add_u32", sPME, sPME, sL1)
        I("s_lshl_b32", sL1, sL2, 10); I("s_add_u32", sAG, sAG, sL1)
        I("s_lshr_b32", sL1, sWV, 1)
        I("s_mul_i32", sQ8, sL1, 0x40000000); I("s_mul_i32", sM8, sL1, 100000); I("s_add_u32", sM8, sM8, sMQ)
        I("s_lshl_b32", sL0, sA, 6); I("s_add_u32", sL0, sL0, sSL)
        I("s_mul_i32", sOB, sL0, 8 * 4608); I("s_add_u32", sOB, sOB, WS_O)
        I("s_lshl_b32", sL0, sG144, 5); I("s_add_u32", sOU[0], sL0, sOB)
        I("v_add_u32", vL4, 4096, vL4)
        I("v_lshl_add_u32", T[0], vGL, 2, vR)
        I("v_mul_u32_u24", T[0], IR, T[0])
        I("s_mul_i32", sL0, sWV, 128 * IR)
        I("v_add_u32", vKB2, sL0, T[0])
        I("v_lshl_add_u32", vKB0, vC, 3, vKB2)
        for p in range(2):
            I("v_mov_b32", KB[p][9], 0)
            I("v_mov_b32", KB[p][11], 0x3f80); I("v_mov_b32", PH[p][19], 0x3f80)
        I("v_mul_u32_u24", T[0], 128 * IR, vGL)
        I("v_mul_u32_u24", T[1], IR, vN)
        I("s_mul_i32", sL0, sWV, 32 * IR)
        I("v_add3_u32", vIW, T[0], T[1], sL0)
        I("s_mul_i32", sL0, sWV, 5120); I("s_add_u32", sL0, sL0, VF)
        I("v_add_u32", vVW, sL0, vL16)
        I("s_lshl_b32", sL0, sWV, 10); I("s_add_u32", sL0, sL0, VF)
        I("v_add_u32", vAM, sL0, vL16)
        I("v_lshlrev_b32", T[0], 4, vN); I("v_lshl_add_u32", vP1, vGL, 12, T[0])
        I("v_cmp_gt_u32", "vcc", 4, vN)
        I("v_mov_b32", T[4], OOB)
        I("v_lshl_add_u32", T[0], vGL, 2, vN); I("v_lshlrev_b32", T[0], 4, T[0])
        I("v_cndmask_b32", vP2, T[4], T[0], "vcc")
        I("v_cmp_gt_u32", "vcc", 16, vL)
        I("s_mul_i32", sL1, sWV, 1920); I("s_add_u32", sL1, sL1, KVI)
        I("v_cndmask_b32", vP3, T[4], vL16, "vcc")
        I("v_mul_u32_u24", T[1], 40, vN); I("v_lshl_add_u32", T[1], vGL, 3, T[1])
        I("v_add_u32", vAG1, sL1, T[1])
        I("v_mul_u32_u24", T[2], 40, vC); I("v_lshrrev_b32", T[3], 2, vL)
        I("s_lshr_b32", sL0, 32 * 40, sA)
        I("v_lshl_add_u32", T[2], T[3], 3, T[2]); I("v_add_u32", T[2], sL0, T[2])
        I("v_mul_u32_u24", T[3], 40, vL); I("v_add_u32", T[3], (32 - 16 * 40) & 0xffffffff, T[3])
        I("v_cndmask_b32", T[2], T[3], T[2], "vcc"); I("v_add_u32", vAG2, sL1, T[2])
        for t in range(5):
            I("v_accvgpr_write_b32", PHIF(t, 2)[2], 0); I("v_accvgpr_write_b32", PHIF(t, 2)[3], 0)
    lt = singles(cap(late))

    wait_vm("S0", lgkm=0)
    I("s_barrier")
    stamp("S0land")
    pipe = Pipe(dist=4)
    NU = 18
    RT = list(range(-4, 8)) + [8, 8, 9, 9, 10, 10]
    fill = []
    for j in range(9):
        slot = j % 3
        order = [(kap, T_) for kap in range(2) for T_ in range(9)]
        if j == 8: order = [(kap, T_) for T0, T1 in ((0, 5), (5, 9)) for kap in range(2) for T_ in range(T0, T1)]
        seen = set()
        for m, (kap, T_) in enumerate(order):
            ks = 2 * j + kap
            ring = RING[(NU * j + m) % 8]
            def rd():
                if kap not in seen:
                    seen.add(kap)
                    for p in range(2):
                        I("ds_read_b128", XF(ks, p), vXR[kap], mods="offset:%d" % (slot * XSLOT + p * 2048))
                if OPT["ex"] & 2 and (j > 0 or m >= 8): return
                if OPT["ex"] & 4 and T_ >= 5: return
                tile_read(ring, T_, slot * WSLOT + kap * 9216, kv=True)
            def work():
                if OPT["ex"] & 1:
                    I("s_nop", 1); I("s_nop", 1); return
                for p in range(2):
                    if T_ < 5: mfma(ACK[p][T_], ring, XF(ks, p), 0 if ks == 0 else ACK[p][T_])
                    else: mfma(ACV[p][T_ - 5], XF(ks, p), ring, 0 if ks == 0 else ACV[p][T_ - 5])
            pipe.add(rd, work, rt=NU * j + RT[m])
        def hook():
            if OPT["itouch"] and NU * j + NU - 4 == OPT["t0"]: touch_round(0)
            if OPT["itouch"] and NU * j + NU - 4 == OPT["t1"]: touch_round(1)
            if j < 8: wait_vm("S%d" % (j + 1), lgkm=0)
            else: wait(lgkm=0)
            I("s_barrier")
            if OPT["p1st"]: stamp("b%d" % (j + 1))
        pipe.hooks[NU * j + NU - 4] = cap(hook)
        t0 = max(0, NU * j - 4)
        if j + 2 < 9: fill += spread(stage_dma(j + 2), t0, NU * j + NU - 7)
        elif j == 7: fill += spread(wq_pair_dma(0) + wq_pair_dma(2), t0 + 2, NU * j + 2 * NU - 6)
    def apre(kind):
        tag = "ap" + kind
        def pre():
            I("s_lshl3_add_u32", sT2, sSL, sG); I("s_mul_i32", sT2, sT2, 81); I("s_lshr_b32", sT2, sT2, 3)
            I("v_min_u32", T[5], 10, vL); I("v_add_u32", T[5], sT2, T[5])
            if kind == "o":
                I("v_lshlrev_b32", T[5], 7, T[5])
                I("s_mov_b32", SBO[2], 576 * 1152); I("s_mov_b32", SBO[3], 0x20000)
            else:
                I("v_mul_u32_u24", T[6], 7282, T[5]); I("v_lshrrev_b32", T[6], 16, T[6])
                I("v_mul_u32_u24", T[6], 18, T[6]); I("v_add_lshl_u32", T[5], T[5], T[6], 7)
                I("s_mov_b32", SBQ[2], 576 * 3456); I("s_mov_b32", SBQ[3], 0x20000)
        def go():
            I("s_cmp_eq_u32", sA, 0)
            I("s_cbranch_scc1", "L_skip_" + tag)
            for r_ in ((SBO, SWO) if kind == "o" else (SBQ, SW)):
                x = I("buffer_load_dword", v(255), T[5], r_, 0, mods="offen"); x.cond = True
            P.label("L_skip_" + tag)
        return singles(cap(pre)) + [cap(go)]
    if OPT["apo"]: fill += at(OPT["apo"], apre("o"))
    if OPT["apq"]: fill += at(OPT["apq"], apre("q"))
    if OPT["pfq"]:
        fill += at(OPT["pfq"], singles(cap(lambda: prefetch("wq"))))
    if OPT["pfo"] > 1:
        fill += at(OPT["pfo"], singles(cap(lambda: prefetch("wo"))))
    fill.sort(key=lambda t: t[0])
    phw = singles(cap(lambda: [I("ds_write_b32", PA[i], PW[i], mods="offset:%d" % (256 * i)) for i in range(3)]))
    def phir():
        for t in range(5):
            for tp in range(5):
                ad, o = (vPH[0], 160 * tp) if tp < 3 else (vPH[tp - 2], 0)
                tr(PHIF(t, tp // 2)[2 * (tp & 1):2 * (tp & 1) + 2], ad, 8 * t + o)
    phr = singles(cap(phir))
    nl = len(lt)
    bulk = spread(lt[:8], -1, -1) + spread(lt[8:30], 0, 21) + spread(phw, 21, 27) + spread(lt[30:40], 27, 38)
    bulk += spread(phr, 38, 72) + spread(lt[40:], 72, 132)
    bulk += spread(singles(cap(lambda: (cv(0, True), cv(1, True)))), 160, 162)
    pipe.emit(fill, bulk)
    stamp("pass1")

    I("s_cmp_lg_u32", sA, 0)
    I("s_cbranch_scc1", "L_tailA")
    P.label("L_tailB")
    names0 = list(stamp_names); mute0 = OPT.get("mute")
    P.put(mark(cap(lambda: tail("B")), path="B"))
    P.label("L_end")
    P.label("L_notouchB")
    I("s_endpgm")
    for sl in SLOW: P.put(mark(sl, path="B"))
    del SLOW[:]
    stamp_names[:] = names0; OPT["mute"] = mute0
    P.raw(".p2align 7")
    P.label("L_dotouch")
    P.label("L_tailA")
    P.put(mark(cap(lambda: (I("s_nop", 7), tail("A"))), path="A"))
    P.label("L_notouchA")
    I("s_endpgm")
    for sl in SLOW: P.put(mark(sl, path="A"))
    P.label("L_last")
    for sl in RARE: P.put(mark(sl, path="B"))

def prefetch(kind):
    I("s_lshr_b32", sT2, s(2), 3); I("s_lshl2_add_u32", sT2, sT2, sWV); I("s_mul_i32", sT2, sT2, 81); I("s_lshr_b32", sT2, sT2, 1)
    I("v_min_u32", T[5], 40, vL); I("v_add_u32", T[5], sT2, T[5])
    if kind == "wo":
        I("v_lshlrev_b32", T[5], 7, T[5])
        I("buffer_load_dword", v(255), T[5], SWO, 0, mods="offen")
    else:
        I("v_mul_u32_u24", T[6], 7282, T[5]); I("v_lshrrev_b32", T[6], 16, T[6])
        I("v_mul_u32_u24", T[6], 18, T[6]); I("v_add_lshl_u32", T[5], T[5], T[6], 7)
        I("buffer_load_dword", v(255), T[5], SW, 0, mods="offen")

def rebase(delta):
    for pat in range(3):
        for e in range(2):
            I("v_add_u32", vTR[pat][e], delta & 0xffffffff, vTR[pat][e])

def tail(path):
    B = path == "B"
    FT = [0, 1, 2] if B else [0, 2]
    PHI_ = PH if B else KB
    NJ = 5 if B else 3
    def poison():
        for i in range(4):
            I("buffer_store_dwordx4", M1, vL16, SWS, sOU[0], mods="offen offset:%d sc1" % (1024 * i))
        for i in range(2):
            I("buffer_store_dword", M1[0], vL4, SWS, sOU[0], mods="offen offset:%d sc1" % (256 * i))
    def vpack():
        for t in range(4):
            d = ACV[0][t]
            for p in range(2):
                for h in range(2):
                    I("v_cvt_pk_bf16_f32", d[2 * p + h], ACV[p][t][2 * h], ACV[p][t][2 * h + 1])
        I("v_mov_b32", T[0], sTAG)
        I("s_mov_b32", sCNT, 0)
        rebase(WQ0 - WSL)
    def prewarm():
        I("v_min_u32", T[1], 35, vL); I("v_lshlrev_b32", T[1], 7, T[1])
        I("buffer_load_dword", v(255), T[1], SWS, sOU[0], mods="offen sc1")
    vp = singles(cap(vpack))
    w = singles(cap(lambda: [I("ds_write_b128", vVW, ACV[0][t], mods="offset:%d" % (1024 * t)) for t in range(4)]))
    q = tagged(singles(cap(poison)), "POIS") if not OPT["pois0"] else []
    pwm = [cap(prewarm)] if OPT["pw"] else []
    pfo = [cap(lambda: prefetch("wo"))] if OPT["pfo"] == 1 else []
    q4, q6, q8 = vm_only(wq_pair_dma(4)), vm_only(wq_pair_dma(6)), vm_only(wq_pair_dma(8))
    if B:
        ksh = weave(q4[:4], vp); km0 = weave(q4[4:] + q6, w); km1 = q8 + pfo + q
        late_q = []
    else:
        ksh = weave(q4[:2], vp); km0 = weave(q4[2:] + q6[:3], w); km1 = q6[3:] + q8 + pfo + q
        late_q = []
    kvq = []
    if B and OPT["peB"] == 1:
        ksh = weave(q4, vp); km0 = weave(q, w); km1 = q6 + q8
    if B and OPT["peB"] == 2:
        ksh = weave(q4[:4], vp); km0 = weave(q4[4:] + q6, w); km1 = q + q8
    if not B and OPT["peA"] == 1:
        ksh = weave(q4[:2], vp); km0 = weave(q4[2:] + q, w); km1 = q6 + q8
    if not B and OPT["peA"] == 2:
        km1 = q6[3:] + q8; kvq = q
    if OPT["pf2"]:
        pf = [cap(lambda: prefetch("wo"))]
        if B:
            ksh = weave(q4, vp); km0 = weave(q6 + q8, w) + pf; km1 = []
        else:
            ksh = weave(q4[:2], vp); km0 = weave(q4[2:] + q6[:3], w); km1 = q6[3:] + q8 + pf
        kvq = q
    def kwrites(p):
        def f():
            for i in range(5 if B else 3): I("ds_write_b128", vIW, PHI_[p][4 * i:4 * i + 4], mods="offset:%d" % (IMG + p * 16 * IR + 16 * i))
        return singles(cap(f))
    P.put(feature_map(path, "k", True, ksh, (km0, 2, 98), (km1, 0, 70 if B else 95), kwrites))
    wait_vm("WQ4", lgkm=0)
    I("s_barrier")
    stamp("kpost")
    DM = [v(104 + 4 * j, 4) for j in range(3)]; DL = [v(116 + 4 * j, 4) for j in range(3)]
    pipe = Pipe(dist=3, grp=1) if not OPT["j4"] else Pipe(dist=4)
    n = 0
    for j in FT:
        for src in range(4):
            AM, AL = a(204 + 8 * src, 4), a(208 + 8 * src, 4)
            BF = RING[n % 8]; n += 1
            def rd():
                if j == 0: I("ds_read_b128", AM, vAM, mods="offset:%d" % (src * 5120))
                for e in range(2):
                    tr(BF[2 * e:2 * e + 2], vKB0 if j < 2 else vKB2, IMG + src * 32 * IR + e * 16 * IR + (32 * j if (B or j < 2) else 32))
                if j == 0:
                    for e in range(2): tr(AL[2 * e:2 * e + 2], vKB2, IMG + src * 32 * IR + e * 16 * IR + (72 if B else 40))
            def work():
                mfma(DM[j], AM, BF, 0 if src == 0 else DM[j])
                mfma(DL[j], AL, BF, 0 if src == 0 else DL[j])
            pipe.add(rd, work, rt=(0 if (OPT["j4"] and n == 4) else None))
    SLM = {0: 0, 1: 4, 2: 8} if B else {0: 0, 2: 4}
    SLL = {0: 9, 1: 10, 2: 11} if B else {0: 5, 2: 6}
    def pstore(j):
        for D, ad, sl in ((DM[j], vP1 if j < 2 else vP2, SLM[j]), (DL[j], vP3, SLL[j])):
            if sl: I("s_add_u32", sT1, sPME, sl * 4096)
            for i in range(4): I("v_and_or_b32", D[i], D[i], sMSK, T[0])
            I("buffer_store_dwordx4", D, ad, SWS, sT1 if sl else sPME, mods="offen sc1")
    fill = []
    kvpipe = None; KO = 0; pfill = []
    if OPT["j4"]:
        kvpipe = pipe; KO = 4 * len(FT); qlead = []
        t_ = 6
        for k_, j in enumerate(FT):
            t_ = max(t_, 4 * k_ + 6)
            pfill += spread(singles(cap(lambda: (pstore(j), fst("pubP") if j == 2 else None))), t_, t_ + 2 * OPT["psp"]); t_ += 2 * OPT["psp"]
    else:
        for k_, j in enumerate(FT[:-1]): fill += spread(tagged(singles(cap(lambda: pstore(j))), "P"), 4 * k_ + 5, 4 * k_ + 8)
        pipe.emit(fill)
        fst("kvmm")
        qlead = cap(lambda: (pstore(FT[-1]), stamp("pubP")))
        if not OPT["j1"]:
            P.put(qlead); qlead = []
            I("s_barrier")
        stamp("wqland")

    def gemm2(bfrag, offs, rebases, fill, nm, hooks={}, lead=(), n=0, nks=18, extra=None, pipe=None):
        pipe = pipe or Pipe(dist=OPT["qd"])
        pipe.dist = OPT["qd"]
        pipe.hooks = hooks
        for ks in range(nks):
            for T_ in range(5):
                ring = RING[n % 8]; n += 1
                def rd():
                    if T_ == 0 and ks in rebases: rebase(rebases[ks])
                    tile_read(ring, T_, offs(ks))
                def work():
                    for p in range(2):
                        mfma(ACK[p][T_], ring, bfrag(ks, p), 0 if ks == 0 else ACK[p][T_])
                pipe.add(rd, work, (lambda: fst("%s%d" % (nm, ks))) if T_ == 0 else None)
        if extra: extra(pipe)
        pipe.emit(fill, lead=lead)
    RS = v(128, 16)
    vCK = T[6]
    RS2 = v(200, 16); sRS2, sFS2 = s(22), s(23)
    def rs_loads(RS=RS, so=sRSB):
        for i in range(4):
            I("buffer_load_dwordx4", RS[4 * i:4 * i + 4], vL16, SWS, so, mods="offen offset:%d sc1" % (1024 * i))
    def rs_reduce(RS=RS, sFSL=sFSL):
        for st in (8, 4):
            for i in range(st): I("v_add_f32", RS[i], RS[i], RS[i + st])
        I("v_permlane32_swap_b32", RS[0], RS[2]); I("v_permlane32_swap_b32", RS[1], RS[3])
        I("v_add_f32", RS[0], RS[0], RS[2]); I("v_add_f32", RS[1], RS[1], RS[3])
        I("v_mov_b32", RS[2], RS[0]); I("v_mov_b32", RS[3], RS[1])
        I("v_permlane16_swap_b32", RS[0], RS[2]); I("v_permlane16_swap_b32", RS[1], RS[3])
        I("v_add_f32", RS[0], RS[0], RS[2]); I("v_add_f32", RS[1], RS[1], RS[3])
        I("v_cvt_pk_bf16_f32", RS[0], RS[0], RS[1])
        I("v_mov_b32", RS[1], sE)
        I("buffer_store_dwordx2", RS[0:2], vFS, SWS, sFSL, mods="offen sc1")
        fst("pubF")
    vRV, vRA = T[7], T[8]
    def rflag():
        I("v_mov_b32", vRV, sRV); I("s_lshl_b32", sT1, sG, 2); I("v_mov_b32", vRA, sT1)
        I("buffer_store_dword", vRV, vRA, SWS, sRF, mods="offen sc1")
    ra, rc = OPT["rs_at"], OPT["rs_chk"]
    if not B: ra -= OPT["dA"]; rc -= OPT["dA"]
    wo = [vm_only(wo_pair_dma(u)) for u in (0, 2, 4, 6)]
    wo.append(vm_only(singles(cap(lambda: I("s_add_u32", sO8, sO8, sQ8))) + tagged(dma5(vO8, SWO, sO8, sM8, WO6 + 2 * 9216), "WO8")))
    def ou():
        for u in range(1, 8):
            if OPT["gord"]:
                I("s_sub_u32", sL0, sG, u); I("s_lshr_b32", sL0, sL0, 31)
                I("s_add_u32", sL0, sL0, u - 1)
            else:
                I("s_add_u32", sL0, sG, u); I("s_and_b32", sL0, sL0, 7)
            I("s_mul_i32", sL0, sL0, 4608); I("s_add_u32", sOU[u], sL0, sOB)
    qsh2 = []
    if B:
        rf = [cap(lambda: wait_vm("POIS"))] + singles(cap(rflag))
        fill = spread(singles(cap(ou)), 14, 50) + at(OPT["rf_at"], rf)
        allw = sum(wo, []); nq = OPT["nq"]
        sp = spread(allw[:nq], OPT["w0"], 89)
        assert all(t_ >= 55 for t_, g in sp[15:]) or nq > 22
        if nq > 22: sp = spread(allw[:15], OPT["w0"], 55) + spread(allw[15:nq], 56, 89)
        fill += sp
        if OPT["pw"] > 5: fill += at(OPT["pw"], singles(sum(pwm, [])))
        fill.sort(key=lambda t: t[0])
        wrest = allw[nq:]
        wo = [[], []]
    else:
        def b_addr():
            I("s_min_u32", sL1, sWV, 2); I("s_mul_i32", sL2, sRT, 3); I("s_add_u32", sL1, sL1, sL2)
            I("s_mul_i32", sL2, sG, PGRP); I("s_lshl_b32", sRS2, sL1, 12); I("s_add_u32", sRS2, sRS2, sL2)
            I("s_lshl_b32", sL2, sG, 14); I("s_lshl_b32", sL1, sL1, 8); I("s_add_u32", sL1, sL1, sL2); I("s_add_u32", sFS2, sL1, WS_F)
            I("s_add_u32", sL1, sWV, 1); I("s_lshr_b32", sL1, sL1, 2); I("s_lshl_b32", sL1, sL1, 30); I("s_add_u32", sFS2, sFS2, sL1)
        fill = sorted(spread(kvq, 1, 14) + spread(wo.pop(0), 15 if kvq else 3, 31 if kvq else 26) + spread(singles(cap(ou)) + singles(cap(b_addr)), 1, 33), key=lambda t: t[0])
        l2 = lambda: rs_loads(RS2, sRS2)
        chk = [cap(lambda: (fst("rsb"), wait_vm("RS"), fst("rsw")))] + check_tag("rs" + path, vCK, [RS[i] for i in range(16)], rs_loads) + singles(cap(rs_reduce)) + singles(cap(rflag))
        chk2 = [cap(lambda: wait_vm("RB"))] + check_tag("rb" + path, T[5], [RS2[i] for i in range(16)], l2) + singles(cap(lambda: rs_reduce(RS2, sFS2)))
        f2 = spread(tagged(singles(cap(rs_loads)), "RS"), ra, ra + 4) + spread(tagged(singles(cap(l2)), "RB"), OPT["rb_at"], OPT["rb_at"] + 5)
        if OPT["bfirst"]:
            rb = OPT["rb_chk"]
            nchk = 28
            f2 += spread(chk[:nchk], rc, rb) + spread(chk2, rb, rb + OPT["rb_len"]) + spread(chk[nchk:], rb + OPT["rb_len"], rb + OPT["rb_len"] + 10)
            f2 += spread(wo.pop(0), OPT["rb_at"] + 6, rb + 4)
        else:
            f2 += spread(wo.pop(0), ra + 4, ra + 20)
            f2 += spread(chk, rc, rc + OPT["rs_len"]) + spread(chk2, max(OPT["rb_chk"], rc + OPT["rs_len"]), max(OPT["rb_chk"], rc + OPT["rs_len"]) + OPT["rb_len"])
        fill += sorted(f2, key=lambda t: t[0])
    if OPT["j4"]:
        tmin = pfill[-1][0] + 1
        fill = pfill + [(max(t_ + KO, tmin), g) for t_, g in fill]
    gemm2(XF, lambda ks: ((ks // 2) % 6) * 9216 + (ks & 1) * 144, {12: WQ6 - WQ0}, fill, "q",
          dict([(53 + KO, cap(lambda: (wait_vm("WQ8"), I("s_barrier"))))] + ([(1 + KO, cap(lambda: I("s_barrier")))] if OPT["j1"] else [])), lead=qlead, n=4 * len(FT), pipe=kvpipe)
    stamp("qgemm")

    NAG = 3 if B else 2
    AG = v(104, 4 * NAG); RF = v(116)
    def ag_loads():
        for i in range(NAG):
            I("buffer_load_dwordx4", AG[4 * i:4 * i + 4], vL16 if (B or i == 0) else T[3], SWS, sAG, mods="offen offset:%d sc1" % (1024 * i))
    def ag_fold():
        I("v_xor_b32", vCK, sE, AG[1])
        for i in range(3, 4 * NAG, 2): I("v_bitop3_b32", vCK, vCK, sE, AG[i], mods="bitop3:0xf6")
    def rf_load(): I("buffer_load_dword", RF, T[4], SWS, sRF, mods="offen sc1")
    def qsh():
        if not B: I("v_min_u32", T[3], 47 * 16, vL16)
        I("v_and_b32", T[4], 7, vL); I("v_lshlrev_b32", T[4], 2, T[4])
        rebase(WO0 - WQ6)
        for t in range(5):
            I("v_accvgpr_write_b32", PSIF(t, NJ - 1)[2], 0); I("v_accvgpr_write_b32", PSIF(t, NJ - 1)[3], 0)
    fr = OPT["ag_frac"] if B else OPT["ag_fracA"]
    g = singles(cap(rf_load)) + singles(cap(lambda: fst("agi"))) + tagged(singles(cap(ag_loads)), "AG") + (pwm if OPT["pw"] == 2 else [])
    lo = (fr - 50) * 2
    wc = wo.pop(0)
    if OPT["pw"] == 3: wc = pwm + wc
    wd = sum(wo, [])
    def agw():
        I("ds_write2_b32", vAG1, AG[0], AG[2], mods="offset0:0 offset1:1")
        if B: I("ds_write2_b32", vAG1, AG[4], AG[6], mods="offset0:160 offset1:161")
        I("ds_write2_b32", vAG2, AG[4 * NAG - 4], AG[4 * NAG - 2], mods="offset0:0 offset1:1")
    agc = cap(lambda: (fst("agb"), wait_vm("AG"), fst("agw"))) + sum(check_or_retry("ag" + path, ag_fold, lambda: I("v_cmp_ne_u32", "vcc", 0, vCK), ag_loads), []) + cap(agw)
    agb = cap(lambda: (wait(lgkm=0), I("s_barrier"), stamp("gotkv")))
    olead = []
    if B:
        mids = [([], 0, 100), ([], 0, 100)]
        mids[1 if fr >= 50 else 0] = (g, (fr % 50) * 2, min(100, (fr % 50) * 2 + 12))
        if wrest[4:]:
            assert fr >= 50
            mids[0] = (wrest[4:], 5, 95)
        qs = weave(singles(cap(qsh)), wrest[:4]) if wrest else singles(cap(qsh))
        if OPT["pw"] == 5: qs = singles(sum(pwm, [])) + qs
        body = feature_map(path, "q", False, qs, mids[0], mids[1], lambda p: [])
        if OPT["j2"]:
            ok = lambda i: isinstance(body[i], Ins) and body[i].kind == "valu" and isinstance(body[i - 1], Ins) and body[i - 1].kind == "valu"
            c1 = len(body) * OPT["agc"] // 100; c2 = len(body) * OPT["agb"] // 100
            while not ok(c1): c1 += 1
            while not ok(c2): c2 += 1
            P.put(body[:c1] + agc + body[c1:c2] + agb); olead = body[c2:]
        else:
            P.put(body + agc + agb)
    else:
        P.put(feature_map(path, "q", False, singles(cap(qsh)), (wc[:3], 0, 100), (wc[3:] + g, 0, 100), lambda p: []))
        emit_groups(wd)
        P.put(agc + agb)

    pool = list(range(104, 144, 4)) + list(range(176, 256, 4)) + [12, 16, 28, 32, 36, 40]
    OF = {}
    keys = [(0, p, X) for X in range(2) for p in range(2)] + [("L", k, p) for k in range(2) for p in range(2)] + [(u, p, X) for u in range(1, 8) for p in range(2) for X in range(2)]
    for k_, r_ in zip(keys, pool): OF[k_] = v(r_, 4)
    o = ACC
    pipe = Pipe(dist=OPT["od"])
    for t in (4, 0, 1, 2, 3):
        for j in range(NJ):
            def rd():
                tr(PSIF(t, j)[0:2], vPSA, 8 * t + 8 * j * 40)
                if j < NJ - 1: tr(PSIF(t, j)[2:4], vPSA, 8 * t + (8 * j + 4) * 40)
            def work():
                for p in range(2):
                    mfma(ACK[p][t], PSIF(t, j), PHI_[p][4 * j:4 * j + 4], 0 if j == 0 else ACK[p][t])
            pipe.add(rd, work)
    def ostore(key, flag=None):
        if flag is None: flag = ["", " sc1", " nt"][OPT["oflag"]]
        if key[0] == "L": I("buffer_store_dword", OF[key][0], vL4, SWS, sOU[0], mods="offen offset:%d%s" % (key[2] * 256, flag))
        else: I("buffer_store_dwordx4", OF[key], vL16, SWS, sOU[0], mods="offen offset:%d%s" % (key[1] * 2048 + key[2] * 1024, flag))
    def fin_den():
        for p in range(2): I("v_add_f32", o[p][18], sEPS[0], o[p][18])
        for p in range(2): I("v_rcp_f32", o[p][18], o[p][18])
        for p in range(2):
            for i in (16, 17): I("v_mul_f32", o[p][i], o[p][i], o[p][18])
        for p in range(2):
            I("v_cvt_pk_bf16_f32", OF[("L", 0, p)][0], o[p][16], o[p][17])
            ostore(("L", 0, p))
    def fin_tile(t, packed):
        for p in range(2):
            if packed:
                for i in (4 * t, 4 * t + 2): I("v_pk_mul_f32", o[p][i:i + 2], o[p][i:i + 2], o[p][18:20], mods="op_sel:[0,0] op_sel_hi:[1,0]")
            else:
                for i in range(4 * t, 4 * t + 4): I("v_mul_f32", o[p][i], o[p][i], o[p][18])
            for h in range(2):
                I("v_cvt_pk_bf16_f32", OF[(0, p, t // 2)][2 * (t & 1) + h], o[p][4 * t + 2 * h], o[p][4 * t + 2 * h + 1])
            if t & 1: ostore((0, p, t // 2))
    rfchk = check_or_retry("rf" + path, lambda: I("v_xor_b32", vCK, sRV, RF), lambda: I("v_cmp_lt_u32", "vcc", 15, vCK), rf_load)
    rfchk += [cap(lambda: I("v_cmp_ne_u32", s(50, 2), 0, vCK))]
    fill = at(0, rfchk)
    fill += spread(singles(cap(fin_den)), NJ + 2, 2 * NJ + 1)
    for t in range(3): fill += spread(singles(cap(lambda: fin_tile(t, False))), (2 + t) * NJ + 1 + (1 if B else 0), (3 + t) * NJ + 1)
    pipe.emit(fill, lead=olead)
    fst("omm")
    fin_tile(3, True)
    I("s_cmp_lg_u64", s(50, 2), 0)
    I("s_cbranch_scc1", "L_far" + path)
    P.label("L_near" + path)
    def far():
        P.label("L_far" + path)
        for key in keys[:4] + [("L", 0, 0), ("L", 0, 1)]: ostore(key, " sc1")
        wait(vm=0)
        I("buffer_store_dword", vRV, vRA, SWS, sRF, mods="offen offset:32 sc1")
        P.label("L_farp" + path)
        I("buffer_load_dword", vCK, T[4], SWS, sRF, mods="offen offset:32 sc1")
        wait(vm=0)
        I("v_xor_b32", vCK, sRV, vCK)
        I("v_cmp_lt_u32", "vcc", 15, vCK)
        I("s_add_u32", sCNT, sCNT, 1)
        I("s_cmp_gt_u32", sCNT, SPIN)
        I("s_cbranch_scc1", "L_near" + path)
        I("s_cbranch_vccnz", "L_farp" + path)
        I("s_branch", "L_near" + path)
    SLOW.append(cap(far))
    stamp("pubO")

    def oload(u):
        for X in (1, 0):
            for p in (1, 0):
                I("buffer_load_dwordx4", OF[(u, p, X)], vL16, SWS, sOU[u], mods="offen offset:%d sc1" % (p * 2048 + X * 1024))
        for p in range(2):
            I("buffer_load_dword", OF[("L", u // 4, p)][u % 4], vL4, SWS, sOU[u], mods="offen offset:%d sc1" % (p * 256))
    def bf(ks, p):
        if ks < 16: return OF[(ks // 2, p, ks & 1)]
        return OF[("L", ks - 16, p)]
    offs = lambda ks: ((ks // 2) % 6) * 9216 + (ks & 1) * 144
    vW1, vW2, vW3, vRD = vIW, vVW, vAM, vAL
    vST = [vP2, vPSA, vKB0, vKB2, vP1]
    def out_addr():
        I("s_add_u32", sT0, sMQ, OUTB)
        I("v_mul_u32_u24", T[0], 144, vN); I("v_add_u32", T[0], sT0, T[0])
        I("v_mul_u32_u24", T[1], 40, vGL); I("v_add_u32", vW1, T[0], T[1])
        I("v_lshrrev_b32", T[4], 1, vGL)
        I("v_lshlrev_b32", T[2], 5, T[4]); I("v_sub_u32", vW2, vW1, T[2])
        I("v_mul_u32_u24", T[3], 72, T[4]); I("v_add_u32", vW3, T[0], T[3])
        I("v_and_b32", T[3], 1, vGL); I("v_lshl_add_u32", vW3, T[3], 18, vW3)
        I("v_add_u32", vRD, sT0, vL16)
        I("s_movk_i32", sT1, 2304 - 144)
        for i in range(5):
            t = vM
            if i:
                I("v_add_u32", T[3], Q0[i] * 7282, vM); t = T[3]
            I("v_lshrrev_b32", T[0], 16, t)
            I("v_mad_u32_u24", vST[i], T[0], sT1, vL16)
    NPRE = OPT["npre"]
    wait_vm("WO8")
    I("s_barrier")
    stamp("ackO")
    I("s_mov_b32", sT2, 0)
    P.label("L_redo" + path)
    g = []
    for u in range(1, NPRE + 1): g += tagged(singles(cap(lambda: oload(u))), "O%d" % u)
    if OPT["j3"]:
        def preread():
            rebase(WO6 - WO0)
            for ks in range(18 - OPT["npf"], 18):
                for t in range(5): tile_read(a(100 + ((ks - (18 - OPT["npf"])) * 5 + t) * 4, 4), t, offs(ks))
            rebase(WO0 - WO6)
        if OPT["prm"]:
            global vTR
            for pat in range(3):
                for e in range(2): I("v_add_u32", T[2 * pat + e], WO6 - WO0, vTR[pat][e])
            sv = vTR; vTR = [[T[2 * pat + e] for e in range(2)] for pat in range(3)]
            pr = [x for x in cap(preread) if x.kind == "ds"]
            vTR = sv
            prg = []
            for i in range(0, len(pr), 2): prg.append(pr[i:i + 2])
            fill = spread(weave(g, prg[:10]), 0, 6) if OPT["prm"] == 1 else spread(g, 0, 6)
            rest = prg[10:] if OPT["prm"] == 1 else prg
            prehook = {9: sum(rest, [])}
        else:
            emit_groups(weave(singles(cap(preread)), g))
            fill = []; prehook = {}
    else:
        fill = spread(g, 0, 7)
    def ochk(u):
        regs = [OF[(u, 0, 1)][3], OF[(u, 1, 1)][3], OF[(u, 1, 0)][3]]
        return [cap(lambda: wait_vm("O%d" % u))] + check_sent("o%d%s" % (u, path), vCK, regs, lambda: oload(u))
    for u in range(0, 7):
        b0 = u * 10
        blk = spread(ochk(u + 1), b0 + 6, b0 + 6)
        if u == 0 and OPT["j3"] and OPT["prm"]:
            prehook[10] = sum([g_ for _, g_ in blk], []); blk = []
        if u and u + NPRE <= 7: blk += spread(tagged(singles(cap(lambda: oload(u + NPRE))), "O%d" % (u + NPRE)), b0, b0 + 10)
        fill += sorted(blk, key=lambda t: t[0])
    NPF = OPT["npf"] if OPT["j3"] else 0
    assert NPF in (0, 2, 4, 6)
    WF = lambda ks, t: a(100 + ((ks - (18 - NPF)) * 5 + t) * 4, 4)
    OUTR = [OF[(1 + t // 2, p, 0)][2 * (t & 1):2 * (t & 1) + 2] for p in range(2) for t in range(5)]
    OB = [OF[(1, 0, 1)], OF[(1, 1, 1)], OF[(2, 0, 1)], OF[(2, 1, 1)], OF[(3, 0, 1)]]
    fl = ["", " sc1", " nt", " sc0 sc1"][OPT["outflag"]]
    def ocvt(p):
        for t in range(5):
            r_ = OUTR[5 * p + t]
            for h in range(2): I("v_cvt_pk_bf16_f32", r_[h], ACK[p][t][2 * h], ACK[p][t][2 * h + 1])
            ad, off = (vW1, 8 * t) if t < 3 else ((vW2, 24) if t == 3 else (vW3, 32))
            I("ds_write_b64", ad, r_, mods="offset:%d" % (off + p * 2304))
    def ord_(i): I("ds_read_b128", OB[i], vRD, mods="offset:%d" % (16 * Q0[i]))
    def ost(i):
        if i == 0: I("s_mov_b32", "exec_hi", 0)
        I("buffer_store_dwordx4", OB[i], vST[i], SOUT, sOUTB, mods="offen offset:%d%s" % (16 * Q0[i], fl))
        if i == 0: I("s_mov_b32", "exec_hi", -1)
    def nanchk(regs, back):
        I("v_cmp_u_f32", "vcc", regs[0], regs[1])
        I("s_cbranch_vccnz", "L_again%s" % back + path)
        P.label("L_done%s" % back + path)
        def again():
            P.label("L_again%s" % back + path)
            I("s_add_u32", sT2, sT2, 1)
            I("s_cmp_gt_u32", sT2, 16)
            I("s_cbranch_scc1", "L_done%s" % back + path)
            wait(vm=0, lgkm=0)
            if NPF < 6: rebase(WO0 - WO6)
            I("s_nop", 7)
            I("s_branch", "L_redo" + path)
        SLOW.append(cap(again))
    if NPF:
        nb = (18 - NPF) * 5
        half = NPF * 5 // 2
        def extra(pipe):
            for p in range(2):
                ms = [(ks, t) for ks in range(18 - NPF, 18) for t in range(5)]
                for i in range(0, len(ms), 2):
                    pipe.add(lambda: None, lambda: [mfma(ACK[p][t], WF(ks, t), bf(ks, p), ACK[p][t]) for ks, t in ms[i:i + 2]])
        fill = [((nb + (t_ - nb) // 2 - 2) if t_ > nb else t_, g) for t_, g in fill]
        fill += spread(singles(cap(out_addr)), 42, 56)
        tail0 = [cap(lambda: nanchk((ACK[0][0][0], ACK[0][1][0]), "0"))] + singles(cap(lambda: ocvt(0))) + singles(cap(lambda: (ord_(0), ord_(1))))
        fill += spread(tail0, nb + half + 2, nb + half + 8)
        fill += [(nb + half + 11, cap(lambda: (wait(lgkm=0), ost(0)))), (min(89, nb + half + 13), cap(lambda: ost(1)))]
        fill.sort(key=lambda t: t[0])
        gemm2(bf, offs, {12: WO6 - WO0}, fill, "o", prehook, nks=18 - NPF, extra=extra)
        stamp("ogemm")
        nanchk((ACK[1][0][0], ACK[1][1][0]), "1")
        ocvt(1)
        for i in (2, 3, 4): ord_(i)
        for i in (2, 3, 4):
            wait(lgkm=4 - i); ost(i)
    else:
        fill += spread(singles(cap(out_addr)), 70, 88)
        gemm2(bf, offs, {12: WO6 - WO0}, fill, "o")
        stamp("ogemm")
        nanchk((ACK[0][0][0], ACK[1][0][0]), "1")
        ocvt(0); ocvt(1)
        for i in range(5): ord_(i)
        for i in range(5):
            wait(lgkm=4 - i); ost(i)
    if B:
        I("s_or_b32", sT0, sSL, sG)
        I("s_cmp_lg_u32", sT0, 0)
        I("s_cbranch_scc1", "L_noep" + path)
        I("v_mov_b32", T[0], WS_E); I("v_mov_b32", T[1], sE)
        I("buffer_store_dword", T[1], T[0], SWS, 0, mods="offen")
        P.label("L_noep" + path)
    if OPT["stamps"]:
        stamp("stiss")
        if B: P.label("L_fin")
        OPT["mute"] = 0
        wait(vm=0)
        stamp("end")
        I("s_memrealtime", s(100, 2))
        wait(lgkm=0)
        if OPT["fine"]:
            for k, nm in enumerate(OPT["fine"].split(",")):
                stamp_names.append(nm); STAMPS[k] = s(4 + 2 * k)
        n = len(stamp_names)
        for k in range(n):
            if OPT["lite"] and k != OPT["amp"] and k != n - 1: continue
            assert OPT["lite"] or n <= 17
            I("s_sub_u32", STAMPS[k], STAMPS[k], s(96 if (OPT["lite"] == 2 or OPT["rt"]) else 98))
            I("v_mov_b32", v(64 + k), STAMPS[k])
        I("v_mov_b32", v(64 + 28), sT2); I("v_mov_b32", v(64 + 29), s(3))
        I("v_mov_b32", v(64 + 30), s(96)); I("v_mov_b32", v(64 + 31), s(100))
        I("s_lshl_b32", sT0, s(2), 2); I("s_add_u32", sT0, sT0, sWV); I("s_lshl_b32", sT0, sT0, 7); I("s_add_u32", sT0, sT0, WS_ST)
        I("v_mov_b32", T[0], 0)
        I("s_mov_b64", "exec", 1)
        for q in range(8):
            I("buffer_store_dwordx4", v(64 + 4 * q, 4), T[0], SWS, sT0, mods="offen offset:%d" % (16 * q))
        if OPT["amp"] >= 0 and OPT["ampsel"] in (0, 2 if B else 1):
            I("s_lshl_b32", sT2, STAMPS[OPT["amp"]], 3)
            I("s_add_u32", sT2, sT2, STAMPS[n - 1])
            P.label("L_amp" + path)
            I("s_memrealtime" if OPT["lite"] == 2 else "s_memtime", s(100, 2)); wait(lgkm=0)
            I("s_sub_u32", sT1, s(100), s(96 if OPT["lite"] == 2 else 98))
            I("s_cmp_lt_u32", sT1, sT2)
            I("s_cbranch_scc1", "L_amp" + path)

HEADER = open("cdna_kernels/%s.s.ref" % NAME).read().split("; Override launch")[0]

def wrap(body):
    txt = HEADER + "; @launch grid=(256,1,1) block=(256,1,1) lds=%d\n" % LDS_BYTES
    txt += "; stamps: %s\n" % ",".join(stamp_names) if stamp_names else ""
    txt += '.amdgcn_target "amdgcn-amd-amdhsa--gfx950"\n.text\n.globl %s_kernel\n.p2align 12\n.type %s_kernel,@function\n' % (NAME, NAME)
    txt += ".set CODE_SPAN, (L_last - %s_kernel - 128) & 0xffffff80\n" % NAME
    txt += ".set HEAD_LINES, ((L_tailB - %s_kernel) >> 7) + 8\n.set A_SHIFT, (L_tailA - L_tailB - 2048) & 0xffffff80\n" % NAME
    txt += "%s_kernel:\n%s\n" % (NAME, body)
    txt += """.section .rodata,"a"
.p2align 6
.amdhsa_kernel %s_kernel
  .amdhsa_next_free_vgpr 512
  .amdhsa_next_free_sgpr 102
  .amdhsa_accum_offset 256
  .amdhsa_group_segment_fixed_size 0
  .amdhsa_kernarg_size 80
  .amdhsa_user_sgpr_count 2
  .amdhsa_user_sgpr_kernarg_segment_ptr 1
  .amdhsa_system_sgpr_workgroup_id_x 1
.end_amdhsa_kernel
""" % NAME
    return txt

def main(out):
    build()
    txt = P.finalize2(wrap)
    open(out, "w").write(txt)
    print("wrote", out, "hazard nops:", P.nops, "align fixes:", P.fixes, "bytes:", P.bytes, "touch points:", P.points)

if __name__ == "__main__":
    out = sys.argv[1]
    for kv in sys.argv[2:]:
        k, val = kv.split("=")
        assert k in OPT, k
        OPT[k] = val if k in ("stop", "fine") else int(val)
    main(out)
```

```python
import sys, struct
from asmdsl import *

NAME = "concat_heads__linear_attn_block__linear_kernel_hedgehog__prompt"
OPT = dict(stamps=0, nphase=6, amp=-1, ampsel=0, lite=0, outflag=2, oflag=0, wb=0, rs_at=36, rs_chk=54, rs_len=18, ag_frac=64, ag_fracA=90, dA=4, npre=3, t0=14, t1=32, pw=0, pfo=0, pfq=0, wdn=8, pfx=0, perm=0, gord=1, xo=2, zv=1, s1m=0, ex=0, snake=0, pois0=0, j1=1, j2=0, j3=1, j4=0, psp=3, w0=3, qd=4, od=4, nq=26, rec=1, forcefb=0, lag=1, ampn="", peB=2, peA=0, zq=0, prm=1, pf2=0, nowa=0, apo=22, apq=0, apx=0, ars=1, rb_at=50, rb_chk=68, rf_at=48, bfirst=0, rb_len=14, npf=6, agc=86, agb=93, xsh=0, swap07=1,
           stop="", p1st=0, touch=1, fine="", itouch=1, rt=0)

def f2u(x): return struct.unpack("<I", struct.pack("<f", x))[0]
LOG2E = 1.4426950408889634

XSLOT = 16384
WSL = 49152; WSLOT = 18432
WQ0 = 104448
WQ6 = 76800
PHI = 104448
ZERO = 159744
IMG = 0
IR = 80
VF = 40960
KVI = 61440
WO0 = 0
WO6 = 104448
OUTB = 76800
LDS_BYTES = 163840
PGRP = 48 * 4096
WS_F = 0x300000; WS_E = 0x380000; WS_R = 0x390000; WS_O = 0x400000; WS_ST = 0x900000; WS_BYTES = 0xA00000
OOB = 0x7ffffff0
SPIN = 30000
Q0 = [0, 32, 96, 160, 224]
WSTEP = 64 * 3456

SX, SW, SWO, SWS, SOUT, SPHI = s(24, 4), s(28, 4), s(32, 4), s(36, 4), s(40, 4), s(48, 4)
sL0, sL1, sL2, sL3 = s(44), s(45), s(46), s(47)
sA, sRT, sG, sWV = s(52), s(53), s(54), s(55)
sOQ, sOX, sOW = s(56), s(57), s(58)
s1152 = s(59)
sMX, sMW = s(60), s(61)
sT0, sT1, sT2, sT3 = s(62), s(63), s(64), s(65)
sSL = s(66)
sROT = s(67)
sPME, sRSB, sRF, sOB = s(68), s(69), s(70), s(71)
sCNT = s(72)
sFSL = s(73)
sC = s(74, 2)
sEPS = s(76, 2)
sODD = s(78, 2)
sMQ = s(80)
sOO = s(81)
sPC = s(82, 2)
sTAG, sMSK = s(82), s(83)
sOU = [s(84 + u) for u in range(8)]
sAG = s(92)
sO8 = s(93)
sOUTB = s(94)
sE = s(95)
sM8 = s(20); sQ8 = s(21); sPM2 = s(22); sPM3 = s(23)
sG144 = s(48); sRV = s(49); sQE = s(50); sOE = s(51)
STAMPS = [s(3 + i % 17) for i in range(28)]

vL = v(0)
T = [v(i) for i in range(1, 10)]
vOX = [v(10 + i) for i in range(4)]
vOW = [v(14 + i) for i in range(5)]
vXR = [v(19), v(20)]
vTR = [[v(21 + 2 * p + e) for e in range(2)] for p in range(5)]
vOQ = [v(31 + i) for i in range(5)]
vOO = [v(36 + i) for i in range(5)]
vO8 = [v(41 + i) for i in range(5)]
vL16 = v(46)
vGL, vN = v(47), v(48)
vM, vPSA, vKB0, vKB2, vFS, vL4, vIW, vVW, vAM, vAL, vP1 = [v(49 + i) for i in range(11)]
vP2, vP3, vAG1, vAG2 = v(60), v(61), v(62), v(63)
ACK = [[v(64 + 20 * p + 4 * t, 4) for t in range(5)] for p in range(2)]
ACV = [[v(104 + 20 * p + 4 * t, 4) for t in range(5)] for p in range(2)]
RING = [v(144 + 4 * i, 4) for i in range(8)]
KB = [v(176 + 12 * p, 12) for p in range(2)]
PH = [v(200 + 20 * p, 20) for p in range(2)]
TMP = v(144, 24)
PW = v(240, 3); M1 = v(244, 4); PA = v(248, 3); vR, vC = v(251), v(252)
vPH = [v(243), v(253), v(254)]
def XF(ks, p): return a(ks * 8 + p * 4, 4)
def PHIF(t, j): return a(144 + (t * 3 + j) * 4, 4)
def PSIF(t, j): return a((t * 5 + j) * 4, 4)

P = Prog()
I = P.I
cap = P.capture
stamp_names = []
def fst(name):
    names = OPT["fine"].split(",")
    if name in names:
        k = names.index(name)
        I("s_memrealtime" if OPT["rt"] else "s_memtime", s(4 + 2 * k, 2), c="fine " + name)
def stamp(name):
    if OPT["fine"]:
        fst(name)
    elif OPT["stamps"] and not OPT.get("mute"):
        k = len(stamp_names); stamp_names.append(name)
        if OPT["ampn"] == name: OPT["amp"] = k
        real = True
        if OPT["lite"]:
            real = (k == OPT["amp"] or name == "end")
            if real: STAMPS[k] = s(5) if name == "end" else (s(4) if k else s(3))
        if real:
            I("s_memrealtime" if OPT["lite"] == 2 else "s_memtime", s(100, 2), c="stamp " + name)
            I("s_waitcnt", "lgkmcnt(0)")
            I("s_mov_b32", STAMPS[k], s(100))
    if OPT["stop"] == name:
        I("s_branch", "L_fin"); OPT["mute"] = 1

def wait(vm=None, lgkm=None):
    t = []
    if vm is not None: t.append("vmcnt(%d)" % vm)
    if lgkm is not None: t.append("lgkmcnt(%d)" % lgkm)
    I("s_waitcnt", " ".join(t))
def wait_vm(tag, lgkm=None): P.items.append(VmWait(tag, lgkm))
def tagged(groups, tag):
    for g in groups:
        for x in g:
            if isinstance(x, Ins) and x.kind == "vmem": x.tag = tag
    return groups
def mark(items, **kw):
    for x in items:
        if isinstance(x, Ins):
            for k, val in kw.items(): setattr(x, k, val)
    return items

def srd(dst, lo, hi, size):
    I("s_mov_b32", dst[0], lo); I("s_mov_b32", dst[1], hi)
    I("s_mov_b32", dst[2], size); I("s_mov_b32", dst[3], 0x20000)
def singles(items): return [[x] for x in items]
def emit_groups(groups):
    for g in groups: P.put(g)

def dma5(voffs, srdreg, soff, m0base, m0imm):
    def first():
        I("s_add_u32", "m0", m0base, m0imm)
        I("s_mov_b32", "exec_hi", 0)
        I("buffer_load_dwordx4", voffs[0], srdreg, soff, mods="offen lds")
        I("s_mov_b32", "exec_hi", -1)
    g = [cap(first)]
    for i in range(1, 5):
        g += singles(cap(lambda: I("buffer_load_dwordx4", voffs[i], srdreg, soff, mods="offen offset:%d lds" % (16 * Q0[i]))))
    return g

PERMS = {
    1: (3, [[7, 3, 6, 1, 8, 4, 2, 0, 5], [1, 3, 7, 2, 4, 8, 6, 0, 5], [3, 8, 1, 6, 2, 7, 0, 4, 5]]),
    2: (4, [[4, 0, 1, 5, 6, 2, 8, 7, 3], [4, 1, 5, 2, 7, 0, 6, 8, 3], [1, 4, 6, 7, 0, 2, 3, 5, 8], [4, 6, 1, 7, 3, 0, 5, 2, 8]]),
    3: (3, [[0, 1, 2, 3, 4, 5, 6, 7, 8], [1, 2, 0, 4, 5, 3, 7, 8, 6], [2, 0, 1, 5, 3, 4, 8, 6, 7]]),
    4: (8, [[3, 7, 5, 0, 8, 1, 4, 2, 6], [3, 5, 0, 4, 7, 6, 1, 8, 2], [5, 7, 4, 2, 0, 8, 3, 1, 6], [5, 3, 0, 8, 7, 2, 6, 1, 4], [3, 0, 4, 5, 8, 7, 6, 2, 1], [3, 5, 7, 0, 1, 2, 4, 8, 6], [7, 5, 2, 0, 4, 8, 6, 1, 3], [3, 4, 7, 0, 2, 1, 6, 8, 5]]),
    5: (3, [[0, 1, 2, 3, 4, 5, 6, 7, 8], [3, 4, 5, 6, 7, 8, 0, 1, 2], [6, 7, 8, 0, 1, 2, 3, 4, 5]]),
}
SBO = s(88, 4)
SBQ = s(12, 4)
SBX = s(76, 4)
sPM = s(22, 2)
sPQ = s(16, 2)
sXB0, sWB0, sXSH = s(84 + 1), s(84 + 2), s(84 + 3)
def stage_of(dst, src):
    I("s_and_b32", dst, src, 15)
    if OPT["xsh"]:
        I("s_add_u32", dst, dst, sXSH)
def stage_fix(dst):
    I("s_cmp_ge_u32", dst, 9)
    I("s_cselect_b32", sT1, 9, 0)
def perm_next():
    g = singles(cap(lambda: stage_of(sT0, sPM[0])))
    if OPT["xsh"]: g += [cap(lambda: stage_fix(sT0))] + singles(cap(lambda: I("s_sub_u32", sT0, sT0, sT1)))
    def f():
        I("s_lshr_b64", sPM, sPM, 4)
        I("s_lshl_b32", sOX, sT0, 7); I("s_add_u32", sOX, sOX, sXB0)
        I("s_mul_i32", sOW, sT0, WSTEP); I("s_add_u32", sOW, sOW, sWB0)
    return g + singles(cap(f))
def permq_next():
    g = singles(cap(lambda: stage_of(sT0, sPQ[0])))
    if OPT["xsh"]: g += [cap(lambda: stage_fix(sT0))] + singles(cap(lambda: I("s_sub_u32", sT0, sT0, sT1)))
    def f():
        I("s_lshr_b64", sPQ, sPQ, 8)
        I("s_mul_i32", sOQ, sT0, WSTEP); I("s_add_u32", sOQ, sOQ, sQE)
    return g + singles(cap(f))
def wraps_after(j):
    rots = {1: [0], 2: [0, 4], 3: [0, 3, 6], 4: [0, 2, 4, 6], 5: [0, 2, 5, 7], 8: list(range(8)), 6: list(range(9)), 7: list(range(9))}[OPT["nphase"]]
    return any(r + j == 8 for r in rots) and j < 8
def x_dma(j):
    g = singles(cap(lambda: I("s_add_u32", "m0", sMX, (j % 3) * XSLOT)))
    for i in range(4):
        g += singles(cap(lambda: I("buffer_load_dwordx4", vOX[i], SX, sOX, mods="offen offset:%d lds" % (1024 * i))))
    return tagged(g, "S%d" % j)
def w_dma(j):
    g = tagged(dma5(vOW, SW, sOW, sMW, (j % 3) * WSLOT), "S%d" % j)
    if j < 8 and OPT["perm"]:
        g += perm_next()
    elif j < 8:
        g += singles(cap(lambda: (I("s_add_u32", sOX, sOX, 128), I("s_add_u32", sOW, sOW, WSTEP))))
        if wraps_after(j):
            def wr():
                I("s_cmp_eq_u32", sROT, 8 - j)
                I("s_cselect_b32", sT0, 1152, 0); I("s_cselect_b32", sT1, 9 * WSTEP, 0)
            g.append(cap(wr))
            g += singles(cap(lambda: (I("s_sub_u32", sOX, sOX, sT0), I("s_sub_u32", sOW, sOW, sT1))))
    return g
def stage_dma(j): return x_dma(j) + w_dma(j)

def advance(reg, step, end, span):
    def a1():
        I("s_add_u32", reg, reg, step)
        I("s_cmp_ge_u32", reg, end)
        I("s_cselect_b32", sT0, span, 0)
    return [cap(a1)] + singles(cap(lambda: I("s_sub_u32", reg, reg, sT0)))
def wq_pair_dma(j):
    pos = (WQ0 + j * 9216) if j < 6 else (WQ6 + (j - 6) * 9216)
    if j == 8:
        return singles(cap(lambda: I("s_add_u32", sOQ, sOQ, sQ8))) + tagged(dma5(vOQ, SW, sOQ, sM8, pos), "WQ8")
    g = tagged(dma5(vOQ, SW, sOQ, sMQ, pos), "WQ%d" % j)
    g += permq_next() if OPT["perm"] else advance(sOQ, 2 * WSTEP, sQE, 9 * WSTEP)
    if j == 0 and OPT["perm"]: g = permq_next() + g
    return g
def wo_pair_dma(u):
    pos = (WO0 + u * 9216) if u < 6 else (WO6 + (u - 6) * 9216)
    g = tagged(dma5(vOO, SWO, sOO, sMQ, pos), "WO%d" % u)
    if OPT["nowa"] & 1: return [cap(lambda: I("s_nop", 0)) for _ in range(5)]
    if u < 6 and OPT["gord"]:
        def nx():
            I("s_add_u32", sT0, sOE, u + 1)
            I("s_cmp_ge_u32", sT0, sG)
            I("s_addc_u32", sT0, sT0, 0)
        g += [cap(nx)] + singles(cap(lambda: (I("s_mul_i32", sT0, sT0, 82944), I("s_add_u32", sOO, sT0, sO8))))
    elif u < 6: g += advance(sOO, 2 * 82944, sOE, 8 * 82944)
    return g
def only_waves01(groups, tag):
    def f():
        I("s_cmp_ge_u32", sWV, 2)
        I("s_cbranch_scc1", "L_skip_" + tag)
        for g in groups: P.put(mark(g, cond=True))
        P.label("L_skip_" + tag)
    return [cap(f)]

def tr(dst, addr, off):
    assert 0 <= off < 65536, off
    I("ds_read_b64_tr_b16", dst, addr, mods="offset:%d" % off)
def mfma(d, x, y, c): I("v_mfma_f32_16x16x32_bf16", d, x, y, c)
def tile_read(dstreg, T_, base_off, kv=False):
    if T_ < 3: pat, o = 0, 8 * T_
    elif T_ == 3: pat, o = 1, 0
    elif T_ == 4: pat, o = (4 if kv else 2), 0
    else: pat, o = 3, 144 + 8 * [0, 5, 9, 14][T_ - 5]
    for e in range(2):
        tr(dstreg[2 * e:2 * e + 2], vTR[pat][e], base_off + o)

class Pipe:
    def __init__(self, dist=4, grp=2):
        self.units = []; self.dist = dist; self.grp = grp; self.hooks = {}
    def add(self, rd, work, pre=None, rt=None):
        k = len(self.units)
        wk = cap(work)
        if OPT["snake"] and k & 1 and self.grp == 2: wk = wk[::-1]
        self.units.append((cap(rd), wk, cap(pre) if pre else None, k - self.dist if rt is None else rt))
    def emit(self, fill=(), bulk=(), lead=()):
        fill = list(fill); bulk = list(bulk)
        U = self.units; n = len(U)
        seq = []
        state = dict(done=0)
        def put(items, owner=-1):
            for x in items:
                if isinstance(x, Ins) and x.kind == "ds": seq.append(owner)
                if isinstance(x, Ins) and x.op == "s_waitcnt" and ("lgkmcnt(0)" in x.args[0] or getattr(x, "lgkm", None) == 0): state["done"] = len(seq)
            P.put(items)
        def need_wait(k):
            last = max([i for i, o in enumerate(seq) if o == k] + [-1])
            return last >= state["done"]
        byt = {}
        for k, u in enumerate(U): byt.setdefault(max(u[3], -1), []).append(k)
        for k in byt.get(-1, []): put(U[k][0], k)
        put(list(lead))
        while bulk and bulk[0][0] < 0: put(bulk.pop(0)[1])
        def take(k):
            if fill and fill[0][0] <= k: put(fill.pop(0)[1]); return True
            if bulk and bulk[0][0] <= k + 6: put(bulk.pop(0)[1]); return True
            return False
        for k in range(n):
            if k in self.hooks: put(self.hooks[k])
            if U[k][2]: put(U[k][2])
            if need_wait(k):
                want = [q for q in range(k, min(n, k + self.grp)) if U[q][3] < k - 1 or q == k]
                last = max(i for i, o in enumerate(seq) if o in want)
                later = len(seq) - 1 - last
                if later > 15: later = 15; last = len(seq) - 1 - later
                wait(lgkm=later); state["done"] = last + 1
            nxt = [(x, q) for q in byt.get(k, []) for x in U[q][0]]
            half = (len(nxt) + 1) // 2
            w = U[k][1]
            P.put([w[0]])
            for x, q in nxt[:half]: put([x], q)
            for _ in range(max(0, 2 - half)): take(k)
            P.put(w[1:])
            for x, q in nxt[half:]: put([x], q)
            rest = len(nxt) - half + (1 if (k + 1 < n and need_wait(k + 1)) else 0) + (2 if k + 1 in self.hooks else 0)
            for _ in range(max(0, 2 - rest)): take(k)
            while fill and fill[0][0] <= k - 3: put(fill.pop(0)[1])
            while bulk and bulk[0][0] <= k: put(bulk.pop(0)[1])
        for _, g in fill + bulk: put(g)

def vm_only(groups):
    if groups[0][0].op == "s_nop": return groups
    out = []
    for g in groups:
        if any(x.kind == "vmem" for x in g) or not out: out.append(list(g))
        else: out[-1] += g
    return out
def weave(a_, b_):
    out = []; na, nb = len(a_), len(b_); i = j = 0
    while i < na or j < nb:
        if j >= nb or (i < na and i * nb <= j * na): out.append(a_[i]); i += 1
        else: out.append(b_[j]); j += 1
    return out
def at(unit, groups): return [(unit + i * 2 // 3, g) for i, g in enumerate(groups)]
def spread(groups, first, last):
    n = len(groups)
    return [(first + (last - first) * i // max(1, n), g) for i, g in enumerate(groups)]
def merge(main, extra, start=0, step=2):
    out = []; extra = list(extra)
    for i, x in enumerate(main):
        out.append(x)
        if extra and i >= start and (i - start) % step == step - 1: out += extra.pop(0)
    for g in extra: out += g
    return out

def sm_head(src18, tmp, both=None):
    if both is None: both = not OPT["rec"]
    mx, mn = tmp[18], tmp[19]
    if both:
        I("v_max3_f32", mx, src18[0], src18[1], src18[2]); I("v_min3_f32", mn, src18[0], src18[1], src18[2])
        for i in range(3, 17, 2):
            I("v_max3_f32", mx, mx, src18[i], src18[i + 1]); I("v_min3_f32", mn, mn, src18[i], src18[i + 1])
        I("v_max_f32", mx, mx, src18[17]); I("v_min_f32", mn, mn, src18[17])
        I("v_mul_f32", tmp[20], sC[0], mx); I("v_mul_f32", tmp[21], sC[0], mn)
    else:
        I("v_max3_f32", mx, src18[0], src18[1], src18[2])
        for i in range(3, 17, 2): I("v_max3_f32", mx, mx, src18[i], src18[i + 1])
        I("v_max_f32", mx, mx, src18[17])
        I("v_mul_f32", tmp[20], sC[0], mx)
def sm_mid(src18, tmp, both):
    ab = tmp[20:22]
    for i in range(0, 18, 2):
        if both: I("v_pk_fma_f32", tmp[i:i + 2], src18[i:i + 2], sC, ab, mods="op_sel:[0,0,1] op_sel_hi:[1,1,1] neg_lo:[1,0,0] neg_hi:[1,0,0]")
        I("v_pk_fma_f32", src18[i:i + 2], src18[i:i + 2], sC, ab, mods="op_sel:[0,0,0] op_sel_hi:[1,1,0] neg_lo:[0,0,1] neg_hi:[0,0,1]")
    sp, sn = tmp[18:20], tmp[20:22]
    if not both and OPT["lag"]:
        for g in range(11):
            i = 2 * g
            if g < 9:
                for h in range(2): I("v_exp_f32", src18[i + h], src18[i + h])
            if 1 <= g < 10:
                for h in range(2): I("v_rcp_f32", tmp[i - 2 + h], src18[i - 2 + h], c="exp(max - p)")
            if g == 2: I("v_pk_add_f32", sp, src18[0:2], src18[2:4])
            elif 2 < g < 10: I("v_pk_add_f32", sp, sp, src18[i - 2:i])
            if g == 3: I("v_pk_add_f32", sn, tmp[0:2], tmp[2:4])
            elif g > 3: I("v_pk_add_f32", sn, sn, tmp[i - 4:i - 2])
    else:
        for i in range(0, 18, 2):
            if both:
                for h in range(2):
                    I("v_exp_f32", src18[i + h], src18[i + h]); I("v_exp_f32", tmp[i + h], tmp[i + h])
            else:
                for h in range(2): I("v_exp_f32", src18[i + h], src18[i + h])
                for h in range(2): I("v_rcp_f32", tmp[i + h], src18[i + h])
            if i == 4:
                I("v_pk_add_f32", sp, src18[0:2], src18[2:4]); I("v_pk_add_f32", sn, tmp[0:2], tmp[2:4])
            elif i > 4:
                I("v_pk_add_f32", sp, sp, src18[i - 2:i]); I("v_pk_add_f32", sn, sn, tmp[i - 2:i])
        I("v_pk_add_f32", sp, sp, src18[16:18]); I("v_pk_add_f32", sn, sn, tmp[16:18])
    rr = tmp[22:24]
    I("v_add_f32", rr[0], sp[0], sp[1]); I("v_add_f32", rr[1], sn[0], sn[1])
def sm_tail(src18, out18, tmp, p=0, tag=""):
    sm_mid(src18, tmp, not OPT["rec"])
    rr = tmp[22:24]
    if OPT["rec"]:
        lab = "%s%d" % (tag, p)
        I("v_cmp_ngt_f32", "vcc", f2u(2.0 ** 60) if not OPT["forcefb"] else f2u(64.0), rr[1], c="softmax(-p): exp(max-p) unsafe? -> redo with its true max")
        I("s_cbranch_vccnz", "L_smx" + lab)
        P.label("L_smb" + lab)
        def fb():
            P.label("L_smx" + lab)
            I("s_nop", 1)
            for j in range(3):
                for t in range(5):
                    mfma(ACK[p][t], PHIF(t, j), KB[p][4 * j:4 * j + 4], 0 if j == 0 else ACK[p][t])
            sm_head(src18, tmp, True); sm_mid(src18, tmp, True)
            I("s_branch", "L_smb" + lab)
        RARE.append(cap(fb))
    I("v_rcp_f32", rr[0], rr[0]); I("v_rcp_f32", rr[1], rr[1])
    def el(d): return (src18[2 * d:2 * d + 2], "op_sel:[0,0] op_sel_hi:[1,0]") if d < 9 else (tmp[2 * (d - 9):2 * (d - 9) + 2], "op_sel:[0,1] op_sel_hi:[1,1]")
    for d in range(0, 18, 2):
        for h in range(2): I("v_pk_mul_f32", el(d + h)[0], el(d + h)[0], rr, mods=el(d + h)[1])
        for h in range(2): I("v_cvt_pk_bf16_f32", out18[d + h], el(d + h)[0][0], el(d + h)[0][1])

SLOW = []
RARE = []
ACC = [v(64 + 20 * p, 20) for p in range(2)]
def cv(p, kv=False):
    if kv:
        for i in range(8): I("v_cvt_pk_bf16_f32", KB[p][i], ACC[p][2 * i], ACC[p][2 * i + 1])
        I("v_permlane16_swap_b32", ACC[p][16], ACC[p][18]); I("v_permlane16_swap_b32", ACC[p][17], ACC[p][19])
        I("v_cvt_pk_bf16_f32", KB[p][8], ACC[p][16], ACC[p][17])
        I("v_cvt_pk_bf16_f32", KB[p][10], ACC[p][18], ACC[p][19])
        I("v_mov_b32", PH[p][18], KB[p][10])
        return
    for i in range(8): I("v_cvt_pk_bf16_f32", KB[p][i], ACC[p][2 * i], ACC[p][2 * i + 1])
    I("v_permlane16_swap_b32", ACC[p][16], ACC[p][18]); I("v_permlane16_swap_b32", ACC[p][17], ACC[p][19])
    I("v_cvt_pk_bf16_f32", KB[p][8], ACC[p][16], ACC[p][17])

def chase(body, groups):
    out = []; groups = list(groups)
    lastdef = {}
    for i, x in enumerate(body):
        if isinstance(x, Ins):
            for r in x.defs: lastdef[r] = i
    pos = {}
    for g in groups:
        p_ = max([lastdef.get(r, -1) for x in g for r in x.uses] + [-1])
        pos.setdefault(p_, []).append(g)
    for g in pos.get(-1, []): out += g
    for i, x in enumerate(body):
        out.append(x)
        for g in pos.get(i, []): out += g
    return out

def evenly(lst, groups, lo=0, hi=100):
    out = []; groups = list(groups); n = len(lst); m = len(groups)
    pos = [n * lo // 100 + (n * (hi - lo) // 100) * i // max(1, m) for i in range(m)]
    for i, x in enumerate(lst):
        out.append(x)
        if i + 1 < n and (isinstance(lst[i + 1], Label) or lst[i + 1].op.startswith("s_cbranch")): continue
        while groups and pos[0] <= i:
            out += groups.pop(0); pos.pop(0)
    for g in groups: out += g
    return out

def feature_map(path, tag, cv_done, shadow, mid0, mid1, after_p):
    if path == "B":
        def mm(p):
            for j in range(3):
                for t in range(5):
                    mfma(ACK[p][t], PHIF(t, j), KB[p][4 * j:4 * j + 4], 0 if j == 0 else ACK[p][t])
        body = [] if cv_done else cap(lambda: cv(0))
        sh = ([] if cv_done else singles(cap(lambda: cv(1)))) + list(shadow)
        head0 = singles(cap(lambda: sm_head(ACC[0][0:18], TMP)))
        ms = cap(lambda: (mm(0), mm(1)))
        for i, x in enumerate(ms):
            body.append(x)
            if i == (24 if OPT["rec"] else 19): sh = head0 + sh
            k = 0
            while sh and k < 2:
                g = sh.pop(0); body += g; k += len(g)
        for g in sh: body += g
        body += cap(lambda: fst(tag + "mm"))
        body += evenly(cap(lambda: sm_tail(ACC[0][0:18], PH[0][0:18], TMP, 0, tag)), *mid0)
        body += cap(lambda: fst(tag + "t0"))
        t1 = cap(lambda: (sm_head(ACC[1][0:18], TMP), sm_tail(ACC[1][0:18], PH[1][0:18], TMP, 1, tag)))
        t1 = evenly(t1, after_p(0), 2, 66)
        t1 = evenly(t1, *mid1)
        body += chase(t1, after_p(1))
    else:
        def pa(p):
            x = ACC[p]
            if not cv_done:
                I("v_permlane16_swap_b32", x[16], x[18]); I("v_permlane16_swap_b32", x[17], x[19])
            for i in range(0, 18, 2): I("v_pk_mul_f32", TMP[i:i + 2], x[i:i + 2], sC)
            for d in range(9):
                for i in (2 * d, 2 * d + 1):
                    I("v_exp_f32", TMP[i], TMP[i], mods="clamp")
                    I("v_max_f32", x[i], 0, x[i])
                I("v_pk_add_f32", x[2 * d:2 * d + 2], x[2 * d:2 * d + 2], sEPS)
                I("v_pk_add_f32", x[2 * d:2 * d + 2], x[2 * d:2 * d + 2], TMP[2 * d:2 * d + 2])
                I("v_cvt_pk_bf16_f32", KB[p][d], x[2 * d], x[2 * d + 1])
        body = []
        for g in shadow: body += g
        body += cap(lambda: fst(tag + "mm"))
        body += chase(evenly(cap(lambda: pa(0)), *mid0), after_p(0))
        body += cap(lambda: fst(tag + "t0"))
        t1 = cap(lambda: pa(1))
        t1 = evenly(t1, *mid1)
        body += chase(t1, after_p(1))
    return body + cap(lambda: fst(tag + "t1"))

def umax(dst, regs):
    regs = list(regs)
    I("v_max3_u32", dst, regs[0], regs[1], regs[2]); regs = regs[3:]
    while len(regs) >= 2:
        I("v_max3_u32", dst, dst, regs[0], regs[1]); regs = regs[2:]
    if regs: I("v_max_u32", dst, dst, regs[0])

def check_or_retry(tag, fold, cmp_bad, loads):
    g = singles(cap(fold))
    def test():
        cmp_bad()
        I("s_cbranch_vccnz", "L_slow_" + tag)
        P.label("L_back_" + tag)
    g.append(cap(test))
    def slow():
        P.label("L_slow_" + tag)
        P.label("L_sp_" + tag)
        if OPT["stamps"] and not OPT["lite"]: I("s_add_u32", s(3), s(3), {"r": 1, "a": 0x100, "o": 0x10000}[tag[0]] if not tag.startswith("rf") else 0x1000000)
        loads()
        wait(vm=0)
        fold()
        cmp_bad()
        I("s_add_u32", sCNT, sCNT, 1)
        I("s_cmp_gt_u32", sCNT, SPIN)
        I("s_cbranch_scc1", "L_back_" + tag)
        I("s_cbranch_vccnz", "L_sp_" + tag)
        I("s_branch", "L_back_" + tag)
    SLOW.append(cap(slow))
    return g
def check_sent(tag, chk, regs, loads):
    return check_or_retry(tag, lambda: umax(chk, regs), lambda: I("v_cmp_eq_u32", "vcc", -1, chk), loads)
def check_tag(tag, chk, regs, loads):
    def fold():
        for r in regs: I("v_xor_b32", r, sTAG, r)
        I("v_or3_b32", chk, regs[0], regs[1], regs[2])
        for i in range(3, len(regs) - 1, 2): I("v_or3_b32", chk, chk, regs[i], regs[i + 1])
        I("v_or_b32", chk, chk, regs[-1])
        I("v_and_b32", chk, 0xff, chk)
    return check_or_retry(tag, fold, lambda: I("v_cmp_ne_u32", "vcc", 0, chk), loads)

def build():
    I("s_cmp_ge_u32", s(2), 256)
    I("s_cbranch_scc1", "L_end")
    if OPT["swap07"]:
        I("s_add_u32", sT0, s(2), 1); I("s_and_b32", sT0, sT0, 6)
        I("s_cselect_b32", sT0, 0, 7)
        I("s_xor_b32", s(2), s(2), sT0)
    I("s_bfe_u32", sA, s(2), 0x10002)
    I("s_cmp_lg_u32", sA, 0)
    I("s_cselect_b32", sT0, 0, 24)
    I("s_cselect_b32", sT1, 8, 32)
    I("s_cselect_b32", sT2, 16, 48)
    I("s_load_dwordx2", SX[0:2], s(0, 2), sT0)
    I("s_load_dwordx2", SW[0:2], s(0, 2), sT1)
    I("s_load_dwordx2", SWO[0:2], s(0, 2), sT2)
    I("s_load_dwordx2", SPHI[0:2], s(0, 2), 40)
    I("s_load_dwordx2", SOUT[0:2], s(0, 2), 56)
    I("s_load_dwordx2", SWS[0:2], s(0, 2), 72)
    if OPT["apo"]: I("s_load_dwordx2", SBO[0:2], s(0, 2), 48)
    if OPT["apq"]: I("s_load_dwordx2", SBQ[0:2], s(0, 2), 32)
    if OPT["apx"]: I("s_load_dwordx2", SBX[0:2], s(0, 2), 24)
    I("s_getpc_b64", sPC)
    I("s_and_b32", sT0, s(2), 0xf8)
    I("v_lshrrev_b32", T[0], 5, v(0))
    I("v_add_lshl_u32", T[1], T[0], sT0, 7)
    I("s_cmp_ge_u32", sT0, "HEAD_LINES")
    I("s_cselect_b32", sT1, sA, 0)
    I("s_mul_i32", sT1, sT1, "A_SHIFT")
    I("v_add_u32", T[1], sT1, T[1])
    I("v_min_u32", T[1], "CODE_SPAN", T[1])
    I("global_load_dword", v(255), T[1], sPC)
    if OPT["stamps"]:
        I("s_memtime", s(98, 2)); I("s_memrealtime", s(96, 2))
        if OPT["fine"]: I("s_mov_b32", s(3), 0)
    I("v_readfirstlane_b32", sWV, T[0])
    I("v_and_b32", vL, 63, v(0))
    I("s_and_b32", sT0, s(2), 3)
    I("s_lshr_b32", sT1, s(2), 6)
    I("s_lshr_b32", sWV, sWV, 1)
    I("s_lshl2_add_u32", sRT, sT0, sT1)
    I("s_bfe_u32", sG, s(2), 0x30003)
    if OPT["perm"]:
        K, tab = PERMS[OPT["perm"]]
        if OPT["xsh"]: I("s_mul_i32", sXSH, sT0, OPT["xsh"])
        if K == 8:
            I("s_lshl1_add_u32", sT0, sT1, sG); I("s_and_b32", sT0, sT0, 7)
        elif K == 4:
            I("s_add_u32", sT0, sG, sT1); I("s_and_b32", sT0, sT0, 3)
        else:
            I("s_add_u32", sT0, sG, sT1); I("s_mul_i32", sT1, sT0, 86); I("s_lshr_b32", sT1, sT1, 8)
            I("s_mul_i32", sT1, sT1, 3); I("s_sub_u32", sT0, sT0, sT1)
        lo = [sum(p[i] << (4 * i) for i in range(8)) for p in tab]
        I("s_mov_b32", sPM[0], lo[0])
        for k_ in range(1, K):
            I("s_cmp_eq_u32", sT0, k_); I("s_cselect_b32", sPM[0], lo[k_], sPM[0])
        I("s_lshl_b32", sT0, sT0, 2)
        I("s_lshr_b32", sPM[1], sum(p[8] << (4 * k_) for k_, p in enumerate(tab)), sT0)
        I("s_and_b32", sPM[1], sPM[1], 15)
        I("s_lshl_b32", sT0, sWV, 1); I("s_and_b32", sT0, sT0, 4)
        I("s_lshr_b64", sPQ, sPM, sT0)
        I("s_mov_b32", sROT, 0)
    elif OPT["nphase"] == 7:
        I("s_add_u32", sT1, sG, sT1)
        I("s_and_b32", sT1, sT1, 1)
        I("s_lshl2_add_u32", sROT, sT1, sT0)
        I("s_add_u32", sROT, sROT, sT1)
    elif OPT["nphase"] in (3, 6):
        if OPT["nphase"] == 6:
            I("s_cmp_eq_u32", sT0, 3); I("s_cselect_b32", sT2, 1, sT0)
        I("s_add_u32", sT0, sG, sT1)
        I("s_mul_i32", sT1, sT0, 86)
        I("s_lshr_b32", sT1, sT1, 8)
        I("s_mul_i32", sT1, sT1, 3)
        I("s_sub_u32", sT0, sT0, sT1)
        I("s_mul_i32", sROT, sT0, 3)
        if OPT["nphase"] == 6: I("s_add_u32", sROT, sROT, sT2)
    elif OPT["nphase"] == 4:
        I("s_add_u32", sT0, sG, sT1)
        I("s_and_b32", sT0, sT0, 3)
        I("s_lshl_b32", sROT, sT0, 1)
    elif OPT["nphase"] == 5:
        I("s_add_u32", sT0, sG, sT1)
        I("s_and_b32", sT0, sT0, 3)
        I("s_mul_i32", sT0, sT0, 5)
        I("s_lshr_b32", sROT, sT0, 1)
    elif OPT["nphase"] == 8:
        I("s_lshl1_add_u32", sT0, sT1, sG)
        I("s_and_b32", sROT, sT0, 7)
    elif OPT["nphase"] == 2:
        I("s_add_u32", sT0, sG, sT1)
        I("s_and_b32", sT0, sT0, 1)
        I("s_lshl_b32", sROT, sT0, 2)
    else:
        I("s_mov_b32", sROT, 0)
    I("s_lshl2_add_u32", sSL, sRT, sWV)
    I("s_mul_i32", sOX, sSL, 32 * 1152)
    I("s_lshl_b32", sT0, sROT, 7)
    I("s_add_u32", sOX, sOX, sT0)
    I("s_lshl_b32", sMX, sWV, 12)
    I("s_mul_i32", sMQ, sWV, 4608)
    I("s_add_u32", sMW, sMQ, WSL)
    I("s_movk_i32", s1152, 1152)
    I("v_lshrrev_b32", T[0], 3, vL)
    I("v_mul_u32_u24", T[0], s1152, T[0])
    I("v_lshrrev_b32", vGL, 4, vL)
    I("v_and_b32", T[1], 7, vL)
    I("v_xor_b32", T[1], T[1], vGL)
    I("v_lshl_add_u32", vOX[0], T[1], 4, T[0])
    I("v_xor_b32", vOX[1], 64, vOX[0])
    I("v_add_u32", vOX[2], 16 * 1152 - 2048, vOX[0])
    I("v_add_u32", vOX[3], 24 * 1152 - 3072, vOX[1])
    I("v_add_u32", vOX[1], 8 * 1152 - 1024, vOX[1])
    I("s_mov_b32", SX[2], 2048 * 1152); I("s_mov_b32", SX[3], 0x20000)
    I("s_mov_b32", SW[2], 576 * 3456); I("s_mov_b32", SW[3], 0x20000)
    I("s_mul_i32", sL3, sG, 144)
    I("s_lshl2_add_u32", sT0, sROT, sWV)
    I("s_mul_i32", sOW, sT0, 16 * 3456)
    I("s_add_u32", sOW, sOW, sL3)
    I("s_add_u32", sOW, sOW, s1152)
    if OPT["perm"]:
        I("s_mov_b32", sXB0, sOX); I("s_mov_b32", sWB0, sOW)
        emit_groups(perm_next())
    I("s_movk_i32", sL0, 3456); I("s_movk_i32", sL1, -144)
    I("v_lshlrev_b32", vL16, 4, vL)
    I("v_mul_u32_u24", vM, 7282, vL)
    DR = [v(64 + i) for i in range(5)]; DP = [v(70 + i) for i in range(5)]; DC = [v(76 + i) for i in range(5)]
    for i in range(5):
        t = vM
        if i:
            I("v_add_u32", T[0], Q0[i] * 7282, vM); t = T[0]
        I("v_lshrrev_b32", T[1], 16, t)
        I("v_lshrrev_b32", DR[i], 17, t)
        I("v_and_b32", DP[i], 1, T[1])
        I("v_mad_i32_i24", DC[i], T[1], sL1, vL16)
        if i == 2:
            I("v_lshrrev_b32", T[2], 1, DR[i]); I("v_and_b32", T[2], 4, T[2]); I("v_xor_b32", DR[i], DR[i], T[2])
        elif i > 2:
            I("v_xor_b32", DR[i], 4, DR[i])
        I("v_mad_u32_u24", T[2], DR[i], sL0, DC[i])
        I("v_mad_u32_u24", vOW[i], DP[i], s1152, T[2])
    for r_, z_ in ((SWO, 576 * 1152), (SPHI, 32 * 648), (SOUT, 2048 * 2304), (SWS, WS_BYTES)):
        I("s_mov_b32", r_[2], z_); I("s_mov_b32", r_[3], 0x20000)
    I("v_lshlrev_b32", vL4, 2, vL)
    I("s_lshl2_add_u32", sT2, sG, sWV); I("s_mul_i32", sT2, sT2, 648)
    I("s_lshl3_add_u32", sL2, sA, sG)
    I("s_lshl_b32", sAG, sL2, 14); I("s_add_u32", sAG, sAG, WS_F)
    I("s_sub_u32", sT0, 2, sA)
    I("s_min_u32", sT1, sWV, sT0); I("s_mul_i32", sT3, sRT, sT0); I("s_add_u32", sT3, sT3, sRT); I("s_add_u32", sRSB, sT1, sT3)
    I("s_lshl_b32", sT1, sRSB, 8); I("s_add_u32", sFSL, sAG, sT1)
    I("s_cmp_gt_u32", sWV, sT0)
    I("s_cselect_b32", sFSL, OOB, sFSL)
    I("s_lshl3_add_u32", sT0, sA, 0); I("s_and_b32", sT1, sRSB, 7); I("s_or_b32", sT0, sT0, sT1)
    I("s_cmp_eq_u32", sT0, 15)
    I("s_cselect_b32", sFSL, OOB, sFSL)
    I("s_subb_u32", sRSB, sRSB, 0)
    I("v_and_b32", vN, 15, vL)
    I("v_and_b32", T[7], 1, vGL)
    I("v_lshlrev_b32", T[0], 2, vGL); I("v_lshl_add_u32", T[0], vN, 4, T[0])
    I("v_lshl_or_b32", vFS, T[7], 30, T[0])
    I("s_mul_i32", sT0, sSL, 32 * 2304)
    I("s_add_u32", sT0, sT0, sL3)
    I("s_xor_b32", sT1, sA, 1); I("s_mul_i32", sT1, sT1, 1152); I("s_add_u32", sOUTB, sT0, sT1)
    I("s_lshl_b32", sT0, sA, 6); I("s_add_u32", sT0, sT0, sSL)
    I("s_lshl_b32", sRF, sT0, 7); I("s_add_u32", sRF, sRF, WS_R)
    if OPT["pois0"]:
        I("s_mul_i32", sOB, sT0, 8 * 4608); I("s_add_u32", sOB, sOB, WS_O)
        I("s_lshl_b32", sT0, sL3, 5); I("s_add_u32", sOU[0], sT0, sOB)
        for i in range(4): I("v_mov_b32", M1[i], -1)
        I("v_lshlrev_b32", v(92), 3, vL); I("v_add_u32", v(92), 4096, v(92))
    if OPT["apx"]:
        I("s_mul_i32", SBX[2], sA, 2048 * 1152); I("s_mov_b32", SBX[3], 0x20000)
        I("s_lshl3_add_u32", sCNT, sSL, sG); I("s_mul_i32", sCNT, sCNT, 4 * 1152)
        I("v_min_u32", v(93), 35, vL); I("v_lshlrev_b32", v(93), 7, v(93))
    I("v_lshlrev_b32", v(90), 20, vL)
    I("v_mov_b32", v(91), 0)
    I("s_mov_b32", sT0, WS_E)
    wait(lgkm=0)
    fst("karg")
    def extras():
        for i in range(3):
            I("buffer_load_dword", PW[i], vL4, SPHI, sT2, mods="offen offset:%d" % (256 * i))
        I("buffer_load_dword", v(255), v(91), SWS, sRF, mods="offen sc1")
        if OPT["touch"]:
            I("buffer_load_dword", v(255), v(90), SWS, 0, mods="offen")
            I("buffer_load_dword", v(255), v(91), SOUT, sOUTB, mods="offen")
            I("buffer_load_dword", v(255), v(91), SWO, sL3, mods="offen")
    def pois0():
        for i in range(4):
            I("buffer_store_dwordx4", M1, vL16, SWS, sOU[0], mods="offen offset:%d sc1" % (1024 * i))
        I("buffer_store_dwordx2", M1[0:2], v(92), SWS, sOU[0], mods="offen sc1")
    if OPT["pois0"] == 1: pois0()
    apx = lambda: I("buffer_load_dword", v(255), v(93), SBX, sCNT, mods="offen")
    if OPT["apx"] == 1: apx()
    emit_groups(x_dma(0))
    I("s_load_dword", sE, SWS[0:2], sT0)
    if OPT["xo"] == 0: extras()
    emit_groups(w_dma(0))
    if OPT["xo"] == 1: extras()
    if OPT["apx"] == 2: apx()
    def xpf():
        I("s_lshl3_add_u32", sT0, sRT, sG); I("s_lshl2_add_u32", sT0, sT0, sWV); I("s_mul_i32", sT0, sT0, 4 * 1152)
        I("v_min_u32", T[1], 35, vL); I("v_lshlrev_b32", T[1], 7, T[1])
        I("buffer_load_dword", v(255), T[1], SX, sT0, mods="offen")
    if OPT["pfx"] == 1: xpf()
    stamp("S0iss")
    I("v_lshrrev_b32", T[0], 1, vN)
    I("v_xor_b32", T[0], T[0], vGL)
    I("v_lshl_add_u32", T[1], vN, 7, sMX)
    I("v_lshl_add_u32", vXR[0], T[0], 4, T[1])
    I("v_xor_b32", vXR[1], 64, vXR[0])
    I("v_bfe_u32", vR, vL, 2, 2)
    I("v_and_b32", vC, 3, vL)
    I("v_lshl_add_u32", T[1], vGL, 3, vR)
    I("v_lshl_add_u32", T[2], T[7], 2, T[1])
    I("v_xor_b32", T[3], 4, T[2])
    I("s_movk_i32", sT0, 288); I("v_mov_b32", T[4], WSL)
    I("v_mad_u32_u24", T[2], T[2], sT0, T[4]); I("v_mad_u32_u24", T[3], T[3], sT0, T[4])
    I("v_mul_u32_u24", T[0], 40, vC)
    I("v_lshrrev_b32", T[1], 1, vC)
    I("v_add_u32", vTR[0][0], T[2], T[0]); I("v_add_u32", vTR[0][1], T[3], T[0])
    I("v_lshlrev_b32", T[6], 5, T[1]); I("v_sub_u32", T[6], T[0], T[6])
    I("v_add3_u32", vTR[1][0], T[2], T[6], 24); I("v_add3_u32", vTR[1][1], T[3], T[6], 24)
    I("v_mul_u32_u24", T[6], 72, T[1])
    I("v_add3_u32", vTR[2][0], T[2], T[6], 32); I("v_add3_u32", vTR[2][1], T[3], T[6], 32)
    I("v_lshl_add_u32", vTR[3][0], vC, 3, T[2]); I("v_lshl_add_u32", vTR[3][1], vC, 3, T[3])
    I("v_and_b32", T[6], 1, vC); I("v_mul_u32_u24", T[6], 144, T[6])
    I("v_add_u32", vTR[4][0], vTR[2][0], T[6]); I("v_add_u32", vTR[4][1], vTR[2][1], T[6])
    if OPT["zq"]:
        I("v_lshl_add_u32", vTR[2][0], T[6], 11, vTR[2][0]); I("v_lshl_add_u32", vTR[2][1], T[6], 11, vTR[2][1])
    I("s_mov_b32", sT0, 32 * 3456 - 1152); I("s_movk_i32", sT1, 72)
    for i in range(5):
        I("v_mad_u32_u24", vOQ[i], DP[i], sT0, vOW[i])
        I("v_lshl_add_u32", T[0], DP[i], 3, DR[i])
        I("v_and_b32", T[3], 1, DR[i])
        if i == 2:
            I("v_lshrrev_b32", T[1], 3, DR[i])
            I("v_mad_u32_u24", T[0], T[1], 12, T[0])
            I("v_lshl_add_u32", T[3], T[1], 1, T[3])
        elif i > 2:
            I("v_add_u32", T[0], 12, T[0])
        I("v_mad_u32_u24", vOO[i], T[0], s1152, DC[i])
        I("v_bfe_u32", T[2], DR[i], 1, 2)
        I("v_lshl_add_u32", T[2], DP[i], 2, T[2])
        if OPT["gord"]:
            I("v_cmp_ge_u32", "vcc", sG, T[2])
            I("v_subb_co_u32", T[2], "vcc", T[2], 0, "vcc")
            I("v_min_u32", T[5], sG, T[2]); I("v_cmp_gt_i32", "vcc", 0, T[2])
            I("v_cndmask_b32", T[2], T[2], T[5], "vcc")
        else:
            I("v_add_u32", T[2], sG, T[2]); I("v_and_b32", T[2], 7, T[2])
        I("v_add_u32", T[3], 18 if i > 2 else 16, T[3])
        I("v_mad_u32_u24", T[2], T[2], sT1, T[3])
        I("v_mad_u32_u24", vO8[i], T[2], s1152, DC[i])
    if OPT["s1m"]: emit_groups(x_dma(1))
    for i in range(4): I("v_mov_b32", v(84 + i), 0)
    I("s_mul_i32", sT1, sWV, 384); I("s_add_u32", sT1, sT1, ZERO)
    I("v_min_u32", T[0], 23 * 16, vL16); I("v_add_u32", T[0], sT1, T[0])
    I("ds_write_b128", T[0], v(84, 4))
    I("s_mul_i32", sT0, sWV, 960); I("s_add_u32", sT0, sT0, PHI)
    for i in range(3):
        t = vM
        if i:
            I("v_add_u32", T[0], 64 * i * 7282, vM); t = T[0]
        I("v_lshrrev_b32", T[0], 16, t); I("v_add_u32", T[0], T[0], vL)
        I("v_lshl_add_u32", PA[i], T[0], 2, sT0)
    I("v_cmp_eq_u32", "vcc", vC, vGL)
    I("v_mul_u32_u24", T[0], 40, vR)
    I("v_mul_u32_u24", T[1], 1040, vGL)
    I("v_mov_b32", T[3], ZERO)
    I("v_add3_u32", T[1], T[1], T[0], T[3])
    I("v_add_u32", T[2], (PHI - ZERO) & 0xffffffff, T[1])
    I("v_cndmask_b32", vPH[0], T[3], T[2], "vcc")
    I("v_lshrrev_b32", T[4], 1, vGL); I("v_mul_u32_u24", T[4], 640, T[4])
    I("v_sub_u32", T[2], T[2], T[4]); I("v_add_u32", T[2], 480, T[2])
    I("v_cndmask_b32", vPH[1], T[3], T[2], "vcc")
    I("v_mul_u32_u24", T[1], 1920, vGL); I("v_add_u32", T[1], T[1], T[0]); I("v_add_u32", T[2], KVI, T[1])
    I("v_cndmask_b32", vPSA, T[3], T[2], "vcc")
    I("v_mul_u32_u24", T[1], 960, vGL); I("v_mul_u32_u24", T[4], 640, T[7])
    I("v_sub_u32", T[1], T[1], T[4]); I("v_add_u32", T[1], T[1], T[0]); I("v_add_u32", T[1], PHI + 640, T[1])
    I("v_cndmask_b32", T[1], T[3], T[1], "vcc")
    I("v_cmp_gt_u32", "vcc", 2, vR)
    I("s_mul_i32", sPME, sL2, PGRP)
    I("s_lshl_b32", sRSB, sRSB, 12)
    I("v_cndmask_b32", vPH[2], T[3], T[1], "vcc")
    I("s_add_u32", sRSB, sRSB, sPME)
    stamp("P1")
    if OPT["pfx"] == 2: xpf()
    if OPT["xo"] == 2: extras()
    if OPT["pois0"] == 2: pois0()
    if OPT["apx"] == 3: apx()
    I("s_mov_b32", sG144, sL3)
    emit_groups(w_dma(1) if OPT["s1m"] else stage_dma(1))
    if OPT["pois0"] == 3: pois0()
    stamp("S1iss")
    def touch_round(r):
        I("s_lshl2_add_u32", sCNT, sA, sWV)
        I("s_mov_b64", "exec", 0)
        for k_ in range(7):
            I("s_cmp_eq_u32", sCNT, k_)
            I("s_cbranch_scc1", "L_th%s%d%d" % ("BA"[k_ // 4], r, k_ % 4))
        I("s_branch", "L_thA%d3" % r)
        P.label("L_tret%d" % r)
        I("s_mov_b64", "exec", -1)
    if OPT["itouch"]:
        P.touch = {"L_tailA"}; P.rounds = 2

    def late():
        I("s_and_b32", sL0, sWV, 1); I("s_lshr_b32", sL1, sWV, 1)
        I("s_mul_i32", sL2, sL0, 16 * 3456); I("s_add_u32", sL2, sL2, sG144)
        I("s_add_u32", sQE, sL2, 0 if OPT["perm"] else 9 * WSTEP)
        I("s_add_u32", sL3, sL1, sROT)
        if OPT["nphase"] in (6, 7):
            I("s_add_u32", sOQ, sL3, 7); I("s_lshr_b32", sOQ, sOQ, 4); I("s_mul_i32", sOQ, sOQ, 9); I("s_sub_u32", sL3, sL3, sOQ)
        I("s_mul_i32", sL3, sL3, WSTEP); I("s_add_u32", sOQ, sL3, sL2)
        I("s_mul_i32", sO8, sL0, 36 * 1152); I("s_add_u32", sO8, sO8, sG144)
        if OPT["gord"]:
            I("s_mov_b32", sOE, sL1)
            I("s_min_u32", sL3, sG, 1); I("s_xor_b32", sL3, sL3, 1); I("s_mul_i32", sL3, sL3, sL1)
            I("s_xor_b32", sL2, sL1, 1); I("s_mul_i32", sL2, sL2, sG); I("s_add_u32", sL3, sL3, sL2)
            I("s_mul_i32", sL3, sL3, 82944); I("s_add_u32", sOO, sL3, sO8)
        else:
            I("s_add_u32", sOE, sO8, 8 * 82944)
            I("s_add_u32", sL3, sL1, sG); I("s_and_b32", sL3, sL3, 7); I("s_mul_i32", sL3, sL3, 82944); I("s_add_u32", sOO, sL3, sO8)
        I("s_mov_b32", sC[0], f2u(LOG2E)); I("s_mov_b32", sC[1], f2u(LOG2E))
        I("s_mov_b32", sEPS[0], f2u(1e-6)); I("s_mov_b32", sEPS[1], f2u(1e-6))
        I("s_add_u32", sE, sE, 0x11); I("s_and_b32", sTAG, sE, 0xff); I("s_mov_b32", sMSK, 0xffffff00)
        I("s_getreg_b32", sL0, "hwreg(HW_REG_XCC_ID, 0, 4)")
        I("s_and_b32", sRV, sE, 0xfffffff0); I("s_or_b32", sRV, sRV, sL0)
        for i in range(4): I("v_mov_b32", M1[i], -1)
        I("s_sub_u32", sL2, 3, sA); I("s_mul_i32", sL2, sL2, sWV)
        I("s_lshl_b32", sL1, sL2, 14); I("s_add_u32", sPME, sPME, sL1)
        I("s_lshl_b32", sL1, sRT, 8); I("s_add_u32", sPME, sPME, sL1)
        I("s_lshl_b32", sL1, sL2, 10); I("s_add_u32", sAG, sAG, sL1)
        I("s_lshr_b32", sL1, sWV, 1)
        I("s_mul_i32", sQ8, sL1, 0x40000000); I("s_mul_i32", sM8, sL1, 100000); I("s_add_u32", sM8, sM8, sMQ)
        I("s_lshl_b32", sL0, sA, 6); I("s_add_u32", sL0, sL0, sSL)
        I("s_mul_i32", sOB, sL0, 8 * 4608); I("s_add_u32", sOB, sOB, WS_O)
        I("s_lshl_b32", sL0, sG144, 5); I("s_add_u32", sOU[0], sL0, sOB)
        I("v_add_u32", vL4, 4096, vL4)
        I("v_lshl_add_u32", T[0], vGL, 2, vR)
        I("v_mul_u32_u24", T[0], IR, T[0])
        I("s_mul_i32", sL0, sWV, 128 * IR)
        I("v_add_u32", vKB2, sL0, T[0])
        I("v_lshl_add_u32", vKB0, vC, 3, vKB2)
        for p in range(2):
            I("v_mov_b32", KB[p][9], 0)
            I("v_mov_b32", KB[p][11], 0x3f80); I("v_mov_b32", PH[p][19], 0x3f80)
        I("v_mul_u32_u24", T[0], 128 * IR, vGL)
        I("v_mul_u32_u24", T[1], IR, vN)
        I("s_mul_i32", sL0, sWV, 32 * IR)
        I("v_add3_u32", vIW, T[0], T[1], sL0)
        I("s_mul_i32", sL0, sWV, 5120); I("s_add_u32", sL0, sL0, VF)
        I("v_add_u32", vVW, sL0, vL16)
        I("s_lshl_b32", sL0, sWV, 10); I("s_add_u32", sL0, sL0, VF)
        I("v_add_u32", vAM, sL0, vL16)
        I("v_lshlrev_b32", T[0], 4, vN); I("v_lshl_add_u32", vP1, vGL, 12, T[0])
        I("v_cmp_gt_u32", "vcc", 4, vN)
        I("v_mov_b32", T[4], OOB)
        I("v_lshl_add_u32", T[0], vGL, 2, vN); I("v_lshlrev_b32", T[0], 4, T[0])
        I("v_cndmask_b32", vP2, T[4], T[0], "vcc")
        I("v_cmp_gt_u32", "vcc", 16, vL)
        I("s_mul_i32", sL1, sWV, 1920); I("s_add_u32", sL1, sL1, KVI)
        I("v_cndmask_b32", vP3, T[4], vL16, "vcc")
        I("v_mul_u32_u24", T[1], 40, vN); I("v_lshl_add_u32", T[1], vGL, 3, T[1])
        I("v_add_u32", vAG1, sL1, T[1])
        I("v_mul_u32_u24", T[2], 40, vC); I("v_lshrrev_b32", T[3], 2, vL)
        I("s_lshr_b32", sL0, 32 * 40, sA)
        I("v_lshl_add_u32", T[2], T[3], 3, T[2]); I("v_add_u32", T[2], sL0, T[2])
        I("v_mul_u32_u24", T[3], 40, vL); I("v_add_u32", T[3], (32 - 16 * 40) & 0xffffffff, T[3])
        I("v_cndmask_b32", T[2], T[3], T[2], "vcc"); I("v_add_u32", vAG2, sL1, T[2])
        for t in range(5):
            I("v_accvgpr_write_b32", PHIF(t, 2)[2], 0); I("v_accvgpr_write_b32", PHIF(t, 2)[3], 0)
    lt = singles(cap(late))

    wait_vm("S0", lgkm=0)
    I("s_barrier")
    stamp("S0land")
    pipe = Pipe(dist=4)
    NU = 18
    RT = list(range(-4, 8)) + [8, 8, 9, 9, 10, 10]
    fill = []
    for j in range(9):
        slot = j % 3
        order = [(kap, T_) for kap in range(2) for T_ in range(9)]
        if j == 8: order = [(kap, T_) for T0, T1 in ((0, 5), (5, 9)) for kap in range(2) for T_ in range(T0, T1)]
        seen = set()
        for m, (kap, T_) in enumerate(order):
            ks = 2 * j + kap
            ring = RING[(NU * j + m) % 8]
            def rd():
                if kap not in seen:
                    seen.add(kap)
                    for p in range(2):
                        I("ds_read_b128", XF(ks, p), vXR[kap], mods="offset:%d" % (slot * XSLOT + p * 2048))
                if OPT["ex"] & 2 and (j > 0 or m >= 8): return
                if OPT["ex"] & 4 and T_ >= 5: return
                tile_read(ring, T_, slot * WSLOT + kap * 9216, kv=True)
            def work():
                if OPT["ex"] & 1:
                    I("s_nop", 1); I("s_nop", 1); return
                for p in range(2):
                    if T_ < 5: mfma(ACK[p][T_], ring, XF(ks, p), 0 if ks == 0 else ACK[p][T_])
                    else: mfma(ACV[p][T_ - 5], XF(ks, p), ring, 0 if ks == 0 else ACV[p][T_ - 5])
            pipe.add(rd, work, rt=NU * j + RT[m])
        def hook():
            if OPT["itouch"] and NU * j + NU - 4 == OPT["t0"]: touch_round(0)
            if OPT["itouch"] and NU * j + NU - 4 == OPT["t1"]: touch_round(1)
            if j < 8: wait_vm("S%d" % (j + 1), lgkm=0)
            else: wait(lgkm=0)
            I("s_barrier")
            if OPT["p1st"]: stamp("b%d" % (j + 1))
        pipe.hooks[NU * j + NU - 4] = cap(hook)
        t0 = max(0, NU * j - 4)
        if j + 2 < 9: fill += spread(stage_dma(j + 2), t0, NU * j + NU - 7)
        elif j == 7: fill += spread(wq_pair_dma(0) + wq_pair_dma(2), t0 + 2, NU * j + 2 * NU - 6)
    def apre(kind):
        tag = "ap" + kind
        def pre():
            I("s_lshl3_add_u32", sT2, sSL, sG); I("s_mul_i32", sT2, sT2, 81); I("s_lshr_b32", sT2, sT2, 3)
            I("v_min_u32", T[5], 10, vL); I("v_add_u32", T[5], sT2, T[5])
            if kind == "o":
                I("v_lshlrev_b32", T[5], 7, T[5])
                I("s_mov_b32", SBO[2], 576 * 1152); I("s_mov_b32", SBO[3], 0x20000)
            else:
                I("v_mul_u32_u24", T[6], 7282, T[5]); I("v_lshrrev_b32", T[6], 16, T[6])
                I("v_mul_u32_u24", T[6], 18, T[6]); I("v_add_lshl_u32", T[5], T[5], T[6], 7)
                I("s_mov_b32", SBQ[2], 576 * 3456); I("s_mov_b32", SBQ[3], 0x20000)
        def go():
            I("s_cmp_eq_u32", sA, 0)
            I("s_cbranch_scc1", "L_skip_" + tag)
            for r_ in ((SBO, SWO) if kind == "o" else (SBQ, SW)):
                x = I("buffer_load_dword", v(255), T[5], r_, 0, mods="offen"); x.cond = True
            P.label("L_skip_" + tag)
        return singles(cap(pre)) + [cap(go)]
    if OPT["apo"]: fill += at(OPT["apo"], apre("o"))
    if OPT["apq"]: fill += at(OPT["apq"], apre("q"))
    if OPT["pfq"]:
        fill += at(OPT["pfq"], singles(cap(lambda: prefetch("wq"))))
    if OPT["pfo"] > 1:
        fill += at(OPT["pfo"], singles(cap(lambda: prefetch("wo"))))
    fill.sort(key=lambda t: t[0])
    phw = singles(cap(lambda: [I("ds_write_b32", PA[i], PW[i], mods="offset:%d" % (256 * i)) for i in range(3)]))
    def phir():
        for t in range(5):
            for tp in range(5):
                ad, o = (vPH[0], 160 * tp) if tp < 3 else (vPH[tp - 2], 0)
                tr(PHIF(t, tp // 2)[2 * (tp & 1):2 * (tp & 1) + 2], ad, 8 * t + o)
    phr = singles(cap(phir))
    nl = len(lt)
    bulk = spread(lt[:8], -1, -1) + spread(lt[8:30], 0, 21) + spread(phw, 21, 27) + spread(lt[30:40], 27, 38)
    bulk += spread(phr, 38, 72) + spread(lt[40:], 72, 132)
    bulk += spread(singles(cap(lambda: (cv(0, True), cv(1, True)))), 160, 162)
    pipe.emit(fill, bulk)
    stamp("pass1")

    I("s_cmp_lg_u32", sA, 0)
    I("s_cbranch_scc1", "L_tailA")
    P.label("L_tailB")
    names0 = list(stamp_names); mute0 = OPT.get("mute")
    P.put(mark(cap(lambda: tail("B")), path="B"))
    P.label("L_end")
    P.label("L_notouchB")
    I("s_endpgm")
    for sl in SLOW: P.put(mark(sl, path="B"))
    del SLOW[:]
    stamp_names[:] = names0; OPT["mute"] = mute0
    P.raw(".p2align 7")
    P.label("L_dotouch")
    P.label("L_tailA")
    P.put(mark(cap(lambda: (I("s_nop", 7), tail("A"))), path="A"))
    P.label("L_notouchA")
    I("s_endpgm")
    for sl in SLOW: P.put(mark(sl, path="A"))
    P.label("L_last")
    for sl in RARE: P.put(mark(sl, path="B"))

def prefetch(kind):
    I("s_lshr_b32", sT2, s(2), 3); I("s_lshl2_add_u32", sT2, sT2, sWV); I("s_mul_i32", sT2, sT2, 81); I("s_lshr_b32", sT2, sT2, 1)
    I("v_min_u32", T[5], 40, vL); I("v_add_u32", T[5], sT2, T[5])
    if kind == "wo":
        I("v_lshlrev_b32", T[5], 7, T[5])
        I("buffer_load_dword", v(255), T[5], SWO, 0, mods="offen")
    else:
        I("v_mul_u32_u24", T[6], 7282, T[5]); I("v_lshrrev_b32", T[6], 16, T[6])
        I("v_mul_u32_u24", T[6], 18, T[6]); I("v_add_lshl_u32", T[5], T[5], T[6], 7)
        I("buffer_load_dword", v(255), T[5], SW, 0, mods="offen")

def rebase(delta):
    for pat in range(3):
        for e in range(2):
            I("v_add_u32", vTR[pat][e], delta & 0xffffffff, vTR[pat][e])

def tail(path):
    B = path == "B"
    FT = [0, 1, 2] if B else [0, 2]
    PHI_ = PH if B else KB
    NJ = 5 if B else 3
    def poison():
        for i in range(4):
            I("buffer_store_dwordx4", M1, vL16, SWS, sOU[0], mods="offen offset:%d sc1" % (1024 * i))
        for i in range(2):
            I("buffer_store_dword", M1[0], vL4, SWS, sOU[0], mods="offen offset:%d sc1" % (256 * i))
    def vpack():
        for t in range(4):
            d = ACV[0][t]
            for p in range(2):
                for h in range(2):
                    I("v_cvt_pk_bf16_f32", d[2 * p + h], ACV[p][t][2 * h], ACV[p][t][2 * h + 1])
        I("v_mov_b32", T[0], sTAG)
        I("s_mov_b32", sCNT, 0)
        rebase(WQ0 - WSL)
    def prewarm():
        I("v_min_u32", T[1], 35, vL); I("v_lshlrev_b32", T[1], 7, T[1])
        I("buffer_load_dword", v(255), T[1], SWS, sOU[0], mods="offen sc1")
    vp = singles(cap(vpack))
    w = singles(cap(lambda: [I("ds_write_b128", vVW, ACV[0][t], mods="offset:%d" % (1024 * t)) for t in range(4)]))
    q = tagged(singles(cap(poison)), "POIS") if not OPT["pois0"] else []
    pwm = [cap(prewarm)] if OPT["pw"] else []
    pfo = [cap(lambda: prefetch("wo"))] if OPT["pfo"] == 1 else []
    q4, q6, q8 = vm_only(wq_pair_dma(4)), vm_only(wq_pair_dma(6)), vm_only(wq_pair_dma(8))
    if B:
        ksh = weave(q4[:4], vp); km0 = weave(q4[4:] + q6, w); km1 = q8 + pfo + q
        late_q = []
    else:
        ksh = weave(q4[:2], vp); km0 = weave(q4[2:] + q6[:3], w); km1 = q6[3:] + q8 + pfo + q
        late_q = []
    kvq = []
    if B and OPT["peB"] == 1:
        ksh = weave(q4, vp); km0 = weave(q, w); km1 = q6 + q8
    if B and OPT["peB"] == 2:
        ksh = weave(q4[:4], vp); km0 = weave(q4[4:] + q6, w); km1 = q + q8
    if not B and OPT["peA"] == 1:
        ksh = weave(q4[:2], vp); km0 = weave(q4[2:] + q, w); km1 = q6 + q8
    if not B and OPT["peA"] == 2:
        km1 = q6[3:] + q8; kvq = q
    if OPT["pf2"]:
        pf = [cap(lambda: prefetch("wo"))]
        if B:
            ksh = weave(q4, vp); km0 = weave(q6 + q8, w) + pf; km1 = []
        else:
            ksh = weave(q4[:2], vp); km0 = weave(q4[2:] + q6[:3], w); km1 = q6[3:] + q8 + pf
        kvq = q
    def kwrites(p):
        def f():
            for i in range(5 if B else 3): I("ds_write_b128", vIW, PHI_[p][4 * i:4 * i + 4], mods="offset:%d" % (IMG + p * 16 * IR + 16 * i))
        return singles(cap(f))
    P.put(feature_map(path, "k", True, ksh, (km0, 2, 98), (km1, 0, 70 if B else 95), kwrites))
    wait_vm("WQ4", lgkm=0)
    I("s_barrier")
    stamp("kpost")
    DM = [v(104 + 4 * j, 4) for j in range(3)]; DL = [v(116 + 4 * j, 4) for j in range(3)]
    pipe = Pipe(dist=3, grp=1) if not OPT["j4"] else Pipe(dist=4)
    n = 0
    for j in FT:
        for src in range(4):
            AM, AL = a(204 + 8 * src, 4), a(208 + 8 * src, 4)
            BF = RING[n % 8]; n += 1
            def rd():
                if j == 0: I("ds_read_b128", AM, vAM, mods="offset:%d" % (src * 5120))
                for e in range(2):
                    tr(BF[2 * e:2 * e + 2], vKB0 if j < 2 else vKB2, IMG + src * 32 * IR + e * 16 * IR + (32 * j if (B or j < 2) else 32))
                if j == 0:
                    for e in range(2): tr(AL[2 * e:2 * e + 2], vKB2, IMG + src * 32 * IR + e * 16 * IR + (72 if B else 40))
            def work():
                mfma(DM[j], AM, BF, 0 if src == 0 else DM[j])
                mfma(DL[j], AL, BF, 0 if src == 0 else DL[j])
            pipe.add(rd, work, rt=(0 if (OPT["j4"] and n == 4) else None))
    SLM = {0: 0, 1: 4, 2: 8} if B else {0: 0, 2: 4}
    SLL = {0: 9, 1: 10, 2: 11} if B else {0: 5, 2: 6}
    def pstore(j):
        for D, ad, sl in ((DM[j], vP1 if j < 2 else vP2, SLM[j]), (DL[j], vP3, SLL[j])):
            if sl: I("s_add_u32", sT1, sPME, sl * 4096)
            for i in range(4): I("v_and_or_b32", D[i], D[i], sMSK, T[0])
            I("buffer_store_dwordx4", D, ad, SWS, sT1 if sl else sPME, mods="offen sc1")
    fill = []
    kvpipe = None; KO = 0; pfill = []
    if OPT["j4"]:
        kvpipe = pipe; KO = 4 * len(FT); qlead = []
        t_ = 6
        for k_, j in enumerate(FT):
            t_ = max(t_, 4 * k_ + 6)
            pfill += spread(singles(cap(lambda: (pstore(j), fst("pubP") if j == 2 else None))), t_, t_ + 2 * OPT["psp"]); t_ += 2 * OPT["psp"]
    else:
        for k_, j in enumerate(FT[:-1]): fill += spread(tagged(singles(cap(lambda: pstore(j))), "P"), 4 * k_ + 5, 4 * k_ + 8)
        pipe.emit(fill)
        fst("kvmm")
        qlead = cap(lambda: (pstore(FT[-1]), stamp("pubP")))
        if not OPT["j1"]:
            P.put(qlead); qlead = []
            I("s_barrier")
        stamp("wqland")

    def gemm2(bfrag, offs, rebases, fill, nm, hooks={}, lead=(), n=0, nks=18, extra=None, pipe=None):
        pipe = pipe or Pipe(dist=OPT["qd"])
        pipe.dist = OPT["qd"]
        pipe.hooks = hooks
        for ks in range(nks):
            for T_ in range(5):
                ring = RING[n % 8]; n += 1
                def rd():
                    if T_ == 0 and ks in rebases: rebase(rebases[ks])
                    tile_read(ring, T_, offs(ks))
                def work():
                    for p in range(2):
                        mfma(ACK[p][T_], ring, bfrag(ks, p), 0 if ks == 0 else ACK[p][T_])
                pipe.add(rd, work, (lambda: fst("%s%d" % (nm, ks))) if T_ == 0 else None)
        if extra: extra(pipe)
        pipe.emit(fill, lead=lead)
    RS = v(128, 16)
    vCK = T[6]
    RS2 = v(200, 16); sRS2, sFS2 = s(22), s(23)
    def rs_loads(RS=RS, so=sRSB):
        for i in range(4):
            I("buffer_load_dwordx4", RS[4 * i:4 * i + 4], vL16, SWS, so, mods="offen offset:%d sc1" % (1024 * i))
    def rs_reduce(RS=RS, sFSL=sFSL):
        for st in (8, 4):
            for i in range(st): I("v_add_f32", RS[i], RS[i], RS[i + st])
        I("v_permlane32_swap_b32", RS[0], RS[2]); I("v_permlane32_swap_b32", RS[1], RS[3])
        I("v_add_f32", RS[0], RS[0], RS[2]); I("v_add_f32", RS[1], RS[1], RS[3])
        I("v_mov_b32", RS[2], RS[0]); I("v_mov_b32", RS[3], RS[1])
        I("v_permlane16_swap_b32", RS[0], RS[2]); I("v_permlane16_swap_b32", RS[1], RS[3])
        I("v_add_f32", RS[0], RS[0], RS[2]); I("v_add_f32", RS[1], RS[1], RS[3])
        I("v_cvt_pk_bf16_f32", RS[0], RS[0], RS[1])
        I("v_mov_b32", RS[1], sE)
        I("buffer_store_dwordx2", RS[0:2], vFS, SWS, sFSL, mods="offen sc1")
        fst("pubF")
    vRV, vRA = T[7], T[8]
    def rflag():
        I("v_mov_b32", vRV, sRV); I("s_lshl_b32", sT1, sG, 2); I("v_mov_b32", vRA, sT1)
        I("buffer_store_dword", vRV, vRA, SWS, sRF, mods="offen sc1")
    ra, rc = OPT["rs_at"], OPT["rs_chk"]
    if not B: ra -= OPT["dA"]; rc -= OPT["dA"]
    wo = [vm_only(wo_pair_dma(u)) for u in (0, 2, 4, 6)]
    wo.append(vm_only(singles(cap(lambda: I("s_add_u32", sO8, sO8, sQ8))) + tagged(dma5(vO8, SWO, sO8, sM8, WO6 + 2 * 9216), "WO8")))
    def ou():
        for u in range(1, 8):
            if OPT["gord"]:
                I("s_sub_u32", sL0, sG, u); I("s_lshr_b32", sL0, sL0, 31)
                I("s_add_u32", sL0, sL0, u - 1)
            else:
                I("s_add_u32", sL0, sG, u); I("s_and_b32", sL0, sL0, 7)
            I("s_mul_i32", sL0, sL0, 4608); I("s_add_u32", sOU[u], sL0, sOB)
    qsh2 = []
    if B:
        rf = [cap(lambda: wait_vm("POIS"))] + singles(cap(rflag))
        fill = spread(singles(cap(ou)), 14, 50) + at(OPT["rf_at"], rf)
        allw = sum(wo, []); nq = OPT["nq"]
        sp = spread(allw[:nq], OPT["w0"], 89)
        assert all(t_ >= 55 for t_, g in sp[15:]) or nq > 22
        if nq > 22: sp = spread(allw[:15], OPT["w0"], 55) + spread(allw[15:nq], 56, 89)
        fill += sp
        if OPT["pw"] > 5: fill += at(OPT["pw"], singles(sum(pwm, [])))
        fill.sort(key=lambda t: t[0])
        wrest = allw[nq:]
        wo = [[], []]
    else:
        def b_addr():
            I("s_min_u32", sL1, sWV, 2); I("s_mul_i32", sL2, sRT, 3); I("s_add_u32", sL1, sL1, sL2)
            I("s_mul_i32", sL2, sG, PGRP); I("s_lshl_b32", sRS2, sL1, 12); I("s_add_u32", sRS2, sRS2, sL2)
            I("s_lshl_b32", sL2, sG, 14); I("s_lshl_b32", sL1, sL1, 8); I("s_add_u32", sL1, sL1, sL2); I("s_add_u32", sFS2, sL1, WS_F)
            I("s_add_u32", sL1, sWV, 1); I("s_lshr_b32", sL1, sL1, 2); I("s_lshl_b32", sL1, sL1, 30); I("s_add_u32", sFS2, sFS2, sL1)
        fill = sorted(spread(kvq, 1, 14) + spread(wo.pop(0), 15 if kvq else 3, 31 if kvq else 26) + spread(singles(cap(ou)) + singles(cap(b_addr)), 1, 33), key=lambda t: t[0])
        l2 = lambda: rs_loads(RS2, sRS2)
        chk = [cap(lambda: (fst("rsb"), wait_vm("RS"), fst("rsw")))] + check_tag("rs" + path, vCK, [RS[i] for i in range(16)], rs_loads) + singles(cap(rs_reduce)) + singles(cap(rflag))
        chk2 = [cap(lambda: wait_vm("RB"))] + check_tag("rb" + path, T[5], [RS2[i] for i in range(16)], l2) + singles(cap(lambda: rs_reduce(RS2, sFS2)))
        f2 = spread(tagged(singles(cap(rs_loads)), "RS"), ra, ra + 4) + spread(tagged(singles(cap(l2)), "RB"), OPT["rb_at"], OPT["rb_at"] + 5)
        if OPT["bfirst"]:
            rb = OPT["rb_chk"]
            nchk = 28
            f2 += spread(chk[:nchk], rc, rb) + spread(chk2, rb, rb + OPT["rb_len"]) + spread(chk[nchk:], rb + OPT["rb_len"], rb + OPT["rb_len"] + 10)
            f2 += spread(wo.pop(0), OPT["rb_at"] + 6, rb + 4)
        else:
            f2 += spread(wo.pop(0), ra + 4, ra + 20)
            f2 += spread(chk, rc, rc + OPT["rs_len"]) + spread(chk2, max(OPT["rb_chk"], rc + OPT["rs_len"]), max(OPT["rb_chk"], rc + OPT["rs_len"]) + OPT["rb_len"])
        fill += sorted(f2, key=lambda t: t[0])
    if OPT["j4"]:
        tmin = pfill[-1][0] + 1
        fill = pfill + [(max(t_ + KO, tmin), g) for t_, g in fill]
    gemm2(XF, lambda ks: ((ks // 2) % 6) * 9216 + (ks & 1) * 144, {12: WQ6 - WQ0}, fill, "q",
          dict([(53 + KO, cap(lambda: (wait_vm("WQ8"), I("s_barrier"))))] + ([(1 + KO, cap(lambda: I("s_barrier")))] if OPT["j1"] else [])), lead=qlead, n=4 * len(FT), pipe=kvpipe)
    stamp("qgemm")

    NAG = 3 if B else 2
    AG = v(104, 4 * NAG); RF = v(116)
    def ag_loads():
        for i in range(NAG):
            I("buffer_load_dwordx4", AG[4 * i:4 * i + 4], vL16 if (B or i == 0) else T[3], SWS, sAG, mods="offen offset:%d sc1" % (1024 * i))
    def ag_fold():
        I("v_xor_b32", vCK, sE, AG[1])
        for i in range(3, 4 * NAG, 2): I("v_bitop3_b32", vCK, vCK, sE, AG[i], mods="bitop3:0xf6")
    def rf_load(): I("buffer_load_dword", RF, T[4], SWS, sRF, mods="offen sc1")
    def qsh():
        if not B: I("v_min_u32", T[3], 47 * 16, vL16)
        I("v_and_b32", T[4], 7, vL); I("v_lshlrev_b32", T[4], 2, T[4])
        rebase(WO0 - WQ6)
        for t in range(5):
            I("v_accvgpr_write_b32", PSIF(t, NJ - 1)[2], 0); I("v_accvgpr_write_b32", PSIF(t, NJ - 1)[3], 0)
    fr = OPT["ag_frac"] if B else OPT["ag_fracA"]
    g = singles(cap(rf_load)) + singles(cap(lambda: fst("agi"))) + tagged(singles(cap(ag_loads)), "AG") + (pwm if OPT["pw"] == 2 else [])
    lo = (fr - 50) * 2
    wc = wo.pop(0)
    if OPT["pw"] == 3: wc = pwm + wc
    wd = sum(wo, [])
    def agw():
        I("ds_write2_b32", vAG1, AG[0], AG[2], mods="offset0:0 offset1:1")
        if B: I("ds_write2_b32", vAG1, AG[4], AG[6], mods="offset0:160 offset1:161")
        I("ds_write2_b32", vAG2, AG[4 * NAG - 4], AG[4 * NAG - 2], mods="offset0:0 offset1:1")
    agc = cap(lambda: (fst("agb"), wait_vm("AG"), fst("agw"))) + sum(check_or_retry("ag" + path, ag_fold, lambda: I("v_cmp_ne_u32", "vcc", 0, vCK), ag_loads), []) + cap(agw)
    agb = cap(lambda: (wait(lgkm=0), I("s_barrier"), stamp("gotkv")))
    olead = []
    if B:
        mids = [([], 0, 100), ([], 0, 100)]
        mids[1 if fr >= 50 else 0] = (g, (fr % 50) * 2, min(100, (fr % 50) * 2 + 12))
        if wrest[4:]:
            assert fr >= 50
            mids[0] = (wrest[4:], 5, 95)
        qs = weave(singles(cap(qsh)), wrest[:4]) if wrest else singles(cap(qsh))
        if OPT["pw"] == 5: qs = singles(sum(pwm, [])) + qs
        body = feature_map(path, "q", False, qs, mids[0], mids[1], lambda p: [])
        if OPT["j2"]:
            ok = lambda i: isinstance(body[i], Ins) and body[i].kind == "valu" and isinstance(body[i - 1], Ins) and body[i - 1].kind == "valu"
            c1 = len(body) * OPT["agc"] // 100; c2 = len(body) * OPT["agb"] // 100
            while not ok(c1): c1 += 1
            while not ok(c2): c2 += 1
            P.put(body[:c1] + agc + body[c1:c2] + agb); olead = body[c2:]
        else:
            P.put(body + agc + agb)
    else:
        P.put(feature_map(path, "q", False, singles(cap(qsh)), (wc[:3], 0, 100), (wc[3:] + g, 0, 100), lambda p: []))
        emit_groups(wd)
        P.put(agc + agb)

    pool = list(range(104, 144, 4)) + list(range(176, 256, 4)) + [12, 16, 28, 32, 36, 40]
    OF = {}
    keys = [(0, p, X) for X in range(2) for p in range(2)] + [("L", k, p) for k in range(2) for p in range(2)] + [(u, p, X) for u in range(1, 8) for p in range(2) for X in range(2)]
    for k_, r_ in zip(keys, pool): OF[k_] = v(r_, 4)
    o = ACC
    pipe = Pipe(dist=OPT["od"])
    for t in (4, 0, 1, 2, 3):
        for j in range(NJ):
            def rd():
                tr(PSIF(t, j)[0:2], vPSA, 8 * t + 8 * j * 40)
                if j < NJ - 1: tr(PSIF(t, j)[2:4], vPSA, 8 * t + (8 * j + 4) * 40)
            def work():
                for p in range(2):
                    mfma(ACK[p][t], PSIF(t, j), PHI_[p][4 * j:4 * j + 4], 0 if j == 0 else ACK[p][t])
            pipe.add(rd, work)
    def ostore(key, flag=None):
        if flag is None: flag = ["", " sc1", " nt"][OPT["oflag"]]
        if key[0] == "L": I("buffer_store_dword", OF[key][0], vL4, SWS, sOU[0], mods="offen offset:%d%s" % (key[2] * 256, flag))
        else: I("buffer_store_dwordx4", OF[key], vL16, SWS, sOU[0], mods="offen offset:%d%s" % (key[1] * 2048 + key[2] * 1024, flag))
    def fin_den():
        for p in range(2): I("v_add_f32", o[p][18], sEPS[0], o[p][18])
        for p in range(2): I("v_rcp_f32", o[p][18], o[p][18])
        for p in range(2):
            for i in (16, 17): I("v_mul_f32", o[p][i], o[p][i], o[p][18])
        for p in range(2):
            I("v_cvt_pk_bf16_f32", OF[("L", 0, p)][0], o[p][16], o[p][17])
            ostore(("L", 0, p))
    def fin_tile(t, packed):
        for p in range(2):
            if packed:
                for i in (4 * t, 4 * t + 2): I("v_pk_mul_f32", o[p][i:i + 2], o[p][i:i + 2], o[p][18:20], mods="op_sel:[0,0] op_sel_hi:[1,0]")
            else:
                for i in range(4 * t, 4 * t + 4): I("v_mul_f32", o[p][i], o[p][i], o[p][18])
            for h in range(2):
                I("v_cvt_pk_bf16_f32", OF[(0, p, t // 2)][2 * (t & 1) + h], o[p][4 * t + 2 * h], o[p][4 * t + 2 * h + 1])
            if t & 1: ostore((0, p, t // 2))
    rfchk = check_or_retry("rf" + path, lambda: I("v_xor_b32", vCK, sRV, RF), lambda: I("v_cmp_lt_u32", "vcc", 15, vCK), rf_load)
    rfchk += [cap(lambda: I("v_cmp_ne_u32", s(50, 2), 0, vCK))]
    fill = at(0, rfchk)
    fill += spread(singles(cap(fin_den)), NJ + 2, 2 * NJ + 1)
    for t in range(3): fill += spread(singles(cap(lambda: fin_tile(t, False))), (2 + t) * NJ + 1 + (1 if B else 0), (3 + t) * NJ + 1)
    pipe.emit(fill, lead=olead)
    fst("omm")
    fin_tile(3, True)
    I("s_cmp_lg_u64", s(50, 2), 0)
    I("s_cbranch_scc1", "L_far" + path)
    P.label("L_near" + path)
    def far():
        P.label("L_far" + path)
        for key in keys[:4] + [("L", 0, 0), ("L", 0, 1)]: ostore(key, " sc1")
        wait(vm=0)
        I("buffer_store_dword", vRV, vRA, SWS, sRF, mods="offen offset:32 sc1")
        P.label("L_farp" + path)
        I("buffer_load_dword", vCK, T[4], SWS, sRF, mods="offen offset:32 sc1")
        wait(vm=0)
        I("v_xor_b32", vCK, sRV, vCK)
        I("v_cmp_lt_u32", "vcc", 15, vCK)
        I("s_add_u32", sCNT, sCNT, 1)
        I("s_cmp_gt_u32", sCNT, SPIN)
        I("s_cbranch_scc1", "L_near" + path)
        I("s_cbranch_vccnz", "L_farp" + path)
        I("s_branch", "L_near" + path)
    SLOW.append(cap(far))
    stamp("pubO")

    def oload(u):
        for X in (1, 0):
            for p in (1, 0):
                I("buffer_load_dwordx4", OF[(u, p, X)], vL16, SWS, sOU[u], mods="offen offset:%d sc1" % (p * 2048 + X * 1024))
        for p in range(2):
            I("buffer_load_dword", OF[("L", u // 4, p)][u % 4], vL4, SWS, sOU[u], mods="offen offset:%d sc1" % (p * 256))
    def bf(ks, p):
        if ks < 16: return OF[(ks // 2, p, ks & 1)]
        return OF[("L", ks - 16, p)]
    offs = lambda ks: ((ks // 2) % 6) * 9216 + (ks & 1) * 144
    vW1, vW2, vW3, vRD = vIW, vVW, vAM, vAL
    vST = [vP2, vPSA, vKB0, vKB2, vP1]
    def out_addr():
        I("s_add_u32", sT0, sMQ, OUTB)
        I("v_mul_u32_u24", T[0], 144, vN); I("v_add_u32", T[0], sT0, T[0])
        I("v_mul_u32_u24", T[1], 40, vGL); I("v_add_u32", vW1, T[0], T[1])
        I("v_lshrrev_b32", T[4], 1, vGL)
        I("v_lshlrev_b32", T[2], 5, T[4]); I("v_sub_u32", vW2, vW1, T[2])
        I("v_mul_u32_u24", T[3], 72, T[4]); I("v_add_u32", vW3, T[0], T[3])
        I("v_and_b32", T[3], 1, vGL); I("v_lshl_add_u32", vW3, T[3], 18, vW3)
        I("v_add_u32", vRD, sT0, vL16)
        I("s_movk_i32", sT1, 2304 - 144)
        for i in range(5):
            t = vM
            if i:
                I("v_add_u32", T[3], Q0[i] * 7282, vM); t = T[3]
            I("v_lshrrev_b32", T[0], 16, t)
            I("v_mad_u32_u24", vST[i], T[0], sT1, vL16)
    NPRE = OPT["npre"]
    wait_vm("WO8")
    I("s_barrier")
    stamp("ackO")
    I("s_mov_b32", sT2, 0)
    P.label("L_redo" + path)
    g = []
    for u in range(1, NPRE + 1): g += tagged(singles(cap(lambda: oload(u))), "O%d" % u)
    if OPT["j3"]:
        def preread():
            rebase(WO6 - WO0)
            for ks in range(18 - OPT["npf"], 18):
                for t in range(5): tile_read(a(100 + ((ks - (18 - OPT["npf"])) * 5 + t) * 4, 4), t, offs(ks))
            rebase(WO0 - WO6)
        if OPT["prm"]:
            global vTR
            for pat in range(3):
                for e in range(2): I("v_add_u32", T[2 * pat + e], WO6 - WO0, vTR[pat][e])
            sv = vTR; vTR = [[T[2 * pat + e] for e in range(2)] for pat in range(3)]
            pr = [x for x in cap(preread) if x.kind == "ds"]
            vTR = sv
            prg = []
            for i in range(0, len(pr), 2): prg.append(pr[i:i + 2])
            fill = spread(weave(g, prg[:10]), 0, 6) if OPT["prm"] == 1 else spread(g, 0, 6)
            rest = prg[10:] if OPT["prm"] == 1 else prg
            prehook = {9: sum(rest, [])}
        else:
            emit_groups(weave(singles(cap(preread)), g))
            fill = []; prehook = {}
    else:
        fill = spread(g, 0, 7)
    def ochk(u):
        regs = [OF[(u, 0, 1)][3], OF[(u, 1, 1)][3], OF[(u, 1, 0)][3]]
        return [cap(lambda: wait_vm("O%d" % u))] + check_sent("o%d%s" % (u, path), vCK, regs, lambda: oload(u))
    for u in range(0, 7):
        b0 = u * 10
        blk = spread(ochk(u + 1), b0 + 6, b0 + 6)
        if u == 0 and OPT["j3"] and OPT["prm"]:
            prehook[10] = sum([g_ for _, g_ in blk], []); blk = []
        if u and u + NPRE <= 7: blk += spread(tagged(singles(cap(lambda: oload(u + NPRE))), "O%d" % (u + NPRE)), b0, b0 + 10)
        fill += sorted(blk, key=lambda t: t[0])
    NPF = OPT["npf"] if OPT["j3"] else 0
    assert NPF in (0, 2, 4, 6)
    WF = lambda ks, t: a(100 + ((ks - (18 - NPF)) * 5 + t) * 4, 4)
    OUTR = [OF[(1 + t // 2, p, 0)][2 * (t & 1):2 * (t & 1) + 2] for p in range(2) for t in range(5)]
    OB = [OF[(1, 0, 1)], OF[(1, 1, 1)], OF[(2, 0, 1)], OF[(2, 1, 1)], OF[(3, 0, 1)]]
    fl = ["", " sc1", " nt", " sc0 sc1"][OPT["outflag"]]
    def ocvt(p):
        for t in range(5):
            r_ = OUTR[5 * p + t]
            for h in range(2): I("v_cvt_pk_bf16_f32", r_[h], ACK[p][t][2 * h], ACK[p][t][2 * h + 1])
            ad, off = (vW1, 8 * t) if t < 3 else ((vW2, 24) if t == 3 else (vW3, 32))
            I("ds_write_b64", ad, r_, mods="offset:%d" % (off + p * 2304))
    def ord_(i): I("ds_read_b128", OB[i], vRD, mods="offset:%d" % (16 * Q0[i]))
    def ost(i):
        if i == 0: I("s_mov_b32", "exec_hi", 0)
        I("buffer_store_dwordx4", OB[i], vST[i], SOUT, sOUTB, mods="offen offset:%d%s" % (16 * Q0[i], fl))
        if i == 0: I("s_mov_b32", "exec_hi", -1)
    def nanchk(regs, back):
        I("v_cmp_u_f32", "vcc", regs[0], regs[1])
        I("s_cbranch_vccnz", "L_again%s" % back + path)
        P.label("L_done%s" % back + path)
        def again():
            P.label("L_again%s" % back + path)
            I("s_add_u32", sT2, sT2, 1)
            I("s_cmp_gt_u32", sT2, 16)
            I("s_cbranch_scc1", "L_done%s" % back + path)
            wait(vm=0, lgkm=0)
            if NPF < 6: rebase(WO0 - WO6)
            I("s_nop", 7)
            I("s_branch", "L_redo" + path)
        SLOW.append(cap(again))
    if NPF:
        nb = (18 - NPF) * 5
        half = NPF * 5 // 2
        def extra(pipe):
            for p in range(2):
                ms = [(ks, t) for ks in range(18 - NPF, 18) for t in range(5)]
                for i in range(0, len(ms), 2):
                    pipe.add(lambda: None, lambda: [mfma(ACK[p][t], WF(ks, t), bf(ks, p), ACK[p][t]) for ks, t in ms[i:i + 2]])
        fill = [((nb + (t_ - nb) // 2 - 2) if t_ > nb else t_, g) for t_, g in fill]
        fill += spread(singles(cap(out_addr)), 42, 56)
        tail0 = [cap(lambda: nanchk((ACK[0][0][0], ACK[0][1][0]), "0"))] + singles(cap(lambda: ocvt(0))) + singles(cap(lambda: (ord_(0), ord_(1))))
        fill += spread(tail0, nb + half + 2, nb + half + 8)
        fill += [(nb + half + 11, cap(lambda: (wait(lgkm=0), ost(0)))), (min(89, nb + half + 13), cap(lambda: ost(1)))]
        fill.sort(key=lambda t: t[0])
        gemm2(bf, offs, {12: WO6 - WO0}, fill, "o", prehook, nks=18 - NPF, extra=extra)
        stamp("ogemm")
        nanchk((ACK[1][0][0], ACK[1][1][0]), "1")
        ocvt(1)
        for i in (2, 3, 4): ord_(i)
        for i in (2, 3, 4):
            wait(lgkm=4 - i); ost(i)
    else:
        fill += spread(singles(cap(out_addr)), 70, 88)
        gemm2(bf, offs, {12: WO6 - WO0}, fill, "o")
        stamp("ogemm")
        nanchk((ACK[0][0][0], ACK[1][0][0]), "1")
        ocvt(0); ocvt(1)
        for i in range(5): ord_(i)
        for i in range(5):
            wait(lgkm=4 - i); ost(i)
    if B:
        I("s_or_b32", sT0, sSL, sG)
        I("s_cmp_lg_u32", sT0, 0)
        I("s_cbranch_scc1", "L_noep" + path)
        I("v_mov_b32", T[0], WS_E); I("v_mov_b32", T[1], sE)
        I("buffer_store_dword", T[1], T[0], SWS, 0, mods="offen")
        P.label("L_noep" + path)
    if OPT["stamps"]:
        stamp("stiss")
        if B: P.label("L_fin")
        OPT["mute"] = 0
        wait(vm=0)
        stamp("end")
        I("s_memrealtime", s(100, 2))
        wait(lgkm=0)
        if OPT["fine"]:
            for k, nm in enumerate(OPT["fine"].split(",")):
                stamp_names.append(nm); STAMPS[k] = s(4 + 2 * k)
        n = len(stamp_names)
        for k in range(n):
            if OPT["lite"] and k != OPT["amp"] and k != n - 1: continue
            assert OPT["lite"] or n <= 17
            I("s_sub_u32", STAMPS[k], STAMPS[k], s(96 if (OPT["lite"] == 2 or OPT["rt"]) else 98))
            I("v_mov_b32", v(64 + k), STAMPS[k])
        I("v_mov_b32", v(64 + 28), sT2); I("v_mov_b32", v(64 + 29), s(3))
        I("v_mov_b32", v(64 + 30), s(96)); I("v_mov_b32", v(64 + 31), s(100))
        I("s_lshl_b32", sT0, s(2), 2); I("s_add_u32", sT0, sT0, sWV); I("s_lshl_b32", sT0, sT0, 7); I("s_add_u32", sT0, sT0, WS_ST)
        I("v_mov_b32", T[0], 0)
        I("s_mov_b64", "exec", 1)
        for q in range(8):
            I("buffer_store_dwordx4", v(64 + 4 * q, 4), T[0], SWS, sT0, mods="offen offset:%d" % (16 * q))
        assert OPT["amp"] < n
        if OPT["amp"] >= 0 and OPT["ampsel"] in (0, 2 if B else 1):
            I("s_lshl_b32", sT2, STAMPS[OPT["amp"]], 3)
            I("s_add_u32", sT2, sT2, STAMPS[n - 1])
            P.label("L_amp" + path)
            I("s_memrealtime" if OPT["lite"] == 2 else "s_memtime", s(100, 2)); wait(lgkm=0)
            I("s_sub_u32", sT1, s(100), s(96 if OPT["lite"] == 2 else 98))
            I("s_cmp_lt_u32", sT1, sT2)
            I("s_cbranch_scc1", "L_amp" + path)

HEADER = open("cdna_kernels/%s.s.ref" % NAME).read().split("; Override launch")[0]

def wrap(body):
    txt = HEADER + "; @launch grid=(256,1,1) block=(256,1,1) lds=%d\n" % LDS_BYTES
    txt += "; stamps: %s\n" % ",".join(stamp_names) if stamp_names else ""
    txt += '.amdgcn_target "amdgcn-amd-amdhsa--gfx950"\n.text\n.globl %s_kernel\n.p2align 12\n.type %s_kernel,@function\n' % (NAME, NAME)
    txt += ".set CODE_SPAN, (L_last - %s_kernel - 128) & 0xffffff80\n" % NAME
    txt += ".set HEAD_LINES, ((L_tailB - %s_kernel) >> 7) + 8\n.set A_SHIFT, (L_tailA - L_tailB - 2048) & 0xffffff80\n" % NAME
    txt += "%s_kernel:\n%s\n" % (NAME, body)
    txt += """.section .rodata,"a"
.p2align 6
.amdhsa_kernel %s_kernel
  .amdhsa_next_free_vgpr 512
  .amdhsa_next_free_sgpr 102
  .amdhsa_accum_offset 256
  .amdhsa_group_segment_fixed_size 0
  .amdhsa_kernarg_size 80
  .amdhsa_user_sgpr_count 2
  .amdhsa_user_sgpr_kernarg_segment_ptr 1
  .amdhsa_system_sgpr_workgroup_id_x 1
.end_amdhsa_kernel
""" % NAME
    return txt

def main(out):
    build()
    txt = P.finalize2(wrap)
    open(out, "w").write(txt)
    print("wrote", out, "hazard nops:", P.nops, "align fixes:", P.fixes, "bytes:", P.bytes, "touch points:", P.points)

if __name__ == "__main__":
    out = sys.argv[1]
    for kv in sys.argv[2:]:
        k, val = kv.split("=")
        assert k in OPT, k
        OPT[k] = val if k in ("stop", "fine", "ampn") else int(val)
    main(out)
```
